```python
import torch

def _softmax(x, axis=-1):
    return torch.softmax(x, dim=axis)

def _gelu(x):
    return torch.nn.functional.gelu(x, approximate='tanh')

def _silu(x):
    return torch.nn.functional.silu(x)

def _sigmoid(x):
    return torch.sigmoid(x)

def _layernorm(x, axis=-1, eps=1e-05):
    m = x.mean(dim=axis, keepdim=True)
    v = x.var(dim=axis, keepdim=True, unbiased=False)
    return (x - m) / torch.sqrt(v + eps)

def _scatter_add(tgt, idx, src, axis=0):
    return tgt.clone().index_add_(axis, idx, src)

def _segment_sum(src, seg, n):
    out = torch.zeros((n,) + src.shape[1:], dtype=src.dtype)
    return out.index_add_(0, seg, src)

def _pad(x, pw):
    flat = tuple((v for pair in reversed(pw) for v in pair))
    return torch.nn.functional.pad(x, flat)
kernel_name = 'adaLN_cond__memory_aug_recurrent_mem_tr__glu_gated_swiglu__prompt'

def setup_inputs():

    _w = lambda a: (lambda t: t.to(torch.bfloat16) if t.is_floating_point() else t)(torch.as_tensor(a))

    def _A_setup():
        B, S, Dm = (1, 2048, 1024)
        H, Dh = (32, 128)
        M, seg = (8, 32)
        seg = min(seg, S)
        S = S // seg * seg
        return {'x': _w((lambda *s: torch.randn(*s, dtype=torch.bfloat16) * 0.05)(B, S, Dm)), 'mem0': _w((lambda *s: torch.randn(*s, dtype=torch.bfloat16) * 0.8)(B, M, Dm)), 'Wq': _w((lambda *s: torch.randn(*s, dtype=torch.bfloat16) * 0.8)(Dm, H, Dh) * Dm ** (-0.5)), 'Wk': _w((lambda *s: torch.randn(*s, dtype=torch.bfloat16) * 0.8)(Dm, H, Dh) * Dm ** (-0.5)), 'Wv': _w((lambda *s: torch.randn(*s, dtype=torch.bfloat16) * 0.8)(Dm, H, Dh) * Dm ** (-0.5)), 'Wo': _w((lambda *s: torch.randn(*s, dtype=torch.bfloat16) * 0.8)(H, Dh, Dm) * (H * Dh) ** (-0.5)), 'seg_len': seg}
    _A_in = _A_setup()

    def _B_setup():
        B, S, D, F = (1, 2048, 1024, 3584)
        return {'x': _w((lambda *s: torch.randn(*s, dtype=torch.bfloat16) * 0.05)(B, S, D)), 'w1': _w((lambda *s: torch.randn(*s, dtype=torch.bfloat16) * 0.4)(D, F) * (2.0 / D) ** 0.5), 'w3': _w((lambda *s: torch.randn(*s, dtype=torch.bfloat16) * 0.4)(D, F) * (2.0 / D) ** 0.5), 'w2': _w((lambda *s: torch.randn(*s, dtype=torch.bfloat16) * 0.4)(F, D) * (2.0 / F) ** 0.5)}
    _B_in = _B_setup()
    return {'A_x': _A_in['x'], 'A_mem0': _A_in['mem0'], 'A_Wq': _A_in['Wq'], 'A_Wk': _A_in['Wk'], 'A_Wv': _A_in['Wv'], 'A_Wo': _A_in['Wo'], 'A_seg_len': _A_in['seg_len'], 'B_x': _B_in['x'], 'B_w1': _B_in['w1'], 'B_w3': _B_in['w3'], 'B_w2': _B_in['w2'], 'c': _w((lambda *s: torch.randn(*s, dtype=torch.bfloat16) * 0.1)(1, 1024) * 8.0), 'w_mod': _w((lambda *s: torch.randn(*s, dtype=torch.bfloat16) * 0.1)(1024, 6 * 1024) * 1024 ** (-0.5) * 8.0)}

def reference(A_x, A_mem0, A_Wq, A_Wk, A_Wv, A_Wo, A_seg_len, B_x, B_w1, B_w3, B_w2, c, w_mod):

    def _A_ref(x, mem0, Wq, Wk, Wv, Wo, seg_len):
        B, S, Dm = x.shape
        H, Dh = (Wq.shape[1], Wq.shape[2])
        M = mem0.shape[1]
        scale = Dh ** (-0.5)
        n_seg = S // seg_len
        L = M + seg_len
        idx = torch.arange(L)
        mask = (idx[:, None] < M) | (idx[:, None] >= idx[None, :])
        mem = mem0
        outs = []
        for s in range(n_seg):
            xs = x[:, s * seg_len:(s + 1) * seg_len, :].clone()
            h = torch.concatenate([mem, xs], axis=1)
            q = torch.einsum('btd,dhe->bhte', h, Wq)
            k = torch.einsum('btd,dhe->bhte', h, Wk)
            v = torch.einsum('btd,dhe->bhte', h, Wv)
            scores = torch.einsum('bhqe,bhke->bhqk', q, k) * scale
            scores = torch.where(mask[None, None], scores, -1000000000.0)
            p = _softmax(scores, axis=-1)
            o = torch.einsum('bhqk,bhke->bhqe', p, v)
            o = torch.einsum('bhte,hed->btd', o, Wo)
            mem = o[:, :M, :].clone()
            outs.append(o[:, M:, :])
        return torch.concatenate(outs, axis=1)

    def _B_ref(x, w1, w3, w2):
        gate = torch.einsum('bsd,df->bsf', x, w1)
        up = torch.einsum('bsd,df->bsf', x, w3)
        h = _silu(gate) * up
        out = torch.einsum('bsf,fd->bsd', h, w2)
        return out
    x = A_x
    mod = (_silu(c) @ w_mod).reshape(c.shape[0], 6, 1, -1)
    sa, ca, ga, sb, cb, gb = (mod[:, 0].clone(), mod[:, 1].clone(), mod[:, 2].clone(), mod[:, 3].clone(), mod[:, 4].clone(), mod[:, 5].clone())
    h = _layernorm(x, axis=-1) * (1 + ca) + sa
    x = x + ga * _A_ref(h, A_mem0, A_Wq, A_Wk, A_Wv, A_Wo, A_seg_len)
    h = _layernorm(x, axis=-1) * (1 + cb) + sb
    x = x + gb * _B_ref(h, B_w1, B_w3, B_w2)
    return x
```

```python
NAME = "adaLN_cond__memory_aug_recurrent_mem_tr__glu_gated_swiglu__prompt"

KA = dict(x=0, mem0=8, Wq=16, Wk=24, Wv=32, Wo=40, seg=48, Bx=56, w1=64, w3=72, w2=80,
          c=88, wmod=96, out=104, dbg=112, ws=120)
SIZE = dict(x=2048 * 1024 * 2, mem0=8 * 1024 * 2, Wq=1024 * 4096 * 2, Wk=1024 * 4096 * 2,
            Wv=1024 * 4096 * 2, Wo=4096 * 1024 * 2, w1=1024 * 3584 * 2, w3=1024 * 3584 * 2,
            w2=3584 * 1024 * 2, c=2048, wmod=1024 * 6144 * 2, out=2048 * 1024 * 2, dbg=256,
            ws=268435456)


def v(i, n=1):
    return f"v{i}" if n == 1 else f"v[{i}:{i + n - 1}]"


def a(i, n=1):
    return f"a{i}" if n == 1 else f"a[{i}:{i + n - 1}]"


def s(i, n=1):
    return f"s{i}" if n == 1 else f"s[{i}:{i + n - 1}]"


def r(i, n=1):
    return v(i, n) if i < 256 else a(i - 256, n)


class Asm:
    def __init__(self):
        self.lines = []
        self.uid = 0

    def __call__(self, text):
        for ln in text.split("\n"):
            ln = ln.strip()
            if ln:
                self.lines.append(ln)

    def c(self, text):
        self.lines.append("; " + text)

    def label(self, name):
        self.lines.append(name + ":")

    def new(self, base):
        self.uid += 1
        return f"L{base}_{self.uid}"

    def nop(self, states):
        while states > 0:
            k = min(states, 16)
            self(f"s_nop {k - 1}")
            states -= k

    def srd(self, d, ptr, size):
        self(f"s_mov_b32 {s(d)}, {s(ptr)}")
        self(f"s_and_b32 {s(d + 1)}, {s(ptr + 1)}, 0xffff")
        self(f"s_mov_b32 {s(d + 2)}, {hex(size)}")
        self(f"s_mov_b32 {s(d + 3)}, 0x20000")

    def kernel_begin(self, name):
        self(f".globl {name}")
        self(".p2align 8")
        self(f".type {name},@function")
        self.label(name)

    def text(self):
        return "\n".join(self.lines) + "\n"


def descriptor(name, vgpr=512, sgpr=102, accum=256):
    return f""".amdhsa_kernel {name}
  .amdhsa_next_free_vgpr {vgpr}
  .amdhsa_next_free_sgpr {sgpr}
  .amdhsa_accum_offset {accum}
  .amdhsa_group_segment_fixed_size 0
  .amdhsa_kernarg_size 128
  .amdhsa_user_sgpr_count 2
  .amdhsa_user_sgpr_kernarg_segment_ptr 1
  .amdhsa_system_sgpr_workgroup_id_x 1
  .amdhsa_float_denorm_mode_32 3
.end_amdhsa_kernel
"""


def build_file(header_comments, launches, asm, kernels, single=False):
    out = []
    for ln in header_comments:
        out.append("; " + ln)
    for (k, g, b, lds) in launches:
        which = "" if single else f"kernel={k} "
        out.append(f"; @launch {which}grid=({g},1,1) block=({b},1,1) lds={lds}")
    out.append('.amdgcn_target "amdgcn-amd-amdhsa--gfx950"')
    out.append(".text")
    out.append(asm.text())
    out.append('.section .rodata,"a"')
    for (k, vg, sg, ac) in kernels:
        out.append(".p2align 6")
        out.append(descriptor(k, vg, sg, ac))
    return "\n".join(out)
```

```python
from asmlib import *
import layout as L

SWS, SW, SDBG = 4, 8, 12
P_MEM0, P_WQ, P_WK, P_WV, P_WO, P_DBG, P_WS = 16, 18, 20, 22, 24, 28, 30
S_WAVE, S_GRP, S_TK, S_IRR, S_STEP, S_BUD, S_T0, S_T1 = 32, 33, 34, 35, 36, 37, 38, 39
S_CUR, S_NXT, S_RST, S_XCUR, S_XRST, S_RBASE, S_PAR, S_PF, S_C, S_NC, S_OT = range(40, 51)
S_XCC, S_T2, S_T3 = 51, 52, 53
S_FB, S_TAG = 59, 26
S_XC, S_XR = 84, 88
S_STAMP = 60
S_CNT = 80
NCHAIN = 96
BUDGET = 200000
SM = "v_smfmac_f32_16x16x64_bf16"
MF = "v_mfma_f32_16x16x32_bf16"


class Cfg:
    trace = 0
    nsteps = 64
    cyc = 0
    flip = 0
    nrep = 2
    xdelay = 28
    xgap = 12
    xfill = 0
    fm_delay = 36
    mdelay = 8
    fo_pos = 3
    use_fm = 1
    use_fo = 1
    fspace = 12
    lspace = 4
    ltail = 1
    kpos = 1
    vpos = 0
    ksplit = 2
    qsplit = 5
    rpos = 3
    vin = 2
    vk = 2
    xdepth = 3
    xgap2 = 4
    xbf = 1
    vchk = 1
    qpipe = 0
    hw = 2
    hr = 3


def heat(A, h, n):
    for _ in range(n):
        A(f"{MF} {v(h, 4)}, {v(h + 4, 4)}, {v(h + 4, 4)}, 0")


def stamp(A, cfg, i, lvl=1):
    if cfg.trace in (1, lvl):
        A(f"{'s_memtime' if cfg.cyc else 's_memrealtime'} {s(S_STAMP + 2 * i, 2)}")


def count(A, cfg, i):
    if cfg.trace == 1:
        A(f"s_add_u32 {s(S_CNT + i)}, {s(S_CNT + i)}, 1")


def flush_stamps(A, cfg, n, vt, va, lvl=1):
    if cfg.trace not in (1, lvl):
        return
    A("s_waitcnt lgkmcnt(0)")
    for i in range(n):
        A(f"v_writelane_b32 {v(vt)}, {s(S_STAMP + 2 * i)}, {i}")
    A(f"v_writelane_b32 {v(vt)}, {s(S_BUD)}, 8")
    for i in range(4):
        A(f"v_writelane_b32 {v(vt)}, {s(S_CNT + i)}, {9 + i}")
    A(f"s_mul_i32 {s(S_T0)}, {s(S_GRP)}, 24")
    A(f"s_add_u32 {s(S_T0)}, {s(S_T0)}, {s(S_TK)}")
    A(f"s_lshl_b32 {s(S_T0)}, {s(S_T0)}, 2")
    A(f"s_add_u32 {s(S_T0)}, {s(S_T0)}, {s(S_WAVE)}")
    A(f"s_lshl_b32 {s(S_T0)}, {s(S_T0)}, 6")
    A(f"s_add_u32 {s(S_T0)}, {s(S_T0)}, {s(S_STEP)}")
    A(f"s_lshl_b32 {s(S_T0)}, {s(S_T0)}, 6")
    A(f"s_add_u32 {s(S_T0)}, {s(S_T0)}, {L.TRACE}")
    A(f"v_mbcnt_lo_u32_b32 {v(va)}, -1, 0")
    A(f"v_lshlrev_b32 {v(va)}, 2, {v(va)}")
    A("s_mov_b64 exec, 0xffff")
    A(f"buffer_store_dword {v(vt)}, {v(va)}, {s(SWS, 4)}, {s(S_T0)} offen")
    A("s_mov_b64 exec, -1")


def check(A, reg, n, tmp):
    if n == 4:
        A(f"v_max3_u32 {v(tmp)}, {v(reg)}, {v(reg + 1)}, {v(reg + 2)}")
        A(f"v_max_u32 {v(tmp)}, {v(tmp)}, {v(reg + 3)}")
    elif n > 4:
        A(f"v_max3_u32 {v(tmp)}, {v(reg)}, {v(reg + 1)}, {v(reg + 2)}")
        for i in range(3, n - 1, 2):
            A(f"v_max3_u32 {v(tmp)}, {v(tmp)}, {v(reg + i)}, {v(reg + i + 1)}")
        A(f"v_max_u32 {v(tmp)}, {v(tmp)}, {v(reg + n - 1)}")
    elif n == 2:
        A(f"v_max_u32 {v(tmp)}, {v(reg)}, {v(reg + 1)}")
    A(f"v_cmp_eq_u32 vcc, -1, {v(tmp)}")


def spend(A, abort):
    A(f"s_sub_u32 {s(S_BUD)}, {s(S_BUD)}, 1")
    A(f"s_cbranch_scc1 {abort}")


def fsm_poll(A, n, ld, chk, use, abort, finished=None, fast=None, onfail=None):
    done = A.new("pd")
    labels, emitted, todo = {}, set(), []
    full = frozenset(range(n))
    if finished is None:
        finished = lambda got: got == full

    def lab(st):
        if st not in labels:
            labels[st] = A.new("ps")
            todo.append(st)
        return labels[st]

    fails = []

    def chain_from(st, last):
        while True:
            if st in emitted:
                A(f"s_branch {lab(st)}")
                return
            emitted.add(st)
            A.label(lab(st))
            fl = A.new("pf")
            fails.append((fl, st))
            A(f"s_waitcnt vmcnt({len(st) - 1})")
            chk(st[0])
            A(f"s_cbranch_vccnz {fl}")
            rest = st[1:]
            fin = finished(full - frozenset(rest))
            use(st[0], () if fin else rest)
            if fin:
                if not last:
                    A(f"s_branch {done}")
                return
            st = rest

    if fast is None:
        chain_from(tuple(range(n)), True)
    else:
        head, tail = fast
        for i in range(n):
            fl = A.new("pf")
            fails.append((fl, tuple(range(i, n))))
            A(f"s_waitcnt vmcnt({n - 1 - i})")
            chk(i)
            if i:
                tail(i - 1)
            A(f"s_cbranch_vccnz {fl}")
            head(i)
        tail(n - 1)

    def rest_code():
        i = 0
        while i < len(fails) or any(t not in emitted for t in todo):
            while i < len(fails):
                fl, st = fails[i]
                i += 1
                A.label(fl)
                ld(st[0])
                if onfail:
                    onfail(i <= n and fast is not None)
                if st[0] == min(st):
                    spend(A, abort)
                chain_from(st[1:] + st[:1], False)
            for t in list(todo):
                if t not in emitted:
                    chain_from(t, False)
    return done, rest_code


def flag_wait(A, cfg, vaddr, buf, nl, abort):
    go, top = A.new("fg"), A.new("ft")
    ld = lambda b: A(f"buffer_load_dword {v(buf + b)}, {v(vaddr)}, {s(SWS, 4)}, {s(S_FB)} offen sc1")
    A(f"s_mov_b64 exec, {(1 << nl) - 1}")
    for b in range(3):
        ld(b)
        if b < 2:
            A.nop(cfg.fspace)
    A.label(top)
    for b in range(3):
        A("s_waitcnt vmcnt(2)")
        A(f"v_cmp_gt_u32 vcc, {s(S_TAG)}, {v(buf + b)}")
        A(f"s_cbranch_vccz {go}")
        ld(b)
    spend(A, abort)
    A(f"s_branch {top}")
    A.label(go)
    A("s_mov_b64 exec, -1")


def load_weights(A, chunks, vglob, vtr):
    NS = 5

    def issue(c):
        setup, stride, order, dst = chunks[c]
        setup()
        A(f"s_mul_i32 {s(S_T0)}, {s(S_WAVE)}, 40960")
        A(f"s_add_u32 m0, {s(S_T0)}, {(c % NS) * 8192}")
        for j in range(8):
            if j:
                A(f"s_add_u32 m0, m0, 1024")
                A(f"s_add_u32 {s(S_T1)}, {s(S_T1)}, {8 * stride}")
            else:
                A("s_nop 0")
            A(f"buffer_load_dwordx4 {v(vglob[stride])}, {s(SW, 4)}, {s(S_T1)} offen lds")

    n = len(chunks)
    for c in range(min(NS, n)):
        issue(c)
    for c in range(n):
        setup, stride, order, dst = chunks[c]
        A(f"s_waitcnt vmcnt({8 * (min(c + NS, n) - c - 1)})")
        for t in range(4):
            for H in range(2):
                for q in range(2):
                    row = 32 * H + (16 * q if order == "P" else 2 * q)
                    off = (c % NS) * 8192 + row * 128 + t * 32
                    A(f"ds_read_b64_tr_b16 {r(dst(t) + 4 * H + 2 * q, 2)}, {v(vtr[order])} offset:{off}")
        A("s_waitcnt lgkmcnt(0)")
        if c + NS < n:
            issue(c + NS)


def weight_addr_regs(A, lane, g8192, g2048, trP, trO, t0, t1):
    A(f"v_lshrrev_b32 {v(t0)}, 3, {v(lane)}")
    A(f"v_and_b32 {v(t1)}, 7, {v(lane)}")
    A(f"v_lshlrev_b32 {v(t1)}, 4, {v(t1)}")
    A(f"v_lshl_add_u32 {v(g8192)}, {v(t0)}, 13, {v(t1)}")
    A(f"v_lshl_add_u32 {v(g2048)}, {v(t0)}, 11, {v(t1)}")
    A(f"s_mul_i32 {s(S_T0)}, {s(S_WAVE)}, 40960")
    A(f"v_and_b32 {v(t1)}, 3, {v(lane)}")
    A(f"v_lshl_add_u32 {v(t1)}, {v(t1)}, 3, {s(S_T0)}")
    A(f"v_lshrrev_b32 {v(t0)}, 2, {v(lane)}")
    A(f"v_lshl_add_u32 {v(trP)}, {v(t0)}, 7, {v(t1)}")
    A(f"v_and_b32 {v(trO)}, 16, {v(lane)}")
    A(f"v_bfe_u32 {v(t0)}, {v(lane)}, 5, 1")
    A(f"v_lshl_add_u32 {v(trO)}, {v(t0)}, 3, {v(trO)}")
    A(f"v_bfe_u32 {v(t0)}, {v(lane)}, 3, 1")
    A(f"v_lshl_add_u32 {v(trO)}, {v(t0)}, 2, {v(trO)}")
    A(f"v_bfe_u32 {v(t0)}, {v(lane)}, 2, 1")
    A(f"v_add_u32 {v(trO)}, {v(trO)}, {v(t0)}")
    A(f"v_lshl_add_u32 {v(trO)}, {v(trO)}, 7, {v(t1)}")


def role_prologue(A, end):
    A("s_cmp_ge_u32 s2, 256")
    A(f"s_cbranch_scc1 {end}")
    A(f"s_load_dwordx8 {s(P_MEM0, 8)}, s[0:1], {KA['mem0']}")
    A(f"s_load_dwordx2 {s(P_WO, 2)}, s[0:1], {KA['Wo']}")
    A(f"s_load_dwordx4 {s(P_DBG, 4)}, s[0:1], {KA['dbg']}")
    A(f"s_getreg_b32 {s(S_XCC)}, hwreg(HW_REG_XCC_ID, 0, 4)")
    A(f"s_and_b32 {s(S_XCC)}, {s(S_XCC)}, 7")
    A("v_lshrrev_b32 v1, 6, v0")
    A("s_nop 0")
    A(f"v_readfirstlane_b32 {s(S_WAVE)}, v1")
    A("v_and_b32 v1, 63, v0")
    A("s_waitcnt lgkmcnt(0)")
    A.srd(SWS, P_WS, SIZE["ws"])
    A.srd(SDBG, P_DBG, SIZE["dbg"])
    A(f"s_mov_b32 {s(S_BUD)}, {BUDGET}")
    for i in range(4):
        A(f"s_mov_b32 {s(S_CNT + i)}, 0")
    got, loop, skip = A.new("rg"), A.new("rl"), A.new("rs")
    A(f"s_cmp_lg_u32 {s(S_WAVE)}, 0")
    A(f"s_cbranch_scc1 {skip}")
    A(f"s_mov_b32 {s(S_GRP)}, {s(S_XCC)}")
    A(f"s_mov_b32 {s(S_IRR)}, 0")
    A("s_mov_b64 exec, 1")
    A.label(loop)
    A(f"v_lshlrev_b32 v2, 2, {s(S_GRP)}")
    A("v_mov_b32 v3, 1")
    A(f"buffer_atomic_add v3, v2, {s(SDBG, 4)}, 0 offen sc0 sc1")
    A("s_waitcnt vmcnt(0)")
    A(f"v_readfirstlane_b32 {s(S_TK)}, v3")
    A("s_nop 3")
    A(f"s_cmp_lt_u32 {s(S_TK)}, 32")
    A(f"s_cbranch_scc1 {got}")
    A(f"s_add_u32 {s(S_GRP)}, {s(S_GRP)}, 1")
    A(f"s_and_b32 {s(S_GRP)}, {s(S_GRP)}, 7")
    A(f"s_add_u32 {s(S_IRR)}, {s(S_IRR)}, 1")
    A(f"s_cmp_lt_u32 {s(S_IRR)}, 8")
    A(f"s_cbranch_scc1 {loop}")
    A.label(got)
    A(f"s_lshl_b32 {s(S_T0)}, {s(S_GRP)}, 8")
    A(f"s_min_u32 {s(S_TK)}, {s(S_TK)}, 255")
    A(f"s_or_b32 {s(S_T0)}, {s(S_T0)}, {s(S_TK)}")
    A(f"s_lshl_b32 {s(S_T1)}, {s(S_IRR)}, 16")
    A(f"s_or_b32 {s(S_T0)}, {s(S_T0)}, {s(S_T1)}")
    A(f"v_mov_b32 v3, {s(S_T0)}")
    A("v_mov_b32 v2, 0")
    A("ds_write_b32 v2, v3")
    A("s_mov_b64 exec, -1")
    A.label(skip)
    A("s_waitcnt lgkmcnt(0)")
    A("s_barrier")
    A("v_mov_b32 v2, 0")
    A("ds_read_b32 v3, v2")
    A("s_waitcnt lgkmcnt(0)")
    A(f"v_readfirstlane_b32 {s(S_T0)}, v3")
    A("s_barrier")
    A(f"s_and_b32 {s(S_TK)}, {s(S_T0)}, 255")
    A(f"s_bfe_u32 {s(S_GRP)}, {s(S_T0)}, 0x80008")
    A(f"s_lshr_b32 {s(S_IRR)}, {s(S_T0)}, 16")
    A(f"s_min_u32 {s(S_IRR)}, {s(S_IRR)}, 1")
    A(f"s_cmp_ge_u32 {s(S_TK)}, 32")
    A(f"s_cbranch_scc1 {end}")


def arrive(A, add_reg):
    skip = A.new("ar")
    A("s_waitcnt vmcnt(0)")
    A("s_barrier")
    A(f"s_cmp_lg_u32 {s(S_WAVE)}, 0")
    A(f"s_cbranch_scc1 {skip}")
    A("s_mov_b64 exec, 1")
    A("v_mov_b32 v48, 32")
    A(f"v_mov_b32 v49, {s(add_reg)}")
    A(f"buffer_atomic_add v49, v48, {s(SDBG, 4)}, 0 offen sc1")
    A("s_mov_b64 exec, -1")
    A.label(skip)


def await_start(A, abort):
    loop = A.new("st")
    A("v_mov_b32 v48, 32")
    A.label(loop)
    spend(A, abort)
    A(f"buffer_load_dword v49, v48, {s(SDBG, 4)}, 0 offen sc1")
    A("s_waitcnt vmcnt(0)")
    A(f"v_readfirstlane_b32 {s(S_T0)}, v49")
    A("s_nop 3")
    A(f"s_and_b32 {s(S_T1)}, {s(S_T0)}, 0xffff")
    A(f"s_cmp_lg_u32 {s(S_T1)}, {NCHAIN}")
    A(f"s_cbranch_scc1 {loop}")
    A(f"s_bfe_u32 {s(S_IRR)}, {s(S_T0)}, 0x80010")
    A("s_barrier")


def probe(A, sws, wave, lane):
    A("s_getreg_b32 s51, hwreg(HW_REG_XCC_ID, 0, 4)")
    A("s_bfe_u32 s51, s51, 0x10002")
    A(f"v_lshlrev_b32 v2, 8, {v(lane)}")
    A("v_mov_b32 v3, -1")
    for pg in range(2):
        A(f"s_lshl_b32 s{52 + pg}, {s(wave)}, 22")
        A(f"s_add_u32 s{52 + pg}, s{52 + pg}, {L.XRING + (pg << 21)}")
        A(f"buffer_store_dword v3, v2, {s(sws, 4)}, s{52 + pg} offen sc1")
    A("s_waitcnt vmcnt(0)")
    A("s_mov_b64 exec, 1")
    for pg in range(2):
        for h in range(2):
            A(f"s_mov_b32 {s(54 + h)}, -1")
        for rep in range(3):
            for h in range(2):
                A(f"v_mov_b32 v2, {h * 8192 + rep * 2304}")
                A(f"s_memtime {s(56, 2)}")
                A("s_waitcnt lgkmcnt(0)")
                A(f"buffer_load_dword v3, v2, {s(sws, 4)}, s{52 + pg} offen sc1")
                A("s_waitcnt vmcnt(0)")
                A(f"s_memtime {s(58, 2)}")
                A("s_waitcnt lgkmcnt(0)")
                A("s_sub_u32 s56, s58, s56")
                A(f"s_min_u32 {s(54 + h)}, {s(54 + h)}, s56")
        A("s_cmp_lt_u32 s55, s54")
        A("s_cselect_b32 s56, 1, 0")
        A("s_xor_b32 s56, s56, s51")
        A(f"v_mov_b32 v{4 + pg}, s56")
    A(f"v_lshlrev_b32 v2, 3, {s(wave)}")
    A(f"s_mov_b32 s56, {L.PARITY}")
    A(f"buffer_store_dwordx2 v[4:5], v2, {s(sws, 4)}, s56 offen")
    A("s_mov_b64 exec, -1")


def load_parity(A, cfg, lane, t0, t1):
    A(f"v_lshlrev_b32 {v(t0)}, 2, {v(lane)}")
    A(f"s_mov_b32 {s(S_T0)}, {L.PARITY}")
    A(f"buffer_load_dword {v(t1)}, {v(t0)}, {s(SWS, 4)}, {s(S_T0)} offen")
    A("s_waitcnt vmcnt(0)")
    A(f"v_cmp_eq_u32 vcc, {1 - cfg.flip}, {v(t1)}")
    A("s_nop 4")
    A(f"s_and_b32 {s(S_PAR)}, vcc_lo, 0xff")


def x_offsets(A, cfg, dst, slot):
    for rr in range(cfg.nrep):
        A(f"s_lshl_b32 {s(S_T1)}, {s(slot)}, 1")
        if rr >> 1:
            A(f"s_or_b32 {s(S_T1)}, {s(S_T1)}, 1")
        A(f"s_lshr_b32 {s(S_T2)}, {s(S_PAR)}, {s(S_T1)}")
        A(f"s_and_b32 {s(S_T2)}, {s(S_T2)}, 1")
        A(f"s_lshl_b32 {s(S_T2)}, {s(S_T2)}, 13")
        A(f"s_lshl_b32 {s(S_T1)}, {s(S_T1)}, 21")
        A(f"s_add_u32 {s(S_T1)}, {s(S_T1)}, {s(S_T2)}")
        A(f"s_add_u32 {s(dst + rr)}, {s(S_T1)}, {L.XRING + ((rr & 1) << 20)}")


def ring_slots(A):
    A(f"s_and_b32 {s(S_T0)}, {s(S_STEP)}, 3")
    A(f"s_lshl_b32 {s(S_T1)}, {s(S_T0)}, 16")
    A(f"s_add_u32 {s(S_CUR)}, {s(S_T1)}, {s(S_RBASE)}")
    A(f"s_xor_b32 {s(S_RST)}, {s(S_CUR)}, 0x20000")
    A(f"s_add_u32 {s(S_TAG)}, {s(S_STEP)}, 1")


def kvo_role(A, cfg, end):
    TID, LANE = 0, 1
    VG, VGO, PUBM, PUBK, PUBV, XOWN, XP = 8, 9, 10, 11, 27, 12, 13
    IDX, LR, LWV, LRV, CHK = 126, 24, 25, 127, 26
    LRO, FMR, FOR, FMW, FBUF, TAGV = 0, 1, 2, 3, 4, 7
    AP, ACK, ACV, ACO, HS, RD, SUM, SENT = 28, 44, 60, 76, 92, 100, 116, 120
    XL = 76
    WK, WO, WV = 256, 256 + 128, 128
    RK, RO, RV, WS = 0, 10240, 20480, 2560
    KPL = lambda n, b: 4 * ((n >> 1) * 320 + (n & 1) * 72 + b * 160)
    OPL = lambda n, b: 4 * (n * 144 + b * 72)
    HT = 16
    S_CI, S_LO1 = 54, 55
    A.c("KVO role: column slice c of the k, v and output projections of head group S_GRP")
    A("v_mov_b32 v44, v0")
    A("v_mov_b32 v45, v1")
    TID, LANE, U = 44, 45, 46
    t2, t3, t4, t5, t6, t7 = 50, 51, 52, 53, 54, 55
    A(f"v_and_b32 {v(U)}, 127, {v(TID)}")
    A(f"s_sub_u32 {s(S_CI)}, {s(S_TK)}, 8")
    A(f"s_lshl_b32 {s(S_RBASE)}, {s(S_GRP)}, 18")
    A(f"s_add_u32 {s(S_RBASE)}, {s(S_RBASE)}, {L.LRING}")
    A(f"s_lshl_b32 {s(S_FB)}, {s(S_GRP)}, 12")
    A(f"s_add_u32 {s(S_FB)}, {s(S_FB)}, {L.FLAGS}")
    A(f"s_lshl_b32 {s(S_T0)}, {s(S_WAVE)}, 12")
    A(f"v_lshl_add_u32 {v(VG)}, {v(LANE)}, 4, {s(S_T0)}")
    A(f"v_add_u32 {v(VGO)}, 49152, {v(VG)}")
    A(f"s_lshl_b32 {s(S_T0)}, {s(S_CI)}, 10")
    A(f"v_lshl_add_u32 {v(PUBM)}, {v(U)}, 3, {s(S_T0)}")
    A(f"v_lshl_add_u32 {v(t2)}, {v(TID)}, 2, {s(S_T0)}")
    A(f"v_add_u32 {v(PUBK)}, 16384, {v(t2)}")
    A(f"v_add_u32 {v(PUBV)}, 32768, {v(t2)}")
    A(f"s_lshl_b32 {s(S_T0)}, {s(S_WAVE)}, 8")
    A(f"v_lshl_add_u32 {v(FMR)}, {v(LANE)}, 2, {s(S_T0)}")
    A(f"v_add_u32 {v(FOR)}, 2048, {v(FMR)}")
    A(f"s_lshr_b32 {s(S_T0)}, {s(S_CI)}, 2")
    A(f"s_lshl_b32 {s(S_T0)}, {s(S_T0)}, 8")
    A(f"s_and_b32 {s(S_T1)}, {s(S_CI)}, 3")
    A(f"s_lshl_b32 {s(S_T1)}, {s(S_T1)}, 2")
    A(f"s_add_u32 {s(S_T0)}, {s(S_T0)}, {s(S_T1)}")
    A(f"v_min_u32 {v(t2)}, 1, {v(TID)}")
    A(f"v_lshl_add_u32 {v(FMW)}, {v(t2)}, 30, {s(S_T0)}")
    XN = 2 if cfg.xbf else 4
    A(f"s_lshr_b32 {s(S_T0)}, {s(S_CI)}, {3 if cfg.xbf else 2}")
    A(f"s_lshl_b32 {s(S_T0)}, {s(S_T0)}, 14")
    A(f"s_and_b32 {s(S_T1)}, {s(S_CI)}, {7 if cfg.xbf else 3}")
    A(f"s_lshl_b32 {s(S_T1)}, {s(S_T1)}, {10 if cfg.xbf else 11}")
    A(f"s_add_u32 {s(S_T0)}, {s(S_T0)}, {s(S_T1)}")
    A(f"s_lshl_b32 {s(S_T1)}, {s(S_GRP)}, 16")
    A(f"s_add_u32 {s(S_T0)}, {s(S_T0)}, {s(S_T1)}")
    A(f"v_lshl_add_u32 {v(XOWN)}, {v(U)}, {3 if cfg.xbf else 4}, {s(S_T0)}")
    for j in range(3):
        A(f"v_xor_b32 {v(XP + j)}, {hex((j + 1) << 16)}, {v(XOWN)}")
    load_parity(A, cfg, LANE, t2, t3)
    A(f"s_mov_b32 {s(S_LO1)}, 0x00003f80")
    A(f"s_mov_b32 {s(S_LO1 + 1)}, 0x3f800000")
    A(f"v_and_b32 {v(t2)}, 1, {v(LANE)}")
    A(f"v_mul_u32_u24 {v(t2)}, 0xaaaa, {v(t2)}")
    A(f"v_add_u32 {v(IDX)}, 0x4444, {v(t2)}")
    A(f"s_lshl_b32 {s(S_T0)}, {s(S_WAVE)}, 11")
    A(f"v_lshl_add_u32 {v(LWV)}, {v(LANE)}, 5, {s(S_T0)}")
    A(f"v_lshlrev_b32 {v(LRV)}, 3, {v(TID)}")
    A(f"v_bfe_u32 {v(t2)}, {v(U)}, 5, 1")
    A(f"v_lshlrev_b32 {v(t2)}, 2, {v(t2)}")
    A(f"v_and_b32 {v(t3)}, 1, {v(U)}")
    A(f"v_lshl_add_u32 {v(t2)}, {v(t3)}, 1, {v(t2)}")
    A(f"v_bfe_u32 {v(t3)}, {v(U)}, 1, 1")
    A(f"v_add_u32 {v(t2)}, {v(t2)}, {v(t3)}")
    A(f"v_and_b32 {v(t3)}, 24, {v(U)}")
    A(f"v_add_u32 {v(t3)}, {v(t3)}, {v(t2)}")
    A(f"v_lshlrev_b32 {v(t3)}, 3, {v(t3)}")
    A(f"v_bfe_u32 {v(t4)}, {v(U)}, 2, 1")
    A(f"v_mul_u32_u24 {v(t4)}, {OPL(0, 1)}, {v(t4)}")
    A(f"v_add_u32 {v(t3)}, {v(t3)}, {v(t4)}")
    A(f"v_lshrrev_b32 {v(t4)}, 6, {v(U)}")
    A(f"v_mul_u32_u24 {v(t5)}, {OPL(2, 0)}, {v(t4)}")
    A(f"v_add_u32 {v(LRO)}, {v(t3)}, {v(t5)}")
    A(f"v_lshl_add_u32 {v(t2)}, {v(t4)}, 4, {v(t2)}")
    A(f"v_bfe_u32 {v(t3)}, {v(U)}, 2, 3")
    A(f"v_lshlrev_b32 {v(t3)}, 11, {v(t3)}")
    A(f"v_lshl_add_u32 {v(t2)}, {v(t2)}, 2, {v(t3)}")
    A.srd(SW, P_MEM0, SIZE["mem0"])
    A(f"s_lshl_b32 {s(S_T0)}, {s(S_CI)}, 7")
    A(f"buffer_load_dword v56, {v(t2)}, {s(SW, 4)}, {s(S_T0)} offen")
    A(f"buffer_load_dword v57, {v(t2)}, {s(SW, 4)}, {s(S_T0)} offen offset:32")
    A(f"v_and_b32 {v(t2)}, 1, {v(LANE)}")
    A(f"s_and_b32 {s(S_T0)}, {s(S_WAVE)}, 2")
    A(f"v_add_u32 {v(t3)}, {s(S_T0)}, {v(t2)}")
    A(f"s_and_b32 {s(S_T1)}, {s(S_WAVE)}, 1")
    A(f"s_lshl_b32 {s(S_T1)}, {s(S_T1)}, 3")
    A(f"v_bfe_u32 {v(t4)}, {v(LANE)}, 1, 1")
    A(f"v_lshl_add_u32 {v(t4)}, {v(t4)}, 2, {s(S_T1)}")
    A(f"v_bfe_u32 {v(t5)}, {v(LANE)}, 2, 1")
    A(f"v_lshl_add_u32 {v(t4)}, {v(t5)}, 1, {v(t4)}")
    A(f"v_bfe_u32 {v(t5)}, {v(LANE)}, 3, 1")
    A(f"v_and_b32 {v(t6)}, 48, {v(LANE)}")
    A(f"v_add_u32 {v(t6)}, {v(t6)}, {v(t4)}")
    A(f"v_lshlrev_b32 {v(t6)}, 2, {v(t6)}")
    A(f"v_mul_u32_u24 {v(t5)}, {KPL(0, 1)}, {v(t5)}")
    A(f"v_mul_u32_u24 {v(t7)}, {KPL(1, 0)}, {v(t2)}")
    A(f"v_add3_u32 {v(t6)}, {v(t6)}, {v(t5)}, {v(t7)}")
    A(f"s_mul_i32 {s(S_T0)}, {s(S_T0)}, {KPL(2, 0) // 2}")
    A(f"v_add_u32 {v(LR)}, {s(S_T0)}, {v(t6)}")
    for i in range(8):
        A(f"v_mov_b32 {v(HT + i)}, 0")
    for i in range(4):
        A(f"v_mov_b32 {v(SENT + i)}, -1")

    def clear_inbox():
        out = A.new("co")
        A(f"s_cmp_ge_u32 {s(S_WAVE)}, 2")
        A(f"s_cbranch_scc1 {out}")
        for rr in range(cfg.nrep):
            A(f"buffer_store_dwordx{XN} {v(SENT, XN)}, {v(XOWN)}, {s(SWS, 4)}, {s(S_XR + rr)} offen sc1")
        A.label(out)
    A.c("initial memory piece and 'not written' marks in every ring slot this workgroup owns")
    for slot in range(4):
        A(f"s_add_u32 {s(S_T0)}, {s(S_RBASE)}, {slot << 16}")
        if slot:
            A(f"buffer_store_dwordx2 {v(SENT, 2)}, {v(PUBM)}, {s(SWS, 4)}, {s(S_T0)} offen sc1")
        A(f"buffer_store_dword {v(SENT)}, {v(PUBK)}, {s(SWS, 4)}, {s(S_T0)} offen sc1")
        A(f"buffer_store_dword {v(SENT)}, {v(PUBV)}, {s(SWS, 4)}, {s(S_T0)} offen sc1")
        A(f"s_mov_b32 {s(S_T0)}, {slot}")
        x_offsets(A, cfg, S_XR, S_T0)
        clear_inbox()
    A(f"v_mov_b32 {v(TAGV)}, 1")
    A(f"buffer_store_dword {v(TAGV)}, {v(FMW)}, {s(SWS, 4)}, {s(S_FB)} offen sc1")
    A("s_waitcnt vmcnt(0)")
    A("v_min_u32 v56, -2, v56")
    A("v_min_u32 v57, -2, v57")
    A(f"buffer_store_dwordx2 v[56:57], {v(PUBM)}, {s(SWS, 4)}, {s(S_RBASE)} offen sc1")
    A(f"s_lshl_b32 {s(S_T2)}, {s(S_IRR)}, 16")
    A(f"s_or_b32 {s(S_T2)}, {s(S_T2)}, 1")
    arrive(A, S_T2)
    A.c("weights into registers")
    weight_addr_regs(A, LANE, t2, t3, t4, t5, t6, t7)
    chunks = []
    for ptr, name, base in ((P_WK, "Wk", WK), (P_WV, "Wv", WV), (P_WO, "Wo", WO)):
        for j in range(4):
            def setup(ptr=ptr, name=name, j=j):
                if j == 0:
                    A.srd(SW, ptr, SIZE[name])
                if name == "Wo":
                    A(f"s_lshl_b32 {s(S_T1)}, {s(S_GRP)}, 2")
                    A(f"s_add_u32 {s(S_T1)}, {s(S_T1)}, {s(S_WAVE)}")
                    A(f"s_lshl_b32 {s(S_T1)}, {s(S_T1)}, 19")
                    A(f"s_lshl_b32 {s(S_T0)}, {s(S_CI)}, 7")
                    A(f"s_add_u32 {s(S_T1)}, {s(S_T1)}, {s(S_T0)}")
                    A(f"s_add_u32 {s(S_T1)}, {s(S_T1)}, {j * 64 * 2048}")
                else:
                    A(f"s_lshl_b32 {s(S_T1)}, {s(S_WAVE)}, 21")
                    A(f"s_lshl_b32 {s(S_T0)}, {s(S_GRP)}, 4")
                    A(f"s_add_u32 {s(S_T0)}, {s(S_T0)}, {s(S_CI)}")
                    A(f"s_lshl_b32 {s(S_T0)}, {s(S_T0)}, 7")
                    A(f"s_add_u32 {s(S_T1)}, {s(S_T1)}, {s(S_T0)}")
                    A(f"s_add_u32 {s(S_T1)}, {s(S_T1)}, {j * 64 * 8192}")
            chunks.append((setup, 2048 if name == "Wo" else 8192, "O" if name == "Wo" else "P",
                           (lambda n, base=base, j=j: base + (j * 4 + n) * 8)))
    load_weights(A, chunks, {8192: t2, 2048: t3}, {"P": t4, "O": t5})
    await_start(A, end)
    A(f"s_mul_i32 m0, {s(S_WAVE)}, {WS}")
    for q in range(32):
        A(f"v_mov_b32 {v(ACK + q)}, 0")
    A(f"s_mov_b32 {s(S_STEP)}, 0")
    slow_lbl = A.new("kvo_sc1")
    A(f"s_cmp_lg_u32 {s(S_IRR)}, 0")
    A(f"s_cbranch_scc1 {slow_lbl}")

    def half_sums(acc, R=None, pl=None, between=None):
        ad = lambda i: A(f"v_add_f32 {v(HS + i)}, {v(acc + 2 * i)}, {v(acc + 2 * i + 1)}")
        for i in range(4 if pl else 8):
            ad(i)
        if pl:
            for i in range(8):
                if i < 4:
                    ad(i + 4)
                A(f"ds_write_addtid_b32 {v(HS + i)} offset:{R + pl(i >> 1, i & 1)}")
                if between:
                    between(i)

    def read4(addr, R, ws):
        for w in range(4):
            A(f"ds_read_b64 {v(RD + 2 * w, 2)}, {v(addr)} offset:{R + w * ws}")

    def gather(ld):
        for i in range(4):
            ld(i)
            heat(A, HT, cfg.lspace if i < 3 else cfg.ltail)

    def proj(acc, W, vin=0):
        def f(j, lo, hi):
            for n in range(lo, hi):
                if n < 4:
                    A(f"{SM} {v(acc + 4 * n, 4)}, {v(AP + 4 * j, 4)}, {r(W + (j * 4 + n) * 8, 8)}, {v(IDX)}")
                else:
                    A(f"{SM} {v(ACV + 4 * (n - 4), 4)}, {v(AP + 4 * j, 4)}, {r(WV + (j * 4 + n - 4) * 8, 8)}, {v(IDX)}")
        sp = cfg.ksplit + vin
        return (lambda j, rest: f(j, 0, 4 + vin)), (lambda j: f(j, 0, sp), lambda j: f(j, sp, 4 + vin))

    def sum4():
        A(f"v_pk_add_f32 {v(RD, 2)}, {v(RD, 2)}, {v(RD + 2, 2)}")
        A(f"v_pk_add_f32 {v(RD + 4, 2)}, {v(RD + 4, 2)}, {v(RD + 6, 2)}")
        A(f"v_pk_add_f32 {v(SUM, 2)}, {v(RD, 2)}, {v(RD + 4, 2)}")

    def body(loc):
        top, top2, top3 = A.new("kvo"), A.new("kvo2"), A.new("kvo3")
        ldm = lambda i: A(f"buffer_load_dwordx4 {v(AP + 4 * i, 4)}, {v(VG)}, {s(SWS, 4)}, {s(S_CUR)} offen offset:{1024 * i} sc1")
        ldo = lambda i: A(f"buffer_load_dwordx4 {v(AP + 4 * i, 4)}, {v(VGO)}, {s(SWS, 4)}, {s(S_CUR)} offen offset:{1024 * i} sc1")
        vq = [(j, n) for j in range(4) for n in range(cfg.vin, 4)]

        def vmf(k):
            for _ in range(k):
                if vq:
                    j, n = vq.pop(0)
                    A(f"{SM} {v(ACV + 4 * n, 4)}, {v(AP + 4 * j, 4)}, {r(WV + (j * 4 + n) * 8, 8)}, {v(IDX)}")

        A.label(top)
        ring_slots(A)
        if cfg.use_fm:
            flag_wait(A, cfg, FMR, FBUF, 4, end)
        A.label(top3)
        gather(ldm)
        chk4 = lambda i: check(A, AP + 4 * i, 4, CHK)

        def onfail(c):
            return lambda first: (count(A, cfg, c) if first else None, heat(A, HT, 1))
        use, fast = proj(ACK, WK, cfg.vin)
        done, slow1 = fsm_poll(A, 4, ldm, chk4, use, end, fast=fast, onfail=onfail(2))
        A.label(done)
        stamp(A, cfg, 0)
        A.nop(5 - cfg.vin)
        half_sums(ACK, RK, KPL, lambda i: vmf(1) if i >= 8 - cfg.vk else None)
        vmf(2)
        if cfg.rpos == 0:
            clear_inbox()
        A("s_waitcnt lgkmcnt(0)")
        A("s_barrier")
        read4(LR, RK, WS)
        vmf(3)
        A("s_waitcnt lgkmcnt(0)")
        sum4()
        A(f"v_cvt_pk_bf16_f32 {v(SUM)}, {v(SUM)}, {v(SUM + 1)}")
        A(f"v_min_u32 {v(SUM)}, -2, {v(SUM)}")
        A(f"buffer_store_dword {v(SUM)}, {v(PUBK)}, {s(SWS, 4)}, {s(S_CUR)} offen{loc}")
        stamp(A, cfg, 1)
        left = len(vq)
        vmf(16)
        A.nop(6 if left else 1)
        half_sums(ACV)
        A(f"ds_write_b128 {v(LWV)}, {v(HS, 4)} offset:{RV}")
        A(f"ds_write_b128 {v(LWV)}, {v(HS + 4, 4)} offset:{RV + 16}")
        if cfg.rpos == 1:
            clear_inbox()
        A("s_waitcnt lgkmcnt(0)")
        A("s_barrier")
        read4(LRV, RV, 2048)
        A("s_waitcnt lgkmcnt(0)")
        sum4()
        A(f"v_cvt_pk_bf16_f32 {v(SUM)}, {v(SUM)}, {v(SUM + 1)}")
        A(f"v_min_u32 {v(SUM)}, -2, {v(SUM)}")
        A(f"buffer_store_dword {v(SUM)}, {v(PUBV)}, {s(SWS, 4)}, {s(S_CUR)} offen{loc}")
        stamp(A, cfg, 2)
        flush_stamps(A, cfg, 8, 124, 125)
        A(f"s_cmp_eq_u32 {s(S_STEP)}, {cfg.nsteps - 1}")
        A(f"s_cbranch_scc1 {end}")
        if cfg.rpos == 2:
            clear_inbox()
        for reg in (PUBK, PUBV):
            A(f"buffer_store_dword {v(SENT)}, {v(reg)}, {s(SWS, 4)}, {s(S_RST)} offen{loc}")
        r1 = A.new("r1")
        A(f"s_cmp_lt_u32 {s(S_WAVE)}, 2")
        A(f"s_cbranch_scc1 {r1}")
        A(f"buffer_store_dwordx2 {v(SENT, 2)}, {v(PUBM)}, {s(SWS, 4)}, {s(S_RST)} offen{loc}")
        A.label(r1)
        for q in range(24):
            A(f"v_pk_mul_f32 {v(ACK + 2 * q, 2)}, 0, 0")
        A(f"v_add_u32 {v(TAGV)}, 1, {v(TAGV)}")
        A(f"s_and_b32 {s(S_T0)}, {s(S_STEP)}, 3")
        x_offsets(A, cfg, S_XC, S_T0)
        if cfg.rpos < 3:
            A(f"s_add_u32 {s(S_T0)}, {s(S_STEP)}, 3")
            A(f"s_and_b32 {s(S_T0)}, {s(S_T0)}, 3")
            x_offsets(A, cfg, S_XR, S_T0)
        A(f"s_and_b32 {s(S_T0)}, {s(S_TAG)}, 3")
        A(f"s_lshl_b32 {s(S_T0)}, {s(S_T0)}, 16")
        A(f"s_add_u32 {s(S_NXT)}, {s(S_T0)}, {s(S_RBASE)}")
        if cfg.use_fo:
            flag_wait(A, cfg, FOR, FBUF, 2, end)
        gather(ldo)
        use, fast = proj(ACO, WO)
        done, slow2 = fsm_poll(A, 4, ldo, chk4, use, end, fast=fast, onfail=onfail(3))
        A.label(done)
        stamp(A, cfg, 3)
        A.nop(5)
        half_sums(ACO, RO, OPL)
        heat(A, HT, cfg.hw)
        loader = A.new("xl")
        A(f"s_cmp_ge_u32 {s(S_WAVE)}, 2")
        A(f"s_cbranch_scc1 {loader}")

        def own_sum():
            for w in range(4):
                for p in range(2):
                    A(f"ds_read_b64 {v(RD + 4 * w + 2 * p, 2)}, {v(LRO)} offset:{RO + w * WS + OPL(p, 0)}")
            A("s_waitcnt lgkmcnt(4)" if cfg.trace != 1 else "s_waitcnt lgkmcnt(0)")
            for h2 in range(2):
                A(f"v_pk_add_f32 {v(RD + 2 * h2, 2)}, {v(RD + 2 * h2, 2)}, {v(RD + 4 + 2 * h2, 2)}")
            A("s_waitcnt lgkmcnt(0)")
            for h2 in range(2):
                A(f"v_pk_add_f32 {v(RD + 8 + 2 * h2, 2)}, {v(RD + 8 + 2 * h2, 2)}, {v(RD + 12 + 2 * h2, 2)}")
            for h2 in range(2):
                A(f"v_pk_add_f32 {v(SUM + 2 * h2, 2)}, {v(RD + 2 * h2, 2)}, {v(RD + 8 + 2 * h2, 2)}")
        A.c("waves 0,1 send this group's partial sums to the other groups")
        A("s_waitcnt lgkmcnt(0)")
        A("s_barrier")
        own_sum()
        if cfg.xbf:
            for h2 in range(2):
                A(f"v_cvt_pk_bf16_f32 {v(SUM + h2)}, {v(SUM + 2 * h2)}, {v(SUM + 2 * h2 + 1)}")
        for i in range(XN):
            A(f"v_min_u32 {v(SUM + i)}, -2, {v(SUM + i)}")
        for rr in range(cfg.nrep):
            A(f"buffer_store_dwordx{XN} {v(SUM, XN)}, {v(XOWN)}, {s(SWS, 4)}, {s(S_XC + rr)} offen sc1")
            if rr == 0:
                stamp(A, cfg, 4)
        if cfg.use_fm:
            heat(A, HT, cfg.fm_delay)
            A(f"buffer_store_dword {v(TAGV)}, {v(FMW)}, {s(SWS, 4)}, {s(S_FB)} offen{loc}")
        A(f"s_add_u32 {s(S_STEP)}, {s(S_STEP)}, 1")
        A(f"s_branch {top}")
        A.label(loader)
        A.c("waves 2,3 add the other groups' partial sums and publish the new memory")
        A("s_waitcnt lgkmcnt(0)")
        A("s_barrier")
        XB = (XL, XL + 12, AP)
        NB = cfg.xdepth

        def ldx(k):
            for j in range(3):
                A(f"buffer_load_dwordx{XN} {v(XB[k % NB] + XN * j, XN)}, {v(XP + j)}, {s(SWS, 4)}, "
                  f"{s(S_XC + k % cfg.nrep)} offen sc1")
        heat(A, HT, cfg.xdelay)
        stamp(A, cfg, 6)
        ldx(0)
        if NB > 1:
            heat(A, HT, cfg.xgap)
            ldx(1)
        own_sum()
        if cfg.xbf:
            for h2 in range(2):
                A(f"v_cvt_pk_bf16_f32 {v(RD + h2)}, {v(SUM + 2 * h2)}, {v(SUM + 2 * h2 + 1)}")
            for h2 in range(2):
                A(f"v_lshlrev_b32 {v(SUM + 2 * h2)}, 16, {v(RD + h2)}")
                A(f"v_and_b32 {v(SUM + 2 * h2 + 1)}, 0xffff0000, {v(RD + h2)}")
        x2, xsum = A.new("x2"), A.new("xs")

        def final(x):
            check(A, x, 3 * XN, CHK)
            if cfg.xbf:
                for j in range(3):
                    for i in range(4):
                        A(f"v_dot2_f32_bf16 {v(RD + i)}, {v(x + 2 * j + (i >> 1))}, {s(S_LO1 + (i & 1))}, "
                          f"{v((RD if j else SUM) + i)}")
                A("s_nop 1")
            else:
                for h2 in range(2):
                    A(f"v_pk_add_f32 {v(RD + 4 + 2 * h2, 2)}, {v(SUM + 2 * h2, 2)}, {v(x + 2 * h2, 2)}")
                    A(f"v_pk_add_f32 {v(RD + 2 * h2, 2)}, {v(x + 4 + 2 * h2, 2)}, {v(x + 8 + 2 * h2, 2)}")
                for h2 in range(2):
                    A(f"v_pk_add_f32 {v(RD + 2 * h2, 2)}, {v(RD + 4 + 2 * h2, 2)}, {v(RD + 2 * h2, 2)}")
            for h2 in range(2):
                A(f"v_cvt_pk_bf16_f32 {v(RD + h2)}, {v(RD + 2 * h2)}, {v(RD + 2 * h2 + 1)}")
            for h2 in range(2):
                A(f"v_min_u32 {v(RD + h2)}, -2, {v(RD + h2)}")
        if NB > 2:
            heat(A, HT, cfg.xgap2)
            ldx(2)
        heat(A, HT, cfg.xfill)
        A(f"s_waitcnt vmcnt({3 * (NB - 1)})")
        stamp(A, cfg, 7)
        final(XL)
        A(f"s_cbranch_vccnz {x2}")
        A.label(xsum)
        A(f"buffer_store_dwordx2 {v(RD, 2)}, {v(PUBM)}, {s(SWS, 4)}, {s(S_NXT)} offen{loc}")
        stamp(A, cfg, 5)
        A(f"s_add_u32 {s(S_STEP)}, {s(S_STEP)}, 1")
        A.c("the loader waves time their first read from their own store")
        ring_slots(A)
        heat(A, HT, cfg.mdelay)
        A(f"s_branch {top3}")
        A.label(x2)
        count(A, cfg, 0)
        for k in range(6):
            ldx(k + NB)
            A(f"s_waitcnt vmcnt({3 * (NB - 1)})")
            final(XB[(k + 1) % NB])
            A(f"s_cbranch_vccz {xsum}")
            count(A, cfg, 1)
        spend(A, end)
        A(f"s_branch {x2}")
        slow1()
        slow2()

    A.c("all members of the group share one L2: hand-offs inside the group use plain stores")
    body("")
    A.label(slow_lbl)
    A.c("some member runs on another die: every hand-off is written through")
    body(" sc1")


def q_role(A, cfg, end):
    WIN = 0
    VG, VK, VVA, VVB, VO, IDX, LW, LR, QW, QR = 10, 11, 12, 13, 14, 15, 16, 18, 19, 20
    PFG, RDK, RDQ, RDVA, RDVB, OTA, OTB = 21, 22, 23, 24, 25, 26, 27
    FMR, FOW, FBUF, TAGV, XCL = 192, 193, 194, 197, 198
    SENT, ONES, BIAS, CHK, T1, T2, T3 = 28, 32, 36, 44, 45, 46, 47
    AP, ACQ = 48, 64
    SX, SMM, RD, PX, LA, TM = 64, 72, 76, 76, 84, 88
    QOP, OA, KC, VM, PK = 96, 96, 112, 120, 124
    ST = 128
    SLOT0, SLOTX = 32768, 0x18000
    WQ = 256
    RQ, RB, WS = 0, 20480, 5120
    QPL = lambda n, b: 4 * (n * 160 + b * 96)
    HT = 200
    TID, LANE = 48, 49
    S_HEAD, S_PARW, S_EH, S_LDS = 54, 55, 56, 57
    A.c("Q role: q projection and attention of one head")
    A(f"v_mov_b32 {v(TID)}, v0")
    A(f"v_mov_b32 v50, v1")
    LANE = 50
    A(f"s_lshl_b32 {s(S_HEAD)}, {s(S_GRP)}, 3")
    A(f"s_add_u32 {s(S_HEAD)}, {s(S_HEAD)}, {s(S_TK)}")
    A(f"s_and_b32 {s(S_PARW)}, {s(S_WAVE)}, 1")
    A(f"s_lshr_b32 {s(S_EH)}, {s(S_WAVE)}, 1")
    A(f"s_lshl_b32 {s(S_RBASE)}, {s(S_GRP)}, 18")
    A(f"s_add_u32 {s(S_RBASE)}, {s(S_RBASE)}, {L.LRING}")
    A(f"s_lshl_b32 {s(S_T0)}, {s(S_WAVE)}, 12")
    A(f"v_lshl_add_u32 {v(VG)}, {v(LANE)}, 4, {s(S_T0)}")
    A(f"s_lshl_b32 {s(S_T0)}, {s(S_TK)}, 11")
    A(f"s_add_u32 {s(S_T1)}, {s(S_T0)}, 16384")
    A(f"v_lshl_add_u32 {v(VK)}, {v(LANE)}, 4, {s(S_T1)}")
    A(f"s_lshl_b32 {s(S_T1)}, {s(S_EH)}, 10")
    A(f"s_add_u32 {s(S_T0)}, {s(S_T0)}, {s(S_T1)}")
    A(f"s_lshl_b32 {s(S_T1)}, {s(S_PARW)}, 3")
    A(f"s_add_u32 {s(S_T1)}, {s(S_T1)}, {s(S_T0)}")
    A(f"s_add_u32 {s(S_T1)}, {s(S_T1)}, 32768")
    A(f"v_lshl_add_u32 {v(VVA)}, {v(LANE)}, 4, {s(S_T1)}")
    A(f"v_xor_b32 {v(VVB)}, 8, {v(VVA)}")
    A(f"s_lshl_b32 {s(S_T1)}, {s(S_PARW)}, 9")
    A(f"s_add_u32 {s(S_T1)}, {s(S_T1)}, {s(S_T0)}")
    A(f"s_add_u32 {s(S_T1)}, {s(S_T1)}, 49152")
    A(f"v_bfe_u32 v51, {v(LANE)}, 5, 1")
    A(f"v_lshl_add_u32 {v(VO)}, v51, 8, {s(S_T1)}")
    A(f"v_and_b32 v51, 7, {v(LANE)}")
    A(f"v_lshl_add_u32 {v(VO)}, v51, 5, {v(VO)}")
    A(f"v_and_b32 v51, 16, {v(LANE)}")
    A(f"v_add_u32 {v(VO)}, {v(VO)}, v51")
    A(f"v_bfe_u32 v51, {v(LANE)}, 3, 1")
    A(f"v_lshl_add_u32 {v(VO)}, v51, 30, {v(VO)}")
    A(f"v_and_b32 v51, 1, {v(LANE)}")
    A(f"v_mul_u32_u24 v51, 0xaaaa, v51")
    A(f"v_add_u32 {v(IDX)}, 0x4444, v51")
    for i in range(8):
        A(f"v_mov_b32 {v(HT + i)}, 0")
    A(f"v_bfe_u32 v51, {v(LANE)}, 1, 2")
    A(f"v_lshlrev_b32 v51, 4, v51")
    A(f"v_bfe_u32 v52, {v(LANE)}, 3, 2")
    A(f"v_lshl_add_u32 v51, v52, 2, v51")
    A(f"v_and_b32 v53, 1, {v(LANE)}")
    A(f"v_lshlrev_b32 v51, 2, v51")
    A(f"v_mul_u32_u24 v53, {QPL(0, 1)}, v53")
    A(f"v_lshrrev_b32 v54, 5, {v(LANE)}")
    A(f"v_mul_u32_u24 v52, {QPL(1, 0)}, v54")
    A(f"v_add3_u32 v51, v51, v52, v53")
    A(f"s_mul_i32 {s(S_T0)}, {s(S_WAVE)}, {QPL(2, 0)}")
    A(f"v_add_u32 {v(LR)}, {s(S_T0)}, v51")
    A(f"v_and_b32 v51, 31, {v(LANE)}")
    A(f"v_lshlrev_b32 v51, 4, v51")
    A(f"v_lshl_add_u32 v51, v54, 3, v51")
    A(f"s_lshl_b32 {s(S_T0)}, {s(S_WAVE)}, 9")
    A(f"v_add_u32 {v(QW)}, {s(S_T0)}, v51")
    A(f"v_lshrrev_b32 v51, 4, {v(LANE)}")
    A(f"v_and_b32 v52, 7, {v(LANE)}")
    A(f"v_lshlrev_b32 v52, 4, v52")
    A(f"v_lshl_add_u32 {v(QR)}, v51, 7, v52")
    A(f"v_lshlrev_b32 v51, 4, {v(LANE)}")
    A(f"s_mul_i32 {s(S_T0)}, {s(S_WAVE)}, 6144")
    A(f"v_add_u32 {v(PFG)}, {s(S_T0)}, v51")
    A(f"s_add_u32 {s(S_LDS)}, {s(S_T0)}, {SLOT0}")
    A(f"v_add_u32 {v(RDK)}, {SLOT0 + 8192}, v51")
    A(f"s_lshl_b32 {s(S_T0)}, {s(S_PARW)}, 12")
    A(f"s_add_u32 {s(S_T0)}, {s(S_T0)}, {SLOT0}")
    A(f"v_add_u32 {v(RDQ)}, {s(S_T0)}, v51")
    A(f"s_lshl_b32 {s(S_T0)}, {s(S_WAVE)}, 11")
    A(f"s_add_u32 {s(S_T0)}, {s(S_T0)}, {SLOT0 + 16384}")
    A(f"v_add_u32 {v(RDVA)}, {s(S_T0)}, v51")
    A(f"v_xor_b32 {v(RDVB)}, 2048, {v(RDVA)}")
    A(f"s_lshl_b32 {s(S_FB)}, {s(S_GRP)}, 12")
    A(f"s_add_u32 {s(S_FB)}, {s(S_FB)}, {L.FLAGS}")
    A(f"s_lshl_b32 {s(S_T0)}, {s(S_WAVE)}, 8")
    A(f"v_lshl_add_u32 {v(FMR)}, {v(LANE)}, 2, {s(S_T0)}")
    A(f"s_lshr_b32 {s(S_T0)}, {s(S_TK)}, 1")
    A(f"s_lshl_b32 {s(S_T0)}, {s(S_T0)}, 8")
    A(f"s_and_b32 {s(S_T1)}, {s(S_TK)}, 1")
    A(f"s_lshl_b32 {s(S_T1)}, {s(S_T1)}, 2")
    A(f"s_add_u32 {s(S_T0)}, {s(S_T0)}, {s(S_T1)}")
    A(f"s_add_u32 {s(S_T0)}, {s(S_T0)}, 2048")
    A(f"v_min_u32 v52, 1, {v(TID)}")
    A(f"v_lshl_add_u32 {v(FOW)}, v52, 30, {s(S_T0)}")
    A(f"v_mov_b32 {v(TAGV)}, 0")
    A(f"buffer_store_dword {v(TAGV)}, {v(FOW)}, {s(SWS, 4)}, {s(S_FB)} offen sc1")
    XN = 2 if cfg.xbf else 4
    A(f"s_lshr_b32 {s(S_T0)}, {s(S_TK)}, {2 if cfg.xbf else 1}")
    A(f"s_lshl_b32 {s(S_T0)}, {s(S_T0)}, 14")
    A(f"s_and_b32 {s(S_T1)}, {s(S_TK)}, {3 if cfg.xbf else 1}")
    A(f"s_lshl_b32 {s(S_T1)}, {s(S_T1)}, {11 if cfg.xbf else 12}")
    A(f"s_add_u32 {s(S_T0)}, {s(S_T0)}, {s(S_T1)}")
    A(f"s_lshl_b32 {s(S_T1)}, {s(S_GRP)}, 16")
    A(f"s_add_u32 {s(S_T0)}, {s(S_T0)}, {s(S_T1)}")
    A(f"v_lshl_add_u32 {v(XCL)}, {v(TID)}, {3 if cfg.xbf else 4}, {s(S_T0)}")
    load_parity(A, cfg, LANE, 52, 53)
    A(f"s_lshl_b32 {s(S_T0)}, {s(S_HEAD)}, 2")
    A(f"s_add_u32 {s(S_T0)}, {s(S_T0)}, {s(S_WAVE)}")
    A(f"s_lshl_b32 {s(S_T0)}, {s(S_T0)}, 12")
    A(f"s_lshl_b32 {s(S_T1)}, {s(S_PARW)}, 10")
    A(f"s_add_u32 {s(S_T0)}, {s(S_T0)}, {s(S_T1)}")
    A(f"v_add_u32 {v(OTA)}, {s(S_T0)}, v51")
    A(f"v_xor_b32 {v(OTB)}, 4096, {v(OTA)}")
    for i in range(4):
        A(f"v_mov_b32 {v(SENT + i)}, -1")
        A(f"v_mov_b32 {v(ONES + i)}, 0x3f803f80")
    A(f"v_and_b32 v51, 15, {v(LANE)}")
    A(f"s_lshl_b32 {s(S_T0)}, {s(S_PARW)}, 4")
    A(f"v_add_u32 v51, {s(S_T0)}, v51")
    A(f"v_lshrrev_b32 v52, 4, {v(LANE)}")
    A(f"v_lshlrev_b32 v52, 2, v52")
    A(f"v_mov_b32 v54, 0xf149f2ca")
    for T in range(2):
        for q in range(4):
            A(f"v_add_u32 v53, {16 * T + q}, v52")
            A(f"v_cmp_gt_u32 vcc, v53, v51")
            A("s_nop 1")
            A(f"v_cndmask_b32 {v(BIAS + 4 * T + q)}, 0, v54, vcc")
    for i in range(10):
        A(f"v_mov_b32 {v(WIN + i)}, 0")
    A(f"s_mov_b32 {s(S_C)}, 0x3e0293ee")
    A(f"s_mov_b32 {s(S_NC)}, 0xbe0293ee")
    for slot in range(4):
        A(f"s_add_u32 {s(S_T0)}, {s(S_RBASE)}, {slot << 16}")
        A(f"buffer_store_dwordx4 {v(SENT, 4)}, {v(VO)}, {s(SWS, 4)}, {s(S_T0)} offen sc1")
    A(f"s_lshl_b32 {s(S_T2)}, {s(S_IRR)}, 16")
    A(f"s_or_b32 {s(S_T2)}, {s(S_T2)}, 1")
    arrive(A, S_T2)
    weight_addr_regs(A, LANE, 51, 52, 53, 54, 55, 56)
    A.srd(SW, P_WQ, SIZE["Wq"])
    chunks = []
    for j in range(4):
        for hf in range(2):
            def setup(j=j, hf=hf):
                A(f"s_lshl_b32 {s(S_T1)}, {s(S_WAVE)}, 21")
                A(f"s_lshl_b32 {s(S_T0)}, {s(S_HEAD)}, 8")
                A(f"s_add_u32 {s(S_T1)}, {s(S_T1)}, {s(S_T0)}")
                A(f"s_add_u32 {s(S_T1)}, {s(S_T1)}, {j * 64 * 8192 + hf * 128}")
            chunks.append((setup, 8192, "P", (lambda n, j=j, hf=hf: WQ + (j * 8 + hf * 4 + n) * 8)))
    load_weights(A, chunks, {8192: 51}, {"P": 53})
    await_start(A, end)
    A(f"s_mul_i32 {s(S_PF)}, {s(S_HEAD)}, 24576")
    A(f"s_add_u32 {s(S_PF)}, {s(S_PF)}, {L.QKV}")
    A(f"s_mov_b32 {s(S_STEP)}, 0")

    def prefetch():
        A(f"s_mov_b32 m0, {s(S_LDS)}")
        A(f"s_add_u32 {s(S_T0)}, {s(S_PF)}, 3072")
        for j in range(3):
            A(f"buffer_load_dwordx4 {v(PFG)}, {s(SWS, 4)}, {s(S_PF)} offen offset:{1024 * j} sc1 lds")
        A(f"s_add_u32 m0, {s(S_LDS)}, 3072")
        A(f"s_xor_b32 {s(S_LDS)}, {s(S_LDS)}, {SLOTX}")
        for j in range(3):
            A(f"buffer_load_dwordx4 {v(PFG)}, {s(SWS, 4)}, {s(S_T0)} offen offset:{1024 * j} sc1 lds")
        A(f"s_add_u32 {s(S_PF)}, {s(S_PF)}, {32 * 24576}")

    def operands():
        for i in range(8):
            A(f"ds_read_b128 {v(ST + 4 * i, 4)}, {v(RDK)} offset:{1024 * i}")
        for p, reg in ((0, RDVA), (1, RDVB)):
            for t in range(2):
                A(f"ds_read_b128 {v(ST + 32 + 8 * p + 4 * t, 4)}, {v(reg)} offset:{1024 * t}")
        for ks in range(4):
            A(f"ds_read_b128 {v(ST + 48 + 4 * ks, 4)}, {v(RDQ)} offset:{1024 * ks}")
        for reg in (RDK, RDVA, RDVB, RDQ):
            A(f"v_xor_b32 {v(reg)}, {SLOTX}, {v(reg)}")

    prefetch()
    prefetch()
    A("s_waitcnt vmcnt(6)")
    A("s_barrier")
    slow_lbl = A.new("q_sc1")
    A(f"s_cmp_lg_u32 {s(S_IRR)}, 0")
    A(f"s_cbranch_scc1 {slow_lbl}")

    def score_x(qreg, bias, before=None):
        for ks in range(4):
            if before:
                before(ks)
            for T in range(2):
                c = v(SX + 4 * T, 4) if ks else (v(BIAS + 4 * T, 4) if bias else "0")
                A(f"{MF} {v(SX + 4 * T, 4)}, {v(ST + 16 * T + 4 * ks, 4)}, {v(qreg + 4 * ks, 4)}, {c}")

    def max_x():
        A(f"v_max3_f32 {v(T1)}, {v(SX)}, {v(SX + 1)}, {v(SX + 2)}")
        A(f"v_max3_f32 {v(T1)}, {v(T1)}, {v(SX + 3)}, {v(SX + 4)}")
        A(f"v_max3_f32 {v(T1)}, {v(T1)}, {v(SX + 5)}, {v(SX + 6)}")
        A(f"v_max_f32 {v(T1)}, {v(T1)}, {v(SX + 7)}")

    def softmax(hook=lambda pos: None):
        A(f"v_add_f32 {v(SMM)}, {v(SMM)}, {v(SMM + 1)}")
        A(f"v_add_f32 {v(SMM + 1)}, {v(SMM + 2)}, {v(SMM + 3)}")
        A(f"v_max3_f32 {v(T2)}, {v(T1)}, {v(SMM)}, {v(SMM + 1)}")
        A(f"v_max3_f32 {v(T3)}, {v(T1)}, {v(SMM)}, {v(SMM + 1)}")
        hook(0)
        A("s_nop 1")
        A(f"v_permlane32_swap_b32 {v(T2)}, {v(T3)}")
        A("s_nop 0")
        A(f"v_max_f32 {v(T1)}, {v(T2)}, {v(T3)}")
        A(f"v_max_f32 {v(T2)}, {v(T2)}, {v(T3)}")
        A("s_nop 1")
        A(f"v_permlane16_swap_b32 {v(T1)}, {v(T2)}")
        A("s_nop 0")
        A(f"v_max_f32 {v(T1)}, {v(T1)}, {v(T2)}")
        A(f"v_mul_f32 {v(T2)}, {s(S_NC)}, {v(T1)}")
        hook(1)
        for i in range(5):
            A(f"v_pk_fma_f32 {v(SX + 2 * i, 2)}, {v(SX + 2 * i, 2)}, {s(S_C, 2)}, {v(T2, 2)} op_sel_hi:[1,0,0]")
        for i in range(10):
            A(f"v_exp_f32 {v(SX + i)}, {v(SX + i)}")
            if i == 4:
                hook(2)
        hook(3)
        for i in range(4):
            A(f"v_cvt_pk_bf16_f32 {v(PX + i)}, {v(SX + 2 * i)}, {v(SX + 2 * i + 1)}")
        A(f"v_cvt_pk_bf16_f32 {v(WIN + 2)}, {v(SMM)}, {v(SMM + 1)}")
        A(f"v_cvt_pk_bf16_f32 {v(WIN + 7)}, {v(SMM)}, {v(SMM + 1)}")

    WOFF = (2, 6, 0, 4)

    def scale(n):
        for i in range(n // 2):
            A(f"v_pk_mul_f32 {v(OA + 2 * i, 2)}, {v(OA + 2 * i, 2)}, {v(T2, 2)} op_sel_hi:[1,0]")

    def pv(nt, pre=None, post=None, hook=lambda pos: None):
        st = ST
        A(f"{MF} {v(LA, 4)}, {v(ONES, 4)}, {v(PX, 4)}, 0")
        for t in range(nt):
            if pre and t == cfg.vchk:
                pre()
            A(f"{MF} {v(OA + 4 * t, 4)}, {v(st + 32 + 4 * t, 4)}, {v(PX, 4)}, 0")
        if pre and cfg.vchk == 2:
            pre()
        A(f"{MF} {v(LA, 4)}, {v(ONES, 4)}, {v(WIN + WOFF[0], 4)}, {v(LA, 4)}")
        if post:
            post()
        hook(5)
        for t in range(nt):
            A(f"{MF} {v(OA + 4 * t, 4)}, {v(VM, 4)}, {v(WIN + WOFF[t], 4)}, {v(OA + 4 * t, 4)}")
        hook(6)
        heat(A, HT, 1)
        A.nop(7 - nt)
        A(f"v_rcp_f32 {v(T2)}, {v(LA)}")
        A("s_nop 0")

    def body(loc):
        top = A.new("q")
        ldm = lambda i: A(f"buffer_load_dwordx4 {v(AP + 4 * i, 4)}, {v(VG)}, {s(SWS, 4)}, {s(S_CUR)} offen offset:{1024 * i} sc1")
        ldk = lambda i: A(f"buffer_load_dwordx4 {v(AP + 4 * i, 4)}, {v(VK)}, {s(SWS, 4)}, {s(S_CUR)} offen offset:{1024 * (i & 1)} sc1")

        def ldv():
            A(f"buffer_load_dwordx2 {v(VM, 2)}, {v(VVA)}, {s(SWS, 4)}, {s(S_CUR)} offen sc1")
            A(f"buffer_load_dwordx2 {v(VM + 2, 2)}, {v(VVB)}, {s(SWS, 4)}, {s(S_CUR)} offen sc1")
        A.label(top)
        operands()
        A(f"s_mul_i32 m0, {s(S_WAVE)}, {WS}")
        ring_slots(A)
        A(f"v_add_u32 {v(TAGV)}, 1, {v(TAGV)}")
        for q in range(32):
            A(f"v_mov_b32 {v(ACQ + q)}, 0")
        if cfg.use_fm:
            flag_wait(A, cfg, FMR, FBUF, 4, end)
        for i in range(4):
            ldm(i)
            heat(A, HT, cfg.lspace if i < 3 else cfg.ltail)

        fq = lambda j, lo, hi: [A(f"{SM} {v(ACQ + 4 * n, 4)}, {v(AP + 4 * j, 4)}, {r(WQ + (j * 8 + n) * 8, 8)}, {v(IDX)}")
                                for n in range(lo, hi)]
        chk4 = lambda i: check(A, AP + 4 * i, 4, CHK)
        ad = lambda i: A(f"v_add_f32 {v(ACQ + 2 * i)}, {v(ACQ + 2 * i)}, {v(ACQ + 2 * i + 1)}")
        wr = lambda i: A(f"ds_write_addtid_b32 {v(ACQ + 2 * i)} offset:{RQ + QPL(i >> 1, i & 1)}")

        def plain_tail():
            A("s_nop 0")
            for i in range(4):
                ad(i)
            for i in range(16):
                if i < 12:
                    ad(i + 4)
                wr(i)

        def last_piece():
            na = nw = 0
            for n in range(8):
                fq(3, n, n + 1)
                if n < 3:
                    A("s_nop 1")
                    continue
                ad(na), ad(na + 1)
                na += 2
                if n > 3:
                    for _ in range(cfg.qpipe - 1):
                        wr(nw)
                        nw += 1
            stamp(A, cfg, 0)
            while nw < 16:
                wr(nw)
                nw += 1
                if na < 16:
                    ad(na)
                    na += 1
        joined = A.new("qj")
        done, slow1 = fsm_poll(A, 4, ldm, chk4, lambda j, rest: fq(j, 0, 8), end,
                               fast=(lambda j: fq(j, 0, cfg.qsplit) if j < 3 or not cfg.qpipe else None,
                                     lambda j: fq(j, cfg.qsplit, 8) if j < 3 or not cfg.qpipe else last_piece()),
                               onfail=lambda first: (count(A, cfg, 2) if first else None, heat(A, HT, 1)))
        qdone = done
        if not cfg.qpipe:
            A.label(done)
            stamp(A, cfg, 0)
            plain_tail()
        A.label(joined)
        heat(A, HT, cfg.hw)
        A("s_waitcnt lgkmcnt(0)")
        A("s_barrier")
        for w in range(4):
            A(f"ds_read_b128 {v(RD + 4 * w, 4)}, {v(LR)} offset:{RQ + w * WS}")
        for i in range(4):
            A(f"v_mov_b32 {v(SMM + i)}, 0")

        def ldkc():
            for p in range(2):
                A(f"buffer_load_dwordx4 {v(KC + 4 * p, 4)}, {v(VK)}, {s(SWS, 4)}, {s(S_CUR)} offen offset:{1024 * p} sc1")
        if cfg.kpos == 0:
            ldkc()
        heat(A, HT, cfg.hr - 1)
        A("s_waitcnt lgkmcnt(0)")
        for h2 in range(2):
            A(f"v_pk_add_f32 {v(RD + 2 * h2, 2)}, {v(RD + 2 * h2, 2)}, {v(RD + 4 + 2 * h2, 2)}")
            A(f"v_pk_add_f32 {v(RD + 8 + 2 * h2, 2)}, {v(RD + 8 + 2 * h2, 2)}, {v(RD + 12 + 2 * h2, 2)}")
        for h2 in range(2):
            A(f"v_pk_add_f32 {v(RD + 2 * h2, 2)}, {v(RD + 2 * h2, 2)}, {v(RD + 8 + 2 * h2, 2)}")
        A(f"v_cvt_pk_bf16_f32 {v(RD)}, {v(RD)}, {v(RD + 1)}")
        A(f"v_cvt_pk_bf16_f32 {v(RD + 1)}, {v(RD + 2)}, {v(RD + 3)}")
        A(f"ds_write_b64 {v(QW)}, {v(RD, 2)} offset:{RB}")
        if cfg.kpos == 1:
            ldkc()
        heat(A, HT, cfg.hw)
        A("s_waitcnt lgkmcnt(0)")
        A("s_barrier")
        for ks in range(4):
            A(f"ds_read_b128 {v(QOP + 4 * ks, 4)}, {v(QR)} offset:{RB + ks * 512}")
        if cfg.kpos == 2:
            ldkc()
        heat(A, HT, 2)

        def qwait(ks):
            A(f"s_waitcnt lgkmcnt({3 - ks})")
            if ks in (1, 2):
                ldk(ks - 1)
            if ks == 3:
                A("s_waitcnt vmcnt(2)")
                check(A, KC, 8, CHK)
        score_x(QOP, False, qwait)
        stamp(A, cfg, 1)
        kre, kok = A.new("kr"), A.new("ko")
        A(f"s_cbranch_vccnz {kre}")
        for p in range(2):
            A(f"{SM} {v(SMM, 4)}, {v(KC + 4 * p, 4)}, {v(QOP + 8 * p, 8)}, {v(IDX)}")
        A.label(kok)
        stamp(A, cfg, 2)
        if cfg.vpos < 0:
            ldv()
        A.nop(4 if cfg.vpos >= 0 else 2)
        max_x()

        def hook(pos):
            if pos == cfg.vpos:
                ldv()
            if cfg.use_fo and pos == cfg.fo_pos:
                A(f"buffer_store_dword {v(TAGV)}, {v(FOW)}, {s(SWS, 4)}, {s(S_FB)} offen{loc}")
        softmax(hook)
        vre, vok = A.new("vr"), A.new("vo")

        def wait_v():
            A(f"s_waitcnt vmcnt({1 if cfg.use_fo and 4 >= cfg.fo_pos >= cfg.vpos else 0})")
            check(A, VM, 4, CHK)

        def test_v():
            A(f"s_cbranch_vccnz {vre}")
            A.label(vok)
        hook(4)
        pv(2, wait_v, test_v, hook)
        scale(8)
        for i in range(4):
            A(f"v_cvt_pk_bf16_f32 {v(PK + i)}, {v(OA + 2 * i)}, {v(OA + 2 * i + 1)}")
        for i in range(4):
            A(f"v_min_u32 {v(PK + i)}, -2, {v(PK + i)}")
        A(f"buffer_store_dwordx4 {v(PK, 4)}, {v(VO)}, {s(SWS, 4)}, {s(S_CUR)} offen{loc}")
        stamp(A, cfg, 3)
        A.c("off the recurrence path: operands of segment s+2, token rows of this segment")
        A("s_barrier")
        A(f"buffer_store_dwordx4 {v(SENT, 4)}, {v(VO)}, {s(SWS, 4)}, {s(S_RST)} offen{loc}")
        nopf = A.new("np")
        A(f"s_cmp_ge_u32 {s(S_STEP)}, {cfg.nsteps - 2}")
        A(f"s_cbranch_scc1 {nopf}")
        prefetch()
        if cfg.rpos == 3:
            A(f"s_add_u32 {s(S_T0)}, {s(S_STEP)}, 2")
            A(f"s_and_b32 {s(S_T0)}, {s(S_T0)}, 3")
            x_offsets(A, cfg, S_XR, S_T0)
            for rr in range(cfg.nrep):
                A(f"buffer_store_dwordx{XN} {v(SENT, XN)}, {v(XCL)}, {s(SWS, 4)}, {s(S_XR + rr)} offen sc1")
        A.label(nopf)
        for i in range(4):
            A(f"v_mov_b32 {v(SMM + i)}, 0")
        score_x(ST + 48, True)
        for p in range(2):
            A(f"{SM} {v(SMM, 4)}, {v(KC + 4 * p, 4)}, {v(ST + 48 + 8 * p, 8)}, {v(IDX)}")
        A(f"s_lshr_b32 {s(S_T0)}, {s(S_STEP)}, 1")
        A(f"s_lshl_b32 {s(S_T0)}, {s(S_T0)}, 19")
        A(f"s_and_b32 {s(S_T1)}, {s(S_STEP)}, 1")
        A(f"s_lshl_b32 {s(S_T1)}, {s(S_T1)}, 11")
        A(f"s_add_u32 {s(S_T0)}, {s(S_T0)}, {s(S_T1)}")
        A(f"s_add_u32 {s(S_OT)}, {s(S_T0)}, {L.OTOK}")
        max_x()
        softmax()
        pv(4)
        scale(16)
        for i in range(8):
            A(f"v_cvt_pk_bf16_f32 {v(OA + i)}, {v(OA + 2 * i)}, {v(OA + 2 * i + 1)}")
        A(f"buffer_store_dwordx4 {v(OA, 4)}, {v(OTA)}, {s(SWS, 4)}, {s(S_OT)} offen sc1")
        A(f"buffer_store_dwordx4 {v(OA + 4, 4)}, {v(OTB)}, {s(SWS, 4)}, {s(S_OT)} offen sc1")
        stamp(A, cfg, 4, 2)
        if cfg.trace:
            A(f"s_memtime {s(S_STAMP + 10, 2)}")
        flush_stamps(A, cfg, 6, T2, T3, 2)
        A(f"s_add_u32 {s(S_STEP)}, {s(S_STEP)}, 1")
        A(f"s_cmp_lt_u32 {s(S_STEP)}, {cfg.nsteps}")
        A(f"s_cbranch_scc1 {top}")
        A(f"s_branch {end}")
        if cfg.qpipe:
            A.label(qdone)
            stamp(A, cfg, 0)
            plain_tail()
            A(f"s_branch {joined}")
        slow1()
        A.label(kre)
        count(A, cfg, 0)
        ldk(2)
        ldk(3)

        def usekm(j, rest):
            p = j & 1
            if rest and (j ^ 2) not in rest:
                return
            A(f"{SM} {v(SMM, 4)}, {v(AP + 4 * j, 4)}, {v(QOP + 8 * p, 8)}, {v(IDX)}")
            for i in range(4):
                A(f"v_mov_b32 {v(KC + 4 * p + i)}, {v(AP + 4 * j + i)}")
        done, slow2 = fsm_poll(A, 4, ldk, chk4, usekm, end, lambda got: {x & 1 for x in got} == {0, 1})
        A.label(done)
        A(f"s_branch {kok}")
        slow2()
        A.label(vre)
        count(A, cfg, 1)
        ldv()
        spend(A, end)
        A("s_waitcnt vmcnt(0)")
        check(A, VM, 4, CHK)
        A(f"s_cbranch_vccnz {vre}")
        A(f"s_branch {vok}")

    body("")
    A.label(slow_lbl)
    body(" sc1")


def probe_kernel(A, name="probe_kernel"):
    end = A.new("end")
    A.kernel_begin(name)
    A("s_cmp_ge_u32 s2, 1")
    A(f"s_cbranch_scc1 {end}")
    A(f"s_load_dwordx2 {s(P_WS, 2)}, s[0:1], {KA['ws']}")
    A("v_lshrrev_b32 v1, 6, v0")
    A("s_nop 0")
    A(f"v_readfirstlane_b32 {s(S_WAVE)}, v1")
    A("v_and_b32 v1, 63, v0")
    A("s_waitcnt lgkmcnt(0)")
    A.srd(SWS, P_WS, SIZE["ws"])
    probe(A, SWS, S_WAVE, 1)
    A.label(end)
    A("s_endpgm")


def chain_kernel(A, cfg, name="chain_kernel"):
    end, kvo = A.new("end"), A.new("kvo_role")
    A.kernel_begin(name)
    role_prologue(A, end)
    A(f"s_cmp_ge_u32 {s(S_GRP)}, 4")
    A(f"s_cbranch_scc1 {end}")
    A(f"s_cmp_ge_u32 {s(S_TK)}, 24")
    A(f"s_cbranch_scc1 {end}")
    A(f"s_cmp_ge_u32 {s(S_TK)}, 8")
    A(f"s_cbranch_scc1 {kvo}")
    q_role(A, cfg, end)
    A.label(end)
    A("s_endpgm")
    A.label(kvo)
    kvo_role(A, cfg, end)
```

```python
from asmlib import *
import layout as L

SWS = 4
SWT = 8
G_WAVE = 32
G_AOFF, G_WOFF, G_CNT, G_M0A, G_M0W, G_WSTEP = 60, 61, 62, 63, 64, 65
G_T0, G_T1, G_T2, G_T3 = 66, 67, 68, 69
V_LANE, V_DA, V_DW, V_RA, V_RW, V_T = 1, 2, 4, 8, 10, 20
MF16 = "v_mfma_f32_16x16x32_bf16"
MF32 = "v_mfma_f32_32x32x16_bf16"
LDS_W, LDS_A = 0, 65536


class Tile:
    order = 3
    accmode = 0

    def __init__(self, tm, tn, ks, shape=16, swap=False, split=False):
        self.tm, self.tn, self.ks, self.shape, self.swap, self.split = tm, tn, ks, shape, swap, split
        self.mt, self.nt = tm // 32, tn // 32
        self.npan = tn // 128
        self.abytes, self.wbytes = tm * 64 * ks, tn * 64 * ks
        self.nda, self.ndw = self.abytes // 4096, self.wbytes // 4096
        assert self.nda <= 4 and self.ndw <= 4
        self.nd = self.nda + self.ndw
        self.fa, self.fw = self.mt * 4 * ks, self.nt * 4 * ks
        self.nacc = self.mt * self.nt * 4

    def acc(self, i):
        if self.accmode == 1:
            return 256 + i
        return 64 + i if i < 192 else 256 + 128 + (i - 192)

    def acc_tile(self, m, n):
        return self.acc((m * self.nt + n) * 4)

    def frag_a(self, p, k, m):
        return (128 if self.accmode == 1 else 256) + p * 64 + (k * self.mt + m) * 4

    def frag_w(self, p, k, n):
        return (128 if self.accmode == 1 else 256) + p * 64 + self.fa + (k * self.nt + n) * 4


def lane_setup(A, T, wstride):
    t0, t1, t2 = V_T, V_T + 1, V_T + 2
    A(f"v_lshlrev_b32 {v(V_DA)}, 4, {v(V_LANE)}")
    A(f"v_lshrrev_b32 {v(t0)}, 4, {v(V_LANE)}")
    A(f"v_and_b32 {v(t1)}, 15, {v(V_LANE)}")
    A(f"s_mov_b32 {s(G_T0)}, {wstride}")
    for j in range(T.ndw):
        A(f"v_lshlrev_b32 {v(t2)}, 2, {v(t0)}")
        A(f"v_or_b32 {v(t2)}, {(j & 1) << 1}, {v(t2)}")
        A(f"v_xor_b32 {v(t2)}, {v(t2)}, {v(t1)}")
        A(f"v_lshlrev_b32 {v(t2)}, 4, {v(t2)}")
        A(f"v_mad_u32_u24 {v(t2)}, {v(t0)}, {s(G_T0)}, {v(t2)}")
        A(f"v_add_u32 {v(V_DW + j)}, {4 * j * wstride - 1024 * j}, {v(t2)}")
    A(f"s_mul_i32 {s(G_M0A)}, {s(G_WAVE)}, {T.nda * 1024}")
    A(f"s_add_u32 {s(G_M0A)}, {s(G_M0A)}, {LDS_A}")
    A(f"s_mul_i32 {s(G_M0W)}, {s(G_WAVE)}, {T.ndw * 1024}")
    A(f"s_mov_b32 {s(G_WSTEP)}, {32 * T.ks * wstride}")
    A(f"s_lshr_b32 {s(G_T0)}, {s(G_WAVE)}, 1")
    A(f"s_mul_i32 {s(G_T0)}, {s(G_T0)}, {T.abytes // 2}")
    A(f"s_add_u32 {s(G_T0)}, {s(G_T0)}, {LDS_A}")
    if T.shape == 16:
        A(f"v_add_u32 {v(V_RA)}, {s(G_T0)}, {v(V_DA)}")
    else:
        A(f"v_bfe_u32 {v(t2)}, {v(V_LANE)}, 4, 1")
        A(f"v_lshl_add_u32 {v(V_RA)}, {v(t2)}, 10, {s(G_T0)}")
        A(f"v_lshrrev_b32 {v(t2)}, 5, {v(V_LANE)}")
        A(f"v_lshl_add_u32 {v(V_RA)}, {v(t2)}, 8, {v(V_RA)}")
        A(f"v_lshl_add_u32 {v(V_RA)}, {v(t1)}, 4, {v(V_RA)}")
    A(f"v_bfe_u32 {v(t0)}, {v(V_LANE)}, 2, 2")
    gsh = 4 if T.shape == 16 else 5
    A(f"v_lshrrev_b32 {v(t1)}, {gsh}, {v(V_LANE)}")
    A(f"v_lshl_add_u32 {v(t2)}, {v(t1)}, 2, {v(t0)}")
    A(f"v_lshlrev_b32 {v(t2)}, 8, {v(t2)}")
    A(f"v_and_b32 {v(V_T + 3)}, 3, {v(V_LANE)}")
    A(f"v_lshl_add_u32 {v(t2)}, {v(V_T + 3)}, 3, {v(t2)}")
    A(f"v_and_b32 {v(t1)}, 1, {v(t1)}")
    A(f"v_lshl_add_u32 {v(t0)}, {v(t0)}, 1, {v(t1)}")
    if T.shape == 32:
        A(f"v_bfe_u32 {v(t1)}, {v(V_LANE)}, 4, 1")
        A(f"v_xor_b32 {v(t0)}, {v(t0)}, {v(t1)}")
    A(f"s_and_b32 {s(G_T0)}, {s(G_WAVE)}, 1")
    whole = T.npan == 2 and not T.split
    if whole:
        A(f"s_mul_i32 {s(G_T0)}, {s(G_T0)}, {T.wbytes // 2}")
        A(f"v_add_u32 {v(t2)}, {s(G_T0)}, {v(t2)}")
    else:
        A(f"s_lshl_b32 {s(G_T0)}, {s(G_T0)}, 2")
        A(f"v_xor_b32 {v(t0)}, {s(G_T0)}, {v(t0)}")
    for n in range(0, 8 if whole else 4, 1 if T.shape == 16 else 2):
        A(f"v_xor_b32 {v(t1)}, {n}, {v(t0)}")
        A(f"v_lshl_add_u32 {v(V_RW + n)}, {v(t1)}, 5, {v(t2)}")


def wave_offsets(A, T, kblocks, wstride):
    per = 4 // T.nda
    A(f"s_lshr_b32 {s(G_T0)}, {s(G_WAVE)}, {per.bit_length() - 1}")
    if T.ks == 2:
        A(f"s_and_b32 {s(G_T1)}, {s(G_T0)}, 1")
        A(f"s_lshl_b32 {s(G_T1)}, {s(G_T1)}, 12")
        A(f"s_add_u32 {s(G_AOFF)}, {s(G_AOFF)}, {s(G_T1)}")
        A(f"s_lshr_b32 {s(G_T0)}, {s(G_T0)}, 1")
    A(f"s_mul_i32 {s(G_T0)}, {s(G_T0)}, {kblocks * 4096}")
    A(f"s_add_u32 {s(G_AOFF)}, {s(G_AOFF)}, {s(G_T0)}")
    if per > 1:
        A(f"s_and_b32 {s(G_T0)}, {s(G_WAVE)}, {per - 1}")
        A(f"s_mul_i32 {s(G_T0)}, {s(G_T0)}, {T.nda * 1024}")
        A(f"s_add_u32 {s(G_AOFF)}, {s(G_AOFF)}, {s(G_T0)}")
    A(f"s_and_b32 {s(G_T0)}, {s(G_WAVE)}, {4 // T.npan - 1}")
    A(f"s_mul_i32 {s(G_T0)}, {s(G_T0)}, {4 * T.ndw * wstride}")
    A(f"s_add_u32 {s(G_WOFF)}, {s(G_WOFF)}, {s(G_T0)}")


def dma_ops(T, slot, aflag=" sc1"):
    ops = []
    for j in range(T.nda):
        pre = f"s_add_u32 m0, {s(G_M0A)}, {slot * T.abytes}\ns_nop 0\n" if j == 0 else ""
        post = f"\ns_add_u32 {s(G_AOFF)}, {s(G_AOFF)}, {4096 * T.ks}" if j == T.nda - 1 else ""
        ops.append(pre + f"buffer_load_dwordx4 {v(V_DA)}, {s(SWS, 4)}, {s(G_AOFF)} offen offset:{1024 * j}{aflag} lds" + post)
    for j in range(T.ndw):
        pre = f"s_add_u32 m0, {s(G_M0W)}, {slot * T.wbytes}\ns_nop 0\n" if j == 0 else ""
        post = f"\ns_add_u32 {s(G_WOFF)}, {s(G_WOFF)}, {s(G_WSTEP)}" if j == T.ndw - 1 else ""
        ops.append(pre + f"buffer_load_dwordx4 {v(V_DW + j)}, {s(SWT, 4)}, {s(G_WOFF)} offen offset:{1024 * j} lds" + post)
    return ops


def read_ops(T, slot, p):
    ra, rw = [], []
    pan = T.wbytes // T.npan
    for k in range(T.ks):
        for m in range(T.mt):
            if T.shape == 16:
                off = ((m >> 2) * T.ks + k) * 4096 + (m & 3) * 1024
            else:
                mb = m & ~1
                off = ((mb >> 2) * T.ks + k) * 4096 + (mb & 3) * 1024 + (m & 1) * 512
            ra.append(f"ds_read_b128 {r(T.frag_a(p, k, m), 4)}, {v(V_RA)} offset:{slot * T.abytes + off}")
        for n in range(T.nt):
            nb = n if T.shape == 16 else n & ~1
            reg, extra = (V_RW + (nb & 3), (nb >> 2) * pan) if T.split else (V_RW + nb, 0)
            if T.shape == 32:
                extra += (n & 1) * 2048
            for q in range(2):
                rw.append(f"ds_read_b64_tr_b16 {r(T.frag_w(p, k, n) + 2 * q, 2)}, {v(reg)} "
                          f"offset:{slot * T.wbytes + extra + k * 8192 + q * 4096}")
    out = []
    while ra or rw:
        if ra:
            out.append(ra.pop(0))
        for _ in range(2):
            if rw:
                out.append(rw.pop(0))
    return out


def mfma_ops(T, p, first):
    ops = []
    for k in range(T.ks):
        if T.shape == 16:
            mn = [(m, n) for m in range(T.mt) for n in range(T.nt)]
            if T.order == 1:
                mn = [(m, n) for n in range(T.nt) for m in range(T.mt)]
            if T.order == 2:
                mn = [(m, n if m % 2 == 0 else T.nt - 1 - n) for m in range(T.mt) for n in range(T.nt)]
            if T.order == 3:
                mn = [(m if n % 2 == 0 else T.mt - 1 - m, n) for n in range(T.nt) for m in range(T.mt)]
            if T.order == 4:
                mn = [((m + n) % T.mt, n) for m in range(T.mt) for n in range(T.nt)]
            for m, n in mn:
                if True:
                    d = r(T.acc_tile(m, n), 4)
                    x, y = r(T.frag_w(p, k, n), 4), r(T.frag_a(p, k, m), 4)
                    if T.swap:
                        x, y = y, x
                    ops.append(f"{MF16} {d}, {x}, {y}, {'0' if first and k == 0 else d}")
        else:
            for j in range(2):
                for m in range(T.mt // 2):
                    for n in range(T.nt // 2):
                        d = r(T.acc((m * (T.nt // 2) + n) * 16), 16)
                        x, y = r(T.frag_w(p, k, 2 * n + j), 4), r(T.frag_a(p, k, 2 * m + j), 4)
                        if T.swap:
                            x, y = y, x
                        ops.append(f"{MF32} {d}, {x}, {y}, {'0' if first and k == 0 and j == 0 else d}")
    return ops


def interleave(A, mf, reads, dmas, rfrac, dstart, dend):
    n = len(mf)
    at = [[] for _ in range(n)]
    for i, op in enumerate(reads):
        at[min(n - 1, int(i * rfrac * n / max(1, len(reads))))].append(op)
    for i, op in enumerate(dmas):
        at[min(n - 1, int((dstart + (dend - dstart) * (i + 0.5) / len(dmas)) * n))].append(op)
    for i in range(n):
        A(mf[i])
        for op in at[i]:
            A(op)


def prologue(A, T, aflag=" sc1"):
    for st in range(4):
        for op in dma_ops(T, st, aflag):
            A(op)


def mainloop(A, T, nst, aflag=" sc1", younger=0, rfrac=0.75, dstart=0.0, dend=1.0, nodma=False):
    assert nst % 4 == 0 and nst >= 8
    A(f"s_waitcnt vmcnt({min(63, 3 * T.nd + younger)})")
    A("s_barrier")
    for op in read_ops(T, 0, 0):
        A(op)

    def stage(i, first, dma, vm, last=False):
        A(f"s_waitcnt vmcnt({vm}) lgkmcnt(0)" if vm is not None else "s_waitcnt lgkmcnt(0)")
        if not last:
            A("s_barrier")
        interleave(A, mfma_ops(T, i & 1, first), [] if last else read_ops(T, (i + 1) & 3, (i + 1) & 1),
                   dma_ops(T, i & 3, aflag) if dma and not nodma else [], rfrac, dstart, dend)
    for i in range(4):
        stage(i, i == 0, True, min(63, 2 * T.nd + (younger if i < 3 else 0)))
    if nst > 8:
        loop = A.new("gl")
        A(f"s_mov_b32 {s(G_CNT)}, {nst // 4 - 2}")
        A.label(loop)
        for i in range(4):
            stage(i, False, True, 2 * T.nd)
        A(f"s_sub_u32 {s(G_CNT)}, {s(G_CNT)}, 1")
        A(f"s_cmp_lg_u32 {s(G_CNT)}, 0")
        A(f"s_cbranch_scc1 {loop}")
    stage(0, False, False, 2 * T.nd)
    stage(1, False, False, T.nd)
    stage(2, False, False, 0)
    stage(3, False, False, None, last=True)


def quads(T):
    nf, nj = (T.nt, T.mt // 2) if T.swap else (T.mt, T.nt // 2)
    for f in range(nf):
        for j in range(nj):
            if T.shape == 16:
                t = (lambda x: T.acc_tile(x, f)) if T.swap else (lambda x: T.acc_tile(f, x))
                yield f, j, [t(2 * j) + i for i in range(4)] + [t(2 * j + 1) + i for i in range(4)]
            else:
                m, n = (j, f >> 1) if T.swap else (f >> 1, j)
                b = T.acc((m * (T.nt // 2) + n) * 16) + 4 * (f & 1)
                yield f, j, [b + i for i in range(4)] + [b + 8 + i for i in range(4)]


def granule_addr(A, T, dst):
    if T.shape == 16:
        A(f"v_lshlrev_b32 {v(dst)}, 4, {v(V_LANE)}")
    else:
        A(f"v_and_b32 {v(dst)}, 15, {v(V_LANE)}")
        A(f"v_lshlrev_b32 {v(dst)}, 4, {v(dst)}")
        A(f"v_lshrrev_b32 {v(V_T)}, 5, {v(V_LANE)}")
        A(f"v_lshl_add_u32 {v(dst)}, {v(V_T)}, 8, {v(dst)}")


def fetch(A, regs, tmp):
    out = []
    for i, x in enumerate(regs):
        if x >= 256:
            A(f"v_accvgpr_read_b32 {v(tmp + i)}, {r(x)}")
            out.append(tmp + i)
        else:
            out.append(x)
    return out


def free_loc(T, f):
    return (f, 0) if T.shape == 16 else (f & ~1, (f & 1) * 512)


def add_sub_stride(A, T, dst, stride):
    if T.shape == 32:
        A(f"v_bfe_u32 {v(V_T)}, {v(V_LANE)}, 4, 1")
        A(f"s_mov_b32 {s(G_T3)}, {stride}")
        A(f"v_mad_u32_u24 {v(dst)}, {v(V_T)}, {s(G_T3)}, {v(dst)}")


class Packer:
    def __init__(self, base, n):
        self.base, self.n, self.i = base, n, 0

    def next(self):
        self.i += 1
        return self.base + 4 * (self.i % self.n)


def epi_qkv(A, T, sbase):
    VA, TMP = V_T + 4, V_T + 6
    pk = Packer(V_T + 16, 6)
    granule_addr(A, T, VA)
    add_sub_stride(A, T, VA, 1024 if T.swap else 4096)
    A(f"v_add_u32 {v(VA + 1)}, 4096, {v(VA)}")
    A.nop(8)
    cnt = 0
    order = sorted(quads(T), key=lambda x: (x[1], x[0])) if T.swap else list(quads(T))
    seg = -1
    for f, j, regs in order:
        ft, extra = free_loc(T, f)
        sg, off = (j, ft * 1024 + extra) if T.swap else (ft >> 1, (ft & 1) * 4096 + j * 1024 + extra)
        if sg != seg:
            A(f"s_add_u32 {s(G_T0)}, {s(sbase)}, {sg * 32 * 24576}")
            seg = sg
        x = fetch(A, regs, TMP)
        d = pk.next()
        for i in range(4):
            A(f"v_cvt_pk_bf16_f32 {v(d + i)}, {v(x[2 * i])}, {v(x[2 * i + 1])}")
        A(f"buffer_store_dwordx4 {v(d, 4)}, {v(VA + (off >> 12))}, {s(SWS, 4)}, {s(G_T0)} offen offset:{off & 4095} sc1")
        cnt += 1
    return cnt


def epi_up(A, T, sbase):
    VA, TG, TU, TE = V_T + 4, V_T + 6, V_T + 14, V_T + 22
    pk = Packer(V_T + 30, 3)
    granule_addr(A, T, VA)
    add_sub_stride(A, T, VA, 1024)
    A(f"s_mov_b32 {s(G_T2)}, 0xbfb8aa3b")
    A.nop(8)
    q = {(f, j): regs for f, j, regs in quads(T)}
    nj = T.nt // 4
    cnt = 0
    for f in range(T.mt):
        ft, extra = free_loc(T, f)
        for j in range(nj):
            A(f"s_add_u32 {s(G_T0)}, {s(sbase)}, {((ft >> 2) * 112 + j) * 4096}")
            g = fetch(A, q[(f, j)], TG)
            u = fetch(A, q[(f, j + nj)], TU)
            for i in range(4):
                A(f"v_pk_mul_f32 {v(TE + 2 * i, 2)}, {v(g[2 * i], 2)}, {s(G_T2, 2)} op_sel_hi:[1,0]")
            for i in range(8):
                A(f"v_exp_f32 {v(TE + i)}, {v(TE + i)}")
            for i in range(4):
                A(f"v_pk_mul_f32 {v(g[2 * i], 2)}, {v(g[2 * i], 2)}, {v(u[2 * i], 2)}")
            for i in range(4):
                A(f"v_pk_add_f32 {v(TE + 2 * i, 2)}, {v(TE + 2 * i, 2)}, 1.0 op_sel_hi:[1,0]")
            for i in range(8):
                A(f"v_rcp_f32 {v(TE + i)}, {v(TE + i)}")
            A("s_nop 0")
            for i in range(4):
                A(f"v_pk_mul_f32 {v(g[2 * i], 2)}, {v(g[2 * i], 2)}, {v(TE + 2 * i, 2)}")
            d = pk.next()
            for i in range(4):
                A(f"v_cvt_pk_bf16_f32 {v(d + i)}, {v(g[2 * i])}, {v(g[2 * i + 1])}")
            A(f"buffer_store_dwordx4 {v(d, 4)}, {v(VA)}, {s(SWS, 4)}, {s(G_T0)} offen offset:{(ft & 3) * 1024 + extra} sc1")
            cnt += 1
    return cnt


def epi_res(A, T, s_res, s_gate, s_dst, final, sout=None):
    assert T.shape == 16 and not T.swap
    VA, VG, VO, TMP = V_T + 4, V_T + 5, V_T + 6, V_T + 8
    nj = T.nt // 2
    GT = 256
    RS = 256 + 4 * T.nt
    nres = T.mt * nj
    assert 4 * T.nt + 4 * nres <= 128 or T.nacc <= 192
    granule_addr(A, T, VA)
    A(f"v_lshrrev_b32 {v(VG)}, 4, {v(V_LANE)}")
    if final:
        A(f"v_and_b32 {v(VO)}, 15, {v(V_LANE)}")
        A(f"v_lshlrev_b32 {v(VO)}, 11, {v(VO)}")
        A(f"v_and_b32 {v(V_T)}, 1, {v(VG)}")
        A(f"v_lshl_add_u32 {v(VO)}, {v(V_T)}, 5, {v(VO)}")
        A(f"v_lshrrev_b32 {v(V_T)}, 1, {v(VG)}")
        A(f"v_lshl_add_u32 {v(VO)}, {v(V_T)}, 4, {v(VO)}")
    A(f"v_lshlrev_b32 {v(VG)}, 4, {v(VG)}")
    for n in range(T.nt):
        A(f"buffer_load_dwordx4 {r(GT + 4 * n, 4)}, {v(VG)}, {s(SWS, 4)}, {s(s_gate)} offen offset:{64 * n}")
    for j in range(nj):
        for f in range(T.mt):
            if f % 4 == 0:
                A(f"s_add_u32 {s(G_T0)}, {s(s_res)}, {((f >> 2) * 32 + j) * 4096}")
            A(f"buffer_load_dwordx4 {r(RS + 4 * (j * T.mt + f), 4)}, {v(VA)}, {s(SWS, 4)}, {s(G_T0)} offen offset:{(f & 3) * 1024} sc1")
    q = {(f, j): regs for f, j, regs in quads(T)}
    pk = Packer(V_T + 32, 3)
    G8, R4, R8 = TMP, TMP + 8, TMP + 12
    cnt = 0
    for j in range(nj):
        for f in range(T.mt):
            A(f"s_waitcnt vmcnt({nres - 1})")
            if f == 0:
                fetch(A, [GT + 8 * j + i for i in range(8)], G8)
            fetch(A, [RS + 4 * (j * T.mt + f) + i for i in range(4)], R4)
            for i in range(4):
                A(f"v_lshlrev_b32 {v(R8 + 2 * i)}, 16, {v(R4 + i)}")
                A(f"v_and_b32 {v(R8 + 2 * i + 1)}, 0xffff0000, {v(R4 + i)}")
            x = q[(f, j)]
            assert max(x) < 256
            for i in range(4):
                A(f"v_pk_fma_f32 {v(R8 + 2 * i, 2)}, {v(x[2 * i], 2)}, {v(G8 + 2 * i, 2)}, {v(R8 + 2 * i, 2)}")
            d = pk.next()
            for i in range(4):
                A(f"v_cvt_pk_bf16_f32 {v(d + i)}, {v(R8 + 2 * i)}, {v(R8 + 2 * i + 1)}")
            if final:
                A(f"s_add_u32 {s(G_T0)}, {s(s_dst)}, {f * 16 * 2048}")
                A("s_nop 0")
                A(f"v_permlane16_swap_b32 {v(d)}, {v(d + 2)}")
                A(f"v_permlane16_swap_b32 {v(d + 1)}, {v(d + 3)}")
                A(f"buffer_store_dwordx4 {v(d, 4)}, {v(VO)}, {s(sout, 4)}, {s(G_T0)} offen offset:{64 * j}")
            else:
                A(f"s_add_u32 {s(G_T0)}, {s(s_dst)}, {((f >> 2) * 32 + j) * 4096}")
                A(f"buffer_store_dwordx4 {v(d, 4)}, {v(VA)}, {s(SWS, 4)}, {s(G_T0)} offen offset:{(f & 3) * 1024} sc1")
            cnt += 1
    return cnt
```

```python
MB = 1 << 20
XRING = 128 * MB
PARITY = 1 * MB
LRING = 2 * MB
MOD = 3 * MB
CNT = 3 * MB + 65536
FLAGS = 3 * MB + 131072
TRACE = 4 * MB
H1 = 8 * MB
X1 = 12 * MB
XF = 20 * MB
H2 = 16 * MB
QKV = 32 * MB
OTOK = 80 * MB
HH = 96 * MB
PART = 112 * MB
```

```python
from asmlib import *
import layout as L

SWS = 4


def xor_reduce(A, op, x, t, steps):
    for b in steps:
        if b >= 16:
            A(f"v_mov_b32 {v(t)}, {v(x)}")
            A("s_nop 1")
            A(f"v_permlane{b}_swap_b32 {v(x)}, {v(t)}")
            A("s_nop 0")
            A(f"{op} {v(x)}, {v(x)}, {v(t)}")
        else:
            A("s_nop 1")
            A(f"{op}_dpp {v(x)}, {v(x)}, {v(x)} row_ror:{b} row_mask:0xf bank_mask:0xf")


def mod_body(A, wg, wave, sw, sc, hook=None):
    W, CV, ACC, T = 16, 80, 96, 104
    A("v_lshrrev_b32 v2, 2, v0")
    A("v_and_b32 v3, 3, v0")
    A("v_mul_u32_u24 v4, 12288, v2")
    A("v_lshl_add_u32 v4, v3, 4, v4")
    A("v_lshlrev_b32 v5, 1, v2")
    A(f"s_lshl_b32 s40, {s(wg)}, 6")
    for i in range(16):
        A(f"buffer_load_ushort {v(CV + i)}, v5, {s(sc, 4)}, 0 offen offset:{128 * i}")
    for i in range(16):
        A(f"buffer_load_dwordx4 {v(W + 4 * i, 4)}, v4, {s(sw, 4)}, s40 offen")
        A(f"s_add_u32 s40, s40, {64 * 12288}")
    for i in range(8):
        A(f"v_mov_b32 {v(ACC + i)}, 0")
    A("s_waitcnt vmcnt(16)")
    for i in range(16):
        A(f"v_lshlrev_b32 {v(CV + i)}, 16, {v(CV + i)}")
        A(f"v_mul_f32 {v(T)}, 0xbfb8aa3b, {v(CV + i)}")
        A(f"v_exp_f32 {v(T)}, {v(T)}")
        A("s_nop 0")
        A(f"v_add_f32 {v(T)}, 1.0, {v(T)}")
        A(f"v_rcp_f32 {v(T)}, {v(T)}")
        A("s_nop 0")
        A(f"v_mul_f32 {v(T)}, {v(T)}, {v(CV + i)}")
        A(f"v_cvt_pk_bf16_f32 {v(T)}, 0, {v(T)}")
        A(f"v_and_b32 {v(CV + i)}, 0xffff0000, {v(T)}")
    if hook:
        hook()
    for i in range(16):
        A(f"s_waitcnt vmcnt({15 - i})")
        for d in range(4):
            A(f"v_lshlrev_b32 {v(T)}, 16, {v(W + 4 * i + d)}")
            A(f"v_and_b32 {v(T + 1)}, 0xffff0000, {v(W + 4 * i + d)}")
            A(f"v_fmac_f32 {v(ACC + 2 * d)}, {v(T)}, {v(CV + i)}")
            A(f"v_fmac_f32 {v(ACC + 2 * d + 1)}, {v(T + 1)}, {v(CV + i)}")
    for i in range(8):
        xor_reduce(A, "v_add_f32", ACC + i, T, (4, 8, 16, 32))
    A(f"s_lshl_b32 s40, {s(wave)}, 7")
    A("v_lshl_add_u32 v4, v3, 5, s40")
    A(f"ds_write_b128 v4, {v(ACC, 4)}")
    A(f"ds_write_b128 v4, {v(ACC + 4, 4)} offset:16")
    A("s_waitcnt lgkmcnt(0)")
    A("s_barrier")
    A("v_and_b32 v4, 31, v0")
    A("v_lshlrev_b32 v4, 2, v4")
    for w in range(4):
        A(f"ds_read_b32 {v(ACC + w)}, v4 offset:{128 * w}")
    A("v_lshrrev_b32 v5, 5, v0")
    A("v_min_u32 v5, 1, v5")
    A("v_lshl_add_u32 v4, v5, 30, v4")
    A(f"s_lshl_b32 s40, {s(wg)}, 7")
    A(f"s_add_u32 s40, s40, {L.MOD}")
    A("s_waitcnt lgkmcnt(0)")
    A(f"v_add_f32 {v(ACC)}, {v(ACC)}, {v(ACC + 1)}")
    A(f"v_add_f32 {v(ACC + 2)}, {v(ACC + 2)}, {v(ACC + 3)}")
    A(f"v_add_f32 {v(ACC)}, {v(ACC)}, {v(ACC + 2)}")
    A(f"v_cvt_pk_bf16_f32 {v(ACC)}, 0, {v(ACC)}")
    A(f"v_and_b32 {v(ACC)}, 0xffff0000, {v(ACC)}")
    A(f"buffer_store_dword {v(ACC)}, v4, {s(SWS, 4)}, s40 offen sc1")


def ln_body(A, mt, wave, first, sx=None, lane=1, lds=0):
    X, F, SH, SC, T = 16, 48, 112, 176, 4
    VA, VG = 2, 3
    shift, scale = (0, 1024) if first else (3072, 4096)
    A(f"s_lshr_b32 s40, {s(mt)}, 2")
    A("s_lshl_b32 s40, s40, 2")
    A(f"s_add_u32 s40, s40, {s(wave)}")
    A("s_lshl_b32 s40, s40, 15")
    A(f"s_and_b32 s41, {s(mt)}, 3")
    A("s_lshl_b32 s41, s41, 10")
    A("s_add_u32 s40, s40, s41")
    A(f"v_lshlrev_b32 {v(VA)}, 4, {v(lane)}")
    A(f"v_lshrrev_b32 {v(VG)}, 4, {v(lane)}")
    if first:
        A(f"v_and_b32 {v(T)}, 15, {v(lane)}")
        A(f"v_lshlrev_b32 {v(T)}, 11, {v(T)}")
        A(f"v_and_b32 {v(T + 1)}, 1, {v(VG)}")
        A(f"v_lshl_add_u32 {v(T)}, {v(T + 1)}, 5, {v(T)}")
        A(f"v_lshrrev_b32 {v(T + 1)}, 1, {v(VG)}")
        A(f"v_lshl_add_u32 {v(T)}, {v(T + 1)}, 4, {v(T)}")
        A(f"s_lshl_b32 s41, {s(mt)}, 15")
        A(f"s_lshl_b32 s42, {s(wave)}, 9")
        A("s_add_u32 s41, s41, s42")
        for k in range(8):
            A(f"buffer_load_dwordx4 {v(X + 4 * k, 4)}, {v(T)}, {s(sx, 4)}, s41 offen offset:{64 * k}")
    else:
        for k in range(8):
            A(f"s_add_u32 s41, s40, {L.X1 + 4096 * k}")
            A(f"buffer_load_dwordx4 {v(X + 4 * k, 4)}, {v(VA)}, {s(SWS, 4)}, s41 offen sc1")
    A(f"v_lshlrev_b32 {v(VG)}, 4, {v(VG)}")
    A(f"s_lshl_b32 s42, {s(wave)}, 10")
    A(f"s_add_u32 s43, s42, {L.MOD + 4 * scale}")
    A(f"s_add_u32 s42, s42, {L.MOD + 4 * shift}")
    for n in range(16):
        A(f"buffer_load_dwordx4 {v(SC + 4 * n, 4)}, {v(VG)}, {s(SWS, 4)}, s43 offen offset:{64 * n} sc1")
        A(f"buffer_load_dwordx4 {v(SH + 4 * n, 4)}, {v(VG)}, {s(SWS, 4)}, s42 offen offset:{64 * n} sc1")
    A("s_waitcnt vmcnt(32)")
    if first:
        for k in range(8):
            A(f"v_permlane16_swap_b32 {v(X + 4 * k)}, {v(X + 4 * k + 2)}")
            A(f"v_permlane16_swap_b32 {v(X + 4 * k + 1)}, {v(X + 4 * k + 3)}")
            A(f"s_add_u32 s41, s40, {L.XF + 4096 * k}")
            A(f"buffer_store_dwordx4 {v(X + 4 * k, 4)}, {v(VA)}, {s(SWS, 4)}, s41 offen sc1")
    for i in range(32):
        A(f"v_lshlrev_b32 {v(F + 2 * i)}, 16, {v(X + i)}")
        A(f"v_and_b32 {v(F + 2 * i + 1)}, 0xffff0000, {v(X + i)}")
    A(f"v_and_b32 {v(T + 4)}, 15, {v(lane)}")
    A(f"v_lshlrev_b32 {v(T + 4)}, 4, {v(T + 4)}")
    A(f"s_lshl_b32 s41, {s(wave)}, 2")
    A(f"v_add_u32 {v(T + 5)}, s41, {v(T + 4)}")

    def total(off):
        A(f"v_add_f32 {v(T)}, {v(T)}, {v(T + 1)}")
        xor_reduce(A, "v_add_f32", T, T + 1, (16, 32))
        A(f"ds_write_b32 {v(T + 5)}, {v(T)} offset:{lds + off}")
        A("s_waitcnt lgkmcnt(0)")
        A("s_barrier")
        A(f"ds_read_b128 {v(T, 4)}, {v(T + 4)} offset:{lds + off}")
        A("s_waitcnt lgkmcnt(0)")
        A(f"v_pk_add_f32 {v(T, 2)}, {v(T, 2)}, {v(T + 2, 2)}")
        A(f"v_add_f32 {v(T)}, {v(T)}, {v(T + 1)}")
        A(f"v_mul_f32 {v(T)}, 0x3a800000, {v(T)}")
    A(f"v_pk_add_f32 {v(T, 2)}, {v(F, 2)}, {v(F + 2, 2)}")
    for i in range(2, 32):
        A(f"v_pk_add_f32 {v(T, 2)}, {v(T, 2)}, {v(F + 2 * i, 2)}")
    total(0)
    for i in range(32):
        A(f"v_pk_add_f32 {v(F + 2 * i, 2)}, {v(F + 2 * i, 2)}, {v(T, 2)} op_sel_hi:[1,0] neg_lo:[0,1] neg_hi:[0,1]")
    A(f"v_pk_mul_f32 {v(T, 2)}, {v(F, 2)}, {v(F, 2)}")
    for i in range(1, 32):
        A(f"v_pk_fma_f32 {v(T, 2)}, {v(F + 2 * i, 2)}, {v(F + 2 * i, 2)}, {v(T, 2)}")
    total(256)
    A(f"v_add_f32 {v(T)}, 0x3727c5ac, {v(T)}")
    A(f"v_rsq_f32 {v(T)}, {v(T)}")
    A(f"s_waitcnt vmcnt({8 if first else 0})")
    for k in range(8):
        for i in range(4):
            x = F + 8 * k + 2 * i
            A(f"v_pk_mul_f32 {v(x, 2)}, {v(x, 2)}, {v(T, 2)} op_sel_hi:[1,0]")
            A(f"v_pk_add_f32 {v(SH + 8 * k + 2 * i, 2)}, {v(SH + 8 * k + 2 * i, 2)}, {v(x, 2)}")
            A(f"v_pk_fma_f32 {v(x, 2)}, {v(x, 2)}, {v(SC + 8 * k + 2 * i, 2)}, {v(SH + 8 * k + 2 * i, 2)}")
        for i in range(4):
            A(f"v_cvt_pk_bf16_f32 {v(SC + 4 * k + i)}, {v(F + 8 * k + 2 * i)}, {v(F + 8 * k + 2 * i + 1)}")
        A(f"s_add_u32 s41, s40, {(L.H1 if first else L.H2) + 4096 * k}")
        A(f"buffer_store_dwordx4 {v(SC + 4 * k, 4)}, {v(VA)}, {s(SWS, 4)}, s41 offen sc1")
```

```python
import sys
from asmlib import *
import layout as L
from gemm import *
import gemm, small, chain


def entry(A, name, nwg, end, ptrs):
    A.kernel_begin(name)
    A(f"s_cmp_ge_u32 s2, {nwg}")
    A(f"s_cbranch_scc1 {end}")
    for reg, key in ptrs:
        A(f"s_load_dwordx2 {s(reg, 2)}, s[0:1], {KA[key]}")
    A(f"s_load_dwordx2 s[30:31], s[0:1], {KA['ws']}")
    A("v_lshrrev_b32 v1, 6, v0")
    A("s_nop 0")
    A(f"v_readfirstlane_b32 {s(G_WAVE)}, v1")
    A("v_and_b32 v1, 63, v0")
    A("s_waitcnt lgkmcnt(0)")
    A.srd(SWS, 30, SIZE["ws"])


def mod_kernel(A):
    end, prb = A.new("end"), A.new("prb")
    entry(A, "mod_kernel", 193, end, [(16, "wmod"), (18, "c")])
    A("s_cmp_eq_u32 s2, 192")
    A(f"s_cbranch_scc1 {prb}")
    A.srd(8, 16, SIZE["wmod"])
    A.srd(12, 18, SIZE["c"])
    small.mod_body(A, 2, G_WAVE, 8, 12)
    A("s_endpgm")
    A.label(prb)
    chain.probe(A, SWS, G_WAVE, 1)
    A.label(end)
    A("s_endpgm")


def ln_kernel(A, name, first):
    end = A.new("end")
    entry(A, name, 128, end, [(16, "x")])
    A.srd(8, 16, SIZE["x"])
    small.ln_body(A, 2, G_WAVE, first, 8)
    A.label(end)
    A("s_endpgm")


def qkv_task(A, T, TV, rb, ct, after):
    isv = A.new("isv")
    A(f"s_lshr_b32 s43, {s(ct)}, 4")
    A(f"s_and_b32 s47, {s(ct)}, 15")
    A("s_cmp_eq_u32 s43, 1")
    A("s_cselect_b64 s[44:45], s[20:21], s[18:19]")
    A("s_cmp_eq_u32 s43, 2")
    A("s_cselect_b64 s[44:45], s[22:23], s[44:45]")
    A.srd(SWT, 44, SIZE["Wq"])
    lane_setup(A, T, 8192)
    A(f"s_mul_i32 {s(G_AOFF)}, {s(rb)}, {T.tm // 64 * 32 * 4096}")
    A(f"s_add_u32 {s(G_AOFF)}, {s(G_AOFF)}, {L.H1}")
    A(f"s_lshr_b32 s46, {s(G_WAVE)}, 1")
    A("s_lshl_b32 s47, s47, 1")
    A("s_add_u32 s48, s47, s46")
    A(f"s_lshl_b32 {s(G_WOFF)}, s48, 8")
    wave_offsets(A, T, 32, 8192)
    A(f"s_lshl_b32 s48, {s(rb)}, 1")
    A("s_add_u32 s48, s48, s46")
    A(f"s_mul_i32 s48, s48, {T.tm // 2}")
    A(f"s_and_b32 s46, {s(G_WAVE)}, 1")
    A("s_add_u32 s48, s48, s46")
    A("s_add_u32 s48, s48, s47")
    A("s_mul_i32 s48, s48, 24576")
    A("s_lshl_b32 s46, s43, 13")
    A("s_add_u32 s48, s48, s46")
    A(f"s_add_u32 s48, s48, {L.QKV}")
    prologue(A, T)
    A("s_cmp_eq_u32 s43, 2")
    A(f"s_cbranch_scc1 {isv}")
    for t in (T, TV):
        if t is TV:
            A.label(isv)
        mainloop(A, t, 32 // t.ks)
        epi_qkv(A, t, 48)
        after()


def qkv_kernel(A):
    end = A.new("end")
    entry(A, "qkv_kernel", 384, end, [(18, "Wq"), (20, "Wk"), (22, "Wv")])
    A("s_lshr_b32 s40, s2, 3")
    A("s_mul_i32 s41, s40, 43")
    A("s_lshr_b32 s41, s41, 8")
    A("s_mul_i32 s42, s41, 6")
    A("s_sub_u32 s42, s40, s42")
    A("s_and_b32 s43, s2, 7")
    A("s_mul_i32 s43, s43, 6")
    A("s_add_u32 s42, s42, s43")
    qkv_task(A, Tile(256, 256, 1), Tile(256, 256, 1, swap=True), 41, 42, lambda: A("s_endpgm"))
    A.label(end)
    A("s_endpgm")


def res_task(A, T, rb, ct, final, wptr, sout=None):
    kb = 112 if final else 128
    A.srd(SWT, wptr, SIZE["w2" if final else "Wo"])
    lane_setup(A, T, 2048)
    A(f"s_mul_i32 {s(G_AOFF)}, {s(rb)}, {2 * kb * 4096}")
    A(f"s_add_u32 {s(G_AOFF)}, {s(G_AOFF)}, {L.HH if final else L.OTOK}")
    A(f"s_lshl_b32 {s(G_WOFF)}, {s(ct)}, 8")
    wave_offsets(A, T, kb, 2048)
    prologue(A, T)
    A(f"s_lshr_b32 s46, {s(G_WAVE)}, 1")
    A(f"s_lshl_b32 s47, {s(rb)}, 1")
    A("s_add_u32 s46, s46, s47")
    A(f"s_and_b32 s47, {s(G_WAVE)}, 1")
    A(f"s_lshl_b32 s48, {s(ct)}, 1")
    A("s_add_u32 s47, s47, s48")
    A("s_lshl_b32 s48, s46, 17")
    A("s_lshl_b32 s49, s47, 13")
    A("s_add_u32 s49, s49, s48")
    if final:
        A("s_lshl_b32 s50, s47, 7")
        A("s_add_u32 s50, s50, s48")
    else:
        A(f"s_add_u32 s50, s49, {L.X1}")
    A(f"s_add_u32 s49, s49, {L.X1 if final else L.XF}")
    A("s_lshl_b32 s51, s47, 8")
    A(f"s_add_u32 s51, s51, {L.MOD + 4 * (5120 if final else 2048)}")
    mainloop(A, T, kb // T.ks)
    epi_res(A, T, 49, 51, 50, final, sout)


def res_kernel(A, name, final):
    end = A.new("end")
    entry(A, name, 128, end, [(16, "w2" if final else "Wo"), (18, "out")])
    A.srd(12, 18, SIZE["out"])
    A("s_and_b32 s40, s2, 7")
    A("s_lshr_b32 s41, s2, 3")
    A("s_lshr_b32 s42, s40, 1")
    A("s_lshl_b32 s42, s42, 2")
    A("s_and_b32 s43, s41, 3")
    A("s_add_u32 s42, s42, s43")
    A("s_and_b32 s40, s40, 1")
    A("s_lshl_b32 s40, s40, 2")
    A("s_lshr_b32 s41, s41, 2")
    A("s_add_u32 s41, s41, s40")
    res_task(A, Tile(128, 128, 2), 42, 41, final, 16, 12)
    A.label(end)
    A("s_endpgm")


def up_task(A, T, rb, ct, p1, p3):
    A(f"s_cmp_ge_u32 {s(G_WAVE)}, 2")
    A(f"s_cselect_b64 s[44:45], {s(p3, 2)}, {s(p1, 2)}")
    A.srd(SWT, 44, SIZE["w1"])
    lane_setup(A, T, 7168)
    A(f"s_mul_i32 {s(G_AOFF)}, {s(rb)}, {T.tm // 64 * 32 * 4096}")
    A(f"s_add_u32 {s(G_AOFF)}, {s(G_AOFF)}, {L.H2}")
    A(f"s_lshl_b32 {s(G_WOFF)}, {s(ct)}, 8")
    wave_offsets(A, T, 32, 7168)
    prologue(A, T)
    A(f"s_lshr_b32 s46, {s(G_WAVE)}, 1")
    A(f"s_lshl_b32 s47, {s(rb)}, 1")
    A("s_add_u32 s46, s46, s47")
    A(f"s_mul_i32 s46, s46, {T.tm // 128 * 112}")
    A(f"s_and_b32 s47, {s(G_WAVE)}, 1")
    A(f"s_lshl_b32 s48, {s(ct)}, 1")
    A("s_add_u32 s47, s47, s48")
    A("s_lshl_b32 s47, s47, 1")
    A("s_add_u32 s46, s46, s47")
    A("s_lshl_b32 s46, s46, 12")
    A(f"s_add_u32 s48, s46, {L.HH}")
    mainloop(A, T, 32 // T.ks)
    epi_up(A, T, 48)


def up_kernel(A):
    end = A.new("end")
    entry(A, "up_kernel", 224, end, [(16, "w1"), (18, "w3")])
    A("s_and_b32 s40, s2, 7")
    A("s_lshr_b32 s41, s2, 3")
    A("s_and_b32 s42, s41, 3")
    A("s_and_b32 s43, s40, 1")
    A("s_lshl_b32 s43, s43, 2")
    A("s_add_u32 s42, s42, s43")
    A("s_lshr_b32 s41, s41, 2")
    A("s_lshr_b32 s40, s40, 1")
    A("s_mul_i32 s40, s40, 7")
    A("s_add_u32 s41, s41, s40")
    up_task(A, Tile(256, 256, 1, split=True), 42, 41, 16, 18)
    A.label(end)
    A("s_endpgm")


def build(path):
    A = Asm()
    mod_kernel(A)
    ln_kernel(A, "ln1_kernel", True)
    qkv_kernel(A)
    chain.chain_kernel(A, chain.Cfg())
    res_kernel(A, "wo_kernel", False)
    ln_kernel(A, "ln2_kernel", False)
    up_kernel(A)
    res_kernel(A, "down_kernel", True)
    launches = [("mod_kernel", 193, 256, 1024), ("ln1_kernel", 128, 256, 1024), ("qkv_kernel", 384, 256, 131072),
                ("chain_kernel", 256, 256, 163840), ("wo_kernel", 128, 256, 131072), ("ln2_kernel", 128, 256, 1024),
                ("up_kernel", 224, 256, 131072), ("down_kernel", 128, 256, 131072)]
    small_k = {"mod_kernel": 128, "ln1_kernel": 256, "ln2_kernel": 256}
    kernels = [(k, small_k.get(k, 512), 102, small_k.get(k, 256)) for k, *_ in launches]
    hdr = ["adaLN + recurrent-memory attention + SwiGLU; generated by gen/build_v1.py"]
    open(path, "w").write(build_file(hdr, launches, A, kernels))


if __name__ == "__main__":
    build(sys.argv[1])
```

```python
from asmlib import *
import layout as L

SWS, SW, SDBG = 4, 8, 12
P_MEM0, P_WQ, P_WK, P_WV, P_WO, P_DBG, P_WS = 16, 18, 20, 22, 24, 28, 30
S_WAVE, S_GRP, S_TK, S_IRR, S_STEP, S_BUD, S_T0, S_T1 = 32, 33, 34, 35, 36, 37, 38, 39
S_CUR, S_NXT, S_RST, S_XCUR, S_XRST, S_RBASE, S_PAR, S_PF, S_C, S_NC, S_OT = range(40, 51)
S_XCC, S_T2, S_T3 = 51, 52, 53
S_FB, S_TAG = 59, 26
S_XC, S_XR = 84, 88
S_STAMP = 60
S_CNT = 80
NSTART = 256
BUDGET = 200000
SM = "v_smfmac_f32_16x16x64_bf16"
MF = "v_mfma_f32_16x16x32_bf16"


class Cfg:
    trace = 0
    nsteps = 64
    lag = 4
    fin_sleep = 4
    ln_sleep = 2
    g4_sleep = 4
    solo = 0
    cyc = 0
    flip = 0
    nrep = 2
    xdelay = 28
    xgap = 12
    xfill = 0
    fm_delay = 36
    mdelay = 8
    fo_pos = 3
    use_fm = 1
    use_fo = 1
    fspace = 12
    lspace = 4
    ltail = 1
    kpos = 1
    vpos = 0
    ksplit = 2
    qsplit = 5
    rpos = 3
    vin = 2
    vk = 2
    xdepth = 3
    xgap2 = 4
    xbf = 1
    vchk = 1
    qpipe = 0
    hw = 2
    hr = 3


def heat(A, h, n):
    for _ in range(n):
        A(f"{MF} {v(h, 4)}, {v(h + 4, 4)}, {v(h + 4, 4)}, 0")


def stamp(A, cfg, i, lvl=1):
    if cfg.trace in (1, lvl):
        A(f"{'s_memtime' if cfg.cyc else 's_memrealtime'} {s(S_STAMP + 2 * i, 2)}")


def count(A, cfg, i):
    if cfg.trace == 1:
        A(f"s_add_u32 {s(S_CNT + i)}, {s(S_CNT + i)}, 1")


def flush_stamps(A, cfg, n, vt, va, lvl=1):
    if cfg.trace not in (1, lvl):
        return
    A("s_waitcnt lgkmcnt(0)")
    for i in range(n):
        A(f"v_writelane_b32 {v(vt)}, {s(S_STAMP + 2 * i)}, {i}")
    A(f"v_writelane_b32 {v(vt)}, {s(S_BUD)}, 8")
    for i in range(4):
        A(f"v_writelane_b32 {v(vt)}, {s(S_CNT + i)}, {9 + i}")
    A(f"s_mul_i32 {s(S_T0)}, {s(S_GRP)}, 24")
    A(f"s_add_u32 {s(S_T0)}, {s(S_T0)}, {s(S_TK)}")
    A(f"s_lshl_b32 {s(S_T0)}, {s(S_T0)}, 2")
    A(f"s_add_u32 {s(S_T0)}, {s(S_T0)}, {s(S_WAVE)}")
    A(f"s_lshl_b32 {s(S_T0)}, {s(S_T0)}, 6")
    A(f"s_add_u32 {s(S_T0)}, {s(S_T0)}, {s(S_STEP)}")
    A(f"s_lshl_b32 {s(S_T0)}, {s(S_T0)}, 6")
    A(f"s_add_u32 {s(S_T0)}, {s(S_T0)}, {L.TRACE}")
    A(f"v_mbcnt_lo_u32_b32 {v(va)}, -1, 0")
    A(f"v_lshlrev_b32 {v(va)}, 2, {v(va)}")
    A("s_mov_b64 exec, 0xffff")
    A(f"buffer_store_dword {v(vt)}, {v(va)}, {s(SWS, 4)}, {s(S_T0)} offen")
    A("s_mov_b64 exec, -1")


def check(A, reg, n, tmp):
    if n == 4:
        A(f"v_max3_u32 {v(tmp)}, {v(reg)}, {v(reg + 1)}, {v(reg + 2)}")
        A(f"v_max_u32 {v(tmp)}, {v(tmp)}, {v(reg + 3)}")
    elif n > 4:
        A(f"v_max3_u32 {v(tmp)}, {v(reg)}, {v(reg + 1)}, {v(reg + 2)}")
        for i in range(3, n - 1, 2):
            A(f"v_max3_u32 {v(tmp)}, {v(tmp)}, {v(reg + i)}, {v(reg + i + 1)}")
        A(f"v_max_u32 {v(tmp)}, {v(tmp)}, {v(reg + n - 1)}")
    elif n == 2:
        A(f"v_max_u32 {v(tmp)}, {v(reg)}, {v(reg + 1)}")
    A(f"v_cmp_eq_u32 vcc, -1, {v(tmp)}")


def spend(A, abort):
    A(f"s_sub_u32 {s(S_BUD)}, {s(S_BUD)}, 1")
    A(f"s_cbranch_scc1 {abort}")


def fsm_poll(A, n, ld, chk, use, abort, finished=None, fast=None, onfail=None):
    done = A.new("pd")
    labels, emitted, todo = {}, set(), []
    full = frozenset(range(n))
    if finished is None:
        finished = lambda got: got == full

    def lab(st):
        if st not in labels:
            labels[st] = A.new("ps")
            todo.append(st)
        return labels[st]

    fails = []

    def chain_from(st, last):
        while True:
            if st in emitted:
                A(f"s_branch {lab(st)}")
                return
            emitted.add(st)
            A.label(lab(st))
            fl = A.new("pf")
            fails.append((fl, st))
            A(f"s_waitcnt vmcnt({len(st) - 1})")
            chk(st[0])
            A(f"s_cbranch_vccnz {fl}")
            rest = st[1:]
            fin = finished(full - frozenset(rest))
            use(st[0], () if fin else rest)
            if fin:
                if not last:
                    A(f"s_branch {done}")
                return
            st = rest

    if fast is None:
        chain_from(tuple(range(n)), True)
    else:
        head, tail = fast
        for i in range(n):
            fl = A.new("pf")
            fails.append((fl, tuple(range(i, n))))
            A(f"s_waitcnt vmcnt({n - 1 - i})")
            chk(i)
            if i:
                tail(i - 1)
            A(f"s_cbranch_vccnz {fl}")
            head(i)
        tail(n - 1)

    def rest_code():
        i = 0
        while i < len(fails) or any(t not in emitted for t in todo):
            while i < len(fails):
                fl, st = fails[i]
                i += 1
                A.label(fl)
                ld(st[0])
                if onfail:
                    onfail(i <= n and fast is not None)
                if st[0] == min(st):
                    spend(A, abort)
                chain_from(st[1:] + st[:1], False)
            for t in list(todo):
                if t not in emitted:
                    chain_from(t, False)
    return done, rest_code


def flag_wait(A, cfg, vaddr, buf, nl, abort):
    go, top = A.new("fg"), A.new("ft")
    ld = lambda b: A(f"buffer_load_dword {v(buf + b)}, {v(vaddr)}, {s(SWS, 4)}, {s(S_FB)} offen sc1")
    A(f"s_mov_b64 exec, {(1 << nl) - 1}")
    for b in range(3):
        ld(b)
        if b < 2:
            A.nop(cfg.fspace)
    A.label(top)
    for b in range(3):
        A("s_waitcnt vmcnt(2)")
        A(f"v_cmp_gt_u32 vcc, {s(S_TAG)}, {v(buf + b)}")
        A(f"s_cbranch_vccz {go}")
        ld(b)
    spend(A, abort)
    A(f"s_branch {top}")
    A.label(go)
    A("s_mov_b64 exec, -1")


def load_weights(A, chunks, vglob, vtr):
    NS = 5

    def issue(c):
        setup, stride, order, dst = chunks[c]
        setup()
        A(f"s_mul_i32 {s(S_T0)}, {s(S_WAVE)}, 40960")
        A(f"s_add_u32 m0, {s(S_T0)}, {(c % NS) * 8192}")
        for j in range(8):
            if j:
                A(f"s_add_u32 m0, m0, 1024")
                A(f"s_add_u32 {s(S_T1)}, {s(S_T1)}, {8 * stride}")
            else:
                A("s_nop 0")
            A(f"buffer_load_dwordx4 {v(vglob[stride])}, {s(SW, 4)}, {s(S_T1)} offen lds")

    n = len(chunks)
    for c in range(min(NS, n)):
        issue(c)
    for c in range(n):
        setup, stride, order, dst = chunks[c]
        A(f"s_waitcnt vmcnt({8 * (min(c + NS, n) - c - 1)})")
        for t in range(4):
            for H in range(2):
                for q in range(2):
                    row = 32 * H + (16 * q if order == "P" else 2 * q)
                    off = (c % NS) * 8192 + row * 128 + t * 32
                    A(f"ds_read_b64_tr_b16 {r(dst(t) + 4 * H + 2 * q, 2)}, {v(vtr[order])} offset:{off}")
        A("s_waitcnt lgkmcnt(0)")
        if c + NS < n:
            issue(c + NS)


def weight_addr_regs(A, lane, g8192, g2048, trP, trO, t0, t1):
    A(f"v_lshrrev_b32 {v(t0)}, 3, {v(lane)}")
    A(f"v_and_b32 {v(t1)}, 7, {v(lane)}")
    A(f"v_lshlrev_b32 {v(t1)}, 4, {v(t1)}")
    A(f"v_lshl_add_u32 {v(g8192)}, {v(t0)}, 13, {v(t1)}")
    A(f"v_lshl_add_u32 {v(g2048)}, {v(t0)}, 11, {v(t1)}")
    A(f"s_mul_i32 {s(S_T0)}, {s(S_WAVE)}, 40960")
    A(f"v_and_b32 {v(t1)}, 3, {v(lane)}")
    A(f"v_lshl_add_u32 {v(t1)}, {v(t1)}, 3, {s(S_T0)}")
    A(f"v_lshrrev_b32 {v(t0)}, 2, {v(lane)}")
    A(f"v_lshl_add_u32 {v(trP)}, {v(t0)}, 7, {v(t1)}")
    A(f"v_and_b32 {v(trO)}, 16, {v(lane)}")
    A(f"v_bfe_u32 {v(t0)}, {v(lane)}, 5, 1")
    A(f"v_lshl_add_u32 {v(trO)}, {v(t0)}, 3, {v(trO)}")
    A(f"v_bfe_u32 {v(t0)}, {v(lane)}, 3, 1")
    A(f"v_lshl_add_u32 {v(trO)}, {v(t0)}, 2, {v(trO)}")
    A(f"v_bfe_u32 {v(t0)}, {v(lane)}, 2, 1")
    A(f"v_add_u32 {v(trO)}, {v(trO)}, {v(t0)}")
    A(f"v_lshl_add_u32 {v(trO)}, {v(trO)}, 7, {v(t1)}")


def role_prologue(A, end):
    A("s_cmp_ge_u32 s2, 256")
    A(f"s_cbranch_scc1 {end}")
    A(f"s_load_dwordx8 {s(P_MEM0, 8)}, s[0:1], {KA['mem0']}")
    A(f"s_load_dwordx2 {s(P_WO, 2)}, s[0:1], {KA['Wo']}")
    A(f"s_load_dwordx4 {s(P_DBG, 4)}, s[0:1], {KA['dbg']}")
    A(f"s_getreg_b32 {s(S_XCC)}, hwreg(HW_REG_XCC_ID, 0, 4)")
    A(f"s_and_b32 {s(S_XCC)}, {s(S_XCC)}, 7")
    A("v_lshrrev_b32 v1, 6, v0")
    A("s_nop 0")
    A(f"v_readfirstlane_b32 {s(S_WAVE)}, v1")
    A("v_and_b32 v1, 63, v0")
    A("s_waitcnt lgkmcnt(0)")
    A.srd(SWS, P_WS, SIZE["ws"])
    A.srd(SDBG, P_DBG, SIZE["dbg"])
    A(f"s_mov_b32 {s(S_BUD)}, {BUDGET}")
    for i in range(4):
        A(f"s_mov_b32 {s(S_CNT + i)}, 0")
    got, loop, skip = A.new("rg"), A.new("rl"), A.new("rs")
    A(f"s_cmp_lg_u32 {s(S_WAVE)}, 0")
    A(f"s_cbranch_scc1 {skip}")
    A(f"s_mov_b32 {s(S_GRP)}, {s(S_XCC)}")
    A(f"s_mov_b32 {s(S_IRR)}, 0")
    A("s_mov_b64 exec, 1")
    A.label(loop)
    A(f"v_lshlrev_b32 v2, 2, {s(S_GRP)}")
    A("v_mov_b32 v3, 1")
    A(f"buffer_atomic_add v3, v2, {s(SDBG, 4)}, 0 offen sc0 sc1")
    A("s_waitcnt vmcnt(0)")
    A(f"v_readfirstlane_b32 {s(S_TK)}, v3")
    A("s_nop 3")
    A(f"s_cmp_lt_u32 {s(S_TK)}, 32")
    A(f"s_cbranch_scc1 {got}")
    A(f"s_add_u32 {s(S_GRP)}, {s(S_GRP)}, 1")
    A(f"s_and_b32 {s(S_GRP)}, {s(S_GRP)}, 7")
    A(f"s_add_u32 {s(S_IRR)}, {s(S_IRR)}, 1")
    A(f"s_cmp_lt_u32 {s(S_IRR)}, 8")
    A(f"s_cbranch_scc1 {loop}")
    A.label(got)
    A(f"s_lshl_b32 {s(S_T0)}, {s(S_GRP)}, 8")
    A(f"s_min_u32 {s(S_TK)}, {s(S_TK)}, 255")
    A(f"s_or_b32 {s(S_T0)}, {s(S_T0)}, {s(S_TK)}")
    A(f"s_lshl_b32 {s(S_T1)}, {s(S_IRR)}, 16")
    A(f"s_or_b32 {s(S_T0)}, {s(S_T0)}, {s(S_T1)}")
    A(f"v_mov_b32 v3, {s(S_T0)}")
    A("v_mov_b32 v2, 0")
    A("ds_write_b32 v2, v3")
    A("s_mov_b64 exec, -1")
    A.label(skip)
    A("s_waitcnt lgkmcnt(0)")
    A("s_barrier")
    A("v_mov_b32 v2, 0")
    A("ds_read_b32 v3, v2")
    A("s_waitcnt lgkmcnt(0)")
    A(f"v_readfirstlane_b32 {s(S_T0)}, v3")
    A("s_barrier")
    A(f"s_and_b32 {s(S_TK)}, {s(S_T0)}, 255")
    A(f"s_bfe_u32 {s(S_GRP)}, {s(S_T0)}, 0x80008")
    A(f"s_lshr_b32 {s(S_IRR)}, {s(S_T0)}, 16")
    A(f"s_min_u32 {s(S_IRR)}, {s(S_IRR)}, 1")
    A(f"s_cmp_ge_u32 {s(S_TK)}, 32")
    A(f"s_cbranch_scc1 {end}")


def arrive(A, add_reg):
    skip = A.new("ar")
    A("s_waitcnt vmcnt(0)")
    A("s_barrier")
    A(f"s_cmp_lg_u32 {s(S_WAVE)}, 0")
    A(f"s_cbranch_scc1 {skip}")
    A("s_mov_b64 exec, 1")
    A("v_mov_b32 v48, 32")
    A(f"v_mov_b32 v49, {s(add_reg)}")
    A(f"buffer_atomic_add v49, v48, {s(SDBG, 4)}, 0 offen sc1")
    A("s_mov_b64 exec, -1")
    A.label(skip)


def await_start(A, abort, t=48):
    loop = A.new("st")
    A(f"v_mov_b32 {v(t)}, 32")
    A.label(loop)
    spend(A, abort)
    A("s_sleep 4")
    A(f"buffer_load_dword {v(t + 1)}, {v(t)}, {s(SDBG, 4)}, 0 offen sc1")
    A("s_waitcnt vmcnt(0)")
    A(f"v_readfirstlane_b32 {s(S_T0)}, {v(t + 1)}")
    A("s_nop 3")
    A(f"s_and_b32 {s(S_T1)}, {s(S_T0)}, 0xffff")
    A(f"s_cmp_lg_u32 {s(S_T1)}, {NSTART}")
    A(f"s_cbranch_scc1 {loop}")
    A(f"s_bfe_u32 {s(S_IRR)}, {s(S_T0)}, 0x80010")
    A(f"s_bfe_u32 {s(S_PAR)}, {s(S_T0)}, 0x10018")
    A(f"s_lshl_b32 {s(S_PAR)}, {s(S_PAR)}, 13")
    A("s_barrier")


def probe(A, lane, dst):
    skip = A.new("pb")
    A(f"s_cmp_lg_u32 {s(S_WAVE)}, 0")
    A(f"s_cbranch_scc1 {skip}")
    A(f"v_lshlrev_b32 v2, 8, {v(lane)}")
    A("v_mov_b32 v3, -1")
    A(f"s_mov_b32 {s(S_T3)}, {L.XRING + 0x8000}")
    A(f"buffer_store_dword v3, v2, {s(SWS, 4)}, {s(S_T3)} offen sc1")
    A("s_waitcnt vmcnt(0)")
    A("s_mov_b64 exec, 1")
    for h in range(2):
        A(f"s_mov_b32 {s(54 + h)}, -1")
    for rep in range(4):
        for h in range(2):
            A(f"v_mov_b32 v2, {h * 8192 + rep * 1792}")
            A(f"s_memtime {s(56, 2)}")
            A("s_waitcnt lgkmcnt(0)")
            A(f"buffer_load_dword v3, v2, {s(SWS, 4)}, {s(S_T3)} offen sc1")
            A("s_waitcnt vmcnt(0)")
            A(f"s_memtime {s(58, 2)}")
            A("s_waitcnt lgkmcnt(0)")
            A("s_sub_u32 s56, s58, s56")
            A(f"s_min_u32 {s(54 + h)}, {s(54 + h)}, s56")
    A("s_mov_b64 exec, -1")
    A("s_cmp_lt_u32 s55, s54")
    A("s_cselect_b32 s56, 1, 0")
    A(f"s_lshr_b32 s57, {s(S_XCC)}, 2")
    A("s_xor_b32 s56, s56, s57")
    A("s_lshl_b32 s56, s56, 24")
    A(f"s_or_b32 {s(dst)}, {s(dst)}, s56")
    A.label(skip)


def x_offsets(A, cfg, dst, slot):
    A(f"s_lshl_b32 {s(dst)}, {s(slot)}, 18")
    A(f"s_add_u32 {s(dst)}, {s(dst)}, {s(S_PAR)}")
    if cfg.nrep > 1:
        A(f"s_add_u32 {s(dst + 1)}, {s(dst)}, 0x100000")


def progress_addr(A, dst, lane, base, index, tmp, word=0):
    A(f"s_lshl_b32 {s(S_T0)}, {s(index)}, 5")
    A(f"s_add_u32 {s(S_T0)}, {s(S_T0)}, {s(S_WAVE)}")
    A(f"s_lshl_b32 {s(S_T0)}, {s(S_T0)}, 2")
    A(f"s_add_u32 {s(S_T0)}, {s(S_T0)}, {base + 4 * word}")
    A(f"v_min_u32 {v(tmp)}, 1, {v(lane)}")
    A(f"v_lshl_add_u32 {v(dst)}, {v(tmp)}, 30, {s(S_T0)}")


def line_addr(A, dst, tid, base, index, tmp):
    A(f"s_lshl_b32 {s(S_T0)}, {s(index)}, 7")
    A(f"s_add_u32 {s(S_T0)}, {s(S_T0)}, {base}")
    A(f"v_min_u32 {v(tmp)}, 1, {v(tid)}")
    A(f"v_lshl_add_u32 {v(dst)}, {v(tmp)}, 30, {s(S_T0)}")


def lines_addr(A, dst, lane, nlines, shift=7):
    A(f"v_min_u32 {v(dst)}, {nlines - 1}, {v(lane)}")
    A(f"v_lshlrev_b32 {v(dst)}, {shift}, {v(dst)}")


def words_addr(A, dst, lane, nlines, tmp, shift=2):
    A(f"v_lshrrev_b32 {v(tmp)}, 2, {v(lane)}")
    A(f"v_min_u32 {v(tmp)}, {nlines - 1}, {v(tmp)}")
    A(f"v_lshlrev_b32 {v(tmp)}, 7, {v(tmp)}")
    A(f"v_and_b32 {v(dst)}, 3, {v(lane)}")
    A(f"v_lshl_add_u32 {v(dst)}, {v(dst)}, {shift}, {v(tmp)}")


def block_on(A, ld, test, abort, sleep=2):
    top, out = A.new("bw"), A.new("bo")
    A.label(top)
    ld()
    A("s_waitcnt vmcnt(0)")
    test()
    A(f"s_cbranch_vccz {out}")
    spend(A, abort)
    A(f"s_sleep {sleep}")
    A(f"s_branch {top}")
    A.label(out)


def ring_slots(A):
    A(f"s_and_b32 {s(S_T0)}, {s(S_STEP)}, 3")
    A(f"s_lshl_b32 {s(S_T1)}, {s(S_T0)}, 16")
    A(f"s_add_u32 {s(S_CUR)}, {s(S_T1)}, {s(S_RBASE)}")
    A(f"s_xor_b32 {s(S_RST)}, {s(S_CUR)}, 0x20000")
    A(f"s_add_u32 {s(S_TAG)}, {s(S_STEP)}, 1")


def kvo_role(A, cfg, end):
    TID, LANE = 0, 1
    VG, VGO, PUBM, PUBK, PUBV, XOWN, XP = 8, 9, 10, 11, 27, 12, 13
    IDX, LR, LWV, LRV, CHK = 126, 24, 25, 127, 26
    LRO, FMR, FOR, FMW, FBUF, TAGV = 0, 1, 2, 3, 4, 7
    AP, ACK, ACV, ACO, HS, RD, SUM, SENT = 28, 44, 60, 76, 92, 100, 116, 120
    XL = 76
    WK, WO, WV = 256, 256 + 128, 128
    RK, RO, RV, WS = 0, 10240, 20480, 2560
    KPL = lambda n, b: 4 * ((n >> 1) * 320 + (n & 1) * 72 + b * 160)
    OPL = lambda n, b: 4 * (n * 144 + b * 72)
    HT = 16
    S_CI, S_LO1 = 54, 55
    A.c("KVO role: column slice c of the k, v and output projections of head group S_GRP")
    A("v_mov_b32 v44, v0")
    A("v_mov_b32 v45, v1")
    TID, LANE, U = 44, 45, 46
    t2, t3, t4, t5, t6, t7 = 50, 51, 52, 53, 54, 55
    A(f"v_and_b32 {v(U)}, 127, {v(TID)}")
    A(f"s_sub_u32 {s(S_CI)}, {s(S_TK)}, 8")
    A(f"s_lshl_b32 {s(S_RBASE)}, {s(S_GRP)}, 18")
    A(f"s_add_u32 {s(S_RBASE)}, {s(S_RBASE)}, {L.LRING}")
    A(f"s_lshl_b32 {s(S_FB)}, {s(S_GRP)}, 12")
    A(f"s_add_u32 {s(S_FB)}, {s(S_FB)}, {L.FLAGS}")
    A(f"s_lshl_b32 {s(S_T0)}, {s(S_WAVE)}, 12")
    A(f"v_lshl_add_u32 {v(VG)}, {v(LANE)}, 4, {s(S_T0)}")
    A(f"v_add_u32 {v(VGO)}, 49152, {v(VG)}")
    A(f"s_lshl_b32 {s(S_T0)}, {s(S_CI)}, 10")
    A(f"v_lshl_add_u32 {v(PUBM)}, {v(U)}, 3, {s(S_T0)}")
    A(f"v_lshl_add_u32 {v(t2)}, {v(TID)}, 2, {s(S_T0)}")
    A(f"v_add_u32 {v(PUBK)}, 16384, {v(t2)}")
    A(f"v_add_u32 {v(PUBV)}, 32768, {v(t2)}")
    A(f"s_lshl_b32 {s(S_T0)}, {s(S_WAVE)}, 8")
    A(f"v_lshl_add_u32 {v(FMR)}, {v(LANE)}, 2, {s(S_T0)}")
    A(f"v_add_u32 {v(FOR)}, 2048, {v(FMR)}")
    A(f"s_lshr_b32 {s(S_T0)}, {s(S_CI)}, 2")
    A(f"s_lshl_b32 {s(S_T0)}, {s(S_T0)}, 8")
    A(f"s_and_b32 {s(S_T1)}, {s(S_CI)}, 3")
    A(f"s_lshl_b32 {s(S_T1)}, {s(S_T1)}, 2")
    A(f"s_add_u32 {s(S_T0)}, {s(S_T0)}, {s(S_T1)}")
    A(f"v_min_u32 {v(t2)}, 1, {v(TID)}")
    A(f"v_lshl_add_u32 {v(FMW)}, {v(t2)}, 30, {s(S_T0)}")
    XN = 2 if cfg.xbf else 4
    A(f"s_lshr_b32 {s(S_T0)}, {s(S_CI)}, {3 if cfg.xbf else 2}")
    A(f"s_lshl_b32 {s(S_T0)}, {s(S_T0)}, 14")
    A(f"s_and_b32 {s(S_T1)}, {s(S_CI)}, {7 if cfg.xbf else 3}")
    A(f"s_lshl_b32 {s(S_T1)}, {s(S_T1)}, {10 if cfg.xbf else 11}")
    A(f"s_add_u32 {s(S_T0)}, {s(S_T0)}, {s(S_T1)}")
    A(f"s_lshl_b32 {s(S_T1)}, {s(S_GRP)}, 16")
    A(f"s_add_u32 {s(S_T0)}, {s(S_T0)}, {s(S_T1)}")
    A(f"v_lshl_add_u32 {v(XOWN)}, {v(U)}, {3 if cfg.xbf else 4}, {s(S_T0)}")
    for j in range(3):
        A(f"v_xor_b32 {v(XP + j)}, {hex((j + 1) << 16)}, {v(XOWN)}")
    A(f"s_mov_b32 {s(S_LO1)}, 0x00003f80")
    A(f"s_mov_b32 {s(S_LO1 + 1)}, 0x3f800000")
    A(f"v_and_b32 {v(t2)}, 1, {v(LANE)}")
    A(f"v_mul_u32_u24 {v(t2)}, 0xaaaa, {v(t2)}")
    A(f"v_add_u32 {v(IDX)}, 0x4444, {v(t2)}")
    A(f"s_lshl_b32 {s(S_T0)}, {s(S_WAVE)}, 11")
    A(f"v_lshl_add_u32 {v(LWV)}, {v(LANE)}, 5, {s(S_T0)}")
    A(f"v_lshlrev_b32 {v(LRV)}, 3, {v(TID)}")
    A(f"v_bfe_u32 {v(t2)}, {v(U)}, 5, 1")
    A(f"v_lshlrev_b32 {v(t2)}, 2, {v(t2)}")
    A(f"v_and_b32 {v(t3)}, 1, {v(U)}")
    A(f"v_lshl_add_u32 {v(t2)}, {v(t3)}, 1, {v(t2)}")
    A(f"v_bfe_u32 {v(t3)}, {v(U)}, 1, 1")
    A(f"v_add_u32 {v(t2)}, {v(t2)}, {v(t3)}")
    A(f"v_and_b32 {v(t3)}, 24, {v(U)}")
    A(f"v_add_u32 {v(t3)}, {v(t3)}, {v(t2)}")
    A(f"v_lshlrev_b32 {v(t3)}, 3, {v(t3)}")
    A(f"v_bfe_u32 {v(t4)}, {v(U)}, 2, 1")
    A(f"v_mul_u32_u24 {v(t4)}, {OPL(0, 1)}, {v(t4)}")
    A(f"v_add_u32 {v(t3)}, {v(t3)}, {v(t4)}")
    A(f"v_lshrrev_b32 {v(t4)}, 6, {v(U)}")
    A(f"v_mul_u32_u24 {v(t5)}, {OPL(2, 0)}, {v(t4)}")
    A(f"v_add_u32 {v(LRO)}, {v(t3)}, {v(t5)}")
    A(f"v_lshl_add_u32 {v(t2)}, {v(t4)}, 4, {v(t2)}")
    A(f"v_bfe_u32 {v(t3)}, {v(U)}, 2, 3")
    A(f"v_lshlrev_b32 {v(t3)}, 11, {v(t3)}")
    A(f"v_lshl_add_u32 {v(t2)}, {v(t2)}, 2, {v(t3)}")
    A.srd(SW, P_MEM0, SIZE["mem0"])
    A(f"s_lshl_b32 {s(S_T0)}, {s(S_CI)}, 7")
    A(f"buffer_load_dword v56, {v(t2)}, {s(SW, 4)}, {s(S_T0)} offen")
    A(f"buffer_load_dword v57, {v(t2)}, {s(SW, 4)}, {s(S_T0)} offen offset:32")
    A(f"v_and_b32 {v(t2)}, 1, {v(LANE)}")
    A(f"s_and_b32 {s(S_T0)}, {s(S_WAVE)}, 2")
    A(f"v_add_u32 {v(t3)}, {s(S_T0)}, {v(t2)}")
    A(f"s_and_b32 {s(S_T1)}, {s(S_WAVE)}, 1")
    A(f"s_lshl_b32 {s(S_T1)}, {s(S_T1)}, 3")
    A(f"v_bfe_u32 {v(t4)}, {v(LANE)}, 1, 1")
    A(f"v_lshl_add_u32 {v(t4)}, {v(t4)}, 2, {s(S_T1)}")
    A(f"v_bfe_u32 {v(t5)}, {v(LANE)}, 2, 1")
    A(f"v_lshl_add_u32 {v(t4)}, {v(t5)}, 1, {v(t4)}")
    A(f"v_bfe_u32 {v(t5)}, {v(LANE)}, 3, 1")
    A(f"v_and_b32 {v(t6)}, 48, {v(LANE)}")
    A(f"v_add_u32 {v(t6)}, {v(t6)}, {v(t4)}")
    A(f"v_lshlrev_b32 {v(t6)}, 2, {v(t6)}")
    A(f"v_mul_u32_u24 {v(t5)}, {KPL(0, 1)}, {v(t5)}")
    A(f"v_mul_u32_u24 {v(t7)}, {KPL(1, 0)}, {v(t2)}")
    A(f"v_add3_u32 {v(t6)}, {v(t6)}, {v(t5)}, {v(t7)}")
    A(f"s_mul_i32 {s(S_T0)}, {s(S_T0)}, {KPL(2, 0) // 2}")
    A(f"v_add_u32 {v(LR)}, {s(S_T0)}, {v(t6)}")
    for i in range(8):
        A(f"v_mov_b32 {v(HT + i)}, 0")
    for i in range(4):
        A(f"v_mov_b32 {v(SENT + i)}, -1")

    def clear_inbox():
        out = A.new("co")
        A(f"s_cmp_ge_u32 {s(S_WAVE)}, 2")
        A(f"s_cbranch_scc1 {out}")
        for rr in range(cfg.nrep):
            A(f"buffer_store_dwordx{XN} {v(SENT, XN)}, {v(XOWN)}, {s(SWS, 4)}, {s(S_XR + rr)} offen sc1")
        A.label(out)
    A.c("initial memory piece and 'not written' marks in every ring slot this workgroup owns")
    for slot in range(4):
        A(f"s_add_u32 {s(S_T0)}, {s(S_RBASE)}, {slot << 16}")
        if slot:
            A(f"buffer_store_dwordx2 {v(SENT, 2)}, {v(PUBM)}, {s(SWS, 4)}, {s(S_T0)} offen sc1")
        A(f"buffer_store_dword {v(SENT)}, {v(PUBK)}, {s(SWS, 4)}, {s(S_T0)} offen sc1")
        A(f"buffer_store_dword {v(SENT)}, {v(PUBV)}, {s(SWS, 4)}, {s(S_T0)} offen sc1")
        A(f"s_mov_b32 {s(S_T0)}, {slot}")
        for par in range(2):
            A(f"s_mov_b32 {s(S_PAR)}, {par << 13}")
            x_offsets(A, cfg, S_XR, S_T0)
            clear_inbox()
    A(f"v_mov_b32 {v(TAGV)}, 1")
    A(f"buffer_store_dword {v(TAGV)}, {v(FMW)}, {s(SWS, 4)}, {s(S_FB)} offen sc1")
    A("s_waitcnt vmcnt(0)")
    A("v_min_u32 v56, -2, v56")
    A("v_min_u32 v57, -2, v57")
    A(f"buffer_store_dwordx2 v[56:57], {v(PUBM)}, {s(SWS, 4)}, {s(S_RBASE)} offen sc1")
    A(f"s_lshl_b32 {s(S_T2)}, {s(S_IRR)}, 16")
    A(f"s_or_b32 {s(S_T2)}, {s(S_T2)}, 1")
    arrive(A, S_T2)
    A.c("weights into registers")
    weight_addr_regs(A, LANE, t2, t3, t4, t5, t6, t7)
    chunks = []
    for ptr, name, base in ((P_WK, "Wk", WK), (P_WV, "Wv", WV), (P_WO, "Wo", WO)):
        for j in range(4):
            def setup(ptr=ptr, name=name, j=j):
                if j == 0:
                    A.srd(SW, ptr, SIZE[name])
                if name == "Wo":
                    A(f"s_lshl_b32 {s(S_T1)}, {s(S_GRP)}, 2")
                    A(f"s_add_u32 {s(S_T1)}, {s(S_T1)}, {s(S_WAVE)}")
                    A(f"s_lshl_b32 {s(S_T1)}, {s(S_T1)}, 19")
                    A(f"s_lshl_b32 {s(S_T0)}, {s(S_CI)}, 7")
                    A(f"s_add_u32 {s(S_T1)}, {s(S_T1)}, {s(S_T0)}")
                    A(f"s_add_u32 {s(S_T1)}, {s(S_T1)}, {j * 64 * 2048}")
                else:
                    A(f"s_lshl_b32 {s(S_T1)}, {s(S_WAVE)}, 21")
                    A(f"s_lshl_b32 {s(S_T0)}, {s(S_GRP)}, 4")
                    A(f"s_add_u32 {s(S_T0)}, {s(S_T0)}, {s(S_CI)}")
                    A(f"s_lshl_b32 {s(S_T0)}, {s(S_T0)}, 7")
                    A(f"s_add_u32 {s(S_T1)}, {s(S_T1)}, {s(S_T0)}")
                    A(f"s_add_u32 {s(S_T1)}, {s(S_T1)}, {j * 64 * 8192}")
            chunks.append((setup, 2048 if name == "Wo" else 8192, "O" if name == "Wo" else "P",
                           (lambda n, base=base, j=j: base + (j * 4 + n) * 8)))
    load_weights(A, chunks, {8192: t2, 2048: t3}, {"P": t4, "O": t5})
    await_start(A, end)
    A(f"s_mul_i32 m0, {s(S_WAVE)}, {WS}")
    for q in range(32):
        A(f"v_mov_b32 {v(ACK + q)}, 0")
    A(f"s_mov_b32 {s(S_STEP)}, 0")
    slow_lbl = A.new("kvo_sc1")
    A(f"s_cmp_lg_u32 {s(S_IRR)}, 0")
    A(f"s_cbranch_scc1 {slow_lbl}")

    def half_sums(acc, R=None, pl=None, between=None):
        ad = lambda i: A(f"v_add_f32 {v(HS + i)}, {v(acc + 2 * i)}, {v(acc + 2 * i + 1)}")
        for i in range(4 if pl else 8):
            ad(i)
        if pl:
            for i in range(8):
                if i < 4:
                    ad(i + 4)
                A(f"ds_write_addtid_b32 {v(HS + i)} offset:{R + pl(i >> 1, i & 1)}")
                if between:
                    between(i)

    def read4(addr, R, ws):
        for w in range(4):
            A(f"ds_read_b64 {v(RD + 2 * w, 2)}, {v(addr)} offset:{R + w * ws}")

    def gather(ld):
        for i in range(4):
            ld(i)
            heat(A, HT, cfg.lspace if i < 3 else cfg.ltail)

    def proj(acc, W, vin=0):
        def f(j, lo, hi):
            for n in range(lo, hi):
                if n < 4:
                    A(f"{SM} {v(acc + 4 * n, 4)}, {v(AP + 4 * j, 4)}, {r(W + (j * 4 + n) * 8, 8)}, {v(IDX)}")
                else:
                    A(f"{SM} {v(ACV + 4 * (n - 4), 4)}, {v(AP + 4 * j, 4)}, {r(WV + (j * 4 + n - 4) * 8, 8)}, {v(IDX)}")
        sp = cfg.ksplit + vin
        return (lambda j, rest: f(j, 0, 4 + vin)), (lambda j: f(j, 0, sp), lambda j: f(j, sp, 4 + vin))

    def sum4():
        A(f"v_pk_add_f32 {v(RD, 2)}, {v(RD, 2)}, {v(RD + 2, 2)}")
        A(f"v_pk_add_f32 {v(RD + 4, 2)}, {v(RD + 4, 2)}, {v(RD + 6, 2)}")
        A(f"v_pk_add_f32 {v(SUM, 2)}, {v(RD, 2)}, {v(RD + 4, 2)}")

    def body(loc):
        top, top2, top3 = A.new("kvo"), A.new("kvo2"), A.new("kvo3")
        ldm = lambda i: A(f"buffer_load_dwordx4 {v(AP + 4 * i, 4)}, {v(VG)}, {s(SWS, 4)}, {s(S_CUR)} offen offset:{1024 * i} sc1")
        ldo = lambda i: A(f"buffer_load_dwordx4 {v(AP + 4 * i, 4)}, {v(VGO)}, {s(SWS, 4)}, {s(S_CUR)} offen offset:{1024 * i} sc1")
        vq = [(j, n) for j in range(4) for n in range(cfg.vin, 4)]

        def vmf(k):
            for _ in range(k):
                if vq:
                    j, n = vq.pop(0)
                    A(f"{SM} {v(ACV + 4 * n, 4)}, {v(AP + 4 * j, 4)}, {r(WV + (j * 4 + n) * 8, 8)}, {v(IDX)}")

        A.label(top)
        ring_slots(A)
        if cfg.use_fm:
            flag_wait(A, cfg, FMR, FBUF, 4, end)
        A.label(top3)
        gather(ldm)
        chk4 = lambda i: check(A, AP + 4 * i, 4, CHK)

        def onfail(c):
            return lambda first: (count(A, cfg, c) if first else None, heat(A, HT, 1))
        use, fast = proj(ACK, WK, cfg.vin)
        done, slow1 = fsm_poll(A, 4, ldm, chk4, use, end, fast=fast, onfail=onfail(2))
        A.label(done)
        stamp(A, cfg, 0)
        A.nop(5 - cfg.vin)
        half_sums(ACK, RK, KPL, lambda i: vmf(1) if i >= 8 - cfg.vk else None)
        vmf(2)
        if cfg.rpos == 0:
            clear_inbox()
        A("s_waitcnt lgkmcnt(0)")
        A("s_barrier")
        read4(LR, RK, WS)
        vmf(3)
        A("s_waitcnt lgkmcnt(0)")
        sum4()
        A(f"v_cvt_pk_bf16_f32 {v(SUM)}, {v(SUM)}, {v(SUM + 1)}")
        A(f"v_min_u32 {v(SUM)}, -2, {v(SUM)}")
        A(f"buffer_store_dword {v(SUM)}, {v(PUBK)}, {s(SWS, 4)}, {s(S_CUR)} offen{loc}")
        stamp(A, cfg, 1)
        left = len(vq)
        vmf(16)
        A.nop(6 if left else 1)
        half_sums(ACV)
        A(f"ds_write_b128 {v(LWV)}, {v(HS, 4)} offset:{RV}")
        A(f"ds_write_b128 {v(LWV)}, {v(HS + 4, 4)} offset:{RV + 16}")
        if cfg.rpos == 1:
            clear_inbox()
        A("s_waitcnt lgkmcnt(0)")
        A("s_barrier")
        read4(LRV, RV, 2048)
        A("s_waitcnt lgkmcnt(0)")
        sum4()
        A(f"v_cvt_pk_bf16_f32 {v(SUM)}, {v(SUM)}, {v(SUM + 1)}")
        A(f"v_min_u32 {v(SUM)}, -2, {v(SUM)}")
        A(f"buffer_store_dword {v(SUM)}, {v(PUBV)}, {s(SWS, 4)}, {s(S_CUR)} offen{loc}")
        stamp(A, cfg, 2)
        flush_stamps(A, cfg, 8, 124, 125)
        A(f"s_cmp_eq_u32 {s(S_STEP)}, {cfg.nsteps - 1}")
        A(f"s_cbranch_scc1 {end}")
        if cfg.rpos == 2:
            clear_inbox()
        for reg in (PUBK, PUBV):
            A(f"buffer_store_dword {v(SENT)}, {v(reg)}, {s(SWS, 4)}, {s(S_RST)} offen{loc}")
        r1 = A.new("r1")
        A(f"s_cmp_lt_u32 {s(S_WAVE)}, 2")
        A(f"s_cbranch_scc1 {r1}")
        A(f"buffer_store_dwordx2 {v(SENT, 2)}, {v(PUBM)}, {s(SWS, 4)}, {s(S_RST)} offen{loc}")
        A.label(r1)
        for q in range(24):
            A(f"v_pk_mul_f32 {v(ACK + 2 * q, 2)}, 0, 0")
        A(f"v_add_u32 {v(TAGV)}, 1, {v(TAGV)}")
        A(f"s_and_b32 {s(S_T0)}, {s(S_STEP)}, 3")
        x_offsets(A, cfg, S_XC, S_T0)
        if cfg.rpos < 3:
            A(f"s_add_u32 {s(S_T0)}, {s(S_STEP)}, 3")
            A(f"s_and_b32 {s(S_T0)}, {s(S_T0)}, 3")
            x_offsets(A, cfg, S_XR, S_T0)
        A(f"s_and_b32 {s(S_T0)}, {s(S_TAG)}, 3")
        A(f"s_lshl_b32 {s(S_T0)}, {s(S_T0)}, 16")
        A(f"s_add_u32 {s(S_NXT)}, {s(S_T0)}, {s(S_RBASE)}")
        if cfg.use_fo:
            flag_wait(A, cfg, FOR, FBUF, 2, end)
        gather(ldo)
        use, fast = proj(ACO, WO)
        done, slow2 = fsm_poll(A, 4, ldo, chk4, use, end, fast=fast, onfail=onfail(3))
        A.label(done)
        stamp(A, cfg, 3)
        A.nop(5)
        half_sums(ACO, RO, OPL)
        heat(A, HT, cfg.hw)
        loader = A.new("xl")
        A(f"s_cmp_ge_u32 {s(S_WAVE)}, 2")
        A(f"s_cbranch_scc1 {loader}")

        def own_sum():
            for w in range(4):
                for p in range(2):
                    A(f"ds_read_b64 {v(RD + 4 * w + 2 * p, 2)}, {v(LRO)} offset:{RO + w * WS + OPL(p, 0)}")
            A("s_waitcnt lgkmcnt(4)" if cfg.trace != 1 else "s_waitcnt lgkmcnt(0)")
            for h2 in range(2):
                A(f"v_pk_add_f32 {v(RD + 2 * h2, 2)}, {v(RD + 2 * h2, 2)}, {v(RD + 4 + 2 * h2, 2)}")
            A("s_waitcnt lgkmcnt(0)")
            for h2 in range(2):
                A(f"v_pk_add_f32 {v(RD + 8 + 2 * h2, 2)}, {v(RD + 8 + 2 * h2, 2)}, {v(RD + 12 + 2 * h2, 2)}")
            for h2 in range(2):
                A(f"v_pk_add_f32 {v(SUM + 2 * h2, 2)}, {v(RD + 2 * h2, 2)}, {v(RD + 8 + 2 * h2, 2)}")
        A.c("waves 0,1 send this group's partial sums to the other groups")
        A("s_waitcnt lgkmcnt(0)")
        A("s_barrier")
        own_sum()
        if cfg.xbf:
            for h2 in range(2):
                A(f"v_cvt_pk_bf16_f32 {v(SUM + h2)}, {v(SUM + 2 * h2)}, {v(SUM + 2 * h2 + 1)}")
        for i in range(XN):
            A(f"v_min_u32 {v(SUM + i)}, -2, {v(SUM + i)}")
        for rr in range(cfg.nrep):
            A(f"buffer_store_dwordx{XN} {v(SUM, XN)}, {v(XOWN)}, {s(SWS, 4)}, {s(S_XC + rr)} offen sc1")
            if rr == 0:
                stamp(A, cfg, 4)
        if cfg.use_fm:
            heat(A, HT, cfg.fm_delay)
            A(f"buffer_store_dword {v(TAGV)}, {v(FMW)}, {s(SWS, 4)}, {s(S_FB)} offen{loc}")
        A(f"s_add_u32 {s(S_STEP)}, {s(S_STEP)}, 1")
        A(f"s_branch {top}")
        A.label(loader)
        A.c("waves 2,3 add the other groups' partial sums and publish the new memory")
        A("s_waitcnt lgkmcnt(0)")
        A("s_barrier")
        XB = (XL, XL + 12, AP)
        NB = cfg.xdepth

        def ldx(k):
            for j in range(3):
                A(f"buffer_load_dwordx{XN} {v(XB[k % NB] + XN * j, XN)}, {v(XP + j)}, {s(SWS, 4)}, "
                  f"{s(S_XC + k % cfg.nrep)} offen sc1")
        heat(A, HT, cfg.xdelay)
        stamp(A, cfg, 6)
        ldx(0)
        if NB > 1:
            heat(A, HT, cfg.xgap)
            ldx(1)
        own_sum()
        if cfg.xbf:
            for h2 in range(2):
                A(f"v_cvt_pk_bf16_f32 {v(RD + h2)}, {v(SUM + 2 * h2)}, {v(SUM + 2 * h2 + 1)}")
            for h2 in range(2):
                A(f"v_lshlrev_b32 {v(SUM + 2 * h2)}, 16, {v(RD + h2)}")
                A(f"v_and_b32 {v(SUM + 2 * h2 + 1)}, 0xffff0000, {v(RD + h2)}")
        x2, xsum = A.new("x2"), A.new("xs")

        def final(x):
            check(A, x, 3 * XN, CHK)
            if cfg.xbf:
                for j in range(3):
                    for i in range(4):
                        A(f"v_dot2_f32_bf16 {v(RD + i)}, {v(x + 2 * j + (i >> 1))}, {s(S_LO1 + (i & 1))}, "
                          f"{v((RD if j else SUM) + i)}")
                A("s_nop 1")
            else:
                for h2 in range(2):
                    A(f"v_pk_add_f32 {v(RD + 4 + 2 * h2, 2)}, {v(SUM + 2 * h2, 2)}, {v(x + 2 * h2, 2)}")
                    A(f"v_pk_add_f32 {v(RD + 2 * h2, 2)}, {v(x + 4 + 2 * h2, 2)}, {v(x + 8 + 2 * h2, 2)}")
                for h2 in range(2):
                    A(f"v_pk_add_f32 {v(RD + 2 * h2, 2)}, {v(RD + 4 + 2 * h2, 2)}, {v(RD + 2 * h2, 2)}")
            for h2 in range(2):
                A(f"v_cvt_pk_bf16_f32 {v(RD + h2)}, {v(RD + 2 * h2)}, {v(RD + 2 * h2 + 1)}")
            for h2 in range(2):
                A(f"v_min_u32 {v(RD + h2)}, -2, {v(RD + h2)}")
        if NB > 2:
            heat(A, HT, cfg.xgap2)
            ldx(2)
        heat(A, HT, cfg.xfill)
        A(f"s_waitcnt vmcnt({3 * (NB - 1)})")
        stamp(A, cfg, 7)
        final(XL)
        A(f"s_cbranch_vccnz {x2}")
        A.label(xsum)
        A(f"buffer_store_dwordx2 {v(RD, 2)}, {v(PUBM)}, {s(SWS, 4)}, {s(S_NXT)} offen{loc}")
        stamp(A, cfg, 5)
        A(f"s_add_u32 {s(S_STEP)}, {s(S_STEP)}, 1")
        A.c("the loader waves time their first read from their own store")
        ring_slots(A)
        heat(A, HT, cfg.mdelay)
        A(f"s_branch {top3}")
        A.label(x2)
        count(A, cfg, 0)
        for k in range(6):
            ldx(k + NB)
            A(f"s_waitcnt vmcnt({3 * (NB - 1)})")
            final(XB[(k + 1) % NB])
            A(f"s_cbranch_vccz {xsum}")
            count(A, cfg, 1)
        spend(A, end)
        A(f"s_branch {x2}")
        slow1()
        slow2()

    A.c("all members of the group share one L2: hand-offs inside the group use plain stores")
    body("")
    A.label(slow_lbl)
    A.c("some member runs on another die: every hand-off is written through")
    body(" sc1")


def q_role(A, cfg, end):
    WIN = 0
    VG, VK, VVA, VVB, VO, IDX, LW, LR, QW, QR = 10, 11, 12, 13, 14, 15, 16, 18, 19, 20
    PFG, RDK, RDQ, RDVA, RDVB, OTA, OTB = 21, 22, 23, 24, 25, 26, 27
    FMR, FOW, FBUF, TAGV, XCL, POW, PQA, PQV, PQB = 192, 193, 194, 197, 198, 199, 208, 209, 210
    SENT, ONES, BIAS, CHK, T1, T2, T3 = 28, 32, 36, 44, 45, 46, 47
    AP, ACQ = 48, 64
    SX, SMM, RD, PX, LA, TM = 64, 72, 76, 76, 84, 88
    QOP, OA, KC, VM, PK = 96, 96, 112, 120, 124
    ST = 128
    SLOT0, SLOTX = 32768, 0x18000
    WQ = 256
    RQ, RB, WS = 0, 20480, 5120
    QPL = lambda n, b: 4 * (n * 160 + b * 96)
    HT = 200
    TID, LANE = 48, 49
    S_HEAD, S_PARW, S_EH, S_LDS, S_PQ, S_NEED = 54, 55, 56, 57, 58, 27
    A.c("Q role: q projection and attention of one head")
    A(f"v_mov_b32 {v(TID)}, v0")
    A(f"v_mov_b32 v50, v1")
    LANE = 50
    A(f"s_lshl_b32 {s(S_HEAD)}, {s(S_GRP)}, 3")
    A(f"s_add_u32 {s(S_HEAD)}, {s(S_HEAD)}, {s(S_TK)}")
    A(f"s_and_b32 {s(S_PARW)}, {s(S_WAVE)}, 1")
    A(f"s_lshr_b32 {s(S_EH)}, {s(S_WAVE)}, 1")
    A(f"s_lshl_b32 {s(S_RBASE)}, {s(S_GRP)}, 18")
    A(f"s_add_u32 {s(S_RBASE)}, {s(S_RBASE)}, {L.LRING}")
    A(f"s_lshl_b32 {s(S_T0)}, {s(S_WAVE)}, 12")
    A(f"v_lshl_add_u32 {v(VG)}, {v(LANE)}, 4, {s(S_T0)}")
    A(f"s_lshl_b32 {s(S_T0)}, {s(S_TK)}, 11")
    A(f"s_add_u32 {s(S_T1)}, {s(S_T0)}, 16384")
    A(f"v_lshl_add_u32 {v(VK)}, {v(LANE)}, 4, {s(S_T1)}")
    A(f"s_lshl_b32 {s(S_T1)}, {s(S_EH)}, 10")
    A(f"s_add_u32 {s(S_T0)}, {s(S_T0)}, {s(S_T1)}")
    A(f"s_lshl_b32 {s(S_T1)}, {s(S_PARW)}, 3")
    A(f"s_add_u32 {s(S_T1)}, {s(S_T1)}, {s(S_T0)}")
    A(f"s_add_u32 {s(S_T1)}, {s(S_T1)}, 32768")
    A(f"v_lshl_add_u32 {v(VVA)}, {v(LANE)}, 4, {s(S_T1)}")
    A(f"v_xor_b32 {v(VVB)}, 8, {v(VVA)}")
    A(f"s_lshl_b32 {s(S_T1)}, {s(S_PARW)}, 9")
    A(f"s_add_u32 {s(S_T1)}, {s(S_T1)}, {s(S_T0)}")
    A(f"s_add_u32 {s(S_T1)}, {s(S_T1)}, 49152")
    A(f"v_bfe_u32 v51, {v(LANE)}, 5, 1")
    A(f"v_lshl_add_u32 {v(VO)}, v51, 8, {s(S_T1)}")
    A(f"v_and_b32 v51, 7, {v(LANE)}")
    A(f"v_lshl_add_u32 {v(VO)}, v51, 5, {v(VO)}")
    A(f"v_and_b32 v51, 16, {v(LANE)}")
    A(f"v_add_u32 {v(VO)}, {v(VO)}, v51")
    A(f"v_bfe_u32 v51, {v(LANE)}, 3, 1")
    A(f"v_lshl_add_u32 {v(VO)}, v51, 30, {v(VO)}")
    A(f"v_and_b32 v51, 1, {v(LANE)}")
    A(f"v_mul_u32_u24 v51, 0xaaaa, v51")
    A(f"v_add_u32 {v(IDX)}, 0x4444, v51")
    for i in range(8):
        A(f"v_mov_b32 {v(HT + i)}, 0")
    A(f"v_bfe_u32 v51, {v(LANE)}, 1, 2")
    A(f"v_lshlrev_b32 v51, 4, v51")
    A(f"v_bfe_u32 v52, {v(LANE)}, 3, 2")
    A(f"v_lshl_add_u32 v51, v52, 2, v51")
    A(f"v_and_b32 v53, 1, {v(LANE)}")
    A(f"v_lshlrev_b32 v51, 2, v51")
    A(f"v_mul_u32_u24 v53, {QPL(0, 1)}, v53")
    A(f"v_lshrrev_b32 v54, 5, {v(LANE)}")
    A(f"v_mul_u32_u24 v52, {QPL(1, 0)}, v54")
    A(f"v_add3_u32 v51, v51, v52, v53")
    A(f"s_mul_i32 {s(S_T0)}, {s(S_WAVE)}, {QPL(2, 0)}")
    A(f"v_add_u32 {v(LR)}, {s(S_T0)}, v51")
    A(f"v_and_b32 v51, 31, {v(LANE)}")
    A(f"v_lshlrev_b32 v51, 4, v51")
    A(f"v_lshl_add_u32 v51, v54, 3, v51")
    A(f"s_lshl_b32 {s(S_T0)}, {s(S_WAVE)}, 9")
    A(f"v_add_u32 {v(QW)}, {s(S_T0)}, v51")
    A(f"v_lshrrev_b32 v51, 4, {v(LANE)}")
    A(f"v_and_b32 v52, 7, {v(LANE)}")
    A(f"v_lshlrev_b32 v52, 4, v52")
    A(f"v_lshl_add_u32 {v(QR)}, v51, 7, v52")
    A(f"v_lshlrev_b32 v51, 4, {v(LANE)}")
    A(f"s_mul_i32 {s(S_T0)}, {s(S_WAVE)}, 6144")
    A(f"v_add_u32 {v(PFG)}, {s(S_T0)}, v51")
    A(f"s_add_u32 {s(S_LDS)}, {s(S_T0)}, {SLOT0}")
    A(f"v_add_u32 {v(RDK)}, {SLOT0 + 8192}, v51")
    A(f"s_lshl_b32 {s(S_T0)}, {s(S_PARW)}, 12")
    A(f"s_add_u32 {s(S_T0)}, {s(S_T0)}, {SLOT0}")
    A(f"v_add_u32 {v(RDQ)}, {s(S_T0)}, v51")
    A(f"s_lshl_b32 {s(S_T0)}, {s(S_WAVE)}, 11")
    A(f"s_add_u32 {s(S_T0)}, {s(S_T0)}, {SLOT0 + 16384}")
    A(f"v_add_u32 {v(RDVA)}, {s(S_T0)}, v51")
    A(f"v_xor_b32 {v(RDVB)}, 2048, {v(RDVA)}")
    A(f"s_lshl_b32 {s(S_FB)}, {s(S_GRP)}, 12")
    A(f"s_add_u32 {s(S_FB)}, {s(S_FB)}, {L.FLAGS}")
    A(f"s_lshl_b32 {s(S_T0)}, {s(S_WAVE)}, 8")
    A(f"v_lshl_add_u32 {v(FMR)}, {v(LANE)}, 2, {s(S_T0)}")
    A(f"s_lshr_b32 {s(S_T0)}, {s(S_TK)}, 1")
    A(f"s_lshl_b32 {s(S_T0)}, {s(S_T0)}, 8")
    A(f"s_and_b32 {s(S_T1)}, {s(S_TK)}, 1")
    A(f"s_lshl_b32 {s(S_T1)}, {s(S_T1)}, 2")
    A(f"s_add_u32 {s(S_T0)}, {s(S_T0)}, {s(S_T1)}")
    A(f"s_add_u32 {s(S_T0)}, {s(S_T0)}, 2048")
    A(f"v_min_u32 v52, 1, {v(TID)}")
    A(f"v_lshl_add_u32 {v(FOW)}, v52, 30, {s(S_T0)}")
    A(f"v_mov_b32 {v(TAGV)}, 0")
    A(f"buffer_store_dword {v(TAGV)}, {v(FOW)}, {s(SWS, 4)}, {s(S_FB)} offen sc1")
    XN = 2 if cfg.xbf else 4
    A(f"s_lshr_b32 {s(S_T0)}, {s(S_TK)}, {2 if cfg.xbf else 1}")
    A(f"s_lshl_b32 {s(S_T0)}, {s(S_T0)}, 14")
    A(f"s_and_b32 {s(S_T1)}, {s(S_TK)}, {3 if cfg.xbf else 1}")
    A(f"s_lshl_b32 {s(S_T1)}, {s(S_T1)}, {11 if cfg.xbf else 12}")
    A(f"s_add_u32 {s(S_T0)}, {s(S_T0)}, {s(S_T1)}")
    A(f"s_lshl_b32 {s(S_T1)}, {s(S_GRP)}, 16")
    A(f"s_add_u32 {s(S_T0)}, {s(S_T0)}, {s(S_T1)}")
    A(f"v_lshl_add_u32 {v(XCL)}, {v(TID)}, {3 if cfg.xbf else 4}, {s(S_T0)}")
    A(f"s_lshl_b32 {s(S_T0)}, {s(S_HEAD)}, 2")
    A(f"s_add_u32 {s(S_T0)}, {s(S_T0)}, {s(S_WAVE)}")
    A(f"s_lshl_b32 {s(S_T0)}, {s(S_T0)}, 11")
    A(f"s_lshl_b32 {s(S_T1)}, {s(S_PARW)}, 10")
    A(f"s_add_u32 {s(S_T0)}, {s(S_T0)}, {s(S_T1)}")
    A(f"v_add_u32 {v(OTA)}, {s(S_T0)}, v51")
    A(f"v_xor_b32 {v(OTB)}, 2048, {v(OTA)}")
    progress_addr(A, POW, LANE, L.PO, S_HEAD, 52)
    A(f"buffer_store_dword {v(TAGV)}, {v(POW)}, {s(SWS, 4)}, 0 offen sc1")
    lines_addr(A, 53, LANE, 10)
    A(f"s_lshl_b32 {s(S_T0)}, {s(S_HEAD)}, 8")
    A(f"s_add_u32 {s(S_T0)}, {s(S_T0)}, {L.PQ}")
    A(f"v_add_u32 {v(PQA)}, {s(S_T0)}, v53")
    A(f"s_lshl_b32 {s(S_T0)}, {s(S_GRP)}, 10")
    A(f"s_add_u32 {s(S_T0)}, {s(S_T0)}, {L.PB - 256}")
    A(f"v_add_u32 v53, {s(S_T0)}, v53")
    A(f"v_cmp_lt_u32 vcc, 1, {v(LANE)}")
    A("s_nop 1")
    A(f"v_cndmask_b32 {v(PQA)}, {v(PQA)}, v53, vcc")
    A(f"v_cndmask_b32 {v(PQB)}, 0, 8, vcc")
    for i in range(4):
        A(f"v_mov_b32 {v(SENT + i)}, -1")
        A(f"v_mov_b32 {v(ONES + i)}, 0x3f803f80")
    A(f"v_and_b32 v51, 15, {v(LANE)}")
    A(f"s_lshl_b32 {s(S_T0)}, {s(S_PARW)}, 4")
    A(f"v_add_u32 v51, {s(S_T0)}, v51")
    A(f"v_lshrrev_b32 v52, 4, {v(LANE)}")
    A(f"v_lshlrev_b32 v52, 2, v52")
    A(f"v_mov_b32 v54, 0xf149f2ca")
    for T in range(2):
        for q in range(4):
            A(f"v_add_u32 v53, {16 * T + q}, v52")
            A(f"v_cmp_gt_u32 vcc, v53, v51")
            A("s_nop 1")
            A(f"v_cndmask_b32 {v(BIAS + 4 * T + q)}, 0, v54, vcc")
    for i in range(10):
        A(f"v_mov_b32 {v(WIN + i)}, 0")
    A(f"s_mov_b32 {s(S_C)}, 0x3e0293ee")
    A(f"s_mov_b32 {s(S_NC)}, 0xbe0293ee")
    for slot in range(4):
        A(f"s_add_u32 {s(S_T0)}, {s(S_RBASE)}, {slot << 16}")
        A(f"buffer_store_dwordx4 {v(SENT, 4)}, {v(VO)}, {s(SWS, 4)}, {s(S_T0)} offen sc1")
    A(f"s_lshl_b32 {s(S_T2)}, {s(S_IRR)}, 16")
    A(f"s_or_b32 {s(S_T2)}, {s(S_T2)}, 1")
    arrive(A, S_T2)
    weight_addr_regs(A, LANE, 51, 52, 53, 54, 55, 56)
    A.srd(SW, P_WQ, SIZE["Wq"])
    chunks = []
    for j in range(4):
        for hf in range(2):
            def setup(j=j, hf=hf):
                A(f"s_lshl_b32 {s(S_T1)}, {s(S_WAVE)}, 21")
                A(f"s_lshl_b32 {s(S_T0)}, {s(S_HEAD)}, 8")
                A(f"s_add_u32 {s(S_T1)}, {s(S_T1)}, {s(S_T0)}")
                A(f"s_add_u32 {s(S_T1)}, {s(S_T1)}, {j * 64 * 8192 + hf * 128}")
            chunks.append((setup, 8192, "P", (lambda n, j=j, hf=hf: WQ + (j * 8 + hf * 4 + n) * 8)))
    load_weights(A, chunks, {8192: 51}, {"P": 53})
    await_start(A, end)
    A(f"s_mul_i32 {s(S_PF)}, {s(S_HEAD)}, 24576")
    A(f"s_add_u32 {s(S_PF)}, {s(S_PF)}, {L.QKV}")
    A(f"s_mov_b32 {s(S_STEP)}, 0")

    def prefetch():
        A(f"s_mov_b32 m0, {s(S_LDS)}")
        A(f"s_add_u32 {s(S_T0)}, {s(S_PF)}, 3072")
        for j in range(3):
            A(f"buffer_load_dwordx4 {v(PFG)}, {s(SWS, 4)}, {s(S_PF)} offen offset:{1024 * j} sc1 lds")
        A(f"s_add_u32 m0, {s(S_LDS)}, 3072")
        A(f"s_xor_b32 {s(S_LDS)}, {s(S_LDS)}, {SLOTX}")
        for j in range(3):
            A(f"buffer_load_dwordx4 {v(PFG)}, {s(SWS, 4)}, {s(S_T0)} offen offset:{1024 * j} sc1 lds")
        A(f"s_add_u32 {s(S_PF)}, {s(S_PF)}, {32 * 24576}")

    def operands():
        for i in range(8):
            A(f"ds_read_b128 {v(ST + 4 * i, 4)}, {v(RDK)} offset:{1024 * i}")
        for p, reg in ((0, RDVA), (1, RDVB)):
            for t in range(2):
                A(f"ds_read_b128 {v(ST + 32 + 8 * p + 4 * t, 4)}, {v(reg)} offset:{1024 * t}")
        for ks in range(4):
            A(f"ds_read_b128 {v(ST + 48 + 4 * ks, 4)}, {v(RDQ)} offset:{1024 * ks}")
        for reg in (RDK, RDVA, RDVB, RDQ):
            A(f"v_xor_b32 {v(reg)}, {SLOTX}, {v(reg)}")

    ldpq = lambda: A(f"buffer_load_dword {v(PQV)}, {v(PQA)}, {s(SWS, 4)}, 0 offen sc1")

    def tstpq():
        A(f"v_add_u32 {v(PQV)}, {v(PQV)}, {v(PQB)}")
        A(f"v_cmp_gt_u32 vcc, {s(S_NEED)}, {v(PQV)}")
    for i in range(2):
        if not cfg.solo:
            A(f"s_mov_b32 {s(S_NEED)}, {i + 1}")
            block_on(A, ldpq, tstpq, end)
        prefetch()
    if not cfg.solo:
        ldpq()
    A(f"s_waitcnt vmcnt({6 if cfg.solo else 7})")
    A("s_barrier")
    slow_lbl = A.new("q_sc1")
    A(f"s_cmp_lg_u32 {s(S_IRR)}, 0")
    A(f"s_cbranch_scc1 {slow_lbl}")

    def score_x(qreg, bias, before=None):
        for ks in range(4):
            if before:
                before(ks)
            for T in range(2):
                c = v(SX + 4 * T, 4) if ks else (v(BIAS + 4 * T, 4) if bias else "0")
                A(f"{MF} {v(SX + 4 * T, 4)}, {v(ST + 16 * T + 4 * ks, 4)}, {v(qreg + 4 * ks, 4)}, {c}")

    def max_x():
        A(f"v_max3_f32 {v(T1)}, {v(SX)}, {v(SX + 1)}, {v(SX + 2)}")
        A(f"v_max3_f32 {v(T1)}, {v(T1)}, {v(SX + 3)}, {v(SX + 4)}")
        A(f"v_max3_f32 {v(T1)}, {v(T1)}, {v(SX + 5)}, {v(SX + 6)}")
        A(f"v_max_f32 {v(T1)}, {v(T1)}, {v(SX + 7)}")

    def softmax(hook=lambda pos: None):
        A(f"v_add_f32 {v(SMM)}, {v(SMM)}, {v(SMM + 1)}")
        A(f"v_add_f32 {v(SMM + 1)}, {v(SMM + 2)}, {v(SMM + 3)}")
        A(f"v_max3_f32 {v(T2)}, {v(T1)}, {v(SMM)}, {v(SMM + 1)}")
        A(f"v_max3_f32 {v(T3)}, {v(T1)}, {v(SMM)}, {v(SMM + 1)}")
        hook(0)
        A("s_nop 1")
        A(f"v_permlane32_swap_b32 {v(T2)}, {v(T3)}")
        A("s_nop 0")
        A(f"v_max_f32 {v(T1)}, {v(T2)}, {v(T3)}")
        A(f"v_max_f32 {v(T2)}, {v(T2)}, {v(T3)}")
        A("s_nop 1")
        A(f"v_permlane16_swap_b32 {v(T1)}, {v(T2)}")
        A("s_nop 0")
        A(f"v_max_f32 {v(T1)}, {v(T1)}, {v(T2)}")
        A(f"v_mul_f32 {v(T2)}, {s(S_NC)}, {v(T1)}")
        hook(1)
        for i in range(5):
            A(f"v_pk_fma_f32 {v(SX + 2 * i, 2)}, {v(SX + 2 * i, 2)}, {s(S_C, 2)}, {v(T2, 2)} op_sel_hi:[1,0,0]")
        for i in range(10):
            A(f"v_exp_f32 {v(SX + i)}, {v(SX + i)}")
            if i == 4:
                hook(2)
        hook(3)
        for i in range(4):
            A(f"v_cvt_pk_bf16_f32 {v(PX + i)}, {v(SX + 2 * i)}, {v(SX + 2 * i + 1)}")
        A(f"v_cvt_pk_bf16_f32 {v(WIN + 2)}, {v(SMM)}, {v(SMM + 1)}")
        A(f"v_cvt_pk_bf16_f32 {v(WIN + 7)}, {v(SMM)}, {v(SMM + 1)}")

    WOFF = (2, 6, 0, 4)

    def scale(n):
        for i in range(n // 2):
            A(f"v_pk_mul_f32 {v(OA + 2 * i, 2)}, {v(OA + 2 * i, 2)}, {v(T2, 2)} op_sel_hi:[1,0]")

    def pv(nt, pre=None, post=None, hook=lambda pos: None):
        st = ST
        A(f"{MF} {v(LA, 4)}, {v(ONES, 4)}, {v(PX, 4)}, 0")
        for t in range(nt):
            if pre and t == cfg.vchk:
                pre()
            A(f"{MF} {v(OA + 4 * t, 4)}, {v(st + 32 + 4 * t, 4)}, {v(PX, 4)}, 0")
        if pre and cfg.vchk == 2:
            pre()
        A(f"{MF} {v(LA, 4)}, {v(ONES, 4)}, {v(WIN + WOFF[0], 4)}, {v(LA, 4)}")
        if post:
            post()
        hook(5)
        for t in range(nt):
            A(f"{MF} {v(OA + 4 * t, 4)}, {v(VM, 4)}, {v(WIN + WOFF[t], 4)}, {v(OA + 4 * t, 4)}")
        hook(6)
        heat(A, HT, 1)
        A.nop(7 - nt)
        A(f"v_rcp_f32 {v(T2)}, {v(LA)}")
        A("s_nop 0")

    def body(loc):
        top = A.new("q")
        ldm = lambda i: A(f"buffer_load_dwordx4 {v(AP + 4 * i, 4)}, {v(VG)}, {s(SWS, 4)}, {s(S_CUR)} offen offset:{1024 * i} sc1")
        ldk = lambda i: A(f"buffer_load_dwordx4 {v(AP + 4 * i, 4)}, {v(VK)}, {s(SWS, 4)}, {s(S_CUR)} offen offset:{1024 * (i & 1)} sc1")

        def ldv():
            A(f"buffer_load_dwordx2 {v(VM, 2)}, {v(VVA)}, {s(SWS, 4)}, {s(S_CUR)} offen sc1")
            A(f"buffer_load_dwordx2 {v(VM + 2, 2)}, {v(VVB)}, {s(SWS, 4)}, {s(S_CUR)} offen sc1")
        A.label(top)
        operands()
        A(f"s_mul_i32 m0, {s(S_WAVE)}, {WS}")
        ring_slots(A)
        for q in range(16):
            A(f"v_pk_mul_f32 {v(ACQ + 2 * q, 2)}, 0, 0")
        A.c("the previous segment's token rows are acknowledged: publish them")
        A("s_waitcnt vmcnt(0)")
        A(f"buffer_store_dword {v(TAGV)}, {v(POW)}, {s(SWS, 4)}, 0 offen{loc}")
        A(f"v_add_u32 {v(TAGV)}, 1, {v(TAGV)}")
        if cfg.use_fm:
            flag_wait(A, cfg, FMR, FBUF, 4, end)
        for i in range(4):
            ldm(i)
            heat(A, HT, cfg.lspace if i < 3 else cfg.ltail)

        fq = lambda j, lo, hi: [A(f"{SM} {v(ACQ + 4 * n, 4)}, {v(AP + 4 * j, 4)}, {r(WQ + (j * 8 + n) * 8, 8)}, {v(IDX)}")
                                for n in range(lo, hi)]
        chk4 = lambda i: check(A, AP + 4 * i, 4, CHK)
        ad = lambda i: A(f"v_add_f32 {v(ACQ + 2 * i)}, {v(ACQ + 2 * i)}, {v(ACQ + 2 * i + 1)}")
        wr = lambda i: A(f"ds_write_addtid_b32 {v(ACQ + 2 * i)} offset:{RQ + QPL(i >> 1, i & 1)}")

        def plain_tail():
            A("s_nop 0")
            for i in range(4):
                ad(i)
            for i in range(16):
                if i < 12:
                    ad(i + 4)
                wr(i)

        def last_piece():
            na = nw = 0
            for n in range(8):
                fq(3, n, n + 1)
                if n < 3:
                    A("s_nop 1")
                    continue
                ad(na), ad(na + 1)
                na += 2
                if n > 3:
                    for _ in range(cfg.qpipe - 1):
                        wr(nw)
                        nw += 1
            stamp(A, cfg, 0)
            while nw < 16:
                wr(nw)
                nw += 1
                if na < 16:
                    ad(na)
                    na += 1
        joined = A.new("qj")
        done, slow1 = fsm_poll(A, 4, ldm, chk4, lambda j, rest: fq(j, 0, 8), end,
                               fast=(lambda j: fq(j, 0, cfg.qsplit) if j < 3 or not cfg.qpipe else None,
                                     lambda j: fq(j, cfg.qsplit, 8) if j < 3 or not cfg.qpipe else last_piece()),
                               onfail=lambda first: (count(A, cfg, 2) if first else None, heat(A, HT, 1)))
        qdone = done
        if not cfg.qpipe:
            A.label(done)
            stamp(A, cfg, 0)
            plain_tail()
        A.label(joined)
        heat(A, HT, cfg.hw)
        A("s_waitcnt lgkmcnt(0)")
        A("s_barrier")
        for w in range(4):
            A(f"ds_read_b128 {v(RD + 4 * w, 4)}, {v(LR)} offset:{RQ + w * WS}")
        for i in range(4):
            A(f"v_mov_b32 {v(SMM + i)}, 0")

        def ldkc():
            for p in range(2):
                A(f"buffer_load_dwordx4 {v(KC + 4 * p, 4)}, {v(VK)}, {s(SWS, 4)}, {s(S_CUR)} offen offset:{1024 * p} sc1")
        if cfg.kpos == 0:
            ldkc()
        heat(A, HT, cfg.hr - 1)
        A("s_waitcnt lgkmcnt(0)")
        for h2 in range(2):
            A(f"v_pk_add_f32 {v(RD + 2 * h2, 2)}, {v(RD + 2 * h2, 2)}, {v(RD + 4 + 2 * h2, 2)}")
            A(f"v_pk_add_f32 {v(RD + 8 + 2 * h2, 2)}, {v(RD + 8 + 2 * h2, 2)}, {v(RD + 12 + 2 * h2, 2)}")
        for h2 in range(2):
            A(f"v_pk_add_f32 {v(RD + 2 * h2, 2)}, {v(RD + 2 * h2, 2)}, {v(RD + 8 + 2 * h2, 2)}")
        A(f"v_cvt_pk_bf16_f32 {v(RD)}, {v(RD)}, {v(RD + 1)}")
        A(f"v_cvt_pk_bf16_f32 {v(RD + 1)}, {v(RD + 2)}, {v(RD + 3)}")
        A(f"ds_write_b64 {v(QW)}, {v(RD, 2)} offset:{RB}")
        if cfg.kpos == 1:
            ldkc()
        heat(A, HT, cfg.hw)
        A("s_waitcnt lgkmcnt(0)")
        A("s_barrier")
        for ks in range(4):
            A(f"ds_read_b128 {v(QOP + 4 * ks, 4)}, {v(QR)} offset:{RB + ks * 512}")
        if cfg.kpos == 2:
            ldkc()
        heat(A, HT, 2)

        def qwait(ks):
            A(f"s_waitcnt lgkmcnt({3 - ks})")
            if ks in (1, 2):
                ldk(ks - 1)
            if ks == 3:
                A("s_waitcnt vmcnt(2)")
                check(A, KC, 8, CHK)
        score_x(QOP, False, qwait)
        stamp(A, cfg, 1)
        kre, kok = A.new("kr"), A.new("ko")
        A(f"s_cbranch_vccnz {kre}")
        for p in range(2):
            A(f"{SM} {v(SMM, 4)}, {v(KC + 4 * p, 4)}, {v(QOP + 8 * p, 8)}, {v(IDX)}")
        A.label(kok)
        stamp(A, cfg, 2)
        if cfg.vpos < 0:
            ldv()
        A.nop(4 if cfg.vpos >= 0 else 2)
        max_x()

        def hook(pos):
            if pos == cfg.vpos:
                ldv()
            if cfg.use_fo and pos == cfg.fo_pos:
                A(f"buffer_store_dword {v(TAGV)}, {v(FOW)}, {s(SWS, 4)}, {s(S_FB)} offen{loc}")
        softmax(hook)
        vre, vok = A.new("vr"), A.new("vo")

        def wait_v():
            A(f"s_waitcnt vmcnt({1 if cfg.use_fo and 4 >= cfg.fo_pos >= cfg.vpos else 0})")
            check(A, VM, 4, CHK)

        def test_v():
            A(f"s_cbranch_vccnz {vre}")
            A.label(vok)
        hook(4)
        pv(2, wait_v, test_v, hook)
        scale(8)
        for i in range(4):
            A(f"v_cvt_pk_bf16_f32 {v(PK + i)}, {v(OA + 2 * i)}, {v(OA + 2 * i + 1)}")
        for i in range(4):
            A(f"v_min_u32 {v(PK + i)}, -2, {v(PK + i)}")
        A(f"buffer_store_dwordx4 {v(PK, 4)}, {v(VO)}, {s(SWS, 4)}, {s(S_CUR)} offen{loc}")
        stamp(A, cfg, 3)
        A.c("off the recurrence path: operands of segment s+2, token rows of this segment")
        A("s_barrier")
        A(f"buffer_store_dwordx4 {v(SENT, 4)}, {v(VO)}, {s(SWS, 4)}, {s(S_RST)} offen{loc}")
        nopf = A.new("np")
        A(f"s_cmp_ge_u32 {s(S_STEP)}, {cfg.nsteps - 2}")
        A(f"s_cbranch_scc1 {nopf}")
        pqw, pqok = A.new("pw"), A.new("pk")
        if not cfg.solo:
            A(f"s_add_u32 {s(S_NEED)}, {s(S_STEP)}, 3")
            tstpq()
            A(f"s_cbranch_vccnz {pqw}")
            A.label(pqok)
        prefetch()
        if not cfg.solo:
            ldpq()
        if cfg.rpos == 3:
            A(f"s_add_u32 {s(S_T0)}, {s(S_STEP)}, 2")
            A(f"s_and_b32 {s(S_T0)}, {s(S_T0)}, 3")
            x_offsets(A, cfg, S_XR, S_T0)
            for rr in range(cfg.nrep):
                A(f"buffer_store_dwordx{XN} {v(SENT, XN)}, {v(XCL)}, {s(SWS, 4)}, {s(S_XR + rr)} offen sc1")
        A.label(nopf)
        for i in range(4):
            A(f"v_mov_b32 {v(SMM + i)}, 0")
        score_x(ST + 48, True)
        for p in range(2):
            A(f"{SM} {v(SMM, 4)}, {v(KC + 4 * p, 4)}, {v(ST + 48 + 8 * p, 8)}, {v(IDX)}")
        A(f"s_and_b32 {s(S_T0)}, {s(S_STEP)}, {63 if cfg.solo else 7}")
        A(f"s_lshl_b32 {s(S_T0)}, {s(S_T0)}, 18")
        A(f"s_add_u32 {s(S_OT)}, {s(S_T0)}, {L.OTOK}")
        A.nop(3)
        max_x()
        softmax()
        pv(4)
        scale(16)
        for i in range(8):
            A(f"v_cvt_pk_bf16_f32 {v(OA + i)}, {v(OA + 2 * i)}, {v(OA + 2 * i + 1)}")
        A(f"buffer_store_dwordx4 {v(OA, 4)}, {v(OTA)}, {s(SWS, 4)}, {s(S_OT)} offen{loc}")
        A(f"buffer_store_dwordx4 {v(OA + 4, 4)}, {v(OTB)}, {s(SWS, 4)}, {s(S_OT)} offen{loc}")
        stamp(A, cfg, 4, 2)
        if cfg.trace:
            A(f"s_memtime {s(S_STAMP + 10, 2)}")
        flush_stamps(A, cfg, 6, T2, T3, 2)
        A(f"s_add_u32 {s(S_STEP)}, {s(S_STEP)}, 1")
        A(f"s_cmp_lt_u32 {s(S_STEP)}, {cfg.nsteps}")
        A(f"s_cbranch_scc1 {top}")
        A("s_waitcnt vmcnt(0)")
        A(f"buffer_store_dword {v(TAGV)}, {v(POW)}, {s(SWS, 4)}, 0 offen{loc}")
        A(f"s_branch {end}")
        if not cfg.solo:
            A.label(pqw)
            block_on(A, ldpq, tstpq, end)
            A(f"s_branch {pqok}")
        if cfg.qpipe:
            A.label(qdone)
            stamp(A, cfg, 0)
            plain_tail()
            A(f"s_branch {joined}")
        slow1()
        A.label(kre)
        count(A, cfg, 0)
        ldk(2)
        ldk(3)

        def usekm(j, rest):
            p = j & 1
            if rest and (j ^ 2) not in rest:
                return
            A(f"{SM} {v(SMM, 4)}, {v(AP + 4 * j, 4)}, {v(QOP + 8 * p, 8)}, {v(IDX)}")
            for i in range(4):
                A(f"v_mov_b32 {v(KC + 4 * p + i)}, {v(AP + 4 * j + i)}")
        done, slow2 = fsm_poll(A, 4, ldk, chk4, usekm, end, lambda got: {x & 1 for x in got} == {0, 1})
        A.label(done)
        A(f"s_branch {kok}")
        slow2()
        A.label(vre)
        count(A, cfg, 1)
        ldv()
        spend(A, end)
        A("s_waitcnt vmcnt(0)")
        check(A, VM, 4, CHK)
        A(f"s_cbranch_vccnz {vre}")
        A(f"s_branch {vok}")

    body("")
    A.label(slow_lbl)
    body(" sc1")


def chain_kernel(A, cfg, name="chain_kernel"):
    end, kvo, other, noprobe = A.new("end"), A.new("kvo_role"), A.new("other"), A.new("np")
    A.kernel_begin(name)
    role_prologue(A, end)
    A(f"s_cmp_ge_u32 {s(S_GRP)}, 4")
    A(f"s_cbranch_scc1 {other}")
    A(f"s_cmp_ge_u32 {s(S_TK)}, 24")
    A(f"s_cbranch_scc1 {other}")
    A(f"s_cmp_ge_u32 {s(S_TK)}, 8")
    A(f"s_cbranch_scc1 {kvo}")
    q_role(A, cfg, end)
    A.label(other)
    A(f"s_mov_b32 {s(S_T2)}, 1")
    A(f"s_lshl_b32 {s(S_T0)}, {s(S_GRP)}, 8")
    A(f"s_or_b32 {s(S_T0)}, {s(S_T0)}, {s(S_TK)}")
    A(f"s_cmp_lg_u32 {s(S_T0)}, 24")
    A(f"s_cbranch_scc1 {noprobe}")
    probe(A, 1, S_T2)
    A.label(noprobe)
    arrive(A, S_T2)
    A.label(end)
    A("s_endpgm")
    A.label(kvo)
    kvo_role(A, cfg, end)
```

```python
MB = 1 << 20
XRING = 0
LRING = 2 * MB
MOD = 3 * MB
MODP = 3 * MB + 32768
FLAGS = 3 * MB + 131072
PROG = 3 * MB + 262144
PQ, P45, PL, P1, PO, PB, P3, PM, PW = (PROG + 128 * i for i in (0, 64, 120, 128, 192, 224, 256, 320, 352))
TRACE = 4 * MB
H1 = 8 * MB
X1 = 12 * MB
H2 = 16 * MB
QKV = 32 * MB
OTOK = 80 * MB
HH = 96 * MB
PART3 = 112 * MB
PART5 = 128 * MB
```

```python
from asmlib import *
import layout as L
from chain import (SWS, SW, SDBG, S_WAVE, S_GRP, S_TK, S_IRR, S_STEP, S_T0, S_T1, S_T2, S_T3, MF,
                   arrive, await_start, probe, progress_addr, words_addr, line_addr, lines_addr,
                   block_on, spend)
from small import xor_reduce, mod_body

SW2, SW3 = 84, 88
S_CU, S_SRC, S_RDY, S_FA, S_NEED, S_OUT, S_M0, S_NXT = 44, 45, 46, 47, 48, 49, 50, 54
S_SRC5, S_RDY5, S_NEED5, S_OUT5, S_NXT5, S_K = 55, 56, 57, 58, 59, 26
S_P0, S_P1, S_P2 = 60, 61, 62
OOB = 0x70000000
LANE = 9
VD, VR, VFA, VF, VPA, VP, VO = 0, 1, 2, 3, 4, 5, 6
FR, ACC, TMP = 16, 48, 80
S_SIG = 63


def ptr(A, reg, key):
    A(f"s_load_dwordx2 {s(reg, 2)}, s[0:1], {KA[key]}")


def mark(A, cfg, i):
    if cfg.marks != 1:
        return
    A("s_memrealtime s[96:97]")
    A(f"s_lshl_b32 s98, {s(S_GRP)}, 5")
    A(f"s_add_u32 s98, s98, {s(S_TK)}")
    A("s_lshl_b32 s98, s98, 2")
    A(f"s_add_u32 s98, s98, {s(S_WAVE)}")
    A("s_lshl_b32 s98, s98, 9")
    if isinstance(i, int):
        A(f"s_add_u32 s98, s98, {L.TRACE + 2 * L.MB + 4 * i}")
    else:
        A(f"s_lshl_b32 s99, {i}, 2")
        A("s_add_u32 s98, s98, s99")
        A(f"s_add_u32 s98, s98, {L.TRACE + 2 * L.MB + 64}")
    A("s_waitcnt lgkmcnt(0)")
    A("v_mov_b32 v15, s96")
    A("s_mov_b64 exec, 1")
    A(f"buffer_store_dword v15, off, {s(SWS, 4)}, s98")
    A("s_mov_b64 exec, -1")


def lap(A, cfg, i):
    if cfg.marks != 2:
        return
    A("s_memtime s[96:97]")
    A("s_waitcnt lgkmcnt(0)")
    A("s_sub_u32 s99, s96, s98")
    A(f"s_add_u32 s{70 + i}, s{70 + i}, s99")
    A("s_mov_b32 s98, s96")


def lap_init(A, cfg):
    if cfg.marks == 2:
        for i in range(8):
            A(f"s_mov_b32 s{70 + i}, 0")


def lap_dump(A, cfg):
    if cfg.marks != 2:
        return
    for i in range(8):
        A(f"v_writelane_b32 v15, s{70 + i}, {i}")
    A(f"s_lshl_b32 s98, {s(S_GRP)}, 5")
    A(f"s_add_u32 s98, s98, {s(S_TK)}")
    A("s_lshl_b32 s98, s98, 2")
    A(f"s_add_u32 s98, s98, {s(S_WAVE)}")
    A("s_lshl_b32 s98, s98, 5")
    A(f"s_add_u32 s98, s98, {L.TRACE + 3 * L.MB}")
    A(f"v_lshlrev_b32 v14, 2, {v(LANE)}")
    A("s_mov_b64 exec, 0xff")
    A(f"buffer_store_dword v15, v14, {s(SWS, 4)}, s98 offen")
    A("s_mov_b64 exec, -1")


def tile_addr(A, dst, order, inter, sbase, extra, t0, t1):
    A(f"v_bfe_u32 {v(t0)}, {v(LANE)}, 2, 2")
    A(f"v_lshrrev_b32 {v(t1)}, 4, {v(LANE)}")
    A(f"v_lshl_add_u32 {v(t0)}, {v(t1)}, {3 if order == 'N' else 2}, {v(t0)}")
    A(f"v_lshl_add_u32 {v(t0)}, {v(t0)}, 7, {s(sbase)}")
    A(f"v_and_b32 {v(t1)}, 3, {v(LANE)}")
    A(f"v_lshl_add_u32 {v(t0)}, {v(t1)}, {4 if inter else 3}, {v(t0)}")
    A(f"v_add_u32 {v(dst)}, {extra}, {v(t0)}")


def load_w(A, panels, stride, nst, tiles, order, vg):
    SZ = len(panels) * 16384
    n = 4 * len(panels)
    qstep = 512 if order == "N" else 2048
    A(f"v_lshrrev_b32 {v(vg)}, 3, {v(LANE)}")
    A(f"s_lshl_b32 {s(S_T0)}, {s(S_WAVE)}, 5")
    A(f"v_add_u32 {v(vg)}, {s(S_T0)}, {v(vg)}")
    A(f"v_mul_u32_u24 {v(vg)}, {stride}, {v(vg)}")
    A(f"v_and_b32 {v(vg + 1)}, 7, {v(LANE)}")
    A(f"v_lshl_add_u32 {v(vg)}, {v(vg + 1)}, 4, {v(vg)}")
    A(f"s_lshl_b32 {s(S_T0)}, {s(S_WAVE)}, 12")

    def issue(t):
        for p, (srd, off) in enumerate(panels):
            for j in range(4):
                A(f"s_add_u32 m0, {s(S_T0)}, {(t % 3) * SZ + p * 16384 + j * 1024}")
                A(f"s_add_u32 {s(S_T1)}, {s(off)}, {(128 * t + 8 * j) * stride}")
                A(f"buffer_load_dwordx4 {v(vg)}, {s(srd, 4)}, {s(S_T1)} offen lds")
    A("s_barrier")
    for t in range(3):
        issue(t)
    for t in range(nst):
        A(f"s_waitcnt vmcnt({n * (min(t + 3, nst) - t - 1)})")
        A("s_barrier")
        for reg, dst in tiles:
            for k in range(4):
                for q in range(2):
                    A(f"ds_read_b64_tr_b16 {r(dst + (4 * t + k) * 4 + 2 * q, 2)}, {v(reg)} offset:{k * 4096 + q * qstep}")
        for reg, dst in tiles:
            A(f"v_add_u32 {v(reg)}, {SZ if t % 3 < 2 else -2 * SZ}, {v(reg)}")
        A("s_waitcnt lgkmcnt(0)")
        A("s_barrier")
        if t + 3 < nst:
            issue(t + 3)


def dma_list(ngroups, m0base, m0add, src, vd):
    ops = []
    for gi in range(ngroups):
        ops.append(f"s_add_u32 m0, {s(m0base)}, {m0add + gi * 4096}")
        ops.append(f"s_add_u32 {s(S_T1)}, {s(src)}, {gi * 4096}")
        for j in range(4):
            ops.append(f"buffer_load_dwordx4 {v(vd)}, {s(SWS, 4)}, {s(S_T1)} offen offset:{1024 * j} sc1 lds")
    return ops


def first_reads(A, vr, base=0):
    for b in range(7):
        A(f"ds_read_b128 {v(FR + 4 * b, 4)}, {v(vr)} offset:{base + 1024 * b}")


def cost(op):
    if op.startswith("buffer"):
        return 3
    return 2 if op.startswith(("v_exp", "v_rcp")) else 1


def job(A, nblk, vr, base, tiles, fillers):
    mf, pre = [], {}
    for b in range(nblk):
        ks, T = b >> 1, b & 1
        if b % 2 == 0:
            pre[len(mf)] = f"s_waitcnt lgkmcnt({min(5, nblk - 2 - b)})"
        for acc, w, swap in tiles:
            x, y = r(w(ks), 4), v(FR + 4 * (b % 8), 4)
            if swap:
                x, y = y, x
            mf.append(f"{MF} {v(acc(T), 4)}, {x}, {y}, {v(acc(T), 4) if ks else 0}")
    n, nt = len(mf), len(tiles)
    at = [[] for _ in range(n)]
    used = [1 if i + 1 in pre else 0 for i in range(n)]
    for b in range(nblk - 7):
        at[b * nt].append(f"ds_read_b128 {v(FR + 4 * ((b + 7) % 8), 4)}, {v(vr)} offset:{base + 1024 * (b + 7)}")
        used[b * nt] += 1
    k = 0
    for start, step, ops in fillers:
        k = max(k, start)
        for op in ops:
            c = cost(op)
            while k < n - 1 and used[k] > 0 and used[k] + c > 2:
                k += 1
            at[k].append(op)
            used[k] += c
            if op.startswith("buffer"):
                k = min(n - 1, k + step)
    for i in range(n):
        if i in pre:
            A(pre[i])
        A(mf[i])
        for op in at[i]:
            A(op)


def lines(f):
    B = Asm()
    f(B)
    return B.lines


def decide(A, need, vf, rdy, src, nxt):
    A(f"v_cmp_gt_u32 vcc, {s(need)}, {v(vf)}")
    A("s_cmp_eq_u64 vcc, 0")
    A(f"s_cselect_b32 {s(rdy)}, 1, 0")
    A(f"s_cselect_b32 {s(src)}, {s(nxt)}, {hex(OOB)}")


def common_regs(A, share):
    A(f"s_mul_i32 {s(S_M0)}, {s(S_WAVE)}, {share}")
    A(f"v_lshlrev_b32 {v(VR)}, 4, {v(LANE)}")
    A(f"v_add_u32 {v(VD)}, {s(S_M0)}, {v(VR)}")


def start_role(A, base, extra=None):
    line_addr(A, VPA, 0, base, S_CU, TMP)
    A(f"v_mov_b32 {v(VP)}, 0")
    A(f"buffer_store_dword {v(VP)}, {v(VPA)}, {s(SWS, 4)}, 0 offen sc1")
    A(f"s_mov_b32 {s(S_T2)}, 1")
    if extra:
        extra()
    arrive(A, S_T2)


def stream1(A, cfg, tiles, epi, flag_for, advance_src, outstep, abort, deferred, sig, landed=None):
    top, body, wait, entry, now = (A.new(x) for x in ("st", "sb", "sw", "se", "sn"))
    ldf = lambda B=A: B(f"buffer_load_dword {v(VF)}, {v(VFA)}, {s(SWS, 4)}, {s(S_FA)} offen sc1")
    tst = lambda: A(f"v_cmp_gt_u32 vcc, {s(S_NEED)}, {v(VF)}")

    def late_sig():
        A(f"s_sub_u32 {s(S_T0)}, {s(S_STEP)}, 1")
        A(f"s_max_i32 {s(S_SIG)}, {s(S_SIG)}, {s(S_T0)}")
        A(f"v_mov_b32 {v(VP)}, {s(S_SIG)}")
        sig()
    A(f"s_mov_b32 {s(S_STEP)}, 0")
    A(f"s_mov_b32 {s(S_SIG)}, 0")
    lap_init(A, cfg)
    lap(A, cfg, 7)
    A.label(wait)
    flag_for(A, 0)
    block_on(A, ldf, tst, abort, 1)
    lap(A, cfg, 5)
    for op in dma_list(4, S_M0, 0, S_NXT, VD):
        A(op)
    flag_for(A, 1)
    ldf()
    A("s_waitcnt vmcnt(0)")
    A.label(entry)
    A("s_barrier")
    lap(A, cfg, 6)
    first_reads(A, VR)
    if deferred:
        A(f"s_cmp_lt_u32 {s(S_STEP)}, 4")
        A(f"s_cbranch_scc1 {body}")
        late_sig()
        A(f"s_branch {body}")
        A.label(top)
        A("s_waitcnt vmcnt(0)")
        lap(A, cfg, 0)
        A("s_barrier")
        lap(A, cfg, 1)
        first_reads(A, VR)
        late_sig()
        epi()
    A.label(body)
    if landed:
        landed()
    advance_src()
    A(f"s_xor_b32 {s(S_M0)}, {s(S_M0)}, 0x10000")
    decide(A, S_NEED, VF, S_RDY, S_SRC, S_NXT)
    n = 64 * len(tiles)
    lap(A, cfg, 2)
    job(A, 64, VR, 0, tiles,
        [(2, n // 32, dma_list(4, S_M0, 0, S_SRC, VD)),
         (n * 5 // 8, 1, lines(lambda B: flag_for(B, 2)) + lines(ldf))])
    lap(A, cfg, 3)
    A(f"v_xor_b32 {v(VR)}, 0x10000, {v(VR)}")
    A(f"s_add_u32 {s(S_OUT)}, {s(S_OUT)}, {outstep}")
    A(f"s_add_u32 {s(S_STEP)}, {s(S_STEP)}, 1")
    mark(A, cfg, s(S_STEP))
    if deferred:
        A(f"s_and_b32 {s(S_T0)}, {s(S_STEP)}, 63")
        A(f"s_cmp_lt_u32 {s(S_T0)}, 4")
        A(f"s_cbranch_scc1 {now}")
        A(f"s_cmp_lg_u32 {s(S_RDY)}, 0")
        A(f"s_cbranch_scc1 {top}")
        epi()
        A(f"s_branch {wait}")
        A.label(now)
    A.nop(5)
    epi()
    A(f"s_mov_b32 {s(S_SIG)}, {s(S_STEP)}")
    A(f"v_mov_b32 {v(VP)}, {s(S_STEP)}")
    A("s_waitcnt vmcnt(0)")
    A("s_barrier")
    sig()
    lap(A, cfg, 4)
    A(f"s_cmp_lg_u32 {s(S_RDY)}, 0")
    A(f"s_cbranch_scc1 {entry}")
    A(f"s_cmp_lt_u32 {s(S_STEP)}, 64")
    A(f"s_cbranch_scc1 {wait}")
    lap_dump(A, cfg)


def pack8(A, dst, a, b):
    for i in range(2):
        A(f"v_cvt_pk_bf16_f32 {v(dst + i)}, {v(a + 2 * i)}, {v(a + 2 * i + 1)}")
    for i in range(2):
        A(f"v_cvt_pk_bf16_f32 {v(dst + 2 + i)}, {v(b + 2 * i)}, {v(b + 2 * i + 1)}")


def await_helpers(A, n, abort, t=TMP):
    A(f"v_lshlrev_b32 {v(t)}, 7, {v(LANE)}")
    A(f"s_mov_b32 {s(S_T0)}, {L.P1}")
    block_on(A, lambda: A(f"buffer_load_dword {v(t + 1)}, {v(t)}, {s(SWS, 4)}, {s(S_T0)} offen sc1"),
             lambda: A(f"v_cmp_gt_u32 vcc, {n}, {v(t + 1)}"), abort, 2)


def octet_addrs(A, s_oct, s_cg):
    A(f"v_lshrrev_b32 {v(TMP)}, 3, {v(LANE)}")
    A(f"v_and_b32 {v(TMP + 1)}, 7, {v(LANE)}")
    A(f"s_lshr_b32 {s(S_T0)}, {s(s_oct)}, 1")
    A(f"s_lshl_b32 {s(S_T0)}, {s(S_T0)}, 10")
    A(f"s_and_b32 {s(S_T1)}, {s(s_oct)}, 1")
    A(f"s_lshl_b32 {s(S_T1)}, {s(S_T1)}, 7")
    A(f"s_add_u32 {s(S_T0)}, {s(S_T0)}, {s(S_T1)}")
    A(f"s_lshl_b32 {s(S_T1)}, {s(s_cg)}, 12")
    A(f"s_add_u32 {s(S_T0)}, {s(S_T0)}, {s(S_T1)}")
    A(f"v_lshl_add_u32 {v(VO)}, {v(TMP + 1)}, 4, {s(S_T0)}")
    A(f"v_and_b32 {v(TMP + 2)}, 3, {v(TMP)}")
    A(f"v_lshl_add_u32 {v(VO)}, {v(TMP + 2)}, 8, {v(VO)}")
    A(f"v_lshrrev_b32 {v(TMP + 2)}, 2, {v(TMP)}")
    A(f"v_lshl_add_u32 {v(VO)}, {v(TMP + 2)}, 11, {v(VO)}")
    A(f"s_lshl_b32 {s(S_T0)}, {s(s_oct)}, 14")
    A(f"s_lshl_b32 {s(S_T1)}, {s(s_cg)}, 7")
    A(f"s_add_u32 {s(S_T0)}, {s(S_T0)}, {s(S_T1)}")
    A(f"v_lshl_add_u32 {v(VO + 1)}, {v(TMP + 1)}, 11, {s(S_T0)}")
    A(f"v_lshl_add_u32 {v(VO + 1)}, {v(TMP)}, 4, {v(VO + 1)}")
    A(f"s_lshl_b32 {s(S_T0)}, {s(s_cg)}, 8")
    A(f"v_lshl_add_u32 {v(VO + 2)}, {v(TMP)}, 5, {s(S_T0)}")


def unit_consts(A):
    A(f"s_mov_b32 {s(S_P0)}, 0x00003f80")
    A(f"s_mov_b32 {s(S_P1)}, 0x3f800000")


def sum_bf(A, dst, srcs, n):
    for k, x in enumerate(srcs):
        for i in range(2 * n):
            A(f"v_dot2_f32_bf16 {v(dst + i)}, {v(x + (i >> 1))}, {s(S_P0 + (i & 1))}, {v(dst + i) if k else 0}")


def unpack(A, dst, src, n):
    for i in range(n):
        A(f"v_lshlrev_b32 {v(dst + 2 * i)}, 16, {v(src + i)}")
        A(f"v_and_b32 {v(dst + 2 * i + 1)}, 0xffff0000, {v(src + i)}")


def qkv_role(A, cfg, end):
    A.c("projection of token rows onto half a head of q, k and v; afterwards the final sums")
    A(f"v_mov_b32 {v(LANE)}, v1")
    A(f"s_sub_u32 {s(S_CU)}, {s(S_GRP)}, 4")
    A(f"s_lshl_b32 {s(S_CU)}, {s(S_CU)}, 4")
    A(f"s_add_u32 {s(S_CU)}, {s(S_CU)}, {s(S_TK)}")
    start_role(A, L.PQ)
    A.srd(SW, 18, SIZE["Wq"])
    A.srd(SW2, 20, SIZE["Wk"])
    A.srd(SW3, 22, SIZE["Wv"])
    A(f"s_lshl_b32 {s(S_P0)}, {s(S_CU)}, 7")
    A(f"s_lshr_b32 {s(S_T2)}, {s(S_WAVE)}, 1")
    A(f"s_lshl_b32 {s(S_T2)}, {s(S_T2)}, 14")
    A(f"s_and_b32 {s(S_T3)}, {s(S_WAVE)}, 1")
    A(f"s_lshl_b32 {s(S_T3)}, {s(S_T3)}, 6")
    A(f"s_add_u32 {s(S_T2)}, {s(S_T2)}, {s(S_T3)}")
    for T in range(2):
        tile_addr(A, TMP + T, "N", False, S_T2, 32 * T, TMP + 4, TMP + 5)
    A(f"s_lshl_b32 {s(S_T2)}, {s(S_WAVE)}, 5")
    tile_addr(A, TMP + 2, "N", False, S_T2, 32768, TMP + 4, TMP + 5)
    load_w(A, [(SW, S_P0), (SW2, S_P0), (SW3, S_P0)], 8192, 8,
           [(TMP, 256), (TMP + 1, 384), (TMP + 2, 128)], "N", TMP + 4)
    mark(A, cfg, 1)
    await_start(A, end)
    common_regs(A, 16384)
    lines_addr(A, VFA, LANE, 2)
    A(f"s_and_b32 {s(S_T2)}, {s(S_CU)}, 1")
    A(f"s_lshr_b32 {s(S_T0)}, {s(S_WAVE)}, 1")
    A(f"s_lshl_b32 {s(S_T0)}, {s(S_T0)}, 3")
    A(f"s_and_b32 {s(S_T1)}, {s(S_WAVE)}, 1")
    A(f"s_add_u32 {s(S_T0)}, {s(S_T0)}, {s(S_T1)}")
    A(f"s_lshl_b32 {s(S_T1)}, {s(S_T2)}, 1")
    A(f"s_add_u32 {s(S_T0)}, {s(S_T0)}, {s(S_T1)}")
    A(f"s_lshl_b32 {s(S_T0)}, {s(S_T0)}, 10")
    A(f"v_add_u32 {v(VO)}, {s(S_T0)}, {v(VR)}")
    A(f"v_add_u32 {v(VO + 1)}, 4096, {v(VO)}")
    A(f"s_lshl_b32 {s(S_T0)}, {s(S_T2)}, 2")
    A(f"s_add_u32 {s(S_T0)}, {s(S_T0)}, {s(S_WAVE)}")
    A(f"s_add_u32 {s(S_T0)}, {s(S_T0)}, 16")
    A(f"s_lshl_b32 {s(S_T0)}, {s(S_T0)}, 10")
    A(f"v_add_u32 {v(VO + 2)}, {s(S_T0)}, {v(VR)}")
    A(f"s_lshr_b32 {s(S_OUT)}, {s(S_CU)}, 1")
    A(f"s_mul_i32 {s(S_OUT)}, {s(S_OUT)}, 24576")
    A(f"s_add_u32 {s(S_OUT)}, {s(S_OUT)}, {L.QKV - 32 * 24576}")
    A(f"s_mov_b32 {s(S_NXT)}, {L.H1}")

    def epi():
        for i in range(3):
            pack8(A, TMP + 4 * i, ACC + 8 * i, ACC + 8 * i + 4)
            A(f"buffer_store_dwordx4 {v(TMP + 4 * i, 4)}, {v(VO + i)}, {s(SWS, 4)}, {s(S_OUT)} offen sc1")

    def flag_for(B, d):
        B(f"s_add_u32 {s(S_NEED)}, {s(S_STEP)}, {d}")
        B(f"s_and_b32 {s(S_FA)}, {s(S_NEED)}, 31")
        B(f"s_lshl_b32 {s(S_FA)}, {s(S_FA)}, 8")
        B(f"s_add_u32 {s(S_FA)}, {s(S_FA)}, {L.P1}")
        B(f"s_lshr_b32 {s(S_NEED)}, {s(S_NEED)}, 5")
        B(f"s_lshl_b32 {s(S_NEED)}, 1, {s(S_NEED)}")
        B(f"s_add_u32 {s(S_NEED)}, {s(S_NEED)}, 1")
    tiles = [(lambda T: ACC + 8 * T, lambda ks: 256 + 4 * ks, False),
             (lambda T: ACC + 8 * T + 4, lambda ks: 384 + 4 * ks, False),
             (lambda T: ACC + 16 + 4 * T, lambda ks: 128 + 4 * ks, True)]
    stream1(A, cfg, tiles, epi, flag_for, lambda: A(f"s_add_u32 {s(S_NXT)}, {s(S_NXT)}, 65536"), 32 * 24576, end, True,
            lambda: A(f"buffer_store_dword {v(VP)}, {v(VPA)}, {s(SWS, 4)}, 0 offen sc1"))

    A.c("out = x1 + gb * (sum of the seven partial down projections)")
    GB, SUMS, X8, BUF = 16, 24, 32, 64
    ptr(A, 16, "out")
    A(f"s_and_b32 {s(S_T2)}, {s(S_CU)}, 3")
    A(f"s_lshr_b32 {s(S_T3)}, {s(S_CU)}, 2")
    octet_addrs(A, S_T2, S_T3)
    lines_addr(A, VFA, LANE, 7, 10)
    A(f"s_lshr_b32 {s(S_FA)}, {s(S_CU)}, 3")
    A(f"s_lshl_b32 {s(S_FA)}, {s(S_FA)}, 7")
    A(f"s_add_u32 {s(S_FA)}, {s(S_FA)}, {L.P45 + 4}")
    unit_consts(A)
    A("s_waitcnt lgkmcnt(0)")
    A.srd(SW, 16, SIZE["out"])
    await_helpers(A, 4, end)
    A(f"s_mov_b32 {s(S_T0)}, {L.MOD + 4 * 5120}")
    for i in range(2):
        A(f"buffer_load_dwordx4 {v(GB + 4 * i, 4)}, {v(VO + 2)}, {s(SWS, 4)}, {s(S_T0)} offen offset:{16 * i} sc1")
    A(f"s_mov_b32 {s(S_STEP)}, {s(S_WAVE)}")
    for nb, limit in ((4, 48), (1, 64)):
        loop = A.new("fin")
        A.label(loop)
        A(f"s_add_u32 {s(S_NEED)}, {s(S_STEP)}, {4 * (nb - 1) + 1}")
        block_on(A, lambda: A(f"buffer_load_dword {v(VF)}, {v(VFA)}, {s(SWS, 4)}, {s(S_FA)} offen sc1"),
                 lambda: A(f"v_cmp_gt_u32 vcc, {s(S_NEED)}, {v(VF)}"), end, 32 if nb == 4 else cfg.fin_sleep)
        A(f"s_lshl_b32 {s(S_OUT)}, {s(S_STEP)}, 16")
        for b in range(nb):
            for k in range(8):
                base = L.X1 if k == 7 else L.PART5 + k * 4 * L.MB
                A(f"s_add_u32 {s(S_T1)}, {s(S_OUT)}, {base + b * 4 * 65536}")
                A(f"buffer_load_dwordx4 {v(BUF + 32 * b + 4 * k, 4)}, {v(VO)}, {s(SWS, 4)}, {s(S_T1)} offen sc1")
        for b in range(nb):
            A(f"s_waitcnt vmcnt({8 * (nb - 1 - b) + b})")
            sum_bf(A, SUMS, [BUF + 32 * b + 4 * k for k in range(7)], 4)
            unpack(A, X8, BUF + 32 * b + 28, 4)
            for i in range(4):
                A(f"v_pk_fma_f32 {v(X8 + 2 * i, 2)}, {v(SUMS + 2 * i, 2)}, {v(GB + 2 * i, 2)}, {v(X8 + 2 * i, 2)}")
            pack8(A, 40 + 4 * b, X8, X8 + 4)
            A(f"s_add_u32 {s(S_T1)}, {s(S_OUT)}, {b * 4 * 65536}")
            A(f"buffer_store_dwordx4 {v(40 + 4 * b, 4)}, {v(VO + 1)}, {s(SW, 4)}, {s(S_T1)} offen")
        A(f"s_add_u32 {s(S_STEP)}, {s(S_STEP)}, {4 * nb}")
        A(f"s_cmp_lt_u32 {s(S_STEP)}, {limit}")
        A(f"s_cbranch_scc1 {loop}")
        mark(A, cfg, 2 if nb == 4 else 3)
    A("s_endpgm")


def g3_role(A, cfg, end):
    A.c("output projection of token rows: this group's heads x 128 columns")
    A(f"v_mov_b32 {v(LANE)}, v1")
    A(f"s_sub_u32 {s(S_K)}, {s(S_TK)}, 24")
    A(f"s_lshl_b32 {s(S_CU)}, {s(S_GRP)}, 3")
    A(f"s_add_u32 {s(S_CU)}, {s(S_CU)}, {s(S_K)}")

    def extra():
        skip = A.new("np")
        A(f"s_mov_b32 {s(S_T0)}, 4096")
        A(f"buffer_store_dword {v(VP)}, {v(VPA)}, {s(SWS, 4)}, {s(S_T0)} offen sc1")
        line_addr(A, VO + 1, 0, L.PB, S_CU, TMP)
        A(f"buffer_store_dword {v(VP)}, {v(VO + 1)}, {s(SWS, 4)}, 0 offen sc1")
        A(f"s_lshl_b32 {s(S_T0)}, {s(S_IRR)}, 16")
        A(f"s_or_b32 {s(S_T2)}, {s(S_T2)}, {s(S_T0)}")
        A(f"s_cmp_lg_u32 {s(S_CU)}, 0")
        A(f"s_cbranch_scc1 {skip}")
        probe(A, LANE, S_T2)
        A.label(skip)
    start_role(A, L.P3, extra)
    await_start(A, end)
    A.srd(SW, 24, SIZE["Wo"])
    A(f"s_lshl_b32 {s(S_P0)}, {s(S_GRP)}, 21")
    A(f"s_lshl_b32 {s(S_T0)}, {s(S_K)}, 8")
    A(f"s_add_u32 {s(S_P0)}, {s(S_P0)}, {s(S_T0)}")
    A(f"s_add_u32 {s(S_P1)}, {s(S_P0)}, 128")
    pair_tiles(A, "P")
    load_w(A, [(SW, S_P0), (SW, S_P1)], 2048, 8, [(TMP, 256), (TMP + 1, 384)], "P", TMP + 4)
    mark(A, cfg, 1)
    common_regs(A, 16384)
    words_addr(A, VFA, LANE, 8, TMP)
    A(f"s_lshl_b32 {s(S_FA)}, {s(S_GRP)}, 10")
    A(f"s_add_u32 {s(S_FA)}, {s(S_FA)}, {L.PO}")
    A(f"v_mov_b32 {v(VO)}, {v(VR)}")
    A(f"s_lshl_b32 {s(S_T0)}, {s(S_K)}, 2")
    A(f"s_add_u32 {s(S_T0)}, {s(S_T0)}, {s(S_WAVE)}")
    A(f"s_lshl_b32 {s(S_T0)}, {s(S_T0)}, 11")
    A(f"s_lshl_b32 {s(S_OUT)}, {s(S_GRP)}, 22")
    A(f"s_add_u32 {s(S_OUT)}, {s(S_OUT)}, {s(S_T0)}")
    A(f"s_add_u32 {s(S_OUT)}, {s(S_OUT)}, {L.PART3 - 65536}")
    A(f"s_lshl_b32 {s(S_NXT)}, {s(S_GRP)}, 16")
    A(f"s_add_u32 {s(S_NXT)}, {s(S_NXT)}, {L.OTOK}")
    A.c("bring one slot of the token-output ring into this die's L2")
    A(f"s_lshl_b32 {s(S_SRC)}, {s(S_K)}, 18")
    A(f"s_add_u32 {s(S_SRC)}, {s(S_SRC)}, {s(S_NXT)}")
    for op in dma_list(4, S_M0, 0, S_SRC, VD):
        A(op)

    def epi():
        for T in range(2):
            pack8(A, TMP + 4 * T, ACC + 8 * T, ACC + 8 * T + 4)
            A(f"buffer_store_dwordx4 {v(TMP + 4 * T, 4)}, {v(VO)}, {s(SWS, 4)}, {s(S_OUT)} offen offset:{1024 * T} sc1")
    tiles = [(lambda T: ACC + 8 * T, lambda ks: 256 + 4 * ks, False),
             (lambda T: ACC + 8 * T + 4, lambda ks: 384 + 4 * ks, False)]

    def sig():
        A(f"s_and_b32 {s(S_T0)}, {s(S_STEP)}, 1")
        A(f"s_lshl_b32 {s(S_T0)}, {s(S_T0)}, 12")
        A(f"buffer_store_dword {v(VP)}, {v(VPA)}, {s(SWS, 4)}, {s(S_T0)} offen sc1")

    def landed():
        far, out = A.new("lf"), A.new("lo")
        A(f"v_add_u32 {v(VO + 2)}, 1, {v(VO + 2)}")
        A(f"s_cmp_lg_u32 {s(S_IRR)}, 0")
        A(f"s_cbranch_scc1 {far}")
        A(f"buffer_store_dword {v(VO + 2)}, {v(VO + 1)}, {s(SWS, 4)}, 0 offen")
        A(f"s_branch {out}")
        A.label(far)
        A(f"buffer_store_dword {v(VO + 2)}, {v(VO + 1)}, {s(SWS, 4)}, 0 offen sc1")
        A.label(out)
    A(f"v_mov_b32 {v(VO + 2)}, 0")

    def advance():
        A(f"s_add_u32 {s(S_NXT)}, {s(S_NXT)}, 262144")
        A(f"s_bitset0_b32 {s(S_NXT)}, 21")
    stream1(A, cfg, tiles, epi, lambda B, d: B(f"s_add_u32 {s(S_NEED)}, {s(S_STEP)}, {d + 1}"), advance, 65536, end,
            False, sig, landed)
    A("s_endpgm")


def pair_tiles(A, order):
    A(f"s_lshr_b32 {s(S_T2)}, {s(S_WAVE)}, 1")
    A(f"s_lshl_b32 {s(S_T2)}, {s(S_T2)}, 14")
    A(f"s_and_b32 {s(S_T3)}, {s(S_WAVE)}, 1")
    A(f"s_lshl_b32 {s(S_T3)}, {s(S_T3)}, 6")
    A(f"s_add_u32 {s(S_T2)}, {s(S_T2)}, {s(S_T3)}")
    for T in range(2):
        tile_addr(A, TMP + T, order, True, S_T2, 8 * T, TMP + 4, TMP + 5)


def row_total(A, T, bits, wr, rd, off):
    A(f"v_add_f32 {v(T)}, {v(T)}, {v(T + 1)}")
    xor_reduce(A, "v_add_f32", T, T + 1, bits)
    A(f"ds_write_b32 {v(wr)}, {v(T)} offset:{off}")
    A("s_waitcnt lgkmcnt(0)")
    A("s_barrier")
    A(f"ds_read_b128 {v(T, 4)}, {v(rd)} offset:{off}")
    A("s_waitcnt lgkmcnt(0)")
    A(f"v_pk_add_f32 {v(T, 2)}, {v(T, 2)}, {v(T + 2, 2)}")
    A(f"v_add_f32 {v(T)}, {v(T)}, {v(T + 1)}")
    A(f"v_mul_f32 {v(T)}, 0x3a800000, {v(T)}")


def normalise(A, F, n, T, bits, wr, rd):
    A(f"v_pk_add_f32 {v(T, 2)}, {v(F, 2)}, {v(F + 2, 2)}")
    for i in range(2, n // 2):
        A(f"v_pk_add_f32 {v(T, 2)}, {v(T, 2)}, {v(F + 2 * i, 2)}")
    row_total(A, T, bits, wr, rd, 512)
    for i in range(n // 2):
        A(f"v_pk_add_f32 {v(F + 2 * i, 2)}, {v(F + 2 * i, 2)}, {v(T, 2)} op_sel_hi:[1,0] neg_lo:[0,1] neg_hi:[0,1]")
    A(f"v_pk_mul_f32 {v(T, 2)}, {v(F, 2)}, {v(F, 2)}")
    for i in range(1, n // 2):
        A(f"v_pk_fma_f32 {v(T, 2)}, {v(F + 2 * i, 2)}, {v(F + 2 * i, 2)}, {v(T, 2)}")
    row_total(A, T, bits, wr, rd, 768)
    A(f"v_add_f32 {v(T)}, 0x3727c5ac, {v(T)}")
    A(f"v_rsq_f32 {v(T)}, {v(T)}")
    A("s_nop 0")
    for i in range(n // 2):
        A(f"v_pk_mul_f32 {v(F + 2 * i, 2)}, {v(F + 2 * i, 2)}, {v(T, 2)} op_sel_hi:[1,0]")


def stat_addrs(A, wr, rd, mask):
    A(f"v_and_b32 {v(rd)}, {mask}, {v(LANE)}")
    A(f"v_lshlrev_b32 {v(rd)}, 4, {v(rd)}")
    A(f"s_lshl_b32 {s(S_T0)}, {s(S_WAVE)}, 2")
    A(f"v_add_u32 {v(wr)}, {s(S_T0)}, {v(rd)}")


def helper_start(A, cfg, end):
    X, F, SH, SC, T = 16, 48, 112, 176, 240
    P1A, WR, RD, VA, VX, VG = 10, 11, 12, 13, 6, 7
    A(f"v_mov_b32 {v(LANE)}, v1")
    A(f"s_sub_u32 {s(S_T2)}, {s(S_GRP)}, 4")
    A(f"s_lshl_b32 {s(S_K)}, {s(S_TK)}, 2")
    A(f"s_add_u32 {s(S_K)}, {s(S_K)}, {s(S_T2)}")
    A(f"s_sub_u32 {s(S_K)}, {s(S_K)}, 64")
    A(f"s_mul_i32 {s(S_CU)}, {s(S_T2)}, 14")
    A(f"s_add_u32 {s(S_CU)}, {s(S_CU)}, {s(S_TK)}")
    A(f"s_sub_u32 {s(S_CU)}, {s(S_CU)}, 16")
    A(f"s_lshl_b32 {s(S_T3)}, {s(S_T2)}, 1")
    A(f"s_add_u32 {s(S_T3)}, {s(S_T3)}, {s(S_TK)}")
    A(f"s_add_u32 {s(S_T3)}, {s(S_T3)}, 26")
    A(f"s_cmp_ge_u32 {s(S_TK)}, 30")
    A(f"s_cselect_b32 {s(S_CU)}, {s(S_T3)}, {s(S_CU)}")
    ptr(A, 16, "wmod")
    ptr(A, 18, "c")
    ptr(A, 20, "x")
    line_addr(A, P1A, 0, L.P1, S_K, TMP)
    line_addr(A, 8, 0, L.P45, S_CU, TMP)
    A("v_mov_b32 v14, 0")
    A("v_mov_b32 v15, 0")
    A(f"buffer_store_dword v14, {v(P1A)}, {s(SWS, 4)}, 0 offen sc1")
    A(f"buffer_store_dwordx2 v[14:15], v8, {s(SWS, 4)}, 0 offen sc1")
    A("s_waitcnt lgkmcnt(0)")
    A.srd(SW, 16, SIZE["wmod"])
    A.srd(SW2, 18, SIZE["c"])
    A.srd(SW3, 20, SIZE["x"])

    def stage(n, join=True):
        A(f"v_mov_b32 v14, {n}")
        A("s_waitcnt vmcnt(0)")
        if join:
            A("s_barrier")
        A(f"buffer_store_dword v14, {v(P1A)}, {s(SWS, 4)}, 0 offen sc1")

    def early_arrive():
        skip = A.new("ea")
        A(f"s_cmp_lg_u32 {s(S_WAVE)}, 0")
        A(f"s_cbranch_scc1 {skip}")
        A("s_mov_b64 exec, 1")
        A("v_mov_b32 v14, 32")
        A("v_mov_b32 v15, 1")
        A(f"buffer_atomic_add v15, v14, {s(SDBG, 4)}, 0 offen sc1")
        A("s_mov_b64 exec, -1")
        A("s_waitcnt vmcnt(1)")
        A.label(skip)
    mod_body(A, S_K, S_WAVE, SW, SW2, early_arrive)
    stage(1, False)
    mark(A, cfg, 4)
    stat_addrs(A, WR, RD, 15)
    A(f"v_lshlrev_b32 {v(VA)}, 4, {v(LANE)}")
    A(f"v_lshrrev_b32 {v(VG)}, 4, {v(LANE)}")
    A(f"v_lshlrev_b32 {v(VX)}, 7, {v(RD)}")
    A(f"v_lshl_add_u32 {v(VX)}, {v(VG)}, 4, {v(VX)}")
    A(f"v_lshlrev_b32 {v(VG)}, 5, {v(VG)}")
    for rep in range(2):
        A(f"s_add_u32 {s(S_T2)}, {s(S_K)}, {64 * rep}")
        A(f"s_lshl_b32 s41, {s(S_T2)}, 15")
        A(f"s_lshl_b32 s42, {s(S_WAVE)}, 9")
        A("s_add_u32 s41, s41, s42")
        for k in range(8):
            A(f"buffer_load_dwordx4 {v(X + 4 * k, 4)}, {v(VX)}, {s(SW3, 4)}, s41 offen offset:{64 * k}")
        A(f"s_lshr_b32 s40, {s(S_T2)}, 1")
        A("s_lshl_b32 s40, s40, 2")
        A(f"s_add_u32 s40, s40, {s(S_WAVE)}")
        A("s_lshl_b32 s40, s40, 14")
        A(f"s_and_b32 s41, {s(S_T2)}, 1")
        A("s_lshl_b32 s41, s41, 10")
        A("s_add_u32 s40, s40, s41")
        A("s_waitcnt vmcnt(0)")
        unpack(A, F, X, 32)
        normalise(A, F, 64, T, (16, 32), WR, RD)
        if rep == 0:
            await_start(A, end, 14)
            await_helpers(A, 1, end, 14)
            A(f"s_lshl_b32 s42, {s(S_WAVE)}, 10")
            A(f"s_add_u32 s43, s42, {L.MOD + 4096}")
            A(f"s_add_u32 s42, s42, {L.MOD}")
            for n in range(16):
                off = 128 * (n >> 1) + 16 * (n & 1)
                A(f"buffer_load_dwordx4 {v(SC + 4 * n, 4)}, {v(VG)}, {s(SWS, 4)}, s43 offen offset:{off} sc1")
                A(f"buffer_load_dwordx4 {v(SH + 4 * n, 4)}, {v(VG)}, {s(SWS, 4)}, s42 offen offset:{off} sc1")
        for k in range(8):
            if rep == 0:
                A(f"s_waitcnt vmcnt({28 - 3 * k})")
                for i in range(4):
                    x = SC + 8 * k + 2 * i
                    A(f"v_pk_add_f32 {v(x, 2)}, {v(x, 2)}, 1.0 op_sel_hi:[1,0]")
            for i in range(4):
                x = 8 * k + 2 * i
                A(f"v_pk_fma_f32 {v(F + x, 2)}, {v(F + x, 2)}, {v(SC + x, 2)}, {v(SH + x, 2)}")
            pack8(A, X + 4 * k, F + 8 * k, F + 8 * k + 4)
            A(f"s_add_u32 s41, s40, {L.H1 + 2048 * k}")
            A(f"buffer_store_dwordx4 {v(X + 4 * k, 4)}, {v(VA)}, {s(SWS, 4)}, s41 offen sc1")
        stage(2 + rep)
        mark(A, cfg, 5 + rep)
    loop = A.new("md")
    A.label(loop)
    A(f"s_add_u32 {s(S_K)}, {s(S_K)}, 64")
    A("s_barrier")
    mod_body(A, S_K, S_WAVE, SW, SW2)
    A(f"s_cmp_lt_u32 {s(S_K)}, 128")
    A(f"s_cbranch_scc1 {loop}")
    stage(4, False)
    A(f"v_mov_b32 {v(VPA)}, v8")
    A(f"v_mov_b32 {v(VP)}, 0")
    mark(A, cfg, 7)


def ln_role(A, cfg, end):
    A.c("x1 = x + ga * attention, h2 = modulated layer norm of x1, for 8 tokens of every other segment")
    PB, XB, F, GA, SC, SH, T, WR, RD = 16, 80, 96, 128, 160, 192, 224, 11, 12
    A(f"s_sub_u32 {s(S_K)}, {s(S_CU)}, 56")
    A(f"s_and_b32 {s(S_T2)}, {s(S_K)}, 3")
    A(f"s_lshl_b32 {s(S_T3)}, {s(S_WAVE)}, 2")
    octet_addrs(A, S_T2, S_T3)
    stat_addrs(A, WR, RD, 7)
    unit_consts(A)
    lines_addr(A, VFA, LANE, 32)
    A(f"s_lshr_b32 {s(S_FA)}, {s(S_K)}, 2")
    A(f"s_xor_b32 {s(S_FA)}, {s(S_FA)}, 1")
    A(f"s_lshl_b32 {s(S_FA)}, {s(S_FA)}, 12")
    A(f"s_add_u32 {s(S_FA)}, {s(S_FA)}, {L.P3}")
    await_helpers(A, 4, end)
    for reg, part in ((GA, 2), (SH, 3), (SC, 4)):
        A(f"s_mov_b32 {s(S_T0)}, {L.MOD + 4096 * part}")
        for i in range(8):
            A(f"buffer_load_dwordx4 {v(reg + 4 * i, 4)}, {v(VO + 2)}, {s(SWS, 4)}, {s(S_T0)} offen offset:{256 * (i >> 1) + 16 * (i & 1)} sc1")
    A("s_waitcnt vmcnt(0)")
    for i in range(16):
        A(f"v_pk_add_f32 {v(SC + 2 * i, 2)}, {v(SC + 2 * i, 2)}, 1.0 op_sel_hi:[1,0]")
    A(f"s_lshr_b32 {s(S_STEP)}, {s(S_K)}, 2")
    loop = A.new("ln")
    A.label(loop)
    A(f"s_lshl_b32 {s(S_OUT)}, {s(S_STEP)}, 16")
    for i in range(4):
        A(f"buffer_load_dwordx4 {v(XB + 4 * i, 4)}, {v(VO + 1)}, {s(SW3, 4)}, {s(S_OUT)} offen offset:{128 * i}")
    A(f"s_add_u32 {s(S_NEED)}, {s(S_STEP)}, 1")

    block_on(A, lambda: A(f"buffer_load_dword {v(VF)}, {v(VFA)}, {s(SWS, 4)}, {s(S_FA)} offen sc1"),
             lambda: A(f"v_cmp_gt_u32 vcc, {s(S_NEED)}, {v(VF)}"), end, cfg.ln_sleep)
    for i in range(4):
        for x in range(4):
            A(f"s_add_u32 {s(S_T1)}, {s(S_OUT)}, {L.PART3 + x * 4 * L.MB + 4096 * i}")
            A(f"buffer_load_dwordx4 {v(PB + 16 * i + 4 * x, 4)}, {v(VO)}, {s(SWS, 4)}, {s(S_T1)} offen sc1")
    unpack(A, F, XB, 16)
    for i in range(4):
        A(f"s_waitcnt vmcnt({4 * (3 - i) + i})")
        sum_bf(A, T, [PB + 16 * i + 4 * x for x in range(4)], 4)
        A("s_nop 1")
        for q in range(4):
            x = 8 * i + 2 * q
            A(f"v_pk_fma_f32 {v(F + x, 2)}, {v(T + 2 * q, 2)}, {v(GA + x, 2)}, {v(F + x, 2)}")
        pack8(A, XB + 4 * i, F + 8 * i, F + 8 * i + 4)
        A(f"s_add_u32 {s(S_T1)}, {s(S_OUT)}, {L.X1 + 4096 * i}")
        A(f"buffer_store_dwordx4 {v(XB + 4 * i, 4)}, {v(VO)}, {s(SWS, 4)}, {s(S_T1)} offen sc1")
        unpack(A, F + 8 * i, XB + 4 * i, 4)
    normalise(A, F, 32, T, (8, 16, 32), WR, RD)
    for i in range(4):
        for q in range(4):
            x = 8 * i + 2 * q
            A(f"v_pk_fma_f32 {v(F + x, 2)}, {v(F + x, 2)}, {v(SC + x, 2)}, {v(SH + x, 2)}")
        pack8(A, PB + 4 * i, F + 8 * i, F + 8 * i + 4)
        A(f"s_add_u32 {s(S_T1)}, {s(S_OUT)}, {L.H2 + 4096 * i}")
        A(f"buffer_store_dwordx4 {v(PB + 4 * i, 4)}, {v(VO)}, {s(SWS, 4)}, {s(S_T1)} offen sc1")
    A(f"v_mov_b32 {v(VP)}, {s(S_NEED)}")
    A("s_waitcnt vmcnt(0)")
    A("s_barrier")
    A(f"buffer_store_dword {v(VP)}, {v(VPA)}, {s(SWS, 4)}, 0 offen sc1")
    mark(A, cfg, s(S_NEED))
    A(f"s_add_u32 {s(S_STEP)}, {s(S_STEP)}, 2")
    A(f"s_cmp_lt_u32 {s(S_STEP)}, 64")
    A(f"s_cbranch_scc1 {loop}")
    A("s_endpgm")


def g45_role(A, cfg, end):
    A.c("64 hidden units of silu(h w1) * (h w3) and a 512 x 128 slice of the down projection")
    VD5, VR5, VFA5, VF5 = 10, 11, 12, 13
    AC5, TE, VS = 64, 88, 100
    LAG = cfg.lag
    ptr(A, 16, "w1")
    ptr(A, 18, "w3")
    ptr(A, 20, "w2")
    A("s_waitcnt lgkmcnt(0)")
    A.srd(SW, 16, SIZE["w1"])
    A.srd(SW2, 18, SIZE["w3"])
    A.srd(SW3, 20, SIZE["w2"])
    A(f"s_lshl_b32 {s(S_P0)}, {s(S_CU)}, 7")
    A(f"s_lshl_b32 {s(S_T2)}, {s(S_WAVE)}, 5")
    for p in range(2):
        tile_addr(A, TMP + p, "N", False, S_T2, 16384 * p, TMP + 4, TMP + 5)
    load_w(A, [(SW, S_P0), (SW2, S_P0)], 7168, 8, [(TMP, 256), (TMP + 1, 384)], "N", TMP + 4)
    A(f"s_lshr_b32 {s(S_K)}, {s(S_CU)}, 3")
    A(f"s_and_b32 {s(S_P2)}, {s(S_CU)}, 7")
    A(f"s_lshl_b32 {s(S_P0)}, {s(S_K)}, 20")
    A(f"s_lshl_b32 {s(S_T0)}, {s(S_P2)}, 8")
    A(f"s_add_u32 {s(S_P0)}, {s(S_P0)}, {s(S_T0)}")
    A(f"s_add_u32 {s(S_P1)}, {s(S_P0)}, 128")
    pair_tiles(A, "N")
    load_w(A, [(SW3, S_P0), (SW3, S_P1)], 2048, 4, [(TMP, 128), (TMP + 1, 192)], "N", TMP + 4)
    mark(A, cfg, 1)
    common_regs(A, 16384)
    S_M5, S_FA5, S_NL = S_P0, S_P1, 64
    A(f"s_lshl_b32 {s(S_M5)}, {s(S_WAVE)}, 13")
    A(f"v_add_u32 {v(VD5)}, {s(S_M5)}, {v(VR)}")
    A(f"v_add_u32 {v(VR5)}, 0x20000, {v(VR)}")
    A(f"v_mov_b32 {v(VO + 1)}, {v(VR)}")
    lines_addr(A, VFA, LANE, 4)
    lines_addr(A, VFA5, LANE, 8)
    A(f"s_lshl_b32 {s(S_FA5)}, {s(S_K)}, 10")
    A(f"s_add_u32 {s(S_FA5)}, {s(S_FA5)}, {L.P45}")
    A(f"s_lshl_b32 {s(S_T0)}, {s(S_CU)}, 1")
    A(f"s_lshr_b32 {s(S_T1)}, {s(S_WAVE)}, 1")
    A(f"s_add_u32 {s(S_T0)}, {s(S_T0)}, {s(S_T1)}")
    A(f"s_lshl_b32 {s(S_T0)}, {s(S_T0)}, 11")
    A(f"s_and_b32 {s(S_T1)}, {s(S_WAVE)}, 1")
    A(f"s_lshl_b32 {s(S_T1)}, {s(S_T1)}, 9")
    A(f"s_add_u32 {s(S_T0)}, {s(S_T0)}, {s(S_T1)}")
    A(f"v_and_b32 {v(TMP)}, 15, {v(LANE)}")
    A(f"v_lshl_add_u32 {v(VO)}, {v(TMP)}, 4, {s(S_T0)}")
    A(f"v_bfe_u32 {v(TMP)}, {v(LANE)}, 4, 1")
    A(f"v_lshl_add_u32 {v(VO)}, {v(TMP)}, 10, {v(VO)}")
    A(f"v_lshrrev_b32 {v(TMP)}, 5, {v(LANE)}")
    A(f"v_lshl_add_u32 {v(VO)}, {v(TMP)}, 8, {v(VO)}")
    A(f"s_mov_b32 {s(S_OUT)}, {L.HH - 229376}")
    A(f"s_mov_b32 {s(S_NXT)}, {L.H2}")
    A(f"s_lshl_b32 {s(S_NXT5)}, {s(S_K)}, 15")
    A(f"s_add_u32 {s(S_NXT5)}, {s(S_NXT5)}, {L.HH - LAG * 229376}")
    A(f"s_lshl_b32 {s(S_T0)}, {s(S_P2)}, 2")
    A(f"s_add_u32 {s(S_T0)}, {s(S_T0)}, {s(S_WAVE)}")
    A(f"s_lshl_b32 {s(S_T0)}, {s(S_T0)}, 11")
    A(f"s_lshl_b32 {s(S_P2)}, {s(S_K)}, 22")
    A(f"s_add_u32 {s(S_P2)}, {s(S_P2)}, {s(S_T0)}")
    A(f"s_add_u32 {s(S_P2)}, {s(S_P2)}, {L.PART5 - LAG * 65536}")
    A(f"s_mov_b32 {s(S_NL)}, 0xbfb8aa3b")
    A(f"v_mov_b32 {v(VS)}, 0")
    A(f"v_mov_b32 {v(VS + 1)}, 0")

    ldf = lambda B=A: B(f"buffer_load_dword {v(VF)}, {v(VFA)}, {s(SWS, 4)}, {s(S_FA)} offen sc1")
    ldf5 = lambda B=A: B(f"buffer_load_dword {v(VF5)}, {v(VFA5)}, {s(SWS, 4)}, {s(S_FA5)} offen sc1")
    tst5 = lambda: A(f"v_cmp_gt_u32 vcc, {s(S_NEED5)}, {v(VF5)}")

    def sig(back):
        A(f"s_sub_u32 {s(S_T0)}, {s(S_STEP)}, {back}")
        A(f"v_med3_i32 {v(VS)}, {s(S_T0)}, 0, 64")
        A(f"s_sub_u32 {s(S_T0)}, {s(S_T0)}, {LAG}")
        A(f"v_max_i32 {v(VS + 1)}, {s(S_T0)}, 0")
        A(f"buffer_store_dwordx2 {v(VS, 2)}, {v(VPA)}, {s(SWS, 4)}, 0 offen sc1")

    def store4():
        A(f"buffer_store_dwordx4 {v(TE + 8, 4)}, {v(VO)}, {s(SWS, 4)}, {s(S_OUT)} offen sc1")

    def flag_for(B, d):
        B(f"s_add_u32 {s(S_NEED)}, {s(S_STEP)}, {d}")
        B(f"s_and_b32 {s(S_FA)}, {s(S_NEED)}, 1")
        B(f"s_lshl_b32 {s(S_FA)}, {s(S_FA)}, 9")
        B(f"s_add_u32 {s(S_FA)}, {s(S_FA)}, {L.PL}")
        B(f"s_add_u32 {s(S_NEED)}, {s(S_NEED)}, 1")

    def need5():
        A(f"s_sub_u32 {s(S_NEED5)}, {s(S_STEP)}, {LAG - 1}")
        A(f"s_max_i32 {s(S_NEED5)}, {s(S_NEED5)}, 0")

    def epi4(B):
        G, U = ACC, ACC + 8
        for i in range(4):
            B(f"v_pk_mul_f32 {v(TE + 2 * i, 2)}, {v(G + 2 * i, 2)}, {s(S_NL, 2)} op_sel_hi:[1,0]")
        for i in range(8):
            B(f"v_exp_f32 {v(TE + i)}, {v(TE + i)}")
        for i in range(4):
            B(f"v_pk_mul_f32 {v(G + 2 * i, 2)}, {v(G + 2 * i, 2)}, {v(U + 2 * i, 2)}")
        for i in range(4):
            B(f"v_pk_add_f32 {v(TE + 2 * i, 2)}, {v(TE + 2 * i, 2)}, 1.0 op_sel_hi:[1,0]")
        for i in range(8):
            B(f"v_rcp_f32 {v(TE + i)}, {v(TE + i)}")
        for i in range(4):
            B(f"v_pk_mul_f32 {v(G + 2 * i, 2)}, {v(G + 2 * i, 2)}, {v(TE + 2 * i, 2)}")
        pack8(B, TE + 8, G, G + 4)
        B("s_nop 1")
        B(f"v_permlane16_swap_b32 {v(TE + 8)}, {v(TE + 10)}")
        B(f"v_permlane16_swap_b32 {v(TE + 9)}, {v(TE + 11)}")

    def epi5():
        for T in range(2):
            pack8(A, TMP + 4 * T, AC5 + 8 * T, AC5 + 8 * T + 4)
            A(f"buffer_store_dwordx4 {v(TMP + 4 * T, 4)}, {v(VO + 1)}, {s(SWS, 4)}, {s(S_OUT5)} offen offset:{1024 * T} sc1")

    def after5():
        A(f"s_cmp_ge_u32 {s(S_STEP)}, {LAG}")
        A(f"s_cselect_b32 {s(S_OUT5)}, {s(S_P2)}, {hex(OOB)}")
        A(f"s_add_u32 {s(S_P2)}, {s(S_P2)}, 65536")
        A(f"s_add_u32 {s(S_NXT5)}, {s(S_NXT5)}, 229376")
        A(f"s_add_u32 {s(S_STEP)}, {s(S_STEP)}, 1")
    t4 = [(lambda T: ACC + 4 * T, lambda ks: 256 + 4 * ks, False),
          (lambda T: ACC + 8 + 4 * T, lambda ks: 384 + 4 * ks, False)]
    t5 = [(lambda T: AC5 + 8 * T, lambda ks: 128 + 4 * ks, False),
          (lambda T: AC5 + 8 * T + 4, lambda ks: 192 + 4 * ks, False)]
    top, body, wait, ready, late5, go5 = (A.new(x) for x in ("ft", "fb", "fw", "fr", "fl", "fg"))
    tst = lambda: A(f"v_cmp_gt_u32 vcc, {s(S_NEED)}, {v(VF)}")
    A(f"s_mov_b32 {s(S_STEP)}, 0")
    lap_init(A, cfg)
    A.label(wait)
    flag_for(A, 0)
    block_on(A, ldf, tst, end, cfg.g4_sleep)
    for op in dma_list(4, S_M0, 0, S_NXT, VD):
        A(op)
    flag_for(A, 1)
    ldf()
    ldf5()
    A("s_waitcnt vmcnt(0)")
    A("s_barrier")
    lap(A, cfg, 7)
    first_reads(A, VR)
    sig(1)
    A(f"s_branch {body}")
    A.label(top)
    A("s_waitcnt vmcnt(0)")
    lap(A, cfg, 0)
    A("s_barrier")
    lap(A, cfg, 1)
    first_reads(A, VR)
    sig(1)
    store4()
    epi5()
    A.label(body)
    A(f"s_add_u32 {s(S_NXT)}, {s(S_NXT)}, 65536")
    A(f"s_xor_b32 {s(S_M0)}, {s(S_M0)}, 0x10000")
    need5()
    decide(A, S_NEED, VF, S_RDY, S_SRC, S_NXT)
    decide(A, S_NEED5, VF5, S_RDY5, S_SRC5, S_NXT5)
    lap(A, cfg, 2)
    job(A, 64, VR, 0, t4, [(2, 4, dma_list(2, S_M5, 0x20000, S_SRC5, VD5) + dma_list(4, S_M0, 0, S_SRC, VD))])
    lap(A, cfg, 3)
    A(f"v_xor_b32 {v(VR)}, 0x10000, {v(VR)}")
    A(f"s_cmp_eq_u32 {s(S_RDY5)}, 0")
    A(f"s_cbranch_scc1 {late5}")
    A("s_waitcnt vmcnt(16)")
    A.label(go5)
    A("s_barrier")
    lap(A, cfg, 4)
    first_reads(A, VR5)
    mid = A.new("fi")
    A(f"s_cmp_lg_u32 {s(S_STEP)}, 63")
    A(f"s_cbranch_scc1 {mid}")
    sig(0)
    A.label(mid)
    e4 = lines(epi4)
    for op in e4[:12]:
        A(op)
    lap(A, cfg, 5)
    job(A, 32, VR5, 0, t5,
        [(0, 1, lines(lambda B: flag_for(B, 2)) + lines(ldf) + lines(ldf5) + e4[12:])])
    lap(A, cfg, 6)
    A(f"s_add_u32 {s(S_OUT)}, {s(S_OUT)}, 229376")
    after5()
    mark(A, cfg, s(S_STEP))
    A(f"s_cmp_lg_u32 {s(S_RDY)}, 0")
    A(f"s_cbranch_scc1 {top}")
    store4()
    epi5()
    A(f"s_cmp_lt_u32 {s(S_STEP)}, 64")
    A(f"s_cbranch_scc1 {wait}")
    lap_dump(A, cfg)
    A.c("remaining down projections; their inputs go to the free up-projection buffers")
    A(f"s_mov_b32 {s(S_NEED5)}, 63")
    A("s_waitcnt vmcnt(0)")
    A("s_barrier")
    sig(0)
    block_on(A, ldf5, tst5, end, 1)
    for i in range(LAG - 1):
        A(f"s_add_u32 {s(S_SRC5)}, {s(S_NXT5)}, {229376 * i}")
        for op in dma_list(2, S_M5, 0x8000 * i, S_SRC5, VD5):
            A(op)
    A(f"v_lshlrev_b32 {v(VR5)}, 4, {v(LANE)}")
    last, more = A.new("fz"), A.new("fm")
    A.label(last)
    A("s_waitcnt vmcnt(0)")
    A("s_barrier")
    A.label(more)
    need5()
    first_reads(A, VR5)
    job(A, 32, VR5, 0, t5, [])
    after5()
    A(f"v_add_u32 {v(VR5)}, 0x8000, {v(VR5)}")
    A.nop(2)
    epi5()
    mark(A, cfg, s(S_STEP))
    A(f"s_cmp_lt_u32 {s(S_STEP)}, {63 + LAG}")
    A(f"s_cbranch_scc1 {more}")
    A("s_waitcnt vmcnt(0)")
    A("s_barrier")
    sig(0)
    A(f"s_cmp_eq_u32 {s(S_STEP)}, {64 + LAG}")
    A(f"s_cbranch_scc1 {end}")
    A(f"s_mov_b32 {s(S_NEED5)}, 64")
    block_on(A, ldf5, tst5, end, 1)
    for op in dma_list(2, S_M5, 0x8000 * (LAG - 1), S_NXT5, VD5):
        A(op)
    A(f"s_branch {last}")
    A.label(late5)
    block_on(A, ldf5, tst5, end)
    for op in dma_list(2, S_M5, 0x20000, S_NXT5, VD5):
        A(op)
    A("s_waitcnt vmcnt(0)")
    A(f"s_branch {go5}")
```

```python
import sys
from asmlib import *
import chain, stream
from chain import S_GRP, S_TK


def build(path, **kw):
    cfg = chain.Cfg()
    cfg.marks = 0
    cfg.single = 0
    for k, val in kw.items():
        setattr(cfg, k, val)
    cfg.mark = lambda A, i: stream.mark(A, cfg, i, 48)
    A = Asm()
    name = NAME + "_kernel"
    end, kvo, g3, hi, helper, ln, end2 = (A.new(x) for x in ("end", "kvo", "g3", "hi", "helper", "ln", "end"))
    A.kernel_begin(name)
    chain.role_prologue(A, end)
    stream.mark(A, cfg, 0)
    A(f"s_cmp_ge_u32 {s(S_GRP)}, 4")
    A(f"s_cbranch_scc1 {hi}")
    A(f"s_cmp_ge_u32 {s(S_TK)}, 24")
    A(f"s_cbranch_scc1 {g3}")
    A(f"s_cmp_ge_u32 {s(S_TK)}, 8")
    A(f"s_cbranch_scc1 {kvo}")
    chain.q_role(A, cfg, end)
    A.label(end)
    A("s_endpgm")
    A.label(kvo)
    chain.kvo_role(A, cfg, end)
    A.label(g3)
    stream.g3_role(A, cfg, end2)
    A.label(hi)
    A(f"s_cmp_ge_u32 {s(S_TK)}, 16")
    A(f"s_cbranch_scc1 {helper}")
    stream.qkv_role(A, cfg, end2)
    A.label(end2)
    A("s_endpgm")
    A.label(helper)
    stream.helper_start(A, cfg, end2)
    A(f"s_cmp_ge_u32 {s(S_TK)}, 30")
    A(f"s_cbranch_scc1 {ln}")
    stream.g45_role(A, cfg, end2)
    A.label(ln)
    stream.ln_role(A, cfg, end2)
    hdr = ["adaLN + recurrent-memory attention + SwiGLU in one launch; generated by gen/mega.py"]
    open(path, "w").write(build_file(hdr, [(name, 256, 256, 163840)], A, [(name, 512, 102, 256)], cfg.single))


if __name__ == "__main__":
    kw = {}
    for x in sys.argv[2:]:
        k, val = x.split("=")
        kw[k] = int(val)
    build(sys.argv[1], **kw)
```

```python
from asmlib import *
import layout as L

SWS, SW, SDBG = 4, 8, 12
P_MEM0, P_WQ, P_WK, P_WV, P_WO, P_DBG, P_WS = 16, 18, 20, 22, 24, 28, 30
S_WAVE, S_GRP, S_TK, S_IRR, S_STEP, S_BUD, S_T0, S_T1 = 32, 33, 34, 35, 36, 37, 38, 39
S_CUR, S_NXT, S_RST, S_XCUR, S_XRST, S_RBASE, S_PAR, S_PF, S_C, S_NC, S_OT = range(40, 51)
S_XCC, S_T2, S_T3 = 51, 52, 53
S_FB, S_TAG = 59, 26
S_XC, S_XR = 84, 88
S_STAMP = 60
S_CNT = 80
NSTART = 256
BUDGET = 200000
SM = "v_smfmac_f32_16x16x64_bf16"
MF = "v_mfma_f32_16x16x32_bf16"


WFLAG = ("", " nt", " sc1")


class Cfg:
    trace = 0
    nsteps = 64
    lag = 4
    wlo = 0
    whi = 0
    wff = 0
    wmod = 0
    ramp_lo = 5
    ramp_hi = 3
    g3_after = 0
    meet = 1
    gate = 0
    outflag = 2
    qkv_slow = 3
    g4_split = 4
    g4_step = 5
    st_step = 4
    g4_late = 1
    mark = staticmethod(lambda A, i: None)
    fin_sleep = 4
    ln_sleep = 2
    g4_sleep = 4
    solo = 0
    cyc = 0
    flip = 0
    nrep = 2
    xdelay = 28
    xgap = 12
    xfill = 0
    fm_delay = 36
    mdelay = 8
    fo_pos = 3
    use_fm = 1
    use_fo = 1
    fspace = 12
    lspace = 4
    ltail = 1
    kpos = 1
    vpos = 0
    ksplit = 2
    qsplit = 5
    rpos = 3
    vin = 2
    vk = 2
    xdepth = 3
    xgap2 = 4
    xbf = 1
    vchk = 1
    qpipe = 0
    hw = 2
    hr = 3


def heat(A, h, n):
    for _ in range(n):
        A(f"{MF} {v(h, 4)}, {v(h + 4, 4)}, {v(h + 4, 4)}, 0")


def stamp(A, cfg, i, lvl=1):
    if cfg.trace in (1, lvl):
        A(f"{'s_memtime' if cfg.cyc else 's_memrealtime'} {s(S_STAMP + 2 * i, 2)}")


def count(A, cfg, i):
    if cfg.trace == 1:
        A(f"s_add_u32 {s(S_CNT + i)}, {s(S_CNT + i)}, 1")


def flush_stamps(A, cfg, n, vt, va, lvl=1):
    if cfg.trace not in (1, lvl):
        return
    A("s_waitcnt lgkmcnt(0)")
    for i in range(n):
        A(f"v_writelane_b32 {v(vt)}, {s(S_STAMP + 2 * i)}, {i}")
    A(f"v_writelane_b32 {v(vt)}, {s(S_BUD)}, 8")
    for i in range(4):
        A(f"v_writelane_b32 {v(vt)}, {s(S_CNT + i)}, {9 + i}")
    A(f"s_mul_i32 {s(S_T0)}, {s(S_GRP)}, 24")
    A(f"s_add_u32 {s(S_T0)}, {s(S_T0)}, {s(S_TK)}")
    A(f"s_lshl_b32 {s(S_T0)}, {s(S_T0)}, 2")
    A(f"s_add_u32 {s(S_T0)}, {s(S_T0)}, {s(S_WAVE)}")
    A(f"s_lshl_b32 {s(S_T0)}, {s(S_T0)}, 6")
    A(f"s_add_u32 {s(S_T0)}, {s(S_T0)}, {s(S_STEP)}")
    A(f"s_lshl_b32 {s(S_T0)}, {s(S_T0)}, 6")
    A(f"s_add_u32 {s(S_T0)}, {s(S_T0)}, {L.TRACE}")
    A(f"v_mbcnt_lo_u32_b32 {v(va)}, -1, 0")
    A(f"v_lshlrev_b32 {v(va)}, 2, {v(va)}")
    A("s_mov_b64 exec, 0xffff")
    A(f"buffer_store_dword {v(vt)}, {v(va)}, {s(SWS, 4)}, {s(S_T0)} offen")
    A("s_mov_b64 exec, -1")


def check(A, reg, n, tmp):
    if n == 4:
        A(f"v_max3_u32 {v(tmp)}, {v(reg)}, {v(reg + 1)}, {v(reg + 2)}")
        A(f"v_max_u32 {v(tmp)}, {v(tmp)}, {v(reg + 3)}")
    elif n > 4:
        A(f"v_max3_u32 {v(tmp)}, {v(reg)}, {v(reg + 1)}, {v(reg + 2)}")
        for i in range(3, n - 1, 2):
            A(f"v_max3_u32 {v(tmp)}, {v(tmp)}, {v(reg + i)}, {v(reg + i + 1)}")
        A(f"v_max_u32 {v(tmp)}, {v(tmp)}, {v(reg + n - 1)}")
    elif n == 2:
        A(f"v_max_u32 {v(tmp)}, {v(reg)}, {v(reg + 1)}")
    A(f"v_cmp_eq_u32 vcc, -1, {v(tmp)}")


def spend(A, abort):
    A(f"s_sub_u32 {s(S_BUD)}, {s(S_BUD)}, 1")
    A(f"s_cbranch_scc1 {abort}")


def fsm_poll(A, n, ld, chk, use, abort, finished=None, fast=None, onfail=None):
    done = A.new("pd")
    labels, emitted, todo = {}, set(), []
    full = frozenset(range(n))
    if finished is None:
        finished = lambda got: got == full

    def lab(st):
        if st not in labels:
            labels[st] = A.new("ps")
            todo.append(st)
        return labels[st]

    fails = []

    def chain_from(st, last):
        while True:
            if st in emitted:
                A(f"s_branch {lab(st)}")
                return
            emitted.add(st)
            A.label(lab(st))
            fl = A.new("pf")
            fails.append((fl, st))
            A(f"s_waitcnt vmcnt({len(st) - 1})")
            chk(st[0])
            A(f"s_cbranch_vccnz {fl}")
            rest = st[1:]
            fin = finished(full - frozenset(rest))
            use(st[0], () if fin else rest)
            if fin:
                if not last:
                    A(f"s_branch {done}")
                return
            st = rest

    if fast is None:
        chain_from(tuple(range(n)), True)
    else:
        head, tail = fast
        for i in range(n):
            fl = A.new("pf")
            fails.append((fl, tuple(range(i, n))))
            A(f"s_waitcnt vmcnt({n - 1 - i})")
            chk(i)
            if i:
                tail(i - 1)
            A(f"s_cbranch_vccnz {fl}")
            head(i)
        tail(n - 1)

    def rest_code():
        i = 0
        while i < len(fails) or any(t not in emitted for t in todo):
            while i < len(fails):
                fl, st = fails[i]
                i += 1
                A.label(fl)
                ld(st[0])
                if onfail:
                    onfail(i <= n and fast is not None)
                if st[0] == min(st):
                    spend(A, abort)
                chain_from(st[1:] + st[:1], False)
            for t in list(todo):
                if t not in emitted:
                    chain_from(t, False)
    return done, rest_code


def flag_wait(A, cfg, vaddr, buf, nl, abort):
    go, top = A.new("fg"), A.new("ft")
    ld = lambda b: A(f"buffer_load_dword {v(buf + b)}, {v(vaddr)}, {s(SWS, 4)}, {s(S_FB)} offen sc1")
    A(f"s_mov_b64 exec, {(1 << nl) - 1}")
    for b in range(3):
        ld(b)
        if b < 2:
            A.nop(cfg.fspace)
    A.label(top)
    for b in range(3):
        A("s_waitcnt vmcnt(2)")
        A(f"v_cmp_gt_u32 vcc, {s(S_TAG)}, {v(buf + b)}")
        A(f"s_cbranch_vccz {go}")
        ld(b)
    spend(A, abort)
    A(f"s_branch {top}")
    A.label(go)
    A("s_mov_b64 exec, -1")


def load_weights(A, chunks, vglob, vtr, flag="", first=None, ramp=5):
    NS = 5

    def issue(c):
        setup, stride, order, dst = chunks[c]
        setup()
        A(f"s_mul_i32 {s(S_T0)}, {s(S_WAVE)}, 40960")
        A(f"s_add_u32 m0, {s(S_T0)}, {(c % NS) * 8192}")
        for j in range(8):
            if j:
                A(f"s_add_u32 m0, m0, 1024")
                A(f"s_add_u32 {s(S_T1)}, {s(S_T1)}, {8 * stride}")
            else:
                A("s_nop 0")
            A(f"buffer_load_dwordx4 {v(vglob[stride])}, {s(SW, 4)}, {s(S_T1)} offen{flag} lds")

    n = len(chunks)
    for c in range(ramp):
        issue(c)
    if ramp < NS:
        A(f"s_waitcnt vmcnt({8 * (ramp - 1)})")
        for c in range(ramp, NS):
            issue(c)
    for c in range(n):
        setup, stride, order, dst = chunks[c]
        A(f"s_waitcnt vmcnt({8 * (min(c + NS, n) - c - 1)})")
        if c == 0 and first:
            first()
        for t in range(4):
            for H in range(2):
                for q in range(2):
                    row = 32 * H + (16 * q if order == "P" else 2 * q)
                    off = (c % NS) * 8192 + row * 128 + t * 32
                    A(f"ds_read_b64_tr_b16 {r(dst(t) + 4 * H + 2 * q, 2)}, {v(vtr[order])} offset:{off}")
        A("s_waitcnt lgkmcnt(0)")
        if c + NS < n:
            issue(c + NS)


def weight_addr_regs(A, lane, g8192, g2048, trP, trO, t0, t1):
    A(f"v_lshrrev_b32 {v(t0)}, 3, {v(lane)}")
    A(f"v_and_b32 {v(t1)}, 7, {v(lane)}")
    A(f"v_lshlrev_b32 {v(t1)}, 4, {v(t1)}")
    A(f"v_lshl_add_u32 {v(g8192)}, {v(t0)}, 13, {v(t1)}")
    A(f"v_lshl_add_u32 {v(g2048)}, {v(t0)}, 11, {v(t1)}")
    A(f"s_mul_i32 {s(S_T0)}, {s(S_WAVE)}, 40960")
    A(f"v_and_b32 {v(t1)}, 3, {v(lane)}")
    A(f"v_lshl_add_u32 {v(t1)}, {v(t1)}, 3, {s(S_T0)}")
    A(f"v_lshrrev_b32 {v(t0)}, 2, {v(lane)}")
    A(f"v_lshl_add_u32 {v(trP)}, {v(t0)}, 7, {v(t1)}")
    A(f"v_and_b32 {v(trO)}, 16, {v(lane)}")
    A(f"v_bfe_u32 {v(t0)}, {v(lane)}, 5, 1")
    A(f"v_lshl_add_u32 {v(trO)}, {v(t0)}, 3, {v(trO)}")
    A(f"v_bfe_u32 {v(t0)}, {v(lane)}, 3, 1")
    A(f"v_lshl_add_u32 {v(trO)}, {v(t0)}, 2, {v(trO)}")
    A(f"v_bfe_u32 {v(t0)}, {v(lane)}, 2, 1")
    A(f"v_add_u32 {v(trO)}, {v(trO)}, {v(t0)}")
    A(f"v_lshl_add_u32 {v(trO)}, {v(trO)}, 7, {v(t1)}")


def role_prologue(A, end):
    A("s_cmp_ge_u32 s2, 256")
    A(f"s_cbranch_scc1 {end}")
    A(f"s_load_dwordx8 {s(P_MEM0, 8)}, s[0:1], {KA['mem0']}")
    A(f"s_load_dwordx2 {s(P_WO, 2)}, s[0:1], {KA['Wo']}")
    A(f"s_load_dwordx4 {s(P_DBG, 4)}, s[0:1], {KA['dbg']}")
    A(f"s_getreg_b32 {s(S_XCC)}, hwreg(HW_REG_XCC_ID, 0, 4)")
    A(f"s_and_b32 {s(S_XCC)}, {s(S_XCC)}, 7")
    A("v_lshrrev_b32 v1, 6, v0")
    A("s_nop 0")
    A(f"v_readfirstlane_b32 {s(S_WAVE)}, v1")
    A("v_and_b32 v1, 63, v0")
    A("s_waitcnt lgkmcnt(0)")
    A.srd(SWS, P_WS, SIZE["ws"])
    A.srd(SDBG, P_DBG, SIZE["dbg"])
    A(f"s_mov_b32 {s(S_BUD)}, {BUDGET}")
    for i in range(4):
        A(f"s_mov_b32 {s(S_CNT + i)}, 0")
    got, loop, skip = A.new("rg"), A.new("rl"), A.new("rs")
    A(f"s_cmp_lg_u32 {s(S_WAVE)}, 0")
    A(f"s_cbranch_scc1 {skip}")
    A(f"s_mov_b32 {s(S_GRP)}, {s(S_XCC)}")
    A(f"s_mov_b32 {s(S_IRR)}, 0")
    A("s_mov_b64 exec, 1")
    A.label(loop)
    A(f"s_and_b32 {s(S_T0)}, {s(S_GRP)}, 4")
    A(f"s_mul_i32 {s(S_T0)}, {s(S_T0)}, 7")
    A(f"s_add_u32 {s(S_T0)}, {s(S_T0)}, {s(S_GRP)}")
    A(f"v_lshlrev_b32 v2, 2, {s(S_T0)}")
    A("v_mov_b32 v3, 1")
    A(f"buffer_atomic_add v3, v2, {s(SDBG, 4)}, 0 offen sc0 sc1")
    A("s_waitcnt vmcnt(0)")
    A(f"v_readfirstlane_b32 {s(S_TK)}, v3")
    A("s_nop 3")
    A(f"s_cmp_lt_u32 {s(S_TK)}, 32")
    A(f"s_cbranch_scc1 {got}")
    A(f"s_add_u32 {s(S_GRP)}, {s(S_GRP)}, 1")
    A(f"s_and_b32 {s(S_GRP)}, {s(S_GRP)}, 7")
    A(f"s_add_u32 {s(S_IRR)}, {s(S_IRR)}, 1")
    A(f"s_cmp_lt_u32 {s(S_IRR)}, 8")
    A(f"s_cbranch_scc1 {loop}")
    A.label(got)
    A(f"s_lshl_b32 {s(S_T0)}, {s(S_GRP)}, 8")
    A(f"s_min_u32 {s(S_TK)}, {s(S_TK)}, 255")
    A(f"s_or_b32 {s(S_T0)}, {s(S_T0)}, {s(S_TK)}")
    A(f"s_lshl_b32 {s(S_T1)}, {s(S_IRR)}, 16")
    A(f"s_or_b32 {s(S_T0)}, {s(S_T0)}, {s(S_T1)}")
    A(f"v_mov_b32 v3, {s(S_T0)}")
    A("v_mov_b32 v2, 0")
    A("ds_write_b32 v2, v3")
    A("s_mov_b64 exec, -1")
    A.label(skip)
    A("s_waitcnt lgkmcnt(0)")
    A("s_barrier")
    A("v_mov_b32 v2, 0")
    A("ds_read_b32 v3, v2")
    A("s_waitcnt lgkmcnt(0)")
    A(f"v_readfirstlane_b32 {s(S_T0)}, v3")
    A("s_barrier")
    A(f"s_and_b32 {s(S_TK)}, {s(S_T0)}, 255")
    A(f"s_bfe_u32 {s(S_GRP)}, {s(S_T0)}, 0x80008")
    A(f"s_lshr_b32 {s(S_IRR)}, {s(S_T0)}, 16")
    A(f"s_min_u32 {s(S_IRR)}, {s(S_IRR)}, 1")
    A(f"s_cmp_ge_u32 {s(S_TK)}, 32")
    A(f"s_cbranch_scc1 {end}")
    A.c("the roles that must start first take the first tickets")
    A(f"s_cmp_ge_u32 {s(S_GRP)}, 4")
    A(f"s_cselect_b32 {s(S_T0)}, 16, 24")
    A(f"s_add_u32 {s(S_TK)}, {s(S_TK)}, {s(S_T0)}")
    A(f"s_and_b32 {s(S_TK)}, {s(S_TK)}, 31")


def arrive(A, add_reg, hi=False, wait=True, join=True, t=48):
    skip = A.new("ar")
    if wait:
        A("s_waitcnt vmcnt(0)")
    if join:
        A("s_barrier")
    A(f"s_cmp_lg_u32 {s(S_WAVE)}, 0")
    A(f"s_cbranch_scc1 {skip}")
    A("s_mov_b64 exec, 1")
    A(f"v_mov_b32 {v(t)}, {160 if hi else 32}")
    A(f"v_mov_b32 {v(t + 1)}, {s(add_reg)}")
    A(f"buffer_atomic_add {v(t + 1)}, {v(t)}, {s(SDBG, 4)}, 0 offen sc1")
    A("s_mov_b64 exec, -1")
    A.label(skip)


def await_start(A, abort, t=48, hi_only=False):
    loop, out = A.new("st"), A.new("so")
    A.label(loop)
    A(f"buffer_load_dword {v(t)}, off, {s(SDBG, 4)}, 0 offset:{160 if hi_only else 32} sc1")
    A(f"buffer_load_dword {v(t + 1)}, off, {s(SDBG, 4)}, 0 offset:160 sc1")
    A("s_waitcnt vmcnt(0)")
    A(f"v_add_u32 {v(t)}, {v(t)}, {v(t + 1)}")
    A("s_nop 0")
    A(f"v_readfirstlane_b32 {s(S_T0)}, {v(t)}")
    A("s_nop 3")
    A(f"s_and_b32 {s(S_T1)}, {s(S_T0)}, 0xffff")
    A(f"s_cmp_eq_u32 {s(S_T1)}, {NSTART}")
    A(f"s_cbranch_scc1 {out}")
    spend(A, abort)
    A("s_sleep 8")
    A(f"s_branch {loop}")
    A.label(out)
    A(f"s_bfe_u32 {s(S_IRR)}, {s(S_T0)}, 0x80010")
    A(f"s_bfe_u32 {s(S_PAR)}, {s(S_T0)}, 0x10018")
    A(f"s_lshl_b32 {s(S_PAR)}, {s(S_PAR)}, 13")
    A("s_barrier")


def probe(A, lane, dst, dbg=False):
    skip = A.new("pb")
    A(f"s_cmp_lg_u32 {s(S_WAVE)}, 0")
    A(f"s_cbranch_scc1 {skip}")
    A(f"v_lshlrev_b32 v2, 8, {v(lane)}")
    A("v_mov_b32 v3, -1")
    A(f"s_mov_b32 {s(S_T3)}, {L.XRING + 0x8000}")
    A(f"buffer_store_dword v3, v2, {s(SWS, 4)}, {s(S_T3)} offen sc1")
    A("s_waitcnt vmcnt(0)")
    A("s_mov_b64 exec, 1")
    for h in range(2):
        A(f"s_mov_b32 {s(54 + h)}, -1")
    for rep in range(4):
        for h in range(2):
            A(f"v_mov_b32 v2, {h * 8192 + rep * 1792}")
            A(f"s_memtime {s(56, 2)}")
            A("s_waitcnt lgkmcnt(0)")
            A(f"buffer_load_dword v3, v2, {s(SWS, 4)}, {s(S_T3)} offen sc1")
            A("s_waitcnt vmcnt(0)")
            A(f"s_memtime {s(58, 2)}")
            A("s_waitcnt lgkmcnt(0)")
            A("s_sub_u32 s56, s58, s56")
            A(f"s_min_u32 {s(54 + h)}, {s(54 + h)}, s56")
    A("s_mov_b64 exec, -1")
    if dbg:
        A("v_mov_b32 v2, s54")
        A("v_mov_b32 v3, s55")
        A(f"buffer_store_dwordx2 v[2:3], off, {s(SDBG, 4)}, 0 offset:48")
    A("s_cmp_lt_u32 s55, s54")
    A("s_cselect_b32 s56, 1, 0")
    A(f"s_lshr_b32 s57, {s(S_XCC)}, 2")
    A("s_xor_b32 s56, s56, s57")
    A("s_lshl_b32 s56, s56, 24")
    A(f"s_or_b32 {s(dst)}, {s(dst)}, s56")
    A.label(skip)


def x_offsets(A, cfg, dst, slot):
    A(f"s_lshl_b32 {s(dst)}, {s(slot)}, 18")
    A(f"s_add_u32 {s(dst)}, {s(dst)}, {s(S_PAR)}")
    if cfg.nrep > 1:
        A(f"s_add_u32 {s(dst + 1)}, {s(dst)}, 0x100000")


def progress_addr(A, dst, lane, base, index, tmp, word=0):
    A(f"s_lshl_b32 {s(S_T0)}, {s(index)}, 5")
    A(f"s_add_u32 {s(S_T0)}, {s(S_T0)}, {s(S_WAVE)}")
    A(f"s_lshl_b32 {s(S_T0)}, {s(S_T0)}, 2")
    A(f"s_add_u32 {s(S_T0)}, {s(S_T0)}, {base + 4 * word}")
    A(f"v_min_u32 {v(tmp)}, 1, {v(lane)}")
    A(f"v_lshl_add_u32 {v(dst)}, {v(tmp)}, 30, {s(S_T0)}")


def line_addr(A, dst, tid, base, index, tmp):
    A(f"s_lshl_b32 {s(S_T0)}, {s(index)}, 7")
    A(f"s_add_u32 {s(S_T0)}, {s(S_T0)}, {base}")
    A(f"v_min_u32 {v(tmp)}, 1, {v(tid)}")
    A(f"v_lshl_add_u32 {v(dst)}, {v(tmp)}, 30, {s(S_T0)}")


def lines_addr(A, dst, lane, nlines, shift=7):
    A(f"v_min_u32 {v(dst)}, {nlines - 1}, {v(lane)}")
    A(f"v_lshlrev_b32 {v(dst)}, {shift}, {v(dst)}")


def words_addr(A, dst, lane, nlines, tmp, shift=2):
    A(f"v_lshrrev_b32 {v(tmp)}, 2, {v(lane)}")
    A(f"v_min_u32 {v(tmp)}, {nlines - 1}, {v(tmp)}")
    A(f"v_lshlrev_b32 {v(tmp)}, 7, {v(tmp)}")
    A(f"v_and_b32 {v(dst)}, 3, {v(lane)}")
    A(f"v_lshl_add_u32 {v(dst)}, {v(dst)}, {shift}, {v(tmp)}")


def block_on(A, ld, test, abort, sleep=2):
    top, out = A.new("bw"), A.new("bo")
    A.label(top)
    ld()
    A("s_waitcnt vmcnt(0)")
    test()
    A(f"s_cbranch_vccz {out}")
    spend(A, abort)
    A(f"s_sleep {sleep}")
    A(f"s_branch {top}")
    A.label(out)


def ring_slots(A):
    A(f"s_and_b32 {s(S_T0)}, {s(S_STEP)}, 3")
    A(f"s_lshl_b32 {s(S_T1)}, {s(S_T0)}, 16")
    A(f"s_add_u32 {s(S_CUR)}, {s(S_T1)}, {s(S_RBASE)}")
    A(f"s_xor_b32 {s(S_RST)}, {s(S_CUR)}, 0x20000")
    A(f"s_add_u32 {s(S_TAG)}, {s(S_STEP)}, 1")


def kvo_role(A, cfg, end):
    TID, LANE = 0, 1
    VG, VGO, PUBM, PUBK, PUBV, XOWN, XP = 8, 9, 10, 11, 27, 12, 13
    IDX, LR, LWV, LRV, CHK = 126, 24, 25, 127, 26
    LRO, FMR, FOR, FMW, FBUF, TAGV = 0, 1, 2, 3, 4, 7
    AP, ACK, ACV, ACO, HS, RD, SUM, SENT = 28, 44, 60, 76, 92, 100, 116, 120
    XL = 76
    WK, WO, WV = 256, 256 + 128, 128
    RK, RO, RV, WS = 0, 10240, 20480, 2560
    KPL = lambda n, b: 4 * ((n >> 1) * 320 + (n & 1) * 72 + b * 160)
    OPL = lambda n, b: 4 * (n * 144 + b * 72)
    HT = 16
    S_CI, S_LO1 = 54, 55
    A.c("KVO role: column slice c of the k, v and output projections of head group S_GRP")
    A("v_mov_b32 v44, v0")
    A("v_mov_b32 v45, v1")
    TID, LANE, U = 44, 45, 46
    t2, t3, t4, t5, t6, t7 = 50, 51, 52, 53, 54, 55
    A(f"v_and_b32 {v(U)}, 127, {v(TID)}")
    A(f"s_sub_u32 {s(S_CI)}, {s(S_TK)}, 8")
    A(f"s_lshl_b32 {s(S_RBASE)}, {s(S_GRP)}, 18")
    A(f"s_add_u32 {s(S_RBASE)}, {s(S_RBASE)}, {L.LRING}")
    A(f"s_lshl_b32 {s(S_FB)}, {s(S_GRP)}, 12")
    A(f"s_add_u32 {s(S_FB)}, {s(S_FB)}, {L.FLAGS}")
    A(f"s_lshl_b32 {s(S_T0)}, {s(S_WAVE)}, 12")
    A(f"v_lshl_add_u32 {v(VG)}, {v(LANE)}, 4, {s(S_T0)}")
    A(f"v_add_u32 {v(VGO)}, 49152, {v(VG)}")
    A(f"s_lshl_b32 {s(S_T0)}, {s(S_CI)}, 10")
    A(f"v_lshl_add_u32 {v(PUBM)}, {v(U)}, 3, {s(S_T0)}")
    A(f"v_lshl_add_u32 {v(t2)}, {v(TID)}, 2, {s(S_T0)}")
    A(f"v_add_u32 {v(PUBK)}, 16384, {v(t2)}")
    A(f"v_add_u32 {v(PUBV)}, 32768, {v(t2)}")
    A(f"s_lshl_b32 {s(S_T0)}, {s(S_WAVE)}, 8")
    A(f"v_lshl_add_u32 {v(FMR)}, {v(LANE)}, 2, {s(S_T0)}")
    A(f"v_add_u32 {v(FOR)}, 2048, {v(FMR)}")
    A(f"s_lshr_b32 {s(S_T0)}, {s(S_CI)}, 2")
    A(f"s_lshl_b32 {s(S_T0)}, {s(S_T0)}, 8")
    A(f"s_and_b32 {s(S_T1)}, {s(S_CI)}, 3")
    A(f"s_lshl_b32 {s(S_T1)}, {s(S_T1)}, 2")
    A(f"s_add_u32 {s(S_T0)}, {s(S_T0)}, {s(S_T1)}")
    A(f"v_min_u32 {v(t2)}, 1, {v(TID)}")
    A(f"v_lshl_add_u32 {v(FMW)}, {v(t2)}, 30, {s(S_T0)}")
    XN = 2 if cfg.xbf else 4
    A(f"s_lshr_b32 {s(S_T0)}, {s(S_CI)}, {3 if cfg.xbf else 2}")
    A(f"s_lshl_b32 {s(S_T0)}, {s(S_T0)}, 14")
    A(f"s_and_b32 {s(S_T1)}, {s(S_CI)}, {7 if cfg.xbf else 3}")
    A(f"s_lshl_b32 {s(S_T1)}, {s(S_T1)}, {10 if cfg.xbf else 11}")
    A(f"s_add_u32 {s(S_T0)}, {s(S_T0)}, {s(S_T1)}")
    A(f"s_lshl_b32 {s(S_T1)}, {s(S_GRP)}, 16")
    A(f"s_add_u32 {s(S_T0)}, {s(S_T0)}, {s(S_T1)}")
    A(f"v_lshl_add_u32 {v(XOWN)}, {v(U)}, {3 if cfg.xbf else 4}, {s(S_T0)}")
    for j in range(3):
        A(f"v_xor_b32 {v(XP + j)}, {hex((j + 1) << 16)}, {v(XOWN)}")
    A(f"s_mov_b32 {s(S_LO1)}, 0x00003f80")
    A(f"s_mov_b32 {s(S_LO1 + 1)}, 0x3f800000")
    A(f"v_and_b32 {v(t2)}, 1, {v(LANE)}")
    A(f"v_mul_u32_u24 {v(t2)}, 0xaaaa, {v(t2)}")
    A(f"v_add_u32 {v(IDX)}, 0x4444, {v(t2)}")
    A(f"s_lshl_b32 {s(S_T0)}, {s(S_WAVE)}, 11")
    A(f"v_lshl_add_u32 {v(LWV)}, {v(LANE)}, 5, {s(S_T0)}")
    A(f"v_lshlrev_b32 {v(LRV)}, 3, {v(TID)}")
    A(f"v_bfe_u32 {v(t2)}, {v(U)}, 5, 1")
    A(f"v_lshlrev_b32 {v(t2)}, 2, {v(t2)}")
    A(f"v_and_b32 {v(t3)}, 1, {v(U)}")
    A(f"v_lshl_add_u32 {v(t2)}, {v(t3)}, 1, {v(t2)}")
    A(f"v_bfe_u32 {v(t3)}, {v(U)}, 1, 1")
    A(f"v_add_u32 {v(t2)}, {v(t2)}, {v(t3)}")
    A(f"v_and_b32 {v(t3)}, 24, {v(U)}")
    A(f"v_add_u32 {v(t3)}, {v(t3)}, {v(t2)}")
    A(f"v_lshlrev_b32 {v(t3)}, 3, {v(t3)}")
    A(f"v_bfe_u32 {v(t4)}, {v(U)}, 2, 1")
    A(f"v_mul_u32_u24 {v(t4)}, {OPL(0, 1)}, {v(t4)}")
    A(f"v_add_u32 {v(t3)}, {v(t3)}, {v(t4)}")
    A(f"v_lshrrev_b32 {v(t4)}, 6, {v(U)}")
    A(f"v_mul_u32_u24 {v(t5)}, {OPL(2, 0)}, {v(t4)}")
    A(f"v_add_u32 {v(LRO)}, {v(t3)}, {v(t5)}")
    A(f"v_lshl_add_u32 {v(t2)}, {v(t4)}, 4, {v(t2)}")
    A(f"v_bfe_u32 {v(t3)}, {v(U)}, 2, 3")
    A(f"v_lshlrev_b32 {v(t3)}, 11, {v(t3)}")
    A(f"v_lshl_add_u32 v58, {v(t2)}, 2, {v(t3)}")
    A.srd(SW, P_MEM0, SIZE["mem0"])
    A(f"v_and_b32 {v(t2)}, 1, {v(LANE)}")
    A(f"s_and_b32 {s(S_T0)}, {s(S_WAVE)}, 2")
    A(f"v_add_u32 {v(t3)}, {s(S_T0)}, {v(t2)}")
    A(f"s_and_b32 {s(S_T1)}, {s(S_WAVE)}, 1")
    A(f"s_lshl_b32 {s(S_T1)}, {s(S_T1)}, 3")
    A(f"v_bfe_u32 {v(t4)}, {v(LANE)}, 1, 1")
    A(f"v_lshl_add_u32 {v(t4)}, {v(t4)}, 2, {s(S_T1)}")
    A(f"v_bfe_u32 {v(t5)}, {v(LANE)}, 2, 1")
    A(f"v_lshl_add_u32 {v(t4)}, {v(t5)}, 1, {v(t4)}")
    A(f"v_bfe_u32 {v(t5)}, {v(LANE)}, 3, 1")
    A(f"v_and_b32 {v(t6)}, 48, {v(LANE)}")
    A(f"v_add_u32 {v(t6)}, {v(t6)}, {v(t4)}")
    A(f"v_lshlrev_b32 {v(t6)}, 2, {v(t6)}")
    A(f"v_mul_u32_u24 {v(t5)}, {KPL(0, 1)}, {v(t5)}")
    A(f"v_mul_u32_u24 {v(t7)}, {KPL(1, 0)}, {v(t2)}")
    A(f"v_add3_u32 {v(t6)}, {v(t6)}, {v(t5)}, {v(t7)}")
    A(f"s_mul_i32 {s(S_T0)}, {s(S_T0)}, {KPL(2, 0) // 2}")
    A(f"v_add_u32 {v(LR)}, {s(S_T0)}, {v(t6)}")
    for i in range(8):
        A(f"v_mov_b32 {v(HT + i)}, 0")
    for i in range(4):
        A(f"v_mov_b32 {v(SENT + i)}, -1")

    def clear_inbox():
        out = A.new("co")
        A(f"s_cmp_ge_u32 {s(S_WAVE)}, 2")
        A(f"s_cbranch_scc1 {out}")
        for rr in range(cfg.nrep):
            A(f"buffer_store_dwordx{XN} {v(SENT, XN)}, {v(XOWN)}, {s(SWS, 4)}, {s(S_XR + rr)} offen sc1")
        A.label(out)
    A.c("initial memory piece and 'not written' marks in every ring slot this workgroup owns")
    for slot in range(4):
        A(f"s_add_u32 {s(S_T0)}, {s(S_RBASE)}, {slot << 16}")
        A(f"buffer_store_dwordx2 {v(SENT, 2)}, {v(PUBM)}, {s(SWS, 4)}, {s(S_T0)} offen sc1")
        A(f"buffer_store_dword {v(SENT)}, {v(PUBK)}, {s(SWS, 4)}, {s(S_T0)} offen sc1")
        A(f"buffer_store_dword {v(SENT)}, {v(PUBV)}, {s(SWS, 4)}, {s(S_T0)} offen sc1")
        A(f"s_mov_b32 {s(S_T0)}, {slot}")
        for par in range(2):
            A(f"s_mov_b32 {s(S_PAR)}, {par << 13}")
            x_offsets(A, cfg, S_XR, S_T0)
            clear_inbox()
    A(f"v_mov_b32 {v(TAGV)}, 1")
    A(f"buffer_store_dword {v(TAGV)}, {v(FMW)}, {s(SWS, 4)}, {s(S_FB)} offen sc1")
    A(f"s_lshl_b32 {s(S_T2)}, {s(S_IRR)}, 16")
    A(f"s_or_b32 {s(S_T2)}, {s(S_T2)}, 1")

    arrive(A, S_T2)
    A(f"s_lshl_b32 {s(S_T0)}, {s(S_CI)}, 7")
    A(f"buffer_load_dword v56, v58, {s(SW, 4)}, {s(S_T0)} offen")
    A(f"buffer_load_dword v57, v58, {s(SW, 4)}, {s(S_T0)} offen offset:32")

    def first():
        A("v_min_u32 v56, -2, v56")
        A("v_min_u32 v57, -2, v57")
        A(f"buffer_store_dwordx2 v[56:57], {v(PUBM)}, {s(SWS, 4)}, {s(S_RBASE)} offen sc1")
    A.c("weights into registers")
    weight_addr_regs(A, LANE, t2, t3, t4, t5, t6, t7)
    chunks = []
    for ptr, name, base in ((P_WK, "Wk", WK), (P_WV, "Wv", WV), (P_WO, "Wo", WO)):
        for j in range(4):
            def setup(ptr=ptr, name=name, j=j):
                A.srd(SW, ptr, SIZE[name])
                if name == "Wo":
                    A(f"s_lshl_b32 {s(S_T1)}, {s(S_GRP)}, 2")
                    A(f"s_add_u32 {s(S_T1)}, {s(S_T1)}, {s(S_WAVE)}")
                    A(f"s_lshl_b32 {s(S_T1)}, {s(S_T1)}, 19")
                    A(f"s_lshl_b32 {s(S_T0)}, {s(S_CI)}, 7")
                    A(f"s_add_u32 {s(S_T1)}, {s(S_T1)}, {s(S_T0)}")
                    A(f"s_add_u32 {s(S_T1)}, {s(S_T1)}, {j * 64 * 2048}")
                else:
                    A(f"s_lshl_b32 {s(S_T1)}, {s(S_WAVE)}, 21")
                    A(f"s_lshl_b32 {s(S_T0)}, {s(S_GRP)}, 4")
                    A(f"s_add_u32 {s(S_T0)}, {s(S_T0)}, {s(S_CI)}")
                    A(f"s_lshl_b32 {s(S_T0)}, {s(S_T0)}, 7")
                    A(f"s_add_u32 {s(S_T1)}, {s(S_T1)}, {s(S_T0)}")
                    A(f"s_add_u32 {s(S_T1)}, {s(S_T1)}, {j * 64 * 8192}")
            chunks.append((setup, 2048 if name == "Wo" else 8192, "O" if name == "Wo" else "P",
                           (lambda n, base=base, j=j: base + (j * 4 + n) * 8)))
    if cfg.meet:
        chunks = [chunks[i] for i in (3, 7, 2, 6, 1, 5, 0, 4, 8, 9, 10, 11)]
    load_weights(A, chunks, {8192: t2, 2048: t3}, {"P": t4, "O": t5}, WFLAG[cfg.wlo], first, cfg.ramp_lo)
    cfg.mark(A, 1)
    await_start(A, end)
    A(f"s_mul_i32 m0, {s(S_WAVE)}, {WS}")
    for q in range(32):
        A(f"v_mov_b32 {v(ACK + q)}, 0")
    A(f"s_mov_b32 {s(S_STEP)}, 0")
    slow_lbl = A.new("kvo_sc1")
    A(f"s_cmp_lg_u32 {s(S_IRR)}, 0")
    A(f"s_cbranch_scc1 {slow_lbl}")

    def half_sums(acc, R=None, pl=None, between=None):
        ad = lambda i: A(f"v_add_f32 {v(HS + i)}, {v(acc + 2 * i)}, {v(acc + 2 * i + 1)}")
        for i in range(4 if pl else 8):
            ad(i)
        if pl:
            for i in range(8):
                if i < 4:
                    ad(i + 4)
                A(f"ds_write_addtid_b32 {v(HS + i)} offset:{R + pl(i >> 1, i & 1)}")
                if between:
                    between(i)

    def read4(addr, R, ws):
        for w in range(4):
            A(f"ds_read_b64 {v(RD + 2 * w, 2)}, {v(addr)} offset:{R + w * ws}")

    def gather(ld):
        for i in range(4):
            ld(i)
            heat(A, HT, cfg.lspace if i < 3 else cfg.ltail)

    def proj(acc, W, vin=0):
        def f(j, lo, hi):
            for n in range(lo, hi):
                if n < 4:
                    A(f"{SM} {v(acc + 4 * n, 4)}, {v(AP + 4 * j, 4)}, {r(W + (j * 4 + n) * 8, 8)}, {v(IDX)}")
                else:
                    A(f"{SM} {v(ACV + 4 * (n - 4), 4)}, {v(AP + 4 * j, 4)}, {r(WV + (j * 4 + n - 4) * 8, 8)}, {v(IDX)}")
        sp = cfg.ksplit + vin
        return (lambda j, rest: f(j, 0, 4 + vin)), (lambda j: f(j, 0, sp), lambda j: f(j, sp, 4 + vin))

    def sum4():
        A(f"v_pk_add_f32 {v(RD, 2)}, {v(RD, 2)}, {v(RD + 2, 2)}")
        A(f"v_pk_add_f32 {v(RD + 4, 2)}, {v(RD + 4, 2)}, {v(RD + 6, 2)}")
        A(f"v_pk_add_f32 {v(SUM, 2)}, {v(RD, 2)}, {v(RD + 4, 2)}")

    def body(loc):
        top, top2, top3 = A.new("kvo"), A.new("kvo2"), A.new("kvo3")
        ldm = lambda i: A(f"buffer_load_dwordx4 {v(AP + 4 * i, 4)}, {v(VG)}, {s(SWS, 4)}, {s(S_CUR)} offen offset:{1024 * i} sc1")
        ldo = lambda i: A(f"buffer_load_dwordx4 {v(AP + 4 * i, 4)}, {v(VGO)}, {s(SWS, 4)}, {s(S_CUR)} offen offset:{1024 * i} sc1")
        vq = [(j, n) for j in range(4) for n in range(cfg.vin, 4)]

        def vmf(k):
            for _ in range(k):
                if vq:
                    j, n = vq.pop(0)
                    A(f"{SM} {v(ACV + 4 * n, 4)}, {v(AP + 4 * j, 4)}, {r(WV + (j * 4 + n) * 8, 8)}, {v(IDX)}")

        A.label(top)
        ring_slots(A)
        if cfg.use_fm:
            flag_wait(A, cfg, FMR, FBUF, 4, end)
        A.label(top3)
        gather(ldm)
        chk4 = lambda i: check(A, AP + 4 * i, 4, CHK)

        def onfail(c):
            return lambda first: (count(A, cfg, c) if first else None, heat(A, HT, 1))
        use, fast = proj(ACK, WK, cfg.vin)
        done, slow1 = fsm_poll(A, 4, ldm, chk4, use, end, fast=fast, onfail=onfail(2))
        A.label(done)
        stamp(A, cfg, 0)
        A.nop(5 - cfg.vin)
        half_sums(ACK, RK, KPL, lambda i: vmf(1) if i >= 8 - cfg.vk else None)
        vmf(2)
        if cfg.rpos == 0:
            clear_inbox()
        A("s_waitcnt lgkmcnt(0)")
        A("s_barrier")
        read4(LR, RK, WS)
        vmf(3)
        A("s_waitcnt lgkmcnt(0)")
        sum4()
        A(f"v_cvt_pk_bf16_f32 {v(SUM)}, {v(SUM)}, {v(SUM + 1)}")
        A(f"v_min_u32 {v(SUM)}, -2, {v(SUM)}")
        A(f"buffer_store_dword {v(SUM)}, {v(PUBK)}, {s(SWS, 4)}, {s(S_CUR)} offen{loc}")
        stamp(A, cfg, 1)
        left = len(vq)
        vmf(16)
        A.nop(6 if left else 1)
        half_sums(ACV)
        A(f"ds_write_b128 {v(LWV)}, {v(HS, 4)} offset:{RV}")
        A(f"ds_write_b128 {v(LWV)}, {v(HS + 4, 4)} offset:{RV + 16}")
        if cfg.rpos == 1:
            clear_inbox()
        A("s_waitcnt lgkmcnt(0)")
        A("s_barrier")
        read4(LRV, RV, 2048)
        A("s_waitcnt lgkmcnt(0)")
        sum4()
        A(f"v_cvt_pk_bf16_f32 {v(SUM)}, {v(SUM)}, {v(SUM + 1)}")
        A(f"v_min_u32 {v(SUM)}, -2, {v(SUM)}")
        A(f"buffer_store_dword {v(SUM)}, {v(PUBV)}, {s(SWS, 4)}, {s(S_CUR)} offen{loc}")
        stamp(A, cfg, 2)
        flush_stamps(A, cfg, 8, 124, 125)
        A(f"s_cmp_eq_u32 {s(S_STEP)}, {cfg.nsteps - 1}")
        A(f"s_cbranch_scc1 {end}")
        if cfg.rpos == 2:
            clear_inbox()
        for reg in (PUBK, PUBV):
            A(f"buffer_store_dword {v(SENT)}, {v(reg)}, {s(SWS, 4)}, {s(S_RST)} offen{loc}")
        r1 = A.new("r1")
        A(f"s_cmp_lt_u32 {s(S_WAVE)}, 2")
        A(f"s_cbranch_scc1 {r1}")
        A(f"buffer_store_dwordx2 {v(SENT, 2)}, {v(PUBM)}, {s(SWS, 4)}, {s(S_RST)} offen{loc}")
        A.label(r1)
        for q in range(24):
            A(f"v_pk_mul_f32 {v(ACK + 2 * q, 2)}, 0, 0")
        A(f"v_add_u32 {v(TAGV)}, 1, {v(TAGV)}")
        A(f"s_and_b32 {s(S_T0)}, {s(S_STEP)}, 3")
        x_offsets(A, cfg, S_XC, S_T0)
        if cfg.rpos < 3:
            A(f"s_add_u32 {s(S_T0)}, {s(S_STEP)}, 3")
            A(f"s_and_b32 {s(S_T0)}, {s(S_T0)}, 3")
            x_offsets(A, cfg, S_XR, S_T0)
        A(f"s_and_b32 {s(S_T0)}, {s(S_TAG)}, 3")
        A(f"s_lshl_b32 {s(S_T0)}, {s(S_T0)}, 16")
        A(f"s_add_u32 {s(S_NXT)}, {s(S_T0)}, {s(S_RBASE)}")
        if cfg.use_fo:
            flag_wait(A, cfg, FOR, FBUF, 2, end)
        gather(ldo)
        use, fast = proj(ACO, WO)
        done, slow2 = fsm_poll(A, 4, ldo, chk4, use, end, fast=fast, onfail=onfail(3))
        A.label(done)
        stamp(A, cfg, 3)
        A.nop(5)
        half_sums(ACO, RO, OPL)
        heat(A, HT, cfg.hw)
        loader = A.new("xl")
        A(f"s_cmp_ge_u32 {s(S_WAVE)}, 2")
        A(f"s_cbranch_scc1 {loader}")

        def own_sum():
            for w in range(4):
                for p in range(2):
                    A(f"ds_read_b64 {v(RD + 4 * w + 2 * p, 2)}, {v(LRO)} offset:{RO + w * WS + OPL(p, 0)}")
            A("s_waitcnt lgkmcnt(4)" if cfg.trace != 1 else "s_waitcnt lgkmcnt(0)")
            for h2 in range(2):
                A(f"v_pk_add_f32 {v(RD + 2 * h2, 2)}, {v(RD + 2 * h2, 2)}, {v(RD + 4 + 2 * h2, 2)}")
            A("s_waitcnt lgkmcnt(0)")
            for h2 in range(2):
                A(f"v_pk_add_f32 {v(RD + 8 + 2 * h2, 2)}, {v(RD + 8 + 2 * h2, 2)}, {v(RD + 12 + 2 * h2, 2)}")
            for h2 in range(2):
                A(f"v_pk_add_f32 {v(SUM + 2 * h2, 2)}, {v(RD + 2 * h2, 2)}, {v(RD + 8 + 2 * h2, 2)}")
        A.c("waves 0,1 send this group's partial sums to the other groups")
        A("s_waitcnt lgkmcnt(0)")
        A("s_barrier")
        own_sum()
        if cfg.xbf:
            for h2 in range(2):
                A(f"v_cvt_pk_bf16_f32 {v(SUM + h2)}, {v(SUM + 2 * h2)}, {v(SUM + 2 * h2 + 1)}")
        for i in range(XN):
            A(f"v_min_u32 {v(SUM + i)}, -2, {v(SUM + i)}")
        for rr in range(cfg.nrep):
            A(f"buffer_store_dwordx{XN} {v(SUM, XN)}, {v(XOWN)}, {s(SWS, 4)}, {s(S_XC + rr)} offen sc1")
            if rr == 0:
                stamp(A, cfg, 4)
        if cfg.use_fm:
            heat(A, HT, cfg.fm_delay)
            A(f"buffer_store_dword {v(TAGV)}, {v(FMW)}, {s(SWS, 4)}, {s(S_FB)} offen{loc}")
        A(f"s_add_u32 {s(S_STEP)}, {s(S_STEP)}, 1")
        A(f"s_branch {top}")
        A.label(loader)
        A.c("waves 2,3 add the other groups' partial sums and publish the new memory")
        A("s_waitcnt lgkmcnt(0)")
        A("s_barrier")
        XB = (XL, XL + 12, AP)
        NB = cfg.xdepth

        def ldx(k):
            for j in range(3):
                A(f"buffer_load_dwordx{XN} {v(XB[k % NB] + XN * j, XN)}, {v(XP + j)}, {s(SWS, 4)}, "
                  f"{s(S_XC + k % cfg.nrep)} offen sc1")
        heat(A, HT, cfg.xdelay)
        stamp(A, cfg, 6)
        ldx(0)
        if NB > 1:
            heat(A, HT, cfg.xgap)
            ldx(1)
        own_sum()
        if cfg.xbf:
            for h2 in range(2):
                A(f"v_cvt_pk_bf16_f32 {v(RD + h2)}, {v(SUM + 2 * h2)}, {v(SUM + 2 * h2 + 1)}")
            for h2 in range(2):
                A(f"v_lshlrev_b32 {v(SUM + 2 * h2)}, 16, {v(RD + h2)}")
                A(f"v_and_b32 {v(SUM + 2 * h2 + 1)}, 0xffff0000, {v(RD + h2)}")
        x2, xsum = A.new("x2"), A.new("xs")

        def final(x):
            check(A, x, 3 * XN, CHK)
            if cfg.xbf:
                for j in range(3):
                    for i in range(4):
                        A(f"v_dot2_f32_bf16 {v(RD + i)}, {v(x + 2 * j + (i >> 1))}, {s(S_LO1 + (i & 1))}, "
                          f"{v((RD if j else SUM) + i)}")
                A("s_nop 1")
            else:
                for h2 in range(2):
                    A(f"v_pk_add_f32 {v(RD + 4 + 2 * h2, 2)}, {v(SUM + 2 * h2, 2)}, {v(x + 2 * h2, 2)}")
                    A(f"v_pk_add_f32 {v(RD + 2 * h2, 2)}, {v(x + 4 + 2 * h2, 2)}, {v(x + 8 + 2 * h2, 2)}")
                for h2 in range(2):
                    A(f"v_pk_add_f32 {v(RD + 2 * h2, 2)}, {v(RD + 4 + 2 * h2, 2)}, {v(RD + 2 * h2, 2)}")
            for h2 in range(2):
                A(f"v_cvt_pk_bf16_f32 {v(RD + h2)}, {v(RD + 2 * h2)}, {v(RD + 2 * h2 + 1)}")
            for h2 in range(2):
                A(f"v_min_u32 {v(RD + h2)}, -2, {v(RD + h2)}")
        if NB > 2:
            heat(A, HT, cfg.xgap2)
            ldx(2)
        heat(A, HT, cfg.xfill)
        A(f"s_waitcnt vmcnt({3 * (NB - 1)})")
        stamp(A, cfg, 7)
        final(XL)
        A(f"s_cbranch_vccnz {x2}")
        A.label(xsum)
        A(f"buffer_store_dwordx2 {v(RD, 2)}, {v(PUBM)}, {s(SWS, 4)}, {s(S_NXT)} offen{loc}")
        stamp(A, cfg, 5)
        A(f"s_add_u32 {s(S_STEP)}, {s(S_STEP)}, 1")
        A.c("the loader waves time their first read from their own store")
        ring_slots(A)
        heat(A, HT, cfg.mdelay)
        A(f"s_branch {top3}")
        A.label(x2)
        count(A, cfg, 0)
        for k in range(6):
            ldx(k + NB)
            A(f"s_waitcnt vmcnt({3 * (NB - 1)})")
            final(XB[(k + 1) % NB])
            A(f"s_cbranch_vccz {xsum}")
            count(A, cfg, 1)
        spend(A, end)
        A(f"s_branch {x2}")
        slow1()
        slow2()

    A.c("all members of the group share one L2: hand-offs inside the group use plain stores")
    body("")
    A.label(slow_lbl)
    A.c("some member runs on another die: every hand-off is written through")
    body(" sc1")


def q_role(A, cfg, end):
    WIN = 0
    VG, VK, VVA, VVB, VO, IDX, LW, LR, QW, QR = 10, 11, 12, 13, 14, 15, 16, 18, 19, 20
    PFG, RDK, RDQ, RDVA, RDVB, OTA, OTB = 21, 22, 23, 24, 25, 26, 27
    FMR, FOW, FBUF, TAGV, XCL, POW, PQA, PQV, PQB = 192, 193, 194, 197, 198, 199, 208, 209, 210
    SENT, ONES, BIAS, CHK, T1, T2, T3 = 28, 32, 36, 44, 45, 46, 47
    AP, ACQ = 48, 64
    SX, SMM, RD, PX, LA, TM = 64, 72, 76, 76, 84, 88
    QOP, OA, KC, VM, PK = 96, 96, 112, 120, 124
    ST = 128
    SLOT0, SLOTX = 32768, 0x18000
    WQ = 256
    RQ, RB, WS = 0, 20480, 5120
    QPL = lambda n, b: 4 * (n * 160 + b * 96)
    HT = 200
    TID, LANE = 48, 49
    S_HEAD, S_PARW, S_EH, S_LDS, S_PQ, S_NEED = 54, 55, 56, 57, 58, 27
    A.c("Q role: q projection and attention of one head")
    if cfg.gate:
        A("s_memrealtime s[90:91]")
    A(f"v_mov_b32 {v(TID)}, v0")
    A(f"v_mov_b32 v50, v1")
    LANE = 50
    A(f"s_lshl_b32 {s(S_HEAD)}, {s(S_GRP)}, 3")
    A(f"s_add_u32 {s(S_HEAD)}, {s(S_HEAD)}, {s(S_TK)}")
    A(f"s_and_b32 {s(S_PARW)}, {s(S_WAVE)}, 1")
    A(f"s_lshr_b32 {s(S_EH)}, {s(S_WAVE)}, 1")
    A(f"s_lshl_b32 {s(S_RBASE)}, {s(S_GRP)}, 18")
    A(f"s_add_u32 {s(S_RBASE)}, {s(S_RBASE)}, {L.LRING}")
    A(f"s_lshl_b32 {s(S_T0)}, {s(S_WAVE)}, 12")
    A(f"v_lshl_add_u32 {v(VG)}, {v(LANE)}, 4, {s(S_T0)}")
    A(f"s_lshl_b32 {s(S_T0)}, {s(S_TK)}, 11")
    A(f"s_add_u32 {s(S_T1)}, {s(S_T0)}, 16384")
    A(f"v_lshl_add_u32 {v(VK)}, {v(LANE)}, 4, {s(S_T1)}")
    A(f"s_lshl_b32 {s(S_T1)}, {s(S_EH)}, 10")
    A(f"s_add_u32 {s(S_T0)}, {s(S_T0)}, {s(S_T1)}")
    A(f"s_lshl_b32 {s(S_T1)}, {s(S_PARW)}, 3")
    A(f"s_add_u32 {s(S_T1)}, {s(S_T1)}, {s(S_T0)}")
    A(f"s_add_u32 {s(S_T1)}, {s(S_T1)}, 32768")
    A(f"v_lshl_add_u32 {v(VVA)}, {v(LANE)}, 4, {s(S_T1)}")
    A(f"v_xor_b32 {v(VVB)}, 8, {v(VVA)}")
    A(f"s_lshl_b32 {s(S_T1)}, {s(S_PARW)}, 9")
    A(f"s_add_u32 {s(S_T1)}, {s(S_T1)}, {s(S_T0)}")
    A(f"s_add_u32 {s(S_T1)}, {s(S_T1)}, 49152")
    A(f"v_bfe_u32 v51, {v(LANE)}, 5, 1")
    A(f"v_lshl_add_u32 {v(VO)}, v51, 8, {s(S_T1)}")
    A(f"v_and_b32 v51, 7, {v(LANE)}")
    A(f"v_lshl_add_u32 {v(VO)}, v51, 5, {v(VO)}")
    A(f"v_and_b32 v51, 16, {v(LANE)}")
    A(f"v_add_u32 {v(VO)}, {v(VO)}, v51")
    A(f"v_bfe_u32 v51, {v(LANE)}, 3, 1")
    A(f"v_lshl_add_u32 {v(VO)}, v51, 30, {v(VO)}")
    A(f"v_and_b32 v51, 1, {v(LANE)}")
    A(f"v_mul_u32_u24 v51, 0xaaaa, v51")
    A(f"v_add_u32 {v(IDX)}, 0x4444, v51")
    for i in range(8):
        A(f"v_mov_b32 {v(HT + i)}, 0")
    A(f"v_bfe_u32 v51, {v(LANE)}, 1, 2")
    A(f"v_lshlrev_b32 v51, 4, v51")
    A(f"v_bfe_u32 v52, {v(LANE)}, 3, 2")
    A(f"v_lshl_add_u32 v51, v52, 2, v51")
    A(f"v_and_b32 v53, 1, {v(LANE)}")
    A(f"v_lshlrev_b32 v51, 2, v51")
    A(f"v_mul_u32_u24 v53, {QPL(0, 1)}, v53")
    A(f"v_lshrrev_b32 v54, 5, {v(LANE)}")
    A(f"v_mul_u32_u24 v52, {QPL(1, 0)}, v54")
    A(f"v_add3_u32 v51, v51, v52, v53")
    A(f"s_mul_i32 {s(S_T0)}, {s(S_WAVE)}, {QPL(2, 0)}")
    A(f"v_add_u32 {v(LR)}, {s(S_T0)}, v51")
    A(f"v_and_b32 v51, 31, {v(LANE)}")
    A(f"v_lshlrev_b32 v51, 4, v51")
    A(f"v_lshl_add_u32 v51, v54, 3, v51")
    A(f"s_lshl_b32 {s(S_T0)}, {s(S_WAVE)}, 9")
    A(f"v_add_u32 {v(QW)}, {s(S_T0)}, v51")
    A(f"v_lshrrev_b32 v51, 4, {v(LANE)}")
    A(f"v_and_b32 v52, 7, {v(LANE)}")
    A(f"v_lshlrev_b32 v52, 4, v52")
    A(f"v_lshl_add_u32 {v(QR)}, v51, 7, v52")
    A(f"v_lshlrev_b32 v51, 4, {v(LANE)}")
    A(f"s_mul_i32 {s(S_T0)}, {s(S_WAVE)}, 6144")
    A(f"v_add_u32 {v(PFG)}, {s(S_T0)}, v51")
    A(f"s_add_u32 {s(S_LDS)}, {s(S_T0)}, {SLOT0}")
    A(f"v_add_u32 {v(RDK)}, {SLOT0 + 8192}, v51")
    A(f"s_lshl_b32 {s(S_T0)}, {s(S_PARW)}, 12")
    A(f"s_add_u32 {s(S_T0)}, {s(S_T0)}, {SLOT0}")
    A(f"v_add_u32 {v(RDQ)}, {s(S_T0)}, v51")
    A(f"s_lshl_b32 {s(S_T0)}, {s(S_WAVE)}, 11")
    A(f"s_add_u32 {s(S_T0)}, {s(S_T0)}, {SLOT0 + 16384}")
    A(f"v_add_u32 {v(RDVA)}, {s(S_T0)}, v51")
    A(f"v_xor_b32 {v(RDVB)}, 2048, {v(RDVA)}")
    A(f"s_lshl_b32 {s(S_FB)}, {s(S_GRP)}, 12")
    A(f"s_add_u32 {s(S_FB)}, {s(S_FB)}, {L.FLAGS}")
    A(f"s_lshl_b32 {s(S_T0)}, {s(S_WAVE)}, 8")
    A(f"v_lshl_add_u32 {v(FMR)}, {v(LANE)}, 2, {s(S_T0)}")
    A(f"s_lshr_b32 {s(S_T0)}, {s(S_TK)}, 1")
    A(f"s_lshl_b32 {s(S_T0)}, {s(S_T0)}, 8")
    A(f"s_and_b32 {s(S_T1)}, {s(S_TK)}, 1")
    A(f"s_lshl_b32 {s(S_T1)}, {s(S_T1)}, 2")
    A(f"s_add_u32 {s(S_T0)}, {s(S_T0)}, {s(S_T1)}")
    A(f"s_add_u32 {s(S_T0)}, {s(S_T0)}, 2048")
    A(f"v_min_u32 v52, 1, {v(TID)}")
    A(f"v_lshl_add_u32 {v(FOW)}, v52, 30, {s(S_T0)}")
    A(f"v_mov_b32 {v(TAGV)}, 0")
    A(f"buffer_store_dword {v(TAGV)}, {v(FOW)}, {s(SWS, 4)}, {s(S_FB)} offen sc1")
    XN = 2 if cfg.xbf else 4
    A(f"s_lshr_b32 {s(S_T0)}, {s(S_TK)}, {2 if cfg.xbf else 1}")
    A(f"s_lshl_b32 {s(S_T0)}, {s(S_T0)}, 14")
    A(f"s_and_b32 {s(S_T1)}, {s(S_TK)}, {3 if cfg.xbf else 1}")
    A(f"s_lshl_b32 {s(S_T1)}, {s(S_T1)}, {11 if cfg.xbf else 12}")
    A(f"s_add_u32 {s(S_T0)}, {s(S_T0)}, {s(S_T1)}")
    A(f"s_lshl_b32 {s(S_T1)}, {s(S_GRP)}, 16")
    A(f"s_add_u32 {s(S_T0)}, {s(S_T0)}, {s(S_T1)}")
    A(f"v_lshl_add_u32 {v(XCL)}, {v(TID)}, {3 if cfg.xbf else 4}, {s(S_T0)}")
    A(f"s_lshl_b32 {s(S_T0)}, {s(S_HEAD)}, 2")
    A(f"s_add_u32 {s(S_T0)}, {s(S_T0)}, {s(S_WAVE)}")
    A(f"s_lshl_b32 {s(S_T0)}, {s(S_T0)}, 11")
    A(f"s_lshl_b32 {s(S_T1)}, {s(S_PARW)}, 10")
    A(f"s_add_u32 {s(S_T0)}, {s(S_T0)}, {s(S_T1)}")
    A(f"v_add_u32 {v(OTA)}, {s(S_T0)}, v51")
    A(f"v_xor_b32 {v(OTB)}, 2048, {v(OTA)}")
    progress_addr(A, POW, LANE, L.PO, S_HEAD, 52)
    A(f"buffer_store_dword {v(TAGV)}, {v(POW)}, {s(SWS, 4)}, 0 offen sc1")
    lines_addr(A, 53, LANE, 10)
    A(f"s_lshl_b32 {s(S_T0)}, {s(S_HEAD)}, 8")
    A(f"s_add_u32 {s(S_T0)}, {s(S_T0)}, {L.PQ}")
    A(f"v_add_u32 {v(PQA)}, {s(S_T0)}, v53")
    A(f"s_lshl_b32 {s(S_T0)}, {s(S_GRP)}, 10")
    A(f"s_add_u32 {s(S_T0)}, {s(S_T0)}, {L.PB - 256}")
    A(f"v_add_u32 v53, {s(S_T0)}, v53")
    A(f"v_cmp_lt_u32 vcc, 1, {v(LANE)}")
    A("s_nop 1")
    A(f"v_cndmask_b32 {v(PQA)}, {v(PQA)}, v53, vcc")
    A(f"v_cndmask_b32 {v(PQB)}, 0, 8, vcc")
    for i in range(4):
        A(f"v_mov_b32 {v(SENT + i)}, -1")
        A(f"v_mov_b32 {v(ONES + i)}, 0x3f803f80")
    A(f"v_and_b32 v51, 15, {v(LANE)}")
    A(f"s_lshl_b32 {s(S_T0)}, {s(S_PARW)}, 4")
    A(f"v_add_u32 v51, {s(S_T0)}, v51")
    A(f"v_lshrrev_b32 v52, 4, {v(LANE)}")
    A(f"v_lshlrev_b32 v52, 2, v52")
    A(f"v_mov_b32 v54, 0xf149f2ca")
    for T in range(2):
        for q in range(4):
            A(f"v_add_u32 v53, {16 * T + q}, v52")
            A(f"v_cmp_gt_u32 vcc, v53, v51")
            A("s_nop 1")
            A(f"v_cndmask_b32 {v(BIAS + 4 * T + q)}, 0, v54, vcc")
    for i in range(10):
        A(f"v_mov_b32 {v(WIN + i)}, 0")
    A(f"s_mov_b32 {s(S_C)}, 0x3e0293ee")
    A(f"s_mov_b32 {s(S_NC)}, 0xbe0293ee")
    for slot in range(4):
        A(f"s_add_u32 {s(S_T0)}, {s(S_RBASE)}, {slot << 16}")
        A(f"buffer_store_dwordx4 {v(SENT, 4)}, {v(VO)}, {s(SWS, 4)}, {s(S_T0)} offen sc1")
    A(f"s_lshl_b32 {s(S_T2)}, {s(S_IRR)}, 16")
    A(f"s_or_b32 {s(S_T2)}, {s(S_T2)}, 1")
    arrive(A, S_T2)
    weight_addr_regs(A, LANE, 51, 52, 53, 54, 55, 56)
    A.srd(SW, P_WQ, SIZE["Wq"])
    chunks = []
    for j in range(4):
        for hf in range(2):
            def setup(j=j, hf=hf):
                A(f"s_lshl_b32 {s(S_T1)}, {s(S_WAVE)}, 21")
                A(f"s_lshl_b32 {s(S_T0)}, {s(S_HEAD)}, 8")
                A(f"s_add_u32 {s(S_T1)}, {s(S_T1)}, {s(S_T0)}")
                A(f"s_add_u32 {s(S_T1)}, {s(S_T1)}, {j * 64 * 8192 + hf * 128}")
            chunks.append((setup, 8192, "P", (lambda n, j=j, hf=hf: WQ + (j * 8 + hf * 4 + n) * 8)))
    load_weights(A, chunks[::-1] if cfg.meet else chunks, {8192: 51}, {"P": 53}, WFLAG[cfg.wlo], None, cfg.ramp_lo)
    cfg.mark(A, 1)
    await_start(A, end)
    cfg.mark(A, 2)
    if cfg.gate:
        gl = A.new("gate")
        A.label(gl)
        A("s_memrealtime s[92:93]")
        A("s_waitcnt lgkmcnt(0)")
        A("s_sub_u32 s92, s92, s90")
        A(f"s_cmp_lt_u32 s92, {cfg.gate * 100}")
        A(f"s_cbranch_scc1 {gl}")
    A(f"s_mul_i32 {s(S_PF)}, {s(S_HEAD)}, 24576")
    A(f"s_add_u32 {s(S_PF)}, {s(S_PF)}, {L.QKV}")
    A(f"s_mov_b32 {s(S_STEP)}, 0")

    def prefetch():
        A(f"s_mov_b32 m0, {s(S_LDS)}")
        A(f"s_add_u32 {s(S_T0)}, {s(S_PF)}, 3072")
        for j in range(3):
            A(f"buffer_load_dwordx4 {v(PFG)}, {s(SWS, 4)}, {s(S_PF)} offen offset:{1024 * j} sc1 lds")
        A(f"s_add_u32 m0, {s(S_LDS)}, 3072")
        A(f"s_xor_b32 {s(S_LDS)}, {s(S_LDS)}, {SLOTX}")
        for j in range(3):
            A(f"buffer_load_dwordx4 {v(PFG)}, {s(SWS, 4)}, {s(S_T0)} offen offset:{1024 * j} sc1 lds")
        A(f"s_add_u32 {s(S_PF)}, {s(S_PF)}, {32 * 24576}")

    def operands():
        for i in range(8):
            A(f"ds_read_b128 {v(ST + 4 * i, 4)}, {v(RDK)} offset:{1024 * i}")
        for p, reg in ((0, RDVA), (1, RDVB)):
            for t in range(2):
                A(f"ds_read_b128 {v(ST + 32 + 8 * p + 4 * t, 4)}, {v(reg)} offset:{1024 * t}")
        for ks in range(4):
            A(f"ds_read_b128 {v(ST + 48 + 4 * ks, 4)}, {v(RDQ)} offset:{1024 * ks}")
        for reg in (RDK, RDVA, RDVB, RDQ):
            A(f"v_xor_b32 {v(reg)}, {SLOTX}, {v(reg)}")

    ldpq = lambda: A(f"buffer_load_dword {v(PQV)}, {v(PQA)}, {s(SWS, 4)}, 0 offen sc1")

    def tstpq():
        A(f"v_add_u32 {v(PQV)}, {v(PQV)}, {v(PQB)}")
        A(f"v_cmp_gt_u32 vcc, {s(S_NEED)}, {v(PQV)}")
    for i in range(2):
        if not cfg.solo:
            A(f"s_mov_b32 {s(S_NEED)}, {i + 1}")
            block_on(A, ldpq, tstpq, end)
        prefetch()
    if not cfg.solo:
        ldpq()
    A(f"s_waitcnt vmcnt({6 if cfg.solo else 7})")
    A("s_barrier")
    slow_lbl = A.new("q_sc1")
    A(f"s_cmp_lg_u32 {s(S_IRR)}, 0")
    A(f"s_cbranch_scc1 {slow_lbl}")

    def score_x(qreg, bias, before=None):
        for ks in range(4):
            if before:
                before(ks)
            for T in range(2):
                c = v(SX + 4 * T, 4) if ks else (v(BIAS + 4 * T, 4) if bias else "0")
                A(f"{MF} {v(SX + 4 * T, 4)}, {v(ST + 16 * T + 4 * ks, 4)}, {v(qreg + 4 * ks, 4)}, {c}")

    def max_x():
        A(f"v_max3_f32 {v(T1)}, {v(SX)}, {v(SX + 1)}, {v(SX + 2)}")
        A(f"v_max3_f32 {v(T1)}, {v(T1)}, {v(SX + 3)}, {v(SX + 4)}")
        A(f"v_max3_f32 {v(T1)}, {v(T1)}, {v(SX + 5)}, {v(SX + 6)}")
        A(f"v_max_f32 {v(T1)}, {v(T1)}, {v(SX + 7)}")

    def softmax(hook=lambda pos: None):
        A(f"v_add_f32 {v(SMM)}, {v(SMM)}, {v(SMM + 1)}")
        A(f"v_add_f32 {v(SMM + 1)}, {v(SMM + 2)}, {v(SMM + 3)}")
        A(f"v_max3_f32 {v(T2)}, {v(T1)}, {v(SMM)}, {v(SMM + 1)}")
        A(f"v_max3_f32 {v(T3)}, {v(T1)}, {v(SMM)}, {v(SMM + 1)}")
        hook(0)
        A("s_nop 1")
        A(f"v_permlane32_swap_b32 {v(T2)}, {v(T3)}")
        A("s_nop 0")
        A(f"v_max_f32 {v(T1)}, {v(T2)}, {v(T3)}")
        A(f"v_max_f32 {v(T2)}, {v(T2)}, {v(T3)}")
        A("s_nop 1")
        A(f"v_permlane16_swap_b32 {v(T1)}, {v(T2)}")
        A("s_nop 0")
        A(f"v_max_f32 {v(T1)}, {v(T1)}, {v(T2)}")
        A(f"v_mul_f32 {v(T2)}, {s(S_NC)}, {v(T1)}")
        hook(1)
        for i in range(5):
            A(f"v_pk_fma_f32 {v(SX + 2 * i, 2)}, {v(SX + 2 * i, 2)}, {s(S_C, 2)}, {v(T2, 2)} op_sel_hi:[1,0,0]")
        for i in range(10):
            A(f"v_exp_f32 {v(SX + i)}, {v(SX + i)}")
            if i == 4:
                hook(2)
        hook(3)
        for i in range(4):
            A(f"v_cvt_pk_bf16_f32 {v(PX + i)}, {v(SX + 2 * i)}, {v(SX + 2 * i + 1)}")
        A(f"v_cvt_pk_bf16_f32 {v(WIN + 2)}, {v(SMM)}, {v(SMM + 1)}")
        A(f"v_cvt_pk_bf16_f32 {v(WIN + 7)}, {v(SMM)}, {v(SMM + 1)}")

    WOFF = (2, 6, 0, 4)

    def scale(n):
        for i in range(n // 2):
            A(f"v_pk_mul_f32 {v(OA + 2 * i, 2)}, {v(OA + 2 * i, 2)}, {v(T2, 2)} op_sel_hi:[1,0]")

    def pv(nt, pre=None, post=None, hook=lambda pos: None):
        st = ST
        A(f"{MF} {v(LA, 4)}, {v(ONES, 4)}, {v(PX, 4)}, 0")
        for t in range(nt):
            if pre and t == cfg.vchk:
                pre()
            A(f"{MF} {v(OA + 4 * t, 4)}, {v(st + 32 + 4 * t, 4)}, {v(PX, 4)}, 0")
        if pre and cfg.vchk == 2:
            pre()
        A(f"{MF} {v(LA, 4)}, {v(ONES, 4)}, {v(WIN + WOFF[0], 4)}, {v(LA, 4)}")
        if post:
            post()
        hook(5)
        for t in range(nt):
            A(f"{MF} {v(OA + 4 * t, 4)}, {v(VM, 4)}, {v(WIN + WOFF[t], 4)}, {v(OA + 4 * t, 4)}")
        hook(6)
        heat(A, HT, 1)
        A.nop(7 - nt)
        A(f"v_rcp_f32 {v(T2)}, {v(LA)}")
        A("s_nop 0")

    def body(loc):
        top = A.new("q")
        ldm = lambda i: A(f"buffer_load_dwordx4 {v(AP + 4 * i, 4)}, {v(VG)}, {s(SWS, 4)}, {s(S_CUR)} offen offset:{1024 * i} sc1")
        ldk = lambda i: A(f"buffer_load_dwordx4 {v(AP + 4 * i, 4)}, {v(VK)}, {s(SWS, 4)}, {s(S_CUR)} offen offset:{1024 * (i & 1)} sc1")

        def ldv():
            A(f"buffer_load_dwordx2 {v(VM, 2)}, {v(VVA)}, {s(SWS, 4)}, {s(S_CUR)} offen sc1")
            A(f"buffer_load_dwordx2 {v(VM + 2, 2)}, {v(VVB)}, {s(SWS, 4)}, {s(S_CUR)} offen sc1")
        A.label(top)
        operands()
        A(f"s_mul_i32 m0, {s(S_WAVE)}, {WS}")
        ring_slots(A)
        for q in range(16):
            A(f"v_pk_mul_f32 {v(ACQ + 2 * q, 2)}, 0, 0")
        A.c("the previous segment's token rows are acknowledged: publish them")
        A("s_waitcnt vmcnt(0)")
        A(f"buffer_store_dword {v(TAGV)}, {v(POW)}, {s(SWS, 4)}, 0 offen{loc}")
        A(f"v_add_u32 {v(TAGV)}, 1, {v(TAGV)}")
        if cfg.use_fm:
            flag_wait(A, cfg, FMR, FBUF, 4, end)
        for i in range(4):
            ldm(i)
            heat(A, HT, cfg.lspace if i < 3 else cfg.ltail)

        fq = lambda j, lo, hi: [A(f"{SM} {v(ACQ + 4 * n, 4)}, {v(AP + 4 * j, 4)}, {r(WQ + (j * 8 + n) * 8, 8)}, {v(IDX)}")
                                for n in range(lo, hi)]
        chk4 = lambda i: check(A, AP + 4 * i, 4, CHK)
        ad = lambda i: A(f"v_add_f32 {v(ACQ + 2 * i)}, {v(ACQ + 2 * i)}, {v(ACQ + 2 * i + 1)}")
        wr = lambda i: A(f"ds_write_addtid_b32 {v(ACQ + 2 * i)} offset:{RQ + QPL(i >> 1, i & 1)}")

        def plain_tail():
            A("s_nop 0")
            for i in range(4):
                ad(i)
            for i in range(16):
                if i < 12:
                    ad(i + 4)
                wr(i)

        def last_piece():
            na = nw = 0
            for n in range(8):
                fq(3, n, n + 1)
                if n < 3:
                    A("s_nop 1")
                    continue
                ad(na), ad(na + 1)
                na += 2
                if n > 3:
                    for _ in range(cfg.qpipe - 1):
                        wr(nw)
                        nw += 1
            stamp(A, cfg, 0)
            while nw < 16:
                wr(nw)
                nw += 1
                if na < 16:
                    ad(na)
                    na += 1
        joined = A.new("qj")
        done, slow1 = fsm_poll(A, 4, ldm, chk4, lambda j, rest: fq(j, 0, 8), end,
                               fast=(lambda j: fq(j, 0, cfg.qsplit) if j < 3 or not cfg.qpipe else None,
                                     lambda j: fq(j, cfg.qsplit, 8) if j < 3 or not cfg.qpipe else last_piece()),
                               onfail=lambda first: (count(A, cfg, 2) if first else None, heat(A, HT, 1)))
        qdone = done
        if not cfg.qpipe:
            A.label(done)
            stamp(A, cfg, 0)
            plain_tail()
        A.label(joined)
        heat(A, HT, cfg.hw)
        A("s_waitcnt lgkmcnt(0)")
        A("s_barrier")
        for w in range(4):
            A(f"ds_read_b128 {v(RD + 4 * w, 4)}, {v(LR)} offset:{RQ + w * WS}")
        for i in range(4):
            A(f"v_mov_b32 {v(SMM + i)}, 0")

        def ldkc():
            for p in range(2):
                A(f"buffer_load_dwordx4 {v(KC + 4 * p, 4)}, {v(VK)}, {s(SWS, 4)}, {s(S_CUR)} offen offset:{1024 * p} sc1")
        if cfg.kpos == 0:
            ldkc()
        heat(A, HT, cfg.hr - 1)
        A("s_waitcnt lgkmcnt(0)")
        for h2 in range(2):
            A(f"v_pk_add_f32 {v(RD + 2 * h2, 2)}, {v(RD + 2 * h2, 2)}, {v(RD + 4 + 2 * h2, 2)}")
            A(f"v_pk_add_f32 {v(RD + 8 + 2 * h2, 2)}, {v(RD + 8 + 2 * h2, 2)}, {v(RD + 12 + 2 * h2, 2)}")
        for h2 in range(2):
            A(f"v_pk_add_f32 {v(RD + 2 * h2, 2)}, {v(RD + 2 * h2, 2)}, {v(RD + 8 + 2 * h2, 2)}")
        A(f"v_cvt_pk_bf16_f32 {v(RD)}, {v(RD)}, {v(RD + 1)}")
        A(f"v_cvt_pk_bf16_f32 {v(RD + 1)}, {v(RD + 2)}, {v(RD + 3)}")
        A(f"ds_write_b64 {v(QW)}, {v(RD, 2)} offset:{RB}")
        if cfg.kpos == 1:
            ldkc()
        heat(A, HT, cfg.hw)
        A("s_waitcnt lgkmcnt(0)")
        A("s_barrier")
        for ks in range(4):
            A(f"ds_read_b128 {v(QOP + 4 * ks, 4)}, {v(QR)} offset:{RB + ks * 512}")
        if cfg.kpos == 2:
            ldkc()
        heat(A, HT, 2)

        def qwait(ks):
            A(f"s_waitcnt lgkmcnt({3 - ks})")
            if ks in (1, 2):
                ldk(ks - 1)
            if ks == 3:
                A("s_waitcnt vmcnt(2)")
                check(A, KC, 8, CHK)
        score_x(QOP, False, qwait)
        stamp(A, cfg, 1)
        kre, kok = A.new("kr"), A.new("ko")
        A(f"s_cbranch_vccnz {kre}")
        for p in range(2):
            A(f"{SM} {v(SMM, 4)}, {v(KC + 4 * p, 4)}, {v(QOP + 8 * p, 8)}, {v(IDX)}")
        A.label(kok)
        stamp(A, cfg, 2)
        if cfg.vpos < 0:
            ldv()
        A.nop(4 if cfg.vpos >= 0 else 2)
        max_x()

        def hook(pos):
            if pos == cfg.vpos:
                ldv()
            if cfg.use_fo and pos == cfg.fo_pos:
                A(f"buffer_store_dword {v(TAGV)}, {v(FOW)}, {s(SWS, 4)}, {s(S_FB)} offen{loc}")
        softmax(hook)
        vre, vok = A.new("vr"), A.new("vo")

        def wait_v():
            A(f"s_waitcnt vmcnt({1 if cfg.use_fo and 4 >= cfg.fo_pos >= cfg.vpos else 0})")
            check(A, VM, 4, CHK)

        def test_v():
            A(f"s_cbranch_vccnz {vre}")
            A.label(vok)
        hook(4)
        pv(2, wait_v, test_v, hook)
        scale(8)
        for i in range(4):
            A(f"v_cvt_pk_bf16_f32 {v(PK + i)}, {v(OA + 2 * i)}, {v(OA + 2 * i + 1)}")
        for i in range(4):
            A(f"v_min_u32 {v(PK + i)}, -2, {v(PK + i)}")
        A(f"buffer_store_dwordx4 {v(PK, 4)}, {v(VO)}, {s(SWS, 4)}, {s(S_CUR)} offen{loc}")
        stamp(A, cfg, 3)
        A.c("off the recurrence path: operands of segment s+2, token rows of this segment")
        A("s_barrier")
        A(f"buffer_store_dwordx4 {v(SENT, 4)}, {v(VO)}, {s(SWS, 4)}, {s(S_RST)} offen{loc}")
        nopf = A.new("np")
        A(f"s_cmp_ge_u32 {s(S_STEP)}, {cfg.nsteps - 2}")
        A(f"s_cbranch_scc1 {nopf}")
        pqw, pqok = A.new("pw"), A.new("pk")
        if not cfg.solo:
            A(f"s_add_u32 {s(S_NEED)}, {s(S_STEP)}, 3")
            tstpq()
            A(f"s_cbranch_vccnz {pqw}")
            A.label(pqok)
        prefetch()
        if not cfg.solo:
            ldpq()
        if cfg.rpos == 3:
            A(f"s_add_u32 {s(S_T0)}, {s(S_STEP)}, 2")
            A(f"s_and_b32 {s(S_T0)}, {s(S_T0)}, 3")
            x_offsets(A, cfg, S_XR, S_T0)
            for rr in range(cfg.nrep):
                A(f"buffer_store_dwordx{XN} {v(SENT, XN)}, {v(XCL)}, {s(SWS, 4)}, {s(S_XR + rr)} offen sc1")
        A.label(nopf)
        for i in range(4):
            A(f"v_mov_b32 {v(SMM + i)}, 0")
        score_x(ST + 48, True)
        for p in range(2):
            A(f"{SM} {v(SMM, 4)}, {v(KC + 4 * p, 4)}, {v(ST + 48 + 8 * p, 8)}, {v(IDX)}")
        A(f"s_and_b32 {s(S_T0)}, {s(S_STEP)}, {63 if cfg.solo else 7}")
        A(f"s_lshl_b32 {s(S_T0)}, {s(S_T0)}, 18")
        A(f"s_add_u32 {s(S_OT)}, {s(S_T0)}, {L.OTOK}")
        A.nop(3)
        max_x()
        softmax()
        pv(4)
        scale(16)
        for i in range(8):
            A(f"v_cvt_pk_bf16_f32 {v(OA + i)}, {v(OA + 2 * i)}, {v(OA + 2 * i + 1)}")
        A(f"buffer_store_dwordx4 {v(OA, 4)}, {v(OTA)}, {s(SWS, 4)}, {s(S_OT)} offen{loc}")
        A(f"buffer_store_dwordx4 {v(OA + 4, 4)}, {v(OTB)}, {s(SWS, 4)}, {s(S_OT)} offen{loc}")
        stamp(A, cfg, 4, 2)
        if cfg.trace:
            A(f"s_memtime {s(S_STAMP + 10, 2)}")
        flush_stamps(A, cfg, 6, T2, T3, 2)
        A(f"s_add_u32 {s(S_STEP)}, {s(S_STEP)}, 1")
        A(f"s_cmp_lt_u32 {s(S_STEP)}, {cfg.nsteps}")
        A(f"s_cbranch_scc1 {top}")
        A("s_waitcnt vmcnt(0)")
        A(f"buffer_store_dword {v(TAGV)}, {v(POW)}, {s(SWS, 4)}, 0 offen{loc}")
        A(f"s_branch {end}")
        if not cfg.solo:
            A.label(pqw)
            block_on(A, ldpq, tstpq, end)
            A(f"s_branch {pqok}")
        if cfg.qpipe:
            A.label(qdone)
            stamp(A, cfg, 0)
            plain_tail()
            A(f"s_branch {joined}")
        slow1()
        A.label(kre)
        count(A, cfg, 0)
        ldk(2)
        ldk(3)

        def usekm(j, rest):
            p = j & 1
            if rest and (j ^ 2) not in rest:
                return
            A(f"{SM} {v(SMM, 4)}, {v(AP + 4 * j, 4)}, {v(QOP + 8 * p, 8)}, {v(IDX)}")
            for i in range(4):
                A(f"v_mov_b32 {v(KC + 4 * p + i)}, {v(AP + 4 * j + i)}")
        done, slow2 = fsm_poll(A, 4, ldk, chk4, usekm, end, lambda got: {x & 1 for x in got} == {0, 1})
        A.label(done)
        A(f"s_branch {kok}")
        slow2()
        A.label(vre)
        count(A, cfg, 1)
        ldv()
        spend(A, end)
        A("s_waitcnt vmcnt(0)")
        check(A, VM, 4, CHK)
        A(f"s_cbranch_vccnz {vre}")
        A(f"s_branch {vok}")

    body("")
    A.label(slow_lbl)
    body(" sc1")


def chain_kernel(A, cfg, name="chain_kernel"):
    end, kvo, other, noprobe = A.new("end"), A.new("kvo_role"), A.new("other"), A.new("np")
    A.kernel_begin(name)
    role_prologue(A, end)
    A(f"s_cmp_ge_u32 {s(S_GRP)}, 4")
    A(f"s_cbranch_scc1 {other}")
    A(f"s_cmp_ge_u32 {s(S_TK)}, 24")
    A(f"s_cbranch_scc1 {other}")
    A(f"s_cmp_ge_u32 {s(S_TK)}, 8")
    A(f"s_cbranch_scc1 {kvo}")
    q_role(A, cfg, end)
    A.label(other)
    A(f"s_mov_b32 {s(S_T2)}, 1")
    A(f"s_lshl_b32 {s(S_T0)}, {s(S_GRP)}, 8")
    A(f"s_or_b32 {s(S_T0)}, {s(S_T0)}, {s(S_TK)}")
    A(f"s_cmp_lg_u32 {s(S_T0)}, 24")
    A(f"s_cbranch_scc1 {noprobe}")
    probe(A, 1, S_T2)
    A.label(noprobe)
    arrive(A, S_T2)
    A.label(end)
    A("s_endpgm")
    A.label(kvo)
    kvo_role(A, cfg, end)
```

```python
from asmlib import *
import layout as L

SWS = 4


def xor_reduce(A, op, x, t, steps):
    for b in steps:
        if b >= 16:
            A(f"v_mov_b32 {v(t)}, {v(x)}")
            A("s_nop 1")
            A(f"v_permlane{b}_swap_b32 {v(x)}, {v(t)}")
            A("s_nop 0")
            A(f"{op} {v(x)}, {v(x)}, {v(t)}")
        else:
            A("s_nop 1")
            A(f"{op}_dpp {v(x)}, {v(x)}, {v(x)} row_ror:{b} row_mask:0xf bank_mask:0xf")


M_W, M_CV, M_ACC, M_T = 16, 80, 96, 104


def mod_addr(A):
    A("v_lshrrev_b32 v2, 3, v0")
    A("v_and_b32 v3, 7, v0")
    A("v_mul_u32_u24 v4, 12288, v2")
    A("v_lshl_add_u32 v4, v3, 4, v4")
    A("v_lshlrev_b32 v5, 1, v2")
    for i in range(8):
        A(f"v_mov_b32 {v(M_ACC + i)}, 0")


def mod_pass(A, grp, half, sw, sc, flag="", more=None):
    W, CV, ACC, T = M_W, M_CV, M_ACC, M_T
    A(f"s_lshl_b32 s41, {s(half)}, 10")
    A(f"s_mul_i32 s40, {s(half)}, {512 * 12288}")
    A(f"s_lshl_b32 s42, {s(grp)}, 7")
    A("s_add_u32 s40, s40, s42")
    for i in range(16):
        A(f"buffer_load_ushort {v(CV + i)}, v5, {s(sc, 4)}, s41 offen offset:{64 * i}")
    for i in range(16):
        A(f"buffer_load_dwordx4 {v(W + 4 * i, 4)}, v4, {s(sw, 4)}, s40 offen{flag}")
        A(f"s_add_u32 s40, s40, {32 * 12288}")
    extra = more() if more else 0
    A(f"s_waitcnt vmcnt({16 + extra})")
    for i in range(16):
        A(f"v_lshlrev_b32 {v(CV + i)}, 16, {v(CV + i)}")
        A(f"v_mul_f32 {v(T)}, 0xbfb8aa3b, {v(CV + i)}")
        A(f"v_exp_f32 {v(T)}, {v(T)}")
        A("s_nop 0")
        A(f"v_add_f32 {v(T)}, 1.0, {v(T)}")
        A(f"v_rcp_f32 {v(T)}, {v(T)}")
        A("s_nop 0")
        A(f"v_mul_f32 {v(T)}, {v(T)}, {v(CV + i)}")
        A(f"v_cvt_pk_bf16_f32 {v(CV + i)}, 0, {v(T)}")
    for i in range(16):
        A(f"s_waitcnt vmcnt({15 - i + extra})")
        for d in range(4):
            A(f"v_lshlrev_b32 {v(T)}, 16, {v(W + 4 * i + d)}")
            A(f"v_and_b32 {v(T + 1)}, 0xffff0000, {v(W + 4 * i + d)}")
            A(f"v_fmac_f32 {v(ACC + 2 * d)}, {v(T)}, {v(CV + i)}")
            A(f"v_fmac_f32 {v(ACC + 2 * d + 1)}, {v(T + 1)}, {v(CV + i)}")


def mod_finish(A, wave, dst, rounded):
    ACC, T = M_ACC, M_T
    for b in (8, 16, 32):
        if b == 8:
            A("s_nop 1")
            for i in range(8):
                A(f"v_add_f32_dpp {v(ACC + i)}, {v(ACC + i)}, {v(ACC + i)} row_ror:8 row_mask:0xf bank_mask:0xf")
        else:
            for i in range(8):
                A(f"v_mov_b32 {v(M_W + i)}, {v(ACC + i)}")
            for i in range(8):
                A(f"v_permlane{b}_swap_b32 {v(ACC + i)}, {v(M_W + i)}")
            for i in range(8):
                A(f"v_add_f32 {v(ACC + i)}, {v(ACC + i)}, {v(M_W + i)}")
    A(f"s_lshl_b32 s40, {s(wave)}, 8")
    A("v_lshl_add_u32 v2, v3, 5, s40")
    A(f"ds_write_b128 v2, {v(ACC, 4)} offset:1024")
    A(f"ds_write_b128 v2, {v(ACC + 4, 4)} offset:1040")
    A("s_waitcnt lgkmcnt(0)")
    A("s_barrier")
    A("v_and_b32 v2, 63, v0")
    A("v_lshlrev_b32 v2, 2, v2")
    for w in range(4):
        A(f"ds_read_b32 {v(ACC + w)}, v2 offset:{1024 + 256 * w}")
    A(f"s_min_u32 s40, {s(wave)}, 1")
    A("s_lshl_b32 s40, s40, 30")
    A(f"s_add_u32 s40, s40, {s(dst)}")
    A("s_waitcnt lgkmcnt(0)")
    A(f"v_add_f32 {v(ACC)}, {v(ACC)}, {v(ACC + 1)}")
    A(f"v_add_f32 {v(ACC + 2)}, {v(ACC + 2)}, {v(ACC + 3)}")
    A(f"v_add_f32 {v(ACC)}, {v(ACC)}, {v(ACC + 2)}")
    if rounded:
        A(f"v_cvt_pk_bf16_f32 {v(ACC)}, 0, {v(ACC)}")
    else:
        A(f"v_min_u32 {v(ACC)}, -2, {v(ACC)}")
    A(f"buffer_store_dword {v(ACC)}, v2, {s(SWS, 4)}, s40 offen sc1")
```

```python
from asmlib import *
import layout as L
from chain import (WFLAG, SWS, SW, SDBG, S_WAVE, S_GRP, S_TK, S_IRR, S_STEP, S_T0, S_T1, S_T2, S_T3, MF,
                   arrive, await_start, probe, progress_addr, words_addr, line_addr, lines_addr,
                   block_on, spend)
from small import xor_reduce, mod_addr, mod_pass, mod_finish

SW2, SW3 = 84, 88
S_CU, S_SRC, S_RDY, S_FA, S_NEED, S_OUT, S_M0, S_NXT = 44, 45, 46, 47, 48, 49, 50, 54
S_SRC5, S_RDY5, S_NEED5, S_OUT5, S_NXT5, S_K = 55, 56, 57, 58, 59, 26
S_P0, S_P1, S_P2 = 60, 61, 62
OOB = 0x70000000
LANE = 9
VD, VR, VFA, VF, VPA, VP, VO = 0, 1, 2, 3, 4, 5, 6
FR, ACC, TMP = 16, 48, 80
S_SIG = 63


def ptr(A, reg, key):
    A(f"s_load_dwordx2 {s(reg, 2)}, s[0:1], {KA[key]}")


def mark(A, cfg, i, reg=15):
    if cfg.marks != 1:
        return
    skip = A.new("mk")
    if not isinstance(i, int):
        A(f"s_and_b32 s99, {i}, 63")
        A("s_lshr_b64 s[98:99], s[94:95], s99")
        A("s_and_b32 s98, s98, 1")
        A(f"s_cbranch_scc0 {skip}")
    elif i == 0:
        A("s_mov_b32 s94, 0x0202021f")
        A("s_mov_b32 s95, 0x82020202")
    A("s_memrealtime s[96:97]")
    A(f"s_lshl_b32 s98, {s(S_GRP)}, 5")
    A(f"s_add_u32 s98, s98, {s(S_TK)}")
    A("s_lshl_b32 s98, s98, 2")
    A(f"s_add_u32 s98, s98, {s(S_WAVE)}")
    A("s_lshl_b32 s98, s98, 9")
    if isinstance(i, int):
        A(f"s_add_u32 s98, s98, {L.TRACE + 2 * L.MB + 4 * i}")
    else:
        A(f"s_lshl_b32 s99, {i}, 2")
        A("s_add_u32 s98, s98, s99")
        A(f"s_add_u32 s98, s98, {L.TRACE + 2 * L.MB + 64}")
    A("s_waitcnt lgkmcnt(0)")
    A(f"v_mov_b32 {v(reg)}, s96")
    A("s_mov_b64 exec, 1")
    A(f"buffer_store_dword {v(reg)}, off, {s(SWS, 4)}, s98")
    A("s_mov_b64 exec, -1")
    A.label(skip)


def lap(A, cfg, i):
    if cfg.marks != 2:
        return
    A("s_memtime s[96:97]")
    A("s_waitcnt lgkmcnt(0)")
    A("s_sub_u32 s99, s96, s98")
    A(f"s_add_u32 s{70 + i}, s{70 + i}, s99")
    A("s_mov_b32 s98, s96")


def lap_init(A, cfg):
    if cfg.marks == 2:
        for i in range(8):
            A(f"s_mov_b32 s{70 + i}, 0")


def lap_dump(A, cfg):
    if cfg.marks != 2:
        return
    for i in range(8):
        A(f"v_writelane_b32 v15, s{70 + i}, {i}")
    A(f"s_lshl_b32 s98, {s(S_GRP)}, 5")
    A(f"s_add_u32 s98, s98, {s(S_TK)}")
    A("s_lshl_b32 s98, s98, 2")
    A(f"s_add_u32 s98, s98, {s(S_WAVE)}")
    A("s_lshl_b32 s98, s98, 5")
    A(f"s_add_u32 s98, s98, {L.TRACE + 3 * L.MB}")
    A(f"v_lshlrev_b32 v14, 2, {v(LANE)}")
    A("s_mov_b64 exec, 0xff")
    A(f"buffer_store_dword v15, v14, {s(SWS, 4)}, s98 offen")
    A("s_mov_b64 exec, -1")


def tile_addr(A, dst, order, inter, sbase, extra, t0, t1):
    A(f"v_bfe_u32 {v(t0)}, {v(LANE)}, 2, 2")
    A(f"v_lshrrev_b32 {v(t1)}, 4, {v(LANE)}")
    A(f"v_lshl_add_u32 {v(t0)}, {v(t1)}, {3 if order == 'N' else 2}, {v(t0)}")
    A(f"v_lshl_add_u32 {v(t0)}, {v(t0)}, 7, {s(sbase)}")
    A(f"v_and_b32 {v(t1)}, 3, {v(LANE)}")
    A(f"v_lshl_add_u32 {v(t0)}, {v(t1)}, {4 if inter else 3}, {v(t0)}")
    A(f"v_add_u32 {v(dst)}, {extra}, {v(t0)}")


def load_w(A, panels, stride, nst, tiles, order, vg, flag="", first=None, ramp=None):
    SZ = len(panels) * 16384
    n = 4 * len(panels)
    NS = min(nst, 163840 // SZ)
    ramp = NS if ramp is None else ramp
    qstep = 512 if order == "N" else 2048
    A(f"v_lshrrev_b32 {v(vg)}, 3, {v(LANE)}")
    A(f"s_mul_i32 {s(S_T0)}, {s(S_WAVE)}, {32 * nst}")
    A(f"v_add_u32 {v(vg)}, {s(S_T0)}, {v(vg)}")
    A(f"v_mul_u32_u24 {v(vg)}, {stride}, {v(vg)}")
    A(f"v_and_b32 {v(vg + 1)}, 7, {v(LANE)}")
    A(f"v_lshl_add_u32 {v(vg)}, {v(vg + 1)}, 4, {v(vg)}")
    A(f"s_lshl_b32 {s(S_T0)}, {s(S_WAVE)}, 12")

    def issue(t):
        for p, (srd, off) in enumerate(panels):
            for j in range(4):
                A(f"s_add_u32 m0, {s(S_T0)}, {(t % NS) * SZ + p * 16384 + j * 1024}")
                A(f"s_add_u32 {s(S_T1)}, {s(off)}, {(32 * t + 8 * j) * stride}")
                A(f"buffer_load_dwordx4 {v(vg)}, {s(srd, 4)}, {s(S_T1)} offen{flag} lds")
    A("s_barrier")
    for t in range(ramp):
        issue(t)
    if ramp < NS:
        A(f"s_waitcnt vmcnt({n * (ramp - 1)})")
        for t in range(ramp, NS):
            issue(t)
    for t in range(nst):
        A(f"s_waitcnt vmcnt({n * (min(t + NS, nst) - t - 1)})")
        A("s_barrier")
        if t == 0 and first:
            first()
        for reg, dst in tiles:
            for k in range(4):
                for q in range(2):
                    A(f"ds_read_b64_tr_b16 {r(dst + (nst * k + t) * 4 + 2 * q, 2)}, {v(reg)} offset:{k * 4096 + q * qstep}")
        for reg, dst in tiles:
            A(f"v_add_u32 {v(reg)}, {SZ if t % NS < NS - 1 else -(NS - 1) * SZ}, {v(reg)}")
        A("s_waitcnt lgkmcnt(0)")
        A("s_barrier")
        if t + NS < nst:
            issue(t + NS)


def dma_list(ngroups, m0base, m0add, src, vd):
    ops = []
    for gi in range(ngroups):
        ops.append(f"s_add_u32 m0, {s(m0base)}, {m0add + gi * 4096}")
        ops.append(f"s_add_u32 {s(S_T1)}, {s(src)}, {gi * 4096}")
        for j in range(4):
            ops.append(f"buffer_load_dwordx4 {v(vd)}, {s(SWS, 4)}, {s(S_T1)} offen offset:{1024 * j} sc1 lds")
    return ops


def reader(vr, nblk, tmajor):
    def rd(i):
        T, ks = (i // (nblk // 2), i % (nblk // 2)) if tmajor else (i & 1, i >> 1)
        return f"ds_read_b128 {v(FR + 4 * (i % 8), 4)}, {v(vr)} offset:{2048 * ks + 1024 * T}"
    return rd


def first_reads(A, rd):
    for b in range(7):
        A(rd(b))


def fits(ops):
    t = 4
    for op in ops:
        if op.startswith("s_"):
            t += 4
        else:
            t = max(t, 8) + (8 if op.startswith(("v_exp", "v_rcp", "buffer_store_dwordx4")) else 4)
    return t <= 16


def job(A, nblk, rd, tmajor, tiles, fillers, lo=0, hi=None, nxt=None):
    hi = nblk if hi is None else hi
    mf, pre, nt = [], {}, len(tiles)
    for b in range(lo, hi):
        T, ks = (b // (nblk // 2), b % (nblk // 2)) if tmajor else (b & 1, b >> 1)
        if b % 2 == 0 and nxt is None:
            pre[len(mf)] = f"s_waitcnt lgkmcnt({min(5, nblk - 2 - b)})"
        for acc, w, swap in tiles:
            x, y = r(w(ks), 4), v(FR + 4 * (b % 8), 4)
            if swap:
                x, y = y, x
            mf.append(f"{MF} {v(acc(T), 4)}, {x}, {y}, {v(acc(T), 4) if ks else 0}")
    n = len(mf)
    at = [[] for _ in range(n)]
    for i, w in pre.items():
        if i:
            at[i - 1].append(w)
    for b in range(lo, min(hi, nblk - 7)):
        at[(b - lo) * nt].append(rd(b + 7))
    if nxt:
        assert lo == nblk - 5 and hi == nblk
        for k, j in ((0, 0), (0, 1), (1, 2), (nt, 3), (2 * nt, 4), (3 * nt, 5), (4 * nt, 6)):
            at[k].append(nxt(j))
    k = 0
    for start, step, ops in fillers:
        k = max(k, start) if start >= 0 else -start
        for op in ops:
            if op.startswith("END"):
                assert k < int(op[4:]), "sequence ends too late"
                continue
            if op.startswith("GAP"):
                k += int(op[4:])
                continue
            while True:
                assert k < n, "fillers do not fit"
                front = op.startswith("s_") and all(x.startswith("ds_read") for x in at[k])
                cand = [op] + at[k] if front else at[k] + [op]
                if fits(cand):
                    at[k] = cand
                    break
                k += 1
            if op.startswith("buffer"):
                k += step
    if 0 in pre:
        A(pre[0])
    scc = None
    for i in range(n):
        A(mf[i])
        for op in at[i]:
            if op.startswith("s_cselect"):
                assert scc.startswith("s_cmp"), "SCC overwritten"
            elif op.startswith("s_") and not op.startswith(("s_waitcnt", "s_mov", "s_nop", "s_mul")):
                scc = op
            A(op)


def lines(f):
    B = Asm()
    f(B)
    return B.lines


def decide(A, need, vf, rdy, src, nxt, spaced=False):
    A(f"v_cmp_gt_u32 vcc, {s(need)}, {v(vf)}")
    if spaced:
        A("GAP 2")
    A("s_cmp_eq_u64 vcc, 0")
    A(f"s_cselect_b32 {s(rdy)}, 1, 0")
    A(f"s_cselect_b32 {s(src)}, {s(nxt)}, {hex(OOB)}")


def common_regs(A, share):
    A(f"s_mul_i32 {s(S_M0)}, {s(S_WAVE)}, {share}")
    A(f"v_lshlrev_b32 {v(VR)}, 4, {v(LANE)}")
    A(f"v_add_u32 {v(VD)}, {s(S_M0)}, {v(VR)}")


def start_role(A, base, extra=None):
    line_addr(A, VPA, 0, base, S_CU, TMP)
    A(f"v_mov_b32 {v(VP)}, 0")
    A(f"buffer_store_dword {v(VP)}, {v(VPA)}, {s(SWS, 4)}, 0 offen sc1")
    A(f"s_mov_b32 {s(S_T2)}, 1")
    if extra:
        extra()
    arrive(A, S_T2, extra is None, join=False)


def stream1(A, cfg, tiles, epi, flag_for, advance_src, outstep, abort, sig, limit, landed=None, tmajor=False):
    wait, entry, out = (A.new(x) for x in ("sw", "se", "so"))
    ldf = lambda B=A: B(f"buffer_load_dword {v(VF)}, {v(VFA)}, {s(SWS, 4)}, {s(S_FA)} offen sc1")
    tst = lambda: A(f"v_cmp_gt_u32 vcc, {s(S_NEED)}, {v(VF)}")
    rd = reader(VR, 64, tmajor)
    A(f"s_mov_b32 {s(S_STEP)}, 0")
    lap_init(A, cfg)
    lap(A, cfg, 7)
    A.label(wait)
    flag_for(A, 0)
    block_on(A, ldf, tst, abort, 1)
    lap(A, cfg, 5)
    for op in dma_list(4, S_M0, 0, S_NXT, VD):
        A(op)
    flag_for(A, 1)
    ldf()
    A("s_waitcnt vmcnt(0)")
    A.label(entry)
    A("s_barrier")
    lap(A, cfg, 6)
    first_reads(A, rd)
    if landed:
        landed()
    advance_src()
    A(f"s_xor_b32 {s(S_M0)}, {s(S_M0)}, 0x10000")
    decide(A, S_NEED, VF, S_RDY, S_SRC, S_NXT)
    n = 64 * len(tiles)
    lap(A, cfg, 2)
    job(A, 64, rd, tmajor, tiles,
        [(2, n // 32, dma_list(4, S_M0, 0, S_SRC, VD)),
         (n * 5 // 8, 1, lines(lambda B: flag_for(B, 2)) + lines(ldf))])
    lap(A, cfg, 3)
    A(f"v_xor_b32 {v(VR)}, 0x10000, {v(VR)}")
    A(f"s_add_u32 {s(S_OUT)}, {s(S_OUT)}, {outstep}")
    A(f"s_add_u32 {s(S_STEP)}, {s(S_STEP)}, 1")
    mark(A, cfg, s(S_STEP))
    A.nop(5)
    epi()
    A(f"v_mov_b32 {v(VP)}, {s(S_STEP)}")
    A("s_waitcnt vmcnt(0)")
    A("s_barrier")
    sig()
    lap(A, cfg, 4)
    A(f"s_cmp_eq_u32 {s(S_STEP)}, {limit}")
    A(f"s_cbranch_scc1 {out}")
    A(f"s_cmp_lg_u32 {s(S_RDY)}, 0")
    A(f"s_cbranch_scc1 {entry}")
    A(f"s_branch {wait}")
    A.label(out)


def pack8(A, dst, a, b):
    for i in range(2):
        A(f"v_cvt_pk_bf16_f32 {v(dst + i)}, {v(a + 2 * i)}, {v(a + 2 * i + 1)}")
    for i in range(2):
        A(f"v_cvt_pk_bf16_f32 {v(dst + 2 + i)}, {v(b + 2 * i)}, {v(b + 2 * i + 1)}")


def await_helpers(A, n, abort, t=TMP):
    A(f"v_lshlrev_b32 {v(t)}, 7, {v(LANE)}")
    A(f"s_mov_b32 {s(S_T0)}, {L.P1}")
    block_on(A, lambda: A(f"buffer_load_dword {v(t + 1)}, {v(t)}, {s(SWS, 4)}, {s(S_T0)} offen sc1"),
             lambda: A(f"v_cmp_gt_u32 vcc, {n}, {v(t + 1)}"), abort, 2)


def octet_addrs(A, s_oct, s_cg):
    A(f"v_lshrrev_b32 {v(TMP)}, 3, {v(LANE)}")
    A(f"v_and_b32 {v(TMP + 1)}, 7, {v(LANE)}")
    A(f"s_lshr_b32 {s(S_T0)}, {s(s_oct)}, 1")
    A(f"s_lshl_b32 {s(S_T0)}, {s(S_T0)}, 10")
    A(f"s_and_b32 {s(S_T1)}, {s(s_oct)}, 1")
    A(f"s_lshl_b32 {s(S_T1)}, {s(S_T1)}, 7")
    A(f"s_add_u32 {s(S_T0)}, {s(S_T0)}, {s(S_T1)}")
    A(f"s_lshl_b32 {s(S_T1)}, {s(s_cg)}, 12")
    A(f"s_add_u32 {s(S_T0)}, {s(S_T0)}, {s(S_T1)}")
    A(f"v_lshl_add_u32 {v(VO)}, {v(TMP + 1)}, 4, {s(S_T0)}")
    A(f"v_and_b32 {v(TMP + 2)}, 3, {v(TMP)}")
    A(f"v_lshl_add_u32 {v(VO)}, {v(TMP + 2)}, 8, {v(VO)}")
    A(f"v_lshrrev_b32 {v(TMP + 2)}, 2, {v(TMP)}")
    A(f"v_lshl_add_u32 {v(VO)}, {v(TMP + 2)}, 11, {v(VO)}")
    A(f"s_lshl_b32 {s(S_T0)}, {s(s_oct)}, 14")
    A(f"s_lshl_b32 {s(S_T1)}, {s(s_cg)}, 7")
    A(f"s_add_u32 {s(S_T0)}, {s(S_T0)}, {s(S_T1)}")
    A(f"v_lshl_add_u32 {v(VO + 1)}, {v(TMP + 1)}, 11, {s(S_T0)}")
    A(f"v_lshl_add_u32 {v(VO + 1)}, {v(TMP)}, 4, {v(VO + 1)}")
    A(f"s_lshl_b32 {s(S_T0)}, {s(s_cg)}, 8")
    A(f"v_lshl_add_u32 {v(VO + 2)}, {v(TMP)}, 5, {s(S_T0)}")


def unit_consts(A):
    A(f"s_mov_b32 {s(S_P0)}, 0x00003f80")
    A(f"s_mov_b32 {s(S_P1)}, 0x3f800000")


def sum_bf(A, dst, srcs, n):
    for k, x in enumerate(srcs):
        for i in range(2 * n):
            A(f"v_dot2_f32_bf16 {v(dst + i)}, {v(x + (i >> 1))}, {s(S_P0 + (i & 1))}, {v(dst + i) if k else 0}")


def unpack(A, dst, src, n):
    for i in range(n):
        A(f"v_lshlrev_b32 {v(dst + 2 * i)}, 16, {v(src + i)}")
        A(f"v_and_b32 {v(dst + 2 * i + 1)}, 0xffff0000, {v(src + i)}")


def qkv_role(A, cfg, end):
    A.c("projection of token rows onto half a head of q, k and v; afterwards the final sums")
    A(f"v_mov_b32 {v(LANE)}, v1")
    A(f"s_sub_u32 {s(S_CU)}, {s(S_GRP)}, 4")
    A(f"s_lshl_b32 {s(S_CU)}, {s(S_CU)}, 4")
    A(f"s_add_u32 {s(S_CU)}, {s(S_CU)}, {s(S_TK)}")
    start_role(A, L.PQ)
    A.srd(SW, 18, SIZE["Wq"])
    A.srd(SW2, 20, SIZE["Wk"])
    A.srd(SW3, 22, SIZE["Wv"])
    A(f"s_lshl_b32 {s(S_P0)}, {s(S_CU)}, 7")
    A(f"s_lshr_b32 {s(S_T2)}, {s(S_WAVE)}, 1")
    A(f"s_lshl_b32 {s(S_T2)}, {s(S_T2)}, 14")
    A(f"s_and_b32 {s(S_T3)}, {s(S_WAVE)}, 1")
    A(f"s_lshl_b32 {s(S_T3)}, {s(S_T3)}, 6")
    A(f"s_add_u32 {s(S_T2)}, {s(S_T2)}, {s(S_T3)}")
    for T in range(2):
        tile_addr(A, TMP + T, "N", False, S_T2, 32 * T, TMP + 4, TMP + 5)
    A(f"s_lshl_b32 {s(S_T2)}, {s(S_WAVE)}, 5")
    tile_addr(A, TMP + 2, "N", False, S_T2, 32768, TMP + 4, TMP + 5)
    load_w(A, [(SW, S_P0), (SW2, S_P0), (SW3, S_P0)], 8192, 8,
           [(TMP, 256), (TMP + 1, 384), (TMP + 2, 128)], "N", TMP + 4, WFLAG[cfg.whi], None, cfg.ramp_hi)
    mark(A, cfg, 1)
    await_start(A, end, hi_only=True)
    common_regs(A, 16384)
    lines_addr(A, VFA, LANE, 2)
    A(f"s_and_b32 {s(S_T2)}, {s(S_CU)}, 1")
    A(f"s_lshr_b32 {s(S_T0)}, {s(S_WAVE)}, 1")
    A(f"s_lshl_b32 {s(S_T0)}, {s(S_T0)}, 3")
    A(f"s_and_b32 {s(S_T1)}, {s(S_WAVE)}, 1")
    A(f"s_add_u32 {s(S_T0)}, {s(S_T0)}, {s(S_T1)}")
    A(f"s_lshl_b32 {s(S_T1)}, {s(S_T2)}, 1")
    A(f"s_add_u32 {s(S_T0)}, {s(S_T0)}, {s(S_T1)}")
    A(f"s_lshl_b32 {s(S_T0)}, {s(S_T0)}, 10")
    A(f"v_add_u32 {v(VO)}, {s(S_T0)}, {v(VR)}")
    A(f"v_add_u32 {v(VO + 1)}, 4096, {v(VO)}")
    A(f"s_lshl_b32 {s(S_T0)}, {s(S_T2)}, 2")
    A(f"s_add_u32 {s(S_T0)}, {s(S_T0)}, {s(S_WAVE)}")
    A(f"s_add_u32 {s(S_T0)}, {s(S_T0)}, 16")
    A(f"s_lshl_b32 {s(S_T0)}, {s(S_T0)}, 10")
    A(f"v_add_u32 {v(VO + 2)}, {s(S_T0)}, {v(VR)}")
    A(f"s_lshr_b32 {s(S_OUT)}, {s(S_CU)}, 1")
    A(f"s_mul_i32 {s(S_OUT)}, {s(S_OUT)}, 24576")
    A(f"s_add_u32 {s(S_OUT)}, {s(S_OUT)}, {L.QKV - 32 * 24576}")
    A(f"s_mov_b32 {s(S_NXT)}, {L.H1}")

    def epi():
        for i in range(3):
            pack8(A, TMP + 4 * i, ACC + 8 * i, ACC + 8 * i + 4)
            A(f"buffer_store_dwordx4 {v(TMP + 4 * i, 4)}, {v(VO + i)}, {s(SWS, 4)}, {s(S_OUT)} offen sc1")

    def flag_for(B, d):
        B(f"s_add_u32 {s(S_NEED)}, {s(S_STEP)}, {d}")
        B(f"s_and_b32 {s(S_FA)}, {s(S_NEED)}, 31")
        B(f"s_lshl_b32 {s(S_FA)}, {s(S_FA)}, 8")
        B(f"s_add_u32 {s(S_FA)}, {s(S_FA)}, {L.P1}")
        B(f"s_lshr_b32 {s(S_NEED)}, {s(S_NEED)}, 5")
        B(f"s_lshl_b32 {s(S_NEED)}, 1, {s(S_NEED)}")
        B(f"s_add_u32 {s(S_NEED)}, {s(S_NEED)}, 1")
    tiles = [(lambda T: ACC + 8 * T, lambda ks: 256 + 4 * ks, False),
             (lambda T: ACC + 8 * T + 4, lambda ks: 384 + 4 * ks, False),
             (lambda T: ACC + 16 + 4 * T, lambda ks: 128 + 4 * ks, True)]
    sig = lambda B=A: B(f"buffer_store_dword {v(VP)}, {v(VPA)}, {s(SWS, 4)}, 0 offen sc1")
    NS = cfg.qkv_slow
    stream1(A, cfg, tiles, epi, flag_for, lambda: A(f"s_add_u32 {s(S_NXT)}, {s(S_NXT)}, 65536"), 32 * 24576, end, sig, NS)
    A.c("all inputs exist from here on: continuous stream, results stored one segment later")
    have, loop = A.new("qh"), A.new("ql")
    await_helpers(A, 3, end)
    A(f"s_cmp_lg_u32 {s(S_RDY)}, 0")
    A(f"s_cbranch_scc1 {have}")
    for op in dma_list(4, S_M0, 0, S_NXT, VD):
        A(op)
    A("s_waitcnt vmcnt(0)")
    A.label(have)
    A("s_barrier")
    rd = reader(VR, 64, True)
    first_reads(A, rd)
    A(f"s_mov_b32 {s(S_SRC5)}, {hex(OOB)}")
    cvt = lambda d, x: f"v_cvt_pk_bf16_f32 {v(d)}, {v(x)}, {v(x + 1)}"
    half = lambda T: [cvt(TMP + 4 * T + i, ACC + 8 * T + 2 * i) for i in range(4)] + \
        [cvt(TMP + 8 + 2 * T + i, ACC + 16 + 4 * T + 2 * i) for i in range(2)]
    stores = [f"buffer_store_dwordx4 {v(TMP + 4 * i, 4)}, {v(VO + i)}, {s(SWS, 4)}, {s(S_SRC5)} offen sc1" for i in range(3)]
    A.label(loop)
    head = [f"s_add_u32 {s(S_NXT)}, {s(S_NXT)}, 65536", f"s_xor_b32 {s(S_M0)}, {s(S_M0)}, 0x10000",
            f"s_cmp_lt_u32 {s(S_STEP)}, 63", f"s_cselect_b32 {s(S_SRC)}, {s(S_NXT)}, {hex(OOB)}"]
    job(A, 64, rd, True, tiles,
        [(0, 1, head), (8, cfg.st_step, half(1) + lines(sig) + stores + [f"v_mov_b32 {v(VP)}, {s(S_STEP)}"]),
         (0, 5, dma_list(4, S_M0, 0, S_SRC, VD)), (-105, 1, half(0)),
         (0, 1, [f"s_add_u32 {s(S_OUT)}, {s(S_OUT)}, {32 * 24576}", f"s_mov_b32 {s(S_SRC5)}, {s(S_OUT)}",
                 f"s_add_u32 {s(S_STEP)}, {s(S_STEP)}, 1"])], 0, 59)
    A(f"v_xor_b32 {v(VR)}, 0x10000, {v(VR)}")
    mark(A, cfg, s(S_STEP))
    A("s_waitcnt vmcnt(0) lgkmcnt(0)")
    A("s_barrier")
    job(A, 64, rd, True, tiles, [(11, 1, [f"s_cmp_lt_u32 {s(S_STEP)}, 64"])], 59, 64, rd)
    A(f"s_cbranch_scc1 {loop}")
    A.nop(8)
    for op in half(1) + stores:
        A(op)
    A(f"v_mov_b32 {v(VP)}, 64")
    A("s_waitcnt vmcnt(0) lgkmcnt(0)")
    A("s_barrier")
    sig()

    A.c("out = x1 + gb * (sum of the seven partial down projections)")
    GB, SUMS, X8, BUF = 16, 24, 32, 64
    ptr(A, 16, "out")
    A(f"s_and_b32 {s(S_T2)}, {s(S_CU)}, 3")
    A(f"s_lshr_b32 {s(S_T3)}, {s(S_CU)}, 2")
    octet_addrs(A, S_T2, S_T3)
    lines_addr(A, VFA, LANE, 7, 10)
    A(f"s_lshr_b32 {s(S_FA)}, {s(S_CU)}, 3")
    A(f"s_lshl_b32 {s(S_FA)}, {s(S_FA)}, 7")
    A(f"s_add_u32 {s(S_FA)}, {s(S_FA)}, {L.P45 + 4}")
    unit_consts(A)
    A("s_waitcnt lgkmcnt(0)")
    A.srd(SW, 16, SIZE["out"])
    await_helpers(A, 4, end)
    A(f"s_mov_b32 {s(S_T0)}, {L.MOD + 4 * 5120}")
    for i in range(2):
        A(f"buffer_load_dwordx4 {v(GB + 4 * i, 4)}, {v(VO + 2)}, {s(SWS, 4)}, {s(S_T0)} offen offset:{16 * i} sc1")
    A(f"s_mov_b32 {s(S_STEP)}, {s(S_WAVE)}")
    for nb, limit in ((4, 48), (1, 64)):
        loop = A.new("fin")
        A.label(loop)
        A(f"s_add_u32 {s(S_NEED)}, {s(S_STEP)}, {4 * (nb - 1) + 1}")
        block_on(A, lambda: A(f"buffer_load_dword {v(VF)}, {v(VFA)}, {s(SWS, 4)}, {s(S_FA)} offen sc1"),
                 lambda: A(f"v_cmp_gt_u32 vcc, {s(S_NEED)}, {v(VF)}"), end, 32 if nb == 4 else cfg.fin_sleep)
        A(f"s_lshl_b32 {s(S_OUT)}, {s(S_STEP)}, 16")
        for b in range(nb):
            for k in range(8):
                base = L.X1 if k == 7 else L.PART5 + k * 4 * L.MB
                A(f"s_add_u32 {s(S_T1)}, {s(S_OUT)}, {base + b * 4 * 65536}")
                A(f"buffer_load_dwordx4 {v(BUF + 32 * b + 4 * k, 4)}, {v(VO)}, {s(SWS, 4)}, {s(S_T1)} offen sc1")
        for b in range(nb):
            A(f"s_waitcnt vmcnt({8 * (nb - 1 - b) + b})")
            sum_bf(A, SUMS, [BUF + 32 * b + 4 * k for k in range(7)], 4)
            unpack(A, X8, BUF + 32 * b + 28, 4)
            for i in range(4):
                A(f"v_pk_fma_f32 {v(X8 + 2 * i, 2)}, {v(SUMS + 2 * i, 2)}, {v(GB + 2 * i, 2)}, {v(X8 + 2 * i, 2)}")
            pack8(A, 40 + 4 * b, X8, X8 + 4)
            A(f"s_add_u32 {s(S_T1)}, {s(S_OUT)}, {b * 4 * 65536}")
            A(f"buffer_store_dwordx4 {v(40 + 4 * b, 4)}, {v(VO + 1)}, {s(SW, 4)}, {s(S_T1)} offen{WFLAG[cfg.outflag]}")
        A(f"s_add_u32 {s(S_STEP)}, {s(S_STEP)}, {4 * nb}")
        A(f"s_cmp_lt_u32 {s(S_STEP)}, {limit}")
        A(f"s_cbranch_scc1 {loop}")
        mark(A, cfg, 2 if nb == 4 else 3)
    A("s_endpgm")


def g3_role(A, cfg, end):
    A.c("output projection of token rows: this group's heads x 128 columns")
    A(f"v_mov_b32 {v(LANE)}, v1")
    A(f"s_sub_u32 {s(S_K)}, {s(S_TK)}, 24")
    A(f"s_lshl_b32 {s(S_CU)}, {s(S_GRP)}, 3")
    A(f"s_add_u32 {s(S_CU)}, {s(S_CU)}, {s(S_K)}")

    def extra():
        skip = A.new("np")
        A(f"s_mov_b32 {s(S_T0)}, 4096")
        A(f"buffer_store_dword {v(VP)}, {v(VPA)}, {s(SWS, 4)}, {s(S_T0)} offen sc1")
        line_addr(A, VO + 1, 0, L.PB, S_CU, TMP)
        A(f"buffer_store_dword {v(VP)}, {v(VO + 1)}, {s(SWS, 4)}, 0 offen sc1")
        A(f"s_lshl_b32 {s(S_T0)}, {s(S_IRR)}, 16")
        A(f"s_or_b32 {s(S_T2)}, {s(S_T2)}, {s(S_T0)}")
        A(f"s_cmp_lg_u32 {s(S_CU)}, 0")
        A(f"s_cbranch_scc1 {skip}")
        probe(A, LANE, S_T2, cfg.marks)
        A.label(skip)
    start_role(A, L.P3, extra)
    A.srd(SW, 24, SIZE["Wo"])
    A(f"s_lshl_b32 {s(S_P0)}, {s(S_GRP)}, 21")
    A(f"s_lshl_b32 {s(S_T0)}, {s(S_K)}, 8")
    A(f"s_add_u32 {s(S_P0)}, {s(S_P0)}, {s(S_T0)}")
    A(f"s_add_u32 {s(S_P1)}, {s(S_P0)}, 128")
    pair_tiles(A, "P")
    load_w(A, [(SW, S_P0), (SW, S_P1)], 2048, 8, [(TMP, 256), (TMP + 1, 384)], "P", TMP + 4)
    mark(A, cfg, 1)
    await_start(A, end)
    common_regs(A, 16384)
    words_addr(A, VFA, LANE, 8, TMP)
    A(f"s_lshl_b32 {s(S_FA)}, {s(S_GRP)}, 10")
    A(f"s_add_u32 {s(S_FA)}, {s(S_FA)}, {L.PO}")
    A(f"v_mov_b32 {v(VO)}, {v(VR)}")
    A(f"s_lshl_b32 {s(S_T0)}, {s(S_K)}, 2")
    A(f"s_add_u32 {s(S_T0)}, {s(S_T0)}, {s(S_WAVE)}")
    A(f"s_lshl_b32 {s(S_T0)}, {s(S_T0)}, 11")
    A(f"s_lshl_b32 {s(S_OUT)}, {s(S_GRP)}, 22")
    A(f"s_add_u32 {s(S_OUT)}, {s(S_OUT)}, {s(S_T0)}")
    A(f"s_add_u32 {s(S_OUT)}, {s(S_OUT)}, {L.PART3 - 65536}")
    A(f"s_lshl_b32 {s(S_NXT)}, {s(S_GRP)}, 16")
    A(f"s_add_u32 {s(S_NXT)}, {s(S_NXT)}, {L.OTOK}")
    A.c("bring one slot of the token-output ring into this die's L2")
    A(f"s_lshl_b32 {s(S_SRC)}, {s(S_K)}, 18")
    A(f"s_add_u32 {s(S_SRC)}, {s(S_SRC)}, {s(S_NXT)}")
    for op in dma_list(4, S_M0, 0, S_SRC, VD):
        A(op)

    def epi():
        for T in range(2):
            pack8(A, TMP + 4 * T, ACC + 8 * T, ACC + 8 * T + 4)
            A(f"buffer_store_dwordx4 {v(TMP + 4 * T, 4)}, {v(VO)}, {s(SWS, 4)}, {s(S_OUT)} offen offset:{1024 * T} sc1")
    tiles = [(lambda T: ACC + 8 * T, lambda ks: 256 + 4 * ks, False),
             (lambda T: ACC + 8 * T + 4, lambda ks: 384 + 4 * ks, False)]

    def sig():
        A(f"s_and_b32 {s(S_T0)}, {s(S_STEP)}, 1")
        A(f"s_lshl_b32 {s(S_T0)}, {s(S_T0)}, 12")
        A(f"buffer_store_dword {v(VP)}, {v(VPA)}, {s(SWS, 4)}, {s(S_T0)} offen sc1")

    def landed():
        far, out = A.new("lf"), A.new("lo")
        A(f"v_add_u32 {v(VO + 2)}, 1, {v(VO + 2)}")
        A(f"s_cmp_lg_u32 {s(S_IRR)}, 0")
        A(f"s_cbranch_scc1 {far}")
        A(f"buffer_store_dword {v(VO + 2)}, {v(VO + 1)}, {s(SWS, 4)}, 0 offen")
        A(f"s_branch {out}")
        A.label(far)
        A(f"buffer_store_dword {v(VO + 2)}, {v(VO + 1)}, {s(SWS, 4)}, 0 offen sc1")
        A.label(out)
    A(f"v_mov_b32 {v(VO + 2)}, 0")

    def advance():
        A(f"s_add_u32 {s(S_NXT)}, {s(S_NXT)}, 262144")
        A(f"s_bitset0_b32 {s(S_NXT)}, 21")
    stream1(A, cfg, tiles, epi, lambda B, d: B(f"s_add_u32 {s(S_NEED)}, {s(S_STEP)}, {d + 1}"), advance, 65536, end,
            sig, 64, landed)
    lap_dump(A, cfg)
    A("s_endpgm")


def pair_tiles(A, order):
    A(f"s_lshr_b32 {s(S_T2)}, {s(S_WAVE)}, 1")
    A(f"s_lshl_b32 {s(S_T2)}, {s(S_T2)}, 14")
    A(f"s_and_b32 {s(S_T3)}, {s(S_WAVE)}, 1")
    A(f"s_lshl_b32 {s(S_T3)}, {s(S_T3)}, 6")
    A(f"s_add_u32 {s(S_T2)}, {s(S_T2)}, {s(S_T3)}")
    for T in range(2):
        tile_addr(A, TMP + T, order, True, S_T2, 8 * T, TMP + 4, TMP + 5)


def row_total(A, T, bits, wr, rd, off):
    A(f"v_add_f32 {v(T)}, {v(T)}, {v(T + 1)}")
    xor_reduce(A, "v_add_f32", T, T + 1, bits)
    A(f"ds_write_b32 {v(wr)}, {v(T)} offset:{off}")
    A("s_waitcnt lgkmcnt(0)")
    A("s_barrier")
    A(f"ds_read_b128 {v(T, 4)}, {v(rd)} offset:{off}")
    A("s_waitcnt lgkmcnt(0)")
    A(f"v_pk_add_f32 {v(T, 2)}, {v(T, 2)}, {v(T + 2, 2)}")
    A(f"v_add_f32 {v(T)}, {v(T)}, {v(T + 1)}")
    A(f"v_mul_f32 {v(T)}, 0x3a800000, {v(T)}")


def normalise(A, F, n, T, bits, wr, rd):
    A(f"v_pk_add_f32 {v(T, 2)}, {v(F, 2)}, {v(F + 2, 2)}")
    for i in range(2, n // 2):
        A(f"v_pk_add_f32 {v(T, 2)}, {v(T, 2)}, {v(F + 2 * i, 2)}")
    row_total(A, T, bits, wr, rd, 512)
    for i in range(n // 2):
        A(f"v_pk_add_f32 {v(F + 2 * i, 2)}, {v(F + 2 * i, 2)}, {v(T, 2)} op_sel_hi:[1,0] neg_lo:[0,1] neg_hi:[0,1]")
    A(f"v_pk_mul_f32 {v(T, 2)}, {v(F, 2)}, {v(F, 2)}")
    for i in range(1, n // 2):
        A(f"v_pk_fma_f32 {v(T, 2)}, {v(F + 2 * i, 2)}, {v(F + 2 * i, 2)}, {v(T, 2)}")
    row_total(A, T, bits, wr, rd, 768)
    A(f"v_add_f32 {v(T)}, 0x3727c5ac, {v(T)}")
    A(f"v_rsq_f32 {v(T)}, {v(T)}")
    A("s_nop 0")
    for i in range(n // 2):
        A(f"v_pk_mul_f32 {v(F + 2 * i, 2)}, {v(F + 2 * i, 2)}, {v(T, 2)} op_sel_hi:[1,0]")


def stat_addrs(A, wr, rd, mask):
    A(f"v_and_b32 {v(rd)}, {mask}, {v(LANE)}")
    A(f"v_lshlrev_b32 {v(rd)}, 4, {v(rd)}")
    A(f"s_lshl_b32 {s(S_T0)}, {s(S_WAVE)}, 2")
    A(f"v_add_u32 {v(wr)}, {s(S_T0)}, {v(rd)}")


def helper_start(A, cfg, end):
    X, F, SH, SC, T = 16, 48, 112, 176, 240
    P1A, WR, RD, VA, VX, VG = 10, 11, 12, 13, 6, 7
    A(f"v_mov_b32 {v(LANE)}, v1")
    A(f"s_sub_u32 {s(S_T2)}, {s(S_GRP)}, 4")
    A(f"s_lshl_b32 {s(S_K)}, {s(S_TK)}, 2")
    A(f"s_add_u32 {s(S_K)}, {s(S_K)}, {s(S_T2)}")
    A(f"s_sub_u32 {s(S_K)}, {s(S_K)}, 64")
    A(f"s_mul_i32 {s(S_CU)}, {s(S_T2)}, 14")
    A(f"s_add_u32 {s(S_CU)}, {s(S_CU)}, {s(S_TK)}")
    A(f"s_sub_u32 {s(S_CU)}, {s(S_CU)}, 16")
    A(f"s_lshl_b32 {s(S_T3)}, {s(S_T2)}, 1")
    A(f"s_add_u32 {s(S_T3)}, {s(S_T3)}, {s(S_TK)}")
    A(f"s_add_u32 {s(S_T3)}, {s(S_T3)}, 26")
    A(f"s_cmp_ge_u32 {s(S_TK)}, 30")
    A(f"s_cselect_b32 {s(S_CU)}, {s(S_T3)}, {s(S_CU)}")
    ptr(A, 16, "wmod")
    ptr(A, 18, "c")
    ptr(A, 20, "x")
    line_addr(A, P1A, 0, L.P1, S_K, TMP)
    line_addr(A, 8, 0, L.P45, S_CU, TMP)
    A("v_mov_b32 v14, 0")
    A("v_mov_b32 v15, 0")
    A(f"buffer_store_dword v14, {v(P1A)}, {s(SWS, 4)}, 0 offen sc1")
    A(f"buffer_store_dwordx2 v[14:15], v8, {s(SWS, 4)}, 0 offen sc1")
    A("s_waitcnt lgkmcnt(0)")
    A.srd(SW, 16, SIZE["wmod"])
    A.srd(SW2, 18, SIZE["c"])
    A.srd(SW3, 20, SIZE["x"])

    def stage(n, join=True):
        A(f"v_mov_b32 v14, {n}")
        A("s_waitcnt vmcnt(0)")
        if join:
            A("s_barrier")
        A(f"buffer_store_dword v14, {v(P1A)}, {s(SWS, 4)}, 0 offen sc1")

    stat_addrs(A, WR, RD, 15)
    A(f"v_lshlrev_b32 {v(VA)}, 4, {v(LANE)}")
    A(f"v_lshrrev_b32 {v(VG)}, 4, {v(LANE)}")
    A(f"v_lshlrev_b32 {v(VX)}, 7, {v(RD)}")
    A(f"v_lshl_add_u32 {v(VX)}, {v(VG)}, 4, {v(VX)}")
    A(f"v_lshlrev_b32 {v(VG)}, 5, {v(VG)}")

    def x_rows():
        for rep in range(2):
            A(f"s_add_u32 {s(S_T2)}, {s(S_K)}, {64 * rep}")
            A(f"s_lshl_b32 s41, {s(S_T2)}, 15")
            A(f"s_lshl_b32 s42, {s(S_WAVE)}, 9")
            A("s_add_u32 s41, s41, s42")
            for k in range(8):
                A(f"buffer_load_dwordx4 {a(32 * rep + 4 * k, 4)}, {v(VX)}, {s(SW3, 4)}, s41 offen offset:{64 * k}")
        return 16
    A(f"s_mov_b32 {s(S_T2)}, 1")
    arrive(A, S_T2, True, join=False, t=14)
    A(f"s_lshr_b32 {s(S_P0)}, {s(S_K)}, 1")
    A(f"s_and_b32 {s(S_P1)}, {s(S_K)}, 1")
    mod_addr(A)
    mod_pass(A, S_P0, S_P1, SW, SW2, WFLAG[cfg.wmod], x_rows)
    A(f"s_lshl_b32 {s(S_P0)}, {s(S_P0)}, 8")
    A(f"s_lshl_b32 {s(S_P1)}, {s(S_P1)}, 13")
    A(f"s_add_u32 {s(S_P0)}, {s(S_P0)}, {s(S_P1)}")
    A(f"s_add_u32 {s(S_P0)}, {s(S_P0)}, {L.MODP}")
    mod_finish(A, S_WAVE, S_P0, False)
    stage(1, False)
    mark(A, cfg, 4)
    for rep in range(2):
        A(f"s_add_u32 {s(S_T2)}, {s(S_K)}, {64 * rep}")
        for k in range(32):
            A(f"v_accvgpr_read_b32 {v(X + k)}, {a(32 * rep + k)}")
        A(f"s_lshr_b32 s40, {s(S_T2)}, 1")
        A("s_lshl_b32 s40, s40, 2")
        A(f"s_add_u32 s40, s40, {s(S_WAVE)}")
        A("s_lshl_b32 s40, s40, 14")
        A(f"s_and_b32 s41, {s(S_T2)}, 1")
        A("s_lshl_b32 s41, s41, 10")
        A("s_add_u32 s40, s40, s41")
        unpack(A, F, X, 32)
        normalise(A, F, 64, T, (16, 32), WR, RD)
        if rep == 0:
            await_start(A, end, 14, True)
            await_helpers(A, 1, end, 14)
            A.c("shift and 1+scale, summed and rounded once per workgroup, shared through LDS")
            A("v_lshlrev_b32 v14, 5, v0")
            for h in range(2):
                A(f"s_mov_b32 s42, {L.MODP + 8192 * h}")
                for i in range(2):
                    A(f"buffer_load_dwordx4 {v(X + 8 * h + 4 * i, 4)}, v14, {s(SWS, 4)}, s42 offen offset:{16 * i} sc1")
            A(f"s_cmp_ge_u32 {s(S_WAVE)}, 2")
            A("s_cselect_b32 s42, 1.0, 0")
            A(f"s_lshl_b32 s43, {s(S_WAVE)}, 10")
            A(f"v_add_u32 {v(VG)}, s43, {v(VG)}")
            A("s_waitcnt vmcnt(0)")
            for i in range(8):
                A(f"v_add_f32 {v(X + i)}, {v(X + i)}, {v(X + 8 + i)}")
            for i in range(8):
                A(f"v_cvt_pk_bf16_f32 {v(X + i)}, 0, {v(X + i)}")
            for i in range(8):
                A(f"v_add_f32 {v(X + i)}, s42, {v(X + i)}")
            for i in range(2):
                A(f"ds_write_b128 v14, {v(X + 4 * i, 4)} offset:{4096 + 16 * i}")
            A("s_waitcnt lgkmcnt(0)")
            A("s_barrier")
            for n in range(16):
                off = 4096 + 128 * (n >> 1) + 16 * (n & 1)
                A(f"ds_read_b128 {v(SH + 4 * n, 4)}, {v(VG)} offset:{off}")
                A(f"ds_read_b128 {v(SC + 4 * n, 4)}, {v(VG)} offset:{off + 4096}")
            A("s_waitcnt lgkmcnt(0)")
        for k in range(8):
            for i in range(4):
                x = 8 * k + 2 * i
                A(f"v_pk_fma_f32 {v(F + x, 2)}, {v(F + x, 2)}, {v(SC + x, 2)}, {v(SH + x, 2)}")
            pack8(A, X + 4 * k, F + 8 * k, F + 8 * k + 4)
            A(f"s_add_u32 s41, s40, {L.H1 + 2048 * k}")
            A(f"buffer_store_dwordx4 {v(X + 4 * k, 4)}, {v(VA)}, {s(SWS, 4)}, s41 offen sc1")
        stage(2 + rep)
        mark(A, cfg, 5 + rep)
    loop = A.new("md")
    A(f"s_add_u32 {s(S_P0)}, {s(S_K)}, 32")
    A(f"s_mov_b32 {s(S_P1)}, 0")
    mod_addr(A)
    A.label(loop)
    mod_pass(A, S_P0, S_P1, SW, SW2, WFLAG[cfg.wmod])
    A(f"s_add_u32 {s(S_P1)}, {s(S_P1)}, 1")
    A(f"s_cmp_lt_u32 {s(S_P1)}, 2")
    A(f"s_cbranch_scc1 {loop}")
    A(f"s_lshl_b32 {s(S_P0)}, {s(S_P0)}, 8")
    A(f"s_add_u32 {s(S_P0)}, {s(S_P0)}, {L.MOD}")
    mod_finish(A, S_WAVE, S_P0, True)
    stage(4, False)
    A(f"v_mov_b32 {v(VPA)}, v8")
    A(f"v_mov_b32 {v(VP)}, 0")
    mark(A, cfg, 7)


def ln_role(A, cfg, end):
    A.c("x1 = x + ga * attention, h2 = modulated layer norm of x1, for 8 tokens of every other segment")
    PB, XB, F, GA, SC, SH, T, WR, RD = 16, 80, 96, 128, 160, 192, 224, 11, 12
    A(f"s_sub_u32 {s(S_K)}, {s(S_CU)}, 56")
    A(f"s_and_b32 {s(S_T2)}, {s(S_K)}, 3")
    A(f"s_lshl_b32 {s(S_T3)}, {s(S_WAVE)}, 2")
    octet_addrs(A, S_T2, S_T3)
    stat_addrs(A, WR, RD, 7)
    unit_consts(A)
    lines_addr(A, VFA, LANE, 32)
    A(f"s_lshr_b32 {s(S_FA)}, {s(S_K)}, 2")
    A(f"s_xor_b32 {s(S_FA)}, {s(S_FA)}, 1")
    A(f"s_lshl_b32 {s(S_FA)}, {s(S_FA)}, 12")
    A(f"s_add_u32 {s(S_FA)}, {s(S_FA)}, {L.P3}")
    await_start(A, end)
    await_helpers(A, 4, end)
    for reg, part in ((GA, 2), (SH, 3), (SC, 4)):
        A(f"s_mov_b32 {s(S_T0)}, {L.MOD + 4096 * part}")
        for i in range(8):
            A(f"buffer_load_dwordx4 {v(reg + 4 * i, 4)}, {v(VO + 2)}, {s(SWS, 4)}, {s(S_T0)} offen offset:{256 * (i >> 1) + 16 * (i & 1)} sc1")
    A("s_waitcnt vmcnt(0)")
    for i in range(16):
        A(f"v_pk_add_f32 {v(SC + 2 * i, 2)}, {v(SC + 2 * i, 2)}, 1.0 op_sel_hi:[1,0]")
    A(f"s_lshr_b32 {s(S_STEP)}, {s(S_K)}, 2")
    loop = A.new("ln")
    A.label(loop)
    A(f"s_lshl_b32 {s(S_OUT)}, {s(S_STEP)}, 16")
    for i in range(4):
        A(f"buffer_load_dwordx4 {v(XB + 4 * i, 4)}, {v(VO + 1)}, {s(SW3, 4)}, {s(S_OUT)} offen offset:{128 * i}")
    A(f"s_add_u32 {s(S_NEED)}, {s(S_STEP)}, 1")

    block_on(A, lambda: A(f"buffer_load_dword {v(VF)}, {v(VFA)}, {s(SWS, 4)}, {s(S_FA)} offen sc1"),
             lambda: A(f"v_cmp_gt_u32 vcc, {s(S_NEED)}, {v(VF)}"), end, cfg.ln_sleep)
    for i in range(4):
        for x in range(4):
            A(f"s_add_u32 {s(S_T1)}, {s(S_OUT)}, {L.PART3 + x * 4 * L.MB + 4096 * i}")
            A(f"buffer_load_dwordx4 {v(PB + 16 * i + 4 * x, 4)}, {v(VO)}, {s(SWS, 4)}, {s(S_T1)} offen sc1")
    unpack(A, F, XB, 16)
    for i in range(4):
        A(f"s_waitcnt vmcnt({4 * (3 - i) + i})")
        sum_bf(A, T, [PB + 16 * i + 4 * x for x in range(4)], 4)
        A("s_nop 1")
        for q in range(4):
            x = 8 * i + 2 * q
            A(f"v_pk_fma_f32 {v(F + x, 2)}, {v(T + 2 * q, 2)}, {v(GA + x, 2)}, {v(F + x, 2)}")
        pack8(A, XB + 4 * i, F + 8 * i, F + 8 * i + 4)
        A(f"s_add_u32 {s(S_T1)}, {s(S_OUT)}, {L.X1 + 4096 * i}")
        A(f"buffer_store_dwordx4 {v(XB + 4 * i, 4)}, {v(VO)}, {s(SWS, 4)}, {s(S_T1)} offen sc1")
        unpack(A, F + 8 * i, XB + 4 * i, 4)
    normalise(A, F, 32, T, (8, 16, 32), WR, RD)
    for i in range(4):
        for q in range(4):
            x = 8 * i + 2 * q
            A(f"v_pk_fma_f32 {v(F + x, 2)}, {v(F + x, 2)}, {v(SC + x, 2)}, {v(SH + x, 2)}")
        pack8(A, PB + 4 * i, F + 8 * i, F + 8 * i + 4)
        A(f"s_add_u32 {s(S_T1)}, {s(S_OUT)}, {L.H2 + 4096 * i}")
        A(f"buffer_store_dwordx4 {v(PB + 4 * i, 4)}, {v(VO)}, {s(SWS, 4)}, {s(S_T1)} offen sc1")
    A(f"v_mov_b32 {v(VP)}, {s(S_NEED)}")
    A("s_waitcnt vmcnt(0)")
    A("s_barrier")
    A(f"buffer_store_dword {v(VP)}, {v(VPA)}, {s(SWS, 4)}, 0 offen sc1")
    mark(A, cfg, s(S_NEED))
    A(f"s_add_u32 {s(S_STEP)}, {s(S_STEP)}, 2")
    A(f"s_cmp_lt_u32 {s(S_STEP)}, 64")
    A(f"s_cbranch_scc1 {loop}")
    A("s_endpgm")


def g45_role(A, cfg, end):
    A.c("64 hidden units of silu(h w1) * (h w3) and a 512 x 128 slice of the down projection")
    VD5, VR5, VFA5, VF5 = 10, 11, 12, 13
    AC5, TE, VS, HV = 64, 88, 100, 104
    LAG = cfg.lag
    ptr(A, 16, "w1")
    ptr(A, 18, "w3")
    ptr(A, 20, "w2")
    A("s_waitcnt lgkmcnt(0)")
    A.srd(SW, 16, SIZE["w1"])
    A.srd(SW2, 18, SIZE["w3"])
    A.srd(SW3, 20, SIZE["w2"])
    A(f"s_lshl_b32 {s(S_P0)}, {s(S_CU)}, 7")
    A(f"s_lshl_b32 {s(S_T2)}, {s(S_WAVE)}, 5")
    for p in range(2):
        tile_addr(A, TMP + p, "N", False, S_T2, 16384 * p, TMP + 4, TMP + 5)
    load_w(A, [(SW, S_P0), (SW2, S_P0)], 7168, 8, [(TMP, 256), (TMP + 1, 384)], "N", TMP + 4, WFLAG[cfg.wff])
    A(f"s_lshr_b32 {s(S_K)}, {s(S_CU)}, 3")
    A(f"s_and_b32 {s(S_P2)}, {s(S_CU)}, 7")
    A(f"s_lshl_b32 {s(S_P0)}, {s(S_K)}, 20")
    A(f"s_lshl_b32 {s(S_T0)}, {s(S_P2)}, 8")
    A(f"s_add_u32 {s(S_P0)}, {s(S_P0)}, {s(S_T0)}")
    A(f"s_add_u32 {s(S_P1)}, {s(S_P0)}, 128")
    pair_tiles(A, "N")
    load_w(A, [(SW3, S_P0), (SW3, S_P1)], 2048, 4, [(TMP, 128), (TMP + 1, 192)], "N", TMP + 4, WFLAG[cfg.wff])
    mark(A, cfg, 1)
    common_regs(A, 16384)
    S_M5, S_FA5, S_NL, S_OUT4 = S_P0, S_P1, 64, 65
    A(f"s_lshl_b32 {s(S_M5)}, {s(S_WAVE)}, 13")
    A(f"v_add_u32 {v(VD5)}, {s(S_M5)}, {v(VR)}")
    A(f"v_add_u32 {v(VR5)}, 0x20000, {v(VR)}")
    A(f"v_mov_b32 {v(VO + 1)}, {v(VR)}")
    lines_addr(A, VFA, LANE, 4)
    lines_addr(A, VFA5, LANE, 8)
    A(f"s_lshl_b32 {s(S_FA5)}, {s(S_K)}, 10")
    A(f"s_add_u32 {s(S_FA5)}, {s(S_FA5)}, {L.P45}")
    A(f"s_lshl_b32 {s(S_T0)}, {s(S_CU)}, 1")
    A(f"s_lshr_b32 {s(S_T1)}, {s(S_WAVE)}, 1")
    A(f"s_add_u32 {s(S_T0)}, {s(S_T0)}, {s(S_T1)}")
    A(f"s_lshl_b32 {s(S_T0)}, {s(S_T0)}, 11")
    A(f"s_and_b32 {s(S_T1)}, {s(S_WAVE)}, 1")
    A(f"s_lshl_b32 {s(S_T1)}, {s(S_T1)}, 9")
    A(f"s_add_u32 {s(S_T0)}, {s(S_T0)}, {s(S_T1)}")
    A(f"v_and_b32 {v(TMP)}, 15, {v(LANE)}")
    A(f"v_lshl_add_u32 {v(VO)}, {v(TMP)}, 4, {s(S_T0)}")
    A(f"v_bfe_u32 {v(TMP)}, {v(LANE)}, 4, 1")
    A(f"v_lshl_add_u32 {v(VO)}, {v(TMP)}, 10, {v(VO)}")
    A(f"v_lshrrev_b32 {v(TMP)}, 5, {v(LANE)}")
    A(f"v_lshl_add_u32 {v(VO)}, {v(TMP)}, 8, {v(VO)}")
    A(f"s_mov_b32 {s(S_OUT)}, {L.HH}")
    A(f"s_mov_b32 {s(S_NXT)}, {L.H2}")
    A(f"s_lshl_b32 {s(S_NXT5)}, {s(S_K)}, 15")
    A(f"s_add_u32 {s(S_NXT5)}, {s(S_NXT5)}, {L.HH - LAG * 229376}")
    A(f"s_lshl_b32 {s(S_T0)}, {s(S_P2)}, 2")
    A(f"s_add_u32 {s(S_T0)}, {s(S_T0)}, {s(S_WAVE)}")
    A(f"s_lshl_b32 {s(S_T0)}, {s(S_T0)}, 11")
    A(f"s_lshl_b32 {s(S_P2)}, {s(S_K)}, 22")
    A(f"s_add_u32 {s(S_P2)}, {s(S_P2)}, {s(S_T0)}")
    A(f"s_add_u32 {s(S_P2)}, {s(S_P2)}, {L.PART5 - LAG * 65536}")
    A(f"s_mov_b32 {s(S_NL)}, 0xbfb8aa3b")
    A(f"v_mov_b32 {v(VS)}, 0")
    A(f"v_mov_b32 {v(VS + 1)}, 0")

    ldf = lambda B=A: B(f"buffer_load_dword {v(VF)}, {v(VFA)}, {s(SWS, 4)}, {s(S_FA)} offen sc1")
    ldf5 = lambda B=A: B(f"buffer_load_dword {v(VF5)}, {v(VFA5)}, {s(SWS, 4)}, {s(S_FA5)} offen sc1")
    tst5 = lambda: A(f"v_cmp_gt_u32 vcc, {s(S_NEED5)}, {v(VF5)}")

    def sig(back, B=A):
        B(f"s_sub_u32 {s(S_T0)}, {s(S_STEP)}, {back}")
        B(f"v_med3_i32 {v(VS)}, {s(S_T0)}, 0, 64")
        B(f"s_sub_u32 {s(S_T0)}, {s(S_T0)}, {LAG}")
        B(f"v_max_i32 {v(VS + 1)}, {s(S_T0)}, 0")
        B(f"buffer_store_dwordx2 {v(VS, 2)}, {v(VPA)}, {s(SWS, 4)}, 0 offen sc1")

    def store4(B=A):
        B(f"buffer_store_dwordx4 {v(TE + 8, 4)}, {v(VO)}, {s(SWS, 4)}, {s(S_OUT4)} offen sc1")

    def flag_for(B, d):
        B(f"s_add_u32 {s(S_NEED)}, {s(S_STEP)}, {d}")
        B(f"s_and_b32 {s(S_FA)}, {s(S_NEED)}, 1")
        B(f"s_lshl_b32 {s(S_FA)}, {s(S_FA)}, 9")
        B(f"s_add_u32 {s(S_FA)}, {s(S_FA)}, {L.PL}")
        B(f"s_add_u32 {s(S_NEED)}, {s(S_NEED)}, 1")

    def need5(B=A):
        B(f"s_sub_u32 {s(S_NEED5)}, {s(S_STEP)}, {LAG - 1}")
        B(f"s_max_i32 {s(S_NEED5)}, {s(S_NEED5)}, 0")

    def epi4(B, T):
        G, U, H = ACC + 4 * T, ACC + 8 + 4 * T, HV + 4 * T
        for i in range(4):
            B(f"v_mul_f32 {v(TE + i)}, {s(S_NL)}, {v(G + i)}")
        for i in range(4):
            B(f"v_exp_f32 {v(TE + i)}, {v(TE + i)}")
        for i in range(4):
            B(f"v_mul_f32 {v(H + i)}, {v(G + i)}, {v(U + i)}")
        for i in range(4):
            B(f"v_add_f32 {v(TE + i)}, 1.0, {v(TE + i)}")
        for i in range(4):
            B(f"v_rcp_f32 {v(TE + i)}, {v(TE + i)}")
        for i in range(4):
            B(f"v_mul_f32 {v(H + i)}, {v(H + i)}, {v(TE + i)}")
        if T:
            pack8(B, TE + 8, HV, HV + 4)
            B("GAP 2")
            B(f"v_permlane16_swap_b32 {v(TE + 8)}, {v(TE + 10)}")
            B(f"v_permlane16_swap_b32 {v(TE + 9)}, {v(TE + 11)}")

    def epi5(B=A, part=3):
        if part & 1:
            for T in range(2):
                pack8(B, TMP + 4 * T, AC5 + 8 * T, AC5 + 8 * T + 4)
        if part & 2:
            for T in range(2):
                B(f"buffer_store_dwordx4 {v(TMP + 4 * T, 4)}, {v(VO + 1)}, {s(SWS, 4)}, {s(S_OUT5)} offen offset:{1024 * T} sc1")

    def after5(B=A):
        B(f"s_cmp_ge_u32 {s(S_STEP)}, {LAG}")
        B(f"s_cselect_b32 {s(S_OUT5)}, {s(S_P2)}, {hex(OOB)}")
        B(f"s_mov_b32 {s(S_OUT4)}, {s(S_OUT)}")
        B(f"s_add_u32 {s(S_OUT)}, {s(S_OUT)}, 229376")
        B(f"s_add_u32 {s(S_P2)}, {s(S_P2)}, 65536")
        B(f"s_add_u32 {s(S_NXT5)}, {s(S_NXT5)}, 229376")
        B(f"s_add_u32 {s(S_STEP)}, {s(S_STEP)}, 1")
    t4 = [(lambda T: ACC + 4 * T, lambda ks: 256 + 4 * ks, False),
          (lambda T: ACC + 8 + 4 * T, lambda ks: 384 + 4 * ks, False)]
    t5 = [(lambda T: AC5 + 8 * T, lambda ks: 128 + 4 * ks, False),
          (lambda T: AC5 + 8 * T + 4, lambda ks: 192 + 4 * ks, False)]
    body, wait, late5, go5, starved, mid = (A.new(x) for x in ("fb", "fw", "fl", "fg", "fs", "fi"))
    tst = lambda: A(f"v_cmp_gt_u32 vcc, {s(S_NEED)}, {v(VF)}")
    rd4, rd5 = reader(VR, 64, True), reader(VR5, 32, False)
    A(f"s_mov_b32 {s(S_STEP)}, 0")
    lap_init(A, cfg)
    lap(A, cfg, 7)
    A.label(wait)
    flag_for(A, 0)
    block_on(A, ldf, tst, end, cfg.g4_sleep)
    for op in dma_list(4, S_M0, 0, S_NXT, VD):
        A(op)
    flag_for(A, 1)
    ldf()
    ldf5()
    A(f"s_mov_b32 {s(S_OUT4)}, {hex(OOB)}")
    A(f"s_mov_b32 {s(S_OUT5)}, {hex(OOB)}")
    A("s_waitcnt vmcnt(0)")
    A("s_barrier")
    lap(A, cfg, 4)
    first_reads(A, rd4)
    A.label(body)

    def head(B):
        B(f"s_add_u32 {s(S_NXT)}, {s(S_NXT)}, 65536")
        B(f"s_xor_b32 {s(S_M0)}, {s(S_M0)}, 0x10000")
        need5(B)
        decide(B, S_NEED, VF, S_RDY, S_SRC, S_NXT, True)
        decide(B, S_NEED5, VF5, S_RDY5, S_SRC5, S_NXT5, True)

    def burst(B):
        sig(1, B)
        store4(B)
        epi5(B, 2)
    dl = dma_list(2, S_M5, 0x20000, S_SRC5, VD5) + dma_list(4, S_M0, 0, S_SRC, VD)
    n1 = min(24, (118 - 8) // cfg.g4_step)
    cut = [i for i, op in enumerate(dl) if op.startswith("buffer")][n1 - 1] + 1
    n2 = min(24 - n1, 2)
    cut2 = [i for i, op in enumerate(dl) if op.startswith("buffer")][n1 + n2 - 1] + 1
    job(A, 64, rd4, True, t4,
        [(0, 1, lines(head)), (0, cfg.g4_step, dl[:cut]), (-10, 1, lines(lambda B: epi5(B, 1))),
         (-72, 1, lines(lambda B: epi4(B, 0)))], 0, 59)
    lap(A, cfg, 0)
    A(f"s_cmp_eq_u32 {s(S_RDY5)}, 0")
    A(f"s_cbranch_scc1 {late5}")
    A(f"s_waitcnt vmcnt({n1 - 8}) lgkmcnt(0)")
    A.label(go5)
    A("s_barrier")
    lap(A, cfg, 1)
    job(A, 64, rd4, True, t4, [(2, 4, dl[cut:cut2]), (-1, 1, lines(lambda B: flag_for(B, 2)) + [f"v_xor_b32 {v(VR)}, 0x10000, {v(VR)}"])], 59, 64, rd5)
    e41 = lines(lambda B: epi4(B, 1))
    job(A, 32, rd5, False, t5,
        [(0, cfg.g4_step, dl[cut2:]), (0, 2, lines(ldf) + lines(ldf5)), (0, cfg.st_step, lines(burst)),
         (42, 1, e41[24:] + lines(after5)),
         (-8, 1, e41[:24] + ["END 42"])], 0, 27)
    mark(A, cfg, s(S_STEP))
    lap(A, cfg, 2)
    A(f"s_cmp_eq_u32 {s(S_RDY)}, 0")
    A(f"s_cbranch_scc1 {starved}")
    A("s_waitcnt vmcnt(4) lgkmcnt(0)")
    A("s_barrier")
    lap(A, cfg, 3)
    job(A, 32, rd5, False, t5, [], 27, 32, rd4)
    A(f"s_branch {body}")
    A.label(starved)
    if cfg.marks == 2:
        A("s_add_u32 s75, s75, 64")
    store4()
    A("s_waitcnt lgkmcnt(0)")
    job(A, 32, rd5, False, t5, [], 27, 32)
    A.nop(8)
    epi5()
    A(f"s_cmp_lt_u32 {s(S_STEP)}, 64")
    A(f"s_cbranch_scc1 {wait}")
    lap_dump(A, cfg)
    A.c("remaining down projections; their inputs go to the free up-projection buffers")
    A(f"s_mov_b32 {s(S_NEED5)}, 63")
    A("s_waitcnt vmcnt(0)")
    A("s_barrier")
    sig(0)
    block_on(A, ldf5, tst5, end, 1)
    for i in range(LAG - 1):
        A(f"s_add_u32 {s(S_SRC5)}, {s(S_NXT5)}, {229376 * i}")
        for op in dma_list(2, S_M5, 0x8000 * i, S_SRC5, VD5):
            A(op)
    A(f"v_lshlrev_b32 {v(VR5)}, 4, {v(LANE)}")
    last, more = A.new("fz"), A.new("fm")
    A.label(last)
    A("s_waitcnt vmcnt(0)")
    A("s_barrier")
    A.label(more)
    need5()
    first_reads(A, rd5)
    job(A, 32, rd5, False, t5, [])
    after5()
    A(f"v_add_u32 {v(VR5)}, 0x8000, {v(VR5)}")
    A.nop(2)
    epi5()
    mark(A, cfg, s(S_STEP))
    A(f"s_cmp_lt_u32 {s(S_STEP)}, {63 + LAG}")
    A(f"s_cbranch_scc1 {more}")
    A("s_waitcnt vmcnt(0)")
    A("s_barrier")
    sig(0)
    A(f"s_cmp_eq_u32 {s(S_STEP)}, {64 + LAG}")
    A(f"s_cbranch_scc1 {end}")
    A(f"s_mov_b32 {s(S_NEED5)}, 64")
    block_on(A, ldf5, tst5, end, 1)
    for op in dma_list(2, S_M5, 0x8000 * (LAG - 1), S_NXT5, VD5):
        A(op)
    A(f"s_branch {last}")
    A.label(late5)
    if cfg.marks == 2:
        A("s_add_u32 s76, s76, 64")
    block_on(A, ldf5, tst5, end)
    for op in dma_list(2, S_M5, 0x20000, S_NXT5, VD5):
        A(op)
    for op in [x for x in dl[:cut] if x.startswith("s_")][-2:]:
        A(op)
    A("s_waitcnt vmcnt(0) lgkmcnt(0)")
    A(f"s_branch {go5}")
```

```python
from asmlib import *
import layout as L

SWS, SW, SDBG = 4, 8, 12
P_MEM0, P_WQ, P_WK, P_WV, P_WO, P_DBG, P_WS = 16, 18, 20, 22, 24, 28, 30
S_WAVE, S_GRP, S_TK, S_IRR, S_STEP, S_BUD, S_T0, S_T1 = 32, 33, 34, 35, 36, 37, 38, 39
S_CUR, S_NXT, S_RST, S_XCUR, S_XRST, S_RBASE, S_PAR, S_PF, S_C, S_NC, S_OT = range(40, 51)
S_XCC, S_T2, S_T3 = 51, 52, 53
S_FB, S_TAG = 59, 26
S_XC, S_XR = 84, 88
S_STAMP = 60
S_CNT = 80
NSTART = 256
BUDGET = 200000
SM = "v_smfmac_f32_16x16x64_bf16"
MF = "v_mfma_f32_16x16x32_bf16"


WFLAG = ("", " nt", " sc1")


class Cfg:
    trace = 0
    nsteps = 64
    lag = 4
    wlo = 0
    whi = 0
    wff = 0
    wmod = 0
    ramp_lo = 5
    ramp_hi = 3
    g3_after = 0
    meet = 1
    gate2 = 0
    gate_entry = 0
    gate3 = 0
    gate = 0
    outflag = 2
    qkv_slow = 3
    g4_split = 4
    g4_step = 5
    st_step = 4
    g4_late = 1
    mark = staticmethod(lambda A, i: None)
    fin_sleep = 4
    ln_sleep = 2
    g4_sleep = 4
    solo = 0
    cyc = 0
    flip = 0
    nrep = 2
    xdelay = 28
    xgap = 12
    xfill = 0
    fm_delay = 36
    mdelay = 8
    fo_pos = 3
    use_fm = 1
    use_fo = 1
    fspace = 12
    lspace = 4
    ltail = 1
    kpos = 1
    vpos = 0
    ksplit = 2
    qsplit = 5
    rpos = 3
    vin = 2
    vk = 2
    xdepth = 3
    xgap2 = 4
    xbf = 1
    vchk = 1
    qpipe = 0
    hw = 2
    hr = 3


def gate(A, us):
    if us:
        gl = A.new("gate")
        A.label(gl)
        A("s_memrealtime s[92:93]")
        A("s_waitcnt lgkmcnt(0)")
        A("s_sub_u32 s92, s92, s90")
        A(f"s_cmp_lt_u32 s92, {us * 100}")
        A(f"s_cbranch_scc1 {gl}")


def heat(A, h, n):
    for _ in range(n):
        A(f"{MF} {v(h, 4)}, {v(h + 4, 4)}, {v(h + 4, 4)}, 0")


def stamp(A, cfg, i, lvl=1):
    if cfg.trace in (1, lvl):
        A(f"{'s_memtime' if cfg.cyc else 's_memrealtime'} {s(S_STAMP + 2 * i, 2)}")


def count(A, cfg, i):
    if cfg.trace == 1:
        A(f"s_add_u32 {s(S_CNT + i)}, {s(S_CNT + i)}, 1")


def flush_stamps(A, cfg, n, vt, va, lvl=1):
    if cfg.trace not in (1, lvl):
        return
    A("s_waitcnt lgkmcnt(0)")
    for i in range(n):
        A(f"v_writelane_b32 {v(vt)}, {s(S_STAMP + 2 * i)}, {i}")
    A(f"v_writelane_b32 {v(vt)}, {s(S_BUD)}, 8")
    for i in range(4):
        A(f"v_writelane_b32 {v(vt)}, {s(S_CNT + i)}, {9 + i}")
    A(f"s_mul_i32 {s(S_T0)}, {s(S_GRP)}, 24")
    A(f"s_add_u32 {s(S_T0)}, {s(S_T0)}, {s(S_TK)}")
    A(f"s_lshl_b32 {s(S_T0)}, {s(S_T0)}, 2")
    A(f"s_add_u32 {s(S_T0)}, {s(S_T0)}, {s(S_WAVE)}")
    A(f"s_lshl_b32 {s(S_T0)}, {s(S_T0)}, 6")
    A(f"s_add_u32 {s(S_T0)}, {s(S_T0)}, {s(S_STEP)}")
    A(f"s_lshl_b32 {s(S_T0)}, {s(S_T0)}, 6")
    A(f"s_add_u32 {s(S_T0)}, {s(S_T0)}, {L.TRACE}")
    A(f"v_mbcnt_lo_u32_b32 {v(va)}, -1, 0")
    A(f"v_lshlrev_b32 {v(va)}, 2, {v(va)}")
    A("s_mov_b64 exec, 0xffff")
    A(f"buffer_store_dword {v(vt)}, {v(va)}, {s(SWS, 4)}, {s(S_T0)} offen")
    A("s_mov_b64 exec, -1")


def check(A, reg, n, tmp):
    if n == 4:
        A(f"v_max3_u32 {v(tmp)}, {v(reg)}, {v(reg + 1)}, {v(reg + 2)}")
        A(f"v_max_u32 {v(tmp)}, {v(tmp)}, {v(reg + 3)}")
    elif n > 4:
        A(f"v_max3_u32 {v(tmp)}, {v(reg)}, {v(reg + 1)}, {v(reg + 2)}")
        for i in range(3, n - 1, 2):
            A(f"v_max3_u32 {v(tmp)}, {v(tmp)}, {v(reg + i)}, {v(reg + i + 1)}")
        A(f"v_max_u32 {v(tmp)}, {v(tmp)}, {v(reg + n - 1)}")
    elif n == 2:
        A(f"v_max_u32 {v(tmp)}, {v(reg)}, {v(reg + 1)}")
    A(f"v_cmp_eq_u32 vcc, -1, {v(tmp)}")


def spend(A, abort):
    A(f"s_sub_u32 {s(S_BUD)}, {s(S_BUD)}, 1")
    A(f"s_cbranch_scc1 {abort}")


def fsm_poll(A, n, ld, chk, use, abort, finished=None, fast=None, onfail=None):
    done = A.new("pd")
    labels, emitted, todo = {}, set(), []
    full = frozenset(range(n))
    if finished is None:
        finished = lambda got: got == full

    def lab(st):
        if st not in labels:
            labels[st] = A.new("ps")
            todo.append(st)
        return labels[st]

    fails = []

    def chain_from(st, last):
        while True:
            if st in emitted:
                A(f"s_branch {lab(st)}")
                return
            emitted.add(st)
            A.label(lab(st))
            fl = A.new("pf")
            fails.append((fl, st))
            A(f"s_waitcnt vmcnt({len(st) - 1})")
            chk(st[0])
            A(f"s_cbranch_vccnz {fl}")
            rest = st[1:]
            fin = finished(full - frozenset(rest))
            use(st[0], () if fin else rest)
            if fin:
                if not last:
                    A(f"s_branch {done}")
                return
            st = rest

    if fast is None:
        chain_from(tuple(range(n)), True)
    else:
        head, tail = fast
        for i in range(n):
            fl = A.new("pf")
            fails.append((fl, tuple(range(i, n))))
            A(f"s_waitcnt vmcnt({n - 1 - i})")
            chk(i)
            if i:
                tail(i - 1)
            A(f"s_cbranch_vccnz {fl}")
            head(i)
        tail(n - 1)

    def rest_code():
        i = 0
        while i < len(fails) or any(t not in emitted for t in todo):
            while i < len(fails):
                fl, st = fails[i]
                i += 1
                A.label(fl)
                ld(st[0])
                if onfail:
                    onfail(i <= n and fast is not None)
                if st[0] == min(st):
                    spend(A, abort)
                chain_from(st[1:] + st[:1], False)
            for t in list(todo):
                if t not in emitted:
                    chain_from(t, False)
    return done, rest_code


def flag_wait(A, cfg, vaddr, buf, nl, abort):
    go, top = A.new("fg"), A.new("ft")
    ld = lambda b: A(f"buffer_load_dword {v(buf + b)}, {v(vaddr)}, {s(SWS, 4)}, {s(S_FB)} offen sc1")
    A(f"s_mov_b64 exec, {(1 << nl) - 1}")
    for b in range(3):
        ld(b)
        if b < 2:
            A.nop(cfg.fspace)
    A.label(top)
    for b in range(3):
        A("s_waitcnt vmcnt(2)")
        A(f"v_cmp_gt_u32 vcc, {s(S_TAG)}, {v(buf + b)}")
        A(f"s_cbranch_vccz {go}")
        ld(b)
    spend(A, abort)
    A(f"s_branch {top}")
    A.label(go)
    A("s_mov_b64 exec, -1")


def load_weights(A, chunks, vglob, vtr, flag="", first=None, ramp=5):
    NS = 5

    def issue(c):
        setup, stride, order, dst = chunks[c]
        setup()
        A(f"s_mul_i32 {s(S_T0)}, {s(S_WAVE)}, 40960")
        A(f"s_add_u32 m0, {s(S_T0)}, {(c % NS) * 8192}")
        for j in range(8):
            if j:
                A(f"s_add_u32 m0, m0, 1024")
                A(f"s_add_u32 {s(S_T1)}, {s(S_T1)}, {8 * stride}")
            else:
                A("s_nop 0")
            A(f"buffer_load_dwordx4 {v(vglob[stride])}, {s(SW, 4)}, {s(S_T1)} offen{flag} lds")

    n = len(chunks)
    for c in range(ramp):
        issue(c)
    if ramp < NS:
        A(f"s_waitcnt vmcnt({8 * (ramp - 1)})")
        for c in range(ramp, NS):
            issue(c)
    for c in range(n):
        setup, stride, order, dst = chunks[c]
        A(f"s_waitcnt vmcnt({8 * (min(c + NS, n) - c - 1)})")
        if c == 0 and first:
            first()
        for t in range(4):
            for H in range(2):
                for q in range(2):
                    row = 32 * H + (16 * q if order == "P" else 2 * q)
                    off = (c % NS) * 8192 + row * 128 + t * 32
                    A(f"ds_read_b64_tr_b16 {r(dst(t) + 4 * H + 2 * q, 2)}, {v(vtr[order])} offset:{off}")
        A("s_waitcnt lgkmcnt(0)")
        if c + NS < n:
            issue(c + NS)


def weight_addr_regs(A, lane, g8192, g2048, trP, trO, t0, t1):
    A(f"v_lshrrev_b32 {v(t0)}, 3, {v(lane)}")
    A(f"v_and_b32 {v(t1)}, 7, {v(lane)}")
    A(f"v_lshlrev_b32 {v(t1)}, 4, {v(t1)}")
    A(f"v_lshl_add_u32 {v(g8192)}, {v(t0)}, 13, {v(t1)}")
    A(f"v_lshl_add_u32 {v(g2048)}, {v(t0)}, 11, {v(t1)}")
    A(f"s_mul_i32 {s(S_T0)}, {s(S_WAVE)}, 40960")
    A(f"v_and_b32 {v(t1)}, 3, {v(lane)}")
    A(f"v_lshl_add_u32 {v(t1)}, {v(t1)}, 3, {s(S_T0)}")
    A(f"v_lshrrev_b32 {v(t0)}, 2, {v(lane)}")
    A(f"v_lshl_add_u32 {v(trP)}, {v(t0)}, 7, {v(t1)}")
    A(f"v_and_b32 {v(trO)}, 16, {v(lane)}")
    A(f"v_bfe_u32 {v(t0)}, {v(lane)}, 5, 1")
    A(f"v_lshl_add_u32 {v(trO)}, {v(t0)}, 3, {v(trO)}")
    A(f"v_bfe_u32 {v(t0)}, {v(lane)}, 3, 1")
    A(f"v_lshl_add_u32 {v(trO)}, {v(t0)}, 2, {v(trO)}")
    A(f"v_bfe_u32 {v(t0)}, {v(lane)}, 2, 1")
    A(f"v_add_u32 {v(trO)}, {v(trO)}, {v(t0)}")
    A(f"v_lshl_add_u32 {v(trO)}, {v(trO)}, 7, {v(t1)}")


def role_prologue(A, end):
    A("s_cmp_ge_u32 s2, 256")
    A(f"s_cbranch_scc1 {end}")
    A(f"s_load_dwordx8 {s(P_MEM0, 8)}, s[0:1], {KA['mem0']}")
    A(f"s_load_dwordx2 {s(P_WO, 2)}, s[0:1], {KA['Wo']}")
    A(f"s_load_dwordx4 {s(P_DBG, 4)}, s[0:1], {KA['dbg']}")
    A(f"s_getreg_b32 {s(S_XCC)}, hwreg(HW_REG_XCC_ID, 0, 4)")
    A(f"s_and_b32 {s(S_XCC)}, {s(S_XCC)}, 7")
    A("v_lshrrev_b32 v1, 6, v0")
    A("s_nop 0")
    A(f"v_readfirstlane_b32 {s(S_WAVE)}, v1")
    A("v_and_b32 v1, 63, v0")
    A("s_waitcnt lgkmcnt(0)")
    A.srd(SWS, P_WS, SIZE["ws"])
    A.srd(SDBG, P_DBG, SIZE["dbg"])
    A(f"s_mov_b32 {s(S_BUD)}, {BUDGET}")
    for i in range(4):
        A(f"s_mov_b32 {s(S_CNT + i)}, 0")
    got, loop, skip = A.new("rg"), A.new("rl"), A.new("rs")
    A(f"s_cmp_lg_u32 {s(S_WAVE)}, 0")
    A(f"s_cbranch_scc1 {skip}")
    A(f"s_mov_b32 {s(S_GRP)}, {s(S_XCC)}")
    A(f"s_mov_b32 {s(S_IRR)}, 0")
    A("s_mov_b64 exec, 1")
    A.label(loop)
    A(f"s_and_b32 {s(S_T0)}, {s(S_GRP)}, 4")
    A(f"s_mul_i32 {s(S_T0)}, {s(S_T0)}, 7")
    A(f"s_add_u32 {s(S_T0)}, {s(S_T0)}, {s(S_GRP)}")
    A(f"v_lshlrev_b32 v2, 2, {s(S_T0)}")
    A("v_mov_b32 v3, 1")
    A(f"buffer_atomic_add v3, v2, {s(SDBG, 4)}, 0 offen sc0 sc1")
    A("s_waitcnt vmcnt(0)")
    A(f"v_readfirstlane_b32 {s(S_TK)}, v3")
    A("s_nop 3")
    A(f"s_cmp_lt_u32 {s(S_TK)}, 32")
    A(f"s_cbranch_scc1 {got}")
    A(f"s_add_u32 {s(S_GRP)}, {s(S_GRP)}, 1")
    A(f"s_and_b32 {s(S_GRP)}, {s(S_GRP)}, 7")
    A(f"s_add_u32 {s(S_IRR)}, {s(S_IRR)}, 1")
    A(f"s_cmp_lt_u32 {s(S_IRR)}, 8")
    A(f"s_cbranch_scc1 {loop}")
    A.label(got)
    A(f"s_lshl_b32 {s(S_T0)}, {s(S_GRP)}, 8")
    A(f"s_min_u32 {s(S_TK)}, {s(S_TK)}, 255")
    A(f"s_or_b32 {s(S_T0)}, {s(S_T0)}, {s(S_TK)}")
    A(f"s_lshl_b32 {s(S_T1)}, {s(S_IRR)}, 16")
    A(f"s_or_b32 {s(S_T0)}, {s(S_T0)}, {s(S_T1)}")
    A(f"v_mov_b32 v3, {s(S_T0)}")
    A("v_mov_b32 v2, 0")
    A("ds_write_b32 v2, v3")
    A("s_mov_b64 exec, -1")
    A.label(skip)
    A("s_waitcnt lgkmcnt(0)")
    A("s_barrier")
    A("v_mov_b32 v2, 0")
    A("ds_read_b32 v3, v2")
    A("s_waitcnt lgkmcnt(0)")
    A(f"v_readfirstlane_b32 {s(S_T0)}, v3")
    A("s_barrier")
    A(f"s_and_b32 {s(S_TK)}, {s(S_T0)}, 255")
    A(f"s_bfe_u32 {s(S_GRP)}, {s(S_T0)}, 0x80008")
    A(f"s_lshr_b32 {s(S_IRR)}, {s(S_T0)}, 16")
    A(f"s_min_u32 {s(S_IRR)}, {s(S_IRR)}, 1")
    A(f"s_cmp_ge_u32 {s(S_TK)}, 32")
    A(f"s_cbranch_scc1 {end}")
    A.c("the roles that must start first take the first tickets")
    A(f"s_cmp_ge_u32 {s(S_GRP)}, 4")
    A(f"s_cselect_b32 {s(S_T0)}, 16, 24")
    A(f"s_add_u32 {s(S_TK)}, {s(S_TK)}, {s(S_T0)}")
    A(f"s_and_b32 {s(S_TK)}, {s(S_TK)}, 31")


def arrive(A, add_reg, hi=False, wait=True, join=True, t=48):
    skip = A.new("ar")
    if wait:
        A("s_waitcnt vmcnt(0)")
    if join:
        A("s_barrier")
    A(f"s_cmp_lg_u32 {s(S_WAVE)}, 0")
    A(f"s_cbranch_scc1 {skip}")
    A("s_mov_b64 exec, 1")
    A(f"v_mov_b32 {v(t)}, {160 if hi else 32}")
    A(f"v_mov_b32 {v(t + 1)}, {s(add_reg)}")
    A(f"buffer_atomic_add {v(t + 1)}, {v(t)}, {s(SDBG, 4)}, 0 offen sc1")
    A("s_mov_b64 exec, -1")
    A.label(skip)


def await_start(A, abort, t=48, hi_only=False):
    loop, out = A.new("st"), A.new("so")
    A.label(loop)
    A(f"buffer_load_dword {v(t)}, off, {s(SDBG, 4)}, 0 offset:{160 if hi_only else 32} sc1")
    A(f"buffer_load_dword {v(t + 1)}, off, {s(SDBG, 4)}, 0 offset:160 sc1")
    A("s_waitcnt vmcnt(0)")
    A(f"v_add_u32 {v(t)}, {v(t)}, {v(t + 1)}")
    A("s_nop 0")
    A(f"v_readfirstlane_b32 {s(S_T0)}, {v(t)}")
    A("s_nop 3")
    A(f"s_and_b32 {s(S_T1)}, {s(S_T0)}, 0xffff")
    A(f"s_cmp_eq_u32 {s(S_T1)}, {NSTART}")
    A(f"s_cbranch_scc1 {out}")
    spend(A, abort)
    A("s_sleep 8")
    A(f"s_branch {loop}")
    A.label(out)
    A(f"s_bfe_u32 {s(S_IRR)}, {s(S_T0)}, 0x80010")
    A(f"s_bfe_u32 {s(S_PAR)}, {s(S_T0)}, 0x10018")
    A(f"s_lshl_b32 {s(S_PAR)}, {s(S_PAR)}, 13")
    A("s_barrier")


def probe(A, lane, dst, dbg=False):
    skip = A.new("pb")
    A(f"s_cmp_lg_u32 {s(S_WAVE)}, 0")
    A(f"s_cbranch_scc1 {skip}")
    A(f"v_lshlrev_b32 v2, 8, {v(lane)}")
    A("v_mov_b32 v3, -1")
    A(f"s_mov_b32 {s(S_T3)}, {L.XRING + 0x8000}")
    A(f"buffer_store_dword v3, v2, {s(SWS, 4)}, {s(S_T3)} offen sc1")
    A("s_waitcnt vmcnt(0)")
    A("s_mov_b64 exec, 1")
    for h in range(2):
        A(f"s_mov_b32 {s(54 + h)}, -1")
    for rep in range(4):
        for h in range(2):
            A(f"v_mov_b32 v2, {h * 8192 + rep * 1792}")
            A(f"s_memtime {s(56, 2)}")
            A("s_waitcnt lgkmcnt(0)")
            A(f"buffer_load_dword v3, v2, {s(SWS, 4)}, {s(S_T3)} offen sc1")
            A("s_waitcnt vmcnt(0)")
            A(f"s_memtime {s(58, 2)}")
            A("s_waitcnt lgkmcnt(0)")
            A("s_sub_u32 s56, s58, s56")
            A(f"s_min_u32 {s(54 + h)}, {s(54 + h)}, s56")
    A("s_mov_b64 exec, -1")
    if dbg:
        A("v_mov_b32 v2, s54")
        A("v_mov_b32 v3, s55")
        A(f"buffer_store_dwordx2 v[2:3], off, {s(SDBG, 4)}, 0 offset:48")
    A("s_cmp_lt_u32 s55, s54")
    A("s_cselect_b32 s56, 1, 0")
    A(f"s_lshr_b32 s57, {s(S_XCC)}, 2")
    A("s_xor_b32 s56, s56, s57")
    A("s_lshl_b32 s56, s56, 24")
    A(f"s_or_b32 {s(dst)}, {s(dst)}, s56")
    A.label(skip)


def x_offsets(A, cfg, dst, slot):
    A(f"s_lshl_b32 {s(dst)}, {s(slot)}, 18")
    A(f"s_add_u32 {s(dst)}, {s(dst)}, {s(S_PAR)}")
    if cfg.nrep > 1:
        A(f"s_add_u32 {s(dst + 1)}, {s(dst)}, 0x100000")


def progress_addr(A, dst, lane, base, index, tmp, word=0):
    A(f"s_lshl_b32 {s(S_T0)}, {s(index)}, 5")
    A(f"s_add_u32 {s(S_T0)}, {s(S_T0)}, {s(S_WAVE)}")
    A(f"s_lshl_b32 {s(S_T0)}, {s(S_T0)}, 2")
    A(f"s_add_u32 {s(S_T0)}, {s(S_T0)}, {base + 4 * word}")
    A(f"v_min_u32 {v(tmp)}, 1, {v(lane)}")
    A(f"v_lshl_add_u32 {v(dst)}, {v(tmp)}, 30, {s(S_T0)}")


def line_addr(A, dst, tid, base, index, tmp):
    A(f"s_lshl_b32 {s(S_T0)}, {s(index)}, 7")
    A(f"s_add_u32 {s(S_T0)}, {s(S_T0)}, {base}")
    A(f"v_min_u32 {v(tmp)}, 1, {v(tid)}")
    A(f"v_lshl_add_u32 {v(dst)}, {v(tmp)}, 30, {s(S_T0)}")


def lines_addr(A, dst, lane, nlines, shift=7):
    A(f"v_min_u32 {v(dst)}, {nlines - 1}, {v(lane)}")
    A(f"v_lshlrev_b32 {v(dst)}, {shift}, {v(dst)}")


def words_addr(A, dst, lane, nlines, tmp, shift=2):
    A(f"v_lshrrev_b32 {v(tmp)}, 2, {v(lane)}")
    A(f"v_min_u32 {v(tmp)}, {nlines - 1}, {v(tmp)}")
    A(f"v_lshlrev_b32 {v(tmp)}, 7, {v(tmp)}")
    A(f"v_and_b32 {v(dst)}, 3, {v(lane)}")
    A(f"v_lshl_add_u32 {v(dst)}, {v(dst)}, {shift}, {v(tmp)}")


def block_on(A, ld, test, abort, sleep=2):
    top, out = A.new("bw"), A.new("bo")
    A.label(top)
    ld()
    A("s_waitcnt vmcnt(0)")
    test()
    A(f"s_cbranch_vccz {out}")
    spend(A, abort)
    A(f"s_sleep {sleep}")
    A(f"s_branch {top}")
    A.label(out)


def ring_slots(A):
    A(f"s_and_b32 {s(S_T0)}, {s(S_STEP)}, 3")
    A(f"s_lshl_b32 {s(S_T1)}, {s(S_T0)}, 16")
    A(f"s_add_u32 {s(S_CUR)}, {s(S_T1)}, {s(S_RBASE)}")
    A(f"s_xor_b32 {s(S_RST)}, {s(S_CUR)}, 0x20000")
    A(f"s_add_u32 {s(S_TAG)}, {s(S_STEP)}, 1")


def kvo_role(A, cfg, end):
    TID, LANE = 0, 1
    VG, VGO, PUBM, PUBK, PUBV, XOWN, XP = 8, 9, 10, 11, 27, 12, 13
    IDX, LR, LWV, LRV, CHK = 126, 24, 25, 127, 26
    LRO, FMR, FOR, FMW, FBUF, TAGV = 0, 1, 2, 3, 4, 7
    AP, ACK, ACV, ACO, HS, RD, SUM, SENT = 28, 44, 60, 76, 92, 100, 116, 120
    XL = 76
    WK, WO, WV = 256, 256 + 128, 128
    RK, RO, RV, WS = 0, 10240, 20480, 2560
    KPL = lambda n, b: 4 * ((n >> 1) * 320 + (n & 1) * 72 + b * 160)
    OPL = lambda n, b: 4 * (n * 144 + b * 72)
    HT = 16
    S_CI, S_LO1 = 54, 55
    A.c("KVO role: column slice c of the k, v and output projections of head group S_GRP")
    A("v_mov_b32 v44, v0")
    A("v_mov_b32 v45, v1")
    TID, LANE, U = 44, 45, 46
    t2, t3, t4, t5, t6, t7 = 50, 51, 52, 53, 54, 55
    A(f"v_and_b32 {v(U)}, 127, {v(TID)}")
    A(f"s_sub_u32 {s(S_CI)}, {s(S_TK)}, 8")
    A(f"s_lshl_b32 {s(S_RBASE)}, {s(S_GRP)}, 18")
    A(f"s_add_u32 {s(S_RBASE)}, {s(S_RBASE)}, {L.LRING}")
    A(f"s_lshl_b32 {s(S_FB)}, {s(S_GRP)}, 12")
    A(f"s_add_u32 {s(S_FB)}, {s(S_FB)}, {L.FLAGS}")
    A(f"s_lshl_b32 {s(S_T0)}, {s(S_WAVE)}, 12")
    A(f"v_lshl_add_u32 {v(VG)}, {v(LANE)}, 4, {s(S_T0)}")
    A(f"v_add_u32 {v(VGO)}, 49152, {v(VG)}")
    A(f"s_lshl_b32 {s(S_T0)}, {s(S_CI)}, 10")
    A(f"v_lshl_add_u32 {v(PUBM)}, {v(U)}, 3, {s(S_T0)}")
    A(f"v_lshl_add_u32 {v(t2)}, {v(TID)}, 2, {s(S_T0)}")
    A(f"v_add_u32 {v(PUBK)}, 16384, {v(t2)}")
    A(f"v_add_u32 {v(PUBV)}, 32768, {v(t2)}")
    A(f"s_lshl_b32 {s(S_T0)}, {s(S_WAVE)}, 8")
    A(f"v_lshl_add_u32 {v(FMR)}, {v(LANE)}, 2, {s(S_T0)}")
    A(f"v_add_u32 {v(FOR)}, 2048, {v(FMR)}")
    A(f"s_lshr_b32 {s(S_T0)}, {s(S_CI)}, 2")
    A(f"s_lshl_b32 {s(S_T0)}, {s(S_T0)}, 8")
    A(f"s_and_b32 {s(S_T1)}, {s(S_CI)}, 3")
    A(f"s_lshl_b32 {s(S_T1)}, {s(S_T1)}, 2")
    A(f"s_add_u32 {s(S_T0)}, {s(S_T0)}, {s(S_T1)}")
    A(f"v_min_u32 {v(t2)}, 1, {v(TID)}")
    A(f"v_lshl_add_u32 {v(FMW)}, {v(t2)}, 30, {s(S_T0)}")
    XN = 2 if cfg.xbf else 4
    A(f"s_lshr_b32 {s(S_T0)}, {s(S_CI)}, {3 if cfg.xbf else 2}")
    A(f"s_lshl_b32 {s(S_T0)}, {s(S_T0)}, 14")
    A(f"s_and_b32 {s(S_T1)}, {s(S_CI)}, {7 if cfg.xbf else 3}")
    A(f"s_lshl_b32 {s(S_T1)}, {s(S_T1)}, {10 if cfg.xbf else 11}")
    A(f"s_add_u32 {s(S_T0)}, {s(S_T0)}, {s(S_T1)}")
    A(f"s_lshl_b32 {s(S_T1)}, {s(S_GRP)}, 16")
    A(f"s_add_u32 {s(S_T0)}, {s(S_T0)}, {s(S_T1)}")
    A(f"v_lshl_add_u32 {v(XOWN)}, {v(U)}, {3 if cfg.xbf else 4}, {s(S_T0)}")
    for j in range(3):
        A(f"v_xor_b32 {v(XP + j)}, {hex((j + 1) << 16)}, {v(XOWN)}")
    A(f"s_mov_b32 {s(S_LO1)}, 0x00003f80")
    A(f"s_mov_b32 {s(S_LO1 + 1)}, 0x3f800000")
    A(f"v_and_b32 {v(t2)}, 1, {v(LANE)}")
    A(f"v_mul_u32_u24 {v(t2)}, 0xaaaa, {v(t2)}")
    A(f"v_add_u32 {v(IDX)}, 0x4444, {v(t2)}")
    A(f"s_lshl_b32 {s(S_T0)}, {s(S_WAVE)}, 11")
    A(f"v_lshl_add_u32 {v(LWV)}, {v(LANE)}, 5, {s(S_T0)}")
    A(f"v_lshlrev_b32 {v(LRV)}, 3, {v(TID)}")
    A(f"v_bfe_u32 {v(t2)}, {v(U)}, 5, 1")
    A(f"v_lshlrev_b32 {v(t2)}, 2, {v(t2)}")
    A(f"v_and_b32 {v(t3)}, 1, {v(U)}")
    A(f"v_lshl_add_u32 {v(t2)}, {v(t3)}, 1, {v(t2)}")
    A(f"v_bfe_u32 {v(t3)}, {v(U)}, 1, 1")
    A(f"v_add_u32 {v(t2)}, {v(t2)}, {v(t3)}")
    A(f"v_and_b32 {v(t3)}, 24, {v(U)}")
    A(f"v_add_u32 {v(t3)}, {v(t3)}, {v(t2)}")
    A(f"v_lshlrev_b32 {v(t3)}, 3, {v(t3)}")
    A(f"v_bfe_u32 {v(t4)}, {v(U)}, 2, 1")
    A(f"v_mul_u32_u24 {v(t4)}, {OPL(0, 1)}, {v(t4)}")
    A(f"v_add_u32 {v(t3)}, {v(t3)}, {v(t4)}")
    A(f"v_lshrrev_b32 {v(t4)}, 6, {v(U)}")
    A(f"v_mul_u32_u24 {v(t5)}, {OPL(2, 0)}, {v(t4)}")
    A(f"v_add_u32 {v(LRO)}, {v(t3)}, {v(t5)}")
    A(f"v_lshl_add_u32 {v(t2)}, {v(t4)}, 4, {v(t2)}")
    A(f"v_bfe_u32 {v(t3)}, {v(U)}, 2, 3")
    A(f"v_lshlrev_b32 {v(t3)}, 11, {v(t3)}")
    A(f"v_lshl_add_u32 v58, {v(t2)}, 2, {v(t3)}")
    A.srd(SW, P_MEM0, SIZE["mem0"])
    A(f"v_and_b32 {v(t2)}, 1, {v(LANE)}")
    A(f"s_and_b32 {s(S_T0)}, {s(S_WAVE)}, 2")
    A(f"v_add_u32 {v(t3)}, {s(S_T0)}, {v(t2)}")
    A(f"s_and_b32 {s(S_T1)}, {s(S_WAVE)}, 1")
    A(f"s_lshl_b32 {s(S_T1)}, {s(S_T1)}, 3")
    A(f"v_bfe_u32 {v(t4)}, {v(LANE)}, 1, 1")
    A(f"v_lshl_add_u32 {v(t4)}, {v(t4)}, 2, {s(S_T1)}")
    A(f"v_bfe_u32 {v(t5)}, {v(LANE)}, 2, 1")
    A(f"v_lshl_add_u32 {v(t4)}, {v(t5)}, 1, {v(t4)}")
    A(f"v_bfe_u32 {v(t5)}, {v(LANE)}, 3, 1")
    A(f"v_and_b32 {v(t6)}, 48, {v(LANE)}")
    A(f"v_add_u32 {v(t6)}, {v(t6)}, {v(t4)}")
    A(f"v_lshlrev_b32 {v(t6)}, 2, {v(t6)}")
    A(f"v_mul_u32_u24 {v(t5)}, {KPL(0, 1)}, {v(t5)}")
    A(f"v_mul_u32_u24 {v(t7)}, {KPL(1, 0)}, {v(t2)}")
    A(f"v_add3_u32 {v(t6)}, {v(t6)}, {v(t5)}, {v(t7)}")
    A(f"s_mul_i32 {s(S_T0)}, {s(S_T0)}, {KPL(2, 0) // 2}")
    A(f"v_add_u32 {v(LR)}, {s(S_T0)}, {v(t6)}")
    for i in range(8):
        A(f"v_mov_b32 {v(HT + i)}, 0")
    for i in range(4):
        A(f"v_mov_b32 {v(SENT + i)}, -1")

    def clear_inbox():
        out = A.new("co")
        A(f"s_cmp_ge_u32 {s(S_WAVE)}, 2")
        A(f"s_cbranch_scc1 {out}")
        for rr in range(cfg.nrep):
            A(f"buffer_store_dwordx{XN} {v(SENT, XN)}, {v(XOWN)}, {s(SWS, 4)}, {s(S_XR + rr)} offen sc1")
        A.label(out)
    A.c("initial memory piece and 'not written' marks in every ring slot this workgroup owns")
    for slot in range(4):
        A(f"s_add_u32 {s(S_T0)}, {s(S_RBASE)}, {slot << 16}")
        A(f"buffer_store_dwordx2 {v(SENT, 2)}, {v(PUBM)}, {s(SWS, 4)}, {s(S_T0)} offen sc1")
        A(f"buffer_store_dword {v(SENT)}, {v(PUBK)}, {s(SWS, 4)}, {s(S_T0)} offen sc1")
        A(f"buffer_store_dword {v(SENT)}, {v(PUBV)}, {s(SWS, 4)}, {s(S_T0)} offen sc1")
        A(f"s_mov_b32 {s(S_T0)}, {slot}")
        for par in range(2):
            A(f"s_mov_b32 {s(S_PAR)}, {par << 13}")
            x_offsets(A, cfg, S_XR, S_T0)
            clear_inbox()
    A(f"v_mov_b32 {v(TAGV)}, 1")
    A(f"buffer_store_dword {v(TAGV)}, {v(FMW)}, {s(SWS, 4)}, {s(S_FB)} offen sc1")
    A(f"s_lshl_b32 {s(S_T2)}, {s(S_IRR)}, 16")
    A(f"s_or_b32 {s(S_T2)}, {s(S_T2)}, 1")

    arrive(A, S_T2)
    A(f"s_lshl_b32 {s(S_T0)}, {s(S_CI)}, 7")
    A(f"buffer_load_dword v56, v58, {s(SW, 4)}, {s(S_T0)} offen")
    A(f"buffer_load_dword v57, v58, {s(SW, 4)}, {s(S_T0)} offen offset:32")

    def first():
        A("v_min_u32 v56, -2, v56")
        A("v_min_u32 v57, -2, v57")
        A(f"buffer_store_dwordx2 v[56:57], {v(PUBM)}, {s(SWS, 4)}, {s(S_RBASE)} offen sc1")
    A.c("weights into registers")
    weight_addr_regs(A, LANE, t2, t3, t4, t5, t6, t7)
    chunks = []
    for ptr, name, base in ((P_WK, "Wk", WK), (P_WV, "Wv", WV), (P_WO, "Wo", WO)):
        for j in range(4):
            def setup(ptr=ptr, name=name, j=j):
                A.srd(SW, ptr, SIZE[name])
                if name == "Wo":
                    A(f"s_lshl_b32 {s(S_T1)}, {s(S_GRP)}, 2")
                    A(f"s_add_u32 {s(S_T1)}, {s(S_T1)}, {s(S_WAVE)}")
                    A(f"s_lshl_b32 {s(S_T1)}, {s(S_T1)}, 19")
                    A(f"s_lshl_b32 {s(S_T0)}, {s(S_CI)}, 7")
                    A(f"s_add_u32 {s(S_T1)}, {s(S_T1)}, {s(S_T0)}")
                    A(f"s_add_u32 {s(S_T1)}, {s(S_T1)}, {j * 64 * 2048}")
                else:
                    A(f"s_lshl_b32 {s(S_T1)}, {s(S_WAVE)}, 21")
                    A(f"s_lshl_b32 {s(S_T0)}, {s(S_GRP)}, 4")
                    A(f"s_add_u32 {s(S_T0)}, {s(S_T0)}, {s(S_CI)}")
                    A(f"s_lshl_b32 {s(S_T0)}, {s(S_T0)}, 7")
                    A(f"s_add_u32 {s(S_T1)}, {s(S_T1)}, {s(S_T0)}")
                    A(f"s_add_u32 {s(S_T1)}, {s(S_T1)}, {j * 64 * 8192}")
            chunks.append((setup, 2048 if name == "Wo" else 8192, "O" if name == "Wo" else "P",
                           (lambda n, base=base, j=j: base + (j * 4 + n) * 8)))
    if cfg.meet:
        chunks = [chunks[i] for i in (3, 7, 2, 6, 1, 5, 0, 4, 8, 9, 10, 11)]
    load_weights(A, chunks, {8192: t2, 2048: t3}, {"P": t4, "O": t5}, WFLAG[cfg.wlo], first, cfg.ramp_lo)
    cfg.mark(A, 1)
    await_start(A, end)
    A(f"s_mul_i32 m0, {s(S_WAVE)}, {WS}")
    for q in range(32):
        A(f"v_mov_b32 {v(ACK + q)}, 0")
    A(f"s_mov_b32 {s(S_STEP)}, 0")
    slow_lbl = A.new("kvo_sc1")
    A(f"s_cmp_lg_u32 {s(S_IRR)}, 0")
    A(f"s_cbranch_scc1 {slow_lbl}")

    def half_sums(acc, R=None, pl=None, between=None):
        ad = lambda i: A(f"v_add_f32 {v(HS + i)}, {v(acc + 2 * i)}, {v(acc + 2 * i + 1)}")
        for i in range(4 if pl else 8):
            ad(i)
        if pl:
            for i in range(8):
                if i < 4:
                    ad(i + 4)
                A(f"ds_write_addtid_b32 {v(HS + i)} offset:{R + pl(i >> 1, i & 1)}")
                if between:
                    between(i)

    def read4(addr, R, ws):
        for w in range(4):
            A(f"ds_read_b64 {v(RD + 2 * w, 2)}, {v(addr)} offset:{R + w * ws}")

    def gather(ld):
        for i in range(4):
            ld(i)
            heat(A, HT, cfg.lspace if i < 3 else cfg.ltail)

    def proj(acc, W, vin=0):
        def f(j, lo, hi):
            for n in range(lo, hi):
                if n < 4:
                    A(f"{SM} {v(acc + 4 * n, 4)}, {v(AP + 4 * j, 4)}, {r(W + (j * 4 + n) * 8, 8)}, {v(IDX)}")
                else:
                    A(f"{SM} {v(ACV + 4 * (n - 4), 4)}, {v(AP + 4 * j, 4)}, {r(WV + (j * 4 + n - 4) * 8, 8)}, {v(IDX)}")
        sp = cfg.ksplit + vin
        return (lambda j, rest: f(j, 0, 4 + vin)), (lambda j: f(j, 0, sp), lambda j: f(j, sp, 4 + vin))

    def sum4():
        A(f"v_pk_add_f32 {v(RD, 2)}, {v(RD, 2)}, {v(RD + 2, 2)}")
        A(f"v_pk_add_f32 {v(RD + 4, 2)}, {v(RD + 4, 2)}, {v(RD + 6, 2)}")
        A(f"v_pk_add_f32 {v(SUM, 2)}, {v(RD, 2)}, {v(RD + 4, 2)}")

    def body(loc):
        top, top2, top3 = A.new("kvo"), A.new("kvo2"), A.new("kvo3")
        ldm = lambda i: A(f"buffer_load_dwordx4 {v(AP + 4 * i, 4)}, {v(VG)}, {s(SWS, 4)}, {s(S_CUR)} offen offset:{1024 * i} sc1")
        ldo = lambda i: A(f"buffer_load_dwordx4 {v(AP + 4 * i, 4)}, {v(VGO)}, {s(SWS, 4)}, {s(S_CUR)} offen offset:{1024 * i} sc1")
        vq = [(j, n) for j in range(4) for n in range(cfg.vin, 4)]

        def vmf(k):
            for _ in range(k):
                if vq:
                    j, n = vq.pop(0)
                    A(f"{SM} {v(ACV + 4 * n, 4)}, {v(AP + 4 * j, 4)}, {r(WV + (j * 4 + n) * 8, 8)}, {v(IDX)}")

        A.label(top)
        ring_slots(A)
        if cfg.use_fm:
            flag_wait(A, cfg, FMR, FBUF, 4, end)
        A.label(top3)
        gather(ldm)
        chk4 = lambda i: check(A, AP + 4 * i, 4, CHK)

        def onfail(c):
            return lambda first: (count(A, cfg, c) if first else None, heat(A, HT, 1))
        use, fast = proj(ACK, WK, cfg.vin)
        done, slow1 = fsm_poll(A, 4, ldm, chk4, use, end, fast=fast, onfail=onfail(2))
        A.label(done)
        stamp(A, cfg, 0)
        A.nop(5 - cfg.vin)
        half_sums(ACK, RK, KPL, lambda i: vmf(1) if i >= 8 - cfg.vk else None)
        vmf(2)
        if cfg.rpos == 0:
            clear_inbox()
        A("s_waitcnt lgkmcnt(0)")
        A("s_barrier")
        read4(LR, RK, WS)
        vmf(3)
        A("s_waitcnt lgkmcnt(0)")
        sum4()
        A(f"v_cvt_pk_bf16_f32 {v(SUM)}, {v(SUM)}, {v(SUM + 1)}")
        A(f"v_min_u32 {v(SUM)}, -2, {v(SUM)}")
        A(f"buffer_store_dword {v(SUM)}, {v(PUBK)}, {s(SWS, 4)}, {s(S_CUR)} offen{loc}")
        stamp(A, cfg, 1)
        left = len(vq)
        vmf(16)
        A.nop(6 if left else 1)
        half_sums(ACV)
        A(f"ds_write_b128 {v(LWV)}, {v(HS, 4)} offset:{RV}")
        A(f"ds_write_b128 {v(LWV)}, {v(HS + 4, 4)} offset:{RV + 16}")
        if cfg.rpos == 1:
            clear_inbox()
        A("s_waitcnt lgkmcnt(0)")
        A("s_barrier")
        read4(LRV, RV, 2048)
        A("s_waitcnt lgkmcnt(0)")
        sum4()
        A(f"v_cvt_pk_bf16_f32 {v(SUM)}, {v(SUM)}, {v(SUM + 1)}")
        A(f"v_min_u32 {v(SUM)}, -2, {v(SUM)}")
        A(f"buffer_store_dword {v(SUM)}, {v(PUBV)}, {s(SWS, 4)}, {s(S_CUR)} offen{loc}")
        stamp(A, cfg, 2)
        flush_stamps(A, cfg, 8, 124, 125)
        A(f"s_cmp_eq_u32 {s(S_STEP)}, {cfg.nsteps - 1}")
        A(f"s_cbranch_scc1 {end}")
        if cfg.rpos == 2:
            clear_inbox()
        for reg in (PUBK, PUBV):
            A(f"buffer_store_dword {v(SENT)}, {v(reg)}, {s(SWS, 4)}, {s(S_RST)} offen{loc}")
        r1 = A.new("r1")
        A(f"s_cmp_lt_u32 {s(S_WAVE)}, 2")
        A(f"s_cbranch_scc1 {r1}")
        A(f"buffer_store_dwordx2 {v(SENT, 2)}, {v(PUBM)}, {s(SWS, 4)}, {s(S_RST)} offen{loc}")
        A.label(r1)
        for q in range(24):
            A(f"v_pk_mul_f32 {v(ACK + 2 * q, 2)}, 0, 0")
        A(f"v_add_u32 {v(TAGV)}, 1, {v(TAGV)}")
        A(f"s_and_b32 {s(S_T0)}, {s(S_STEP)}, 3")
        x_offsets(A, cfg, S_XC, S_T0)
        if cfg.rpos < 3:
            A(f"s_add_u32 {s(S_T0)}, {s(S_STEP)}, 3")
            A(f"s_and_b32 {s(S_T0)}, {s(S_T0)}, 3")
            x_offsets(A, cfg, S_XR, S_T0)
        A(f"s_and_b32 {s(S_T0)}, {s(S_TAG)}, 3")
        A(f"s_lshl_b32 {s(S_T0)}, {s(S_T0)}, 16")
        A(f"s_add_u32 {s(S_NXT)}, {s(S_T0)}, {s(S_RBASE)}")
        if cfg.use_fo:
            flag_wait(A, cfg, FOR, FBUF, 2, end)
        gather(ldo)
        use, fast = proj(ACO, WO)
        done, slow2 = fsm_poll(A, 4, ldo, chk4, use, end, fast=fast, onfail=onfail(3))
        A.label(done)
        stamp(A, cfg, 3)
        A.nop(5)
        half_sums(ACO, RO, OPL)
        heat(A, HT, cfg.hw)
        loader = A.new("xl")
        A(f"s_cmp_ge_u32 {s(S_WAVE)}, 2")
        A(f"s_cbranch_scc1 {loader}")

        def own_sum():
            for w in range(4):
                for p in range(2):
                    A(f"ds_read_b64 {v(RD + 4 * w + 2 * p, 2)}, {v(LRO)} offset:{RO + w * WS + OPL(p, 0)}")
            A("s_waitcnt lgkmcnt(4)" if cfg.trace != 1 else "s_waitcnt lgkmcnt(0)")
            for h2 in range(2):
                A(f"v_pk_add_f32 {v(RD + 2 * h2, 2)}, {v(RD + 2 * h2, 2)}, {v(RD + 4 + 2 * h2, 2)}")
            A("s_waitcnt lgkmcnt(0)")
            for h2 in range(2):
                A(f"v_pk_add_f32 {v(RD + 8 + 2 * h2, 2)}, {v(RD + 8 + 2 * h2, 2)}, {v(RD + 12 + 2 * h2, 2)}")
            for h2 in range(2):
                A(f"v_pk_add_f32 {v(SUM + 2 * h2, 2)}, {v(RD + 2 * h2, 2)}, {v(RD + 8 + 2 * h2, 2)}")
        A.c("waves 0,1 send this group's partial sums to the other groups")
        A("s_waitcnt lgkmcnt(0)")
        A("s_barrier")
        own_sum()
        if cfg.xbf:
            for h2 in range(2):
                A(f"v_cvt_pk_bf16_f32 {v(SUM + h2)}, {v(SUM + 2 * h2)}, {v(SUM + 2 * h2 + 1)}")
        for i in range(XN):
            A(f"v_min_u32 {v(SUM + i)}, -2, {v(SUM + i)}")
        for rr in range(cfg.nrep):
            A(f"buffer_store_dwordx{XN} {v(SUM, XN)}, {v(XOWN)}, {s(SWS, 4)}, {s(S_XC + rr)} offen sc1")
            if rr == 0:
                stamp(A, cfg, 4)
        if cfg.use_fm:
            heat(A, HT, cfg.fm_delay)
            A(f"buffer_store_dword {v(TAGV)}, {v(FMW)}, {s(SWS, 4)}, {s(S_FB)} offen{loc}")
        A(f"s_add_u32 {s(S_STEP)}, {s(S_STEP)}, 1")
        A(f"s_branch {top}")
        A.label(loader)
        A.c("waves 2,3 add the other groups' partial sums and publish the new memory")
        A("s_waitcnt lgkmcnt(0)")
        A("s_barrier")
        XB = (XL, XL + 12, AP)
        NB = cfg.xdepth

        def ldx(k):
            for j in range(3):
                A(f"buffer_load_dwordx{XN} {v(XB[k % NB] + XN * j, XN)}, {v(XP + j)}, {s(SWS, 4)}, "
                  f"{s(S_XC + k % cfg.nrep)} offen sc1")
        heat(A, HT, cfg.xdelay)
        stamp(A, cfg, 6)
        ldx(0)
        if NB > 1:
            heat(A, HT, cfg.xgap)
            ldx(1)
        own_sum()
        if cfg.xbf:
            for h2 in range(2):
                A(f"v_cvt_pk_bf16_f32 {v(RD + h2)}, {v(SUM + 2 * h2)}, {v(SUM + 2 * h2 + 1)}")
            for h2 in range(2):
                A(f"v_lshlrev_b32 {v(SUM + 2 * h2)}, 16, {v(RD + h2)}")
                A(f"v_and_b32 {v(SUM + 2 * h2 + 1)}, 0xffff0000, {v(RD + h2)}")
        x2, xsum = A.new("x2"), A.new("xs")

        def final(x):
            check(A, x, 3 * XN, CHK)
            if cfg.xbf:
                for j in range(3):
                    for i in range(4):
                        A(f"v_dot2_f32_bf16 {v(RD + i)}, {v(x + 2 * j + (i >> 1))}, {s(S_LO1 + (i & 1))}, "
                          f"{v((RD if j else SUM) + i)}")
                A("s_nop 1")
            else:
                for h2 in range(2):
                    A(f"v_pk_add_f32 {v(RD + 4 + 2 * h2, 2)}, {v(SUM + 2 * h2, 2)}, {v(x + 2 * h2, 2)}")
                    A(f"v_pk_add_f32 {v(RD + 2 * h2, 2)}, {v(x + 4 + 2 * h2, 2)}, {v(x + 8 + 2 * h2, 2)}")
                for h2 in range(2):
                    A(f"v_pk_add_f32 {v(RD + 2 * h2, 2)}, {v(RD + 4 + 2 * h2, 2)}, {v(RD + 2 * h2, 2)}")
            for h2 in range(2):
                A(f"v_cvt_pk_bf16_f32 {v(RD + h2)}, {v(RD + 2 * h2)}, {v(RD + 2 * h2 + 1)}")
            for h2 in range(2):
                A(f"v_min_u32 {v(RD + h2)}, -2, {v(RD + h2)}")
        if NB > 2:
            heat(A, HT, cfg.xgap2)
            ldx(2)
        heat(A, HT, cfg.xfill)
        A(f"s_waitcnt vmcnt({3 * (NB - 1)})")
        stamp(A, cfg, 7)
        final(XL)
        A(f"s_cbranch_vccnz {x2}")
        A.label(xsum)
        A(f"buffer_store_dwordx2 {v(RD, 2)}, {v(PUBM)}, {s(SWS, 4)}, {s(S_NXT)} offen{loc}")
        stamp(A, cfg, 5)
        A(f"s_add_u32 {s(S_STEP)}, {s(S_STEP)}, 1")
        A.c("the loader waves time their first read from their own store")
        ring_slots(A)
        heat(A, HT, cfg.mdelay)
        A(f"s_branch {top3}")
        A.label(x2)
        count(A, cfg, 0)
        for k in range(6):
            ldx(k + NB)
            A(f"s_waitcnt vmcnt({3 * (NB - 1)})")
            final(XB[(k + 1) % NB])
            A(f"s_cbranch_vccz {xsum}")
            count(A, cfg, 1)
        spend(A, end)
        A(f"s_branch {x2}")
        slow1()
        slow2()

    A.c("all members of the group share one L2: hand-offs inside the group use plain stores")
    body("")
    A.label(slow_lbl)
    A.c("some member runs on another die: every hand-off is written through")
    body(" sc1")


def q_role(A, cfg, end):
    WIN = 0
    VG, VK, VVA, VVB, VO, IDX, LW, LR, QW, QR = 10, 11, 12, 13, 14, 15, 16, 18, 19, 20
    PFG, RDK, RDQ, RDVA, RDVB, OTA, OTB = 21, 22, 23, 24, 25, 26, 27
    FMR, FOW, FBUF, TAGV, XCL, POW, PQA, PQV, PQB = 192, 193, 194, 197, 198, 199, 208, 209, 210
    SENT, ONES, BIAS, CHK, T1, T2, T3 = 28, 32, 36, 44, 45, 46, 47
    AP, ACQ = 48, 64
    SX, SMM, RD, PX, LA, TM = 64, 72, 76, 76, 84, 88
    QOP, OA, KC, VM, PK = 96, 96, 112, 120, 124
    ST = 128
    SLOT0, SLOTX = 32768, 0x18000
    WQ = 256
    RQ, RB, WS = 0, 20480, 5120
    QPL = lambda n, b: 4 * (n * 160 + b * 96)
    HT = 200
    TID, LANE = 48, 49
    S_HEAD, S_PARW, S_EH, S_LDS, S_PQ, S_NEED = 54, 55, 56, 57, 58, 27
    A.c("Q role: q projection and attention of one head")
    if (cfg.gate or cfg.gate2 or cfg.gate3) and not cfg.gate_entry:
        A("s_memrealtime s[90:91]")
    A(f"v_mov_b32 {v(TID)}, v0")
    A(f"v_mov_b32 v50, v1")
    LANE = 50
    A(f"s_lshl_b32 {s(S_HEAD)}, {s(S_GRP)}, 3")
    A(f"s_add_u32 {s(S_HEAD)}, {s(S_HEAD)}, {s(S_TK)}")
    A(f"s_and_b32 {s(S_PARW)}, {s(S_WAVE)}, 1")
    A(f"s_lshr_b32 {s(S_EH)}, {s(S_WAVE)}, 1")
    A(f"s_lshl_b32 {s(S_RBASE)}, {s(S_GRP)}, 18")
    A(f"s_add_u32 {s(S_RBASE)}, {s(S_RBASE)}, {L.LRING}")
    A(f"s_lshl_b32 {s(S_T0)}, {s(S_WAVE)}, 12")
    A(f"v_lshl_add_u32 {v(VG)}, {v(LANE)}, 4, {s(S_T0)}")
    A(f"s_lshl_b32 {s(S_T0)}, {s(S_TK)}, 11")
    A(f"s_add_u32 {s(S_T1)}, {s(S_T0)}, 16384")
    A(f"v_lshl_add_u32 {v(VK)}, {v(LANE)}, 4, {s(S_T1)}")
    A(f"s_lshl_b32 {s(S_T1)}, {s(S_EH)}, 10")
    A(f"s_add_u32 {s(S_T0)}, {s(S_T0)}, {s(S_T1)}")
    A(f"s_lshl_b32 {s(S_T1)}, {s(S_PARW)}, 3")
    A(f"s_add_u32 {s(S_T1)}, {s(S_T1)}, {s(S_T0)}")
    A(f"s_add_u32 {s(S_T1)}, {s(S_T1)}, 32768")
    A(f"v_lshl_add_u32 {v(VVA)}, {v(LANE)}, 4, {s(S_T1)}")
    A(f"v_xor_b32 {v(VVB)}, 8, {v(VVA)}")
    A(f"s_lshl_b32 {s(S_T1)}, {s(S_PARW)}, 9")
    A(f"s_add_u32 {s(S_T1)}, {s(S_T1)}, {s(S_T0)}")
    A(f"s_add_u32 {s(S_T1)}, {s(S_T1)}, 49152")
    A(f"v_bfe_u32 v51, {v(LANE)}, 5, 1")
    A(f"v_lshl_add_u32 {v(VO)}, v51, 8, {s(S_T1)}")
    A(f"v_and_b32 v51, 7, {v(LANE)}")
    A(f"v_lshl_add_u32 {v(VO)}, v51, 5, {v(VO)}")
    A(f"v_and_b32 v51, 16, {v(LANE)}")
    A(f"v_add_u32 {v(VO)}, {v(VO)}, v51")
    A(f"v_bfe_u32 v51, {v(LANE)}, 3, 1")
    A(f"v_lshl_add_u32 {v(VO)}, v51, 30, {v(VO)}")
    A(f"v_and_b32 v51, 1, {v(LANE)}")
    A(f"v_mul_u32_u24 v51, 0xaaaa, v51")
    A(f"v_add_u32 {v(IDX)}, 0x4444, v51")
    for i in range(8):
        A(f"v_mov_b32 {v(HT + i)}, 0")
    A(f"v_bfe_u32 v51, {v(LANE)}, 1, 2")
    A(f"v_lshlrev_b32 v51, 4, v51")
    A(f"v_bfe_u32 v52, {v(LANE)}, 3, 2")
    A(f"v_lshl_add_u32 v51, v52, 2, v51")
    A(f"v_and_b32 v53, 1, {v(LANE)}")
    A(f"v_lshlrev_b32 v51, 2, v51")
    A(f"v_mul_u32_u24 v53, {QPL(0, 1)}, v53")
    A(f"v_lshrrev_b32 v54, 5, {v(LANE)}")
    A(f"v_mul_u32_u24 v52, {QPL(1, 0)}, v54")
    A(f"v_add3_u32 v51, v51, v52, v53")
    A(f"s_mul_i32 {s(S_T0)}, {s(S_WAVE)}, {QPL(2, 0)}")
    A(f"v_add_u32 {v(LR)}, {s(S_T0)}, v51")
    A(f"v_and_b32 v51, 31, {v(LANE)}")
    A(f"v_lshlrev_b32 v51, 4, v51")
    A(f"v_lshl_add_u32 v51, v54, 3, v51")
    A(f"s_lshl_b32 {s(S_T0)}, {s(S_WAVE)}, 9")
    A(f"v_add_u32 {v(QW)}, {s(S_T0)}, v51")
    A(f"v_lshrrev_b32 v51, 4, {v(LANE)}")
    A(f"v_and_b32 v52, 7, {v(LANE)}")
    A(f"v_lshlrev_b32 v52, 4, v52")
    A(f"v_lshl_add_u32 {v(QR)}, v51, 7, v52")
    A(f"v_lshlrev_b32 v51, 4, {v(LANE)}")
    A(f"s_mul_i32 {s(S_T0)}, {s(S_WAVE)}, 6144")
    A(f"v_add_u32 {v(PFG)}, {s(S_T0)}, v51")
    A(f"s_add_u32 {s(S_LDS)}, {s(S_T0)}, {SLOT0}")
    A(f"v_add_u32 {v(RDK)}, {SLOT0 + 8192}, v51")
    A(f"s_lshl_b32 {s(S_T0)}, {s(S_PARW)}, 12")
    A(f"s_add_u32 {s(S_T0)}, {s(S_T0)}, {SLOT0}")
    A(f"v_add_u32 {v(RDQ)}, {s(S_T0)}, v51")
    A(f"s_lshl_b32 {s(S_T0)}, {s(S_WAVE)}, 11")
    A(f"s_add_u32 {s(S_T0)}, {s(S_T0)}, {SLOT0 + 16384}")
    A(f"v_add_u32 {v(RDVA)}, {s(S_T0)}, v51")
    A(f"v_xor_b32 {v(RDVB)}, 2048, {v(RDVA)}")
    A(f"s_lshl_b32 {s(S_FB)}, {s(S_GRP)}, 12")
    A(f"s_add_u32 {s(S_FB)}, {s(S_FB)}, {L.FLAGS}")
    A(f"s_lshl_b32 {s(S_T0)}, {s(S_WAVE)}, 8")
    A(f"v_lshl_add_u32 {v(FMR)}, {v(LANE)}, 2, {s(S_T0)}")
    A(f"s_lshr_b32 {s(S_T0)}, {s(S_TK)}, 1")
    A(f"s_lshl_b32 {s(S_T0)}, {s(S_T0)}, 8")
    A(f"s_and_b32 {s(S_T1)}, {s(S_TK)}, 1")
    A(f"s_lshl_b32 {s(S_T1)}, {s(S_T1)}, 2")
    A(f"s_add_u32 {s(S_T0)}, {s(S_T0)}, {s(S_T1)}")
    A(f"s_add_u32 {s(S_T0)}, {s(S_T0)}, 2048")
    A(f"v_min_u32 v52, 1, {v(TID)}")
    A(f"v_lshl_add_u32 {v(FOW)}, v52, 30, {s(S_T0)}")
    A(f"v_mov_b32 {v(TAGV)}, 0")
    A(f"buffer_store_dword {v(TAGV)}, {v(FOW)}, {s(SWS, 4)}, {s(S_FB)} offen sc1")
    XN = 2 if cfg.xbf else 4
    A(f"s_lshr_b32 {s(S_T0)}, {s(S_TK)}, {2 if cfg.xbf else 1}")
    A(f"s_lshl_b32 {s(S_T0)}, {s(S_T0)}, 14")
    A(f"s_and_b32 {s(S_T1)}, {s(S_TK)}, {3 if cfg.xbf else 1}")
    A(f"s_lshl_b32 {s(S_T1)}, {s(S_T1)}, {11 if cfg.xbf else 12}")
    A(f"s_add_u32 {s(S_T0)}, {s(S_T0)}, {s(S_T1)}")
    A(f"s_lshl_b32 {s(S_T1)}, {s(S_GRP)}, 16")
    A(f"s_add_u32 {s(S_T0)}, {s(S_T0)}, {s(S_T1)}")
    A(f"v_lshl_add_u32 {v(XCL)}, {v(TID)}, {3 if cfg.xbf else 4}, {s(S_T0)}")
    A(f"s_lshl_b32 {s(S_T0)}, {s(S_HEAD)}, 2")
    A(f"s_add_u32 {s(S_T0)}, {s(S_T0)}, {s(S_WAVE)}")
    A(f"s_lshl_b32 {s(S_T0)}, {s(S_T0)}, 11")
    A(f"s_lshl_b32 {s(S_T1)}, {s(S_PARW)}, 10")
    A(f"s_add_u32 {s(S_T0)}, {s(S_T0)}, {s(S_T1)}")
    A(f"v_add_u32 {v(OTA)}, {s(S_T0)}, v51")
    A(f"v_xor_b32 {v(OTB)}, 2048, {v(OTA)}")
    progress_addr(A, POW, LANE, L.PO, S_HEAD, 52)
    A(f"buffer_store_dword {v(TAGV)}, {v(POW)}, {s(SWS, 4)}, 0 offen sc1")
    lines_addr(A, 53, LANE, 10)
    A(f"s_lshl_b32 {s(S_T0)}, {s(S_HEAD)}, 8")
    A(f"s_add_u32 {s(S_T0)}, {s(S_T0)}, {L.PQ}")
    A(f"v_add_u32 {v(PQA)}, {s(S_T0)}, v53")
    A(f"s_lshl_b32 {s(S_T0)}, {s(S_GRP)}, 10")
    A(f"s_add_u32 {s(S_T0)}, {s(S_T0)}, {L.PB - 256}")
    A(f"v_add_u32 v53, {s(S_T0)}, v53")
    A(f"v_cmp_lt_u32 vcc, 1, {v(LANE)}")
    A("s_nop 1")
    A(f"v_cndmask_b32 {v(PQA)}, {v(PQA)}, v53, vcc")
    A(f"v_cndmask_b32 {v(PQB)}, 0, 8, vcc")
    for i in range(4):
        A(f"v_mov_b32 {v(SENT + i)}, -1")
        A(f"v_mov_b32 {v(ONES + i)}, 0x3f803f80")
    A(f"v_and_b32 v51, 15, {v(LANE)}")
    A(f"s_lshl_b32 {s(S_T0)}, {s(S_PARW)}, 4")
    A(f"v_add_u32 v51, {s(S_T0)}, v51")
    A(f"v_lshrrev_b32 v52, 4, {v(LANE)}")
    A(f"v_lshlrev_b32 v52, 2, v52")
    A(f"v_mov_b32 v54, 0xf149f2ca")
    for T in range(2):
        for q in range(4):
            A(f"v_add_u32 v53, {16 * T + q}, v52")
            A(f"v_cmp_gt_u32 vcc, v53, v51")
            A("s_nop 1")
            A(f"v_cndmask_b32 {v(BIAS + 4 * T + q)}, 0, v54, vcc")
    for i in range(10):
        A(f"v_mov_b32 {v(WIN + i)}, 0")
    A(f"s_mov_b32 {s(S_C)}, 0x3e0293ee")
    A(f"s_mov_b32 {s(S_NC)}, 0xbe0293ee")
    for slot in range(4):
        A(f"s_add_u32 {s(S_T0)}, {s(S_RBASE)}, {slot << 16}")
        A(f"buffer_store_dwordx4 {v(SENT, 4)}, {v(VO)}, {s(SWS, 4)}, {s(S_T0)} offen sc1")
    A(f"s_lshl_b32 {s(S_T2)}, {s(S_IRR)}, 16")
    A(f"s_or_b32 {s(S_T2)}, {s(S_T2)}, 1")
    arrive(A, S_T2)
    weight_addr_regs(A, LANE, 51, 52, 53, 54, 55, 56)
    A.srd(SW, P_WQ, SIZE["Wq"])
    chunks = []
    for j in range(4):
        for hf in range(2):
            def setup(j=j, hf=hf):
                A(f"s_lshl_b32 {s(S_T1)}, {s(S_WAVE)}, 21")
                A(f"s_lshl_b32 {s(S_T0)}, {s(S_HEAD)}, 8")
                A(f"s_add_u32 {s(S_T1)}, {s(S_T1)}, {s(S_T0)}")
                A(f"s_add_u32 {s(S_T1)}, {s(S_T1)}, {j * 64 * 8192 + hf * 128}")
            chunks.append((setup, 8192, "P", (lambda n, j=j, hf=hf: WQ + (j * 8 + hf * 4 + n) * 8)))
    load_weights(A, chunks[::-1] if cfg.meet else chunks, {8192: 51}, {"P": 53}, WFLAG[cfg.wlo], None, cfg.ramp_lo)
    cfg.mark(A, 1)
    await_start(A, end)
    cfg.mark(A, 2)
    gate(A, cfg.gate)
    A(f"s_mul_i32 {s(S_PF)}, {s(S_HEAD)}, 24576")
    A(f"s_add_u32 {s(S_PF)}, {s(S_PF)}, {L.QKV}")
    A(f"s_mov_b32 {s(S_STEP)}, 0")

    def prefetch():
        A(f"s_mov_b32 m0, {s(S_LDS)}")
        A(f"s_add_u32 {s(S_T0)}, {s(S_PF)}, 3072")
        for j in range(3):
            A(f"buffer_load_dwordx4 {v(PFG)}, {s(SWS, 4)}, {s(S_PF)} offen offset:{1024 * j} sc1 lds")
        A(f"s_add_u32 m0, {s(S_LDS)}, 3072")
        A(f"s_xor_b32 {s(S_LDS)}, {s(S_LDS)}, {SLOTX}")
        for j in range(3):
            A(f"buffer_load_dwordx4 {v(PFG)}, {s(SWS, 4)}, {s(S_T0)} offen offset:{1024 * j} sc1 lds")
        A(f"s_add_u32 {s(S_PF)}, {s(S_PF)}, {32 * 24576}")

    def operands():
        for i in range(8):
            A(f"ds_read_b128 {v(ST + 4 * i, 4)}, {v(RDK)} offset:{1024 * i}")
        for p, reg in ((0, RDVA), (1, RDVB)):
            for t in range(2):
                A(f"ds_read_b128 {v(ST + 32 + 8 * p + 4 * t, 4)}, {v(reg)} offset:{1024 * t}")
        for ks in range(4):
            A(f"ds_read_b128 {v(ST + 48 + 4 * ks, 4)}, {v(RDQ)} offset:{1024 * ks}")
        for reg in (RDK, RDVA, RDVB, RDQ):
            A(f"v_xor_b32 {v(reg)}, {SLOTX}, {v(reg)}")

    ldpq = lambda: A(f"buffer_load_dword {v(PQV)}, {v(PQA)}, {s(SWS, 4)}, 0 offen sc1")

    def tstpq():
        A(f"v_add_u32 {v(PQV)}, {v(PQV)}, {v(PQB)}")
        A(f"v_cmp_gt_u32 vcc, {s(S_NEED)}, {v(PQV)}")
    for i in range(2):
        if not cfg.solo:
            A(f"s_mov_b32 {s(S_NEED)}, {i + 1}")
            block_on(A, ldpq, tstpq, end)
        prefetch()
    if not cfg.solo:
        ldpq()
    A(f"s_waitcnt vmcnt({6 if cfg.solo else 7})")
    A("s_barrier")
    slow_lbl = A.new("q_sc1")
    A(f"s_cmp_lg_u32 {s(S_IRR)}, 0")
    A(f"s_cbranch_scc1 {slow_lbl}")

    def score_x(qreg, bias, before=None):
        for ks in range(4):
            if before:
                before(ks)
            for T in range(2):
                c = v(SX + 4 * T, 4) if ks else (v(BIAS + 4 * T, 4) if bias else "0")
                A(f"{MF} {v(SX + 4 * T, 4)}, {v(ST + 16 * T + 4 * ks, 4)}, {v(qreg + 4 * ks, 4)}, {c}")

    def max_x():
        A(f"v_max3_f32 {v(T1)}, {v(SX)}, {v(SX + 1)}, {v(SX + 2)}")
        A(f"v_max3_f32 {v(T1)}, {v(T1)}, {v(SX + 3)}, {v(SX + 4)}")
        A(f"v_max3_f32 {v(T1)}, {v(T1)}, {v(SX + 5)}, {v(SX + 6)}")
        A(f"v_max_f32 {v(T1)}, {v(T1)}, {v(SX + 7)}")

    def softmax(hook=lambda pos: None):
        A(f"v_add_f32 {v(SMM)}, {v(SMM)}, {v(SMM + 1)}")
        A(f"v_add_f32 {v(SMM + 1)}, {v(SMM + 2)}, {v(SMM + 3)}")
        A(f"v_max3_f32 {v(T2)}, {v(T1)}, {v(SMM)}, {v(SMM + 1)}")
        A(f"v_max3_f32 {v(T3)}, {v(T1)}, {v(SMM)}, {v(SMM + 1)}")
        hook(0)
        A("s_nop 1")
        A(f"v_permlane32_swap_b32 {v(T2)}, {v(T3)}")
        A("s_nop 0")
        A(f"v_max_f32 {v(T1)}, {v(T2)}, {v(T3)}")
        A(f"v_max_f32 {v(T2)}, {v(T2)}, {v(T3)}")
        A("s_nop 1")
        A(f"v_permlane16_swap_b32 {v(T1)}, {v(T2)}")
        A("s_nop 0")
        A(f"v_max_f32 {v(T1)}, {v(T1)}, {v(T2)}")
        A(f"v_mul_f32 {v(T2)}, {s(S_NC)}, {v(T1)}")
        hook(1)
        for i in range(5):
            A(f"v_pk_fma_f32 {v(SX + 2 * i, 2)}, {v(SX + 2 * i, 2)}, {s(S_C, 2)}, {v(T2, 2)} op_sel_hi:[1,0,0]")
        for i in range(10):
            A(f"v_exp_f32 {v(SX + i)}, {v(SX + i)}")
            if i == 4:
                hook(2)
        hook(3)
        for i in range(4):
            A(f"v_cvt_pk_bf16_f32 {v(PX + i)}, {v(SX + 2 * i)}, {v(SX + 2 * i + 1)}")
        A(f"v_cvt_pk_bf16_f32 {v(WIN + 2)}, {v(SMM)}, {v(SMM + 1)}")
        A(f"v_cvt_pk_bf16_f32 {v(WIN + 7)}, {v(SMM)}, {v(SMM + 1)}")

    WOFF = (2, 6, 0, 4)

    def scale(n):
        for i in range(n // 2):
            A(f"v_pk_mul_f32 {v(OA + 2 * i, 2)}, {v(OA + 2 * i, 2)}, {v(T2, 2)} op_sel_hi:[1,0]")

    def pv(nt, pre=None, post=None, hook=lambda pos: None):
        st = ST
        A(f"{MF} {v(LA, 4)}, {v(ONES, 4)}, {v(PX, 4)}, 0")
        for t in range(nt):
            if pre and t == cfg.vchk:
                pre()
            A(f"{MF} {v(OA + 4 * t, 4)}, {v(st + 32 + 4 * t, 4)}, {v(PX, 4)}, 0")
        if pre and cfg.vchk == 2:
            pre()
        A(f"{MF} {v(LA, 4)}, {v(ONES, 4)}, {v(WIN + WOFF[0], 4)}, {v(LA, 4)}")
        if post:
            post()
        hook(5)
        for t in range(nt):
            A(f"{MF} {v(OA + 4 * t, 4)}, {v(VM, 4)}, {v(WIN + WOFF[t], 4)}, {v(OA + 4 * t, 4)}")
        hook(6)
        heat(A, HT, 1)
        A.nop(7 - nt)
        A(f"v_rcp_f32 {v(T2)}, {v(LA)}")
        A("s_nop 0")

    def body(loc):
        top = A.new("q")
        ldm = lambda i: A(f"buffer_load_dwordx4 {v(AP + 4 * i, 4)}, {v(VG)}, {s(SWS, 4)}, {s(S_CUR)} offen offset:{1024 * i} sc1")
        ldk = lambda i: A(f"buffer_load_dwordx4 {v(AP + 4 * i, 4)}, {v(VK)}, {s(SWS, 4)}, {s(S_CUR)} offen offset:{1024 * (i & 1)} sc1")

        def ldv():
            A(f"buffer_load_dwordx2 {v(VM, 2)}, {v(VVA)}, {s(SWS, 4)}, {s(S_CUR)} offen sc1")
            A(f"buffer_load_dwordx2 {v(VM + 2, 2)}, {v(VVB)}, {s(SWS, 4)}, {s(S_CUR)} offen sc1")
        A.label(top)
        operands()
        A(f"s_mul_i32 m0, {s(S_WAVE)}, {WS}")
        ring_slots(A)
        for q in range(16):
            A(f"v_pk_mul_f32 {v(ACQ + 2 * q, 2)}, 0, 0")
        A.c("the previous segment's token rows are acknowledged: publish them")
        A("s_waitcnt vmcnt(0)")
        A(f"buffer_store_dword {v(TAGV)}, {v(POW)}, {s(SWS, 4)}, 0 offen{loc}")
        A(f"v_add_u32 {v(TAGV)}, 1, {v(TAGV)}")
        if cfg.use_fm:
            flag_wait(A, cfg, FMR, FBUF, 4, end)
        for i in range(4):
            ldm(i)
            heat(A, HT, cfg.lspace if i < 3 else cfg.ltail)

        fq = lambda j, lo, hi: [A(f"{SM} {v(ACQ + 4 * n, 4)}, {v(AP + 4 * j, 4)}, {r(WQ + (j * 8 + n) * 8, 8)}, {v(IDX)}")
                                for n in range(lo, hi)]
        chk4 = lambda i: check(A, AP + 4 * i, 4, CHK)
        ad = lambda i: A(f"v_add_f32 {v(ACQ + 2 * i)}, {v(ACQ + 2 * i)}, {v(ACQ + 2 * i + 1)}")
        wr = lambda i: A(f"ds_write_addtid_b32 {v(ACQ + 2 * i)} offset:{RQ + QPL(i >> 1, i & 1)}")

        def plain_tail():
            A("s_nop 0")
            for i in range(4):
                ad(i)
            for i in range(16):
                if i < 12:
                    ad(i + 4)
                wr(i)

        def last_piece():
            na = nw = 0
            for n in range(8):
                fq(3, n, n + 1)
                if n < 3:
                    A("s_nop 1")
                    continue
                ad(na), ad(na + 1)
                na += 2
                if n > 3:
                    for _ in range(cfg.qpipe - 1):
                        wr(nw)
                        nw += 1
            stamp(A, cfg, 0)
            while nw < 16:
                wr(nw)
                nw += 1
                if na < 16:
                    ad(na)
                    na += 1
        joined = A.new("qj")
        done, slow1 = fsm_poll(A, 4, ldm, chk4, lambda j, rest: fq(j, 0, 8), end,
                               fast=(lambda j: fq(j, 0, cfg.qsplit) if j < 3 or not cfg.qpipe else None,
                                     lambda j: fq(j, cfg.qsplit, 8) if j < 3 or not cfg.qpipe else last_piece()),
                               onfail=lambda first: (count(A, cfg, 2) if first else None, heat(A, HT, 1)))
        qdone = done
        if not cfg.qpipe:
            A.label(done)
            stamp(A, cfg, 0)
            plain_tail()
        A.label(joined)
        heat(A, HT, cfg.hw)
        A("s_waitcnt lgkmcnt(0)")
        A("s_barrier")
        for w in range(4):
            A(f"ds_read_b128 {v(RD + 4 * w, 4)}, {v(LR)} offset:{RQ + w * WS}")
        for i in range(4):
            A(f"v_mov_b32 {v(SMM + i)}, 0")

        def ldkc():
            for p in range(2):
                A(f"buffer_load_dwordx4 {v(KC + 4 * p, 4)}, {v(VK)}, {s(SWS, 4)}, {s(S_CUR)} offen offset:{1024 * p} sc1")
        if cfg.kpos == 0:
            ldkc()
        heat(A, HT, cfg.hr - 1)
        A("s_waitcnt lgkmcnt(0)")
        for h2 in range(2):
            A(f"v_pk_add_f32 {v(RD + 2 * h2, 2)}, {v(RD + 2 * h2, 2)}, {v(RD + 4 + 2 * h2, 2)}")
            A(f"v_pk_add_f32 {v(RD + 8 + 2 * h2, 2)}, {v(RD + 8 + 2 * h2, 2)}, {v(RD + 12 + 2 * h2, 2)}")
        for h2 in range(2):
            A(f"v_pk_add_f32 {v(RD + 2 * h2, 2)}, {v(RD + 2 * h2, 2)}, {v(RD + 8 + 2 * h2, 2)}")
        A(f"v_cvt_pk_bf16_f32 {v(RD)}, {v(RD)}, {v(RD + 1)}")
        A(f"v_cvt_pk_bf16_f32 {v(RD + 1)}, {v(RD + 2)}, {v(RD + 3)}")
        A(f"ds_write_b64 {v(QW)}, {v(RD, 2)} offset:{RB}")
        if cfg.kpos == 1:
            ldkc()
        heat(A, HT, cfg.hw)
        A("s_waitcnt lgkmcnt(0)")
        A("s_barrier")
        for ks in range(4):
            A(f"ds_read_b128 {v(QOP + 4 * ks, 4)}, {v(QR)} offset:{RB + ks * 512}")
        if cfg.kpos == 2:
            ldkc()
        heat(A, HT, 2)

        def qwait(ks):
            A(f"s_waitcnt lgkmcnt({3 - ks})")
            if ks in (1, 2):
                ldk(ks - 1)
            if ks == 3:
                A("s_waitcnt vmcnt(2)")
                check(A, KC, 8, CHK)
        score_x(QOP, False, qwait)
        stamp(A, cfg, 1)
        kre, kok = A.new("kr"), A.new("ko")
        A(f"s_cbranch_vccnz {kre}")
        for p in range(2):
            A(f"{SM} {v(SMM, 4)}, {v(KC + 4 * p, 4)}, {v(QOP + 8 * p, 8)}, {v(IDX)}")
        A.label(kok)
        stamp(A, cfg, 2)
        if cfg.vpos < 0:
            ldv()
        A.nop(4 if cfg.vpos >= 0 else 2)
        max_x()

        def hook(pos):
            if pos == cfg.vpos:
                ldv()
            if cfg.use_fo and pos == cfg.fo_pos:
                A(f"buffer_store_dword {v(TAGV)}, {v(FOW)}, {s(SWS, 4)}, {s(S_FB)} offen{loc}")
        softmax(hook)
        vre, vok = A.new("vr"), A.new("vo")

        def wait_v():
            A(f"s_waitcnt vmcnt({1 if cfg.use_fo and 4 >= cfg.fo_pos >= cfg.vpos else 0})")
            check(A, VM, 4, CHK)

        def test_v():
            A(f"s_cbranch_vccnz {vre}")
            A.label(vok)
        hook(4)
        pv(2, wait_v, test_v, hook)
        scale(8)
        for i in range(4):
            A(f"v_cvt_pk_bf16_f32 {v(PK + i)}, {v(OA + 2 * i)}, {v(OA + 2 * i + 1)}")
        for i in range(4):
            A(f"v_min_u32 {v(PK + i)}, -2, {v(PK + i)}")
        A(f"buffer_store_dwordx4 {v(PK, 4)}, {v(VO)}, {s(SWS, 4)}, {s(S_CUR)} offen{loc}")
        stamp(A, cfg, 3)
        A.c("off the recurrence path: operands of segment s+2, token rows of this segment")
        A("s_barrier")
        A(f"buffer_store_dwordx4 {v(SENT, 4)}, {v(VO)}, {s(SWS, 4)}, {s(S_RST)} offen{loc}")
        nopf = A.new("np")
        A(f"s_cmp_ge_u32 {s(S_STEP)}, {cfg.nsteps - 2}")
        A(f"s_cbranch_scc1 {nopf}")
        pqw, pqok = A.new("pw"), A.new("pk")
        if not cfg.solo:
            A(f"s_add_u32 {s(S_NEED)}, {s(S_STEP)}, 3")
            tstpq()
            A(f"s_cbranch_vccnz {pqw}")
            A.label(pqok)
        prefetch()
        if not cfg.solo:
            ldpq()
        if cfg.rpos == 3:
            A(f"s_add_u32 {s(S_T0)}, {s(S_STEP)}, 2")
            A(f"s_and_b32 {s(S_T0)}, {s(S_T0)}, 3")
            x_offsets(A, cfg, S_XR, S_T0)
            for rr in range(cfg.nrep):
                A(f"buffer_store_dwordx{XN} {v(SENT, XN)}, {v(XCL)}, {s(SWS, 4)}, {s(S_XR + rr)} offen sc1")
        A.label(nopf)
        for i in range(4):
            A(f"v_mov_b32 {v(SMM + i)}, 0")
        score_x(ST + 48, True)
        for p in range(2):
            A(f"{SM} {v(SMM, 4)}, {v(KC + 4 * p, 4)}, {v(ST + 48 + 8 * p, 8)}, {v(IDX)}")
        A(f"s_and_b32 {s(S_T0)}, {s(S_STEP)}, {63 if cfg.solo else 7}")
        A(f"s_lshl_b32 {s(S_T0)}, {s(S_T0)}, 18")
        A(f"s_add_u32 {s(S_OT)}, {s(S_T0)}, {L.OTOK}")
        A.nop(3)
        max_x()
        softmax()
        pv(4)
        scale(16)
        for i in range(8):
            A(f"v_cvt_pk_bf16_f32 {v(OA + i)}, {v(OA + 2 * i)}, {v(OA + 2 * i + 1)}")
        A(f"buffer_store_dwordx4 {v(OA, 4)}, {v(OTA)}, {s(SWS, 4)}, {s(S_OT)} offen{loc}")
        A(f"buffer_store_dwordx4 {v(OA + 4, 4)}, {v(OTB)}, {s(SWS, 4)}, {s(S_OT)} offen{loc}")
        stamp(A, cfg, 4, 2)
        if cfg.trace:
            A(f"s_memtime {s(S_STAMP + 10, 2)}")
        flush_stamps(A, cfg, 6, T2, T3, 2)
        A(f"s_add_u32 {s(S_STEP)}, {s(S_STEP)}, 1")
        A(f"s_cmp_lt_u32 {s(S_STEP)}, {cfg.nsteps}")
        A(f"s_cbranch_scc1 {top}")
        gate(A, cfg.gate2)
        A("s_waitcnt vmcnt(0)")
        A(f"buffer_store_dword {v(TAGV)}, {v(POW)}, {s(SWS, 4)}, 0 offen{loc}")
        gate(A, cfg.gate3)
        A(f"s_branch {end}")
        if not cfg.solo:
            A.label(pqw)
            block_on(A, ldpq, tstpq, end)
            A(f"s_branch {pqok}")
        if cfg.qpipe:
            A.label(qdone)
            stamp(A, cfg, 0)
            plain_tail()
            A(f"s_branch {joined}")
        slow1()
        A.label(kre)
        count(A, cfg, 0)
        ldk(2)
        ldk(3)

        def usekm(j, rest):
            p = j & 1
            if rest and (j ^ 2) not in rest:
                return
            A(f"{SM} {v(SMM, 4)}, {v(AP + 4 * j, 4)}, {v(QOP + 8 * p, 8)}, {v(IDX)}")
            for i in range(4):
                A(f"v_mov_b32 {v(KC + 4 * p + i)}, {v(AP + 4 * j + i)}")
        done, slow2 = fsm_poll(A, 4, ldk, chk4, usekm, end, lambda got: {x & 1 for x in got} == {0, 1})
        A.label(done)
        A(f"s_branch {kok}")
        slow2()
        A.label(vre)
        count(A, cfg, 1)
        ldv()
        spend(A, end)
        A("s_waitcnt vmcnt(0)")
        check(A, VM, 4, CHK)
        A(f"s_cbranch_vccnz {vre}")
        A(f"s_branch {vok}")

    body("")
    A.label(slow_lbl)
    body(" sc1")


def chain_kernel(A, cfg, name="chain_kernel"):
    end, kvo, other, noprobe = A.new("end"), A.new("kvo_role"), A.new("other"), A.new("np")
    A.kernel_begin(name)
    role_prologue(A, end)
    A(f"s_cmp_ge_u32 {s(S_GRP)}, 4")
    A(f"s_cbranch_scc1 {other}")
    A(f"s_cmp_ge_u32 {s(S_TK)}, 24")
    A(f"s_cbranch_scc1 {other}")
    A(f"s_cmp_ge_u32 {s(S_TK)}, 8")
    A(f"s_cbranch_scc1 {kvo}")
    q_role(A, cfg, end)
    A.label(other)
    A(f"s_mov_b32 {s(S_T2)}, 1")
    A(f"s_lshl_b32 {s(S_T0)}, {s(S_GRP)}, 8")
    A(f"s_or_b32 {s(S_T0)}, {s(S_T0)}, {s(S_TK)}")
    A(f"s_cmp_lg_u32 {s(S_T0)}, 24")
    A(f"s_cbranch_scc1 {noprobe}")
    probe(A, 1, S_T2)
    A.label(noprobe)
    arrive(A, S_T2)
    A.label(end)
    A("s_endpgm")
    A.label(kvo)
    kvo_role(A, cfg, end)
```

```python
import sys
from asmlib import *
import chain, stream
from chain import S_GRP, S_TK


def build(path, **kw):
    cfg = chain.Cfg()
    cfg.marks = 0
    cfg.single = 0
    for k, val in kw.items():
        setattr(cfg, k, val)
    cfg.mark = lambda A, i: stream.mark(A, cfg, i, 48)
    A = Asm()
    name = NAME + "_kernel"
    end, kvo, g3, hi, helper, ln, end2 = (A.new(x) for x in ("end", "kvo", "g3", "hi", "helper", "ln", "end"))
    A.kernel_begin(name)
    if cfg.gate_entry or cfg.marks == 1:
        A("s_memrealtime s[90:91]")
    chain.role_prologue(A, end)
    stream.mark(A, cfg, 0)
    if cfg.marks == 1:
        A("v_mov_b32 v15, s90")
        A("s_mov_b64 exec, 1")
        A("buffer_store_dword v15, off, s[4:7], s98 offset:32")
        A("s_mov_b64 exec, -1")
    A(f"s_cmp_ge_u32 {s(S_GRP)}, 4")
    A(f"s_cbranch_scc1 {hi}")
    A(f"s_cmp_ge_u32 {s(S_TK)}, 24")
    A(f"s_cbranch_scc1 {g3}")
    A(f"s_cmp_ge_u32 {s(S_TK)}, 8")
    A(f"s_cbranch_scc1 {kvo}")
    chain.q_role(A, cfg, end)
    A.label(end)
    A("s_endpgm")
    A.label(kvo)
    chain.kvo_role(A, cfg, end)
    A.label(g3)
    stream.g3_role(A, cfg, end2)
    A.label(hi)
    A(f"s_cmp_ge_u32 {s(S_TK)}, 16")
    A(f"s_cbranch_scc1 {helper}")
    stream.qkv_role(A, cfg, end2)
    A.label(end2)
    A("s_endpgm")
    A.label(helper)
    stream.helper_start(A, cfg, end2)
    A(f"s_cmp_ge_u32 {s(S_TK)}, 30")
    A(f"s_cbranch_scc1 {ln}")
    stream.g45_role(A, cfg, end2)
    A.label(ln)
    stream.ln_role(A, cfg, end2)
    hdr = ["adaLN + recurrent-memory attention + SwiGLU in one launch; generated by gen/mega.py"]
    open(path, "w").write(build_file(hdr, [(name, 256, 256, 163840)], A, [(name, 512, 102, 256)], cfg.single))


if __name__ == "__main__":
    kw = {}
    for x in sys.argv[2:]:
        k, val = x.split("=")
        kw[k] = int(val)
    build(sys.argv[1], **kw)
```

```python
from asmlib import *
import layout as L

SWS, SW, SDBG = 4, 8, 12
P_MEM0, P_WQ, P_WK, P_WV, P_WO, P_DBG, P_WS = 16, 18, 20, 22, 24, 28, 30
S_WAVE, S_GRP, S_TK, S_IRR, S_STEP, S_BUD, S_T0, S_T1 = 32, 33, 34, 35, 36, 37, 38, 39
S_CUR, S_NXT, S_RST, S_XCUR, S_XRST, S_RBASE, S_PAR, S_PF, S_C, S_NC, S_OT = range(40, 51)
S_XCC, S_T2, S_T3 = 51, 52, 53
S_FB, S_TAG = 59, 26
S_XC, S_XR = 84, 88
S_STAMP = 60
S_CNT = 80
BUDGET = 200000
SM = "v_smfmac_f32_16x16x64_bf16"
MF = "v_mfma_f32_16x16x32_bf16"


WFLAG = ("", " nt", " sc1")


class Cfg:
    trace = 0
    nsteps = 64
    lag = 3
    s1_flag = 36
    wlo = 0
    whi = 0
    wff = 0
    wmod = 0
    ramp_lo = 5
    ramp_hi = 3
    g3_after = 0
    meet = 1
    near = 6
    marks = 0
    qsig = 70
    codepf = 1
    qmap = 0
    gate2 = 0
    gate_entry = 0
    gate3 = 0
    gate = 0
    outflag = 2
    qkv_slow = 3
    g4_split = 4
    g4_step = 5
    st_step = 4
    g4_late = 1
    mark = staticmethod(lambda A, i: None)
    fin_sleep = 4
    ln_sleep = 2
    g4_sleep = 4
    solo = 0
    cyc = 0
    flip = 0
    nrep = 2
    xdelay = 28
    xgap = 12
    xfill = 0
    fm_delay = 36
    mdelay = 8
    fo_pos = 3
    use_fm = 1
    use_fo = 1
    fspace = 12
    lspace = 4
    ltail = 1
    kpos = 1
    vpos = 0
    ksplit = 2
    qsplit = 5
    rpos = 3
    vin = 2
    vk = 2
    xdepth = 3
    xgap2 = 4
    xbf = 1
    vchk = 1
    qpipe = 0
    hw = 2
    hr = 3


def gate(A, us):
    if us:
        gl = A.new("gate")
        A.label(gl)
        A("s_memrealtime s[92:93]")
        A("s_waitcnt lgkmcnt(0)")
        A("s_sub_u32 s92, s92, s90")
        A(f"s_cmp_lt_u32 s92, {us * 100}")
        A(f"s_cbranch_scc1 {gl}")


def heat(A, h, n):
    for _ in range(n):
        A(f"{MF} {v(h, 4)}, {v(h + 4, 4)}, {v(h + 4, 4)}, 0")


def stamp(A, cfg, i, lvl=1):
    if cfg.trace in (1, lvl):
        A(f"{'s_memtime' if cfg.cyc else 's_memrealtime'} {s(S_STAMP + 2 * i, 2)}")


def count(A, cfg, i):
    if cfg.trace == 1:
        A(f"s_add_u32 {s(S_CNT + i)}, {s(S_CNT + i)}, 1")


def flush_stamps(A, cfg, n, vt, va, lvl=1):
    if cfg.trace not in (1, lvl):
        return
    A("s_waitcnt lgkmcnt(0)")
    for i in range(n):
        A(f"v_writelane_b32 {v(vt)}, {s(S_STAMP + 2 * i)}, {i}")
    A(f"v_writelane_b32 {v(vt)}, {s(S_BUD)}, 8")
    for i in range(4):
        A(f"v_writelane_b32 {v(vt)}, {s(S_CNT + i)}, {9 + i}")
    A(f"s_mul_i32 {s(S_T0)}, {s(S_GRP)}, 24")
    A(f"s_add_u32 {s(S_T0)}, {s(S_T0)}, {s(S_TK)}")
    A(f"s_lshl_b32 {s(S_T0)}, {s(S_T0)}, 2")
    A(f"s_add_u32 {s(S_T0)}, {s(S_T0)}, {s(S_WAVE)}")
    A(f"s_lshl_b32 {s(S_T0)}, {s(S_T0)}, 6")
    A(f"s_add_u32 {s(S_T0)}, {s(S_T0)}, {s(S_STEP)}")
    A(f"s_lshl_b32 {s(S_T0)}, {s(S_T0)}, 6")
    A(f"s_add_u32 {s(S_T0)}, {s(S_T0)}, {L.TRACE}")
    A(f"v_mbcnt_lo_u32_b32 {v(va)}, -1, 0")
    A(f"v_lshlrev_b32 {v(va)}, 2, {v(va)}")
    A("s_mov_b64 exec, 0xffff")
    A(f"buffer_store_dword {v(vt)}, {v(va)}, {s(SWS, 4)}, {s(S_T0)} offen")
    A("s_mov_b64 exec, -1")


def check(A, reg, n, tmp):
    if n == 4:
        A(f"v_max3_u32 {v(tmp)}, {v(reg)}, {v(reg + 1)}, {v(reg + 2)}")
        A(f"v_max_u32 {v(tmp)}, {v(tmp)}, {v(reg + 3)}")
    elif n > 4:
        A(f"v_max3_u32 {v(tmp)}, {v(reg)}, {v(reg + 1)}, {v(reg + 2)}")
        for i in range(3, n - 1, 2):
            A(f"v_max3_u32 {v(tmp)}, {v(tmp)}, {v(reg + i)}, {v(reg + i + 1)}")
        A(f"v_max_u32 {v(tmp)}, {v(tmp)}, {v(reg + n - 1)}")
    elif n == 2:
        A(f"v_max_u32 {v(tmp)}, {v(reg)}, {v(reg + 1)}")
    A(f"v_cmp_eq_u32 vcc, -1, {v(tmp)}")


def spend(A, abort):
    A(f"s_sub_u32 {s(S_BUD)}, {s(S_BUD)}, 1")
    A(f"s_cbranch_scc1 {abort}")


def fsm_poll(A, n, ld, chk, use, abort, finished=None, fast=None, onfail=None):
    done = A.new("pd")
    labels, emitted, todo = {}, set(), []
    full = frozenset(range(n))
    if finished is None:
        finished = lambda got: got == full

    def lab(st):
        if st not in labels:
            labels[st] = A.new("ps")
            todo.append(st)
        return labels[st]

    fails = []

    def chain_from(st, last):
        while True:
            if st in emitted:
                A(f"s_branch {lab(st)}")
                return
            emitted.add(st)
            A.label(lab(st))
            fl = A.new("pf")
            fails.append((fl, st))
            A(f"s_waitcnt vmcnt({len(st) - 1})")
            chk(st[0])
            A(f"s_cbranch_vccnz {fl}")
            rest = st[1:]
            fin = finished(full - frozenset(rest))
            use(st[0], () if fin else rest)
            if fin:
                if not last:
                    A(f"s_branch {done}")
                return
            st = rest

    if fast is None:
        chain_from(tuple(range(n)), True)
    else:
        head, tail = fast
        for i in range(n):
            fl = A.new("pf")
            fails.append((fl, tuple(range(i, n))))
            A(f"s_waitcnt vmcnt({n - 1 - i})")
            chk(i)
            if i:
                tail(i - 1)
            A(f"s_cbranch_vccnz {fl}")
            head(i)
        tail(n - 1)

    def rest_code():
        i = 0
        while i < len(fails) or any(t not in emitted for t in todo):
            while i < len(fails):
                fl, st = fails[i]
                i += 1
                A.label(fl)
                ld(st[0])
                if onfail:
                    onfail(i <= n and fast is not None)
                if st[0] == min(st):
                    spend(A, abort)
                chain_from(st[1:] + st[:1], False)
            for t in list(todo):
                if t not in emitted:
                    chain_from(t, False)
    return done, rest_code


def flag_wait(A, cfg, vaddr, buf, nl, abort):
    go, top = A.new("fg"), A.new("ft")
    ld = lambda b: A(f"buffer_load_dword {v(buf + b)}, {v(vaddr)}, {s(SWS, 4)}, {s(S_FB)} offen sc1")
    A(f"s_mov_b64 exec, {(1 << nl) - 1}")
    for b in range(3):
        ld(b)
        if b < 2:
            A.nop(cfg.fspace)
    A.label(top)
    for b in range(3):
        A("s_waitcnt vmcnt(2)")
        A(f"v_cmp_gt_u32 vcc, {s(S_TAG)}, {v(buf + b)}")
        A(f"s_cbranch_vccz {go}")
        ld(b)
    spend(A, abort)
    A(f"s_branch {top}")
    A.label(go)
    A("s_mov_b64 exec, -1")


def load_weights(A, chunks, vglob, vtr, flag="", first=None, ramp=5):
    NS = 5

    def issue(c):
        setup, stride, order, dst = chunks[c]
        setup()
        A(f"s_mul_i32 {s(S_T0)}, {s(S_WAVE)}, 40960")
        A(f"s_add_u32 m0, {s(S_T0)}, {(c % NS) * 8192}")
        for j in range(8):
            if j:
                A(f"s_add_u32 m0, m0, 1024")
                A(f"s_add_u32 {s(S_T1)}, {s(S_T1)}, {8 * stride}")
            else:
                A("s_nop 0")
            A(f"buffer_load_dwordx4 {v(vglob[stride])}, {s(SW, 4)}, {s(S_T1)} offen{flag} lds")

    n = len(chunks)
    for c in range(ramp):
        issue(c)
    if ramp < NS:
        A(f"s_waitcnt vmcnt({8 * (ramp - 1)})")
        for c in range(ramp, NS):
            issue(c)
    for c in range(n):
        setup, stride, order, dst = chunks[c]
        A(f"s_waitcnt vmcnt({8 * (min(c + NS, n) - c - 1)})")
        if c == 0 and first:
            first()
        for t in range(4):
            for H in range(2):
                for q in range(2):
                    row = 32 * H + (16 * q if order == "P" else 2 * q)
                    off = (c % NS) * 8192 + row * 128 + t * 32
                    A(f"ds_read_b64_tr_b16 {r(dst(t) + 4 * H + 2 * q, 2)}, {v(vtr[order])} offset:{off}")
        A("s_waitcnt lgkmcnt(0)")
        if c + NS < n:
            issue(c + NS)


def weight_addr_regs(A, lane, g8192, g2048, trP, trO, t0, t1):
    A(f"v_lshrrev_b32 {v(t0)}, 3, {v(lane)}")
    A(f"v_and_b32 {v(t1)}, 7, {v(lane)}")
    A(f"v_lshlrev_b32 {v(t1)}, 4, {v(t1)}")
    A(f"v_lshl_add_u32 {v(g8192)}, {v(t0)}, 13, {v(t1)}")
    A(f"v_lshl_add_u32 {v(g2048)}, {v(t0)}, 11, {v(t1)}")
    A(f"s_mul_i32 {s(S_T0)}, {s(S_WAVE)}, 40960")
    A(f"v_and_b32 {v(t1)}, 3, {v(lane)}")
    A(f"v_lshl_add_u32 {v(t1)}, {v(t1)}, 3, {s(S_T0)}")
    A(f"v_lshrrev_b32 {v(t0)}, 2, {v(lane)}")
    A(f"v_lshl_add_u32 {v(trP)}, {v(t0)}, 7, {v(t1)}")
    A(f"v_and_b32 {v(trO)}, 16, {v(lane)}")
    A(f"v_bfe_u32 {v(t0)}, {v(lane)}, 5, 1")
    A(f"v_lshl_add_u32 {v(trO)}, {v(t0)}, 3, {v(trO)}")
    A(f"v_bfe_u32 {v(t0)}, {v(lane)}, 3, 1")
    A(f"v_lshl_add_u32 {v(trO)}, {v(t0)}, 2, {v(trO)}")
    A(f"v_bfe_u32 {v(t0)}, {v(lane)}, 2, 1")
    A(f"v_add_u32 {v(trO)}, {v(trO)}, {v(t0)}")
    A(f"v_lshl_add_u32 {v(trO)}, {v(trO)}, 7, {v(t1)}")


def role_prologue(A, end):
    A("s_cmp_ge_u32 s2, 256")
    A(f"s_cbranch_scc1 {end}")
    A(f"s_load_dwordx8 {s(P_MEM0, 8)}, s[0:1], {KA['mem0']}")
    A(f"s_load_dwordx2 {s(P_WO, 2)}, s[0:1], {KA['Wo']}")
    A(f"s_load_dwordx4 {s(P_DBG, 4)}, s[0:1], {KA['dbg']}")
    A(f"s_getreg_b32 {s(S_XCC)}, hwreg(HW_REG_XCC_ID, 0, 4)")
    A(f"s_and_b32 {s(S_XCC)}, {s(S_XCC)}, 7")
    A("v_lshrrev_b32 v1, 6, v0")
    A("s_nop 0")
    A(f"v_readfirstlane_b32 {s(S_WAVE)}, v1")
    A("v_and_b32 v1, 63, v0")
    A("s_waitcnt lgkmcnt(0)")
    A.srd(SWS, P_WS, SIZE["ws"])
    A.srd(SDBG, P_DBG, SIZE["dbg"])
    A(f"s_mov_b32 {s(S_BUD)}, {BUDGET}")
    for i in range(4):
        A(f"s_mov_b32 {s(S_CNT + i)}, 0")
    got, loop, skip = A.new("rg"), A.new("rl"), A.new("rs")
    A(f"s_cmp_lg_u32 {s(S_WAVE)}, 0")
    A(f"s_cbranch_scc1 {skip}")
    A(f"s_mov_b32 {s(S_GRP)}, {s(S_XCC)}")
    A(f"s_mov_b32 {s(S_IRR)}, 0")
    A("s_mov_b64 exec, 1")
    A.label(loop)
    A(f"s_and_b32 {s(S_T0)}, {s(S_GRP)}, 4")
    A(f"s_mul_i32 {s(S_T0)}, {s(S_T0)}, 7")
    A(f"s_add_u32 {s(S_T0)}, {s(S_T0)}, {s(S_GRP)}")
    A(f"v_lshlrev_b32 v2, 2, {s(S_T0)}")
    A("v_mov_b32 v3, 1")
    A(f"buffer_atomic_add v3, v2, {s(SDBG, 4)}, 0 offen sc0 sc1")
    A("s_waitcnt vmcnt(0)")
    A(f"v_readfirstlane_b32 {s(S_TK)}, v3")
    A("s_nop 3")
    A(f"s_cmp_lt_u32 {s(S_TK)}, 32")
    A(f"s_cbranch_scc1 {got}")
    A(f"s_add_u32 {s(S_GRP)}, {s(S_GRP)}, 1")
    A(f"s_and_b32 {s(S_GRP)}, {s(S_GRP)}, 7")
    A(f"s_add_u32 {s(S_IRR)}, {s(S_IRR)}, 1")
    A(f"s_cmp_lt_u32 {s(S_IRR)}, 8")
    A(f"s_cbranch_scc1 {loop}")
    A.label(got)
    A(f"s_lshl_b32 {s(S_T0)}, {s(S_GRP)}, 8")
    A(f"s_min_u32 {s(S_TK)}, {s(S_TK)}, 255")
    A(f"s_or_b32 {s(S_T0)}, {s(S_T0)}, {s(S_TK)}")
    A(f"s_lshl_b32 {s(S_T1)}, {s(S_IRR)}, 16")
    A(f"s_or_b32 {s(S_T0)}, {s(S_T0)}, {s(S_T1)}")
    A(f"v_mov_b32 v3, {s(S_T0)}")
    A("v_mov_b32 v2, 0")
    A("ds_write_b32 v2, v3")
    A("s_mov_b64 exec, -1")
    A.label(skip)
    A("s_waitcnt lgkmcnt(0)")
    A("s_barrier")
    A("v_mov_b32 v2, 0")
    A("ds_read_b32 v3, v2")
    A("s_waitcnt lgkmcnt(0)")
    A(f"v_readfirstlane_b32 {s(S_T0)}, v3")
    A("s_barrier")
    A(f"s_and_b32 {s(S_TK)}, {s(S_T0)}, 255")
    A(f"s_bfe_u32 {s(S_GRP)}, {s(S_T0)}, 0x80008")
    A(f"s_lshr_b32 {s(S_IRR)}, {s(S_T0)}, 16")
    A(f"s_min_u32 {s(S_IRR)}, {s(S_IRR)}, 1")
    A(f"s_cmp_ge_u32 {s(S_TK)}, 32")
    A(f"s_cbranch_scc1 {end}")
    A.c("the roles that must start first take the first tickets")
    A(f"s_cmp_ge_u32 {s(S_GRP)}, 4")
    A(f"s_cselect_b32 {s(S_T0)}, 16, 24")
    A(f"s_add_u32 {s(S_TK)}, {s(S_TK)}, {s(S_T0)}")
    A(f"s_and_b32 {s(S_TK)}, {s(S_TK)}, 31")


def arrive(A, add_reg, hi=False, wait=True, join=True, t=48):
    skip = A.new("ar")
    if wait:
        A("s_waitcnt vmcnt(0)")
    if join:
        A("s_barrier")
    A(f"s_cmp_lg_u32 {s(S_WAVE)}, 0")
    A(f"s_cbranch_scc1 {skip}")
    A("s_mov_b64 exec, 1")
    A(f"v_mov_b32 {v(t)}, {160 if hi else 32}")
    A(f"v_mov_b32 {v(t + 1)}, {s(add_reg)}")
    A(f"buffer_atomic_add {v(t + 1)}, {v(t)}, {s(SDBG, 4)}, 0 offen sc1")
    A("s_mov_b64 exec, -1")
    A.label(skip)


def await_start(A, abort, t=48, hi_only=False, probed=False):
    loop, out = A.new("st"), A.new("so")
    A.label(loop)
    A(f"buffer_load_dword {v(t)}, off, {s(SDBG, 4)}, 0 offset:{160 if hi_only else 32} sc1")
    A(f"buffer_load_dword {v(t + 1)}, off, {s(SDBG, 4)}, 0 offset:160 sc1")
    A("s_waitcnt vmcnt(0)")
    A(f"v_add_u32 {v(t)}, {v(t)}, {v(t + 1)}")
    A("s_nop 0")
    A(f"v_readfirstlane_b32 {s(S_T0)}, {v(t)}")
    A("s_nop 3")
    A(f"s_and_b32 {s(S_T1)}, {s(S_T0)}, {hex(0x200ffff if probed else 0xffff)}")
    A(f"s_cmp_eq_u32 {s(S_T1)}, {hex(0x2000100 if probed else 0x100)}")
    A(f"s_cbranch_scc1 {out}")
    spend(A, abort)
    A("s_sleep 8")
    A(f"s_branch {loop}")
    A.label(out)
    A(f"s_bfe_u32 {s(S_IRR)}, {s(S_T0)}, 0x80010")
    A(f"s_bfe_u32 {s(S_PAR)}, {s(S_T0)}, 0x10018")
    A(f"s_lshl_b32 {s(S_PAR)}, {s(S_PAR)}, 13")
    A("s_barrier")


def probe(A, lane, dst, dbg=False):
    skip = A.new("pb")
    A(f"s_cmp_lg_u32 {s(S_WAVE)}, 0")
    A(f"s_cbranch_scc1 {skip}")
    A(f"v_lshlrev_b32 v52, 8, {v(lane)}")
    A("v_mov_b32 v53, -1")
    A(f"s_mov_b32 {s(S_T3)}, {L.XRING + 0x8000}")
    A(f"buffer_store_dword v53, v52, {s(SWS, 4)}, {s(S_T3)} offen sc1")
    A("s_waitcnt vmcnt(0)")
    A("s_mov_b64 exec, 1")
    for h in range(2):
        A(f"s_mov_b32 {s(60 + h)}, -1")
    loop = A.new("pl")
    A("v_mov_b32 v52, 0")
    A("s_mov_b32 s66, 5")
    A.label(loop)
    for h in range(2):
        A(f"s_memtime {s(62, 2)}")
        A("s_waitcnt lgkmcnt(0)")
        A(f"buffer_load_dword v53, v52, {s(SWS, 4)}, {s(S_T3)} offen sc1")
        A("s_waitcnt vmcnt(0)")
        A(f"s_memtime {s(64, 2)}")
        A("s_waitcnt lgkmcnt(0)")
        A("s_sub_u32 s62, s64, s62")
        A(f"s_min_u32 {s(60 + h)}, {s(60 + h)}, s62")
        A(f"v_add_u32 v52, {8192 if h == 0 else 1280 - 8192}, v52")
    A("s_sub_u32 s66, s66, 1")
    A("s_cmp_lg_u32 s66, 0")
    A(f"s_cbranch_scc1 {loop}")
    A("s_mov_b64 exec, -1")
    if dbg:
        A("v_mov_b32 v52, s60")
        A("v_mov_b32 v53, s61")
        A(f"buffer_store_dwordx2 v[52:53], off, {s(SDBG, 4)}, 0 offset:48")
    A("s_cmp_lt_u32 s61, s60")
    A("s_cselect_b32 s62, 1, 0")
    A(f"s_lshr_b32 s63, {s(S_XCC)}, 2")
    A("s_xor_b32 s62, s62, s63")
    A("s_lshl_b32 s62, s62, 24")
    A(f"s_or_b32 {s(dst)}, {s(dst)}, s62")
    A.label(skip)


def x_offsets(A, cfg, dst, slot):
    A(f"s_lshl_b32 {s(dst)}, {s(slot)}, 18")
    A(f"s_add_u32 {s(dst)}, {s(dst)}, {s(S_PAR)}")
    if cfg.nrep > 1:
        A(f"s_add_u32 {s(dst + 1)}, {s(dst)}, 0x100000")


def progress_addr(A, dst, lane, base, index, tmp, word=0):
    A(f"s_lshl_b32 {s(S_T0)}, {s(index)}, 5")
    A(f"s_add_u32 {s(S_T0)}, {s(S_T0)}, {s(S_WAVE)}")
    A(f"s_lshl_b32 {s(S_T0)}, {s(S_T0)}, 2")
    A(f"s_add_u32 {s(S_T0)}, {s(S_T0)}, {base + 4 * word}")
    A(f"v_min_u32 {v(tmp)}, 1, {v(lane)}")
    A(f"v_lshl_add_u32 {v(dst)}, {v(tmp)}, 30, {s(S_T0)}")


def line_addr(A, dst, tid, base, index, tmp):
    A(f"s_lshl_b32 {s(S_T0)}, {s(index)}, 7")
    A(f"s_add_u32 {s(S_T0)}, {s(S_T0)}, {base}")
    A(f"v_min_u32 {v(tmp)}, 1, {v(tid)}")
    A(f"v_lshl_add_u32 {v(dst)}, {v(tmp)}, 30, {s(S_T0)}")


def lines_addr(A, dst, lane, nlines, shift=7):
    A(f"v_min_u32 {v(dst)}, {nlines - 1}, {v(lane)}")
    A(f"v_lshlrev_b32 {v(dst)}, {shift}, {v(dst)}")


def words_addr(A, dst, lane, nlines, tmp, shift=2):
    A(f"v_lshrrev_b32 {v(tmp)}, 2, {v(lane)}")
    A(f"v_min_u32 {v(tmp)}, {nlines - 1}, {v(tmp)}")
    A(f"v_lshlrev_b32 {v(tmp)}, 7, {v(tmp)}")
    A(f"v_and_b32 {v(dst)}, 3, {v(lane)}")
    A(f"v_lshl_add_u32 {v(dst)}, {v(dst)}, {shift}, {v(tmp)}")


def block_on(A, ld, test, abort, sleep=2):
    top, out = A.new("bw"), A.new("bo")
    A.label(top)
    ld()
    A("s_waitcnt vmcnt(0)")
    test()
    A(f"s_cbranch_vccz {out}")
    spend(A, abort)
    A(f"s_sleep {sleep}")
    A(f"s_branch {top}")
    A.label(out)


def ring_slots(A):
    A(f"s_and_b32 {s(S_T0)}, {s(S_STEP)}, 3")
    A(f"s_lshl_b32 {s(S_T1)}, {s(S_T0)}, 16")
    A(f"s_add_u32 {s(S_CUR)}, {s(S_T1)}, {s(S_RBASE)}")
    A(f"s_xor_b32 {s(S_RST)}, {s(S_CUR)}, 0x20000")
    A(f"s_add_u32 {s(S_TAG)}, {s(S_STEP)}, 1")


def kvo_role(A, cfg, end):
    TID, LANE = 0, 1
    VG, VGO, PUBM, PUBK, PUBV, XOWN, XP = 8, 9, 10, 11, 27, 12, 13
    IDX, LR, LWV, LRV, CHK = 126, 24, 25, 127, 26
    LRO, FMR, FOR, FMW, FBUF, TAGV = 0, 1, 2, 3, 4, 7
    AP, ACK, ACV, ACO, HS, RD, SUM, SENT = 28, 44, 60, 76, 92, 100, 116, 120
    XL = 76
    WK, WO, WV = 256, 256 + 128, 128
    RK, RO, RV, WS = 0, 10240, 20480, 2560
    KPL = lambda n, b: 4 * ((n >> 1) * 320 + (n & 1) * 72 + b * 160)
    OPL = lambda n, b: 4 * (n * 144 + b * 72)
    HT = 16
    S_CI, S_LO1 = 54, 55
    A.c("KVO role: column slice c of the k, v and output projections of head group S_GRP")
    A("v_mov_b32 v44, v0")
    A("v_mov_b32 v45, v1")
    TID, LANE, U = 44, 45, 46
    t2, t3, t4, t5, t6, t7 = 50, 51, 52, 53, 54, 55
    A(f"v_and_b32 {v(U)}, 127, {v(TID)}")
    A(f"s_sub_u32 {s(S_CI)}, {s(S_TK)}, 8")
    A(f"s_lshl_b32 {s(S_RBASE)}, {s(S_GRP)}, 18")
    A(f"s_add_u32 {s(S_RBASE)}, {s(S_RBASE)}, {L.LRING}")
    A(f"s_lshl_b32 {s(S_FB)}, {s(S_GRP)}, 12")
    A(f"s_add_u32 {s(S_FB)}, {s(S_FB)}, {L.FLAGS}")
    A(f"s_lshl_b32 {s(S_T0)}, {s(S_WAVE)}, 12")
    A(f"v_lshl_add_u32 {v(VG)}, {v(LANE)}, 4, {s(S_T0)}")
    A(f"v_add_u32 {v(VGO)}, 49152, {v(VG)}")
    A(f"s_lshl_b32 {s(S_T0)}, {s(S_CI)}, 10")
    A(f"v_lshl_add_u32 {v(PUBM)}, {v(U)}, 3, {s(S_T0)}")
    A(f"v_lshl_add_u32 {v(t2)}, {v(TID)}, 2, {s(S_T0)}")
    A(f"v_xor_b32 {v(PUBK)}, {16384 + (4 << 10)}, {v(t2)}")
    A(f"v_xor_b32 {v(PUBV)}, {32768 + (2 << 10)}, {v(t2)}")
    A(f"s_lshl_b32 {s(S_T0)}, {s(S_WAVE)}, 8")
    A(f"v_lshl_add_u32 {v(FMR)}, {v(LANE)}, 2, {s(S_T0)}")
    A(f"v_add_u32 {v(FOR)}, 2048, {v(FMR)}")
    A(f"s_lshr_b32 {s(S_T0)}, {s(S_CI)}, 2")
    A(f"s_lshl_b32 {s(S_T0)}, {s(S_T0)}, 8")
    A(f"s_and_b32 {s(S_T1)}, {s(S_CI)}, 3")
    A(f"s_lshl_b32 {s(S_T1)}, {s(S_T1)}, 2")
    A(f"s_add_u32 {s(S_T0)}, {s(S_T0)}, {s(S_T1)}")
    A(f"v_min_u32 {v(t2)}, 1, {v(TID)}")
    A(f"v_lshl_add_u32 {v(FMW)}, {v(t2)}, 30, {s(S_T0)}")
    XN = 2 if cfg.xbf else 4
    A(f"s_lshr_b32 {s(S_T0)}, {s(S_CI)}, {3 if cfg.xbf else 2}")
    A(f"s_lshl_b32 {s(S_T0)}, {s(S_T0)}, 14")
    A(f"s_and_b32 {s(S_T1)}, {s(S_CI)}, {7 if cfg.xbf else 3}")
    A(f"s_lshl_b32 {s(S_T1)}, {s(S_T1)}, {10 if cfg.xbf else 11}")
    A(f"s_add_u32 {s(S_T0)}, {s(S_T0)}, {s(S_T1)}")
    A(f"s_lshl_b32 {s(S_T1)}, {s(S_GRP)}, 16")
    A(f"s_add_u32 {s(S_T0)}, {s(S_T0)}, {s(S_T1)}")
    A(f"v_lshl_add_u32 {v(XOWN)}, {v(U)}, {3 if cfg.xbf else 4}, {s(S_T0)}")
    for j in range(3):
        A(f"v_xor_b32 {v(XP + j)}, {hex((j + 1) << 16)}, {v(XOWN)}")
    A(f"s_mov_b32 {s(S_LO1)}, 0x00003f80")
    A(f"s_mov_b32 {s(S_LO1 + 1)}, 0x3f800000")
    A(f"v_and_b32 {v(t2)}, 1, {v(LANE)}")
    A(f"v_mul_u32_u24 {v(t2)}, 0xaaaa, {v(t2)}")
    A(f"v_add_u32 {v(IDX)}, 0x4444, {v(t2)}")
    A(f"s_lshl_b32 {s(S_T0)}, {s(S_WAVE)}, 11")
    A(f"v_lshl_add_u32 {v(LWV)}, {v(LANE)}, 5, {s(S_T0)}")
    A(f"v_lshlrev_b32 {v(LRV)}, 3, {v(TID)}")
    A(f"v_bfe_u32 {v(t2)}, {v(U)}, 5, 1")
    A(f"v_lshlrev_b32 {v(t2)}, 2, {v(t2)}")
    A(f"v_and_b32 {v(t3)}, 1, {v(U)}")
    A(f"v_lshl_add_u32 {v(t2)}, {v(t3)}, 1, {v(t2)}")
    A(f"v_bfe_u32 {v(t3)}, {v(U)}, 1, 1")
    A(f"v_add_u32 {v(t2)}, {v(t2)}, {v(t3)}")
    A(f"v_and_b32 {v(t3)}, 24, {v(U)}")
    A(f"v_add_u32 {v(t3)}, {v(t3)}, {v(t2)}")
    A(f"v_lshlrev_b32 {v(t3)}, 3, {v(t3)}")
    A(f"v_bfe_u32 {v(t4)}, {v(U)}, 2, 1")
    A(f"v_mul_u32_u24 {v(t4)}, {OPL(0, 1)}, {v(t4)}")
    A(f"v_add_u32 {v(t3)}, {v(t3)}, {v(t4)}")
    A(f"v_lshrrev_b32 {v(t4)}, 6, {v(U)}")
    A(f"v_mul_u32_u24 {v(t5)}, {OPL(2, 0)}, {v(t4)}")
    A(f"v_add_u32 {v(LRO)}, {v(t3)}, {v(t5)}")
    A(f"v_lshl_add_u32 {v(t2)}, {v(t4)}, 4, {v(t2)}")
    A(f"v_bfe_u32 {v(t3)}, {v(U)}, 2, 3")
    A(f"v_lshlrev_b32 {v(t3)}, 11, {v(t3)}")
    A(f"v_lshl_add_u32 v58, {v(t2)}, 2, {v(t3)}")
    A.srd(SW, P_MEM0, SIZE["mem0"])
    A(f"v_and_b32 {v(t2)}, 1, {v(LANE)}")
    A(f"s_and_b32 {s(S_T0)}, {s(S_WAVE)}, 2")
    A(f"v_add_u32 {v(t3)}, {s(S_T0)}, {v(t2)}")
    A(f"s_and_b32 {s(S_T1)}, {s(S_WAVE)}, 1")
    A(f"s_lshl_b32 {s(S_T1)}, {s(S_T1)}, 3")
    A(f"v_bfe_u32 {v(t4)}, {v(LANE)}, 1, 1")
    A(f"v_lshl_add_u32 {v(t4)}, {v(t4)}, 2, {s(S_T1)}")
    A(f"v_bfe_u32 {v(t5)}, {v(LANE)}, 2, 1")
    A(f"v_lshl_add_u32 {v(t4)}, {v(t5)}, 1, {v(t4)}")
    A(f"v_bfe_u32 {v(t5)}, {v(LANE)}, 3, 1")
    A(f"v_and_b32 {v(t6)}, 48, {v(LANE)}")
    A(f"v_add_u32 {v(t6)}, {v(t6)}, {v(t4)}")
    A(f"v_lshlrev_b32 {v(t6)}, 2, {v(t6)}")
    A(f"v_mul_u32_u24 {v(t5)}, {KPL(0, 1)}, {v(t5)}")
    A(f"v_mul_u32_u24 {v(t7)}, {KPL(1, 0)}, {v(t2)}")
    A(f"v_add3_u32 {v(t6)}, {v(t6)}, {v(t5)}, {v(t7)}")
    A(f"s_mul_i32 {s(S_T0)}, {s(S_T0)}, {KPL(2, 0) // 2}")
    A(f"v_add_u32 {v(LR)}, {s(S_T0)}, {v(t6)}")
    for i in range(8):
        A(f"v_mov_b32 {v(HT + i)}, 0")
    for i in range(4):
        A(f"v_mov_b32 {v(SENT + i)}, -1")

    def clear_inbox():
        out = A.new("co")
        A(f"s_cmp_ge_u32 {s(S_WAVE)}, 2")
        A(f"s_cbranch_scc1 {out}")
        for rr in range(cfg.nrep):
            A(f"buffer_store_dwordx{XN} {v(SENT, XN)}, {v(XOWN)}, {s(SWS, 4)}, {s(S_XR + rr)} offen sc1")
        A.label(out)
    A.c("initial memory piece and 'not written' marks in every ring slot this workgroup owns")
    for slot in range(4):
        A(f"s_add_u32 {s(S_T0)}, {s(S_RBASE)}, {slot << 16}")
        A(f"buffer_store_dwordx2 {v(SENT, 2)}, {v(PUBM)}, {s(SWS, 4)}, {s(S_T0)} offen sc1")
        A(f"buffer_store_dword {v(SENT)}, {v(PUBK)}, {s(SWS, 4)}, {s(S_T0)} offen sc1")
        A(f"buffer_store_dword {v(SENT)}, {v(PUBV)}, {s(SWS, 4)}, {s(S_T0)} offen sc1")
        A(f"s_mov_b32 {s(S_T0)}, {slot}")
        for par in range(2):
            A(f"s_mov_b32 {s(S_PAR)}, {par << 13}")
            x_offsets(A, cfg, S_XR, S_T0)
            clear_inbox()
    A(f"v_mov_b32 {v(TAGV)}, 1")
    A(f"buffer_store_dword {v(TAGV)}, {v(FMW)}, {s(SWS, 4)}, {s(S_FB)} offen sc1")
    A(f"s_lshl_b32 {s(S_T2)}, {s(S_IRR)}, 16")
    A(f"s_or_b32 {s(S_T2)}, {s(S_T2)}, 1")

    arrive(A, S_T2)
    A(f"s_lshl_b32 {s(S_T0)}, {s(S_CI)}, 7")
    A(f"buffer_load_dword v56, v58, {s(SW, 4)}, {s(S_T0)} offen")
    A(f"buffer_load_dword v57, v58, {s(SW, 4)}, {s(S_T0)} offen offset:32")

    def first():
        A("v_min_u32 v56, -2, v56")
        A("v_min_u32 v57, -2, v57")
        A(f"buffer_store_dwordx2 v[56:57], {v(PUBM)}, {s(SWS, 4)}, {s(S_RBASE)} offen sc1")
    A.c("weights into registers")
    weight_addr_regs(A, LANE, t2, t3, t4, t5, t6, t7)
    chunks = []
    for ptr, name, base in ((P_WK, "Wk", WK), (P_WV, "Wv", WV), (P_WO, "Wo", WO)):
        for j in range(4):
            def setup(ptr=ptr, name=name, j=j):
                A.srd(SW, ptr, SIZE[name])
                if name == "Wo":
                    A(f"s_lshl_b32 {s(S_T1)}, {s(S_GRP)}, 2")
                    A(f"s_add_u32 {s(S_T1)}, {s(S_T1)}, {s(S_WAVE)}")
                    A(f"s_lshl_b32 {s(S_T1)}, {s(S_T1)}, 19")
                    A(f"s_lshl_b32 {s(S_T0)}, {s(S_CI)}, 7")
                    A(f"s_add_u32 {s(S_T1)}, {s(S_T1)}, {s(S_T0)}")
                    A(f"s_add_u32 {s(S_T1)}, {s(S_T1)}, {j * 64 * 2048}")
                else:
                    A(f"s_lshl_b32 {s(S_T1)}, {s(S_WAVE)}, 21")
                    A(f"s_lshl_b32 {s(S_T0)}, {s(S_GRP)}, 4")
                    A(f"s_add_u32 {s(S_T0)}, {s(S_T0)}, {s(S_CI)}")
                    A(f"s_xor_b32 {s(S_T0)}, {s(S_T0)}, {4 if name == 'Wk' else 2}")
                    A(f"s_lshl_b32 {s(S_T0)}, {s(S_T0)}, 7")
                    A(f"s_add_u32 {s(S_T1)}, {s(S_T1)}, {s(S_T0)}")
                    A(f"s_add_u32 {s(S_T1)}, {s(S_T1)}, {j * 64 * 8192}")
            chunks.append((setup, 2048 if name == "Wo" else 8192, "O" if name == "Wo" else "P",
                           (lambda n, base=base, j=j: base + (j * 4 + n) * 8)))
    if cfg.meet:
        chunks = [chunks[i] for i in (3, 7, 2, 6, 1, 5, 0, 4, 8, 9, 10, 11)]
    load_weights(A, chunks, {8192: t2, 2048: t3}, {"P": t4, "O": t5}, WFLAG[cfg.wlo], first, cfg.ramp_lo)
    cfg.mark(A, 1)
    await_start(A, end, probed=True)
    A(f"s_mul_i32 m0, {s(S_WAVE)}, {WS}")
    for q in range(32):
        A(f"v_mov_b32 {v(ACK + q)}, 0")
    A(f"s_mov_b32 {s(S_STEP)}, 0")
    slow_lbl = A.new("kvo_sc1")
    A(f"s_cmp_lg_u32 {s(S_IRR)}, 0")
    A(f"s_cbranch_scc1 {slow_lbl}")

    def half_sums(acc, R=None, pl=None, between=None):
        ad = lambda i: A(f"v_add_f32 {v(HS + i)}, {v(acc + 2 * i)}, {v(acc + 2 * i + 1)}")
        for i in range(4 if pl else 8):
            ad(i)
        if pl:
            for i in range(8):
                if i < 4:
                    ad(i + 4)
                A(f"ds_write_addtid_b32 {v(HS + i)} offset:{R + pl(i >> 1, i & 1)}")
                if between:
                    between(i)

    def read4(addr, R, ws):
        for w in range(4):
            A(f"ds_read_b64 {v(RD + 2 * w, 2)}, {v(addr)} offset:{R + w * ws}")

    def gather(ld):
        for i in range(4):
            ld(i)
            heat(A, HT, cfg.lspace if i < 3 else cfg.ltail)

    def proj(acc, W, vin=0):
        def f(j, lo, hi):
            for n in range(lo, hi):
                if n < 4:
                    A(f"{SM} {v(acc + 4 * n, 4)}, {v(AP + 4 * j, 4)}, {r(W + (j * 4 + n) * 8, 8)}, {v(IDX)}")
                else:
                    A(f"{SM} {v(ACV + 4 * (n - 4), 4)}, {v(AP + 4 * j, 4)}, {r(WV + (j * 4 + n - 4) * 8, 8)}, {v(IDX)}")
        sp = cfg.ksplit + vin
        return (lambda j, rest: f(j, 0, 4 + vin)), (lambda j: f(j, 0, sp), lambda j: f(j, sp, 4 + vin))

    def sum4():
        A(f"v_pk_add_f32 {v(RD, 2)}, {v(RD, 2)}, {v(RD + 2, 2)}")
        A(f"v_pk_add_f32 {v(RD + 4, 2)}, {v(RD + 4, 2)}, {v(RD + 6, 2)}")
        A(f"v_pk_add_f32 {v(SUM, 2)}, {v(RD, 2)}, {v(RD + 4, 2)}")

    def body(loc):
        top, top2, top3 = A.new("kvo"), A.new("kvo2"), A.new("kvo3")
        ldm = lambda i: A(f"buffer_load_dwordx4 {v(AP + 4 * i, 4)}, {v(VG)}, {s(SWS, 4)}, {s(S_CUR)} offen offset:{1024 * i} sc1")
        ldo = lambda i: A(f"buffer_load_dwordx4 {v(AP + 4 * i, 4)}, {v(VGO)}, {s(SWS, 4)}, {s(S_CUR)} offen offset:{1024 * i} sc1")
        vq = [(j, n) for j in range(4) for n in range(cfg.vin, 4)]

        def vmf(k):
            for _ in range(k):
                if vq:
                    j, n = vq.pop(0)
                    A(f"{SM} {v(ACV + 4 * n, 4)}, {v(AP + 4 * j, 4)}, {r(WV + (j * 4 + n) * 8, 8)}, {v(IDX)}")

        A.label(top)
        ring_slots(A)
        if cfg.use_fm:
            flag_wait(A, cfg, FMR, FBUF, 4, end)
        A.label(top3)
        gather(ldm)
        chk4 = lambda i: check(A, AP + 4 * i, 4, CHK)

        def onfail(c):
            return lambda first: (count(A, cfg, c) if first else None, heat(A, HT, 1))
        use, fast = proj(ACK, WK, cfg.vin)
        done, slow1 = fsm_poll(A, 4, ldm, chk4, use, end, fast=fast, onfail=onfail(2))
        A.label(done)
        stamp(A, cfg, 0)
        A.nop(5 - cfg.vin)
        half_sums(ACK, RK, KPL, lambda i: vmf(1) if i >= 8 - cfg.vk else None)
        vmf(2)
        if cfg.rpos == 0:
            clear_inbox()
        A("s_waitcnt lgkmcnt(0)")
        A("s_barrier")
        read4(LR, RK, WS)
        vmf(3)
        A("s_waitcnt lgkmcnt(0)")
        sum4()
        A(f"v_cvt_pk_bf16_f32 {v(SUM)}, {v(SUM)}, {v(SUM + 1)}")
        A(f"v_min_u32 {v(SUM)}, -2, {v(SUM)}")
        A(f"buffer_store_dword {v(SUM)}, {v(PUBK)}, {s(SWS, 4)}, {s(S_CUR)} offen{loc}")
        stamp(A, cfg, 1)
        left = len(vq)
        vmf(16)
        A.nop(6 if left else 1)
        half_sums(ACV)
        A(f"ds_write_b128 {v(LWV)}, {v(HS, 4)} offset:{RV}")
        A(f"ds_write_b128 {v(LWV)}, {v(HS + 4, 4)} offset:{RV + 16}")
        if cfg.rpos == 1:
            clear_inbox()
        A("s_waitcnt lgkmcnt(0)")
        A("s_barrier")
        read4(LRV, RV, 2048)
        A("s_waitcnt lgkmcnt(0)")
        sum4()
        A(f"v_cvt_pk_bf16_f32 {v(SUM)}, {v(SUM)}, {v(SUM + 1)}")
        A(f"v_min_u32 {v(SUM)}, -2, {v(SUM)}")
        A(f"buffer_store_dword {v(SUM)}, {v(PUBV)}, {s(SWS, 4)}, {s(S_CUR)} offen{loc}")
        stamp(A, cfg, 2)
        flush_stamps(A, cfg, 8, 124, 125)
        A(f"s_cmp_eq_u32 {s(S_STEP)}, {cfg.nsteps - 1}")
        A(f"s_cbranch_scc1 {end}")
        if cfg.rpos == 2:
            clear_inbox()
        for reg in (PUBK, PUBV):
            A(f"buffer_store_dword {v(SENT)}, {v(reg)}, {s(SWS, 4)}, {s(S_RST)} offen{loc}")
        r1 = A.new("r1")
        A(f"s_cmp_lt_u32 {s(S_WAVE)}, 2")
        A(f"s_cbranch_scc1 {r1}")
        A(f"buffer_store_dwordx2 {v(SENT, 2)}, {v(PUBM)}, {s(SWS, 4)}, {s(S_RST)} offen{loc}")
        A.label(r1)
        for q in range(24):
            A(f"v_pk_mul_f32 {v(ACK + 2 * q, 2)}, 0, 0")
        A(f"v_add_u32 {v(TAGV)}, 1, {v(TAGV)}")
        A(f"s_and_b32 {s(S_T0)}, {s(S_STEP)}, 3")
        x_offsets(A, cfg, S_XC, S_T0)
        if cfg.rpos < 3:
            A(f"s_add_u32 {s(S_T0)}, {s(S_STEP)}, 3")
            A(f"s_and_b32 {s(S_T0)}, {s(S_T0)}, 3")
            x_offsets(A, cfg, S_XR, S_T0)
        A(f"s_and_b32 {s(S_T0)}, {s(S_TAG)}, 3")
        A(f"s_lshl_b32 {s(S_T0)}, {s(S_T0)}, 16")
        A(f"s_add_u32 {s(S_NXT)}, {s(S_T0)}, {s(S_RBASE)}")
        if cfg.use_fo:
            flag_wait(A, cfg, FOR, FBUF, 2, end)
        gather(ldo)
        use, fast = proj(ACO, WO)
        done, slow2 = fsm_poll(A, 4, ldo, chk4, use, end, fast=fast, onfail=onfail(3))
        A.label(done)
        stamp(A, cfg, 3)
        A.nop(5)
        half_sums(ACO, RO, OPL)
        heat(A, HT, cfg.hw)
        loader = A.new("xl")
        A(f"s_cmp_ge_u32 {s(S_WAVE)}, 2")
        A(f"s_cbranch_scc1 {loader}")

        def own_sum():
            for w in range(4):
                for p in range(2):
                    A(f"ds_read_b64 {v(RD + 4 * w + 2 * p, 2)}, {v(LRO)} offset:{RO + w * WS + OPL(p, 0)}")
            A("s_waitcnt lgkmcnt(4)" if cfg.trace != 1 else "s_waitcnt lgkmcnt(0)")
            for h2 in range(2):
                A(f"v_pk_add_f32 {v(RD + 2 * h2, 2)}, {v(RD + 2 * h2, 2)}, {v(RD + 4 + 2 * h2, 2)}")
            A("s_waitcnt lgkmcnt(0)")
            for h2 in range(2):
                A(f"v_pk_add_f32 {v(RD + 8 + 2 * h2, 2)}, {v(RD + 8 + 2 * h2, 2)}, {v(RD + 12 + 2 * h2, 2)}")
            for h2 in range(2):
                A(f"v_pk_add_f32 {v(SUM + 2 * h2, 2)}, {v(RD + 2 * h2, 2)}, {v(RD + 8 + 2 * h2, 2)}")
        A.c("waves 0,1 send this group's partial sums to the other groups")
        A("s_waitcnt lgkmcnt(0)")
        A("s_barrier")
        own_sum()
        if cfg.xbf:
            for h2 in range(2):
                A(f"v_cvt_pk_bf16_f32 {v(SUM + h2)}, {v(SUM + 2 * h2)}, {v(SUM + 2 * h2 + 1)}")
        for i in range(XN):
            A(f"v_min_u32 {v(SUM + i)}, -2, {v(SUM + i)}")
        for rr in range(cfg.nrep):
            A(f"buffer_store_dwordx{XN} {v(SUM, XN)}, {v(XOWN)}, {s(SWS, 4)}, {s(S_XC + rr)} offen sc1")
            if rr == 0:
                stamp(A, cfg, 4)
        if cfg.use_fm:
            heat(A, HT, cfg.fm_delay)
            A(f"buffer_store_dword {v(TAGV)}, {v(FMW)}, {s(SWS, 4)}, {s(S_FB)} offen{loc}")
        A(f"s_add_u32 {s(S_STEP)}, {s(S_STEP)}, 1")
        A(f"s_branch {top}")
        A.label(loader)
        A.c("waves 2,3 add the other groups' partial sums and publish the new memory")
        A("s_waitcnt lgkmcnt(0)")
        A("s_barrier")
        XB = (XL, XL + 12, AP)
        NB = cfg.xdepth

        def ldx(k):
            for j in range(3):
                A(f"buffer_load_dwordx{XN} {v(XB[k % NB] + XN * j, XN)}, {v(XP + j)}, {s(SWS, 4)}, "
                  f"{s(S_XC + k % cfg.nrep)} offen sc1")
        heat(A, HT, cfg.xdelay)
        stamp(A, cfg, 6)
        ldx(0)
        if NB > 1:
            heat(A, HT, cfg.xgap)
            ldx(1)
        own_sum()
        if cfg.xbf:
            for h2 in range(2):
                A(f"v_cvt_pk_bf16_f32 {v(RD + h2)}, {v(SUM + 2 * h2)}, {v(SUM + 2 * h2 + 1)}")
            for h2 in range(2):
                A(f"v_lshlrev_b32 {v(SUM + 2 * h2)}, 16, {v(RD + h2)}")
                A(f"v_and_b32 {v(SUM + 2 * h2 + 1)}, 0xffff0000, {v(RD + h2)}")
        x2, xsum = A.new("x2"), A.new("xs")

        def final(x):
            check(A, x, 3 * XN, CHK)
            if cfg.xbf:
                for j in range(3):
                    for i in range(4):
                        A(f"v_dot2_f32_bf16 {v(RD + i)}, {v(x + 2 * j + (i >> 1))}, {s(S_LO1 + (i & 1))}, "
                          f"{v((RD if j else SUM) + i)}")
                A("s_nop 1")
            else:
                for h2 in range(2):
                    A(f"v_pk_add_f32 {v(RD + 4 + 2 * h2, 2)}, {v(SUM + 2 * h2, 2)}, {v(x + 2 * h2, 2)}")
                    A(f"v_pk_add_f32 {v(RD + 2 * h2, 2)}, {v(x + 4 + 2 * h2, 2)}, {v(x + 8 + 2 * h2, 2)}")
                for h2 in range(2):
                    A(f"v_pk_add_f32 {v(RD + 2 * h2, 2)}, {v(RD + 4 + 2 * h2, 2)}, {v(RD + 2 * h2, 2)}")
            for h2 in range(2):
                A(f"v_cvt_pk_bf16_f32 {v(RD + h2)}, {v(RD + 2 * h2)}, {v(RD + 2 * h2 + 1)}")
            for h2 in range(2):
                A(f"v_min_u32 {v(RD + h2)}, -2, {v(RD + h2)}")
        if NB > 2:
            heat(A, HT, cfg.xgap2)
            ldx(2)
        heat(A, HT, cfg.xfill)
        A(f"s_waitcnt vmcnt({3 * (NB - 1)})")
        stamp(A, cfg, 7)
        final(XL)
        A(f"s_cbranch_vccnz {x2}")
        A.label(xsum)
        A(f"buffer_store_dwordx2 {v(RD, 2)}, {v(PUBM)}, {s(SWS, 4)}, {s(S_NXT)} offen{loc}")
        stamp(A, cfg, 5)
        A(f"s_add_u32 {s(S_STEP)}, {s(S_STEP)}, 1")
        A.c("the loader waves time their first read from their own store")
        ring_slots(A)
        heat(A, HT, cfg.mdelay)
        A(f"s_branch {top3}")
        A.label(x2)
        count(A, cfg, 0)
        for k in range(6):
            ldx(k + NB)
            A(f"s_waitcnt vmcnt({3 * (NB - 1)})")
            final(XB[(k + 1) % NB])
            A(f"s_cbranch_vccz {xsum}")
            count(A, cfg, 1)
        spend(A, end)
        A(f"s_branch {x2}")
        slow1()
        slow2()

    A.c("all members of the group share one L2: hand-offs inside the group use plain stores")
    body("")
    A.label(slow_lbl)
    A.c("some member runs on another die: every hand-off is written through")
    body(" sc1")


def q_role(A, cfg, end):
    WIN = 0
    VG, VK, VVA, VVB, VO, IDX, LW, LR, QW, QR = 10, 11, 12, 13, 14, 15, 16, 18, 19, 20
    PFG, RDK, RDQ, RDVA, RDVB, OTA, OTB = 21, 22, 23, 24, 25, 26, 27
    FMR, FOW, FBUF, TAGV, XCL, POW, PQA, PQV, PQB = 192, 193, 194, 197, 198, 199, 208, 209, 210
    SENT, ONES, BIAS, CHK, T1, T2, T3 = 28, 32, 36, 44, 45, 46, 47
    AP, ACQ = 48, 64
    SX, SMM, RD, PX, LA, TM = 64, 72, 76, 76, 84, 88
    QOP, OA, KC, VM, PK = 96, 96, 112, 120, 124
    ST = 128
    SLOT0, SLOTX = 32768, 0x18000
    WQ = 256
    RQ, RB, WS = 0, 20480, 5120
    QPL = lambda n, b: 4 * (n * 160 + b * 96)
    HT = 200
    TID, LANE = 48, 49
    S_HEAD, S_PARW, S_EH, S_LDS, S_PQ, S_NEED = 54, 55, 56, 57, 58, 27
    A.c("Q role: q projection and attention of one head")
    if (cfg.gate or cfg.gate2 or cfg.gate3) and not cfg.gate_entry:
        A("s_memrealtime s[90:91]")
    A(f"v_mov_b32 {v(TID)}, v0")
    A(f"v_mov_b32 v50, v1")
    LANE = 50
    A(f"s_lshl_b32 {s(S_HEAD)}, {s(S_GRP)}, 3")
    A(f"s_add_u32 {s(S_HEAD)}, {s(S_HEAD)}, {s(S_TK)}")
    A(f"s_and_b32 {s(S_PARW)}, {s(S_WAVE)}, 1")
    A(f"s_lshr_b32 {s(S_EH)}, {s(S_WAVE)}, 1")
    A(f"s_lshl_b32 {s(S_RBASE)}, {s(S_GRP)}, 18")
    A(f"s_add_u32 {s(S_RBASE)}, {s(S_RBASE)}, {L.LRING}")
    A(f"s_lshl_b32 {s(S_T0)}, {s(S_WAVE)}, 12")
    A(f"v_lshl_add_u32 {v(VG)}, {v(LANE)}, 4, {s(S_T0)}")
    A(f"s_lshl_b32 {s(S_T0)}, {s(S_TK)}, 11")
    A(f"s_add_u32 {s(S_T1)}, {s(S_T0)}, 16384")
    A(f"v_lshl_add_u32 {v(VK)}, {v(LANE)}, 4, {s(S_T1)}")
    A(f"s_lshl_b32 {s(S_T1)}, {s(S_EH)}, 10")
    A(f"s_add_u32 {s(S_T0)}, {s(S_T0)}, {s(S_T1)}")
    A(f"s_lshl_b32 {s(S_T1)}, {s(S_PARW)}, 3")
    A(f"s_add_u32 {s(S_T1)}, {s(S_T1)}, {s(S_T0)}")
    A(f"s_add_u32 {s(S_T1)}, {s(S_T1)}, 32768")
    A(f"v_lshl_add_u32 {v(VVA)}, {v(LANE)}, 4, {s(S_T1)}")
    A(f"v_xor_b32 {v(VVB)}, 8, {v(VVA)}")
    A(f"s_lshl_b32 {s(S_T1)}, {s(S_PARW)}, 9")
    A(f"s_add_u32 {s(S_T1)}, {s(S_T1)}, {s(S_T0)}")
    A(f"s_add_u32 {s(S_T1)}, {s(S_T1)}, 49152")
    A(f"v_bfe_u32 v51, {v(LANE)}, 5, 1")
    A(f"v_lshl_add_u32 {v(VO)}, v51, 8, {s(S_T1)}")
    A(f"v_and_b32 v51, 7, {v(LANE)}")
    A(f"v_lshl_add_u32 {v(VO)}, v51, 5, {v(VO)}")
    A(f"v_and_b32 v51, 16, {v(LANE)}")
    A(f"v_add_u32 {v(VO)}, {v(VO)}, v51")
    A(f"v_bfe_u32 v51, {v(LANE)}, 3, 1")
    A(f"v_lshl_add_u32 {v(VO)}, v51, 30, {v(VO)}")
    A(f"v_and_b32 v51, 1, {v(LANE)}")
    A(f"v_mul_u32_u24 v51, 0xaaaa, v51")
    A(f"v_add_u32 {v(IDX)}, 0x4444, v51")
    for i in range(8):
        A(f"v_mov_b32 {v(HT + i)}, 0")
    A(f"v_bfe_u32 v51, {v(LANE)}, 1, 2")
    A(f"v_lshlrev_b32 v51, 4, v51")
    A(f"v_bfe_u32 v52, {v(LANE)}, 3, 2")
    A(f"v_lshl_add_u32 v51, v52, 2, v51")
    A(f"v_and_b32 v53, 1, {v(LANE)}")
    A(f"v_lshlrev_b32 v51, 2, v51")
    A(f"v_mul_u32_u24 v53, {QPL(0, 1)}, v53")
    A(f"v_lshrrev_b32 v54, 5, {v(LANE)}")
    A(f"v_mul_u32_u24 v52, {QPL(1, 0)}, v54")
    A(f"v_add3_u32 v51, v51, v52, v53")
    A(f"s_mul_i32 {s(S_T0)}, {s(S_WAVE)}, {QPL(2, 0)}")
    A(f"v_add_u32 {v(LR)}, {s(S_T0)}, v51")
    A(f"v_and_b32 v51, 31, {v(LANE)}")
    A(f"v_lshlrev_b32 v51, 4, v51")
    A(f"v_lshl_add_u32 v51, v54, 3, v51")
    A(f"s_lshl_b32 {s(S_T0)}, {s(S_WAVE)}, 9")
    A(f"v_add_u32 {v(QW)}, {s(S_T0)}, v51")
    A(f"v_lshrrev_b32 v51, 4, {v(LANE)}")
    A(f"v_and_b32 v52, 7, {v(LANE)}")
    A(f"v_lshlrev_b32 v52, 4, v52")
    A(f"v_lshl_add_u32 {v(QR)}, v51, 7, v52")
    A(f"v_lshlrev_b32 v51, 4, {v(LANE)}")
    A(f"s_mul_i32 {s(S_T0)}, {s(S_WAVE)}, 6144")
    A(f"v_add_u32 {v(PFG)}, {s(S_T0)}, v51")
    A(f"s_add_u32 {s(S_LDS)}, {s(S_T0)}, {SLOT0}")
    A(f"v_add_u32 {v(RDK)}, {SLOT0 + 8192}, v51")
    A(f"s_lshl_b32 {s(S_T0)}, {s(S_PARW)}, 12")
    A(f"s_add_u32 {s(S_T0)}, {s(S_T0)}, {SLOT0}")
    A(f"v_add_u32 {v(RDQ)}, {s(S_T0)}, v51")
    A(f"s_lshl_b32 {s(S_T0)}, {s(S_WAVE)}, 11")
    A(f"s_add_u32 {s(S_T0)}, {s(S_T0)}, {SLOT0 + 16384}")
    A(f"v_add_u32 {v(RDVA)}, {s(S_T0)}, v51")
    A(f"v_xor_b32 {v(RDVB)}, 2048, {v(RDVA)}")
    A(f"s_lshl_b32 {s(S_FB)}, {s(S_GRP)}, 12")
    A(f"s_add_u32 {s(S_FB)}, {s(S_FB)}, {L.FLAGS}")
    A(f"s_lshl_b32 {s(S_T0)}, {s(S_WAVE)}, 8")
    A(f"v_lshl_add_u32 {v(FMR)}, {v(LANE)}, 2, {s(S_T0)}")
    A(f"s_lshr_b32 {s(S_T0)}, {s(S_TK)}, 1")
    A(f"s_lshl_b32 {s(S_T0)}, {s(S_T0)}, 8")
    A(f"s_and_b32 {s(S_T1)}, {s(S_TK)}, 1")
    A(f"s_lshl_b32 {s(S_T1)}, {s(S_T1)}, 2")
    A(f"s_add_u32 {s(S_T0)}, {s(S_T0)}, {s(S_T1)}")
    A(f"s_add_u32 {s(S_T0)}, {s(S_T0)}, 2048")
    A(f"v_min_u32 v52, 1, {v(TID)}")
    A(f"v_lshl_add_u32 {v(FOW)}, v52, 30, {s(S_T0)}")
    A(f"v_mov_b32 {v(TAGV)}, 0")
    A(f"buffer_store_dword {v(TAGV)}, {v(FOW)}, {s(SWS, 4)}, {s(S_FB)} offen sc1")
    XN = 2 if cfg.xbf else 4
    A(f"s_lshr_b32 {s(S_T0)}, {s(S_TK)}, {2 if cfg.xbf else 1}")
    A(f"s_lshl_b32 {s(S_T0)}, {s(S_T0)}, 14")
    A(f"s_and_b32 {s(S_T1)}, {s(S_TK)}, {3 if cfg.xbf else 1}")
    A(f"s_lshl_b32 {s(S_T1)}, {s(S_T1)}, {11 if cfg.xbf else 12}")
    A(f"s_add_u32 {s(S_T0)}, {s(S_T0)}, {s(S_T1)}")
    A(f"s_lshl_b32 {s(S_T1)}, {s(S_GRP)}, 16")
    A(f"s_add_u32 {s(S_T0)}, {s(S_T0)}, {s(S_T1)}")
    A(f"v_lshl_add_u32 {v(XCL)}, {v(TID)}, {3 if cfg.xbf else 4}, {s(S_T0)}")
    A(f"s_lshl_b32 {s(S_T0)}, {s(S_HEAD)}, 2")
    A(f"s_add_u32 {s(S_T0)}, {s(S_T0)}, {s(S_WAVE)}")
    A(f"s_lshl_b32 {s(S_T0)}, {s(S_T0)}, 11")
    A(f"s_lshl_b32 {s(S_T1)}, {s(S_PARW)}, 10")
    A(f"s_add_u32 {s(S_T0)}, {s(S_T0)}, {s(S_T1)}")
    A(f"v_add_u32 {v(OTA)}, {s(S_T0)}, v51")
    A(f"v_xor_b32 {v(OTB)}, 2048, {v(OTA)}")
    progress_addr(A, POW, LANE, L.PO, S_HEAD, 52)
    A(f"buffer_store_dword {v(TAGV)}, {v(POW)}, {s(SWS, 4)}, 0 offen sc1")
    lines_addr(A, 53, LANE, 16)
    A(f"s_lshr_b32 {s(S_T0)}, {s(S_HEAD)}, 2")
    A(f"s_lshl_b32 {s(S_T0)}, {s(S_T0)}, 10")
    A(f"s_add_u32 {s(S_T0)}, {s(S_T0)}, {L.PQ}")
    A(f"v_add_u32 {v(PQA)}, {s(S_T0)}, v53")
    A(f"s_lshl_b32 {s(S_T0)}, {s(S_GRP)}, 10")
    A(f"s_add_u32 {s(S_T0)}, {s(S_T0)}, {L.PB - 1024}")
    A(f"v_add_u32 v53, {s(S_T0)}, v53")
    A(f"v_cmp_lt_u32 vcc, 7, {v(LANE)}")
    A("s_nop 1")
    A(f"v_cndmask_b32 {v(PQA)}, {v(PQA)}, v53, vcc")
    A(f"v_cndmask_b32 {v(PQB)}, 0, 8, vcc")
    for i in range(4):
        A(f"v_mov_b32 {v(SENT + i)}, -1")
        A(f"v_mov_b32 {v(ONES + i)}, 0x3f803f80")
    A(f"v_and_b32 v51, 15, {v(LANE)}")
    A(f"s_lshl_b32 {s(S_T0)}, {s(S_PARW)}, 4")
    A(f"v_add_u32 v51, {s(S_T0)}, v51")
    A(f"v_lshrrev_b32 v52, 4, {v(LANE)}")
    A(f"v_lshlrev_b32 v52, 2, v52")
    A(f"v_mov_b32 v54, 0xf149f2ca")
    for T in range(2):
        for q in range(4):
            A(f"v_add_u32 v53, {16 * T + q}, v52")
            A(f"v_cmp_gt_u32 vcc, v53, v51")
            A("s_nop 1")
            A(f"v_cndmask_b32 {v(BIAS + 4 * T + q)}, 0, v54, vcc")
    for i in range(10):
        A(f"v_mov_b32 {v(WIN + i)}, 0")
    A(f"s_mov_b32 {s(S_C)}, 0x3e0293ee")
    A(f"s_mov_b32 {s(S_NC)}, 0xbe0293ee")
    for slot in range(4):
        A(f"s_add_u32 {s(S_T0)}, {s(S_RBASE)}, {slot << 16}")
        A(f"buffer_store_dwordx4 {v(SENT, 4)}, {v(VO)}, {s(SWS, 4)}, {s(S_T0)} offen sc1")
    A(f"s_lshl_b32 {s(S_T2)}, {s(S_IRR)}, 16")
    A(f"s_or_b32 {s(S_T2)}, {s(S_T2)}, 1")
    arrive(A, S_T2)
    weight_addr_regs(A, LANE, 51, 52, 53, 54, 55, 56)
    A.srd(SW, P_WQ, SIZE["Wq"])
    chunks = []
    for j in range(4):
        for hf in range(2):
            def setup(j=j, hf=hf):
                A(f"s_lshl_b32 {s(S_T1)}, {s(S_WAVE)}, 21")
                A(f"s_lshl_b32 {s(S_T0)}, {s(S_HEAD)}, 8")
                A(f"s_add_u32 {s(S_T1)}, {s(S_T1)}, {s(S_T0)}")
                A(f"s_add_u32 {s(S_T1)}, {s(S_T1)}, {j * 64 * 8192 + hf * 128}")
            chunks.append((setup, 8192, "P", (lambda n, j=j, hf=hf: WQ + (j * 8 + hf * 4 + n) * 8)))
    load_weights(A, chunks[::-1] if cfg.meet else chunks, {8192: 51}, {"P": 53}, WFLAG[cfg.wlo], None, cfg.ramp_lo)
    cfg.mark(A, 1)
    noprobe = A.new("np")
    A(f"s_cmp_lg_u32 {s(S_HEAD)}, 0")
    A(f"s_cbranch_scc1 {noprobe}")
    A("s_barrier")
    A(f"s_mov_b32 {s(S_T2)}, 0x2000000")
    probe(A, LANE, S_T2, cfg.marks)
    arrive(A, S_T2)
    A.label(noprobe)
    await_start(A, end)
    A.c("bring one eighth of the group's rings into L2")
    A(f"s_lshl_b32 {s(S_T0)}, {s(S_TK)}, 15")
    A(f"s_add_u32 {s(S_T0)}, {s(S_T0)}, {s(S_RBASE)}")
    A(f"s_add_u32 {s(S_T1)}, {s(S_T0)}, 16384")
    for i in range(8):
        A(f"buffer_load_dwordx4 {v(ACQ + 4 * i, 4)}, {v(VG)}, {s(SWS, 4)}, {s(S_T0 + (i >> 2))} offen offset:{1024 * (i & 3)} sc1")
    await_start(A, end, probed=True)
    cfg.mark(A, 2)
    gate(A, cfg.gate)
    A(f"s_mul_i32 {s(S_PF)}, {s(S_HEAD)}, 24576")
    A(f"s_add_u32 {s(S_PF)}, {s(S_PF)}, {L.QKV}")
    A(f"s_mov_b32 {s(S_STEP)}, 0")

    def prefetch():
        A(f"s_mov_b32 m0, {s(S_LDS)}")
        A(f"s_add_u32 {s(S_T0)}, {s(S_PF)}, 3072")
        for j in range(3):
            A(f"buffer_load_dwordx4 {v(PFG)}, {s(SWS, 4)}, {s(S_PF)} offen offset:{1024 * j} sc1 lds")
        A(f"s_add_u32 m0, {s(S_LDS)}, 3072")
        A(f"s_xor_b32 {s(S_LDS)}, {s(S_LDS)}, {SLOTX}")
        for j in range(3):
            A(f"buffer_load_dwordx4 {v(PFG)}, {s(SWS, 4)}, {s(S_T0)} offen offset:{1024 * j} sc1 lds")
        A(f"s_add_u32 {s(S_PF)}, {s(S_PF)}, {32 * 24576}")

    def operands():
        for i in range(8):
            A(f"ds_read_b128 {v(ST + 4 * i, 4)}, {v(RDK)} offset:{1024 * i}")
        for p, reg in ((0, RDVA), (1, RDVB)):
            for t in range(2):
                A(f"ds_read_b128 {v(ST + 32 + 8 * p + 4 * t, 4)}, {v(reg)} offset:{1024 * t}")
        for ks in range(4):
            A(f"ds_read_b128 {v(ST + 48 + 4 * ks, 4)}, {v(RDQ)} offset:{1024 * ks}")
        for reg in (RDK, RDVA, RDVB, RDQ):
            A(f"v_xor_b32 {v(reg)}, {SLOTX}, {v(reg)}")

    ldpq = lambda: A(f"buffer_load_dword {v(PQV)}, {v(PQA)}, {s(SWS, 4)}, 0 offen sc1")

    def tstpq():
        A(f"v_add_u32 {v(CHK)}, {v(PQV)}, {v(PQB)}")
        A(f"v_cmp_gt_u32 vcc, {s(S_NEED)}, {v(CHK)}")
    A(f"s_mov_b32 {s(S_NEED)}, 1")
    if not cfg.solo:
        block_on(A, ldpq, tstpq, end)
    prefetch()
    slow_lbl = A.new("q_sc1")
    A(f"s_cmp_lg_u32 {s(S_IRR)}, 0")
    A(f"s_cbranch_scc1 {slow_lbl}")

    def score_x(qreg, bias, before=None):
        for ks in range(4):
            if before:
                before(ks)
            for T in range(2):
                c = v(SX + 4 * T, 4) if ks else (v(BIAS + 4 * T, 4) if bias else "0")
                A(f"{MF} {v(SX + 4 * T, 4)}, {v(ST + 16 * T + 4 * ks, 4)}, {v(qreg + 4 * ks, 4)}, {c}")

    def max_x():
        A(f"v_max3_f32 {v(T1)}, {v(SX)}, {v(SX + 1)}, {v(SX + 2)}")
        A(f"v_max3_f32 {v(T1)}, {v(T1)}, {v(SX + 3)}, {v(SX + 4)}")
        A(f"v_max3_f32 {v(T1)}, {v(T1)}, {v(SX + 5)}, {v(SX + 6)}")
        A(f"v_max_f32 {v(T1)}, {v(T1)}, {v(SX + 7)}")

    def softmax(hook=lambda pos: None):
        A(f"v_add_f32 {v(SMM)}, {v(SMM)}, {v(SMM + 1)}")
        A(f"v_add_f32 {v(SMM + 1)}, {v(SMM + 2)}, {v(SMM + 3)}")
        A(f"v_max3_f32 {v(T2)}, {v(T1)}, {v(SMM)}, {v(SMM + 1)}")
        A(f"v_max3_f32 {v(T3)}, {v(T1)}, {v(SMM)}, {v(SMM + 1)}")
        hook(0)
        A("s_nop 1")
        A(f"v_permlane32_swap_b32 {v(T2)}, {v(T3)}")
        A("s_nop 0")
        A(f"v_max_f32 {v(T1)}, {v(T2)}, {v(T3)}")
        A(f"v_max_f32 {v(T2)}, {v(T2)}, {v(T3)}")
        A("s_nop 1")
        A(f"v_permlane16_swap_b32 {v(T1)}, {v(T2)}")
        A("s_nop 0")
        A(f"v_max_f32 {v(T1)}, {v(T1)}, {v(T2)}")
        A(f"v_mul_f32 {v(T2)}, {s(S_NC)}, {v(T1)}")
        hook(1)
        for i in range(5):
            A(f"v_pk_fma_f32 {v(SX + 2 * i, 2)}, {v(SX + 2 * i, 2)}, {s(S_C, 2)}, {v(T2, 2)} op_sel_hi:[1,0,0]")
        for i in range(10):
            A(f"v_exp_f32 {v(SX + i)}, {v(SX + i)}")
            if i == 4:
                hook(2)
        hook(3)
        for i in range(4):
            A(f"v_cvt_pk_bf16_f32 {v(PX + i)}, {v(SX + 2 * i)}, {v(SX + 2 * i + 1)}")
        A(f"v_cvt_pk_bf16_f32 {v(WIN + 2)}, {v(SMM)}, {v(SMM + 1)}")
        A(f"v_cvt_pk_bf16_f32 {v(WIN + 7)}, {v(SMM)}, {v(SMM + 1)}")

    WOFF = (2, 6, 0, 4)

    def scale(n):
        for i in range(n // 2):
            A(f"v_pk_mul_f32 {v(OA + 2 * i, 2)}, {v(OA + 2 * i, 2)}, {v(T2, 2)} op_sel_hi:[1,0]")

    def pv(nt, pre=None, post=None, hook=lambda pos: None):
        st = ST
        A(f"{MF} {v(LA, 4)}, {v(ONES, 4)}, {v(PX, 4)}, 0")
        for t in range(nt):
            if pre and t == cfg.vchk:
                pre()
            A(f"{MF} {v(OA + 4 * t, 4)}, {v(st + 32 + 4 * t, 4)}, {v(PX, 4)}, 0")
        if pre and cfg.vchk == 2:
            pre()
        A(f"{MF} {v(LA, 4)}, {v(ONES, 4)}, {v(WIN + WOFF[0], 4)}, {v(LA, 4)}")
        if post:
            post()
        hook(5)
        for t in range(nt):
            A(f"{MF} {v(OA + 4 * t, 4)}, {v(VM, 4)}, {v(WIN + WOFF[t], 4)}, {v(OA + 4 * t, 4)}")
        hook(6)
        heat(A, HT, 1)
        A.nop(7 - nt)
        A(f"v_rcp_f32 {v(T2)}, {v(LA)}")
        A("s_nop 0")

    def body(loc):
        top = A.new("q")
        ldm = lambda i: A(f"buffer_load_dwordx4 {v(AP + 4 * i, 4)}, {v(VG)}, {s(SWS, 4)}, {s(S_CUR)} offen offset:{1024 * i} sc1")
        ldk = lambda i: A(f"buffer_load_dwordx4 {v(AP + 4 * i, 4)}, {v(VK)}, {s(SWS, 4)}, {s(S_CUR)} offen offset:{1024 * (i & 1)} sc1")

        def ldv():
            A(f"buffer_load_dwordx2 {v(VM, 2)}, {v(VVA)}, {s(SWS, 4)}, {s(S_CUR)} offen sc1")
            A(f"buffer_load_dwordx2 {v(VM + 2, 2)}, {v(VVB)}, {s(SWS, 4)}, {s(S_CUR)} offen sc1")
        A.label(top)
        far = A.new("qf")
        A.c("the first segments are fetched one step ahead, later ones two steps ahead")
        A(f"s_cmp_gt_u32 {s(S_STEP)}, {cfg.near + 1}")
        A(f"s_cbranch_scc1 {far}")
        A("s_waitcnt vmcnt(0)")
        A("s_barrier")
        A.label(far)
        operands()
        A(f"s_mul_i32 m0, {s(S_WAVE)}, {WS}")
        ring_slots(A)
        for q in range(16):
            A(f"v_pk_mul_f32 {v(ACQ + 2 * q, 2)}, 0, 0")
        A.c("the previous segment's token rows are acknowledged: publish them")
        A("s_waitcnt vmcnt(0)")
        A(f"buffer_store_dword {v(TAGV)}, {v(POW)}, {s(SWS, 4)}, 0 offen{loc}")
        A(f"v_add_u32 {v(TAGV)}, 1, {v(TAGV)}")
        if cfg.use_fm:
            flag_wait(A, cfg, FMR, FBUF, 4, end)
        for i in range(4):
            ldm(i)
            heat(A, HT, cfg.lspace if i < 3 else cfg.ltail)

        fq = lambda j, lo, hi: [A(f"{SM} {v(ACQ + 4 * n, 4)}, {v(AP + 4 * j, 4)}, {r(WQ + (j * 8 + n) * 8, 8)}, {v(IDX)}")
                                for n in range(lo, hi)]
        chk4 = lambda i: check(A, AP + 4 * i, 4, CHK)
        ad = lambda i: A(f"v_add_f32 {v(ACQ + 2 * i)}, {v(ACQ + 2 * i)}, {v(ACQ + 2 * i + 1)}")
        wr = lambda i: A(f"ds_write_addtid_b32 {v(ACQ + 2 * i)} offset:{RQ + QPL(i >> 1, i & 1)}")

        def plain_tail():
            A("s_nop 0")
            for i in range(4):
                ad(i)
            for i in range(16):
                if i < 12:
                    ad(i + 4)
                wr(i)

        def last_piece():
            na = nw = 0
            for n in range(8):
                fq(3, n, n + 1)
                if n < 3:
                    A("s_nop 1")
                    continue
                ad(na), ad(na + 1)
                na += 2
                if n > 3:
                    for _ in range(cfg.qpipe - 1):
                        wr(nw)
                        nw += 1
            stamp(A, cfg, 0)
            while nw < 16:
                wr(nw)
                nw += 1
                if na < 16:
                    ad(na)
                    na += 1
        joined = A.new("qj")
        done, slow1 = fsm_poll(A, 4, ldm, chk4, lambda j, rest: fq(j, 0, 8), end,
                               fast=(lambda j: fq(j, 0, cfg.qsplit) if j < 3 or not cfg.qpipe else None,
                                     lambda j: fq(j, cfg.qsplit, 8) if j < 3 or not cfg.qpipe else last_piece()),
                               onfail=lambda first: (count(A, cfg, 2) if first else None, heat(A, HT, 1)))
        qdone = done
        if not cfg.qpipe:
            A.label(done)
            stamp(A, cfg, 0)
            plain_tail()
        A.label(joined)
        heat(A, HT, cfg.hw)
        A("s_waitcnt lgkmcnt(0)")
        A("s_barrier")
        for w in range(4):
            A(f"ds_read_b128 {v(RD + 4 * w, 4)}, {v(LR)} offset:{RQ + w * WS}")
        for i in range(4):
            A(f"v_mov_b32 {v(SMM + i)}, 0")

        def ldkc():
            for p in range(2):
                A(f"buffer_load_dwordx4 {v(KC + 4 * p, 4)}, {v(VK)}, {s(SWS, 4)}, {s(S_CUR)} offen offset:{1024 * p} sc1")
        if cfg.kpos == 0:
            ldkc()
        heat(A, HT, cfg.hr - 1)
        A("s_waitcnt lgkmcnt(0)")
        for h2 in range(2):
            A(f"v_pk_add_f32 {v(RD + 2 * h2, 2)}, {v(RD + 2 * h2, 2)}, {v(RD + 4 + 2 * h2, 2)}")
            A(f"v_pk_add_f32 {v(RD + 8 + 2 * h2, 2)}, {v(RD + 8 + 2 * h2, 2)}, {v(RD + 12 + 2 * h2, 2)}")
        for h2 in range(2):
            A(f"v_pk_add_f32 {v(RD + 2 * h2, 2)}, {v(RD + 2 * h2, 2)}, {v(RD + 8 + 2 * h2, 2)}")
        A(f"v_cvt_pk_bf16_f32 {v(RD)}, {v(RD)}, {v(RD + 1)}")
        A(f"v_cvt_pk_bf16_f32 {v(RD + 1)}, {v(RD + 2)}, {v(RD + 3)}")
        A(f"ds_write_b64 {v(QW)}, {v(RD, 2)} offset:{RB}")
        if cfg.kpos == 1:
            ldkc()
        heat(A, HT, cfg.hw)
        A("s_waitcnt lgkmcnt(0)")
        A("s_barrier")
        for ks in range(4):
            A(f"ds_read_b128 {v(QOP + 4 * ks, 4)}, {v(QR)} offset:{RB + ks * 512}")
        if cfg.kpos == 2:
            ldkc()
        heat(A, HT, 2)

        def qwait(ks):
            A(f"s_waitcnt lgkmcnt({3 - ks})")
            if ks in (1, 2):
                ldk(ks - 1)
            if ks == 3:
                A("s_waitcnt vmcnt(2)")
                check(A, KC, 8, CHK)
        score_x(QOP, False, qwait)
        stamp(A, cfg, 1)
        kre, kok = A.new("kr"), A.new("ko")
        A(f"s_cbranch_vccnz {kre}")
        for p in range(2):
            A(f"{SM} {v(SMM, 4)}, {v(KC + 4 * p, 4)}, {v(QOP + 8 * p, 8)}, {v(IDX)}")
        A.label(kok)
        stamp(A, cfg, 2)
        if cfg.vpos < 0:
            ldv()
        A.nop(4 if cfg.vpos >= 0 else 2)
        max_x()

        def hook(pos):
            if pos == cfg.vpos:
                ldv()
            if cfg.use_fo and pos == cfg.fo_pos:
                A(f"buffer_store_dword {v(TAGV)}, {v(FOW)}, {s(SWS, 4)}, {s(S_FB)} offen{loc}")
        softmax(hook)
        vre, vok = A.new("vr"), A.new("vo")

        def wait_v():
            A(f"s_waitcnt vmcnt({1 if cfg.use_fo and 4 >= cfg.fo_pos >= cfg.vpos else 0})")
            check(A, VM, 4, CHK)

        def test_v():
            A(f"s_cbranch_vccnz {vre}")
            A.label(vok)
        hook(4)
        pv(2, wait_v, test_v, hook)
        scale(8)
        for i in range(4):
            A(f"v_cvt_pk_bf16_f32 {v(PK + i)}, {v(OA + 2 * i)}, {v(OA + 2 * i + 1)}")
        for i in range(4):
            A(f"v_min_u32 {v(PK + i)}, -2, {v(PK + i)}")
        A(f"buffer_store_dwordx4 {v(PK, 4)}, {v(VO)}, {s(SWS, 4)}, {s(S_CUR)} offen{loc}")
        stamp(A, cfg, 3)
        A.c("off the recurrence path: operands of segment s+2, token rows of this segment")
        A("s_barrier")
        A(f"buffer_store_dwordx4 {v(SENT, 4)}, {v(VO)}, {s(SWS, 4)}, {s(S_RST)} offen{loc}")
        nopf = A.new("np")
        A(f"s_cmp_ge_u32 {s(S_STEP)}, {cfg.nsteps - 2}")
        A(f"s_cbranch_scc1 {nopf}")
        pqw, pqok, again = A.new("pw"), A.new("pk"), A.new("pa")
        A.label(again)
        A(f"s_add_u32 {s(S_NEED)}, {s(S_NEED)}, 1")
        if not cfg.solo:
            tstpq()
            A(f"s_cbranch_vccnz {pqw}")
            A.label(pqok)
        prefetch()
        A(f"s_cmp_eq_u32 {s(S_NEED)}, {cfg.near + 2}")
        A(f"s_cbranch_scc1 {again}")
        if not cfg.solo:
            ldpq()
        if cfg.rpos == 3:
            A(f"s_add_u32 {s(S_T0)}, {s(S_STEP)}, 2")
            A(f"s_and_b32 {s(S_T0)}, {s(S_T0)}, 3")
            x_offsets(A, cfg, S_XR, S_T0)
            for rr in range(cfg.nrep):
                A(f"buffer_store_dwordx{XN} {v(SENT, XN)}, {v(XCL)}, {s(SWS, 4)}, {s(S_XR + rr)} offen sc1")
        A.label(nopf)
        for i in range(4):
            A(f"v_mov_b32 {v(SMM + i)}, 0")
        score_x(ST + 48, True)
        for p in range(2):
            A(f"{SM} {v(SMM, 4)}, {v(KC + 4 * p, 4)}, {v(ST + 48 + 8 * p, 8)}, {v(IDX)}")
        A(f"s_and_b32 {s(S_T0)}, {s(S_STEP)}, {63 if cfg.solo else 7}")
        A(f"s_lshl_b32 {s(S_T0)}, {s(S_T0)}, 18")
        A(f"s_add_u32 {s(S_OT)}, {s(S_T0)}, {L.OTOK}")
        A.nop(3)
        max_x()
        softmax()
        pv(4)
        scale(16)
        for i in range(8):
            A(f"v_cvt_pk_bf16_f32 {v(OA + i)}, {v(OA + 2 * i)}, {v(OA + 2 * i + 1)}")
        A(f"buffer_store_dwordx4 {v(OA, 4)}, {v(OTA)}, {s(SWS, 4)}, {s(S_OT)} offen{loc}")
        A(f"buffer_store_dwordx4 {v(OA + 4, 4)}, {v(OTB)}, {s(SWS, 4)}, {s(S_OT)} offen{loc}")
        stamp(A, cfg, 4, 2)
        if cfg.trace:
            A(f"s_memtime {s(S_STAMP + 10, 2)}")
        flush_stamps(A, cfg, 6, T2, T3, 2)
        A(f"s_add_u32 {s(S_STEP)}, {s(S_STEP)}, 1")
        A(f"s_cmp_lt_u32 {s(S_STEP)}, {cfg.nsteps}")
        A(f"s_cbranch_scc1 {top}")
        gate(A, cfg.gate2)
        A("s_waitcnt vmcnt(0)")
        A(f"buffer_store_dword {v(TAGV)}, {v(POW)}, {s(SWS, 4)}, 0 offen{loc}")
        gate(A, cfg.gate3)
        A(f"s_branch {end}")
        if not cfg.solo:
            A.label(pqw)
            block_on(A, ldpq, tstpq, end)
            A(f"s_branch {pqok}")
        if cfg.qpipe:
            A.label(qdone)
            stamp(A, cfg, 0)
            plain_tail()
            A(f"s_branch {joined}")
        slow1()
        A.label(kre)
        count(A, cfg, 0)
        ldk(2)
        ldk(3)

        def usekm(j, rest):
            p = j & 1
            if rest and (j ^ 2) not in rest:
                return
            A(f"{SM} {v(SMM, 4)}, {v(AP + 4 * j, 4)}, {v(QOP + 8 * p, 8)}, {v(IDX)}")
            for i in range(4):
                A(f"v_mov_b32 {v(KC + 4 * p + i)}, {v(AP + 4 * j + i)}")
        done, slow2 = fsm_poll(A, 4, ldk, chk4, usekm, end, lambda got: {x & 1 for x in got} == {0, 1})
        A.label(done)
        A(f"s_branch {kok}")
        slow2()
        A.label(vre)
        count(A, cfg, 1)
        ldv()
        spend(A, end)
        A("s_waitcnt vmcnt(0)")
        check(A, VM, 4, CHK)
        A(f"s_cbranch_vccnz {vre}")
        A(f"s_branch {vok}")

    body("")
    A.label(slow_lbl)
    body(" sc1")


def chain_kernel(A, cfg, name="chain_kernel"):
    end, kvo, other, noprobe = A.new("end"), A.new("kvo_role"), A.new("other"), A.new("np")
    A.kernel_begin(name)
    role_prologue(A, end)
    A(f"s_cmp_ge_u32 {s(S_GRP)}, 4")
    A(f"s_cbranch_scc1 {other}")
    A(f"s_cmp_ge_u32 {s(S_TK)}, 24")
    A(f"s_cbranch_scc1 {other}")
    A(f"s_cmp_ge_u32 {s(S_TK)}, 8")
    A(f"s_cbranch_scc1 {kvo}")
    q_role(A, cfg, end)
    A.label(other)
    A(f"s_mov_b32 {s(S_T2)}, 1")
    arrive(A, S_T2)
    A.label(end)
    A("s_endpgm")
    A.label(kvo)
    kvo_role(A, cfg, end)
```

```python
from asmlib import *
import layout as L
from chain import (WFLAG, SWS, SW, SDBG, S_WAVE, S_GRP, S_TK, S_IRR, S_STEP, S_T0, S_T1, S_T2, S_T3, MF,
                   arrive, await_start, probe, progress_addr, words_addr, line_addr, lines_addr,
                   block_on, spend, check)
from small import xor_reduce, mod_addr, mod_pass, mod_finish

SW2, SW3 = 84, 88
S_CU, S_SRC, S_RDY, S_FA, S_NEED, S_OUT, S_M0, S_NXT = 44, 45, 46, 47, 48, 49, 50, 54
S_SRC5, S_RDY5, S_NEED5, S_OUT5, S_NXT5, S_K = 55, 56, 57, 58, 59, 26
S_P0, S_P1, S_P2 = 60, 61, 62
OOB = 0x70000000
LANE = 9
VD, VR, VFA, VF, VPA, VP, VO = 0, 1, 2, 3, 4, 5, 6
FR, ACC, TMP = 16, 48, 80
S_SIG = 63


def ptr(A, reg, key):
    A(f"s_load_dwordx2 {s(reg, 2)}, s[0:1], {KA[key]}")


def mark(A, cfg, i, reg=15):
    if cfg.marks != 1 and not (cfg.marks == 4 and i in (0, 3)):
        return
    skip = A.new("mk")
    if not isinstance(i, int):
        A(f"s_and_b32 s99, {i}, 63")
        A("s_lshr_b64 s[98:99], s[94:95], s99")
        A("s_and_b32 s98, s98, 1")
        A(f"s_cbranch_scc0 {skip}")
    elif i == 0:
        A("s_mov_b32 s94, 0x0202021f")
        A("s_mov_b32 s95, 0x82020202")
    A("s_memrealtime s[96:97]")
    A(f"s_lshl_b32 s98, {s(S_GRP)}, 5")
    A(f"s_add_u32 s98, s98, {s(S_TK)}")
    A("s_lshl_b32 s98, s98, 2")
    A(f"s_add_u32 s98, s98, {s(S_WAVE)}")
    A("s_lshl_b32 s98, s98, 9")
    if isinstance(i, int):
        A(f"s_add_u32 s98, s98, {L.TRACE + 2 * L.MB + 4 * i}")
    else:
        A(f"s_lshl_b32 s99, {i}, 2")
        A("s_add_u32 s98, s98, s99")
        A(f"s_add_u32 s98, s98, {L.TRACE + 2 * L.MB + 64}")
    A("s_waitcnt lgkmcnt(0)")
    A(f"v_mov_b32 {v(reg)}, s96")
    A("s_mov_b64 exec, 1")
    A(f"buffer_store_dword {v(reg)}, off, {s(SWS, 4)}, s98")
    A("s_mov_b64 exec, -1")
    A.label(skip)


def lap(A, cfg, i):
    if cfg.marks != 2:
        return
    A("s_memtime s[96:97]")
    A("s_waitcnt lgkmcnt(0)")
    A("s_sub_u32 s99, s96, s98")
    A(f"s_add_u32 s{70 + i}, s{70 + i}, s99")
    A("s_mov_b32 s98, s96")


def lap_init(A, cfg):
    if cfg.marks == 2:
        for i in range(8):
            A(f"s_mov_b32 s{70 + i}, 0")


def lap_dump(A, cfg):
    if cfg.marks != 2:
        return
    for i in range(8):
        A(f"v_writelane_b32 v15, s{70 + i}, {i}")
    A(f"s_lshl_b32 s98, {s(S_GRP)}, 5")
    A(f"s_add_u32 s98, s98, {s(S_TK)}")
    A("s_lshl_b32 s98, s98, 2")
    A(f"s_add_u32 s98, s98, {s(S_WAVE)}")
    A("s_lshl_b32 s98, s98, 5")
    A(f"s_add_u32 s98, s98, {L.TRACE + 3 * L.MB}")
    A(f"v_lshlrev_b32 v14, 2, {v(LANE)}")
    A("s_mov_b64 exec, 0xff")
    A(f"buffer_store_dword v15, v14, {s(SWS, 4)}, s98 offen")
    A("s_mov_b64 exec, -1")


def tile_addr(A, dst, order, inter, sbase, extra, t0, t1):
    A(f"v_bfe_u32 {v(t0)}, {v(LANE)}, 2, 2")
    A(f"v_lshrrev_b32 {v(t1)}, 4, {v(LANE)}")
    A(f"v_lshl_add_u32 {v(t0)}, {v(t1)}, {3 if order == 'N' else 2}, {v(t0)}")
    A(f"v_lshl_add_u32 {v(t0)}, {v(t0)}, 7, {s(sbase)}")
    A(f"v_and_b32 {v(t1)}, 3, {v(LANE)}")
    A(f"v_lshl_add_u32 {v(t0)}, {v(t1)}, {4 if inter else 3}, {v(t0)}")
    A(f"v_add_u32 {v(dst)}, {extra}, {v(t0)}")


def load_w(A, panels, stride, nst, tiles, order, vg, flag="", first=None, ramp=None):
    SZ = len(panels) * 16384
    n = 4 * len(panels)
    NS = min(nst, 163840 // SZ)
    ramp = NS if ramp is None else ramp
    qstep = 512 if order == "N" else 2048
    A(f"v_lshrrev_b32 {v(vg)}, 3, {v(LANE)}")
    A(f"s_mul_i32 {s(S_T0)}, {s(S_WAVE)}, {32 * nst}")
    A(f"v_add_u32 {v(vg)}, {s(S_T0)}, {v(vg)}")
    A(f"v_mul_u32_u24 {v(vg)}, {stride}, {v(vg)}")
    A(f"v_and_b32 {v(vg + 1)}, 7, {v(LANE)}")
    A(f"v_lshl_add_u32 {v(vg)}, {v(vg + 1)}, 4, {v(vg)}")
    A(f"s_lshl_b32 {s(S_T0)}, {s(S_WAVE)}, 12")

    def issue(t):
        for p, (srd, off) in enumerate(panels):
            for j in range(4):
                A(f"s_add_u32 m0, {s(S_T0)}, {(t % NS) * SZ + p * 16384 + j * 1024}")
                A(f"s_add_u32 {s(S_T1)}, {s(off)}, {(32 * t + 8 * j) * stride}")
                A(f"buffer_load_dwordx4 {v(vg)}, {s(srd, 4)}, {s(S_T1)} offen{flag} lds")
    A("s_barrier")
    for t in range(ramp):
        issue(t)
    if ramp < NS:
        A(f"s_waitcnt vmcnt({n * (ramp - 1)})")
        for t in range(ramp, NS):
            issue(t)
    for t in range(nst):
        A(f"s_waitcnt vmcnt({n * (min(t + NS, nst) - t - 1)})")
        A("s_barrier")
        if t == 0 and first:
            first()
        for reg, dst in tiles:
            for k in range(4):
                for q in range(2):
                    A(f"ds_read_b64_tr_b16 {r(dst + (nst * k + t) * 4 + 2 * q, 2)}, {v(reg)} offset:{k * 4096 + q * qstep}")
        for reg, dst in tiles:
            A(f"v_add_u32 {v(reg)}, {SZ if t % NS < NS - 1 else -(NS - 1) * SZ}, {v(reg)}")
        A("s_waitcnt lgkmcnt(0)")
        A("s_barrier")
        if t + NS < nst:
            issue(t + NS)


def dma_list(ngroups, m0base, m0add, src, vd, js=(0, 1, 2, 3)):
    ops = []
    for gi in range(ngroups):
        ops.append(f"s_add_u32 m0, {s(m0base)}, {m0add + gi * 16384}")
        ops.append(f"s_add_u32 {s(S_T1)}, {s(src)}, {gi * 16384}")
        for j in js:
            ops.append(f"buffer_load_dwordx4 {v(vd)}, {s(SWS, 4)}, {s(S_T1)} offen offset:{1024 * j} sc1 lds")
    return ops


def reader(vr, nblk, tmajor):
    def rd(i):
        T, ks = (i // (nblk // 2), i % (nblk // 2)) if tmajor else (i & 1, i >> 1)
        return f"ds_read_b128 {v(FR + 4 * (i % 8), 4)}, {v(vr)} offset:{2048 * ks + 1024 * T}"
    return rd


def first_reads(A, rd):
    for b in range(7):
        A(rd(b))


def fits(ops):
    t = 4
    for op in ops:
        if op.startswith("s_"):
            t += 4
        else:
            t = max(t, 8) + (8 if op.startswith(("v_exp", "v_rcp", "buffer_store_dwordx4")) else 4)
    return t <= 16


def job(A, nblk, rd, tmajor, tiles, fillers, lo=0, hi=None, nxt=None, syncs={}):
    hi = nblk if hi is None else hi
    mf, pre, nt = [], {}, len(tiles)
    for b in range(lo, hi):
        T, ks = (b // (nblk // 2), b % (nblk // 2)) if tmajor else (b & 1, b >> 1)
        if b % 2 == 0 and nxt is None:
            pre[len(mf)] = f"s_waitcnt lgkmcnt({min(5, nblk - 2 - b)})"
        for acc, w, swap in tiles:
            x, y = r(w(ks), 4), v(FR + 4 * (b % 8), 4)
            if swap:
                x, y = y, x
            mf.append(f"{MF} {v(acc(T), 4)}, {x}, {y}, {v(acc(T), 4) if ks else 0}")
    n = len(mf)
    at = [[] for _ in range(n)]
    for i, w in pre.items():
        if i:
            at[i - 1].append(w)
    for b in range(lo, min(hi, nblk - 7)):
        at[(b - lo) * nt] += syncs.get(b + 7, []) + [rd(b + 7)]
    if nxt:
        assert lo == nblk - 5 and hi == nblk
        for k, j in ((0, 0), (0, 1), (1, 2), (nt, 3), (2 * nt, 4), (3 * nt, 5), (4 * nt, 6)):
            at[k].append(nxt(j))
    k = 0
    for start, step, ops in fillers:
        k = max(k, start) if start >= 0 else -start
        for op in ops:
            if op.startswith("END"):
                assert k < int(op[4:]), "sequence ends too late"
                continue
            if op.startswith("GAP"):
                k += int(op[4:])
                continue
            while True:
                assert k < n, "fillers do not fit"
                front = op.startswith("s_") and all(x.startswith("ds_read") for x in at[k])
                cand = [op] + at[k] if front else at[k] + [op]
                if fits(cand):
                    at[k] = cand
                    break
                k += 1
            if op.startswith("buffer"):
                k += step
    if 0 in pre:
        A(pre[0])
    scc = None
    for i in range(n):
        A(mf[i])
        for op in at[i]:
            if op.startswith("s_cselect"):
                assert scc.startswith("s_cmp"), "SCC overwritten"
            elif op.startswith("s_") and not op.startswith(("s_waitcnt", "s_mov", "s_nop", "s_mul", "s_barrier")):
                scc = op
            A(op)


def lines(f):
    B = Asm()
    f(B)
    return B.lines


def decide(A, need, vf, rdy, src, nxt, spaced=False):
    A(f"v_cmp_gt_u32 vcc, {s(need)}, {v(vf)}")
    if spaced:
        A("GAP 2")
    A("s_cmp_eq_u64 vcc, 0")
    A(f"s_cselect_b32 {s(rdy)}, 1, 0")
    A(f"s_cselect_b32 {s(src)}, {s(nxt)}, {hex(OOB)}")


def common_regs(A, share):
    A(f"s_mul_i32 {s(S_M0)}, {s(S_WAVE)}, {share}")
    A(f"v_lshlrev_b32 {v(VR)}, 4, {v(LANE)}")
    A(f"v_add_u32 {v(VD)}, {s(S_M0)}, {v(VR)}")


def start_role(A, base, extra=None):
    line_addr(A, VPA, 0, base, S_CU, TMP)
    A(f"v_mov_b32 {v(VP)}, 0")
    A(f"buffer_store_dword {v(VP)}, {v(VPA)}, {s(SWS, 4)}, 0 offen sc1")
    A(f"s_mov_b32 {s(S_T2)}, 1")
    if extra:
        extra()
    arrive(A, S_T2, extra is None, join=False)


def stream1(A, cfg, tiles, epi, flag_for, advance_src, outstep, abort, sig, limit, landed=None):
    wait, entry, out, skip, join = (A.new(x) for x in ("sw", "se", "so", "sk", "sj"))
    ldf = lambda B=A: B(f"buffer_load_dword {v(VF)}, {v(VFA)}, {s(SWS, 4)}, {s(S_FA)} offen sc1")
    tst = lambda: A(f"v_cmp_gt_u32 vcc, {s(S_NEED)}, {v(VF)}")
    rd = reader(VR, 64, False)
    A(f"s_mov_b32 {s(S_STEP)}, 0")
    lap_init(A, cfg)
    lap(A, cfg, 7)
    flag_for(A, 0)
    A.label(wait)
    block_on(A, ldf, tst, abort, 1)
    lap(A, cfg, 5)
    for op in dma_list(4, S_M0, 0, S_NXT, VD):
        A(op)
    ldf()
    A.label(entry)
    A("s_waitcnt vmcnt(13)")
    A("s_barrier")
    lap(A, cfg, 6)
    first_reads(A, rd)
    advance_src()
    A(f"s_xor_b32 {s(S_M0)}, {s(S_M0)}, 0x10000")
    A(f"s_add_u32 {s(S_OUT)}, {s(S_OUT)}, {outstep}")
    A(f"s_add_u32 {s(S_STEP)}, {s(S_STEP)}, 1")
    flag_for(A, 0)
    nt = len(tiles)
    lap(A, cfg, 2)
    job(A, 64, rd, False, tiles, [(64 * nt - cfg.s1_flag, 1, lines(ldf))],
        syncs={16 * c: [f"s_waitcnt vmcnt({13 - 4 * c})", "s_barrier"] for c in (1, 2, 3)})
    lap(A, cfg, 3)
    A(f"v_xor_b32 {v(VR)}, 0x10000, {v(VR)}")
    A(f"v_mov_b32 {v(VP)}, {s(S_STEP)}")
    mark(A, cfg, s(S_STEP))
    A("s_waitcnt vmcnt(0)")
    tst()
    if landed:
        landed()
    A.nop(4)
    epi()
    A(f"s_mov_b32 {s(S_RDY)}, 0")
    A(f"s_cbranch_vccnz {skip}")
    A(f"s_mov_b32 {s(S_RDY)}, 1")
    for op in dma_list(4, S_M0, 0, S_NXT, VD):
        A(op)
    A("s_waitcnt vmcnt(16)")
    A(f"s_branch {join}")
    A.label(skip)
    A("s_waitcnt vmcnt(0)")
    A.label(join)
    A("s_barrier")
    sig()
    lap(A, cfg, 4)
    A(f"s_cmp_eq_u32 {s(S_STEP)}, {limit}")
    A(f"s_cbranch_scc1 {out}")
    A(f"s_cmp_lg_u32 {s(S_RDY)}, 0")
    A(f"s_cbranch_scc1 {entry}")
    A(f"s_branch {wait}")
    A.label(out)


def pack8(A, dst, a, b):
    for i in range(2):
        A(f"v_cvt_pk_bf16_f32 {v(dst + i)}, {v(a + 2 * i)}, {v(a + 2 * i + 1)}")
    for i in range(2):
        A(f"v_cvt_pk_bf16_f32 {v(dst + 2 + i)}, {v(b + 2 * i)}, {v(b + 2 * i + 1)}")


def await_helpers(A, n, abort, t=TMP):
    A(f"v_lshlrev_b32 {v(t)}, 7, {v(LANE)}")
    A(f"s_mov_b32 {s(S_T0)}, {L.P1}")
    block_on(A, lambda: A(f"buffer_load_dword {v(t + 1)}, {v(t)}, {s(SWS, 4)}, {s(S_T0)} offen sc1"),
             lambda: A(f"v_cmp_gt_u32 vcc, {n}, {v(t + 1)}"), abort, 2)


def octet_addrs(A, s_oct, s_cg):
    A(f"v_lshrrev_b32 {v(TMP)}, 3, {v(LANE)}")
    A(f"v_and_b32 {v(TMP + 1)}, 7, {v(LANE)}")
    A(f"s_lshr_b32 {s(S_T0)}, {s(s_oct)}, 1")
    A(f"s_lshl_b32 {s(S_T0)}, {s(S_T0)}, 10")
    A(f"s_and_b32 {s(S_T1)}, {s(s_oct)}, 1")
    A(f"s_lshl_b32 {s(S_T1)}, {s(S_T1)}, 7")
    A(f"s_add_u32 {s(S_T0)}, {s(S_T0)}, {s(S_T1)}")
    A(f"s_lshl_b32 {s(S_T1)}, {s(s_cg)}, 12")
    A(f"s_add_u32 {s(S_T0)}, {s(S_T0)}, {s(S_T1)}")
    A(f"v_lshl_add_u32 {v(VO)}, {v(TMP + 1)}, 4, {s(S_T0)}")
    A(f"v_and_b32 {v(TMP + 2)}, 3, {v(TMP)}")
    A(f"v_lshl_add_u32 {v(VO)}, {v(TMP + 2)}, 8, {v(VO)}")
    A(f"v_lshrrev_b32 {v(TMP + 2)}, 2, {v(TMP)}")
    A(f"v_lshl_add_u32 {v(VO)}, {v(TMP + 2)}, 11, {v(VO)}")
    A(f"s_lshl_b32 {s(S_T0)}, {s(s_oct)}, 14")
    A(f"s_lshl_b32 {s(S_T1)}, {s(s_cg)}, 7")
    A(f"s_add_u32 {s(S_T0)}, {s(S_T0)}, {s(S_T1)}")
    A(f"v_lshl_add_u32 {v(VO + 1)}, {v(TMP + 1)}, 11, {s(S_T0)}")
    A(f"v_lshl_add_u32 {v(VO + 1)}, {v(TMP)}, 4, {v(VO + 1)}")
    A(f"s_lshl_b32 {s(S_T0)}, {s(s_cg)}, 8")
    A(f"v_lshl_add_u32 {v(VO + 2)}, {v(TMP)}, 5, {s(S_T0)}")


def unit_consts(A):
    A(f"s_mov_b32 {s(S_P0)}, 0x00003f80")
    A(f"s_mov_b32 {s(S_P1)}, 0x3f800000")


def sum_bf(A, dst, srcs, n):
    for k, x in enumerate(srcs):
        for i in range(2 * n):
            A(f"v_dot2_f32_bf16 {v(dst + i)}, {v(x + (i >> 1))}, {s(S_P0 + (i & 1))}, {v(dst + i) if k else 0}")


def unpack(A, dst, src, n):
    for i in range(n):
        A(f"v_lshlrev_b32 {v(dst + 2 * i)}, 16, {v(src + i)}")
        A(f"v_and_b32 {v(dst + 2 * i + 1)}, 0xffff0000, {v(src + i)}")


def qkv_role(A, cfg, end):
    A.c("projection of token rows onto half a head of q, k and v; afterwards the final sums")
    A(f"v_mov_b32 {v(LANE)}, v1")
    A(f"s_sub_u32 {s(S_CU)}, {s(S_GRP)}, 4")
    if cfg.qmap:
        A(f"s_lshl_b32 {s(S_CU)}, {s(S_CU)}, 1")
        A(f"s_and_b32 {s(S_T0)}, {s(S_TK)}, 1")
        A(f"s_add_u32 {s(S_CU)}, {s(S_CU)}, {s(S_T0)}")
        A(f"s_lshr_b32 {s(S_T0)}, {s(S_TK)}, 1")
        A(f"s_lshl_b32 {s(S_T0)}, {s(S_T0)}, 3")
        A(f"s_add_u32 {s(S_CU)}, {s(S_CU)}, {s(S_T0)}")
    else:
        A(f"s_lshl_b32 {s(S_CU)}, {s(S_CU)}, 4")
        A(f"s_add_u32 {s(S_CU)}, {s(S_CU)}, {s(S_TK)}")
    start_role(A, L.PQ)
    A.srd(SW, 18, SIZE["Wq"])
    A.srd(SW2, 20, SIZE["Wk"])
    A.srd(SW3, 22, SIZE["Wv"])
    A(f"s_lshl_b32 {s(S_P0)}, {s(S_CU)}, 7")
    A(f"s_xor_b32 {s(S_P1)}, {s(S_P0)}, {4 << 7}")
    A(f"s_xor_b32 {s(S_P2)}, {s(S_P0)}, {2 << 7}")
    A(f"s_lshr_b32 {s(S_T2)}, {s(S_WAVE)}, 1")
    A(f"s_lshl_b32 {s(S_T2)}, {s(S_T2)}, 14")
    A(f"s_and_b32 {s(S_T3)}, {s(S_WAVE)}, 1")
    A(f"s_lshl_b32 {s(S_T3)}, {s(S_T3)}, 6")
    A(f"s_add_u32 {s(S_T2)}, {s(S_T2)}, {s(S_T3)}")
    for T in range(2):
        tile_addr(A, TMP + T, "N", False, S_T2, 32 * T, TMP + 4, TMP + 5)
    A(f"s_lshl_b32 {s(S_T2)}, {s(S_WAVE)}, 5")
    tile_addr(A, TMP + 2, "N", False, S_T2, 32768, TMP + 4, TMP + 5)
    load_w(A, [(SW, S_P0), (SW2, S_P1), (SW3, S_P2)], 8192, 8,
           [(TMP, 256), (TMP + 1, 384), (TMP + 2, 128)], "N", TMP + 4, WFLAG[cfg.whi], None, cfg.ramp_hi)
    mark(A, cfg, 1)
    await_start(A, end, hi_only=True)
    common_regs(A, 4096)
    lines_addr(A, VFA, LANE, 2)
    A(f"s_and_b32 {s(S_T2)}, {s(S_CU)}, 1")
    A(f"s_lshr_b32 {s(S_T0)}, {s(S_WAVE)}, 1")
    A(f"s_lshl_b32 {s(S_T0)}, {s(S_T0)}, 3")
    A(f"s_and_b32 {s(S_T1)}, {s(S_WAVE)}, 1")
    A(f"s_add_u32 {s(S_T0)}, {s(S_T0)}, {s(S_T1)}")
    A(f"s_lshl_b32 {s(S_T1)}, {s(S_T2)}, 1")
    A(f"s_add_u32 {s(S_T0)}, {s(S_T0)}, {s(S_T1)}")
    A(f"s_lshl_b32 {s(S_T0)}, {s(S_T0)}, 10")
    A(f"s_lshr_b32 {s(S_T3)}, {s(S_CU)}, 1")
    A(f"s_and_b32 {s(S_T1)}, {s(S_WAVE)}, 2")
    A(f"s_xor_b32 {s(S_T1)}, {s(S_T1)}, {s(S_T3)}")
    A(f"s_mul_i32 {s(S_T1)}, {s(S_T1)}, 24576")
    A(f"s_add_u32 {s(S_T0)}, {s(S_T0)}, {s(S_T1)}")
    A(f"v_add_u32 {v(VO)}, {s(S_T0)}, {v(VR)}")
    A(f"v_add_u32 {v(VO + 1)}, 4096, {v(VO)}")
    A(f"s_lshl_b32 {s(S_T0)}, {s(S_T2)}, 2")
    A(f"s_add_u32 {s(S_T0)}, {s(S_T0)}, {s(S_WAVE)}")
    A(f"s_add_u32 {s(S_T0)}, {s(S_T0)}, 16")
    A(f"s_lshl_b32 {s(S_T0)}, {s(S_T0)}, 10")
    A(f"s_xor_b32 {s(S_T1)}, {s(S_T3)}, 1")
    A(f"s_mul_i32 {s(S_T1)}, {s(S_T1)}, 24576")
    A(f"s_add_u32 {s(S_T0)}, {s(S_T0)}, {s(S_T1)}")
    A(f"v_add_u32 {v(VO + 2)}, {s(S_T0)}, {v(VR)}")
    A(f"s_mov_b32 {s(S_OUT)}, {L.QKV - 32 * 24576}")
    A(f"s_mov_b32 {s(S_NXT)}, {L.H1}")

    def epi():
        for i in range(3):
            pack8(A, TMP + 4 * i, ACC + 8 * i, ACC + 8 * i + 4)
            A(f"buffer_store_dwordx4 {v(TMP + 4 * i, 4)}, {v(VO + i)}, {s(SWS, 4)}, {s(S_OUT)} offen sc1")

    def flag_for(B, d):
        B(f"s_add_u32 {s(S_NEED)}, {s(S_STEP)}, {d}")
        B(f"s_and_b32 {s(S_FA)}, {s(S_NEED)}, 31")
        B(f"s_lshl_b32 {s(S_FA)}, {s(S_FA)}, 8")
        B(f"s_add_u32 {s(S_FA)}, {s(S_FA)}, {L.P1}")
        B(f"s_lshr_b32 {s(S_NEED)}, {s(S_NEED)}, 5")
        B(f"s_lshl_b32 {s(S_NEED)}, 1, {s(S_NEED)}")
        B(f"s_add_u32 {s(S_NEED)}, {s(S_NEED)}, 1")
    tiles = [(lambda T: ACC + 8 * T, lambda ks: 256 + 4 * ks, False),
             (lambda T: ACC + 8 * T + 4, lambda ks: 384 + 4 * ks, False),
             (lambda T: ACC + 16 + 4 * T, lambda ks: 128 + 4 * ks, True)]
    sig = lambda B=A: B(f"buffer_store_dword {v(VP)}, {v(VPA)}, {s(SWS, 4)}, 0 offen sc1")
    NS = cfg.qkv_slow
    stream1(A, cfg, tiles, epi, flag_for, lambda: A(f"s_add_u32 {s(S_NXT)}, {s(S_NXT)}, 65536"), 32 * 24576, end, sig, NS)
    A.c("all inputs exist from here on: continuous stream, results stored one segment later")
    have, loop = A.new("qh"), A.new("ql")
    await_helpers(A, 3, end)
    A(f"s_cmp_lg_u32 {s(S_RDY)}, 0")
    A(f"s_cbranch_scc1 {have}")
    for op in dma_list(4, S_M0, 0, S_NXT, VD):
        A(op)
    A("s_waitcnt vmcnt(0)")
    A.label(have)
    A("s_barrier")
    rd = reader(VR, 64, True)
    first_reads(A, rd)
    A(f"s_mov_b32 {s(S_SRC5)}, {hex(OOB)}")
    cvt = lambda d, x: f"v_cvt_pk_bf16_f32 {v(d)}, {v(x)}, {v(x + 1)}"
    half = lambda T: [cvt(TMP + 4 * T + i, ACC + 8 * T + 2 * i) for i in range(4)] + \
        [cvt(TMP + 8 + 2 * T + i, ACC + 16 + 4 * T + 2 * i) for i in range(2)]
    stores = [f"buffer_store_dwordx4 {v(TMP + 4 * i, 4)}, {v(VO + i)}, {s(SWS, 4)}, {s(S_SRC5)} offen sc1" for i in range(3)]
    A.label(loop)
    head = [f"s_add_u32 {s(S_NXT)}, {s(S_NXT)}, 65536", f"s_xor_b32 {s(S_M0)}, {s(S_M0)}, 0x10000",
            f"s_cmp_lt_u32 {s(S_STEP)}, 63", f"s_cselect_b32 {s(S_SRC)}, {s(S_NXT)}, {hex(OOB)}"]
    dl = dma_list(4, S_M0, 0, S_SRC, VD)
    job(A, 64, rd, True, tiles,
        [(0, 1, head), (8, cfg.st_step, half(1) + stores + [f"v_mov_b32 {v(VP)}, {s(S_STEP)}"]),
         (0, 5, dl[:12]), (cfg.qsig, 3, ["s_waitcnt vmcnt(8)", "s_barrier"] + lines(sig)), (0, 5, dl[12:]), (-105, 1, half(0)),
         (0, 1, [f"s_add_u32 {s(S_OUT)}, {s(S_OUT)}, {32 * 24576}", f"s_mov_b32 {s(S_SRC5)}, {s(S_OUT)}",
                 f"s_add_u32 {s(S_STEP)}, {s(S_STEP)}, 1"])], 0, 59)
    A(f"v_xor_b32 {v(VR)}, 0x10000, {v(VR)}")
    mark(A, cfg, s(S_STEP))
    A("s_waitcnt vmcnt(0) lgkmcnt(0)")
    A("s_barrier")
    job(A, 64, rd, True, tiles, [(11, 1, [f"s_cmp_lt_u32 {s(S_STEP)}, 64"])], 59, 64, rd)
    A(f"s_cbranch_scc1 {loop}")
    A.nop(8)
    for op in half(1) + stores:
        A(op)
    A(f"v_mov_b32 {v(VP)}, 64")
    A("s_waitcnt vmcnt(0) lgkmcnt(0)")
    A("s_barrier")
    sig()

    A.c("out = x1 + gb * (sum of the seven partial down projections)")
    GB, SUMS, X8, BUF = 16, 24, 32, 64
    ptr(A, 16, "out")
    A(f"s_and_b32 {s(S_T2)}, {s(S_CU)}, 3")
    A(f"s_lshr_b32 {s(S_T3)}, {s(S_CU)}, 2")
    octet_addrs(A, S_T2, S_T3)
    lines_addr(A, VFA, LANE, 7, 10)
    A(f"s_lshr_b32 {s(S_FA)}, {s(S_CU)}, 3")
    A(f"s_lshl_b32 {s(S_FA)}, {s(S_FA)}, 7")
    A(f"s_add_u32 {s(S_FA)}, {s(S_FA)}, {L.P45 + 4}")
    unit_consts(A)
    A("s_waitcnt lgkmcnt(0)")
    A.srd(SW, 16, SIZE["out"])
    await_helpers(A, 4, end)
    A(f"s_mov_b32 {s(S_T0)}, {L.MOD + 4 * 5120}")
    for i in range(2):
        A(f"buffer_load_dwordx4 {v(GB + 4 * i, 4)}, {v(VO + 2)}, {s(SWS, 4)}, {s(S_T0)} offen offset:{16 * i} sc1")
    A(f"s_mov_b32 {s(S_STEP)}, {s(S_WAVE)}")
    for nb, limit in ((4, 48), (1, 64)):
        loop = A.new("fin")
        A.label(loop)
        A(f"s_add_u32 {s(S_NEED)}, {s(S_STEP)}, {4 * (nb - 1) + 1}")
        block_on(A, lambda: A(f"buffer_load_dword {v(VF)}, {v(VFA)}, {s(SWS, 4)}, {s(S_FA)} offen sc1"),
                 lambda: A(f"v_cmp_gt_u32 vcc, {s(S_NEED)}, {v(VF)}"), end, 32 if nb == 4 else cfg.fin_sleep)
        A(f"s_lshl_b32 {s(S_OUT)}, {s(S_STEP)}, 16")
        for b in range(nb):
            for k in range(8):
                base = L.X1 if k == 7 else L.PART5 + k * 4 * L.MB
                A(f"s_add_u32 {s(S_T1)}, {s(S_OUT)}, {base + b * 4 * 65536}")
                A(f"buffer_load_dwordx4 {v(BUF + 32 * b + 4 * k, 4)}, {v(VO)}, {s(SWS, 4)}, {s(S_T1)} offen sc1")
        for b in range(nb):
            A(f"s_waitcnt vmcnt({8 * (nb - 1 - b) + b})")
            sum_bf(A, SUMS, [BUF + 32 * b + 4 * k for k in range(7)], 4)
            unpack(A, X8, BUF + 32 * b + 28, 4)
            for i in range(4):
                A(f"v_pk_fma_f32 {v(X8 + 2 * i, 2)}, {v(SUMS + 2 * i, 2)}, {v(GB + 2 * i, 2)}, {v(X8 + 2 * i, 2)}")
            pack8(A, 40 + 4 * b, X8, X8 + 4)
            A(f"s_add_u32 {s(S_T1)}, {s(S_OUT)}, {b * 4 * 65536}")
            A(f"buffer_store_dwordx4 {v(40 + 4 * b, 4)}, {v(VO + 1)}, {s(SW, 4)}, {s(S_T1)} offen{WFLAG[cfg.outflag]}")
        A(f"s_add_u32 {s(S_STEP)}, {s(S_STEP)}, {4 * nb}")
        A(f"s_cmp_lt_u32 {s(S_STEP)}, {limit}")
        A(f"s_cbranch_scc1 {loop}")
        mark(A, cfg, 2 if nb == 4 else 3)
    A("s_endpgm")


def g3_role(A, cfg, end):
    A.c("output projection of token rows: this group's heads x 128 columns")
    A(f"v_mov_b32 {v(LANE)}, v1")
    A(f"s_sub_u32 {s(S_K)}, {s(S_TK)}, 24")
    A(f"s_lshl_b32 {s(S_CU)}, {s(S_GRP)}, 3")
    A(f"s_add_u32 {s(S_CU)}, {s(S_CU)}, {s(S_K)}")

    def extra():
        skip = A.new("np")
        A(f"s_mov_b32 {s(S_T0)}, 4096")
        A(f"buffer_store_dword {v(VP)}, {v(VPA)}, {s(SWS, 4)}, {s(S_T0)} offen sc1")
        line_addr(A, VO + 1, 0, L.PB, S_CU, TMP)
        A(f"buffer_store_dword {v(VP)}, {v(VO + 1)}, {s(SWS, 4)}, 0 offen sc1")
        A(f"s_lshl_b32 {s(S_T0)}, {s(S_IRR)}, 16")
        A(f"s_or_b32 {s(S_T2)}, {s(S_T2)}, {s(S_T0)}")
    start_role(A, L.P3, extra)
    A.srd(SW, 24, SIZE["Wo"])
    A(f"s_lshl_b32 {s(S_P0)}, {s(S_GRP)}, 21")
    A(f"s_lshl_b32 {s(S_T0)}, {s(S_K)}, 8")
    A(f"s_add_u32 {s(S_P0)}, {s(S_P0)}, {s(S_T0)}")
    A(f"s_add_u32 {s(S_P1)}, {s(S_P0)}, 128")
    pair_tiles(A, "P")
    load_w(A, [(SW, S_P0), (SW, S_P1)], 2048, 8, [(TMP, 256), (TMP + 1, 384)], "P", TMP + 4)
    mark(A, cfg, 1)
    await_start(A, end)
    common_regs(A, 4096)
    words_addr(A, VFA, LANE, 8, TMP)
    A(f"s_lshl_b32 {s(S_FA)}, {s(S_GRP)}, 10")
    A(f"s_add_u32 {s(S_FA)}, {s(S_FA)}, {L.PO}")
    A(f"v_mov_b32 {v(VO)}, {v(VR)}")
    A(f"s_lshl_b32 {s(S_T0)}, {s(S_K)}, 2")
    A(f"s_add_u32 {s(S_T0)}, {s(S_T0)}, {s(S_WAVE)}")
    A(f"s_lshl_b32 {s(S_T0)}, {s(S_T0)}, 11")
    A(f"s_lshl_b32 {s(S_OUT)}, {s(S_GRP)}, 22")
    A(f"s_add_u32 {s(S_OUT)}, {s(S_OUT)}, {s(S_T0)}")
    A(f"s_add_u32 {s(S_OUT)}, {s(S_OUT)}, {L.PART3 - 65536}")
    A(f"s_lshl_b32 {s(S_NXT)}, {s(S_GRP)}, 16")
    A(f"s_add_u32 {s(S_NXT)}, {s(S_NXT)}, {L.OTOK}")
    A.c("bring one slot of the token-output ring into this die's L2")
    A(f"s_lshl_b32 {s(S_SRC)}, {s(S_K)}, 18")
    A(f"s_add_u32 {s(S_SRC)}, {s(S_SRC)}, {s(S_NXT)}")
    for op in dma_list(4, S_M0, 0, S_SRC, VD):
        A(op)

    def epi():
        for T in range(2):
            pack8(A, TMP + 4 * T, ACC + 8 * T, ACC + 8 * T + 4)
            A(f"buffer_store_dwordx4 {v(TMP + 4 * T, 4)}, {v(VO)}, {s(SWS, 4)}, {s(S_OUT)} offen offset:{1024 * T} sc1")
    tiles = [(lambda T: ACC + 8 * T, lambda ks: 256 + 4 * ks, False),
             (lambda T: ACC + 8 * T + 4, lambda ks: 384 + 4 * ks, False)]

    def sig():
        A(f"s_and_b32 {s(S_T0)}, {s(S_STEP)}, 1")
        A(f"s_lshl_b32 {s(S_T0)}, {s(S_T0)}, 12")
        A(f"buffer_store_dword {v(VP)}, {v(VPA)}, {s(SWS, 4)}, {s(S_T0)} offen sc1")

    def landed():
        far, out = A.new("lf"), A.new("lo")
        A(f"v_add_u32 {v(VO + 2)}, 1, {v(VO + 2)}")
        A(f"s_cmp_lg_u32 {s(S_IRR)}, 0")
        A(f"s_cbranch_scc1 {far}")
        A(f"buffer_store_dword {v(VO + 2)}, {v(VO + 1)}, {s(SWS, 4)}, 0 offen")
        A(f"s_branch {out}")
        A.label(far)
        A(f"buffer_store_dword {v(VO + 2)}, {v(VO + 1)}, {s(SWS, 4)}, 0 offen sc1")
        A.label(out)
    A(f"v_mov_b32 {v(VO + 2)}, 0")

    def advance():
        A(f"s_add_u32 {s(S_NXT)}, {s(S_NXT)}, 262144")
        A(f"s_bitset0_b32 {s(S_NXT)}, 21")
    stream1(A, cfg, tiles, epi, lambda B, d: B(f"s_add_u32 {s(S_NEED)}, {s(S_STEP)}, {d + 1}"), advance, 65536, end,
            sig, 64, landed)
    lap_dump(A, cfg)
    A("s_endpgm")


def pair_tiles(A, order):
    A(f"s_lshr_b32 {s(S_T2)}, {s(S_WAVE)}, 1")
    A(f"s_lshl_b32 {s(S_T2)}, {s(S_T2)}, 14")
    A(f"s_and_b32 {s(S_T3)}, {s(S_WAVE)}, 1")
    A(f"s_lshl_b32 {s(S_T3)}, {s(S_T3)}, 6")
    A(f"s_add_u32 {s(S_T2)}, {s(S_T2)}, {s(S_T3)}")
    for T in range(2):
        tile_addr(A, TMP + T, order, True, S_T2, 8 * T, TMP + 4, TMP + 5)


def row_total(A, T, bits, wr, rd, off):
    A(f"v_add_f32 {v(T)}, {v(T)}, {v(T + 1)}")
    xor_reduce(A, "v_add_f32", T, T + 1, bits)
    A(f"ds_write_b32 {v(wr)}, {v(T)} offset:{off}")
    A("s_waitcnt lgkmcnt(0)")
    A("s_barrier")
    A(f"ds_read_b128 {v(T, 4)}, {v(rd)} offset:{off}")
    A("s_waitcnt lgkmcnt(0)")
    A(f"v_pk_add_f32 {v(T, 2)}, {v(T, 2)}, {v(T + 2, 2)}")
    A(f"v_add_f32 {v(T)}, {v(T)}, {v(T + 1)}")
    A(f"v_mul_f32 {v(T)}, 0x3a800000, {v(T)}")


def normalise(A, F, n, T, bits, wr, rd):
    A(f"v_pk_add_f32 {v(T, 2)}, {v(F, 2)}, {v(F + 2, 2)}")
    for i in range(2, n // 2):
        A(f"v_pk_add_f32 {v(T, 2)}, {v(T, 2)}, {v(F + 2 * i, 2)}")
    row_total(A, T, bits, wr, rd, 512)
    for i in range(n // 2):
        A(f"v_pk_add_f32 {v(F + 2 * i, 2)}, {v(F + 2 * i, 2)}, {v(T, 2)} op_sel_hi:[1,0] neg_lo:[0,1] neg_hi:[0,1]")
    A(f"v_pk_mul_f32 {v(T, 2)}, {v(F, 2)}, {v(F, 2)}")
    for i in range(1, n // 2):
        A(f"v_pk_fma_f32 {v(T, 2)}, {v(F + 2 * i, 2)}, {v(F + 2 * i, 2)}, {v(T, 2)}")
    row_total(A, T, bits, wr, rd, 768)
    A(f"v_add_f32 {v(T)}, 0x3727c5ac, {v(T)}")
    A(f"v_rsq_f32 {v(T)}, {v(T)}")
    A("s_nop 0")
    for i in range(n // 2):
        A(f"v_pk_mul_f32 {v(F + 2 * i, 2)}, {v(F + 2 * i, 2)}, {v(T, 2)} op_sel_hi:[1,0]")


def stat_addrs(A, wr, rd, mask):
    A(f"v_and_b32 {v(rd)}, {mask}, {v(LANE)}")
    A(f"v_lshlrev_b32 {v(rd)}, 4, {v(rd)}")
    A(f"s_lshl_b32 {s(S_T0)}, {s(S_WAVE)}, 2")
    A(f"v_add_u32 {v(wr)}, {s(S_T0)}, {v(rd)}")


def helper_start(A, cfg, end):
    X, F, SH, SC, T = 16, 48, 112, 176, 240
    P1A, WR, RD, VA, VX, VG = 10, 11, 12, 13, 6, 7
    A(f"v_mov_b32 {v(LANE)}, v1")
    A(f"s_sub_u32 {s(S_T2)}, {s(S_GRP)}, 4")
    A(f"s_lshl_b32 {s(S_K)}, {s(S_TK)}, 2")
    A(f"s_add_u32 {s(S_K)}, {s(S_K)}, {s(S_T2)}")
    A(f"s_sub_u32 {s(S_K)}, {s(S_K)}, 64")
    A(f"s_mul_i32 {s(S_CU)}, {s(S_T2)}, 14")
    A(f"s_add_u32 {s(S_CU)}, {s(S_CU)}, {s(S_TK)}")
    A(f"s_sub_u32 {s(S_CU)}, {s(S_CU)}, 16")
    A(f"s_lshl_b32 {s(S_T3)}, {s(S_T2)}, 1")
    A(f"s_add_u32 {s(S_T3)}, {s(S_T3)}, {s(S_TK)}")
    A(f"s_add_u32 {s(S_T3)}, {s(S_T3)}, 26")
    A(f"s_cmp_ge_u32 {s(S_TK)}, 30")
    A(f"s_cselect_b32 {s(S_CU)}, {s(S_T3)}, {s(S_CU)}")
    ptr(A, 16, "wmod")
    ptr(A, 18, "c")
    ptr(A, 20, "x")
    line_addr(A, P1A, 0, L.P1, S_K, TMP)
    line_addr(A, 8, 0, L.P45, S_CU, TMP)
    A("v_mov_b32 v14, 0")
    A("v_mov_b32 v15, 0")
    A(f"buffer_store_dword v14, {v(P1A)}, {s(SWS, 4)}, 0 offen sc1")
    A(f"buffer_store_dwordx2 v[14:15], v8, {s(SWS, 4)}, 0 offen sc1")
    A("s_waitcnt lgkmcnt(0)")
    A.srd(SW, 16, SIZE["wmod"])
    A.srd(SW2, 18, SIZE["c"])
    A.srd(SW3, 20, SIZE["x"])

    def stage(n, join=True):
        A(f"v_mov_b32 v14, {n}")
        A("s_waitcnt vmcnt(0)")
        if join:
            A("s_barrier")
        A(f"buffer_store_dword v14, {v(P1A)}, {s(SWS, 4)}, 0 offen sc1")

    stat_addrs(A, WR, RD, 15)
    A(f"v_lshlrev_b32 {v(VA)}, 4, {v(LANE)}")
    A(f"v_lshrrev_b32 {v(VG)}, 4, {v(LANE)}")
    A(f"v_lshlrev_b32 {v(VX)}, 7, {v(RD)}")
    A(f"v_lshl_add_u32 {v(VX)}, {v(VG)}, 4, {v(VX)}")
    A(f"v_lshlrev_b32 {v(VG)}, 5, {v(VG)}")

    def x_rows():
        for rep in range(2):
            A(f"s_add_u32 {s(S_T2)}, {s(S_K)}, {64 * rep}")
            A(f"s_lshl_b32 s41, {s(S_T2)}, 15")
            A(f"s_lshl_b32 s42, {s(S_WAVE)}, 9")
            A("s_add_u32 s41, s41, s42")
            for k in range(8):
                A(f"buffer_load_dwordx4 {a(32 * rep + 4 * k, 4)}, {v(VX)}, {s(SW3, 4)}, s41 offen offset:{64 * k}")
        return 16
    A(f"s_lshr_b32 {s(S_P0)}, {s(S_K)}, 1")
    A(f"s_and_b32 {s(S_P1)}, {s(S_K)}, 1")
    A(f"s_lshl_b32 {s(S_P2)}, {s(S_P0)}, 8")
    A(f"s_lshl_b32 {s(S_T0)}, {s(S_P1)}, 13")
    A(f"s_add_u32 {s(S_P2)}, {s(S_P2)}, {s(S_T0)}")
    A(f"s_add_u32 {s(S_P2)}, {s(S_P2)}, {L.MODP}")
    A(f"s_min_u32 {s(S_T0)}, {s(S_WAVE)}, 1")
    A(f"s_lshl_b32 {s(S_T0)}, {s(S_T0)}, 30")
    A(f"s_add_u32 {s(S_T0)}, {s(S_T0)}, {s(S_P2)}")
    A(f"v_lshlrev_b32 v2, 2, {v(LANE)}")
    A("v_mov_b32 v3, -1")
    A(f"buffer_store_dword v3, v2, {s(SWS, 4)}, {s(S_T0)} offen sc1")
    A(f"s_mov_b32 {s(S_T2)}, 1")
    arrive(A, S_T2, True, join=False, t=14)
    mod_addr(A)
    mod_pass(A, S_P0, S_P1, SW, SW2, WFLAG[cfg.wmod], x_rows)
    mod_finish(A, S_WAVE, S_P2, False)
    await_start(A, end, 14, True)
    mark(A, cfg, 4)
    for rep in range(2):
        A(f"s_add_u32 {s(S_T2)}, {s(S_K)}, {64 * rep}")
        for k in range(32):
            A(f"v_accvgpr_read_b32 {v(X + k)}, {a(32 * rep + k)}")
        A(f"s_lshr_b32 s40, {s(S_T2)}, 1")
        A("s_lshl_b32 s40, s40, 2")
        A(f"s_add_u32 s40, s40, {s(S_WAVE)}")
        A("s_lshl_b32 s40, s40, 14")
        A(f"s_and_b32 s41, {s(S_T2)}, 1")
        A("s_lshl_b32 s41, s41, 10")
        A("s_add_u32 s40, s40, s41")
        unpack(A, F, X, 32)
        normalise(A, F, 64, T, (16, 32), WR, RD)
        if rep == 0:
            A.c("shift and 1+scale, summed and rounded once per workgroup, shared through LDS")
            A("v_lshlrev_b32 v14, 5, v0")

            def parts():
                for h in range(2):
                    A(f"s_mov_b32 s42, {L.MODP + 8192 * h}")
                    for i in range(2):
                        A(f"buffer_load_dwordx4 {v(X + 8 * h + 4 * i, 4)}, v14, {s(SWS, 4)}, s42 offen offset:{16 * i} sc1")
            block_on(A, parts, lambda: check(A, X, 16, 15), end, 4)
            A(f"s_cmp_ge_u32 {s(S_WAVE)}, 2")
            A("s_cselect_b32 s42, 1.0, 0")
            A(f"s_lshl_b32 s43, {s(S_WAVE)}, 10")
            A(f"v_add_u32 {v(VG)}, s43, {v(VG)}")
            A("s_waitcnt vmcnt(0)")
            for i in range(8):
                A(f"v_add_f32 {v(X + i)}, {v(X + i)}, {v(X + 8 + i)}")
            for i in range(8):
                A(f"v_cvt_pk_bf16_f32 {v(X + i)}, 0, {v(X + i)}")
            for i in range(8):
                A(f"v_add_f32 {v(X + i)}, s42, {v(X + i)}")
            for i in range(2):
                A(f"ds_write_b128 v14, {v(X + 4 * i, 4)} offset:{4096 + 16 * i}")
            A("s_waitcnt lgkmcnt(0)")
            A("s_barrier")
            for n in range(16):
                off = 4096 + 128 * (n >> 1) + 16 * (n & 1)
                A(f"ds_read_b128 {v(SH + 4 * n, 4)}, {v(VG)} offset:{off}")
                A(f"ds_read_b128 {v(SC + 4 * n, 4)}, {v(VG)} offset:{off + 4096}")
            A("s_waitcnt lgkmcnt(0)")
        for k in range(8):
            for i in range(4):
                x = 8 * k + 2 * i
                A(f"v_pk_fma_f32 {v(F + x, 2)}, {v(F + x, 2)}, {v(SC + x, 2)}, {v(SH + x, 2)}")
            pack8(A, X + 4 * k, F + 8 * k, F + 8 * k + 4)
            A(f"s_add_u32 s41, s40, {L.H1 + 2048 * k}")
            A(f"buffer_store_dwordx4 {v(X + 4 * k, 4)}, {v(VA)}, {s(SWS, 4)}, s41 offen sc1")
        stage(2 + rep)
        mark(A, cfg, 5 + rep)
    loop = A.new("md")
    A(f"s_add_u32 {s(S_P0)}, {s(S_K)}, 32")
    A(f"s_mov_b32 {s(S_P1)}, 0")
    mod_addr(A)
    A.label(loop)
    mod_pass(A, S_P0, S_P1, SW, SW2, WFLAG[cfg.wmod])
    A(f"s_add_u32 {s(S_P1)}, {s(S_P1)}, 1")
    A(f"s_cmp_lt_u32 {s(S_P1)}, 2")
    A(f"s_cbranch_scc1 {loop}")
    A(f"s_lshl_b32 {s(S_P0)}, {s(S_P0)}, 8")
    A(f"s_add_u32 {s(S_P0)}, {s(S_P0)}, {L.MOD}")
    mod_finish(A, S_WAVE, S_P0, True)
    stage(4, False)
    A(f"v_mov_b32 {v(VPA)}, v8")
    A(f"v_mov_b32 {v(VP)}, 0")
    mark(A, cfg, 7)


def ln_role(A, cfg, end):
    A.c("x1 = x + ga * attention, h2 = modulated layer norm of x1, for 8 tokens of every other segment")
    PB, XB, F, GA, SC, SH, T, WR, RD = 16, 80, 96, 128, 160, 192, 224, 11, 12
    A(f"s_sub_u32 {s(S_K)}, {s(S_CU)}, 56")
    A(f"s_and_b32 {s(S_T2)}, {s(S_K)}, 3")
    A(f"s_lshl_b32 {s(S_T3)}, {s(S_WAVE)}, 2")
    octet_addrs(A, S_T2, S_T3)
    stat_addrs(A, WR, RD, 7)
    unit_consts(A)
    lines_addr(A, VFA, LANE, 32)
    A(f"s_lshr_b32 {s(S_FA)}, {s(S_K)}, 2")
    A(f"s_xor_b32 {s(S_FA)}, {s(S_FA)}, 1")
    A(f"s_lshl_b32 {s(S_FA)}, {s(S_FA)}, 12")
    A(f"s_add_u32 {s(S_FA)}, {s(S_FA)}, {L.P3}")
    await_start(A, end)
    await_helpers(A, 4, end)
    for reg, part in ((GA, 2), (SH, 3), (SC, 4)):
        A(f"s_mov_b32 {s(S_T0)}, {L.MOD + 4096 * part}")
        for i in range(8):
            A(f"buffer_load_dwordx4 {v(reg + 4 * i, 4)}, {v(VO + 2)}, {s(SWS, 4)}, {s(S_T0)} offen offset:{256 * (i >> 1) + 16 * (i & 1)} sc1")
    A("s_waitcnt vmcnt(0)")
    for i in range(16):
        A(f"v_pk_add_f32 {v(SC + 2 * i, 2)}, {v(SC + 2 * i, 2)}, 1.0 op_sel_hi:[1,0]")
    A(f"s_lshr_b32 {s(S_STEP)}, {s(S_K)}, 2")
    loop = A.new("ln")
    A.label(loop)
    A(f"s_lshl_b32 {s(S_OUT)}, {s(S_STEP)}, 16")
    for i in range(4):
        A(f"buffer_load_dwordx4 {v(XB + 4 * i, 4)}, {v(VO + 1)}, {s(SW3, 4)}, {s(S_OUT)} offen offset:{128 * i}")
    A(f"s_add_u32 {s(S_NEED)}, {s(S_STEP)}, 1")

    block_on(A, lambda: A(f"buffer_load_dword {v(VF)}, {v(VFA)}, {s(SWS, 4)}, {s(S_FA)} offen sc1"),
             lambda: A(f"v_cmp_gt_u32 vcc, {s(S_NEED)}, {v(VF)}"), end, cfg.ln_sleep)
    for i in range(4):
        for x in range(4):
            A(f"s_add_u32 {s(S_T1)}, {s(S_OUT)}, {L.PART3 + x * 4 * L.MB + 4096 * i}")
            A(f"buffer_load_dwordx4 {v(PB + 16 * i + 4 * x, 4)}, {v(VO)}, {s(SWS, 4)}, {s(S_T1)} offen sc1")
    unpack(A, F, XB, 16)
    for i in range(4):
        A(f"s_waitcnt vmcnt({4 * (3 - i) + i})")
        sum_bf(A, T, [PB + 16 * i + 4 * x for x in range(4)], 4)
        A("s_nop 1")
        for q in range(4):
            x = 8 * i + 2 * q
            A(f"v_pk_fma_f32 {v(F + x, 2)}, {v(T + 2 * q, 2)}, {v(GA + x, 2)}, {v(F + x, 2)}")
        pack8(A, XB + 4 * i, F + 8 * i, F + 8 * i + 4)
        A(f"s_add_u32 {s(S_T1)}, {s(S_OUT)}, {L.X1 + 4096 * i}")
        A(f"buffer_store_dwordx4 {v(XB + 4 * i, 4)}, {v(VO)}, {s(SWS, 4)}, {s(S_T1)} offen sc1")
        unpack(A, F + 8 * i, XB + 4 * i, 4)
    normalise(A, F, 32, T, (8, 16, 32), WR, RD)
    for i in range(4):
        for q in range(4):
            x = 8 * i + 2 * q
            A(f"v_pk_fma_f32 {v(F + x, 2)}, {v(F + x, 2)}, {v(SC + x, 2)}, {v(SH + x, 2)}")
        pack8(A, PB + 4 * i, F + 8 * i, F + 8 * i + 4)
        A(f"s_add_u32 {s(S_T1)}, {s(S_OUT)}, {L.H2 + 4096 * i}")
        A(f"buffer_store_dwordx4 {v(PB + 4 * i, 4)}, {v(VO)}, {s(SWS, 4)}, {s(S_T1)} offen sc1")
    A(f"v_mov_b32 {v(VP)}, {s(S_NEED)}")
    A("s_waitcnt vmcnt(0)")
    A("s_barrier")
    A(f"buffer_store_dword {v(VP)}, {v(VPA)}, {s(SWS, 4)}, 0 offen sc1")
    mark(A, cfg, s(S_NEED))
    A(f"s_add_u32 {s(S_STEP)}, {s(S_STEP)}, 2")
    A(f"s_cmp_lt_u32 {s(S_STEP)}, 64")
    A(f"s_cbranch_scc1 {loop}")
    A("s_endpgm")


def g45_role(A, cfg, end):
    A.c("64 hidden units of silu(h w1) * (h w3) and a 512 x 128 slice of the down projection")
    VD5, VR5, VFA5, VF5 = VD, 11, 12, 13
    AC5, TE, VS, HV = 64, 88, 100, 104
    LAG = cfg.lag
    ptr(A, 16, "w1")
    ptr(A, 18, "w3")
    ptr(A, 20, "w2")
    A("s_waitcnt lgkmcnt(0)")
    A.srd(SW, 16, SIZE["w1"])
    A.srd(SW2, 18, SIZE["w3"])
    A.srd(SW3, 20, SIZE["w2"])
    A(f"s_lshl_b32 {s(S_P0)}, {s(S_CU)}, 7")
    A(f"s_lshl_b32 {s(S_T2)}, {s(S_WAVE)}, 5")
    for p in range(2):
        tile_addr(A, TMP + p, "N", False, S_T2, 16384 * p, TMP + 4, TMP + 5)
    load_w(A, [(SW, S_P0), (SW2, S_P0)], 7168, 8, [(TMP, 256), (TMP + 1, 384)], "N", TMP + 4, WFLAG[cfg.wff])
    A(f"s_lshr_b32 {s(S_K)}, {s(S_CU)}, 3")
    A(f"s_and_b32 {s(S_P2)}, {s(S_CU)}, 7")
    A(f"s_lshl_b32 {s(S_P0)}, {s(S_K)}, 20")
    A(f"s_lshl_b32 {s(S_T0)}, {s(S_P2)}, 8")
    A(f"s_add_u32 {s(S_P0)}, {s(S_P0)}, {s(S_T0)}")
    A(f"s_add_u32 {s(S_P1)}, {s(S_P0)}, 128")
    pair_tiles(A, "N")
    load_w(A, [(SW3, S_P0), (SW3, S_P1)], 2048, 4, [(TMP, 128), (TMP + 1, 192)], "N", TMP + 4, WFLAG[cfg.wff])
    mark(A, cfg, 1)
    common_regs(A, 4096)
    S_M5, S_FA5, S_NL, S_OUT4 = S_P0, S_P1, 64, 65
    A(f"s_mov_b32 {s(S_M5)}, {s(S_M0)}")
    A(f"v_add_u32 {v(VR5)}, 0x20000, {v(VR)}")
    A(f"v_mov_b32 {v(VO + 1)}, {v(VR)}")
    lines_addr(A, VFA, LANE, 4)
    lines_addr(A, VFA5, LANE, 8)
    A(f"s_lshl_b32 {s(S_FA5)}, {s(S_K)}, 10")
    A(f"s_add_u32 {s(S_FA5)}, {s(S_FA5)}, {L.P45}")
    A(f"s_lshl_b32 {s(S_T0)}, {s(S_CU)}, 1")
    A(f"s_lshr_b32 {s(S_T1)}, {s(S_WAVE)}, 1")
    A(f"s_add_u32 {s(S_T0)}, {s(S_T0)}, {s(S_T1)}")
    A(f"s_lshl_b32 {s(S_T0)}, {s(S_T0)}, 11")
    A(f"s_and_b32 {s(S_T1)}, {s(S_WAVE)}, 1")
    A(f"s_lshl_b32 {s(S_T1)}, {s(S_T1)}, 9")
    A(f"s_add_u32 {s(S_T0)}, {s(S_T0)}, {s(S_T1)}")
    A(f"v_and_b32 {v(TMP)}, 15, {v(LANE)}")
    A(f"v_lshl_add_u32 {v(VO)}, {v(TMP)}, 4, {s(S_T0)}")
    A(f"v_bfe_u32 {v(TMP)}, {v(LANE)}, 4, 1")
    A(f"v_lshl_add_u32 {v(VO)}, {v(TMP)}, 10, {v(VO)}")
    A(f"v_lshrrev_b32 {v(TMP)}, 5, {v(LANE)}")
    A(f"v_lshl_add_u32 {v(VO)}, {v(TMP)}, 8, {v(VO)}")
    A(f"s_mov_b32 {s(S_OUT)}, {L.HH}")
    A(f"s_mov_b32 {s(S_NXT)}, {L.H2}")
    A(f"s_lshl_b32 {s(S_NXT5)}, {s(S_K)}, 15")
    A(f"s_add_u32 {s(S_NXT5)}, {s(S_NXT5)}, {L.HH - LAG * 229376}")
    A(f"s_lshl_b32 {s(S_T0)}, {s(S_P2)}, 2")
    A(f"s_add_u32 {s(S_T0)}, {s(S_T0)}, {s(S_WAVE)}")
    A(f"s_lshl_b32 {s(S_T0)}, {s(S_T0)}, 11")
    A(f"s_lshl_b32 {s(S_P2)}, {s(S_K)}, 22")
    A(f"s_add_u32 {s(S_P2)}, {s(S_P2)}, {s(S_T0)}")
    A(f"s_add_u32 {s(S_P2)}, {s(S_P2)}, {L.PART5 - LAG * 65536}")
    A(f"s_mov_b32 {s(S_NL)}, 0xbfb8aa3b")
    A(f"v_mov_b32 {v(VS)}, 0")
    A(f"v_mov_b32 {v(VS + 1)}, 0")

    ldf = lambda B=A: B(f"buffer_load_dword {v(VF)}, {v(VFA)}, {s(SWS, 4)}, {s(S_FA)} offen sc1")
    ldf5 = lambda B=A: B(f"buffer_load_dword {v(VF5)}, {v(VFA5)}, {s(SWS, 4)}, {s(S_FA5)} offen sc1")
    tst5 = lambda: A(f"v_cmp_gt_u32 vcc, {s(S_NEED5)}, {v(VF5)}")

    def sig(back5, B=A):
        B(f"v_min_u32 {v(VS)}, {s(S_STEP)}, 64")
        B(f"s_sub_u32 {s(S_T0)}, {s(S_STEP)}, {LAG + back5}")
        B(f"v_max_i32 {v(VS + 1)}, {s(S_T0)}, 0")
        B(f"buffer_store_dwordx2 {v(VS, 2)}, {v(VPA)}, {s(SWS, 4)}, 0 offen sc1")

    def store4(B=A):
        B(f"buffer_store_dwordx4 {v(TE + 8, 4)}, {v(VO)}, {s(SWS, 4)}, {s(S_OUT)} offen sc1")

    def flag_for(B, d):
        B(f"s_add_u32 {s(S_NEED)}, {s(S_STEP)}, {d}")
        B(f"s_and_b32 {s(S_FA)}, {s(S_NEED)}, 1")
        B(f"s_lshl_b32 {s(S_FA)}, {s(S_FA)}, 9")
        B(f"s_add_u32 {s(S_FA)}, {s(S_FA)}, {L.PL}")
        B(f"s_add_u32 {s(S_NEED)}, {s(S_NEED)}, 1")

    def need5(B=A):
        B(f"s_sub_u32 {s(S_NEED5)}, {s(S_STEP)}, {LAG - 1}")
        B(f"s_max_i32 {s(S_NEED5)}, {s(S_NEED5)}, 0")

    def epi4(B, T):
        G, U, H = ACC + 4 * T, ACC + 8 + 4 * T, HV + 4 * T
        for i in range(4):
            B(f"v_mul_f32 {v(TE + i)}, {s(S_NL)}, {v(G + i)}")
        for i in range(4):
            B(f"v_exp_f32 {v(TE + i)}, {v(TE + i)}")
        for i in range(4):
            B(f"v_mul_f32 {v(H + i)}, {v(G + i)}, {v(U + i)}")
        for i in range(4):
            B(f"v_add_f32 {v(TE + i)}, 1.0, {v(TE + i)}")
        for i in range(4):
            B(f"v_rcp_f32 {v(TE + i)}, {v(TE + i)}")
        for i in range(4):
            B(f"v_mul_f32 {v(H + i)}, {v(H + i)}, {v(TE + i)}")
        if T:
            pack8(B, TE + 8, HV, HV + 4)
            B("GAP 2")
            B(f"v_permlane16_swap_b32 {v(TE + 8)}, {v(TE + 10)}")
            B(f"v_permlane16_swap_b32 {v(TE + 9)}, {v(TE + 11)}")

    def epi5(B=A, part=3):
        if part & 1:
            for T in range(2):
                pack8(B, TMP + 4 * T, AC5 + 8 * T, AC5 + 8 * T + 4)
        if part & 2:
            for T in range(2):
                B(f"buffer_store_dwordx4 {v(TMP + 4 * T, 4)}, {v(VO + 1)}, {s(SWS, 4)}, {s(S_OUT5)} offen offset:{1024 * T} sc1")

    def after5(B=A):
        B(f"s_cmp_ge_u32 {s(S_STEP)}, {LAG}")
        B(f"s_cselect_b32 {s(S_OUT5)}, {s(S_P2)}, {hex(OOB)}")
        B(f"s_add_u32 {s(S_OUT)}, {s(S_OUT)}, 229376")
        B(f"s_add_u32 {s(S_P2)}, {s(S_P2)}, 65536")
        B(f"s_add_u32 {s(S_NXT5)}, {s(S_NXT5)}, 229376")
        B(f"s_add_u32 {s(S_STEP)}, {s(S_STEP)}, 1")
    t4 = [(lambda T: ACC + 4 * T, lambda ks: 256 + 4 * ks, False),
          (lambda T: ACC + 8 + 4 * T, lambda ks: 384 + 4 * ks, False)]
    t5 = [(lambda T: AC5 + 8 * T, lambda ks: 128 + 4 * ks, False),
          (lambda T: AC5 + 8 * T + 4, lambda ks: 192 + 4 * ks, False)]
    assert LAG == 3
    body, wait, late5, go5, starved, final = (A.new(x) for x in ("fb", "fw", "fl", "fg", "fs", "fz"))
    tst = lambda: A(f"v_cmp_gt_u32 vcc, {s(S_NEED)}, {v(VF)}")
    rd4, rd5 = reader(VR, 64, True), reader(VR5, 32, False)
    A(f"s_mov_b32 {s(S_STEP)}, 0")
    lap_init(A, cfg)
    lap(A, cfg, 7)
    A.label(wait)
    flag_for(A, 0)
    block_on(A, ldf, tst, end, cfg.g4_sleep)
    for op in dma_list(4, S_M0, 0, S_NXT, VD, (0, 2)):
        A(op)
    flag_for(A, 1)
    ldf()
    ldf5()
    for op in dma_list(4, S_M0, 0, S_NXT, VD, (1, 3)):
        A(op)
    A(f"s_mov_b32 {s(S_OUT5)}, {hex(OOB)}")
    A("s_waitcnt vmcnt(8)")
    A("s_barrier")
    lap(A, cfg, 4)
    first_reads(A, rd4)
    A.label(body)

    def head(B):
        B(f"s_add_u32 {s(S_NXT)}, {s(S_NXT)}, 65536")
        B(f"s_xor_b32 {s(S_M0)}, {s(S_M0)}, 0x10000")
        need5(B)
        decide(B, S_NEED, VF, S_RDY, S_SRC, S_NXT, True)
        decide(B, S_NEED5, VF5, S_RDY5, S_SRC5, S_NXT5, True)
    d4 = dma_list(4, S_M0, 0, S_SRC, VD)
    n1 = min(16, (118 - 56) // cfg.g4_step + 1)
    cut = [i for i, op in enumerate(d4) if op.startswith("buffer")][n1 - 1] + 1
    n2 = min(16 - n1, 2)
    cut2 = [i for i, op in enumerate(d4) if op.startswith("buffer")][n1 + n2 - 1] + 1
    job(A, 64, rd4, True, t4,
        [(0, 1, lines(head)), (0, cfg.g4_step, dma_list(2, S_M5, 0x20000, S_SRC5, VD5) + ["END 54"]),
         (-51, 2, lines(lambda B: sig(1, B))), (0, cfg.g4_step, d4[:cut]),
         (-10, 1, lines(lambda B: epi5(B, 1))), (-72, 1, lines(lambda B: epi4(B, 0)))], 0, 59,
        syncs={32: ["s_waitcnt vmcnt(8)", "s_barrier"]})
    lap(A, cfg, 0)
    A(f"s_cmp_eq_u32 {s(S_RDY5)}, 0")
    A(f"s_cbranch_scc1 {late5}")
    A(f"s_waitcnt vmcnt({n1 + 1}) lgkmcnt(0)")
    A.label(go5)
    A("s_barrier")
    lap(A, cfg, 1)
    job(A, 64, rd4, True, t4, [(2, 4, d4[cut:cut2]), (-1, 1, lines(lambda B: flag_for(B, 2)) + [f"v_xor_b32 {v(VR)}, 0x10000, {v(VR)}"])], 59, 64, rd5)
    job(A, 32, rd5, False, t5,
        [(0, 4, d4[cut2:]), (0, 2, lines(ldf) + lines(ldf5)), (0, cfg.st_step, lines(lambda B: epi5(B, 2)) + ["END 40"]),
         (-8, 1, lines(lambda B: epi4(B, 1))), (40, 1, lines(store4) + lines(after5))], 0, 27)
    mark(A, cfg, s(S_STEP))
    lap(A, cfg, 2)
    A(f"s_cmp_eq_u32 {s(S_RDY)}, 0")
    A(f"s_cbranch_scc1 {starved}")
    A("s_waitcnt vmcnt(3) lgkmcnt(0)")
    A("s_barrier")
    lap(A, cfg, 3)
    job(A, 32, rd5, False, t5, [], 27, 32, rd4)
    A(f"s_branch {body}")
    A.label(starved)
    if cfg.marks == 2:
        A("s_add_u32 s75, s75, 64")
    A("s_waitcnt lgkmcnt(0)")
    job(A, 32, rd5, False, t5, [], 27, 32)
    A.nop(8)
    epi5(A, 1)
    A(f"s_cmp_eq_u32 {s(S_STEP)}, 64")
    A(f"s_cbranch_scc1 {final}")
    epi5(A, 2)
    A(f"s_branch {wait}")
    A.label(late5)
    if cfg.marks == 2:
        A("s_add_u32 s76, s76, 64")
    block_on(A, ldf5, tst5, end)
    for op in dma_list(2, S_M5, 0x20000, S_NXT5, VD5):
        A(op)
    for op in [x for x in d4[:cut] if x.startswith("s_")][-2:]:
        A(op)
    A("s_waitcnt vmcnt(0) lgkmcnt(0)")
    A(f"s_branch {go5}")

    A.label(final)
    A.c("last three down projections; the first two go to the free up-projection buffer")
    have, no63, got63 = A.new("fh"), A.new("fn"), A.new("fy")
    lap_dump(A, cfg)
    A(f"s_mov_b32 {s(S_NEED5)}, 63")
    A("s_waitcnt vmcnt(0)")
    tst5()
    A("s_barrier")
    sig(1)
    A(f"s_cbranch_vccz {have}")
    block_on(A, ldf5, tst5, end, 1)
    A.label(have)
    for i in range(2):
        A(f"s_add_u32 {s(S_SRC5)}, {s(S_NXT5)}, {229376 * i}")
        for op in dma_list(2, S_M5, 0x10000 + 0x8000 * i, S_SRC5, VD5):
            A(op)
    epi5(A, 2)
    A(f"s_add_u32 {s(S_SRC5)}, {s(S_NXT5)}, {229376 * 2}")
    A(f"s_mov_b32 {s(S_NEED5)}, 64")
    A(f"v_add_u32 {v(VR5)}, -0x10000, {v(VR5)}")

    def alone(fill):
        A("s_barrier")
        first_reads(A, rd5)
        job(A, 32, rd5, False, t5, fill)
        after5()
        A(f"v_add_u32 {v(VR5)}, 0x8000, {v(VR5)}")
        A("s_nop 0")
        epi5(A, 1)
        mark(A, cfg, s(S_STEP))
    A("s_waitcnt vmcnt(10)")
    alone([(24, 1, lines(ldf5))])
    A("s_waitcnt vmcnt(0)")
    tst5()
    A(f"s_mov_b32 {s(S_RDY5)}, 0")
    A(f"s_cbranch_vccnz {no63}")
    A(f"s_mov_b32 {s(S_RDY5)}, 1")
    for op in dma_list(2, S_M5, 0x20000, S_SRC5, VD5):
        A(op)
    A.label(no63)
    epi5(A, 2)
    alone([])
    A(f"s_cmp_lg_u32 {s(S_RDY5)}, 0")
    A(f"s_cbranch_scc1 {got63}")
    block_on(A, ldf5, tst5, end, 1)
    for op in dma_list(2, S_M5, 0x20000, S_SRC5, VD5):
        A(op)
    A.label(got63)
    epi5(A, 2)
    A("s_waitcnt vmcnt(2)")
    alone([])
    epi5(A, 2)
    A("s_waitcnt vmcnt(0)")
    A("s_barrier")
    sig(0)
    A("s_endpgm")
```

```python
import sys
from asmlib import *
import chain, stream
from chain import S_GRP, S_TK


def build(path, **kw):
    cfg = chain.Cfg()
    cfg.marks = 0
    cfg.single = 0
    for k, val in kw.items():
        setattr(cfg, k, val)
    cfg.mark = lambda A, i: stream.mark(A, cfg, i, 48)
    stream.STRICT = getattr(cfg, 'strict', 0)
    A = Asm()
    name = NAME + "_kernel"
    end, kvo, g3, hi, helper, ln, end2 = (A.new(x) for x in ("end", "kvo", "g3", "hi", "helper", "ln", "end"))
    A.kernel_begin(name)
    if cfg.gate_entry or cfg.marks in (1, 4):
        A("s_memrealtime s[90:91]")
    chain.role_prologue(A, end, cfg)
    if cfg.codepf:
        A.c("each workgroup reads 4 KiB of this kernel's code so that it is in the die's L2 when first executed")
        A("s_getpc_b64 s[40:41]")
        A.label("Lcode_here")
        A(f"s_lshl_b32 s42, {s(S_TK)}, 12")
        A("v_lshl_add_u32 v2, v0, 4, s42")
        A("v_min_u32 v2, Lcode_end-Lcode_here-16, v2")
        A("v_mov_b32 v3, s41")
        A("v_add_co_u32 v2, vcc, s40, v2")
        A("s_nop 1")
        A("v_addc_co_u32 v3, vcc, 0, v3, vcc")
        A("global_load_dword v255, v[2:3], off")
    stream.mark(A, cfg, 0)
    if cfg.marks in (1, 4):
        A("v_mov_b32 v15, s90")
        A("s_mov_b64 exec, 1")
        A("buffer_store_dword v15, off, s[4:7], s98 offset:32")
        A("s_mov_b64 exec, -1")
    A(f"s_cmp_ge_u32 {s(S_GRP)}, 4")
    A(f"s_cbranch_scc1 {hi}")
    A(f"s_cmp_ge_u32 {s(S_TK)}, 24")
    A(f"s_cbranch_scc1 {g3}")
    A(f"s_cmp_ge_u32 {s(S_TK)}, 8")
    A(f"s_cbranch_scc1 {kvo}")
    chain.q_role(A, cfg, end)
    A.label(end)
    A("s_endpgm")
    A.label(kvo)
    chain.kvo_role(A, cfg, end)
    A.label(g3)
    stream.g3_role(A, cfg, end2)
    A.label(hi)
    A(f"s_cmp_ge_u32 {s(S_TK)}, 16")
    A(f"s_cbranch_scc1 {helper}")
    stream.qkv_role(A, cfg, end2)
    A.label(end2)
    A("s_endpgm")
    A.label(helper)
    stream.helper_start(A, cfg, end2)
    A(f"s_cmp_ge_u32 {s(stream.S_CU)}, 56")
    A(f"s_cbranch_scc1 {ln}")
    stream.g45_role(A, cfg, end2)
    A.label(ln)
    stream.ln_role(A, cfg, end2)
    A.label("Lcode_end")
    hdr = ["adaLN + recurrent-memory attention + SwiGLU in one launch; generated by gen/mega.py"]
    open(path, "w").write(build_file(hdr, [(name, 256, 256, 163840)], A, [(name, 512, 102, 256)], cfg.single))


if __name__ == "__main__":
    kw = {}
    for x in sys.argv[2:]:
        k, val = x.split("=")
        kw[k] = int(val)
    build(sys.argv[1], **kw)
```

```python
from asmlib import *
import layout as L

SWS, SW, SDBG = 4, 8, 12
P_MEM0, P_WQ, P_WK, P_WV, P_WO, P_DBG, P_WS = 16, 18, 20, 22, 24, 28, 30
S_WAVE, S_GRP, S_TK, S_IRR, S_STEP, S_BUD, S_T0, S_T1 = 32, 33, 34, 35, 36, 37, 38, 39
S_CUR, S_NXT, S_RST, S_XCUR, S_XRST, S_RBASE, S_PAR, S_PF, S_C, S_NC, S_OT = range(40, 51)
S_XCC, S_T2, S_T3 = 51, 52, 53
S_FB, S_TAG = 59, 26
S_XC, S_XR = 84, 88
S_STAMP = 60
S_CNT = 80
BUDGET = 200000
SM = "v_smfmac_f32_16x16x64_bf16"
MF = "v_mfma_f32_16x16x32_bf16"


WFLAG = ("", " nt", " sc1")


class Cfg:
    trace = 0
    nsteps = 64
    lag = 3
    s1_flag = 36
    wlo = 0
    whi = 0
    wff = 0
    wmod = 0
    ramp_lo = 5
    ramp_hi = 3
    g3_after = 0
    meet = 1
    fine = 0
    hmask = 16
    near = 6
    marks = 0
    qsig = 70
    codepf = 1
    qmap = 0
    gate2 = 0
    gate_entry = 0
    gate3 = 0
    gate = 0
    outflag = 2
    qkv_slow = 3
    g4_split = 4
    g4_step = 5
    st_step = 4
    g4_late = 1
    mark = staticmethod(lambda A, i: None)
    fin_sleep = 4
    ln_sleep = 2
    g4_sleep = 4
    solo = 0
    cyc = 0
    flip = 0
    nrep = 2
    xdelay = 16
    xgap = 8
    xfill = 4
    fm_delay = 22
    mdelay = 11
    fo_pos = 2
    use_fm = 1
    use_fo = 1
    nflag = 4
    qjoint = 1
    qown = 4
    fo_wait = 0
    fspace = 6
    lspace = 3
    ltail = 1
    kpos = 1
    vpos = 0
    ksplit = 1
    qsplit = 3
    rpos = 3
    vin = 1
    vk = 2
    vk2 = 4
    xdepth = 3
    xgap2 = 12
    xbf = 1
    vchk = 1
    qpipe = 0
    fillw = 0
    fillr = 0
    qfw = 0
    qfr = 0
    qfw2 = 0
    hw = 0
    hr = 0


def gate(A, us):
    if us:
        gl = A.new("gate")
        A.label(gl)
        A("s_memrealtime s[92:93]")
        A("s_waitcnt lgkmcnt(0)")
        A("s_sub_u32 s92, s92, s90")
        A(f"s_cmp_lt_u32 s92, {us * 100}")
        A(f"s_cbranch_scc1 {gl}")


def pause(A, cfg, h, n, bit, keep=0):
    hot = n if cfg.hmask >> bit & 1 else min(n, keep)
    A.nop(4 * (n - hot))
    heat(A, h, hot)


def busy(A, h, n):
    for _ in range(n):
        A(f"v_mov_b32 {v(h)}, 0")


def heat(A, h, n):
    for _ in range(n):
        A(f"{MF} {v(h, 4)}, {v(h + 4, 4)}, {v(h + 4, 4)}, 0")


def stamp(A, cfg, i, lvl=1):
    if cfg.trace in (1, lvl):
        A(f"{'s_memtime' if cfg.cyc else 's_memrealtime'} {s(S_STAMP + 2 * i, 2)}")


def fine(A, cfg, i, grp):
    if cfg.trace == 1 and cfg.fine == grp:
        A(f"s_memtime {s(S_STAMP + 12 + 2 * i, 2)}")


def count(A, cfg, i):
    if cfg.trace == 1:
        A(f"s_add_u32 {s(S_CNT + i)}, {s(S_CNT + i)}, 1")


def flush_stamps(A, cfg, n, vt, va, lvl=1):
    if cfg.trace not in (1, lvl):
        return
    A("s_waitcnt lgkmcnt(0)")
    for i in range(n):
        A(f"v_writelane_b32 {v(vt)}, {s(S_STAMP + 2 * i)}, {i}")
    A(f"v_writelane_b32 {v(vt)}, {s(S_BUD)}, 8")
    for i in range(4):
        A(f"v_writelane_b32 {v(vt)}, {s(S_CNT + i)}, {9 + i}")
    A(f"s_mul_i32 {s(S_T0)}, {s(S_GRP)}, 24")
    A(f"s_add_u32 {s(S_T0)}, {s(S_T0)}, {s(S_TK)}")
    A(f"s_lshl_b32 {s(S_T0)}, {s(S_T0)}, 2")
    A(f"s_add_u32 {s(S_T0)}, {s(S_T0)}, {s(S_WAVE)}")
    A(f"s_lshl_b32 {s(S_T0)}, {s(S_T0)}, 6")
    A(f"s_add_u32 {s(S_T0)}, {s(S_T0)}, {s(S_STEP)}")
    A(f"s_lshl_b32 {s(S_T0)}, {s(S_T0)}, 6")
    A(f"s_add_u32 {s(S_T0)}, {s(S_T0)}, {L.TRACE}")
    A(f"v_mbcnt_lo_u32_b32 {v(va)}, -1, 0")
    A(f"v_lshlrev_b32 {v(va)}, 2, {v(va)}")
    A("s_mov_b64 exec, 0xffff")
    A(f"buffer_store_dword {v(vt)}, {v(va)}, {s(SWS, 4)}, {s(S_T0)} offen")
    A("s_mov_b64 exec, -1")


def check(A, reg, n, tmp):
    if n == 4:
        A(f"v_max3_u32 {v(tmp)}, {v(reg)}, {v(reg + 1)}, {v(reg + 2)}")
        A(f"v_max_u32 {v(tmp)}, {v(tmp)}, {v(reg + 3)}")
    elif n > 4:
        A(f"v_max3_u32 {v(tmp)}, {v(reg)}, {v(reg + 1)}, {v(reg + 2)}")
        for i in range(3, n - 1, 2):
            A(f"v_max3_u32 {v(tmp)}, {v(tmp)}, {v(reg + i)}, {v(reg + i + 1)}")
        A(f"v_max_u32 {v(tmp)}, {v(tmp)}, {v(reg + n - 1)}")
    elif n == 2:
        A(f"v_max_u32 {v(tmp)}, {v(reg)}, {v(reg + 1)}")
    A(f"v_cmp_eq_u32 vcc, -1, {v(tmp)}")


def spend(A, abort):
    A(f"s_sub_u32 {s(S_BUD)}, {s(S_BUD)}, 1")
    A(f"s_cbranch_scc1 {abort}")


def fsm_poll(A, n, ld, chk, use, abort, finished=None, fast=None, onfail=None):
    done = A.new("pd")
    labels, emitted, todo = {}, set(), []
    full = frozenset(range(n))
    if finished is None:
        finished = lambda got: got == full

    def lab(st):
        if st not in labels:
            labels[st] = A.new("ps")
            todo.append(st)
        return labels[st]

    fails = []

    def chain_from(st, last):
        while True:
            if st in emitted:
                A(f"s_branch {lab(st)}")
                return
            emitted.add(st)
            A.label(lab(st))
            fl = A.new("pf")
            fails.append((fl, st))
            A(f"s_waitcnt vmcnt({len(st) - 1})")
            chk(st[0])
            A(f"s_cbranch_vccnz {fl}")
            rest = st[1:]
            fin = finished(full - frozenset(rest))
            use(st[0], () if fin else rest)
            if fin:
                if not last:
                    A(f"s_branch {done}")
                return
            st = rest

    if fast is None:
        chain_from(tuple(range(n)), True)
    else:
        head, tail = fast[:2]
        joint = fast[2:] if len(fast) > 2 else None
        for i in range(n):
            if joint and i == n - 2:
                both = A.new("pj")
                A("s_waitcnt vmcnt(0)")
                joint[0]()
                tail(i - 1)
                A(f"s_cbranch_vccnz {both}")
                joint[1]()
                break
            fl = A.new("pf")
            fails.append((fl, tuple(range(i, n))))
            A(f"s_waitcnt vmcnt({n - 1 - i})")
            chk(i)
            if i:
                tail(i - 1)
            A(f"s_cbranch_vccnz {fl}")
            head(i)
        else:
            tail(n - 1)

    def rest_code():
        if fast is not None and joint:
            A.label(both)
            ld(n - 2)
            ld(n - 1)
            if onfail:
                onfail(True)
            spend(A, abort)
            A(f"s_branch {lab((n - 2, n - 1))}")
        nfast = len(fails) if fast is not None else 0
        i = 0
        while i < len(fails) or any(t not in emitted for t in todo):
            while i < len(fails):
                fl, st = fails[i]
                i += 1
                A.label(fl)
                ld(st[0])
                if onfail:
                    onfail(i <= nfast)
                if st[0] == min(st):
                    spend(A, abort)
                chain_from(st[1:] + st[:1], False)
            for t in list(todo):
                if t not in emitted:
                    chain_from(t, False)
    return done, rest_code


def flag_wait(A, cfg, vaddr, buf, nl, abort):
    go, top = A.new("fg"), A.new("ft")
    ld = lambda b: A(f"buffer_load_dword {v(buf + b)}, {v(vaddr)}, {s(SWS, 4)}, {s(S_FB)} offen sc1")
    A(f"s_mov_b64 exec, {(1 << nl) - 1}")
    n = cfg.nflag
    for b in range(n):
        ld(b)
        if b < n - 1:
            A.nop(cfg.fspace)
    A.label(top)
    for b in range(n):
        A(f"s_waitcnt vmcnt({n - 1})")
        A(f"v_cmp_gt_u32 vcc, {s(S_TAG)}, {v(buf + b)}")
        ld(b)
        A(f"s_cbranch_vccz {go}")
    spend(A, abort)
    A(f"s_branch {top}")
    A.label(go)
    A("s_mov_b64 exec, -1")


def load_weights(A, chunks, flag="", first=None, ramp=5):
    NS = 5

    def issue(c):
        setup, stride, kind, vglob, vtr, dst = chunks[c]
        setup()
        A(f"s_mul_i32 {s(S_T0)}, {s(S_WAVE)}, 40960")
        A(f"s_add_u32 m0, {s(S_T0)}, {(c % NS) * 8192}")
        for j in range(8):
            if j:
                A(f"s_add_u32 m0, m0, 1024")
                A(f"s_add_u32 {s(S_T1)}, {s(S_T1)}, {8 * stride}")
            else:
                A("s_nop 0")
            A(f"buffer_load_dwordx4 {v(vglob)}, {s(SW, 4)}, {s(S_T1)} offen{flag} lds")

    n = len(chunks)
    for c in range(ramp):
        issue(c)
    if ramp < NS:
        A(f"s_waitcnt vmcnt({8 * (ramp - 1)})")
        for c in range(ramp, NS):
            issue(c)
    for c in range(n):
        setup, stride, kind, vglob, vtr, dst = chunks[c]
        A(f"s_waitcnt vmcnt({8 * (min(c + NS, n) - c - 1)})")
        if c == 0 and first:
            first()
        for t in range(4):
            col = 64 * (t >> 1) + 16 * (t & 1) if kind == "K" else 32 * t
            for H in range(2):
                for q in range(2):
                    row = 32 * H + (2 * q if kind == "O" else 4 * q)
                    off = (c % NS) * 8192 + row * 128 + col
                    A(f"ds_read_b64_tr_b16 {r(dst(t) + 4 * H + 2 * q, 2)}, {v(vtr)} offset:{off}")
        A("s_waitcnt lgkmcnt(0)")
        if c + NS < n:
            issue(c + NS)


def glob_addr(A, dst, lane, shift, sxor, t0):
    A(f"v_and_b32 {v(t0)}, 7, {v(lane)}")
    A(f"v_lshlrev_b32 {v(t0)}, 4, {v(t0)}")
    A(f"v_xor_b32 {v(t0)}, {s(sxor)}, {v(t0)}")
    A(f"v_lshrrev_b32 {v(dst)}, 3, {v(lane)}")
    A(f"v_lshl_add_u32 {v(dst)}, {v(dst)}, {shift}, {v(t0)}")


def tr_addr(A, dst, lane, kind, t0):
    if kind == "O":
        A(f"v_and_b32 {v(dst)}, 16, {v(lane)}")
        for bit, sh in ((5, 3), (3, 2), (2, 0)):
            A(f"v_bfe_u32 {v(t0)}, {v(lane)}, {bit}, 1")
            A(f"v_lshl_add_u32 {v(dst)}, {v(t0)}, {sh}, {v(dst)}")
    else:
        A(f"v_bfe_u32 {v(dst)}, {v(lane)}, 2, 2")
        A(f"v_lshrrev_b32 {v(t0)}, 4, {v(lane)}")
        A(f"v_lshl_add_u32 {v(dst)}, {v(t0)}, 3, {v(dst)}")
    A(f"s_mul_i32 {s(S_T0)}, {s(S_WAVE)}, 40960")
    A(f"v_lshl_add_u32 {v(dst)}, {v(dst)}, 7, {s(S_T0)}")
    for bit, sh in (((0, 5), (1, 3)) if kind == "K" else ((0, 3), (1, 4))):
        A(f"v_bfe_u32 {v(t0)}, {v(lane)}, {bit}, 1")
        A(f"v_lshl_add_u32 {v(dst)}, {v(t0)}, {sh}, {v(dst)}")


def sparse_index(A, dst, lane):
    A(f"v_bfe_u32 {v(dst)}, {v(lane)}, 1, 1")
    A(f"v_mul_u32_u24 {v(dst)}, 0xaaaa, {v(dst)}")
    A(f"v_add_u32 {v(dst)}, 0x4444, {v(dst)}")


def role_prologue(A, end):
    A("s_cmp_ge_u32 s2, 256")
    A(f"s_cbranch_scc1 {end}")
    A(f"s_load_dwordx8 {s(P_MEM0, 8)}, s[0:1], {KA['mem0']}")
    A(f"s_load_dwordx2 {s(P_WO, 2)}, s[0:1], {KA['Wo']}")
    A(f"s_load_dwordx4 {s(P_DBG, 4)}, s[0:1], {KA['dbg']}")
    A(f"s_getreg_b32 {s(S_XCC)}, hwreg(HW_REG_XCC_ID, 0, 4)")
    A(f"s_and_b32 {s(S_XCC)}, {s(S_XCC)}, 7")
    A("v_lshrrev_b32 v1, 6, v0")
    A("s_nop 0")
    A(f"v_readfirstlane_b32 {s(S_WAVE)}, v1")
    A("v_and_b32 v1, 63, v0")
    A("s_waitcnt lgkmcnt(0)")
    A.srd(SWS, P_WS, SIZE["ws"])
    A.srd(SDBG, P_DBG, SIZE["dbg"])
    A(f"s_mov_b32 {s(S_BUD)}, {BUDGET}")
    for i in range(4):
        A(f"s_mov_b32 {s(S_CNT + i)}, 0")
    got, loop, skip = A.new("rg"), A.new("rl"), A.new("rs")
    A(f"s_cmp_lg_u32 {s(S_WAVE)}, 0")
    A(f"s_cbranch_scc1 {skip}")
    A(f"s_mov_b32 {s(S_GRP)}, {s(S_XCC)}")
    A(f"s_mov_b32 {s(S_IRR)}, 0")
    A("s_mov_b64 exec, 1")
    A.label(loop)
    A(f"s_and_b32 {s(S_T0)}, {s(S_GRP)}, 4")
    A(f"s_mul_i32 {s(S_T0)}, {s(S_T0)}, 7")
    A(f"s_add_u32 {s(S_T0)}, {s(S_T0)}, {s(S_GRP)}")
    A(f"v_lshlrev_b32 v2, 2, {s(S_T0)}")
    A("v_mov_b32 v3, 1")
    A(f"buffer_atomic_add v3, v2, {s(SDBG, 4)}, 0 offen sc0 sc1")
    A("s_waitcnt vmcnt(0)")
    A(f"v_readfirstlane_b32 {s(S_TK)}, v3")
    A("s_nop 3")
    A(f"s_cmp_lt_u32 {s(S_TK)}, 32")
    A(f"s_cbranch_scc1 {got}")
    A(f"s_add_u32 {s(S_GRP)}, {s(S_GRP)}, 1")
    A(f"s_and_b32 {s(S_GRP)}, {s(S_GRP)}, 7")
    A(f"s_add_u32 {s(S_IRR)}, {s(S_IRR)}, 1")
    A(f"s_cmp_lt_u32 {s(S_IRR)}, 8")
    A(f"s_cbranch_scc1 {loop}")
    A.label(got)
    A(f"s_lshl_b32 {s(S_T0)}, {s(S_GRP)}, 8")
    A(f"s_min_u32 {s(S_TK)}, {s(S_TK)}, 255")
    A(f"s_or_b32 {s(S_T0)}, {s(S_T0)}, {s(S_TK)}")
    A(f"s_lshl_b32 {s(S_T1)}, {s(S_IRR)}, 16")
    A(f"s_or_b32 {s(S_T0)}, {s(S_T0)}, {s(S_T1)}")
    A(f"v_mov_b32 v3, {s(S_T0)}")
    A("v_mov_b32 v2, 0")
    A("ds_write_b32 v2, v3")
    A("s_mov_b64 exec, -1")
    A.label(skip)
    A("s_waitcnt lgkmcnt(0)")
    A("s_barrier")
    A("v_mov_b32 v2, 0")
    A("ds_read_b32 v3, v2")
    A("s_waitcnt lgkmcnt(0)")
    A(f"v_readfirstlane_b32 {s(S_T0)}, v3")
    A("s_barrier")
    A(f"s_and_b32 {s(S_TK)}, {s(S_T0)}, 255")
    A(f"s_bfe_u32 {s(S_GRP)}, {s(S_T0)}, 0x80008")
    A(f"s_lshr_b32 {s(S_IRR)}, {s(S_T0)}, 16")
    A(f"s_min_u32 {s(S_IRR)}, {s(S_IRR)}, 1")
    A(f"s_cmp_ge_u32 {s(S_TK)}, 32")
    A(f"s_cbranch_scc1 {end}")
    A.c("the roles that must start first take the first tickets")
    A(f"s_cmp_ge_u32 {s(S_GRP)}, 4")
    A(f"s_cselect_b32 {s(S_T0)}, 16, 24")
    A(f"s_add_u32 {s(S_TK)}, {s(S_TK)}, {s(S_T0)}")
    A(f"s_and_b32 {s(S_TK)}, {s(S_TK)}, 31")


def arrive(A, add_reg, hi=False, wait=True, join=True, t=48):
    skip = A.new("ar")
    if wait:
        A("s_waitcnt vmcnt(0)")
    if join:
        A("s_barrier")
    A(f"s_cmp_lg_u32 {s(S_WAVE)}, 0")
    A(f"s_cbranch_scc1 {skip}")
    A("s_mov_b64 exec, 1")
    A(f"v_mov_b32 {v(t)}, {160 if hi else 32}")
    A(f"v_mov_b32 {v(t + 1)}, {s(add_reg)}")
    A(f"buffer_atomic_add {v(t + 1)}, {v(t)}, {s(SDBG, 4)}, 0 offen sc1")
    A("s_mov_b64 exec, -1")
    A.label(skip)


def await_start(A, abort, t=48, hi_only=False, probed=False):
    loop, out = A.new("st"), A.new("so")
    A.label(loop)
    A(f"buffer_load_dword {v(t)}, off, {s(SDBG, 4)}, 0 offset:{160 if hi_only else 32} sc1")
    A(f"buffer_load_dword {v(t + 1)}, off, {s(SDBG, 4)}, 0 offset:160 sc1")
    A("s_waitcnt vmcnt(0)")
    A(f"v_add_u32 {v(t)}, {v(t)}, {v(t + 1)}")
    A("s_nop 0")
    A(f"v_readfirstlane_b32 {s(S_T0)}, {v(t)}")
    A("s_nop 3")
    A(f"s_and_b32 {s(S_T1)}, {s(S_T0)}, {hex(0x200ffff if probed else 0xffff)}")
    A(f"s_cmp_eq_u32 {s(S_T1)}, {hex(0x2000100 if probed else 0x100)}")
    A(f"s_cbranch_scc1 {out}")
    spend(A, abort)
    A("s_sleep 8")
    A(f"s_branch {loop}")
    A.label(out)
    A(f"s_bfe_u32 {s(S_IRR)}, {s(S_T0)}, 0x80010")
    A(f"s_bfe_u32 {s(S_PAR)}, {s(S_T0)}, 0x10018")
    A(f"s_lshl_b32 {s(S_PAR)}, {s(S_PAR)}, 13")
    A("s_barrier")


def probe(A, lane, dst, dbg=False):
    skip = A.new("pb")
    A(f"s_cmp_lg_u32 {s(S_WAVE)}, 0")
    A(f"s_cbranch_scc1 {skip}")
    A(f"v_lshlrev_b32 v52, 8, {v(lane)}")
    A("v_mov_b32 v53, -1")
    A(f"s_mov_b32 {s(S_T3)}, {L.XRING + 0x8000}")
    A(f"buffer_store_dword v53, v52, {s(SWS, 4)}, {s(S_T3)} offen sc1")
    A("s_waitcnt vmcnt(0)")
    A("s_mov_b64 exec, 1")
    for h in range(2):
        A(f"s_mov_b32 {s(60 + h)}, -1")
    loop = A.new("pl")
    A("v_mov_b32 v52, 0")
    A("s_mov_b32 s66, 5")
    A.label(loop)
    for h in range(2):
        A(f"s_memtime {s(62, 2)}")
        A("s_waitcnt lgkmcnt(0)")
        A(f"buffer_load_dword v53, v52, {s(SWS, 4)}, {s(S_T3)} offen sc1")
        A("s_waitcnt vmcnt(0)")
        A(f"s_memtime {s(64, 2)}")
        A("s_waitcnt lgkmcnt(0)")
        A("s_sub_u32 s62, s64, s62")
        A(f"s_min_u32 {s(60 + h)}, {s(60 + h)}, s62")
        A(f"v_add_u32 v52, {8192 if h == 0 else 1280 - 8192}, v52")
    A("s_sub_u32 s66, s66, 1")
    A("s_cmp_lg_u32 s66, 0")
    A(f"s_cbranch_scc1 {loop}")
    A("s_mov_b64 exec, -1")
    if dbg:
        A("v_mov_b32 v52, s60")
        A("v_mov_b32 v53, s61")
        A(f"buffer_store_dwordx2 v[52:53], off, {s(SDBG, 4)}, 0 offset:48")
    A("s_cmp_lt_u32 s61, s60")
    A("s_cselect_b32 s62, 1, 0")
    A(f"s_lshr_b32 s63, {s(S_XCC)}, 2")
    A("s_xor_b32 s62, s62, s63")
    A("s_lshl_b32 s62, s62, 24")
    A(f"s_or_b32 {s(dst)}, {s(dst)}, s62")
    A.label(skip)


def x_offsets(A, cfg, dst, slot):
    A(f"s_lshl_b32 {s(dst)}, {s(slot)}, 18")
    A(f"s_add_u32 {s(dst)}, {s(dst)}, {s(S_PAR)}")
    if cfg.nrep > 1:
        A(f"s_add_u32 {s(dst + 1)}, {s(dst)}, 0x100000")


def progress_addr(A, dst, lane, base, index, tmp, word=0):
    A(f"s_lshl_b32 {s(S_T0)}, {s(index)}, 5")
    A(f"s_add_u32 {s(S_T0)}, {s(S_T0)}, {s(S_WAVE)}")
    A(f"s_lshl_b32 {s(S_T0)}, {s(S_T0)}, 2")
    A(f"s_add_u32 {s(S_T0)}, {s(S_T0)}, {base + 4 * word}")
    A(f"v_min_u32 {v(tmp)}, 1, {v(lane)}")
    A(f"v_lshl_add_u32 {v(dst)}, {v(tmp)}, 30, {s(S_T0)}")


def line_addr(A, dst, tid, base, index, tmp):
    A(f"s_lshl_b32 {s(S_T0)}, {s(index)}, 7")
    A(f"s_add_u32 {s(S_T0)}, {s(S_T0)}, {base}")
    A(f"v_min_u32 {v(tmp)}, 1, {v(tid)}")
    A(f"v_lshl_add_u32 {v(dst)}, {v(tmp)}, 30, {s(S_T0)}")


def lines_addr(A, dst, lane, nlines, shift=7):
    A(f"v_min_u32 {v(dst)}, {nlines - 1}, {v(lane)}")
    A(f"v_lshlrev_b32 {v(dst)}, {shift}, {v(dst)}")


def words_addr(A, dst, lane, nlines, tmp, shift=2):
    A(f"v_lshrrev_b32 {v(tmp)}, 2, {v(lane)}")
    A(f"v_min_u32 {v(tmp)}, {nlines - 1}, {v(tmp)}")
    A(f"v_lshlrev_b32 {v(tmp)}, 7, {v(tmp)}")
    A(f"v_and_b32 {v(dst)}, 3, {v(lane)}")
    A(f"v_lshl_add_u32 {v(dst)}, {v(dst)}, {shift}, {v(tmp)}")


def block_on(A, ld, test, abort, sleep=2):
    top, out = A.new("bw"), A.new("bo")
    A.label(top)
    ld()
    A("s_waitcnt vmcnt(0)")
    test()
    A(f"s_cbranch_vccz {out}")
    spend(A, abort)
    A(f"s_sleep {sleep}")
    A(f"s_branch {top}")
    A.label(out)


def ring_slots(A):
    A(f"s_and_b32 {s(S_T0)}, {s(S_STEP)}, 3")
    A(f"s_lshl_b32 {s(S_T1)}, {s(S_T0)}, 16")
    A(f"s_add_u32 {s(S_CUR)}, {s(S_T1)}, {s(S_RBASE)}")
    A(f"s_xor_b32 {s(S_RST)}, {s(S_CUR)}, 0x20000")
    A(f"s_add_u32 {s(S_TAG)}, {s(S_STEP)}, 1")


def kvo_role(A, cfg, end):
    LRX, FOR, FMW, SEL, FBUF, TAGV = 0, 1, 2, 3, 4, 7
    VG, VGO, PUBM, PUBK, XOWN, XP, HT, LWS, PUBV = 8, 9, 10, 11, 12, 13, 16, 24, 27
    AP, ACK, ACV, ACO, HS, RD, SUM, PW, QD, CHK, XL, SENT, IDX = 28, 44, 60, 76, 92, 100, 106, 108, 109, 110, 112, 121, 126
    WK, WO, WV = 256, 256 + 128, 128
    RK, RV, RO = 0, 6144, 12288
    S_CI, S_LO1, S_X3 = 54, 55, 57
    A.c("KVO role: 64-column slices of the k, v and output projections of head group S_GRP;")
    A.c("each wave covers a quarter of the rows; slot s of wave w holds column tile w^3^s")
    A("v_mov_b32 v44, v0")
    A("v_mov_b32 v45, v1")
    TID, LANE = 44, 45
    t2, t3, t4 = 46, 47, 50
    A(f"s_sub_u32 {s(S_CI)}, {s(S_TK)}, 8")
    A(f"s_xor_b32 {s(S_X3)}, {s(S_WAVE)}, 3")
    A(f"s_lshl_b32 {s(S_RBASE)}, {s(S_GRP)}, 18")
    A(f"s_add_u32 {s(S_RBASE)}, {s(S_RBASE)}, {L.LRING}")
    A(f"s_lshl_b32 {s(S_FB)}, {s(S_GRP)}, 12")
    A(f"s_add_u32 {s(S_FB)}, {s(S_FB)}, {L.FLAGS}")
    A(f"s_lshl_b32 {s(S_T0)}, {s(S_WAVE)}, 12")
    A(f"v_lshl_add_u32 {v(VG)}, {v(LANE)}, 4, {s(S_T0)}")
    A(f"v_add_u32 {v(VGO)}, 49152, {v(VG)}")
    A(f"s_lshl_b32 {s(S_T0)}, {s(S_CI)}, 10")
    A(f"v_and_b32 {v(t2)}, 0xf0, {v(TID)}")
    A(f"v_lshl_add_u32 {v(PUBM)}, {v(t2)}, 2, {s(S_T0)}")
    A(f"v_and_b32 {v(t2)}, 3, {v(LANE)}")
    A(f"v_lshl_add_u32 {v(PUBM)}, {v(t2)}, 4, {v(PUBM)}")
    A(f"v_and_b32 {v(t2)}, 12, {v(LANE)}")
    A(f"v_add_u32 {v(PUBM)}, {v(PUBM)}, {v(t2)}")
    A(f"v_xor_b32 {v(PUBK)}, {16384 + (4 << 10)}, {v(PUBM)}")
    A(f"s_lshr_b32 {s(S_T1)}, {s(S_WAVE)}, 1")
    A(f"s_lshl_b32 {s(S_T1)}, {s(S_T1)}, 9")
    A(f"s_add_u32 {s(S_T0)}, {s(S_T0)}, {s(S_T1)}")
    A(f"s_and_b32 {s(S_T1)}, {s(S_WAVE)}, 1")
    A(f"s_lshl_b32 {s(S_T1)}, {s(S_T1)}, 2")
    A(f"s_add_u32 {s(S_T0)}, {s(S_T0)}, {s(S_T1)}")
    A(f"s_xor_b32 {s(S_T0)}, {s(S_T0)}, {32768 + (2 << 10)}")
    A(f"v_lshl_add_u32 {v(PUBV)}, {v(LANE)}, 3, {s(S_T0)}")
    A(f"s_lshl_b32 {s(S_T0)}, {s(S_WAVE)}, 8")
    A(f"s_add_u32 {s(S_T0)}, {s(S_T0)}, 2048")
    A(f"v_lshl_add_u32 {v(FOR)}, {v(LANE)}, 2, {s(S_T0)}")
    A(f"s_lshr_b32 {s(S_T0)}, {s(S_CI)}, 2")
    A(f"s_lshl_b32 {s(S_T0)}, {s(S_T0)}, 8")
    A(f"s_and_b32 {s(S_T1)}, {s(S_CI)}, 3")
    A(f"s_lshl_b32 {s(S_T1)}, {s(S_T1)}, 2")
    A(f"s_add_u32 {s(S_T0)}, {s(S_T0)}, {s(S_T1)}")
    A(f"v_min_u32 {v(t2)}, 1, {v(TID)}")
    A(f"v_lshl_add_u32 {v(FMW)}, {v(t2)}, 30, {s(S_T0)}")
    A(f"s_lshr_b32 {s(S_T0)}, {s(S_CI)}, 3")
    A(f"s_lshl_b32 {s(S_T0)}, {s(S_T0)}, 14")
    A(f"s_and_b32 {s(S_T1)}, {s(S_CI)}, 7")
    A(f"s_lshl_b32 {s(S_T1)}, {s(S_T1)}, 10")
    A(f"s_add_u32 {s(S_T0)}, {s(S_T0)}, {s(S_T1)}")
    A(f"s_lshl_b32 {s(S_T1)}, {s(S_GRP)}, 16")
    A(f"s_add_u32 {s(S_T0)}, {s(S_T0)}, {s(S_T1)}")
    A(f"v_lshl_add_u32 {v(XOWN)}, {v(TID)}, 2, {s(S_T0)}")
    for j in range(3):
        A(f"v_xor_b32 {v(XP + j)}, {hex((j + 1) << 16)}, {v(XOWN)}")
    A(f"s_mov_b32 {s(S_LO1)}, 0x00003f80")
    A(f"s_mov_b32 {s(S_LO1 + 1)}, 0x3f800000")
    sparse_index(A, IDX, LANE)
    for i in range(3):
        A(f"s_xor_b32 {s(S_T0)}, {s(S_X3)}, {i}")
        A(f"s_mul_i32 {s(S_T0)}, {s(S_T0)}, 1536")
        A(f"s_add_u32 {s(S_T0)}, {s(S_T0)}, {512 * i}")
        A(f"v_lshl_add_u32 {v(LWS + i)}, {v(LANE)}, 3, {s(S_T0)}")
    A(f"s_mul_i32 {s(S_T0)}, {s(S_WAVE)}, 1536")
    A(f"v_lshl_add_u32 {v(LRX)}, {v(LANE)}, 3, {s(S_T0)}")
    A(f"v_and_b32 {v(t2)}, 1, {v(LANE)}")
    A(f"v_mov_b32 {v(SEL)}, 0x05040100")
    A(f"v_mov_b32 {v(t3)}, 0x03020706")
    A(f"v_cmp_eq_u32 vcc, 1, {v(t2)}")
    A("s_nop 1")
    A(f"v_cndmask_b32 {v(SEL)}, {v(SEL)}, {v(t3)}, vcc")
    A(f"v_lshrrev_b32 {v(t3)}, 4, {v(LANE)}")
    A(f"v_lshl_add_u32 {v(t2)}, {v(t3)}, 1, {v(t2)}")
    A(f"v_and_b32 {v(t3)}, 14, {v(LANE)}")
    A(f"v_lshlrev_b32 {v(t3)}, 1, {v(t3)}")
    A(f"v_lshl_add_u32 v58, {v(t2)}, 11, {v(t3)}")
    A.srd(SW, P_MEM0, SIZE["mem0"])
    for i in range(8):
        A(f"v_mov_b32 {v(HT + i)}, 0")
    A(f"v_mov_b32 {v(SENT)}, -1")
    A.c("'not written' marks in every ring slot this workgroup owns")
    for slot in range(4):
        A(f"s_add_u32 {s(S_T0)}, {s(S_RBASE)}, {slot << 16}")
        for reg in (PUBM, PUBK, PUBV):
            A(f"buffer_store_dword {v(SENT)}, {v(reg)}, {s(SWS, 4)}, {s(S_T0)} offen sc1")
        for k in range(2 * cfg.nrep):
            A(f"s_mov_b32 {s(S_T1)}, {L.XRING + (slot << 18) + ((k & 1) << 13) + ((k >> 1) << 20)}")
            A(f"buffer_store_dword {v(SENT)}, {v(XOWN)}, {s(SWS, 4)}, {s(S_T1)} offen sc1")
    A(f"v_mov_b32 {v(TAGV)}, 1")
    A(f"buffer_store_dword {v(TAGV)}, {v(FMW)}, {s(SWS, 4)}, {s(S_FB)} offen sc1")
    A(f"s_lshl_b32 {s(S_T2)}, {s(S_IRR)}, 16")
    A(f"s_or_b32 {s(S_T2)}, {s(S_T2)}, 1")
    arrive(A, S_T2)
    A(f"s_lshl_b32 {s(S_T0)}, {s(S_CI)}, 2")
    A(f"s_add_u32 {s(S_T0)}, {s(S_T0)}, {s(S_WAVE)}")
    A(f"s_lshl_b32 {s(S_T0)}, {s(S_T0)}, 5")
    A(f"buffer_load_dword v57, v58, {s(SW, 4)}, {s(S_T0)} offen")

    def first():
        A("v_min_u32 v57, -2, v57")
        A(f"buffer_store_dword v57, {v(PUBM)}, {s(SWS, 4)}, {s(S_RBASE)} offen sc1")
    A.c("weights into registers")
    GK, GV, GO, TK, TV, TO = 51, 52, 53, 54, 55, 56
    A(f"s_lshl_b32 {s(S_T2)}, {s(S_X3)}, 5")
    glob_addr(A, GV, LANE, 13, S_T2, t2)
    glob_addr(A, GO, LANE, 11, S_T2, t2)
    A(f"s_and_b32 {s(S_T3)}, {s(S_T2)}, 32")
    A(f"s_lshr_b32 {s(S_T3)}, {s(S_T3)}, 1")
    A(f"s_and_b32 {s(S_T2)}, {s(S_T2)}, 64")
    A(f"s_or_b32 {s(S_T2)}, {s(S_T2)}, {s(S_T3)}")
    glob_addr(A, GK, LANE, 13, S_T2, t2)
    for reg, kind in ((TK, "K"), (TV, "N"), (TO, "O")):
        tr_addr(A, reg, LANE, kind, t2)
    chunks = []
    for ptr, name, base, kind, vg, vt in ((P_WK, "Wk", WK, "K", GK, TK), (P_WV, "Wv", WV, "N", GV, TV), (P_WO, "Wo", WO, "O", GO, TO)):
        for j in range(4):
            def setup(ptr=ptr, name=name, j=j):
                A.srd(SW, ptr, SIZE[name])
                if name == "Wo":
                    A(f"s_lshl_b32 {s(S_T1)}, {s(S_GRP)}, 2")
                    A(f"s_add_u32 {s(S_T1)}, {s(S_T1)}, {s(S_WAVE)}")
                    A(f"s_lshl_b32 {s(S_T1)}, {s(S_T1)}, 19")
                    A(f"s_lshl_b32 {s(S_T0)}, {s(S_CI)}, 7")
                    A(f"s_add_u32 {s(S_T1)}, {s(S_T1)}, {s(S_T0)}")
                    A(f"s_add_u32 {s(S_T1)}, {s(S_T1)}, {j * 64 * 2048}")
                else:
                    A(f"s_lshl_b32 {s(S_T1)}, {s(S_WAVE)}, 21")
                    A(f"s_lshl_b32 {s(S_T0)}, {s(S_GRP)}, 4")
                    A(f"s_add_u32 {s(S_T0)}, {s(S_T0)}, {s(S_CI)}")
                    A(f"s_xor_b32 {s(S_T0)}, {s(S_T0)}, {4 if name == 'Wk' else 2}")
                    A(f"s_lshl_b32 {s(S_T0)}, {s(S_T0)}, 7")
                    A(f"s_add_u32 {s(S_T1)}, {s(S_T1)}, {s(S_T0)}")
                    A(f"s_add_u32 {s(S_T1)}, {s(S_T1)}, {j * 64 * 8192}")
            chunks.append((setup, 2048 if name == "Wo" else 8192, kind, vg, vt,
                           (lambda n, base=base, j=j: base + (j * 4 + n) * 8)))
    if cfg.meet:
        chunks = [chunks[i] for i in (3, 7, 2, 6, 1, 5, 0, 4, 8, 9, 10, 11)]
    load_weights(A, chunks, WFLAG[cfg.wlo], first, cfg.ramp_lo)
    cfg.mark(A, 1)
    await_start(A, end, probed=True)
    for q in range(48):
        A(f"v_mov_b32 {v(ACK + q)}, 0")
    A(f"s_mov_b32 {s(S_STEP)}, 0")
    ring_slots(A)
    slow_lbl = A.new("kvo_sc1")
    A(f"s_cmp_lg_u32 {s(S_IRR)}, 0")
    A(f"s_cbranch_scc1 {slow_lbl}")

    sm = lambda acc, W, j, n: A(f"{SM} {v(acc + 4 * n, 4)}, {v(AP + 4 * j, 4)}, {r(W + (j * 4 + n) * 8, 8)}, {v(IDX)}")

    def ad(acc, n):
        for b in range(2):
            A(f"v_add_f32 {v(HS + 2 * n + b)}, {v(acc + 4 * n + b)}, {v(acc + 4 * n + 2 + b)}")

    def clear_acc():
        for q in range(24):
            A(f"v_pk_mul_f32 {v(ACK + 2 * q, 2)}, 0, 0")
    wr = lambda n, R: A(f"ds_write_b64 {v(LWS + n)}, {v(HS + 2 * n, 2)} offset:{R}")

    def gather(ld):
        for i in range(4):
            ld(i)
            pause(A, cfg, HT, cfg.lspace if i < 3 else cfg.ltail, 4)

    def proj(acc, W, R, vin=0):
        def f(j, lo, hi):
            for n in range(lo, hi):
                sm(acc, W, j, n) if n < 3 else sm(ACV, WV, j, n - 3)

        def last(j):
            for n in range(3):
                sm(acc, W, j, n)
                A("s_nop 1")
            ad(acc, 0)
            sm(acc, W, 0, 3)
            ad(acc, 1)
            wr(0, R)
            ad(acc, 2)
            wr(1, R)
            sm(acc, W, 1, 3)
            wr(2, R)
            sm(acc, W, 2, 3)
            sm(acc, W, 3, 3)
            f(j, 3, 3 + vin)
        sp = min(cfg.ksplit + vin, 3 + vin)
        return (lambda j, rest: f(j, 0, 3 + vin) if rest else last(j)), \
            (lambda j: f(j, 0, sp) if j < 3 else None, lambda j: f(j, sp, 3 + vin) if j < 3 else last(j))

    def collect(acc, R, fill, pad=0, packed=True):
        if packed:
            busy(A, CHK, cfg.fillw)
        A("s_waitcnt lgkmcnt(0)")
        A("s_barrier")
        for i in range(3):
            A(f"ds_read_b64 {v(RD + 2 * i, 2)}, {v(LRX)} offset:{R + 512 * i}")
        A.nop(pad)
        ad(acc, 3)
        fill()
        if packed:
            busy(A, CHK, cfg.fillr)
        A("s_waitcnt lgkmcnt(0)")
        if packed:
            A(f"v_pk_add_f32 {v(RD, 2)}, {v(RD, 2)}, {v(HS + 6, 2)}")
            A(f"v_pk_add_f32 {v(RD + 2, 2)}, {v(RD + 2, 2)}, {v(RD + 4, 2)}")
            A(f"v_pk_add_f32 {v(RD, 2)}, {v(RD, 2)}, {v(RD + 2, 2)}")
        else:
            for b in range(2):
                A(f"v_add_f32 {v(RD + b)}, {v(RD + b)}, {v(HS + 6 + b)}")
                A(f"v_add_f32 {v(RD + 2 + b)}, {v(RD + 2 + b)}, {v(RD + 4 + b)}")
            for b in range(2):
                A(f"v_add_f32 {v(RD + b)}, {v(RD + b)}, {v(RD + 2 + b)}")
        A(f"v_cvt_pk_bf16_f32 {v(PW)}, {v(RD)}, {v(RD + 1)}")

    def to_columns(x):
        A(f"v_mov_b32_dpp {v(QD)}, {v(x)} quad_perm:[1,0,3,2] row_mask:0xf bank_mask:0xf")
        A(f"v_perm_b32 {v(QD)}, {v(QD)}, {v(x)}, {v(SEL)}")

    def body(loc):
        top = A.new("kvo")
        ldm = lambda i: A(f"buffer_load_dwordx4 {v(AP + 4 * i, 4)}, {v(VG)}, {s(SWS, 4)}, {s(S_CUR)} offen offset:{1024 * i} sc1")
        ldo = lambda i: A(f"buffer_load_dwordx4 {v(AP + 4 * i, 4)}, {v(VGO)}, {s(SWS, 4)}, {s(S_CUR)} offen offset:{1024 * i} sc1")
        vq = [(j, n) for n in range(cfg.vin, 4) for j in range(4)]

        def vmf(k):
            for _ in range(k):
                if vq:
                    sm(ACV, WV, *vq.pop(0))

        A.label(top)
        gather(ldm)
        chk4 = lambda i: check(A, AP + 4 * i, 4, CHK)
        onfail = lambda c: (lambda first: count(A, cfg, c) if first else None)
        use, fast = proj(ACK, WK, RK, cfg.vin)
        done, slow1 = fsm_poll(A, 4, ldm, chk4, use, end, fast=fast, onfail=onfail(2))
        A.label(done)
        stamp(A, cfg, 0)
        vmf(cfg.vk)
        collect(ACK, RK, lambda: vmf(cfg.vk2), 3, packed=False)
        A("s_nop 1")
        to_columns(PW)
        A(f"buffer_store_dword {v(QD)}, {v(PUBK)}, {s(SWS, 4)}, {s(S_CUR)} offen{loc}")
        stamp(A, cfg, 1)
        if len(vq) > 4:
            vmf(len(vq) - 4)
            A.nop(max(0, 7 - 3 * cfg.vin))
        left = len(vq)
        vmf(1)
        ad(ACV, 0)
        vmf(1)
        ad(ACV, 1)
        wr(0, RV)
        vmf(1)
        ad(ACV, 2)
        wr(1, RV)
        wr(2, RV)
        vmf(1)
        collect(ACV, RV, lambda: None, 3 if left == 4 else 0)
        A(f"buffer_store_dword {v(PW)}, {v(PUBV)}, {s(SWS, 4)}, {s(S_CUR)} offen{loc}")
        stamp(A, cfg, 2)
        flush_stamps(A, cfg, 8, 124, 125)
        A(f"s_cmp_eq_u32 {s(S_STEP)}, {cfg.nsteps - 1}")
        A(f"s_cbranch_scc1 {end}")
        A(f"v_add_u32 {v(TAGV)}, 1, {v(TAGV)}")
        A(f"s_and_b32 {s(S_T0)}, {s(S_STEP)}, 3")
        x_offsets(A, cfg, S_XC, S_T0)
        flag_wait(A, cfg, FOR, XL, 2, end)
        A.nop(cfg.fo_wait)
        if cfg.fine >= 6:
            stamp(A, cfg, 6)
        gather(ldo)
        use, fast = proj(ACO, WO, RO)
        seen = []

        def chk4o(i):
            if len(seen) < 4 and cfg.fine == 10 + i:
                stamp(A, cfg, 7)
            seen.append(i)
            chk4(i)
        done, slow2 = fsm_poll(A, 4, ldo, chk4o, use, end, fast=fast, onfail=onfail(3))
        A.label(done)
        stamp(A, cfg, 3)
        collect(ACO, RO, lambda: None, 3)
        A.c("exchange of partial sums with the other groups")
        for rr in range(cfg.nrep):
            A(f"buffer_store_dword {v(PW)}, {v(XOWN)}, {s(SWS, 4)}, {s(S_XC + rr)} offen sc1")
        stamp(A, cfg, 4)
        for reg in (PUBK, PUBV, PUBM):
            A(f"buffer_store_dword {v(SENT)}, {v(reg)}, {s(SWS, 4)}, {s(S_RST)} offen{loc}")
        A(f"v_lshlrev_b32 {v(SUM)}, 16, {v(PW)}")
        A(f"v_and_b32 {v(SUM + 1)}, 0xffff0000, {v(PW)}")
        A(f"s_add_u32 {s(S_STEP)}, {s(S_STEP)}, 1")
        ring_slots(A)

        def ldx(k):
            for j in range(3):
                A(f"buffer_load_dword {v(XL + 3 * (k % 3) + j)}, {v(XP + j)}, {s(SWS, 4)}, {s(S_XC + k % cfg.nrep)} offen sc1")
        events = sorted([(cfg.xdelay, 0), (cfg.xdelay + cfg.xgap, 1), (cfg.xdelay + cfg.xgap + cfg.xgap2, 2), (cfg.fm_delay, 3)])
        now = 0
        for t, e in events:
            pause(A, cfg, HT, max(0, t - now), 1)
            now = max(now, t)
            if e == 0 and cfg.fine < 6:
                stamp(A, cfg, 6)
            if e < 3:
                ldx(e)
                if e == 0:
                    clear_acc()
                    now += 8
            else:
                A(f"buffer_store_dword {v(TAGV)}, {v(FMW)}, {s(SWS, 4)}, {s(S_FB)} offen{loc}")
        heat(A, HT, cfg.xfill)
        x2, xsum = A.new("x2"), A.new("xs")

        def final(x):
            for j in range(3):
                for i in range(2):
                    A(f"v_dot2_f32_bf16 {v(RD + i)}, {v(x + j)}, {s(S_LO1 + i)}, {v((RD if j else SUM) + i)}")
            A(f"v_max3_u32 {v(CHK)}, {v(x)}, {v(x + 1)}, {v(x + 2)}")
            A(f"v_cmp_eq_u32 vcc, -1, {v(CHK)}")
            A("s_nop 0")
            A(f"v_cvt_pk_bf16_f32 {v(RD)}, {v(RD)}, {v(RD + 1)}")
            A("s_nop 1")
            to_columns(RD)
        A(f"s_waitcnt vmcnt({7 if cfg.fm_delay >= cfg.xdelay else 6})")
        if cfg.fine < 10:
            stamp(A, cfg, 7)
        final(XL)
        A(f"s_cbranch_vccnz {x2}")
        A.label(xsum)
        A(f"buffer_store_dword {v(QD)}, {v(PUBM)}, {s(SWS, 4)}, {s(S_CUR)} offen{loc}")
        stamp(A, cfg, 5)
        pause(A, cfg, HT, cfg.mdelay, 3)
        A(f"s_branch {top}")
        A.label(x2)
        count(A, cfg, 0)
        for k in range(6):
            ldx(k + 3)
            A("s_waitcnt vmcnt(6)")
            final(XL + 3 * ((k + 1) % 3))
            A(f"s_cbranch_vccz {xsum}")
            count(A, cfg, 1)
        spend(A, end)
        A(f"s_branch {x2}")
        slow1()
        slow2()

    A.c("all members of the group share one L2: hand-offs inside the group use plain stores")
    body("")
    A.label(slow_lbl)
    A.c("some member runs on another die: every hand-off is written through")
    body(" sc1")


def q_role(A, cfg, end):
    WIN = 0
    VG, VK, VVA, VVB, VO, IDX, LR, QW, QR, LWS = 10, 11, 12, 13, 14, 15, 18, 19, 20, 211
    PFG, RDK, RDQ, RDVA, RDVB, OTA, OTB = 21, 22, 23, 24, 25, 26, 27
    FMR, FOW, FBUF, TAGV, XCL, POW, PQA, PQV, PQB = 192, 193, 194, 197, 198, 199, 208, 209, 210
    SENT, ONES, BIAS, CHK, T1, T2, T3 = 28, 32, 36, 44, 45, 46, 47
    AP, ACQ = 48, 64
    SX, SMM, RD, PX, LA, TM = 64, 72, 76, 76, 84, 88
    QOP, OA, KC, VM, PK = 96, 96, 112, 120, 124
    ST = 128
    SLOT0, SLOTX = 32768, 0x18000
    WQ = 256
    RQ, RB, HS = 0, 12288, 96
    HT = 200
    TID, LANE = 48, 49
    S_HEAD, S_PARW, S_EH, S_LDS, S_PQ, S_NEED = 54, 55, 56, 57, 58, 27
    A.c("Q role: q projection and attention of one head")
    if (cfg.gate or cfg.gate2 or cfg.gate3) and not cfg.gate_entry:
        A("s_memrealtime s[90:91]")
    A(f"v_mov_b32 {v(TID)}, v0")
    A(f"v_mov_b32 v50, v1")
    LANE = 50
    A(f"s_lshl_b32 {s(S_HEAD)}, {s(S_GRP)}, 3")
    A(f"s_add_u32 {s(S_HEAD)}, {s(S_HEAD)}, {s(S_TK)}")
    A(f"s_and_b32 {s(S_PARW)}, {s(S_WAVE)}, 1")
    A(f"s_lshr_b32 {s(S_EH)}, {s(S_WAVE)}, 1")
    A(f"s_lshl_b32 {s(S_RBASE)}, {s(S_GRP)}, 18")
    A(f"s_add_u32 {s(S_RBASE)}, {s(S_RBASE)}, {L.LRING}")
    A(f"s_lshl_b32 {s(S_T0)}, {s(S_WAVE)}, 12")
    A(f"v_lshl_add_u32 {v(VG)}, {v(LANE)}, 4, {s(S_T0)}")
    A(f"s_lshl_b32 {s(S_T0)}, {s(S_TK)}, 11")
    A(f"s_add_u32 {s(S_T1)}, {s(S_T0)}, 16384")
    A(f"v_lshl_add_u32 {v(VK)}, {v(LANE)}, 4, {s(S_T1)}")
    A(f"s_lshl_b32 {s(S_T1)}, {s(S_EH)}, 10")
    A(f"s_add_u32 {s(S_T0)}, {s(S_T0)}, {s(S_T1)}")
    A(f"s_lshl_b32 {s(S_T1)}, {s(S_PARW)}, 9")
    A(f"s_add_u32 {s(S_T1)}, {s(S_T1)}, {s(S_T0)}")
    A(f"s_add_u32 {s(S_T1)}, {s(S_T1)}, 32768")
    A(f"v_lshl_add_u32 {v(VVA)}, {v(LANE)}, 3, {s(S_T1)}")
    A(f"v_xor_b32 {v(VVB)}, 512, {v(VVA)}")
    A(f"s_add_u32 {s(S_T1)}, {s(S_T1)}, 16384")
    A(f"v_mov_b32 {v(VO)}, {s(S_T1)}")
    for bit, width, sh in ((5, 1, 8), (1, 2, 6), (4, 1, 5), (0, 1, 4), (3, 1, 30)):
        A(f"v_bfe_u32 v51, {v(LANE)}, {bit}, {width}")
        A(f"v_lshl_add_u32 {v(VO)}, v51, {sh}, {v(VO)}")
    sparse_index(A, IDX, LANE)
    for i in range(8):
        A(f"v_mov_b32 {v(HT + i)}, 0")
    for i in range(3):
        A(f"s_xor_b32 {s(S_T0)}, {s(S_WAVE)}, {3 ^ i}")
        A(f"s_mul_i32 {s(S_T0)}, {s(S_T0)}, 3072")
        A(f"s_add_u32 {s(S_T0)}, {s(S_T0)}, {1024 * i}")
        A(f"v_lshl_add_u32 {v(LWS + i)}, {v(LANE)}, 4, {s(S_T0)}")
    A(f"s_mul_i32 {s(S_T0)}, {s(S_WAVE)}, 3072")
    A(f"v_lshl_add_u32 {v(LR)}, {v(LANE)}, 4, {s(S_T0)}")
    A(f"s_lshl_b32 {s(S_T0)}, {s(S_WAVE)}, 9")
    A(f"v_and_b32 v51, 15, {v(LANE)}")
    A(f"v_lshl_add_u32 {v(QW)}, v51, 4, {s(S_T0)}")
    A(f"v_lshrrev_b32 v51, 4, {v(LANE)}")
    A(f"v_lshl_add_u32 {v(QW)}, v51, 2, {v(QW)}")
    A(f"v_lshrrev_b32 v51, 2, {v(LANE)}")
    A(f"v_and_b32 v52, 1, {v(LANE)}")
    A(f"v_lshlrev_b32 v52, 3, v52")
    A(f"v_lshl_add_u32 {v(QR)}, v51, 4, v52")
    A(f"v_lshlrev_b32 v51, 4, {v(LANE)}")
    A(f"s_mul_i32 {s(S_T0)}, {s(S_WAVE)}, 6144")
    A(f"v_add_u32 {v(PFG)}, {s(S_T0)}, v51")
    A(f"s_add_u32 {s(S_LDS)}, {s(S_T0)}, {SLOT0}")
    A(f"v_add_u32 {v(RDK)}, {SLOT0 + 8192}, v51")
    A(f"s_lshl_b32 {s(S_T0)}, {s(S_PARW)}, 12")
    A(f"s_add_u32 {s(S_T0)}, {s(S_T0)}, {SLOT0}")
    A(f"v_add_u32 {v(RDQ)}, {s(S_T0)}, v51")
    A(f"s_lshl_b32 {s(S_T0)}, {s(S_WAVE)}, 11")
    A(f"s_add_u32 {s(S_T0)}, {s(S_T0)}, {SLOT0 + 16384}")
    A(f"v_add_u32 {v(RDVA)}, {s(S_T0)}, v51")
    A(f"v_xor_b32 {v(RDVB)}, 2048, {v(RDVA)}")
    A(f"s_lshl_b32 {s(S_FB)}, {s(S_GRP)}, 12")
    A(f"s_add_u32 {s(S_FB)}, {s(S_FB)}, {L.FLAGS}")
    A(f"s_lshl_b32 {s(S_T0)}, {s(S_WAVE)}, 8")
    A(f"v_lshl_add_u32 {v(FMR)}, {v(LANE)}, 2, {s(S_T0)}")
    A(f"s_lshr_b32 {s(S_T0)}, {s(S_TK)}, 1")
    A(f"s_lshl_b32 {s(S_T0)}, {s(S_T0)}, 8")
    A(f"s_and_b32 {s(S_T1)}, {s(S_TK)}, 1")
    A(f"s_lshl_b32 {s(S_T1)}, {s(S_T1)}, 2")
    A(f"s_add_u32 {s(S_T0)}, {s(S_T0)}, {s(S_T1)}")
    A(f"s_add_u32 {s(S_T0)}, {s(S_T0)}, 2048")
    A(f"v_min_u32 v52, 1, {v(TID)}")
    A(f"v_lshl_add_u32 {v(FOW)}, v52, 30, {s(S_T0)}")
    A(f"v_mov_b32 {v(TAGV)}, 0")
    A(f"buffer_store_dword {v(TAGV)}, {v(FOW)}, {s(SWS, 4)}, {s(S_FB)} offen sc1")
    XN = 2 if cfg.xbf else 4
    A(f"s_lshr_b32 {s(S_T0)}, {s(S_TK)}, {2 if cfg.xbf else 1}")
    A(f"s_lshl_b32 {s(S_T0)}, {s(S_T0)}, 14")
    A(f"s_and_b32 {s(S_T1)}, {s(S_TK)}, {3 if cfg.xbf else 1}")
    A(f"s_lshl_b32 {s(S_T1)}, {s(S_T1)}, {11 if cfg.xbf else 12}")
    A(f"s_add_u32 {s(S_T0)}, {s(S_T0)}, {s(S_T1)}")
    A(f"s_lshl_b32 {s(S_T1)}, {s(S_GRP)}, 16")
    A(f"s_add_u32 {s(S_T0)}, {s(S_T0)}, {s(S_T1)}")
    A(f"v_lshl_add_u32 {v(XCL)}, {v(TID)}, {3 if cfg.xbf else 4}, {s(S_T0)}")
    A(f"s_lshl_b32 {s(S_T0)}, {s(S_HEAD)}, 2")
    A(f"s_add_u32 {s(S_T0)}, {s(S_T0)}, {s(S_WAVE)}")
    A(f"s_lshl_b32 {s(S_T0)}, {s(S_T0)}, 11")
    A(f"s_lshl_b32 {s(S_T1)}, {s(S_PARW)}, 10")
    A(f"s_add_u32 {s(S_T0)}, {s(S_T0)}, {s(S_T1)}")
    A(f"v_add_u32 {v(OTA)}, {s(S_T0)}, v51")
    A(f"v_xor_b32 {v(OTB)}, 2048, {v(OTA)}")
    progress_addr(A, POW, LANE, L.PO, S_HEAD, 52)
    A(f"buffer_store_dword {v(TAGV)}, {v(POW)}, {s(SWS, 4)}, 0 offen sc1")
    lines_addr(A, 53, LANE, 16)
    A(f"s_lshr_b32 {s(S_T0)}, {s(S_HEAD)}, 2")
    A(f"s_lshl_b32 {s(S_T0)}, {s(S_T0)}, 10")
    A(f"s_add_u32 {s(S_T0)}, {s(S_T0)}, {L.PQ}")
    A(f"v_add_u32 {v(PQA)}, {s(S_T0)}, v53")
    A(f"s_lshl_b32 {s(S_T0)}, {s(S_GRP)}, 10")
    A(f"s_add_u32 {s(S_T0)}, {s(S_T0)}, {L.PB - 1024}")
    A(f"v_add_u32 v53, {s(S_T0)}, v53")
    A(f"v_cmp_lt_u32 vcc, 7, {v(LANE)}")
    A("s_nop 1")
    A(f"v_cndmask_b32 {v(PQA)}, {v(PQA)}, v53, vcc")
    A(f"v_cndmask_b32 {v(PQB)}, 0, 8, vcc")
    for i in range(4):
        A(f"v_mov_b32 {v(SENT + i)}, -1")
        A(f"v_mov_b32 {v(ONES + i)}, 0x3f803f80")
    A(f"v_and_b32 v51, 15, {v(LANE)}")
    A(f"s_lshl_b32 {s(S_T0)}, {s(S_PARW)}, 4")
    A(f"v_add_u32 v51, {s(S_T0)}, v51")
    A(f"v_lshrrev_b32 v52, 4, {v(LANE)}")
    A(f"v_lshlrev_b32 v52, 2, v52")
    A(f"v_mov_b32 v54, 0xf149f2ca")
    for T in range(2):
        for q in range(4):
            A(f"v_add_u32 v53, {16 * T + q}, v52")
            A(f"v_cmp_gt_u32 vcc, v53, v51")
            A("s_nop 1")
            A(f"v_cndmask_b32 {v(BIAS + 4 * T + q)}, 0, v54, vcc")
    for i in range(10):
        A(f"v_mov_b32 {v(WIN + i)}, 0")
    A(f"s_mov_b32 {s(S_C)}, 0x3e0293ee")
    A(f"s_mov_b32 {s(S_NC)}, 0xbe0293ee")
    for slot in range(4):
        A(f"s_add_u32 {s(S_T0)}, {s(S_RBASE)}, {slot << 16}")
        A(f"buffer_store_dwordx4 {v(SENT, 4)}, {v(VO)}, {s(SWS, 4)}, {s(S_T0)} offen sc1")
    A(f"s_lshl_b32 {s(S_T2)}, {s(S_IRR)}, 16")
    A(f"s_or_b32 {s(S_T2)}, {s(S_T2)}, 1")
    arrive(A, S_T2)
    for hf in range(2):
        A(f"s_xor_b32 {s(S_T2)}, {s(S_WAVE)}, {3 ^ (2 * hf)}")
        A(f"s_lshl_b32 {s(S_T2)}, {s(S_T2)}, 6")
        glob_addr(A, 51 + hf, LANE, 13, S_T2, 54)
    tr_addr(A, 53, LANE, "N", 54)
    A.srd(SW, P_WQ, SIZE["Wq"])
    chunks = []
    for j in range(4):
        for hf in range(2):
            def setup(j=j):
                A(f"s_lshl_b32 {s(S_T1)}, {s(S_WAVE)}, 21")
                A(f"s_lshl_b32 {s(S_T0)}, {s(S_HEAD)}, 8")
                A(f"s_add_u32 {s(S_T1)}, {s(S_T1)}, {s(S_T0)}")
                A(f"s_add_u32 {s(S_T1)}, {s(S_T1)}, {j * 64 * 8192}")
            chunks.append((setup, 8192, "N", 51 + hf, 53, (lambda n, j=j, hf=hf: WQ + (j * 8 + hf * 4 + n) * 8)))
    load_weights(A, chunks[::-1] if cfg.meet else chunks, WFLAG[cfg.wlo], None, cfg.ramp_lo)
    cfg.mark(A, 1)
    noprobe = A.new("np")
    A(f"s_cmp_lg_u32 {s(S_HEAD)}, 0")
    A(f"s_cbranch_scc1 {noprobe}")
    A("s_barrier")
    A(f"s_mov_b32 {s(S_T2)}, 0x2000000")
    probe(A, LANE, S_T2, cfg.marks)
    arrive(A, S_T2)
    A.label(noprobe)
    await_start(A, end)
    A.c("bring one eighth of the group's rings into L2")
    A(f"s_lshl_b32 {s(S_T0)}, {s(S_TK)}, 15")
    A(f"s_add_u32 {s(S_T0)}, {s(S_T0)}, {s(S_RBASE)}")
    A(f"s_add_u32 {s(S_T1)}, {s(S_T0)}, 16384")
    for i in range(8):
        A(f"buffer_load_dwordx4 {v(ACQ + 4 * i, 4)}, {v(VG)}, {s(SWS, 4)}, {s(S_T0 + (i >> 2))} offen offset:{1024 * (i & 3)} sc1")
    await_start(A, end, probed=True)
    cfg.mark(A, 2)
    gate(A, cfg.gate)
    A(f"s_mul_i32 {s(S_PF)}, {s(S_HEAD)}, 24576")
    A(f"s_add_u32 {s(S_PF)}, {s(S_PF)}, {L.QKV}")
    A(f"s_mov_b32 {s(S_STEP)}, 0")

    def prefetch_parts(src):
        ld = lambda so, j: f"buffer_load_dwordx4 {v(PFG)}, {s(SWS, 4)}, {s(so)} offen offset:{1024 * j} sc1 lds"
        return [f"s_mov_b32 m0, {s(S_LDS)}\ns_add_u32 {s(S_T2)}, {s(src)}, 3072\n" + ld(src, 0), ld(src, 1), ld(src, 2),
                f"s_add_u32 m0, {s(S_LDS)}, 3072\ns_xor_b32 {s(S_LDS)}, {s(S_LDS)}, {SLOTX}\n" + ld(S_T2, 0), ld(S_T2, 1),
                ld(S_T2, 2) + f"\ns_add_u32 {s(S_PF)}, {s(S_PF)}, {32 * 24576}"]

    def prefetch():
        for x in prefetch_parts(S_PF):
            A(x)

    def operands():
        for i in range(8):
            A(f"ds_read_b128 {v(ST + 4 * i, 4)}, {v(RDK)} offset:{1024 * i}")
        for p, reg in ((0, RDVA), (1, RDVB)):
            for t in range(2):
                A(f"ds_read_b128 {v(ST + 32 + 8 * p + 4 * t, 4)}, {v(reg)} offset:{1024 * t}")
        for ks in range(4):
            A(f"ds_read_b128 {v(ST + 48 + 4 * ks, 4)}, {v(RDQ)} offset:{1024 * ks}")
        for reg in (RDK, RDVA, RDVB, RDQ):
            A(f"v_xor_b32 {v(reg)}, {SLOTX}, {v(reg)}")

    ldpq = lambda: A(f"buffer_load_dword {v(PQV)}, {v(PQA)}, {s(SWS, 4)}, 0 offen sc1")

    def tstpq():
        A(f"v_add_u32 {v(CHK)}, {v(PQV)}, {v(PQB)}")
        A(f"v_cmp_gt_u32 vcc, {s(S_NEED)}, {v(CHK)}")
    A(f"s_mov_b32 {s(S_NEED)}, 1")
    if not cfg.solo:
        block_on(A, ldpq, tstpq, end)
    prefetch()
    slow_lbl = A.new("q_sc1")
    A(f"s_cmp_lg_u32 {s(S_IRR)}, 0")
    A(f"s_cbranch_scc1 {slow_lbl}")

    def score_x(qreg, bias, before=None):
        for ks in range(4):
            if before:
                before(ks)
            for T in range(2):
                c = v(SX + 4 * T, 4) if ks else (v(BIAS + 4 * T, 4) if bias else "0")
                A(f"{MF} {v(SX + 4 * T, 4)}, {v(ST + 16 * T + 4 * ks, 4)}, {v(qreg + 4 * ks, 4)}, {c}")

    def max_x():
        A(f"v_max3_f32 {v(T1)}, {v(SX)}, {v(SX + 1)}, {v(SX + 2)}")
        A(f"v_max3_f32 {v(T1)}, {v(T1)}, {v(SX + 3)}, {v(SX + 4)}")
        A(f"v_max3_f32 {v(T1)}, {v(T1)}, {v(SX + 5)}, {v(SX + 6)}")
        A(f"v_max_f32 {v(T1)}, {v(T1)}, {v(SX + 7)}")

    def softmax(hook=lambda pos: None):
        A(f"v_pk_add_f32 {v(SMM, 2)}, {v(SMM, 2)}, {v(SMM + 2, 2)}")
        A(f"v_max3_f32 {v(T2)}, {v(T1)}, {v(SMM)}, {v(SMM + 1)}")
        A(f"v_max3_f32 {v(T3)}, {v(T1)}, {v(SMM)}, {v(SMM + 1)}")
        if not hook(0):
            A("s_nop 1")
        A(f"v_permlane32_swap_b32 {v(T2)}, {v(T3)}")
        A(f"v_max_f32 {v(T1)}, {v(T2)}, {v(T3)}")
        A(f"v_max_f32 {v(T2)}, {v(T2)}, {v(T3)}")
        A("s_nop 1")
        A(f"v_permlane16_swap_b32 {v(T1)}, {v(T2)}")
        A(f"v_max_f32 {v(T1)}, {v(T1)}, {v(T2)}")
        A(f"v_mul_f32 {v(T2)}, {s(S_NC)}, {v(T1)}")
        hook(1)
        for i in range(5):
            A(f"v_pk_fma_f32 {v(SX + 2 * i, 2)}, {v(SX + 2 * i, 2)}, {s(S_C, 2)}, {v(T2, 2)} op_sel_hi:[1,0,0]")
        for i in range(10):
            A(f"v_exp_f32 {v(SX + i)}, {v(SX + i)}")
            if i == 4:
                hook(2)
        hook(3)
        for i in range(4):
            A(f"v_cvt_pk_bf16_f32 {v(PX + i)}, {v(SX + 2 * i)}, {v(SX + 2 * i + 1)}")
        A(f"v_cvt_pk_bf16_f32 {v(WIN + 2)}, {v(SMM)}, {v(SMM + 1)}")
        A(f"v_cvt_pk_bf16_f32 {v(WIN + 7)}, {v(SMM)}, {v(SMM + 1)}")

    WOFF = (2, 6, 0, 4)

    def scale(n):
        for i in range(n // 2):
            A(f"v_pk_mul_f32 {v(OA + 2 * i, 2)}, {v(OA + 2 * i, 2)}, {v(T2, 2)} op_sel_hi:[1,0]")

    def pv(nt, pre=None, post=None, hook=lambda pos: None):
        A(f"{MF} {v(LA, 4)}, {v(ONES, 4)}, {v(PX, 4)}, 0")
        A(f"{MF} {v(LA, 4)}, {v(ONES, 4)}, {v(WIN + WOFF[0], 4)}, {v(LA, 4)}")
        for t in range(nt):
            if pre and t == cfg.vchk:
                pre()
            A(f"{MF} {v(OA + 4 * t, 4)}, {v(ST + 32 + 4 * t, 4)}, {v(PX, 4)}, 0")
        if post:
            post()
        hook(5)
        for t in range(nt):
            A(f"{MF} {v(OA + 4 * t, 4)}, {v(VM, 4)}, {v(WIN + WOFF[t], 4)}, {v(OA + 4 * t, 4)}")
        hook(6)
        A(f"v_rcp_f32 {v(T2)}, {v(LA)}")
        A.nop(8 - nt)

    def body(loc):
        top = A.new("q")
        ldm = lambda i: A(f"buffer_load_dwordx4 {v(AP + 4 * i, 4)}, {v(VG)}, {s(SWS, 4)}, {s(S_CUR)} offen offset:{1024 * i} sc1")
        ldk = lambda i: A(f"buffer_load_dwordx4 {v(AP + 4 * i, 4)}, {v(VK)}, {s(SWS, 4)}, {s(S_CUR)} offen offset:{1024 * (i & 1)} sc1")

        def ldv():
            A(f"buffer_load_dwordx2 {v(VM, 2)}, {v(VVA)}, {s(SWS, 4)}, {s(S_CUR)} offen sc1")
            A(f"buffer_load_dwordx2 {v(VM + 2, 2)}, {v(VVB)}, {s(SWS, 4)}, {s(S_CUR)} offen sc1")
        A.label(top)
        far = A.new("qf")
        A.c("the first segments are fetched one step ahead, later ones two steps ahead")
        A(f"s_cmp_gt_u32 {s(S_STEP)}, {cfg.near + 1}")
        A(f"s_cbranch_scc1 {far}")
        A("s_waitcnt vmcnt(0)")
        A("s_barrier")
        A.label(far)
        operands()
        ring_slots(A)
        for q in range(16):
            A(f"v_pk_mul_f32 {v(ACQ + 2 * q, 2)}, 0, 0")
        A.c("the previous segment's token rows are acknowledged: publish them")
        A("s_waitcnt vmcnt(0)")
        A(f"buffer_store_dword {v(TAGV)}, {v(POW)}, {s(SWS, 4)}, 0 offen{loc}")
        A(f"v_add_u32 {v(TAGV)}, 1, {v(TAGV)}")
        if cfg.use_fm:
            flag_wait(A, cfg, FMR, 216, 4, end)
        if cfg.fine == 6:
            stamp(A, cfg, 6)
        for i in range(4):
            ldm(i)
            pause(A, cfg, HT, cfg.lspace if i < 3 else cfg.ltail, 4)

        fq = lambda j, lo, hi: [A(f"{SM} {v(ACQ + 4 * n, 4)}, {v(AP + 4 * j, 4)}, {r(WQ + (j * 8 + n) * 8, 8)}, {v(IDX)}")
                                for n in range(lo, hi)]
        chk4 = lambda i: check(A, AP + 4 * i, 4, CHK)

        def ad(n):
            for b in range(2):
                A(f"v_add_f32 {v(HS + 2 * n + b)}, {v(ACQ + 4 * n + b)}, {v(ACQ + 4 * n + 2 + b)}")
        wr = lambda p: A(f"ds_write_b128 {v(LWS + p)}, {v(HS + 4 * p, 4)} offset:{RQ}")

        own = lambda i: fq(i & 3, 6 + (i >> 2), 7 + (i >> 2))

        def last(j):
            for n in range(6):
                fq(j, n, n + 1)
                ad(n - 3) if n >= 3 else A("s_nop 1")
            wr(0)
            own(0)
            ad(3)
            ad(4)
            wr(1)
            own(1)
            ad(5)
            wr(2)

        def last_two():
            for n in range(6):
                fq(2, n, n + 1)
                ad(n - 2) if n >= 2 else A("s_nop 1")
                fq(3, n, n + 1)
                if n in (3, 5):
                    wr((n - 3) >> 1)
                    A("s_nop 0")
                else:
                    A("s_nop 1")
            own(0)
            ad(4)
            own(1)
            A("s_nop 1")
            ad(5)
            wr(2)
        fast = (lambda j: fq(j, 0, cfg.qsplit) if j < 3 else None, lambda j: fq(j, cfg.qsplit, 6) if j < 3 else last(j))
        if cfg.qjoint:
            fast += (lambda: check(A, AP + 8, 8, CHK), last_two)
        done, slow1 = fsm_poll(A, 4, ldm, chk4, lambda j, rest: fq(j, 0, 6) if rest else last(j), end, fast=fast,
                               onfail=lambda first: count(A, cfg, 2) if first else None)
        A.label(done)
        stamp(A, cfg, 0)
        for i in range(2, 2 + cfg.qown):
            own(i)
        A("s_waitcnt lgkmcnt(0)")
        A("s_barrier")
        fine(A, cfg, 1, 1)
        for p in range(3):
            A(f"ds_read_b128 {v(RD + 4 * p, 4)}, {v(LR)} offset:{RQ + 1024 * p}")
        for i in range(2 + cfg.qown, 8):
            own(i)
        for i in range(4):
            A(f"v_mov_b32 {v(SMM + i)}, 0")

        def ldkc():
            for p in range(2):
                A(f"buffer_load_dwordx4 {v(KC + 4 * p, 4)}, {v(VK)}, {s(SWS, 4)}, {s(S_CUR)} offen offset:{1024 * p} sc1")
        if cfg.kpos == 0:
            ldkc()
        ad(6)
        A("s_nop 1")
        ad(7)
        A("s_waitcnt lgkmcnt(0)")
        fine(A, cfg, 0, 2)
        for h2 in range(2):
            A(f"v_pk_add_f32 {v(RD + 2 * h2, 2)}, {v(RD + 2 * h2, 2)}, {v(HS + 12 + 2 * h2, 2)}")
            A(f"v_pk_add_f32 {v(RD + 4 + 2 * h2, 2)}, {v(RD + 4 + 2 * h2, 2)}, {v(RD + 8 + 2 * h2, 2)}")
        for h2 in range(2):
            A(f"v_pk_add_f32 {v(RD + 2 * h2, 2)}, {v(RD + 2 * h2, 2)}, {v(RD + 4 + 2 * h2, 2)}")
        A(f"v_cvt_pk_bf16_f32 {v(RD)}, {v(RD)}, {v(RD + 1)}")
        A(f"v_cvt_pk_bf16_f32 {v(RD + 1)}, {v(RD + 2)}, {v(RD + 3)}")
        A(f"ds_write2st64_b32 {v(QW)}, {v(RD)}, {v(RD + 1)} offset0:{RB // 256} offset1:{RB // 256 + 1}")
        fine(A, cfg, 1, 2)
        if cfg.kpos == 1:
            ldkc()
        busy(A, CHK, cfg.qfw2)
        A("s_waitcnt lgkmcnt(0)")
        A("s_barrier")
        for i in range(8):
            A(f"ds_read_b64_tr_b16 {v(QOP + 2 * i, 2)}, {v(QR)} offset:{RB + 256 * i}")
        if cfg.kpos == 2:
            ldkc()

        def qwait(ks):
            A(f"s_waitcnt lgkmcnt({6 - 2 * ks})")
            if ks in (1, 2):
                ldk(ks - 1)
            if ks == 3:
                fine(A, cfg, 0, 3)
                A("s_waitcnt vmcnt(2)")
                fine(A, cfg, 1, 3)
                check(A, KC, 8, CHK)
        score_x(QOP, False, qwait)
        stamp(A, cfg, 1)
        kre, kok = A.new("kr"), A.new("ko")
        A(f"s_cbranch_vccnz {kre}")
        for p in range(2):
            A(f"{SM} {v(SMM, 4)}, {v(KC + 4 * p, 4)}, {v(QOP + 8 * p, 8)}, {v(IDX)}")
        A.label(kok)
        stamp(A, cfg, 2)
        if cfg.vpos < 0:
            ldv()
        A.nop(4 if cfg.vpos >= 0 else 2)
        max_x()

        def hook(pos):
            if pos in (1, 3):
                fine(A, cfg, pos >> 1, 4)
            if pos in (4, 6):
                fine(A, cfg, (pos - 4) >> 1, 5)
            if pos == cfg.vpos:
                ldv()
            if cfg.use_fo and pos == cfg.fo_pos:
                A(f"buffer_store_dword {v(TAGV)}, {v(FOW)}, {s(SWS, 4)}, {s(S_FB)} offen{loc}")
            return pos == cfg.vpos
        softmax(hook)
        vre, vok = A.new("vr"), A.new("vo")

        def wait_v():
            A(f"s_waitcnt vmcnt({1 if cfg.use_fo and 4 >= cfg.fo_pos >= cfg.vpos else 0})")
            check(A, VM, 4, CHK)

        def test_v():
            A(f"s_cbranch_vccnz {vre}")
            A.label(vok)
        hook(4)
        pv(2, wait_v, test_v, hook)
        scale(8)
        for i in range(4):
            A(f"v_cvt_pk_bf16_f32 {v(PK + i)}, {v(OA + 2 * i)}, {v(OA + 2 * i + 1)}")
        A(f"buffer_store_dwordx4 {v(PK, 4)}, {v(VO)}, {s(SWS, 4)}, {s(S_CUR)} offen{loc}")
        stamp(A, cfg, 3)
        A.c("off the recurrence path: operands of segment s+2, token rows of this segment")
        A("s_barrier")
        A(f"buffer_store_dwordx4 {v(SENT, 4)}, {v(VO)}, {s(SWS, 4)}, {s(S_RST)} offen{loc}")
        pqw, pqok, twice, once = A.new("pw"), A.new("pk"), A.new("p2"), A.new("p1")
        A(f"s_cmp_eq_u32 {s(S_STEP)}, {cfg.near}")
        A(f"s_cbranch_scc1 {twice}")
        A.label(once)
        A(f"s_add_u32 {s(S_NEED)}, {s(S_NEED)}, 1")
        A(f"s_min_u32 {s(S_NEED)}, {s(S_NEED)}, {cfg.nsteps}")
        if not cfg.solo:
            tstpq()
        for i in range(4):
            A(f"v_mov_b32 {v(SMM + i)}, 0")
        A(f"s_add_u32 {s(S_T0)}, {s(S_STEP)}, 2")
        A(f"s_and_b32 {s(S_T0)}, {s(S_T0)}, 3")
        x_offsets(A, cfg, S_XR, S_T0)
        A(f"s_cmp_lt_u32 {s(S_STEP)}, {cfg.nsteps - 2}")
        A(f"s_cselect_b32 {s(S_T3)}, {s(S_PF)}, 0x70000000")
        if not cfg.solo:
            A(f"s_cbranch_vccnz {pqw}")
            A.label(pqok)
        side = [f"buffer_store_dwordx{XN} {v(SENT, XN)}, {v(XCL)}, {s(SWS, 4)}, {s(S_XR + rr)} offen sc1" for rr in range(cfg.nrep)]
        side = ["\n".join(side)] + prefetch_parts(S_T3)
        if not cfg.solo:
            side[-1] += f"\nbuffer_load_dword {v(PQV)}, {v(PQA)}, {s(SWS, 4)}, 0 offen sc1"

        def aside(pos=None):
            if side:
                A(side.pop(0))
        score_x(ST + 48, True, lambda ks: aside() if ks in (0, 1, 3) else None)
        for p in range(2):
            A(f"{SM} {v(SMM, 4)}, {v(KC + 4 * p, 4)}, {v(ST + 48 + 8 * p, 8)}, {v(IDX)}")
        A(f"s_and_b32 {s(S_T0)}, {s(S_STEP)}, {63 if cfg.solo else 7}")
        A(f"s_lshl_b32 {s(S_T0)}, {s(S_T0)}, 18")
        A(f"s_add_u32 {s(S_OT)}, {s(S_T0)}, {L.OTOK}")
        aside()
        A.nop(2)
        max_x()
        softmax(lambda pos: aside() if pos else None)
        assert not side
        pv(4)
        scale(16)
        for i in range(8):
            A(f"v_cvt_pk_bf16_f32 {v(OA + i)}, {v(OA + 2 * i)}, {v(OA + 2 * i + 1)}")
        A(f"buffer_store_dwordx4 {v(OA, 4)}, {v(OTA)}, {s(SWS, 4)}, {s(S_OT)} offen{loc}")
        A(f"buffer_store_dwordx4 {v(OA + 4, 4)}, {v(OTB)}, {s(SWS, 4)}, {s(S_OT)} offen{loc}")
        stamp(A, cfg, 4, 2)
        if cfg.trace:
            A(f"s_memtime {s(S_STAMP + 10, 2)}")
        flush_stamps(A, cfg, 8, T2, T3, 2)
        A(f"s_add_u32 {s(S_STEP)}, {s(S_STEP)}, 1")
        A(f"s_cmp_lt_u32 {s(S_STEP)}, {cfg.nsteps}")
        A(f"s_cbranch_scc1 {top}")
        gate(A, cfg.gate2)
        A("s_waitcnt vmcnt(0)")
        A(f"buffer_store_dword {v(TAGV)}, {v(POW)}, {s(SWS, 4)}, 0 offen{loc}")
        gate(A, cfg.gate3)
        A(f"s_branch {end}")
        A.label(twice)
        A(f"s_add_u32 {s(S_NEED)}, {s(S_NEED)}, 1")
        if not cfg.solo:
            block_on(A, ldpq, tstpq, end)
        prefetch()
        A(f"s_branch {once}")
        if not cfg.solo:
            A.label(pqw)
            block_on(A, ldpq, tstpq, end)
            A(f"s_branch {pqok}")
        slow1()
        A.label(kre)
        count(A, cfg, 0)
        ldk(2)
        ldk(3)

        def usekm(j, rest):
            p = j & 1
            if rest and (j ^ 2) not in rest:
                return
            A(f"{SM} {v(SMM, 4)}, {v(AP + 4 * j, 4)}, {v(QOP + 8 * p, 8)}, {v(IDX)}")
            for i in range(4):
                A(f"v_mov_b32 {v(KC + 4 * p + i)}, {v(AP + 4 * j + i)}")
        done, slow2 = fsm_poll(A, 4, ldk, chk4, usekm, end, lambda got: {x & 1 for x in got} == {0, 1})
        A.label(done)
        A(f"s_branch {kok}")
        slow2()
        A.label(vre)
        count(A, cfg, 1)
        ldv()
        spend(A, end)
        A("s_waitcnt vmcnt(0)")
        check(A, VM, 4, CHK)
        A(f"s_cbranch_vccnz {vre}")
        A(f"s_branch {vok}")

    body("")
    A.label(slow_lbl)
    body(" sc1")


def chain_kernel(A, cfg, name="chain_kernel"):
    end, kvo, other, noprobe = A.new("end"), A.new("kvo_role"), A.new("other"), A.new("np")
    A.kernel_begin(name)
    role_prologue(A, end)
    A(f"s_cmp_ge_u32 {s(S_GRP)}, 4")
    A(f"s_cbranch_scc1 {other}")
    A(f"s_cmp_ge_u32 {s(S_TK)}, 24")
    A(f"s_cbranch_scc1 {other}")
    A(f"s_cmp_ge_u32 {s(S_TK)}, 8")
    A(f"s_cbranch_scc1 {kvo}")
    q_role(A, cfg, end)
    A.label(other)
    A(f"s_mov_b32 {s(S_T2)}, 1")
    arrive(A, S_T2)
    A.label(end)
    A("s_endpgm")
    A.label(kvo)
    kvo_role(A, cfg, end)
```

```python
from asmlib import *
import layout as L

SWS, SW, SDBG = 4, 8, 12
P_MEM0, P_WQ, P_WK, P_WV, P_WO, P_DBG, P_WS = 16, 18, 20, 22, 24, 28, 30
S_WAVE, S_GRP, S_TK, S_IRR, S_STEP, S_BUD, S_T0, S_T1 = 32, 33, 34, 35, 36, 37, 38, 39
S_CUR, S_NXT, S_RST, S_XCUR, S_XRST, S_RBASE, S_PAR, S_PF, S_C, S_NC, S_OT = range(40, 51)
S_XCC, S_T2, S_T3 = 51, 52, 53
S_FB, S_TAG = 59, 26
S_XC, S_XR = 84, 88
S_STAMP = 60
S_CNT = 80
BUDGET = 200000
SM = "v_smfmac_f32_16x16x64_bf16"
MF = "v_mfma_f32_16x16x32_bf16"


WFLAG = ("", " nt", " sc1")


class Cfg:
    trace = 0
    nsteps = 64
    lag = 3
    s1_flag = 36
    wlo = 0
    whi = 0
    wff = 0
    wmod = 0
    ramp_lo = 5
    ramp_hi = 3
    g3_after = 0
    meet = 1
    pmajor = 1
    spec = 0
    po_pos = 0
    fine = 0
    hmask = 16
    near = 2
    marks = 0
    qsig = 70
    codepf = 1
    qmap = 0
    gate2 = 0
    gate45 = 0
    gate_entry = 0
    gate3 = 0
    gate = 0
    outflag = 2
    qkv_slow = 3
    g4_split = 4
    g4_step = 5
    st_step = 4
    q_step = 10
    g4_late = 1
    mark = staticmethod(lambda A, i: None)
    fin_sleep = 4
    ln_sleep = 2
    g4_sleep = 4
    solo = 0
    cyc = 0
    flip = 0
    nrep = 2
    xdelay = 17
    xgap = 8
    xfill = 4
    fm_delay = 22
    mdelay = 11
    fo_pos = 3
    use_fm = 1
    use_fo = 1
    nflag = 3
    qjoint = 1
    qown = 4
    fo_wait = 0
    fspace = 6
    lspace = 3
    ltail = 3
    kpos = 1
    vpos = 0
    ksplit = 1
    qsplit = 3
    rpos = 3
    vin = 1
    vk = 2
    vk2 = 4
    xdepth = 3
    xgap2 = 12
    xbf = 1
    vchk = 1
    qpipe = 0
    fillw = 0
    fillr = 0
    qfw = 0
    qfr = 0
    qfw2 = 0
    hw = 0
    hr = 0


def gate(A, us):
    if us:
        gl = A.new("gate")
        A.label(gl)
        A("s_memrealtime s[92:93]")
        A("s_waitcnt lgkmcnt(0)")
        A("s_sub_u32 s92, s92, s90")
        A(f"s_cmp_lt_u32 s92, {us * 100}")
        A(f"s_cbranch_scc1 {gl}")


def pause(A, cfg, h, n, bit, keep=0):
    hot = n if cfg.hmask >> bit & 1 else min(n, keep)
    A.nop(4 * (n - hot))
    heat(A, h, hot)


def busy(A, h, n):
    for _ in range(n):
        A(f"v_mov_b32 {v(h)}, 0")


def heat(A, h, n):
    for _ in range(n):
        A(f"{MF} {v(h, 4)}, {v(h + 4, 4)}, {v(h + 4, 4)}, 0")


def stamp(A, cfg, i, lvl=1):
    if cfg.trace in (1, lvl):
        A(f"{'s_memtime' if cfg.cyc else 's_memrealtime'} {s(S_STAMP + 2 * i, 2)}")


def fine(A, cfg, i, grp):
    if cfg.trace == 1 and cfg.fine == grp:
        A(f"s_memtime {s(S_STAMP + 12 + 2 * i, 2)}")


def count(A, cfg, i):
    if cfg.trace == 1:
        A(f"s_add_u32 {s(S_CNT + i)}, {s(S_CNT + i)}, 1")


def flush_stamps(A, cfg, n, vt, va, lvl=1):
    if cfg.trace not in (1, lvl):
        return
    A("s_waitcnt lgkmcnt(0)")
    for i in range(n):
        A(f"v_writelane_b32 {v(vt)}, {s(S_STAMP + 2 * i)}, {i}")
    A(f"v_writelane_b32 {v(vt)}, {s(S_BUD)}, 8")
    for i in range(4):
        A(f"v_writelane_b32 {v(vt)}, {s(S_CNT + i)}, {9 + i}")
    A(f"s_mul_i32 {s(S_T0)}, {s(S_GRP)}, 24")
    A(f"s_add_u32 {s(S_T0)}, {s(S_T0)}, {s(S_TK)}")
    A(f"s_lshl_b32 {s(S_T0)}, {s(S_T0)}, 2")
    A(f"s_add_u32 {s(S_T0)}, {s(S_T0)}, {s(S_WAVE)}")
    A(f"s_lshl_b32 {s(S_T0)}, {s(S_T0)}, 6")
    A(f"s_add_u32 {s(S_T0)}, {s(S_T0)}, {s(S_STEP)}")
    A(f"s_lshl_b32 {s(S_T0)}, {s(S_T0)}, 6")
    A(f"s_add_u32 {s(S_T0)}, {s(S_T0)}, {L.TRACE}")
    A(f"v_mbcnt_lo_u32_b32 {v(va)}, -1, 0")
    A(f"v_lshlrev_b32 {v(va)}, 2, {v(va)}")
    A("s_mov_b64 exec, 0xffff")
    A(f"buffer_store_dword {v(vt)}, {v(va)}, {s(SWS, 4)}, {s(S_T0)} offen")
    A("s_mov_b64 exec, -1")


def check(A, reg, n, tmp):
    if n == 4:
        A(f"v_max3_u32 {v(tmp)}, {v(reg)}, {v(reg + 1)}, {v(reg + 2)}")
        A(f"v_max_u32 {v(tmp)}, {v(tmp)}, {v(reg + 3)}")
    elif n > 4:
        A(f"v_max3_u32 {v(tmp)}, {v(reg)}, {v(reg + 1)}, {v(reg + 2)}")
        for i in range(3, n - 1, 2):
            A(f"v_max3_u32 {v(tmp)}, {v(tmp)}, {v(reg + i)}, {v(reg + i + 1)}")
        A(f"v_max_u32 {v(tmp)}, {v(tmp)}, {v(reg + n - 1)}")
    elif n == 2:
        A(f"v_max_u32 {v(tmp)}, {v(reg)}, {v(reg + 1)}")
    A(f"v_cmp_eq_u32 vcc, -1, {v(tmp)}")


def spend(A, abort):
    A(f"s_sub_u32 {s(S_BUD)}, {s(S_BUD)}, 1")
    A(f"s_cbranch_scc1 {abort}")


def fsm_poll(A, n, ld, chk, use, abort, finished=None, fast=None, onfail=None, undo=None):
    done = A.new("pd")
    labels, emitted, todo = {}, set(), []
    full = frozenset(range(n))
    if finished is None:
        finished = lambda got: got == full

    def lab(st):
        if st not in labels:
            labels[st] = A.new("ps")
            todo.append(st)
        return labels[st]

    fails = []

    def chain_from(st, last):
        while True:
            if st in emitted:
                A(f"s_branch {lab(st)}")
                return
            emitted.add(st)
            A.label(lab(st))
            fl = A.new("pf")
            fails.append((fl, st))
            A(f"s_waitcnt vmcnt({len(st) - 1})")
            chk(st[0])
            A(f"s_cbranch_vccnz {fl}")
            rest = st[1:]
            fin = finished(full - frozenset(rest))
            use(st[0], () if fin else rest)
            if fin:
                if not last:
                    A(f"s_branch {done}")
                return
            st = rest

    if fast is None:
        chain_from(tuple(range(n)), True)
    else:
        head, tail = fast[:2]
        joint = fast[2:] if len(fast) > 2 else None
        for i in range(n):
            if joint and i == n - 2:
                both = A.new("pj")
                A("s_waitcnt vmcnt(0)")
                joint[0]()
                tail(i - 1)
                A(f"s_cbranch_vccnz {both}")
                joint[1]()
                break
            fl = A.new("pf")
            fails.append((fl, tuple(range(i, n))))
            A(f"s_waitcnt vmcnt({n - 1 - i})")
            chk(i)
            if i:
                tail(i - 1)
            elif undo:
                head(0)
            A(f"s_cbranch_vccnz {fl}")
            if i or not undo:
                head(i)
        else:
            tail(n - 1)

    def rest_code():
        if fast is not None and joint:
            A.label(both)
            ld(n - 2)
            ld(n - 1)
            if onfail:
                onfail(True)
            spend(A, abort)
            A(f"s_branch {lab((n - 2, n - 1))}")
        nfast = len(fails) if fast is not None else 0
        i = 0
        while i < len(fails) or any(t not in emitted for t in todo):
            while i < len(fails):
                fl, st = fails[i]
                i += 1
                A.label(fl)
                ld(st[0])
                if undo and i == 1:
                    undo()
                if onfail:
                    onfail(i <= nfast)
                if st[0] == min(st):
                    spend(A, abort)
                chain_from(st[1:] + st[:1], False)
            for t in list(todo):
                if t not in emitted:
                    chain_from(t, False)
    return done, rest_code


def flag_wait(A, cfg, vaddr, buf, nl, abort):
    go, top = A.new("fg"), A.new("ft")
    ld = lambda b: A(f"buffer_load_dword {v(buf + b)}, {v(vaddr)}, {s(SWS, 4)}, {s(S_FB)} offen sc1")
    A(f"s_mov_b64 exec, {(1 << nl) - 1}")
    n = cfg.nflag
    for b in range(n):
        ld(b)
        if b < n - 1:
            A.nop(cfg.fspace)
    A.label(top)
    for b in range(n):
        A(f"s_waitcnt vmcnt({n - 1})")
        A(f"v_cmp_gt_u32 vcc, {s(S_TAG)}, {v(buf + b)}")
        ld(b)
        A(f"s_cbranch_vccz {go}")
    spend(A, abort)
    A(f"s_branch {top}")
    A.label(go)
    A("s_mov_b64 exec, -1")


def load_weights(A, chunks, flag="", first=None, ramp=5):
    NS = 5

    def issue(c):
        setup, stride, kind, vglob, vtr, dst = chunks[c]
        setup()
        A(f"s_mul_i32 {s(S_T0)}, {s(S_WAVE)}, 40960")
        A(f"s_add_u32 m0, {s(S_T0)}, {(c % NS) * 8192}")
        for j in range(8):
            if j:
                A(f"s_add_u32 m0, m0, 1024")
                A(f"s_add_u32 {s(S_T1)}, {s(S_T1)}, {8 * stride}")
            else:
                A("s_nop 0")
            A(f"buffer_load_dwordx4 {v(vglob)}, {s(SW, 4)}, {s(S_T1)} offen{flag} lds")

    n = len(chunks)
    for c in range(ramp):
        issue(c)
    if ramp < NS:
        A(f"s_waitcnt vmcnt({8 * (ramp - 1)})")
        for c in range(ramp, NS):
            issue(c)
    for c in range(n):
        setup, stride, kind, vglob, vtr, dst = chunks[c]
        A(f"s_waitcnt vmcnt({8 * (min(c + NS, n) - c - 1)})")
        if c == 0 and first:
            first()
        for t in range(4):
            col = 64 * (t >> 1) + 16 * (t & 1) if kind == "K" else 32 * t
            for H in range(2):
                for q in range(2):
                    row = 32 * H + 2 * q
                    off = (c % NS) * 8192 + row * 128 + col
                    A(f"ds_read_b64_tr_b16 {r(dst(t) + 4 * H + 2 * q, 2)}, {v(vtr)} offset:{off}")
        A("s_waitcnt lgkmcnt(0)")
        if c + NS < n:
            issue(c + NS)


def glob_addr(A, dst, lane, shift, sxor, t0):
    A(f"v_and_b32 {v(t0)}, 7, {v(lane)}")
    A(f"v_lshlrev_b32 {v(t0)}, 4, {v(t0)}")
    A(f"v_xor_b32 {v(t0)}, {s(sxor)}, {v(t0)}")
    A(f"v_lshrrev_b32 {v(dst)}, 3, {v(lane)}")
    A(f"v_lshl_add_u32 {v(dst)}, {v(dst)}, {shift}, {v(t0)}")


def tr_addr(A, dst, lane, kind, t0):
    A(f"v_bfe_u32 {v(dst)}, {v(lane)}, 2, 1")
    for bit, sh in (((4, 4), (5, 3), (3, 2)) if kind == "O" else ((5, 4), (4, 2), (3, 3))):
        A(f"v_bfe_u32 {v(t0)}, {v(lane)}, {bit}, 1")
        A(f"v_lshl_add_u32 {v(dst)}, {v(t0)}, {sh}, {v(dst)}")
    A(f"s_mul_i32 {s(S_T0)}, {s(S_WAVE)}, 40960")
    A(f"v_lshl_add_u32 {v(dst)}, {v(dst)}, 7, {s(S_T0)}")
    for bit, sh in (((0, 5), (1, 3)) if kind == "K" else ((0, 3), (1, 4))):
        A(f"v_bfe_u32 {v(t0)}, {v(lane)}, {bit}, 1")
        A(f"v_lshl_add_u32 {v(dst)}, {v(t0)}, {sh}, {v(dst)}")


def sparse_index(A, dst, lane):
    A(f"v_bfe_u32 {v(dst)}, {v(lane)}, 1, 1")
    A(f"v_mul_u32_u24 {v(dst)}, 0xaaaa, {v(dst)}")
    A(f"v_add_u32 {v(dst)}, 0x4444, {v(dst)}")


def role_prologue(A, end):
    A("s_cmp_ge_u32 s2, 256")
    A(f"s_cbranch_scc1 {end}")
    A(f"s_load_dwordx8 {s(P_MEM0, 8)}, s[0:1], {KA['mem0']}")
    A(f"s_load_dwordx2 {s(P_WO, 2)}, s[0:1], {KA['Wo']}")
    A(f"s_load_dwordx4 {s(P_DBG, 4)}, s[0:1], {KA['dbg']}")
    A(f"s_getreg_b32 {s(S_XCC)}, hwreg(HW_REG_XCC_ID, 0, 4)")
    A(f"s_and_b32 {s(S_XCC)}, {s(S_XCC)}, 7")
    A("v_lshrrev_b32 v1, 6, v0")
    A("s_nop 0")
    A(f"v_readfirstlane_b32 {s(S_WAVE)}, v1")
    A("v_and_b32 v1, 63, v0")
    A("s_waitcnt lgkmcnt(0)")
    A.srd(SWS, P_WS, SIZE["ws"])
    A.srd(SDBG, P_DBG, SIZE["dbg"])
    A(f"s_mov_b32 {s(S_BUD)}, {BUDGET}")
    for i in range(4):
        A(f"s_mov_b32 {s(S_CNT + i)}, 0")
    got, loop, skip = A.new("rg"), A.new("rl"), A.new("rs")
    A(f"s_cmp_lg_u32 {s(S_WAVE)}, 0")
    A(f"s_cbranch_scc1 {skip}")
    A(f"s_mov_b32 {s(S_GRP)}, {s(S_XCC)}")
    A(f"s_mov_b32 {s(S_IRR)}, 0")
    A("s_mov_b64 exec, 1")
    A.label(loop)
    A(f"s_and_b32 {s(S_T0)}, {s(S_GRP)}, 4")
    A(f"s_mul_i32 {s(S_T0)}, {s(S_T0)}, 7")
    A(f"s_add_u32 {s(S_T0)}, {s(S_T0)}, {s(S_GRP)}")
    A(f"v_lshlrev_b32 v2, 2, {s(S_T0)}")
    A("v_mov_b32 v3, 1")
    A(f"buffer_atomic_add v3, v2, {s(SDBG, 4)}, 0 offen sc0 sc1")
    A("s_waitcnt vmcnt(0)")
    A(f"v_readfirstlane_b32 {s(S_TK)}, v3")
    A("s_nop 3")
    A(f"s_cmp_lt_u32 {s(S_TK)}, 32")
    A(f"s_cbranch_scc1 {got}")
    A(f"s_add_u32 {s(S_GRP)}, {s(S_GRP)}, 1")
    A(f"s_and_b32 {s(S_GRP)}, {s(S_GRP)}, 7")
    A(f"s_add_u32 {s(S_IRR)}, {s(S_IRR)}, 1")
    A(f"s_cmp_lt_u32 {s(S_IRR)}, 8")
    A(f"s_cbranch_scc1 {loop}")
    A.label(got)
    A(f"s_lshl_b32 {s(S_T0)}, {s(S_GRP)}, 8")
    A(f"s_min_u32 {s(S_TK)}, {s(S_TK)}, 255")
    A(f"s_or_b32 {s(S_T0)}, {s(S_T0)}, {s(S_TK)}")
    A(f"s_lshl_b32 {s(S_T1)}, {s(S_IRR)}, 16")
    A(f"s_or_b32 {s(S_T0)}, {s(S_T0)}, {s(S_T1)}")
    A(f"v_mov_b32 v3, {s(S_T0)}")
    A("v_mov_b32 v2, 0")
    A("ds_write_b32 v2, v3")
    A("s_mov_b64 exec, -1")
    A.label(skip)
    A("s_waitcnt lgkmcnt(0)")
    A("s_barrier")
    A("v_mov_b32 v2, 0")
    A("ds_read_b32 v3, v2")
    A("s_waitcnt lgkmcnt(0)")
    A(f"v_readfirstlane_b32 {s(S_T0)}, v3")
    A("s_barrier")
    A(f"s_and_b32 {s(S_TK)}, {s(S_T0)}, 255")
    A(f"s_bfe_u32 {s(S_GRP)}, {s(S_T0)}, 0x80008")
    A(f"s_lshr_b32 {s(S_IRR)}, {s(S_T0)}, 16")
    A(f"s_min_u32 {s(S_IRR)}, {s(S_IRR)}, 1")
    A(f"s_cmp_ge_u32 {s(S_TK)}, 32")
    A(f"s_cbranch_scc1 {end}")
    A.c("the roles that must start first take the first tickets")
    A(f"s_cmp_ge_u32 {s(S_GRP)}, 4")
    A(f"s_cselect_b32 {s(S_T0)}, 16, 24")
    A(f"s_add_u32 {s(S_TK)}, {s(S_TK)}, {s(S_T0)}")
    A(f"s_and_b32 {s(S_TK)}, {s(S_TK)}, 31")


def arrive(A, add_reg, hi=False, wait=True, join=True, t=48):
    skip = A.new("ar")
    if wait:
        A("s_waitcnt vmcnt(0)")
    if join:
        A("s_barrier")
    A(f"s_cmp_lg_u32 {s(S_WAVE)}, 0")
    A(f"s_cbranch_scc1 {skip}")
    A("s_mov_b64 exec, 1")
    A(f"v_mov_b32 {v(t)}, {160 if hi else 32}")
    A(f"v_mov_b32 {v(t + 1)}, {s(add_reg)}")
    A(f"buffer_atomic_add {v(t + 1)}, {v(t)}, {s(SDBG, 4)}, 0 offen sc1")
    A("s_mov_b64 exec, -1")
    A.label(skip)


def await_start(A, abort, t=48, hi_only=False, probed=False):
    loop, out = A.new("st"), A.new("so")
    A.label(loop)
    A(f"buffer_load_dword {v(t)}, off, {s(SDBG, 4)}, 0 offset:{160 if hi_only else 32} sc1")
    A(f"buffer_load_dword {v(t + 1)}, off, {s(SDBG, 4)}, 0 offset:160 sc1")
    A("s_waitcnt vmcnt(0)")
    A(f"v_add_u32 {v(t)}, {v(t)}, {v(t + 1)}")
    A("s_nop 0")
    A(f"v_readfirstlane_b32 {s(S_T0)}, {v(t)}")
    A("s_nop 3")
    A(f"s_and_b32 {s(S_T1)}, {s(S_T0)}, {hex(0x200ffff if probed else 0xffff)}")
    A(f"s_cmp_eq_u32 {s(S_T1)}, {hex(0x2000100 if probed else 0x100)}")
    A(f"s_cbranch_scc1 {out}")
    spend(A, abort)
    A("s_sleep 8")
    A(f"s_branch {loop}")
    A.label(out)
    A(f"s_bfe_u32 {s(S_IRR)}, {s(S_T0)}, 0x80010")
    A(f"s_bfe_u32 {s(S_PAR)}, {s(S_T0)}, 0x10018")
    A(f"s_lshl_b32 {s(S_PAR)}, {s(S_PAR)}, 13")
    A("s_barrier")


def probe(A, lane, dst, dbg=False):
    skip = A.new("pb")
    A(f"s_cmp_lg_u32 {s(S_WAVE)}, 0")
    A(f"s_cbranch_scc1 {skip}")
    A(f"v_lshlrev_b32 v52, 8, {v(lane)}")
    A("v_mov_b32 v53, -1")
    A(f"s_mov_b32 {s(S_T3)}, {L.XRING + 0x8000}")
    A(f"buffer_store_dword v53, v52, {s(SWS, 4)}, {s(S_T3)} offen sc1")
    A("s_waitcnt vmcnt(0)")
    A("s_mov_b64 exec, 1")
    for h in range(2):
        A(f"s_mov_b32 {s(60 + h)}, -1")
    loop = A.new("pl")
    A("v_mov_b32 v52, 0")
    A("s_mov_b32 s66, 5")
    A.label(loop)
    for h in range(2):
        A(f"s_memtime {s(62, 2)}")
        A("s_waitcnt lgkmcnt(0)")
        A(f"buffer_load_dword v53, v52, {s(SWS, 4)}, {s(S_T3)} offen sc1")
        A("s_waitcnt vmcnt(0)")
        A(f"s_memtime {s(64, 2)}")
        A("s_waitcnt lgkmcnt(0)")
        A("s_sub_u32 s62, s64, s62")
        A(f"s_min_u32 {s(60 + h)}, {s(60 + h)}, s62")
        A(f"v_add_u32 v52, {8192 if h == 0 else 1280 - 8192}, v52")
    A("s_sub_u32 s66, s66, 1")
    A("s_cmp_lg_u32 s66, 0")
    A(f"s_cbranch_scc1 {loop}")
    A("s_mov_b64 exec, -1")
    if dbg:
        A("v_mov_b32 v52, s60")
        A("v_mov_b32 v53, s61")
        A(f"buffer_store_dwordx2 v[52:53], off, {s(SDBG, 4)}, 0 offset:48")
    A("s_cmp_lt_u32 s61, s60")
    A("s_cselect_b32 s62, 1, 0")
    A(f"s_lshr_b32 s63, {s(S_XCC)}, 2")
    A("s_xor_b32 s62, s62, s63")
    A("s_lshl_b32 s62, s62, 24")
    A(f"s_or_b32 {s(dst)}, {s(dst)}, s62")
    A.label(skip)


def xcopy(rr):
    return ((rr & 1) << 20) + ((rr >> 1) << 15)


def x_offsets(A, cfg, dst, slot):
    A(f"s_lshl_b32 {s(dst)}, {s(slot)}, 18")
    A(f"s_add_u32 {s(dst)}, {s(dst)}, {s(S_PAR)}")
    for rr in range(1, cfg.nrep):
        A(f"s_add_u32 {s(dst + rr)}, {s(dst)}, {hex(xcopy(rr))}")


def progress_addr(A, dst, lane, base, index, tmp, word=0):
    A(f"s_lshl_b32 {s(S_T0)}, {s(index)}, 5")
    A(f"s_add_u32 {s(S_T0)}, {s(S_T0)}, {s(S_WAVE)}")
    A(f"s_lshl_b32 {s(S_T0)}, {s(S_T0)}, 2")
    A(f"s_add_u32 {s(S_T0)}, {s(S_T0)}, {base + 4 * word}")
    A(f"v_min_u32 {v(tmp)}, 1, {v(lane)}")
    A(f"v_lshl_add_u32 {v(dst)}, {v(tmp)}, 30, {s(S_T0)}")


def line_addr(A, dst, tid, base, index, tmp):
    A(f"s_lshl_b32 {s(S_T0)}, {s(index)}, 7")
    A(f"s_add_u32 {s(S_T0)}, {s(S_T0)}, {base}")
    A(f"v_min_u32 {v(tmp)}, 1, {v(tid)}")
    A(f"v_lshl_add_u32 {v(dst)}, {v(tmp)}, 30, {s(S_T0)}")


def lines_addr(A, dst, lane, nlines, shift=7):
    A(f"v_min_u32 {v(dst)}, {nlines - 1}, {v(lane)}")
    A(f"v_lshlrev_b32 {v(dst)}, {shift}, {v(dst)}")


def words_addr(A, dst, lane, nlines, tmp, shift=2):
    A(f"v_lshrrev_b32 {v(tmp)}, 2, {v(lane)}")
    A(f"v_min_u32 {v(tmp)}, {nlines - 1}, {v(tmp)}")
    A(f"v_lshlrev_b32 {v(tmp)}, 7, {v(tmp)}")
    A(f"v_and_b32 {v(dst)}, 3, {v(lane)}")
    A(f"v_lshl_add_u32 {v(dst)}, {v(dst)}, {shift}, {v(tmp)}")


def block_on(A, ld, test, abort, sleep=2):
    top, out = A.new("bw"), A.new("bo")
    A.label(top)
    ld()
    A("s_waitcnt vmcnt(0)")
    test()
    A(f"s_cbranch_vccz {out}")
    spend(A, abort)
    A(f"s_sleep {sleep}")
    A(f"s_branch {top}")
    A.label(out)


def ring_slots(A):
    A(f"s_and_b32 {s(S_T0)}, {s(S_STEP)}, 3")
    A(f"s_lshl_b32 {s(S_T1)}, {s(S_T0)}, 16")
    A(f"s_add_u32 {s(S_CUR)}, {s(S_T1)}, {s(S_RBASE)}")
    A(f"s_xor_b32 {s(S_RST)}, {s(S_CUR)}, 0x20000")
    A(f"s_add_u32 {s(S_TAG)}, {s(S_STEP)}, 1")


def kvo_role(A, cfg, end):
    LRX, FOR, FMW, SEL, FBUF, TAGV = 0, 1, 2, 3, 4, 7
    VG, VGO, PUBM, PUBK, XOWN, XP, HT, LWS, PUBV = 8, 9, 10, 11, 12, 13, 16, 24, 27
    AP, ACK, ACV, ACO, HS, RD, SUM, PW, QD, CHK, XL, SENT, IDX = 28, 44, 60, 76, 92, 100, 106, 108, 109, 110, 112, 4, 126
    WK, WO, WV = 256, 256 + 128, 128
    RK, RV, RO = 0, 6144, 12288
    S_CI, S_X3 = 54, 57
    A.c("KVO role: 64-column slices of the k, v and output projections of head group S_GRP;")
    A.c("each wave covers a quarter of the rows; slot s of wave w holds column tile w^3^s")
    A("v_mov_b32 v44, v0")
    A("v_mov_b32 v45, v1")
    TID, LANE = 44, 45
    t2, t3, t4 = 46, 47, 50
    A(f"s_sub_u32 {s(S_CI)}, {s(S_TK)}, 8")
    A(f"s_xor_b32 {s(S_X3)}, {s(S_WAVE)}, 3")
    A(f"s_lshl_b32 {s(S_RBASE)}, {s(S_GRP)}, 18")
    A(f"s_add_u32 {s(S_RBASE)}, {s(S_RBASE)}, {L.LRING}")
    A(f"s_lshl_b32 {s(S_FB)}, {s(S_GRP)}, 12")
    A(f"s_add_u32 {s(S_FB)}, {s(S_FB)}, {L.FLAGS}")
    A(f"s_lshl_b32 {s(S_T0)}, {s(S_WAVE)}, 12")
    A(f"v_lshl_add_u32 {v(VG)}, {v(LANE)}, 4, {s(S_T0)}")
    A(f"v_add_u32 {v(VGO)}, 49152, {v(VG)}")
    A(f"s_lshl_b32 {s(S_T0)}, {s(S_CI)}, 10")
    A(f"s_lshl_b32 {s(S_T1)}, {s(S_WAVE)}, 8")
    A(f"s_add_u32 {s(S_T1)}, {s(S_T1)}, {s(S_T0)}")
    A(f"v_mov_b32 {v(PUBM)}, {s(S_T1)}")
    for bit, width, sh in ((1, 2, 6), (5, 1, 5), (0, 1, 4), (4, 1, 3), (3, 1, 30)):
        A(f"v_bfe_u32 {v(t2)}, {v(LANE)}, {bit}, {width}")
        A(f"v_lshl_add_u32 {v(PUBM)}, {v(t2)}, {sh}, {v(PUBM)}")
    A(f"v_and_b32 {v(t2)}, 0xf0, {v(TID)}")
    A(f"v_lshl_add_u32 {v(PUBK)}, {v(t2)}, 2, {s(S_T0)}")
    A(f"v_and_b32 {v(t2)}, 3, {v(LANE)}")
    A(f"v_lshl_add_u32 {v(PUBK)}, {v(t2)}, 4, {v(PUBK)}")
    A(f"v_and_b32 {v(t2)}, 12, {v(LANE)}")
    A(f"v_add_u32 {v(PUBK)}, {v(PUBK)}, {v(t2)}")
    A(f"v_xor_b32 {v(PUBK)}, {16384 + (4 << 10)}, {v(PUBK)}")
    A(f"s_lshr_b32 {s(S_T1)}, {s(S_WAVE)}, 1")
    A(f"s_lshl_b32 {s(S_T1)}, {s(S_T1)}, 9")
    A(f"s_add_u32 {s(S_T0)}, {s(S_T0)}, {s(S_T1)}")
    A(f"s_and_b32 {s(S_T1)}, {s(S_WAVE)}, 1")
    A(f"s_lshl_b32 {s(S_T1)}, {s(S_T1)}, 2")
    A(f"s_add_u32 {s(S_T0)}, {s(S_T0)}, {s(S_T1)}")
    A(f"s_xor_b32 {s(S_T0)}, {s(S_T0)}, {32768 + (2 << 10)}")
    A(f"v_lshl_add_u32 {v(PUBV)}, {v(LANE)}, 3, {s(S_T0)}")
    A(f"s_lshl_b32 {s(S_T0)}, {s(S_WAVE)}, 8")
    A(f"s_add_u32 {s(S_T0)}, {s(S_T0)}, 2048")
    A(f"v_lshl_add_u32 {v(FOR)}, {v(LANE)}, 2, {s(S_T0)}")
    A(f"s_lshr_b32 {s(S_T0)}, {s(S_CI)}, 2")
    A(f"s_lshl_b32 {s(S_T0)}, {s(S_T0)}, 8")
    A(f"s_and_b32 {s(S_T1)}, {s(S_CI)}, 3")
    A(f"s_lshl_b32 {s(S_T1)}, {s(S_T1)}, 2")
    A(f"s_add_u32 {s(S_T0)}, {s(S_T0)}, {s(S_T1)}")
    A(f"v_min_u32 {v(t2)}, 1, {v(TID)}")
    A(f"v_lshl_add_u32 {v(FMW)}, {v(t2)}, 30, {s(S_T0)}")
    A(f"s_lshr_b32 {s(S_T0)}, {s(S_CI)}, 3")
    A(f"s_lshl_b32 {s(S_T0)}, {s(S_T0)}, 14")
    A(f"s_and_b32 {s(S_T1)}, {s(S_CI)}, 7")
    A(f"s_lshl_b32 {s(S_T1)}, {s(S_T1)}, 10")
    A(f"s_add_u32 {s(S_T0)}, {s(S_T0)}, {s(S_T1)}")
    A(f"s_lshl_b32 {s(S_T1)}, {s(S_GRP)}, 16")
    A(f"s_add_u32 {s(S_T0)}, {s(S_T0)}, {s(S_T1)}")
    A(f"v_lshl_add_u32 {v(XOWN)}, {v(TID)}, 2, {s(S_T0)}")
    for j in range(3):
        A(f"v_xor_b32 {v(XP + j)}, {hex((j + 1) << 16)}, {v(XOWN)}")
    sparse_index(A, IDX, LANE)
    for i in range(3):
        A(f"s_xor_b32 {s(S_T0)}, {s(S_X3)}, {i}")
        A(f"s_mul_i32 {s(S_T0)}, {s(S_T0)}, 1536")
        A(f"s_add_u32 {s(S_T0)}, {s(S_T0)}, {512 * i}")
        A(f"v_lshl_add_u32 {v(LWS + i)}, {v(LANE)}, 3, {s(S_T0)}")
    A(f"s_mul_i32 {s(S_T0)}, {s(S_WAVE)}, 1536")
    A(f"v_lshl_add_u32 {v(LRX)}, {v(LANE)}, 3, {s(S_T0)}")
    A(f"v_and_b32 {v(t2)}, 1, {v(LANE)}")
    A(f"v_mov_b32 {v(SEL)}, 0x05040100")
    A(f"v_mov_b32 {v(t3)}, 0x03020706")
    A(f"v_cmp_eq_u32 vcc, 1, {v(t2)}")
    A("s_nop 1")
    A(f"v_cndmask_b32 {v(SEL)}, {v(SEL)}, {v(t3)}, vcc")
    A(f"v_and_b32 {v(t2)}, 7, {v(LANE)}")
    A(f"v_lshrrev_b32 {v(t3)}, 4, {v(LANE)}")
    A(f"v_lshlrev_b32 {v(t4)}, 3, {v(t3)}")
    A(f"v_lshl_add_u32 v57, {v(t2)}, 11, {v(t4)}")
    A.srd(SW, P_MEM0, SIZE["mem0"])
    A(f"v_bfe_u32 {v(t2)}, {v(LANE)}, 1, 3")
    A(f"v_cmp_eq_u32 vcc, {v(t2)}, {v(t3)}")
    A(f"v_and_b32 {v(t2)}, 1, {v(LANE)}")
    A(f"v_lshlrev_b32 {v(t2)}, 4, {v(t2)}")
    A(f"v_mov_b32 {v(t3)}, 0x3f80")
    A(f"v_lshlrev_b32 {v(t2)}, {v(t2)}, {v(t3)}")
    for i in range(4):
        A(f"v_cndmask_b32 {v(HT + 4 + i)}, 0, {v(t2)}, vcc")
    A(f"v_mov_b32 {v(SENT)}, -1")
    A(f"v_mov_b32 {v(SENT + 1)}, -1")

    def unwritten(soff, fl):
        A(f"buffer_store_dwordx2 {v(SENT, 2)}, {v(PUBM)}, {s(SWS, 4)}, {s(soff)} offen{fl}")
        for reg in (PUBK, PUBV):
            A(f"buffer_store_dword {v(SENT)}, {v(reg)}, {s(SWS, 4)}, {s(soff)} offen{fl}")
    A.c("'not written' marks in every ring slot this workgroup owns")
    for slot in range(4):
        A(f"s_add_u32 {s(S_T0)}, {s(S_RBASE)}, {slot << 16}")
        unwritten(S_T0, " sc1")
        for k in range(2 * cfg.nrep):
            A(f"s_mov_b32 {s(S_T1)}, {L.XRING + (slot << 18) + ((k & 1) << 13) + xcopy(k >> 1)}")
            A(f"buffer_store_dword {v(SENT)}, {v(XOWN)}, {s(SWS, 4)}, {s(S_T1)} offen sc1")
    A(f"v_mov_b32 {v(TAGV)}, 1")
    A(f"buffer_store_dword {v(TAGV)}, {v(FMW)}, {s(SWS, 4)}, {s(S_FB)} offen sc1")
    A(f"s_lshl_b32 {s(S_T2)}, {s(S_IRR)}, 16")
    A(f"s_or_b32 {s(S_T2)}, {s(S_T2)}, 1")
    arrive(A, S_T2)
    A(f"s_lshl_b32 {s(S_T0)}, {s(S_CI)}, 2")
    A(f"s_add_u32 {s(S_T0)}, {s(S_T0)}, {s(S_WAVE)}")
    A(f"s_lshl_b32 {s(S_T0)}, {s(S_T0)}, 5")
    A(f"buffer_load_dwordx2 v[58:59], v57, {s(SW, 4)}, {s(S_T0)} offen")

    def first():
        A("v_min_u32 v58, -2, v58")
        A("v_min_u32 v59, -2, v59")
        A(f"buffer_store_dwordx2 v[58:59], {v(PUBM)}, {s(SWS, 4)}, {s(S_RBASE)} offen sc1")
    A.c("weights into registers")
    GK, GV, GO, TK, TV, TO = 51, 52, 53, 54, 55, 56
    A(f"s_lshl_b32 {s(S_T2)}, {s(S_X3)}, 5")
    glob_addr(A, GV, LANE, 13, S_T2, t2)
    glob_addr(A, GO, LANE, 11, S_T2, t2)
    A(f"s_and_b32 {s(S_T3)}, {s(S_T2)}, 32")
    A(f"s_lshr_b32 {s(S_T3)}, {s(S_T3)}, 1")
    A(f"s_and_b32 {s(S_T2)}, {s(S_T2)}, 64")
    A(f"s_or_b32 {s(S_T2)}, {s(S_T2)}, {s(S_T3)}")
    glob_addr(A, GK, LANE, 13, S_T2, t2)
    for reg, kind in ((TK, "K"), (TV, "N"), (TO, "O")):
        tr_addr(A, reg, LANE, kind, t2)
    chunks = []
    for ptr, name, base, kind, vg, vt in ((P_WK, "Wk", WK, "K", GK, TK), (P_WV, "Wv", WV, "N", GV, TV), (P_WO, "Wo", WO, "O", GO, TO)):
        for j in range(4):
            def setup(ptr=ptr, name=name, j=j):
                A.srd(SW, ptr, SIZE[name])
                if name == "Wo":
                    A(f"s_lshl_b32 {s(S_T1)}, {s(S_GRP)}, 2")
                    A(f"s_add_u32 {s(S_T1)}, {s(S_T1)}, {s(S_WAVE)}")
                    A(f"s_lshl_b32 {s(S_T1)}, {s(S_T1)}, 19")
                    A(f"s_lshl_b32 {s(S_T0)}, {s(S_CI)}, 7")
                    A(f"s_add_u32 {s(S_T1)}, {s(S_T1)}, {s(S_T0)}")
                    A(f"s_add_u32 {s(S_T1)}, {s(S_T1)}, {j * 64 * 2048}")
                else:
                    A(f"s_lshl_b32 {s(S_T1)}, {s(S_WAVE)}, 21")
                    A(f"s_lshl_b32 {s(S_T0)}, {s(S_GRP)}, 4")
                    A(f"s_add_u32 {s(S_T0)}, {s(S_T0)}, {s(S_CI)}")
                    A(f"s_xor_b32 {s(S_T0)}, {s(S_T0)}, {4 if name == 'Wk' else 2}")
                    A(f"s_lshl_b32 {s(S_T0)}, {s(S_T0)}, 7")
                    A(f"s_add_u32 {s(S_T1)}, {s(S_T1)}, {s(S_T0)}")
                    A(f"s_add_u32 {s(S_T1)}, {s(S_T1)}, {j * 64 * 8192}")
            chunks.append((setup, 2048 if name == "Wo" else 8192, kind, vg, vt,
                           (lambda n, base=base, j=j: base + (j * 4 + n) * 8)))
    if cfg.meet:
        chunks = [chunks[i] for i in (3, 7, 2, 6, 1, 5, 0, 4, 8, 9, 10, 11)]
    load_weights(A, chunks, WFLAG[cfg.wlo], first, cfg.ramp_lo)
    cfg.mark(A, 1)
    await_start(A, end, probed=True)
    A.c("bring one sixteenth of the group's rings into L2")
    A(f"s_lshl_b32 {s(S_T0)}, {s(S_CI)}, 14")
    A(f"s_add_u32 {s(S_T0)}, {s(S_T0)}, {s(S_RBASE)}")
    for i in range(4):
        A(f"buffer_load_dwordx4 {v(AP + 4 * i, 4)}, {v(VG)}, {s(SWS, 4)}, {s(S_T0)} offen offset:{1024 * i} sc1")
    for q in range(48):
        A(f"v_mov_b32 {v(ACK + q)}, 0")
    A(f"s_mov_b32 {s(S_STEP)}, 0")
    ring_slots(A)
    slow_lbl = A.new("kvo_sc1")
    A(f"s_cmp_lg_u32 {s(S_IRR)}, 0")
    A(f"s_cbranch_scc1 {slow_lbl}")

    sm = lambda acc, W, j, n: A(f"{SM} {v(acc + 4 * n, 4)}, {v(AP + 4 * j, 4)}, {r(W + (j * 4 + n) * 8, 8)}, {v(IDX)}")

    def ad(acc, n):
        for b in range(2):
            A(f"v_add_f32 {v(HS + 2 * n + b)}, {v(acc + 4 * n + b)}, {v(acc + 4 * n + 2 + b)}")

    def undo(acc, vin):
        def f():
            A.nop(8)
            for n in range(min(cfg.ksplit + vin, 3 + vin)):
                for q in range(2):
                    A(f"v_pk_mul_f32 {v((acc + 4 * n if n < 3 else ACV + 4 * (n - 3)) + 2 * q, 2)}, 0, 0")
        return f if cfg.spec else None

    def clear_acc():
        for q in range(24):
            A(f"v_pk_mul_f32 {v(ACK + 2 * q, 2)}, 0, 0")
    wr = lambda n, R: A(f"ds_write_b64 {v(LWS + n)}, {v(HS + 2 * n, 2)} offset:{R}")

    def gather(ld):
        for i in range(4):
            ld(i)
            pause(A, cfg, HT, cfg.lspace if i < 3 else cfg.ltail, 4)

    def proj(acc, W, R, vin=0):
        def f(j, lo, hi):
            for n in range(lo, hi):
                sm(acc, W, j, n) if n < 3 else sm(ACV, WV, j, n - 3)

        def last(j):
            for n in range(3):
                sm(acc, W, j, n)
                A("s_nop 1")
            ad(acc, 0)
            sm(acc, W, 0, 3)
            ad(acc, 1)
            wr(0, R)
            ad(acc, 2)
            wr(1, R)
            sm(acc, W, 1, 3)
            wr(2, R)
            sm(acc, W, 2, 3)
            sm(acc, W, 3, 3)
            f(j, 3, 3 + vin)
        sp = min(cfg.ksplit + vin, 3 + vin)
        return (lambda j, rest: f(j, 0, 3 + vin) if rest else last(j)), \
            (lambda j: f(j, 0, sp) if j < 3 else None, lambda j: f(j, sp, 3 + vin) if j < 3 else last(j))

    def collect(acc, R, fill, pad=0, packed=True):
        if packed:
            busy(A, CHK, cfg.fillw)
        A("s_waitcnt lgkmcnt(0)")
        A("s_barrier")
        for i in range(3):
            A(f"ds_read_b64 {v(RD + 2 * i, 2)}, {v(LRX)} offset:{R + 512 * i}")
        A.nop(pad)
        ad(acc, 3)
        fill()
        if packed:
            busy(A, CHK, cfg.fillr)
        A("s_waitcnt lgkmcnt(0)")
        if packed:
            A(f"v_pk_add_f32 {v(RD, 2)}, {v(RD, 2)}, {v(HS + 6, 2)}")
            A(f"v_pk_add_f32 {v(RD + 2, 2)}, {v(RD + 2, 2)}, {v(RD + 4, 2)}")
            A(f"v_pk_add_f32 {v(RD, 2)}, {v(RD, 2)}, {v(RD + 2, 2)}")
        else:
            for b in range(2):
                A(f"v_add_f32 {v(RD + b)}, {v(RD + b)}, {v(HS + 6 + b)}")
                A(f"v_add_f32 {v(RD + 2 + b)}, {v(RD + 2 + b)}, {v(RD + 4 + b)}")
            for b in range(2):
                A(f"v_add_f32 {v(RD + b)}, {v(RD + b)}, {v(RD + 2 + b)}")
        A(f"v_cvt_pk_bf16_f32 {v(PW)}, {v(RD)}, {v(RD + 1)}")

    def to_columns(x):
        A(f"v_mov_b32_dpp {v(QD)}, {v(x)} quad_perm:[1,0,3,2] row_mask:0xf bank_mask:0xf")
        A(f"v_perm_b32 {v(QD)}, {v(QD)}, {v(x)}, {v(SEL)}")

    def body(loc):
        top = A.new("kvo")
        ldm = lambda i: A(f"buffer_load_dwordx4 {v(AP + 4 * i, 4)}, {v(VG)}, {s(SWS, 4)}, {s(S_CUR)} offen offset:{1024 * i} sc1")
        ldo = lambda i: A(f"buffer_load_dwordx4 {v(AP + 4 * i, 4)}, {v(VGO)}, {s(SWS, 4)}, {s(S_CUR)} offen offset:{1024 * i} sc1")
        vq = [(j, n) for n in range(cfg.vin, 4) for j in range(4)]

        def vmf(k):
            for _ in range(k):
                if vq:
                    sm(ACV, WV, *vq.pop(0))

        A.label(top)
        gather(ldm)
        chk4 = lambda i: check(A, AP + 4 * i, 4, CHK)
        onfail = lambda c: (lambda first: count(A, cfg, c) if first else None)
        use, fast = proj(ACK, WK, RK, cfg.vin)
        done, slow1 = fsm_poll(A, 4, ldm, chk4, use, end, fast=fast, onfail=onfail(2), undo=undo(ACK, cfg.vin))
        A.label(done)
        stamp(A, cfg, 0)
        vmf(cfg.vk)
        collect(ACK, RK, lambda: vmf(cfg.vk2), 3, packed=False)
        A("s_nop 1")
        to_columns(PW)
        A(f"buffer_store_dword {v(QD)}, {v(PUBK)}, {s(SWS, 4)}, {s(S_CUR)} offen{loc}")
        stamp(A, cfg, 1)
        if len(vq) > 4:
            vmf(len(vq) - 4)
            A.nop(max(0, 7 - 3 * cfg.vin))
        left = len(vq)
        vmf(1)
        ad(ACV, 0)
        vmf(1)
        ad(ACV, 1)
        wr(0, RV)
        vmf(1)
        ad(ACV, 2)
        wr(1, RV)
        wr(2, RV)
        vmf(1)
        collect(ACV, RV, lambda: None, 3 if left == 4 else 0)
        A(f"buffer_store_dword {v(PW)}, {v(PUBV)}, {s(SWS, 4)}, {s(S_CUR)} offen{loc}")
        stamp(A, cfg, 2)
        flush_stamps(A, cfg, 8, 124, 125)
        A(f"s_cmp_eq_u32 {s(S_STEP)}, {cfg.nsteps - 1}")
        A(f"s_cbranch_scc1 {end}")
        A(f"v_add_u32 {v(TAGV)}, 1, {v(TAGV)}")
        A(f"s_and_b32 {s(S_T0)}, {s(S_STEP)}, 3")
        x_offsets(A, cfg, S_XC, S_T0)
        flag_wait(A, cfg, FOR, XL, 2, end)
        A.nop(cfg.fo_wait)
        if cfg.fine >= 6:
            stamp(A, cfg, 6)
        gather(ldo)
        use, fast = proj(ACO, WO, RO)
        seen = []

        def chk4o(i):
            if len(seen) < 4 and cfg.fine == 10 + i:
                stamp(A, cfg, 7)
            seen.append(i)
            chk4(i)
        done, slow2 = fsm_poll(A, 4, ldo, chk4o, use, end, fast=fast, onfail=onfail(3), undo=undo(ACO, 0))
        A.label(done)
        stamp(A, cfg, 3)
        collect(ACO, RO, lambda: None, 3)
        A.c("exchange of partial sums with the other groups")
        for rr in range(cfg.nrep):
            A(f"buffer_store_dword {v(PW)}, {v(XOWN)}, {s(SWS, 4)}, {s(S_XC + rr)} offen sc1")
        stamp(A, cfg, 4)
        unwritten(S_RST, loc)
        for k in range(3):
            A(f"v_mov_b32 {v(XL + 4 * k)}, {v(PW)}")
        A(f"s_add_u32 {s(S_STEP)}, {s(S_STEP)}, 1")
        ring_slots(A)

        def ldx(k):
            for j in range(3):
                A(f"buffer_load_dword {v(XL + 4 * (k % 3) + 1 + j)}, {v(XP + j)}, {s(SWS, 4)}, {s(S_XC + k % cfg.nrep)} offen sc1")
        events = sorted([(cfg.xdelay, 0), (cfg.xdelay + cfg.xgap, 1), (cfg.xdelay + cfg.xgap + cfg.xgap2, 2), (cfg.fm_delay, 3)])
        now = 0
        for t, e in events:
            pause(A, cfg, HT, max(0, t - now), 1)
            now = max(now, t)
            if e == 0 and cfg.fine < 6:
                stamp(A, cfg, 6)
            if e < 3:
                ldx(e)
                if e == 0:
                    clear_acc()
                    now += 8
            else:
                A(f"buffer_store_dword {v(TAGV)}, {v(FMW)}, {s(SWS, 4)}, {s(S_FB)} offen{loc}")
        heat(A, HT, cfg.xfill)
        x2, xsum = A.new("x2"), A.new("xs")

        def final(x):
            A(f"{MF} {v(RD, 4)}, {v(x, 4)}, {v(HT + 4, 4)}, 0")
            A(f"v_max3_u32 {v(CHK)}, {v(x + 1)}, {v(x + 2)}, {v(x + 3)}")
            A(f"v_cmp_eq_u32 vcc, -1, {v(CHK)}")
            A("s_nop 5")
            for i in range(2):
                A(f"v_cvt_pk_bf16_f32 {v(SUM + i)}, {v(RD + 2 * i)}, {v(RD + 2 * i + 1)}")
        A(f"s_waitcnt vmcnt({7 if cfg.fm_delay >= cfg.xdelay else 6})")
        if cfg.fine < 10:
            stamp(A, cfg, 7)
        final(XL)
        A(f"s_cbranch_vccnz {x2}")
        A.label(xsum)
        A(f"buffer_store_dwordx2 {v(SUM, 2)}, {v(PUBM)}, {s(SWS, 4)}, {s(S_CUR)} offen{loc}")
        stamp(A, cfg, 5)
        pause(A, cfg, HT, cfg.mdelay, 3)
        A(f"s_branch {top}")
        A.label(x2)
        count(A, cfg, 0)
        for k in range(6):
            ldx(k + 3)
            A("s_waitcnt vmcnt(6)")
            final(XL + 4 * ((k + 1) % 3))
            A(f"s_cbranch_vccz {xsum}")
            count(A, cfg, 1)
        spend(A, end)
        A(f"s_branch {x2}")
        slow1()
        slow2()

    A.c("all members of the group share one L2: hand-offs inside the group use plain stores")
    body("")
    A.label(slow_lbl)
    A.c("some member runs on another die: every hand-off is written through")
    body(" sc1")


def q_role(A, cfg, end):
    WIN = 0
    VG, VK, VVA, VVB, VO, IDX, LR, QW, QR, LWS = 10, 11, 12, 13, 14, 15, 18, 19, 20, 211
    PFG, RDK, RDQ, RDVA, RDVB, OTA, OTB = 21, 22, 23, 24, 25, 26, 27
    FMR, FOW, FBUF, TAGV, XCL, POW, PQA, PQV, PQB = 192, 193, 194, 197, 198, 199, 208, 209, 210
    SENT, ONES, BIAS, CHK, T1, T2, T3 = 28, 32, 36, 44, 45, 46, 47
    AP, ACQ = 48, 64
    SX, SMM, RD, PX, LA, TM = 64, 72, 76, 76, 84, 88
    QOP, OA, KC, VM, PK = 96, 96, 112, 120, 124
    ST = 128
    SLOT0, SLOTX = 32768, 0x18000
    WQ = 256
    RQ, RB, HS = 0, 12288, 96
    HT, POV = 200, 214
    TID, LANE = 48, 49
    S_HEAD, S_PARW, S_EH, S_LDS, S_PQ, S_NEED = 54, 55, 56, 57, 58, 27
    A.c("Q role: q projection and attention of one head")
    if (cfg.gate or cfg.gate2 or cfg.gate3) and not cfg.gate_entry:
        A("s_memrealtime s[90:91]")
    A(f"v_mov_b32 {v(TID)}, v0")
    A(f"v_mov_b32 v50, v1")
    LANE = 50
    A(f"s_lshl_b32 {s(S_HEAD)}, {s(S_GRP)}, 3")
    A(f"s_add_u32 {s(S_HEAD)}, {s(S_HEAD)}, {s(S_TK)}")
    A(f"s_and_b32 {s(S_PARW)}, {s(S_WAVE)}, 1")
    A(f"s_lshr_b32 {s(S_EH)}, {s(S_WAVE)}, 1")
    A(f"s_lshl_b32 {s(S_RBASE)}, {s(S_GRP)}, 18")
    A(f"s_add_u32 {s(S_RBASE)}, {s(S_RBASE)}, {L.LRING}")
    A(f"s_lshl_b32 {s(S_T0)}, {s(S_WAVE)}, 12")
    A(f"v_lshl_add_u32 {v(VG)}, {v(LANE)}, 4, {s(S_T0)}")
    A(f"s_lshl_b32 {s(S_T0)}, {s(S_TK)}, 11")
    A(f"s_add_u32 {s(S_T1)}, {s(S_T0)}, 16384")
    A(f"v_lshl_add_u32 {v(VK)}, {v(LANE)}, 4, {s(S_T1)}")
    A(f"s_lshl_b32 {s(S_T1)}, {s(S_EH)}, 10")
    A(f"s_add_u32 {s(S_T0)}, {s(S_T0)}, {s(S_T1)}")
    A(f"s_lshl_b32 {s(S_T1)}, {s(S_PARW)}, 9")
    A(f"s_add_u32 {s(S_T1)}, {s(S_T1)}, {s(S_T0)}")
    A(f"s_add_u32 {s(S_T1)}, {s(S_T1)}, 32768")
    A(f"v_lshl_add_u32 {v(VVA)}, {v(LANE)}, 3, {s(S_T1)}")
    A(f"v_xor_b32 {v(VVB)}, 512, {v(VVA)}")
    A(f"s_add_u32 {s(S_T1)}, {s(S_T1)}, 16384")
    A(f"v_mov_b32 {v(VO)}, {s(S_T1)}")
    for bit, width, sh in ((5, 1, 8), (1, 2, 6), (4, 1, 5), (0, 1, 4), (3, 1, 30)):
        A(f"v_bfe_u32 v51, {v(LANE)}, {bit}, {width}")
        A(f"v_lshl_add_u32 {v(VO)}, v51, {sh}, {v(VO)}")
    sparse_index(A, IDX, LANE)
    for i in range(8):
        A(f"v_mov_b32 {v(HT + i)}, 0")
    for i in range(3):
        A(f"s_xor_b32 {s(S_T0)}, {s(S_WAVE)}, {3 ^ i}")
        A(f"s_mul_i32 {s(S_T0)}, {s(S_T0)}, 3072")
        A(f"s_add_u32 {s(S_T0)}, {s(S_T0)}, {1024 * i}")
        A(f"v_lshl_add_u32 {v(LWS + i)}, {v(LANE)}, 4, {s(S_T0)}")
    A(f"s_mul_i32 {s(S_T0)}, {s(S_WAVE)}, 3072")
    A(f"v_lshl_add_u32 {v(LR)}, {v(LANE)}, 4, {s(S_T0)}")
    A(f"s_lshl_b32 {s(S_T0)}, {s(S_WAVE)}, 9")
    A(f"v_and_b32 v51, 15, {v(LANE)}")
    A(f"v_lshl_add_u32 {v(QW)}, v51, 4, {s(S_T0)}")
    A(f"v_lshrrev_b32 v51, 4, {v(LANE)}")
    A(f"v_lshl_add_u32 {v(QW)}, v51, 2, {v(QW)}")
    A(f"v_lshrrev_b32 v51, 2, {v(LANE)}")
    A(f"v_and_b32 v52, 1, {v(LANE)}")
    A(f"v_lshlrev_b32 v52, 3, v52")
    A(f"v_lshl_add_u32 {v(QR)}, v51, 4, v52")
    A(f"v_lshlrev_b32 v51, 4, {v(LANE)}")
    A(f"s_mul_i32 {s(S_T0)}, {s(S_WAVE)}, 6144")
    A(f"v_add_u32 {v(PFG)}, {s(S_T0)}, v51")
    A(f"s_add_u32 {s(S_LDS)}, {s(S_T0)}, {SLOT0}")
    A(f"v_add_u32 {v(RDK)}, {SLOT0 + 8192}, v51")
    A(f"s_lshl_b32 {s(S_T0)}, {s(S_PARW)}, 12")
    A(f"s_add_u32 {s(S_T0)}, {s(S_T0)}, {SLOT0}")
    A(f"v_add_u32 {v(RDQ)}, {s(S_T0)}, v51")
    A(f"s_lshl_b32 {s(S_T0)}, {s(S_WAVE)}, 11")
    A(f"s_add_u32 {s(S_T0)}, {s(S_T0)}, {SLOT0 + 16384}")
    A(f"v_add_u32 {v(RDVA)}, {s(S_T0)}, v51")
    A(f"v_xor_b32 {v(RDVB)}, 2048, {v(RDVA)}")
    A(f"s_lshl_b32 {s(S_FB)}, {s(S_GRP)}, 12")
    A(f"s_add_u32 {s(S_FB)}, {s(S_FB)}, {L.FLAGS}")
    A(f"s_lshl_b32 {s(S_T0)}, {s(S_WAVE)}, 8")
    A(f"v_lshl_add_u32 {v(FMR)}, {v(LANE)}, 2, {s(S_T0)}")
    A(f"s_lshr_b32 {s(S_T0)}, {s(S_TK)}, 1")
    A(f"s_lshl_b32 {s(S_T0)}, {s(S_T0)}, 8")
    A(f"s_and_b32 {s(S_T1)}, {s(S_TK)}, 1")
    A(f"s_lshl_b32 {s(S_T1)}, {s(S_T1)}, 2")
    A(f"s_add_u32 {s(S_T0)}, {s(S_T0)}, {s(S_T1)}")
    A(f"s_add_u32 {s(S_T0)}, {s(S_T0)}, 2048")
    A(f"v_min_u32 v52, 1, {v(TID)}")
    A(f"v_lshl_add_u32 {v(FOW)}, v52, 30, {s(S_T0)}")
    A(f"v_mov_b32 {v(TAGV)}, 0")
    A(f"buffer_store_dword {v(TAGV)}, {v(FOW)}, {s(SWS, 4)}, {s(S_FB)} offen sc1")
    XN = 2 if cfg.xbf else 4
    A(f"s_lshr_b32 {s(S_T0)}, {s(S_TK)}, {2 if cfg.xbf else 1}")
    A(f"s_lshl_b32 {s(S_T0)}, {s(S_T0)}, 14")
    A(f"s_and_b32 {s(S_T1)}, {s(S_TK)}, {3 if cfg.xbf else 1}")
    A(f"s_lshl_b32 {s(S_T1)}, {s(S_T1)}, {11 if cfg.xbf else 12}")
    A(f"s_add_u32 {s(S_T0)}, {s(S_T0)}, {s(S_T1)}")
    A(f"s_lshl_b32 {s(S_T1)}, {s(S_GRP)}, 16")
    A(f"s_add_u32 {s(S_T0)}, {s(S_T0)}, {s(S_T1)}")
    A(f"v_lshl_add_u32 {v(XCL)}, {v(TID)}, {3 if cfg.xbf else 4}, {s(S_T0)}")
    A(f"s_lshl_b32 {s(S_T0)}, {s(S_HEAD)}, 2")
    A(f"s_add_u32 {s(S_T0)}, {s(S_T0)}, {s(S_WAVE)}")
    A(f"s_lshl_b32 {s(S_T0)}, {s(S_T0)}, 11")
    A(f"s_lshl_b32 {s(S_T1)}, {s(S_PARW)}, 10")
    A(f"s_add_u32 {s(S_T0)}, {s(S_T0)}, {s(S_T1)}")
    A(f"v_add_u32 {v(OTA)}, {s(S_T0)}, v51")
    A(f"v_xor_b32 {v(OTB)}, 2048, {v(OTA)}")
    progress_addr(A, POW, LANE, L.PO, S_HEAD, 52)
    A(f"buffer_store_dword {v(TAGV)}, {v(POW)}, {s(SWS, 4)}, 0 offen sc1")
    lines_addr(A, 53, LANE, 16)
    A(f"s_lshr_b32 {s(S_T0)}, {s(S_HEAD)}, 2")
    A(f"s_lshl_b32 {s(S_T0)}, {s(S_T0)}, 10")
    A(f"s_add_u32 {s(S_T0)}, {s(S_T0)}, {L.PQ}")
    A(f"v_add_u32 {v(PQA)}, {s(S_T0)}, v53")
    A(f"s_lshl_b32 {s(S_T0)}, {s(S_GRP)}, 10")
    A(f"s_add_u32 {s(S_T0)}, {s(S_T0)}, {L.PB - 1024}")
    A(f"v_add_u32 v53, {s(S_T0)}, v53")
    A(f"v_cmp_lt_u32 vcc, 7, {v(LANE)}")
    A("s_nop 1")
    A(f"v_cndmask_b32 {v(PQA)}, {v(PQA)}, v53, vcc")
    A(f"v_cndmask_b32 {v(PQB)}, 0, 8, vcc")
    for i in range(4):
        A(f"v_mov_b32 {v(SENT + i)}, -1")
        A(f"v_mov_b32 {v(ONES + i)}, 0x3f803f80")
    A(f"v_and_b32 v51, 15, {v(LANE)}")
    A(f"s_lshl_b32 {s(S_T0)}, {s(S_PARW)}, 4")
    A(f"v_add_u32 v51, {s(S_T0)}, v51")
    A(f"v_lshrrev_b32 v52, 4, {v(LANE)}")
    A(f"v_lshlrev_b32 v52, 2, v52")
    A(f"v_mov_b32 v54, 0xf149f2ca")
    for T in range(2):
        for q in range(4):
            A(f"v_add_u32 v53, {16 * T + q}, v52")
            A(f"v_cmp_gt_u32 vcc, v53, v51")
            A("s_nop 1")
            A(f"v_cndmask_b32 {v(BIAS + 4 * T + q)}, 0, v54, vcc")
    for i in range(10):
        A(f"v_mov_b32 {v(WIN + i)}, 0")
    A(f"s_mov_b32 {s(S_C)}, 0x3e0293ee")
    A(f"s_mov_b32 {s(S_NC)}, 0xbe0293ee")
    for slot in range(4):
        A(f"s_add_u32 {s(S_T0)}, {s(S_RBASE)}, {slot << 16}")
        A(f"buffer_store_dwordx4 {v(SENT, 4)}, {v(VO)}, {s(SWS, 4)}, {s(S_T0)} offen sc1")
    A(f"s_lshl_b32 {s(S_T2)}, {s(S_IRR)}, 16")
    A(f"s_or_b32 {s(S_T2)}, {s(S_T2)}, 1")
    arrive(A, S_T2)
    for hf in range(2):
        A(f"s_xor_b32 {s(S_T2)}, {s(S_WAVE)}, {3 ^ (2 * hf)}")
        A(f"s_lshl_b32 {s(S_T2)}, {s(S_T2)}, 6")
        glob_addr(A, 51 + hf, LANE, 13, S_T2, 54)
    tr_addr(A, 53, LANE, "N", 54)
    A.srd(SW, P_WQ, SIZE["Wq"])
    chunks = []
    for j in range(4):
        for hf in range(2):
            def setup(j=j):
                A(f"s_lshl_b32 {s(S_T1)}, {s(S_WAVE)}, 21")
                A(f"s_lshl_b32 {s(S_T0)}, {s(S_HEAD)}, 8")
                A(f"s_add_u32 {s(S_T1)}, {s(S_T1)}, {s(S_T0)}")
                A(f"s_add_u32 {s(S_T1)}, {s(S_T1)}, {j * 64 * 8192}")
            chunks.append((setup, 8192, "N", 51 + hf, 53, (lambda n, j=j, hf=hf: WQ + (j * 8 + hf * 4 + n) * 8)))
    load_weights(A, chunks[::-1] if cfg.meet else chunks, WFLAG[cfg.wlo], None, cfg.ramp_lo)
    cfg.mark(A, 1)
    noprobe = A.new("np")
    A(f"s_cmp_lg_u32 {s(S_HEAD)}, 0")
    A(f"s_cbranch_scc1 {noprobe}")
    A("s_barrier")
    A(f"s_mov_b32 {s(S_T2)}, 0x2000000")
    probe(A, LANE, S_T2, cfg.marks)
    arrive(A, S_T2)
    A.label(noprobe)
    await_start(A, end, probed=True)
    cfg.mark(A, 2)
    gate(A, cfg.gate)
    A(f"s_mul_i32 {s(S_PF)}, {s(S_HEAD)}, 24576")
    A(f"s_add_u32 {s(S_PF)}, {s(S_PF)}, {L.QKV}")
    A(f"s_mov_b32 {s(S_STEP)}, 0")

    def prefetch_parts(src):
        ld = lambda so, j: f"buffer_load_dwordx4 {v(PFG)}, {s(SWS, 4)}, {s(so)} offen offset:{1024 * j} sc1 lds"
        return [f"s_mov_b32 m0, {s(S_LDS)}\ns_add_u32 {s(S_T2)}, {s(src)}, 3072\n" + ld(src, 0), ld(src, 1), ld(src, 2),
                f"s_add_u32 m0, {s(S_LDS)}, 3072\ns_xor_b32 {s(S_LDS)}, {s(S_LDS)}, {SLOTX}\n" + ld(S_T2, 0), ld(S_T2, 1),
                ld(S_T2, 2) + f"\ns_add_u32 {s(S_PF)}, {s(S_PF)}, {32 * 24576}"]

    def prefetch():
        for x in prefetch_parts(S_PF):
            A(x)

    def operands():
        for i in range(8):
            A(f"ds_read_b128 {v(ST + 4 * i, 4)}, {v(RDK)} offset:{1024 * i}")
        for p, reg in ((0, RDVA), (1, RDVB)):
            for t in range(2):
                A(f"ds_read_b128 {v(ST + 32 + 8 * p + 4 * t, 4)}, {v(reg)} offset:{1024 * t}")
        for ks in range(4):
            A(f"ds_read_b128 {v(ST + 48 + 4 * ks, 4)}, {v(RDQ)} offset:{1024 * ks}")
        for reg in (RDK, RDVA, RDVB, RDQ):
            A(f"v_xor_b32 {v(reg)}, {SLOTX}, {v(reg)}")

    ldpq = lambda: A(f"buffer_load_dword {v(PQV)}, {v(PQA)}, {s(SWS, 4)}, 0 offen sc1")

    def tstpq():
        A(f"v_add_u32 {v(CHK)}, {v(PQV)}, {v(PQB)}")
        A(f"v_cmp_gt_u32 vcc, {s(S_NEED)}, {v(CHK)}")
    A(f"s_mov_b32 {s(S_NEED)}, 1")
    if not cfg.solo:
        block_on(A, ldpq, tstpq, end)
    prefetch()
    slow_lbl = A.new("q_sc1")
    A(f"s_cmp_lg_u32 {s(S_IRR)}, 0")
    A(f"s_cbranch_scc1 {slow_lbl}")

    def score_x(qreg, bias, before=None):
        for ks in range(4):
            if before:
                before(ks)
            for T in range(2):
                c = v(SX + 4 * T, 4) if ks else (v(BIAS + 4 * T, 4) if bias else "0")
                A(f"{MF} {v(SX + 4 * T, 4)}, {v(ST + 16 * T + 4 * ks, 4)}, {v(qreg + 4 * ks, 4)}, {c}")

    def max_x():
        A(f"v_max3_f32 {v(T1)}, {v(SX)}, {v(SX + 1)}, {v(SX + 2)}")
        A(f"v_max3_f32 {v(T1)}, {v(T1)}, {v(SX + 3)}, {v(SX + 4)}")
        A(f"v_max3_f32 {v(T1)}, {v(T1)}, {v(SX + 5)}, {v(SX + 6)}")
        A(f"v_max_f32 {v(T1)}, {v(T1)}, {v(SX + 7)}")

    def softmax(hook=lambda pos: None):
        A(f"v_pk_add_f32 {v(SMM, 2)}, {v(SMM, 2)}, {v(SMM + 2, 2)}")
        A(f"v_max3_f32 {v(T2)}, {v(T1)}, {v(SMM)}, {v(SMM + 1)}")
        A(f"v_max3_f32 {v(T3)}, {v(T1)}, {v(SMM)}, {v(SMM + 1)}")
        if not hook(0):
            A("s_nop 1")
        A(f"v_permlane32_swap_b32 {v(T2)}, {v(T3)}")
        A(f"v_max_f32 {v(T1)}, {v(T2)}, {v(T3)}")
        A(f"v_max_f32 {v(T2)}, {v(T2)}, {v(T3)}")
        A("s_nop 1")
        A(f"v_permlane16_swap_b32 {v(T1)}, {v(T2)}")
        A(f"v_max_f32 {v(T1)}, {v(T1)}, {v(T2)}")
        A(f"v_mul_f32 {v(T2)}, {s(S_NC)}, {v(T1)}")
        hook(1)
        for i in range(5):
            A(f"v_pk_fma_f32 {v(SX + 2 * i, 2)}, {v(SX + 2 * i, 2)}, {s(S_C, 2)}, {v(T2, 2)} op_sel_hi:[1,0,0]")
        for i in range(10):
            A(f"v_exp_f32 {v(SX + i)}, {v(SX + i)}")
            if i == 4:
                hook(2)
        hook(3)
        for i in range(4):
            A(f"v_cvt_pk_bf16_f32 {v(PX + i)}, {v(SX + 2 * i)}, {v(SX + 2 * i + 1)}")
        A(f"v_cvt_pk_bf16_f32 {v(WIN + 2)}, {v(SMM)}, {v(SMM + 1)}")
        A(f"v_cvt_pk_bf16_f32 {v(WIN + 7)}, {v(SMM)}, {v(SMM + 1)}")

    WOFF = (2, 6, 0, 4)

    def scale(n):
        for i in range(n // 2):
            A(f"v_pk_mul_f32 {v(OA + 2 * i, 2)}, {v(OA + 2 * i, 2)}, {v(T2, 2)} op_sel_hi:[1,0]")

    def pv(nt, pre=None, post=None, hook=lambda pos: None):
        A(f"{MF} {v(LA, 4)}, {v(ONES, 4)}, {v(PX, 4)}, 0")
        A(f"{MF} {v(LA, 4)}, {v(ONES, 4)}, {v(WIN + WOFF[0], 4)}, {v(LA, 4)}")
        for t in range(nt):
            if pre and t == cfg.vchk:
                pre()
            A(f"{MF} {v(OA + 4 * t, 4)}, {v(ST + 32 + 4 * t, 4)}, {v(PX, 4)}, 0")
        if post:
            post()
        hook(5)
        for t in range(nt):
            A(f"{MF} {v(OA + 4 * t, 4)}, {v(VM, 4)}, {v(WIN + WOFF[t], 4)}, {v(OA + 4 * t, 4)}")
        hook(6)
        A(f"v_rcp_f32 {v(T2)}, {v(LA)}")
        A.nop(8 - nt)

    def body(loc):
        top = A.new("q")
        ldm = lambda i: A(f"buffer_load_dwordx4 {v(AP + 4 * i, 4)}, {v(VG)}, {s(SWS, 4)}, {s(S_CUR)} offen offset:{1024 * i} sc1")
        ldk = lambda i: A(f"buffer_load_dwordx4 {v(AP + 4 * i, 4)}, {v(VK)}, {s(SWS, 4)}, {s(S_CUR)} offen offset:{1024 * (i & 1)} sc1")

        def ldv():
            A(f"buffer_load_dwordx2 {v(VM, 2)}, {v(VVA)}, {s(SWS, 4)}, {s(S_CUR)} offen sc1")
            A(f"buffer_load_dwordx2 {v(VM + 2, 2)}, {v(VVB)}, {s(SWS, 4)}, {s(S_CUR)} offen sc1")
        A.label(top)
        far = A.new("qf")
        A.c("the first segments are fetched one step ahead, later ones two steps ahead")
        A(f"s_cmp_gt_u32 {s(S_STEP)}, {cfg.near + 1}")
        A(f"s_cbranch_scc1 {far}")
        A("s_waitcnt vmcnt(0)")
        A("s_barrier")
        A.label(far)
        operands()
        ring_slots(A)
        for q in range(16):
            A(f"v_pk_mul_f32 {v(ACQ + 2 * q, 2)}, 0, 0")

        def publish(pos):
            if pos == cfg.po_pos:
                A(f"buffer_store_dword {v(POV)}, {v(POW)}, {s(SWS, 4)}, 0 offen{loc}")
        A(f"v_mov_b32 {v(POV)}, {v(TAGV)}")
        if cfg.po_pos == 0:
            A("s_waitcnt vmcnt(0)")
        publish(0)
        A(f"v_add_u32 {v(TAGV)}, 1, {v(TAGV)}")
        if cfg.fine == 6:
            stamp(A, cfg, 7)
        if cfg.use_fm:
            flag_wait(A, cfg, FMR, 216, 4, end)
        if cfg.fine == 6:
            stamp(A, cfg, 6)
        for i in range(4):
            ldm(i)
            pause(A, cfg, HT, cfg.lspace if i < 3 else cfg.ltail, 4)

        fq = lambda j, lo, hi: [A(f"{SM} {v(ACQ + 4 * n, 4)}, {v(AP + 4 * j, 4)}, {r(WQ + (j * 8 + n) * 8, 8)}, {v(IDX)}")
                                for n in range(lo, hi)]
        chk4 = lambda i: check(A, AP + 4 * i, 4, CHK)

        def ad(n):
            for b in range(2):
                A(f"v_add_f32 {v(HS + 2 * n + b)}, {v(ACQ + 4 * n + b)}, {v(ACQ + 4 * n + 2 + b)}")
        wr = lambda p: A(f"ds_write_b128 {v(LWS + p)}, {v(HS + 4 * p, 4)} offset:{RQ}")

        own = lambda i: fq(i & 3, 6 + (i >> 2), 7 + (i >> 2))

        def last(j):
            for n in range(6):
                fq(j, n, n + 1)
                ad(n - 3) if n >= 3 else A("s_nop 1")
            wr(0)
            own(0)
            ad(3)
            ad(4)
            wr(1)
            own(1)
            ad(5)
            wr(2)

        def last_two():
            for n in range(6):
                fq(2, n, n + 1)
                ad(n - 2) if n >= 2 else A("s_nop 1")
                fq(3, n, n + 1)
                if n in (3, 5):
                    wr((n - 3) >> 1)
                    A("s_nop 0")
                else:
                    A("s_nop 1")
            own(0)
            ad(4)
            own(1)
            A("s_nop 1")
            ad(5)
            wr(2)
        fast = (lambda j: fq(j, 0, cfg.qsplit) if j < 3 else None, lambda j: fq(j, cfg.qsplit, 6) if j < 3 else last(j))
        if cfg.qjoint:
            fast += (lambda: check(A, AP + 8, 8, CHK), last_two)
        done, slow1 = fsm_poll(A, 4, ldm, chk4, lambda j, rest: fq(j, 0, 6) if rest else last(j), end, fast=fast,
                               onfail=lambda first: count(A, cfg, 2) if first else None,
                               undo=(lambda: (A.nop(8), [A(f"v_pk_mul_f32 {v(ACQ + 2 * q, 2)}, 0, 0") for q in range(2 * cfg.qsplit)])) if cfg.spec else None)
        A.label(done)
        stamp(A, cfg, 0)
        publish(1)
        for i in range(2, 2 + cfg.qown):
            own(i)
        A("s_waitcnt lgkmcnt(0)")
        A("s_barrier")
        fine(A, cfg, 1, 1)
        for p in range(3):
            A(f"ds_read_b128 {v(RD + 4 * p, 4)}, {v(LR)} offset:{RQ + 1024 * p}")
        for i in range(2 + cfg.qown, 8):
            own(i)
        for i in range(4):
            A(f"v_mov_b32 {v(SMM + i)}, 0")

        def ldkc():
            for p in range(2):
                A(f"buffer_load_dwordx4 {v(KC + 4 * p, 4)}, {v(VK)}, {s(SWS, 4)}, {s(S_CUR)} offen offset:{1024 * p} sc1")
        if cfg.kpos == 0:
            ldkc()
        ad(6)
        A("s_nop 1")
        ad(7)
        A("s_waitcnt lgkmcnt(0)")
        fine(A, cfg, 0, 2)
        for h2 in range(2):
            A(f"v_pk_add_f32 {v(RD + 2 * h2, 2)}, {v(RD + 2 * h2, 2)}, {v(HS + 12 + 2 * h2, 2)}")
            A(f"v_pk_add_f32 {v(RD + 4 + 2 * h2, 2)}, {v(RD + 4 + 2 * h2, 2)}, {v(RD + 8 + 2 * h2, 2)}")
        for h2 in range(2):
            A(f"v_pk_add_f32 {v(RD + 2 * h2, 2)}, {v(RD + 2 * h2, 2)}, {v(RD + 4 + 2 * h2, 2)}")
        A(f"v_cvt_pk_bf16_f32 {v(RD)}, {v(RD)}, {v(RD + 1)}")
        A(f"v_cvt_pk_bf16_f32 {v(RD + 1)}, {v(RD + 2)}, {v(RD + 3)}")
        A(f"ds_write2st64_b32 {v(QW)}, {v(RD)}, {v(RD + 1)} offset0:{RB // 256} offset1:{RB // 256 + 1}")
        fine(A, cfg, 1, 2)
        if cfg.kpos == 1:
            ldkc()
        busy(A, CHK, cfg.qfw2)
        A("s_waitcnt lgkmcnt(0)")
        A("s_barrier")
        for i in range(8):
            A(f"ds_read_b64_tr_b16 {v(QOP + 2 * i, 2)}, {v(QR)} offset:{RB + 256 * i}")
        if cfg.kpos == 2:
            ldkc()

        def qwait(ks):
            A(f"s_waitcnt lgkmcnt({6 - 2 * ks})")
            if ks in (1, 2):
                ldk(ks - 1)
            if ks == 3:
                fine(A, cfg, 0, 3)
                A("s_waitcnt vmcnt(2)")
                fine(A, cfg, 1, 3)
                check(A, KC, 8, CHK)
        score_x(QOP, False, qwait)
        stamp(A, cfg, 1)
        kre, kok = A.new("kr"), A.new("ko")
        A(f"s_cbranch_vccnz {kre}")
        for p in range(2):
            A(f"{SM} {v(SMM, 4)}, {v(KC + 4 * p, 4)}, {v(QOP + 8 * p, 8)}, {v(IDX)}")
        A.label(kok)
        stamp(A, cfg, 2)
        if cfg.vpos < 0:
            ldv()
        A.nop(4 if cfg.vpos >= 0 else 2)
        max_x()

        def hook(pos):
            if pos in (1, 3):
                fine(A, cfg, pos >> 1, 4)
            if pos in (4, 6):
                fine(A, cfg, (pos - 4) >> 1, 5)
            if pos == cfg.vpos:
                ldv()
            if cfg.use_fo and pos == cfg.fo_pos:
                A(f"buffer_store_dword {v(TAGV)}, {v(FOW)}, {s(SWS, 4)}, {s(S_FB)} offen{loc}")
            return pos == cfg.vpos
        softmax(hook)
        vre, vok = A.new("vr"), A.new("vo")

        def wait_v():
            A(f"s_waitcnt vmcnt({1 if cfg.use_fo and 4 >= cfg.fo_pos >= cfg.vpos else 0})")
            check(A, VM, 4, CHK)

        def test_v():
            A(f"s_cbranch_vccnz {vre}")
            A.label(vok)
            publish(2)
        hook(4)
        pv(2, wait_v, test_v, hook)
        scale(8)
        for i in range(4):
            A(f"v_cvt_pk_bf16_f32 {v(PK + i)}, {v(OA + 2 * i)}, {v(OA + 2 * i + 1)}")
        A(f"buffer_store_dwordx4 {v(PK, 4)}, {v(VO)}, {s(SWS, 4)}, {s(S_CUR)} offen{loc}")
        stamp(A, cfg, 3)
        publish(3)
        A.c("off the recurrence path: operands of segment s+2, token rows of this segment")
        A("s_barrier")
        A(f"buffer_store_dwordx4 {v(SENT, 4)}, {v(VO)}, {s(SWS, 4)}, {s(S_RST)} offen{loc}")
        pqw, pqok, twice, once = A.new("pw"), A.new("pk"), A.new("p2"), A.new("p1")
        A(f"s_cmp_eq_u32 {s(S_STEP)}, {cfg.near}")
        A(f"s_cbranch_scc1 {twice}")
        A.label(once)
        A(f"s_add_u32 {s(S_NEED)}, {s(S_NEED)}, 1")
        A(f"s_min_u32 {s(S_NEED)}, {s(S_NEED)}, {cfg.nsteps}")
        if not cfg.solo:
            tstpq()
        for i in range(4):
            A(f"v_mov_b32 {v(SMM + i)}, 0")
        A(f"s_add_u32 {s(S_T0)}, {s(S_STEP)}, 2")
        A(f"s_and_b32 {s(S_T0)}, {s(S_T0)}, 3")
        x_offsets(A, cfg, S_XR, S_T0)
        A(f"s_cmp_lt_u32 {s(S_STEP)}, {cfg.nsteps - 2}")
        A(f"s_cselect_b32 {s(S_T3)}, {s(S_PF)}, 0x70000000")
        if not cfg.solo:
            A(f"s_cbranch_vccnz {pqw}")
            A.label(pqok)
        side = [f"buffer_store_dwordx{XN} {v(SENT, XN)}, {v(XCL)}, {s(SWS, 4)}, {s(S_XR + rr)} offen sc1" for rr in range(cfg.nrep)]
        side = ["\n".join(side)] + prefetch_parts(S_T3)
        if not cfg.solo:
            side[-1] += f"\nbuffer_load_dword {v(PQV)}, {v(PQA)}, {s(SWS, 4)}, 0 offen sc1"

        def aside(pos=None):
            if side:
                A(side.pop(0))
        score_x(ST + 48, True, lambda ks: aside() if ks in (0, 1, 3) else None)
        for p in range(2):
            A(f"{SM} {v(SMM, 4)}, {v(KC + 4 * p, 4)}, {v(ST + 48 + 8 * p, 8)}, {v(IDX)}")
        A(f"s_and_b32 {s(S_T0)}, {s(S_STEP)}, {63 if cfg.solo else 7}")
        A(f"s_lshl_b32 {s(S_T0)}, {s(S_T0)}, 18")
        A(f"s_add_u32 {s(S_OT)}, {s(S_T0)}, {L.OTOK}")
        aside()
        A.nop(2)
        max_x()
        softmax(lambda pos: aside() if pos else None)
        assert not side
        pv(4)
        scale(16)
        for i in range(8):
            A(f"v_cvt_pk_bf16_f32 {v(OA + i)}, {v(OA + 2 * i)}, {v(OA + 2 * i + 1)}")
        A(f"buffer_store_dwordx4 {v(OA, 4)}, {v(OTA)}, {s(SWS, 4)}, {s(S_OT)} offen{loc}")
        A(f"buffer_store_dwordx4 {v(OA + 4, 4)}, {v(OTB)}, {s(SWS, 4)}, {s(S_OT)} offen{loc}")
        stamp(A, cfg, 4, 2)
        if cfg.trace:
            A(f"s_memtime {s(S_STAMP + 10, 2)}")
        flush_stamps(A, cfg, 8, T2, T3, 2)
        A(f"s_add_u32 {s(S_STEP)}, {s(S_STEP)}, 1")
        A(f"s_cmp_lt_u32 {s(S_STEP)}, {cfg.nsteps}")
        A(f"s_cbranch_scc1 {top}")
        gate(A, cfg.gate2)
        A("s_waitcnt vmcnt(0)")
        A(f"buffer_store_dword {v(TAGV)}, {v(POW)}, {s(SWS, 4)}, 0 offen{loc}")
        gate(A, cfg.gate3)
        A(f"s_branch {end}")
        A.label(twice)
        A(f"s_add_u32 {s(S_NEED)}, {s(S_NEED)}, 1")
        if not cfg.solo:
            block_on(A, ldpq, tstpq, end)
        prefetch()
        A(f"s_branch {once}")
        if not cfg.solo:
            A.label(pqw)
            block_on(A, ldpq, tstpq, end)
            A(f"s_branch {pqok}")
        slow1()
        A.label(kre)
        count(A, cfg, 0)
        ldk(2)
        ldk(3)

        def usekm(j, rest):
            p = j & 1
            if rest and (j ^ 2) not in rest:
                return
            A(f"{SM} {v(SMM, 4)}, {v(AP + 4 * j, 4)}, {v(QOP + 8 * p, 8)}, {v(IDX)}")
            for i in range(4):
                A(f"v_mov_b32 {v(KC + 4 * p + i)}, {v(AP + 4 * j + i)}")
        done, slow2 = fsm_poll(A, 4, ldk, chk4, usekm, end, lambda got: {x & 1 for x in got} == {0, 1})
        A.label(done)
        A(f"s_branch {kok}")
        slow2()
        A.label(vre)
        count(A, cfg, 1)
        ldv()
        spend(A, end)
        A("s_waitcnt vmcnt(0)")
        check(A, VM, 4, CHK)
        A(f"s_cbranch_vccnz {vre}")
        A(f"s_branch {vok}")

    body("")
    A.label(slow_lbl)
    body(" sc1")


def chain_kernel(A, cfg, name="chain_kernel"):
    end, kvo, other, noprobe = A.new("end"), A.new("kvo_role"), A.new("other"), A.new("np")
    A.kernel_begin(name)
    role_prologue(A, end)
    A(f"s_cmp_ge_u32 {s(S_GRP)}, 4")
    A(f"s_cbranch_scc1 {other}")
    A(f"s_cmp_ge_u32 {s(S_TK)}, 24")
    A(f"s_cbranch_scc1 {other}")
    A(f"s_cmp_ge_u32 {s(S_TK)}, 8")
    A(f"s_cbranch_scc1 {kvo}")
    q_role(A, cfg, end)
    A.label(other)
    A(f"s_mov_b32 {s(S_T2)}, 1")
    arrive(A, S_T2)
    A.label(end)
    A("s_endpgm")
    A.label(kvo)
    kvo_role(A, cfg, end)
```

```python
from asmlib import *
import layout as L
from chain import (WFLAG, SWS, SW, SDBG, S_WAVE, S_GRP, S_TK, S_IRR, S_STEP, S_T0, S_T1, S_T2, S_T3, MF,
                   arrive, await_start, probe, progress_addr, words_addr, line_addr, lines_addr,
                   block_on, spend, check, gate)
from small import xor_reduce, mod_addr, mod_pass, mod_finish

SW2, SW3 = 84, 88
S_CU, S_SRC, S_RDY, S_FA, S_NEED, S_OUT, S_M0, S_NXT = 44, 45, 46, 47, 48, 49, 50, 54
S_SRC5, S_RDY5, S_NEED5, S_OUT5, S_NXT5, S_K = 55, 56, 57, 58, 59, 26
S_P0, S_P1, S_P2 = 60, 61, 62
OOB = 0x70000000
LANE = 9
VD, VR, VFA, VF, VPA, VP, VO = 0, 1, 2, 3, 4, 5, 6
FR, ACC, TMP = 16, 48, 80
S_SIG = 63


def ptr(A, reg, key):
    A(f"s_load_dwordx2 {s(reg, 2)}, s[0:1], {KA[key]}")


def mark(A, cfg, i, reg=15):
    if cfg.marks != 1 and not (cfg.marks == 4 and i in (0, 3)):
        return
    skip = A.new("mk")
    if not isinstance(i, int):
        A(f"s_and_b32 s99, {i}, 63")
        A("s_lshr_b64 s[98:99], s[94:95], s99")
        A("s_and_b32 s98, s98, 1")
        A(f"s_cbranch_scc0 {skip}")
    elif i == 0:
        A("s_mov_b32 s94, 0x0202021f")
        A("s_mov_b32 s95, 0x82020202")
    A("s_memrealtime s[96:97]")
    A(f"s_lshl_b32 s98, {s(S_GRP)}, 5")
    A(f"s_add_u32 s98, s98, {s(S_TK)}")
    A("s_lshl_b32 s98, s98, 2")
    A(f"s_add_u32 s98, s98, {s(S_WAVE)}")
    A("s_lshl_b32 s98, s98, 9")
    if isinstance(i, int):
        A(f"s_add_u32 s98, s98, {L.TRACE + 2 * L.MB + 4 * i}")
    else:
        A(f"s_lshl_b32 s99, {i}, 2")
        A("s_add_u32 s98, s98, s99")
        A(f"s_add_u32 s98, s98, {L.TRACE + 2 * L.MB + 64}")
    A("s_waitcnt lgkmcnt(0)")
    A(f"v_mov_b32 {v(reg)}, s96")
    A("s_mov_b64 exec, 1")
    A(f"buffer_store_dword {v(reg)}, off, {s(SWS, 4)}, s98")
    A("s_mov_b64 exec, -1")
    A.label(skip)


def lap(A, cfg, i):
    if cfg.marks != 2:
        return
    A("s_memtime s[96:97]")
    A("s_waitcnt lgkmcnt(0)")
    A("s_sub_u32 s99, s96, s98")
    A(f"s_add_u32 s{70 + i}, s{70 + i}, s99")
    A("s_mov_b32 s98, s96")


def span(A, cfg):
    if cfg.marks != 5:
        return
    for k, st in enumerate((16, 48)):
        skip = A.new("sp")
        A(f"s_cmp_lg_u32 {s(S_STEP)}, {st}")
        A(f"s_cbranch_scc1 {skip}")
        A("s_memtime s[96:97]\ns_memrealtime s[98:99]\ns_waitcnt lgkmcnt(0)")
        A(f"s_mov_b32 s{70 + 2 * k}, s96\ns_mov_b32 s{71 + 2 * k}, s98")
        A.label(skip)


def lap_init(A, cfg):
    if cfg.marks in (2, 5):
        for i in range(8):
            A(f"s_mov_b32 s{70 + i}, 0")


def lap_dump(A, cfg):
    if cfg.marks not in (2, 5):
        return
    for i in range(8):
        A(f"v_writelane_b32 v15, s{70 + i}, {i}")
    A(f"s_lshl_b32 s98, {s(S_GRP)}, 5")
    A(f"s_add_u32 s98, s98, {s(S_TK)}")
    A("s_lshl_b32 s98, s98, 2")
    A(f"s_add_u32 s98, s98, {s(S_WAVE)}")
    A("s_lshl_b32 s98, s98, 5")
    A(f"s_add_u32 s98, s98, {L.TRACE + 3 * L.MB}")
    A(f"v_lshlrev_b32 v14, 2, {v(LANE)}")
    A("s_mov_b64 exec, 0xff")
    A(f"buffer_store_dword v15, v14, {s(SWS, 4)}, s98 offen")
    A("s_mov_b64 exec, -1")


def tile_addr(A, dst, order, inter, sbase, extra, t0, t1):
    A(f"v_bfe_u32 {v(t0)}, {v(LANE)}, 2, 2")
    A(f"v_lshrrev_b32 {v(t1)}, 4, {v(LANE)}")
    A(f"v_lshl_add_u32 {v(t0)}, {v(t1)}, {3 if order == 'N' else 2}, {v(t0)}")
    A(f"v_lshl_add_u32 {v(t0)}, {v(t0)}, 7, {s(sbase)}")
    A(f"v_and_b32 {v(t1)}, 3, {v(LANE)}")
    A(f"v_lshl_add_u32 {v(t0)}, {v(t1)}, {4 if inter else 3}, {v(t0)}")
    A(f"v_add_u32 {v(dst)}, {extra}, {v(t0)}")


def load_w(A, panels, stride, nst, tiles, order, vg, flag="", first=None, ramp=None):
    SZ = len(panels) * 16384
    n = 4 * len(panels)
    NS = min(nst, 163840 // SZ)
    ramp = NS if ramp is None else ramp
    qstep = 512 if order == "N" else 2048
    A(f"v_lshrrev_b32 {v(vg)}, 3, {v(LANE)}")
    A(f"s_mul_i32 {s(S_T0)}, {s(S_WAVE)}, {32 * nst}")
    A(f"v_add_u32 {v(vg)}, {s(S_T0)}, {v(vg)}")
    A(f"v_mul_u32_u24 {v(vg)}, {stride}, {v(vg)}")
    A(f"v_and_b32 {v(vg + 1)}, 7, {v(LANE)}")
    A(f"v_lshl_add_u32 {v(vg)}, {v(vg + 1)}, 4, {v(vg)}")
    A(f"s_lshl_b32 {s(S_T0)}, {s(S_WAVE)}, 12")

    def issue(t):
        for p, (srd, off) in enumerate(panels):
            for j in range(4):
                A(f"s_add_u32 m0, {s(S_T0)}, {(t % NS) * SZ + p * 16384 + j * 1024}")
                A(f"s_add_u32 {s(S_T1)}, {s(off)}, {(32 * t + 8 * j) * stride}")
                A(f"buffer_load_dwordx4 {v(vg)}, {s(srd, 4)}, {s(S_T1)} offen{flag} lds")
    A("s_barrier")
    for t in range(ramp):
        issue(t)
    if ramp < NS:
        A(f"s_waitcnt vmcnt({n * (ramp - 1)})")
        for t in range(ramp, NS):
            issue(t)
    for t in range(nst):
        A(f"s_waitcnt vmcnt({n * (min(t + NS, nst) - t - 1)})")
        A("s_barrier")
        if t == 0 and first:
            first()
        for reg, dst in tiles:
            for k in range(4):
                for q in range(2):
                    A(f"ds_read_b64_tr_b16 {r(dst + (nst * k + t) * 4 + 2 * q, 2)}, {v(reg)} offset:{k * 4096 + q * qstep}")
        for reg, dst in tiles:
            A(f"v_add_u32 {v(reg)}, {SZ if t % NS < NS - 1 else -(NS - 1) * SZ}, {v(reg)}")
        A("s_waitcnt lgkmcnt(0)")
        A("s_barrier")
        if t + NS < nst:
            issue(t + NS)


def load_w_panels(A, panels, stride, order, vg, flag=""):
    NS, SZ = 5, 32768
    qstep = 512 if order == "N" else 2048
    A(f"v_lshrrev_b32 {v(vg)}, 3, {v(LANE)}")
    A(f"s_lshl_b32 {s(S_T0)}, {s(S_WAVE)}, 8")
    A(f"v_add_u32 {v(vg)}, {s(S_T0)}, {v(vg)}")
    A(f"v_mul_u32_u24 {v(vg)}, {stride}, {v(vg)}")
    A(f"v_and_b32 {v(vg + 1)}, 7, {v(LANE)}")
    A(f"v_lshl_add_u32 {v(vg)}, {v(vg + 1)}, 4, {v(vg)}")
    A(f"s_lshl_b32 {s(S_T0)}, {s(S_WAVE)}, 13")
    stages = [(p, t) for p in panels for t in range(4)]
    regs = sorted({reg for p in panels for reg, _ in p[3]})

    def issue(i):
        (srd, off, _, _), t = stages[i]
        for j in range(8):
            A(f"s_add_u32 m0, {s(S_T0)}, {(i % NS) * SZ + j * 1024}")
            A(f"s_add_u32 {s(S_T1)}, {s(off)}, {(64 * t + 8 * j) * stride}")
            A(f"buffer_load_dwordx4 {v(vg)}, {s(srd, 4)}, {s(S_T1)} offen{flag} lds")
    A("s_barrier")
    for i in range(NS):
        issue(i)
    n = len(stages)
    for i, ((_, _, pair, tiles), t) in enumerate(stages):
        A(f"s_waitcnt vmcnt({8 * (min(i + NS, n) - i - 1)})")
        A("s_barrier")
        skip = A.new("lw")
        if pair is not None:
            A(f"s_bitcmp{1 - pair}_b32 {s(S_WAVE)}, 1")
            A(f"s_cbranch_scc1 {skip}")
        for reg, dst in tiles:
            for k in range(8):
                for q in range(2):
                    A(f"ds_read_b64_tr_b16 {r(dst + (8 * (k >> 1) + 2 * t + (k & 1)) * 4 + 2 * q, 2)}, {v(reg)} offset:{k * 4096 + q * qstep}")
        A.label(skip)
        for reg in regs:
            A(f"v_add_u32 {v(reg)}, {SZ if i % NS < NS - 1 else -(NS - 1) * SZ}, {v(reg)}")
        A("s_waitcnt lgkmcnt(0)")
        A("s_barrier")
        if i + NS < n:
            issue(i + NS)


def dma_list(ngroups, m0base, m0add, src, vd, js=(0, 1, 2, 3)):
    ops = []
    for gi in range(ngroups):
        ops.append(f"s_add_u32 m0, {s(m0base)}, {m0add + gi * 16384}")
        ops.append(f"s_add_u32 {s(S_T1)}, {s(src)}, {gi * 16384}")
        for j in js:
            ops.append(f"buffer_load_dwordx4 {v(vd)}, {s(SWS, 4)}, {s(S_T1)} offen offset:{1024 * j} sc1 lds")
    return ops


def reader(vr, nblk, tmajor):
    def rd(i):
        T, ks = (i // (nblk // 2), i % (nblk // 2)) if tmajor else (i & 1, i >> 1)
        return f"ds_read_b128 {v(FR + 4 * (i % 8), 4)}, {v(vr)} offset:{2048 * ks + 1024 * T}"
    return rd


def first_reads(A, rd):
    for b in range(7):
        A(rd(b))


def fits(ops):
    t = 4
    for op in ops:
        if op.startswith("s_"):
            t += 4
        else:
            t = max(t, 8) + (8 if op.startswith(("v_exp", "v_rcp", "buffer_store_dwordx4")) else 4)
    return t <= 16


def job(A, nblk, rd, tmajor, tiles, fillers, lo=0, hi=None, nxt=None, syncs={}):
    hi = nblk if hi is None else hi
    mf, pre, nt = [], {}, len(tiles)
    for b in range(lo, hi):
        T, ks = (b // (nblk // 2), b % (nblk // 2)) if tmajor else (b & 1, b >> 1)
        if b % 2 == 0 and nxt is None:
            pre[len(mf)] = f"s_waitcnt lgkmcnt({min(5, nblk - 2 - b)})"
        for acc, w, swap in tiles:
            x, y = r(w(ks), 4), v(FR + 4 * (b % 8), 4)
            if swap:
                x, y = y, x
            mf.append(f"{MF} {v(acc(T), 4)}, {x}, {y}, {v(acc(T), 4) if ks else 0}")
    n = len(mf)
    at = [[] for _ in range(n)]
    for i, w in pre.items():
        if i:
            at[i - 1].append(w)
    for b in range(lo, min(hi, nblk - 7)):
        at[(b - lo) * nt] += syncs.get(b + 7, []) + [rd(b + 7)]
    if nxt:
        assert lo == nblk - 5 and hi == nblk
        for k, j in ((0, 0), (0, 1), (1, 2), (nt, 3), (2 * nt, 4), (3 * nt, 5), (4 * nt, 6)):
            at[k].append(nxt(j))
    k = 0
    for start, step, ops in fillers:
        k = max(k, start) if start >= 0 else -start
        for op in ops:
            if op.startswith("END"):
                assert k < int(op[4:]), "sequence ends too late"
                continue
            if op.startswith("GAP"):
                k += int(op[4:])
                continue
            while True:
                assert k < n, "fillers do not fit"
                front = op.startswith("s_") and all(x.startswith("ds_read") for x in at[k])
                cand = [op] + at[k] if front else at[k] + [op]
                if fits(cand):
                    at[k] = cand
                    break
                k += 1
            if op.startswith("buffer"):
                k += step
    if 0 in pre:
        A(pre[0])
    scc = None
    for i in range(n):
        A(mf[i])
        for op in at[i]:
            if op.startswith("s_cselect"):
                assert scc.startswith("s_cmp"), "SCC overwritten"
            elif op.startswith("s_") and not op.startswith(("s_waitcnt", "s_mov", "s_nop", "s_mul", "s_barrier")):
                scc = op
            A(op)


def tag(ops, name):
    return [op + f" ;@{name}" if op.startswith("buffer") else op for op in ops]


def resolve(A, first):
    body = A.lines[first:]
    out = list(body)
    for i, ln in enumerate(body):
        if "vmcnt(@" in ln:
            names = ln[ln.index("(@") + 2:ln.index(")")].split(",")
            n, k = 0, i
            while True:
                k -= 1
                x = body[k % len(body)]
                if x.startswith("buffer"):
                    if any(x.endswith(";@" + t) for t in names):
                        break
                    n += 1
            out[i] = ln[:ln.index("(@")] + f"({n}" + ln[ln.index(")"):]
    A.lines[first:] = [x.split(" ;@")[0] for x in out]


def split_loads(ops, counts):
    idx = [i for i, op in enumerate(ops) if op.startswith("buffer")]
    cuts, acc = [0], 0
    for c in counts:
        acc += c
        cuts.append(idx[acc - 1] + 1 if acc else 0)
    cuts.append(len(ops))
    return [ops[a:b] for a, b in zip(cuts, cuts[1:])]


def lines(f):
    B = Asm()
    f(B)
    return B.lines


def decide(A, need, vf, rdy, src, nxt, spaced=False):
    A(f"v_cmp_gt_u32 vcc, {s(need)}, {v(vf)}")
    if spaced:
        A("GAP 2")
    A("s_cmp_eq_u64 vcc, 0")
    A(f"s_cselect_b32 {s(rdy)}, 1, 0")
    A(f"s_cselect_b32 {s(src)}, {s(nxt)}, {hex(OOB)}")


def common_regs(A, share):
    A(f"s_mul_i32 {s(S_M0)}, {s(S_WAVE)}, {share}")
    A(f"v_lshlrev_b32 {v(VR)}, 4, {v(LANE)}")
    A(f"v_add_u32 {v(VD)}, {s(S_M0)}, {v(VR)}")


def start_role(A, base, extra=None):
    line_addr(A, VPA, 0, base, S_CU, TMP)
    A(f"v_mov_b32 {v(VP)}, 0")
    A(f"buffer_store_dword {v(VP)}, {v(VPA)}, {s(SWS, 4)}, 0 offen sc1")
    A(f"s_mov_b32 {s(S_T2)}, 1")
    if extra:
        extra()
    arrive(A, S_T2, extra is None, join=False)


def stream1(A, cfg, tiles, epi, flag_for, advance_src, outstep, abort, sig, limit, landed=None):
    wait, entry, out, skip, join = (A.new(x) for x in ("sw", "se", "so", "sk", "sj"))
    ldf = lambda B=A: B(f"buffer_load_dword {v(VF)}, {v(VFA)}, {s(SWS, 4)}, {s(S_FA)} offen sc1")
    tst = lambda: A(f"v_cmp_gt_u32 vcc, {s(S_NEED)}, {v(VF)}")
    rd = reader(VR, 64, False)
    A(f"s_mov_b32 {s(S_STEP)}, 0")
    lap_init(A, cfg)
    lap(A, cfg, 7)
    flag_for(A, 0)
    A.label(wait)
    block_on(A, ldf, tst, abort, 1)
    lap(A, cfg, 5)
    for op in dma_list(4, S_M0, 0, S_NXT, VD):
        A(op)
    ldf()
    A.label(entry)
    A("s_waitcnt vmcnt(13)")
    A("s_barrier")
    lap(A, cfg, 6)
    first_reads(A, rd)
    advance_src()
    A(f"s_xor_b32 {s(S_M0)}, {s(S_M0)}, 0x10000")
    A(f"s_add_u32 {s(S_OUT)}, {s(S_OUT)}, {outstep}")
    A(f"s_add_u32 {s(S_STEP)}, {s(S_STEP)}, 1")
    flag_for(A, 0)
    nt = len(tiles)
    lap(A, cfg, 2)
    job(A, 64, rd, False, tiles, [(64 * nt - cfg.s1_flag, 1, lines(ldf))],
        syncs={16 * c: [f"s_waitcnt vmcnt({13 - 4 * c})", "s_barrier"] for c in (1, 2, 3)})
    lap(A, cfg, 3)
    A(f"v_xor_b32 {v(VR)}, 0x10000, {v(VR)}")
    A(f"v_mov_b32 {v(VP)}, {s(S_STEP)}")
    mark(A, cfg, s(S_STEP))
    A("s_waitcnt vmcnt(0)")
    tst()
    if landed:
        landed()
    A.nop(4)
    epi()
    A(f"s_mov_b32 {s(S_RDY)}, 0")
    A(f"s_cbranch_vccnz {skip}")
    A(f"s_mov_b32 {s(S_RDY)}, 1")
    for op in dma_list(4, S_M0, 0, S_NXT, VD):
        A(op)
    A("s_waitcnt vmcnt(16)")
    A(f"s_branch {join}")
    A.label(skip)
    A("s_waitcnt vmcnt(0)")
    A.label(join)
    A("s_barrier")
    sig()
    lap(A, cfg, 4)
    A(f"s_cmp_eq_u32 {s(S_STEP)}, {limit}")
    A(f"s_cbranch_scc1 {out}")
    A(f"s_cmp_lg_u32 {s(S_RDY)}, 0")
    A(f"s_cbranch_scc1 {entry}")
    A(f"s_branch {wait}")
    A.label(out)


def pack8(A, dst, a, b):
    for i in range(2):
        A(f"v_cvt_pk_bf16_f32 {v(dst + i)}, {v(a + 2 * i)}, {v(a + 2 * i + 1)}")
    for i in range(2):
        A(f"v_cvt_pk_bf16_f32 {v(dst + 2 + i)}, {v(b + 2 * i)}, {v(b + 2 * i + 1)}")


def await_helpers(A, n, abort, t=TMP):
    A(f"v_lshlrev_b32 {v(t)}, 7, {v(LANE)}")
    A(f"s_mov_b32 {s(S_T0)}, {L.P1}")
    block_on(A, lambda: A(f"buffer_load_dword {v(t + 1)}, {v(t)}, {s(SWS, 4)}, {s(S_T0)} offen sc1"),
             lambda: A(f"v_cmp_gt_u32 vcc, {n}, {v(t + 1)}"), abort, 2)


def octet_addrs(A, s_oct, s_cg):
    A(f"v_lshrrev_b32 {v(TMP)}, 3, {v(LANE)}")
    A(f"v_and_b32 {v(TMP + 1)}, 7, {v(LANE)}")
    A(f"s_lshr_b32 {s(S_T0)}, {s(s_oct)}, 1")
    A(f"s_lshl_b32 {s(S_T0)}, {s(S_T0)}, 10")
    A(f"s_and_b32 {s(S_T1)}, {s(s_oct)}, 1")
    A(f"s_lshl_b32 {s(S_T1)}, {s(S_T1)}, 7")
    A(f"s_add_u32 {s(S_T0)}, {s(S_T0)}, {s(S_T1)}")
    A(f"s_lshl_b32 {s(S_T1)}, {s(s_cg)}, 12")
    A(f"s_add_u32 {s(S_T0)}, {s(S_T0)}, {s(S_T1)}")
    A(f"v_lshl_add_u32 {v(VO)}, {v(TMP + 1)}, 4, {s(S_T0)}")
    A(f"v_and_b32 {v(TMP + 2)}, 3, {v(TMP)}")
    A(f"v_lshl_add_u32 {v(VO)}, {v(TMP + 2)}, 8, {v(VO)}")
    A(f"v_lshrrev_b32 {v(TMP + 2)}, 2, {v(TMP)}")
    A(f"v_lshl_add_u32 {v(VO)}, {v(TMP + 2)}, 11, {v(VO)}")
    A(f"s_lshl_b32 {s(S_T0)}, {s(s_oct)}, 14")
    A(f"s_lshl_b32 {s(S_T1)}, {s(s_cg)}, 7")
    A(f"s_add_u32 {s(S_T0)}, {s(S_T0)}, {s(S_T1)}")
    A(f"v_lshl_add_u32 {v(VO + 1)}, {v(TMP + 1)}, 11, {s(S_T0)}")
    A(f"v_lshl_add_u32 {v(VO + 1)}, {v(TMP)}, 4, {v(VO + 1)}")
    A(f"s_lshl_b32 {s(S_T0)}, {s(s_cg)}, 8")
    A(f"v_lshl_add_u32 {v(VO + 2)}, {v(TMP)}, 5, {s(S_T0)}")


def unit_consts(A):
    A(f"s_mov_b32 {s(S_P0)}, 0x00003f80")
    A(f"s_mov_b32 {s(S_P1)}, 0x3f800000")


def sum_bf(A, dst, srcs, n):
    for k, x in enumerate(srcs):
        for i in range(2 * n):
            A(f"v_dot2_f32_bf16 {v(dst + i)}, {v(x + (i >> 1))}, {s(S_P0 + (i & 1))}, {v(dst + i) if k else 0}")


def unpack(A, dst, src, n):
    for i in range(n):
        A(f"v_lshlrev_b32 {v(dst + 2 * i)}, 16, {v(src + i)}")
        A(f"v_and_b32 {v(dst + 2 * i + 1)}, 0xffff0000, {v(src + i)}")


def qkv_role(A, cfg, end):
    A.c("projection of token rows onto half a head of q, k and v; afterwards the final sums")
    A(f"v_mov_b32 {v(LANE)}, v1")
    A(f"s_sub_u32 {s(S_CU)}, {s(S_GRP)}, 4")
    if cfg.qmap:
        A(f"s_lshl_b32 {s(S_CU)}, {s(S_CU)}, 1")
        A(f"s_and_b32 {s(S_T0)}, {s(S_TK)}, 1")
        A(f"s_add_u32 {s(S_CU)}, {s(S_CU)}, {s(S_T0)}")
        A(f"s_lshr_b32 {s(S_T0)}, {s(S_TK)}, 1")
        A(f"s_lshl_b32 {s(S_T0)}, {s(S_T0)}, 3")
        A(f"s_add_u32 {s(S_CU)}, {s(S_CU)}, {s(S_T0)}")
    else:
        A(f"s_lshl_b32 {s(S_CU)}, {s(S_CU)}, 4")
        A(f"s_add_u32 {s(S_CU)}, {s(S_CU)}, {s(S_TK)}")
    start_role(A, L.PQ)
    A.srd(SW, 18, SIZE["Wq"])
    A.srd(SW2, 20, SIZE["Wk"])
    A.srd(SW3, 22, SIZE["Wv"])
    A(f"s_lshl_b32 {s(S_P0)}, {s(S_CU)}, 7")
    A(f"s_xor_b32 {s(S_P1)}, {s(S_P0)}, {4 << 7}")
    A(f"s_xor_b32 {s(S_P2)}, {s(S_P0)}, {2 << 7}")
    if cfg.pmajor:
        A(f"s_and_b32 {s(S_T2)}, {s(S_WAVE)}, 1")
        A(f"s_lshl_b32 {s(S_T2)}, {s(S_T2)}, 6")
        for T in range(2):
            tile_addr(A, TMP + T, "N", False, S_T2, 32 * T, TMP + 4, TMP + 5)
        A(f"s_lshl_b32 {s(S_T2)}, {s(S_WAVE)}, 5")
        tile_addr(A, TMP + 2, "N", False, S_T2, 0, TMP + 4, TMP + 5)
        pair = [(TMP, 256), (TMP + 1, 384)]
        load_w_panels(A, [(SW3, S_P2, None, [(TMP + 2, 128)]), (SW2, S_P1, 1, pair), (SW, S_P0, 0, pair)], 8192, "N",
                      TMP + 4, WFLAG[cfg.whi])
    else:
        A(f"s_lshr_b32 {s(S_T2)}, {s(S_WAVE)}, 1")
        A(f"s_lshl_b32 {s(S_T2)}, {s(S_T2)}, 14")
        A(f"s_and_b32 {s(S_T3)}, {s(S_WAVE)}, 1")
        A(f"s_lshl_b32 {s(S_T3)}, {s(S_T3)}, 6")
        A(f"s_add_u32 {s(S_T2)}, {s(S_T2)}, {s(S_T3)}")
        for T in range(2):
            tile_addr(A, TMP + T, "N", False, S_T2, 32 * T, TMP + 4, TMP + 5)
        A(f"s_lshl_b32 {s(S_T2)}, {s(S_WAVE)}, 5")
        tile_addr(A, TMP + 2, "N", False, S_T2, 32768, TMP + 4, TMP + 5)
        load_w(A, [(SW, S_P0), (SW2, S_P1), (SW3, S_P2)], 8192, 8,
               [(TMP, 256), (TMP + 1, 384), (TMP + 2, 128)], "N", TMP + 4, WFLAG[cfg.whi], None, cfg.ramp_hi)
    mark(A, cfg, 1)
    await_start(A, end, hi_only=True)
    common_regs(A, 4096)
    lines_addr(A, VFA, LANE, 2)
    A(f"s_and_b32 {s(S_T2)}, {s(S_CU)}, 1")
    A(f"s_lshr_b32 {s(S_T0)}, {s(S_WAVE)}, 1")
    A(f"s_lshl_b32 {s(S_T0)}, {s(S_T0)}, 3")
    A(f"s_and_b32 {s(S_T1)}, {s(S_WAVE)}, 1")
    A(f"s_add_u32 {s(S_T0)}, {s(S_T0)}, {s(S_T1)}")
    A(f"s_lshl_b32 {s(S_T1)}, {s(S_T2)}, 1")
    A(f"s_add_u32 {s(S_T0)}, {s(S_T0)}, {s(S_T1)}")
    A(f"s_lshl_b32 {s(S_T0)}, {s(S_T0)}, 10")
    A(f"s_lshr_b32 {s(S_T3)}, {s(S_CU)}, 1")
    A(f"s_and_b32 {s(S_T1)}, {s(S_WAVE)}, 2")
    A(f"s_xor_b32 {s(S_T1)}, {s(S_T1)}, {s(S_T3)}")
    A(f"s_mul_i32 {s(S_T1)}, {s(S_T1)}, 24576")
    A(f"s_add_u32 {s(S_T0)}, {s(S_T0)}, {s(S_T1)}")
    A(f"v_add_u32 {v(VO)}, {s(S_T0)}, {v(VR)}")
    A(f"v_add_u32 {v(VO + 1)}, 4096, {v(VO)}")
    A(f"s_lshl_b32 {s(S_T0)}, {s(S_T2)}, 2")
    A(f"s_add_u32 {s(S_T0)}, {s(S_T0)}, {s(S_WAVE)}")
    A(f"s_add_u32 {s(S_T0)}, {s(S_T0)}, 16")
    A(f"s_lshl_b32 {s(S_T0)}, {s(S_T0)}, 10")
    A(f"s_xor_b32 {s(S_T1)}, {s(S_T3)}, 1")
    A(f"s_mul_i32 {s(S_T1)}, {s(S_T1)}, 24576")
    A(f"s_add_u32 {s(S_T0)}, {s(S_T0)}, {s(S_T1)}")
    A(f"v_add_u32 {v(VO + 2)}, {s(S_T0)}, {v(VR)}")
    A(f"s_mov_b32 {s(S_OUT)}, {L.QKV - 32 * 24576}")
    A(f"s_mov_b32 {s(S_NXT)}, {L.H1}")

    def epi():
        for i in range(3):
            pack8(A, TMP + 4 * i, ACC + 8 * i, ACC + 8 * i + 4)
            A(f"buffer_store_dwordx4 {v(TMP + 4 * i, 4)}, {v(VO + i)}, {s(SWS, 4)}, {s(S_OUT)} offen sc1")

    def flag_for(B, d):
        B(f"s_add_u32 {s(S_NEED)}, {s(S_STEP)}, {d}")
        B(f"s_and_b32 {s(S_FA)}, {s(S_NEED)}, 31")
        B(f"s_lshl_b32 {s(S_FA)}, {s(S_FA)}, 8")
        B(f"s_add_u32 {s(S_FA)}, {s(S_FA)}, {L.P1}")
        B(f"s_lshr_b32 {s(S_NEED)}, {s(S_NEED)}, 5")
        B(f"s_lshl_b32 {s(S_NEED)}, 1, {s(S_NEED)}")
        B(f"s_add_u32 {s(S_NEED)}, {s(S_NEED)}, 1")
    tiles = [(lambda T: ACC + 8 * T, lambda ks: 256 + 4 * ks, False),
             (lambda T: ACC + 8 * T + 4, lambda ks: 384 + 4 * ks, False),
             (lambda T: ACC + 16 + 4 * T, lambda ks: 128 + 4 * ks, True)]
    sig = lambda B=A: B(f"buffer_store_dword {v(VP)}, {v(VPA)}, {s(SWS, 4)}, 0 offen sc1")
    A.c("continuous stream; results are stored one segment later")
    loop, more, back = A.new("ql"), A.new("qm"), A.new("qe")
    A(f"s_mov_b32 {s(S_STEP)}, 0")
    lap_init(A, cfg)
    await_helpers(A, 2, end)
    for js in ((0, 2), (1, 3)):
        for op in dma_list(4, S_M0, 0, S_NXT, VD, js):
            A(op)
    A("s_waitcnt vmcnt(8)")
    A("s_barrier")
    rd = reader(VR, 64, True)
    first_reads(A, rd)
    A(f"s_mov_b32 {s(S_SRC5)}, {hex(OOB)}")
    A(f"s_mov_b32 {s(S_NEED)}, 28")
    cvt = lambda d, x: f"v_cvt_pk_bf16_f32 {v(d)}, {v(x)}, {v(x + 1)}"
    half = lambda T: [cvt(TMP + 4 * T + i, ACC + 8 * T + 2 * i) for i in range(4)] + \
        [cvt(TMP + 8 + 2 * T + i, ACC + 16 + 4 * T + 2 * i) for i in range(2)]
    stores = [f"buffer_store_dwordx4 {v(TMP + 4 * i, 4)}, {v(VO + i)}, {s(SWS, 4)}, {s(S_SRC5)} offen sc1" for i in range(3)]
    A.label(loop)
    head = [f"s_add_u32 {s(S_NXT)}, {s(S_NXT)}, 65536", f"s_xor_b32 {s(S_M0)}, {s(S_M0)}, 0x10000",
            f"s_cmp_lt_u32 {s(S_STEP)}, 63", f"s_cselect_b32 {s(S_SRC)}, {s(S_NXT)}, {hex(OOB)}"]
    first = len(A.lines)
    q = cfg.q_step
    t0 = split_loads(tag(dma_list(4, S_M0, 0, S_SRC, VD, (0, 2)), "t0"), [(75 - 26) // q + 1])
    t1 = split_loads(tag(dma_list(4, S_M0, 0, S_SRC, VD, (1, 3)), "t1"), [7])
    job(A, 64, rd, True, tiles,
        [(0, 1, head), (8, cfg.st_step, half(1) + tag(stores, "st") + [f"v_mov_b32 {v(VP)}, {s(S_STEP)}"]),
         (26, q, t0[0]), (-76, q // 2, lines(sig)), (0, q, t0[1] + t1[0]), (-105, 1, half(0)),
         (0, 1, [f"s_add_u32 {s(S_OUT)}, {s(S_OUT)}, {32 * 24576}", f"s_mov_b32 {s(S_SRC5)}, {s(S_OUT)}",
                 f"s_add_u32 {s(S_STEP)}, {s(S_STEP)}, 1"])], 0, 59,
        syncs={32: ["s_waitcnt vmcnt(@st,t1)", "s_barrier"]})
    A(f"v_xor_b32 {v(VR)}, 0x10000, {v(VR)}")
    span(A, cfg)
    A("s_waitcnt vmcnt(@t0) lgkmcnt(0)")
    A("s_barrier")
    job(A, 64, rd, True, tiles, [(7, 1, t1[1]), (11, 1, [f"s_cmp_lt_u32 {s(S_STEP)}, {s(S_NEED)}"])], 59, 64, rd)
    resolve(A, first)
    if cfg.marks == 1:
        mark(A, cfg, s(S_STEP))
        A(f"s_cmp_lt_u32 {s(S_STEP)}, {s(S_NEED)}")
    A(f"s_cbranch_scc1 {loop}")
    A(f"s_cmp_eq_u32 {s(S_STEP)}, 64")
    A(f"s_cbranch_scc1 {back}")
    A.c("the second half of the rows must be normalised by now")
    await_helpers(A, 3, end, 14)
    A(f"s_mov_b32 {s(S_NEED)}, 64")
    A(f"s_branch {loop}")
    A.label(back)
    A.nop(8)
    for op in half(1) + stores:
        A(op)
    A(f"v_mov_b32 {v(VP)}, 64")
    A("s_waitcnt vmcnt(0) lgkmcnt(0)")
    A("s_barrier")
    sig()

    lap_dump(A, cfg)
    A.c("out = x1 + gb * (sum of the seven partial down projections)")
    GB, SUMS, X8, BUF = 16, 24, 32, 64
    ptr(A, 16, "out")
    A(f"s_and_b32 {s(S_T2)}, {s(S_CU)}, 3")
    A(f"s_lshr_b32 {s(S_T3)}, {s(S_CU)}, 2")
    octet_addrs(A, S_T2, S_T3)
    lines_addr(A, VFA, LANE, 7, 10)
    A(f"s_lshr_b32 {s(S_FA)}, {s(S_CU)}, 3")
    A(f"s_lshl_b32 {s(S_FA)}, {s(S_FA)}, 7")
    A(f"s_add_u32 {s(S_FA)}, {s(S_FA)}, {L.P45 + 4}")
    unit_consts(A)
    A("s_waitcnt lgkmcnt(0)")
    A.srd(SW, 16, SIZE["out"])
    await_helpers(A, 4, end)
    A(f"s_mov_b32 {s(S_T0)}, {L.MOD + 4 * 5120}")
    for i in range(2):
        A(f"buffer_load_dwordx4 {v(GB + 4 * i, 4)}, {v(VO + 2)}, {s(SWS, 4)}, {s(S_T0)} offen offset:{16 * i} sc1")
    A(f"s_mov_b32 {s(S_STEP)}, {s(S_WAVE)}")
    for nb, limit in ((4, 48), (1, 64)):
        loop = A.new("fin")
        A.label(loop)
        A(f"s_add_u32 {s(S_NEED)}, {s(S_STEP)}, {4 * (nb - 1) + 1}")
        block_on(A, lambda: A(f"buffer_load_dword {v(VF)}, {v(VFA)}, {s(SWS, 4)}, {s(S_FA)} offen sc1"),
                 lambda: A(f"v_cmp_gt_u32 vcc, {s(S_NEED)}, {v(VF)}"), end, 32 if nb == 4 else cfg.fin_sleep)
        A(f"s_lshl_b32 {s(S_OUT)}, {s(S_STEP)}, 16")
        for b in range(nb):
            for k in range(8):
                base = L.X1 if k == 7 else L.PART5 + k * 4 * L.MB
                A(f"s_add_u32 {s(S_T1)}, {s(S_OUT)}, {base + b * 4 * 65536}")
                A(f"buffer_load_dwordx4 {v(BUF + 32 * b + 4 * k, 4)}, {v(VO)}, {s(SWS, 4)}, {s(S_T1)} offen sc1")
        for b in range(nb):
            A(f"s_waitcnt vmcnt({8 * (nb - 1 - b) + b})")
            sum_bf(A, SUMS, [BUF + 32 * b + 4 * k for k in range(7)], 4)
            unpack(A, X8, BUF + 32 * b + 28, 4)
            for i in range(4):
                A(f"v_pk_fma_f32 {v(X8 + 2 * i, 2)}, {v(SUMS + 2 * i, 2)}, {v(GB + 2 * i, 2)}, {v(X8 + 2 * i, 2)}")
            pack8(A, 40 + 4 * b, X8, X8 + 4)
            A(f"s_add_u32 {s(S_T1)}, {s(S_OUT)}, {b * 4 * 65536}")
            A(f"buffer_store_dwordx4 {v(40 + 4 * b, 4)}, {v(VO + 1)}, {s(SW, 4)}, {s(S_T1)} offen{WFLAG[cfg.outflag]}")
        A(f"s_add_u32 {s(S_STEP)}, {s(S_STEP)}, {4 * nb}")
        A(f"s_cmp_lt_u32 {s(S_STEP)}, {limit}")
        A(f"s_cbranch_scc1 {loop}")
        mark(A, cfg, 2 if nb == 4 else 3)
    A("s_endpgm")


def g3_role(A, cfg, end):
    A.c("output projection of token rows: this group's heads x 128 columns")
    A(f"v_mov_b32 {v(LANE)}, v1")
    A(f"s_sub_u32 {s(S_K)}, {s(S_TK)}, 24")
    A(f"s_lshl_b32 {s(S_CU)}, {s(S_GRP)}, 3")
    A(f"s_add_u32 {s(S_CU)}, {s(S_CU)}, {s(S_K)}")

    def extra():
        skip = A.new("np")
        A(f"s_mov_b32 {s(S_T0)}, 4096")
        A(f"buffer_store_dword {v(VP)}, {v(VPA)}, {s(SWS, 4)}, {s(S_T0)} offen sc1")
        line_addr(A, VO + 1, 0, L.PB, S_CU, TMP)
        A(f"buffer_store_dword {v(VP)}, {v(VO + 1)}, {s(SWS, 4)}, 0 offen sc1")
        A(f"s_lshl_b32 {s(S_T0)}, {s(S_IRR)}, 16")
        A(f"s_or_b32 {s(S_T2)}, {s(S_T2)}, {s(S_T0)}")
    start_role(A, L.P3, extra)
    A.srd(SW, 24, SIZE["Wo"])
    A(f"s_lshl_b32 {s(S_P0)}, {s(S_GRP)}, 21")
    A(f"s_lshl_b32 {s(S_T0)}, {s(S_K)}, 8")
    A(f"s_add_u32 {s(S_P0)}, {s(S_P0)}, {s(S_T0)}")
    A(f"s_add_u32 {s(S_P1)}, {s(S_P0)}, 128")
    pair_tiles(A, "P")
    load_w(A, [(SW, S_P0), (SW, S_P1)], 2048, 8, [(TMP, 256), (TMP + 1, 384)], "P", TMP + 4)
    mark(A, cfg, 1)
    await_start(A, end, probed=True)
    common_regs(A, 4096)
    words_addr(A, VFA, LANE, 8, TMP)
    A(f"s_lshl_b32 {s(S_FA)}, {s(S_GRP)}, 10")
    A(f"s_add_u32 {s(S_FA)}, {s(S_FA)}, {L.PO}")
    A(f"v_mov_b32 {v(VO)}, {v(VR)}")
    A(f"s_lshl_b32 {s(S_T0)}, {s(S_K)}, 2")
    A(f"s_add_u32 {s(S_T0)}, {s(S_T0)}, {s(S_WAVE)}")
    A(f"s_lshl_b32 {s(S_T0)}, {s(S_T0)}, 11")
    A(f"s_lshl_b32 {s(S_OUT)}, {s(S_GRP)}, 22")
    A(f"s_add_u32 {s(S_OUT)}, {s(S_OUT)}, {s(S_T0)}")
    A(f"s_add_u32 {s(S_OUT)}, {s(S_OUT)}, {L.PART3 - 65536}")
    A(f"s_lshl_b32 {s(S_NXT)}, {s(S_GRP)}, 16")
    A(f"s_add_u32 {s(S_NXT)}, {s(S_NXT)}, {L.OTOK}")
    A.c("bring one slot of the token-output ring into this die's L2")
    A(f"s_lshl_b32 {s(S_SRC)}, {s(S_K)}, 18")
    A(f"s_add_u32 {s(S_SRC)}, {s(S_SRC)}, {s(S_NXT)}")
    for op in dma_list(4, S_M0, 0, S_SRC, VD):
        A(op)

    def epi():
        for T in range(2):
            pack8(A, TMP + 4 * T, ACC + 8 * T, ACC + 8 * T + 4)
            A(f"buffer_store_dwordx4 {v(TMP + 4 * T, 4)}, {v(VO)}, {s(SWS, 4)}, {s(S_OUT)} offen offset:{1024 * T} sc1")
    tiles = [(lambda T: ACC + 8 * T, lambda ks: 256 + 4 * ks, False),
             (lambda T: ACC + 8 * T + 4, lambda ks: 384 + 4 * ks, False)]

    def sig():
        A(f"s_and_b32 {s(S_T0)}, {s(S_STEP)}, 1")
        A(f"s_lshl_b32 {s(S_T0)}, {s(S_T0)}, 12")
        A(f"buffer_store_dword {v(VP)}, {v(VPA)}, {s(SWS, 4)}, {s(S_T0)} offen sc1")

    def landed():
        far, out = A.new("lf"), A.new("lo")
        A(f"v_add_u32 {v(VO + 2)}, 1, {v(VO + 2)}")
        A(f"s_cmp_lg_u32 {s(S_IRR)}, 0")
        A(f"s_cbranch_scc1 {far}")
        A(f"buffer_store_dword {v(VO + 2)}, {v(VO + 1)}, {s(SWS, 4)}, 0 offen")
        A(f"s_branch {out}")
        A.label(far)
        A(f"buffer_store_dword {v(VO + 2)}, {v(VO + 1)}, {s(SWS, 4)}, 0 offen sc1")
        A.label(out)
    A(f"v_mov_b32 {v(VO + 2)}, 0")

    def advance():
        A(f"s_add_u32 {s(S_NXT)}, {s(S_NXT)}, 262144")
        A(f"s_bitset0_b32 {s(S_NXT)}, 21")
    stream1(A, cfg, tiles, epi, lambda B, d: B(f"s_add_u32 {s(S_NEED)}, {s(S_STEP)}, {d + 1}"), advance, 65536, end,
            sig, 64, landed)
    lap_dump(A, cfg)
    A("s_endpgm")


def pair_tiles(A, order):
    A(f"s_lshr_b32 {s(S_T2)}, {s(S_WAVE)}, 1")
    A(f"s_lshl_b32 {s(S_T2)}, {s(S_T2)}, 14")
    A(f"s_and_b32 {s(S_T3)}, {s(S_WAVE)}, 1")
    A(f"s_lshl_b32 {s(S_T3)}, {s(S_T3)}, 6")
    A(f"s_add_u32 {s(S_T2)}, {s(S_T2)}, {s(S_T3)}")
    for T in range(2):
        tile_addr(A, TMP + T, order, True, S_T2, 8 * T, TMP + 4, TMP + 5)


def row_total(A, T, bits, wr, rd, off):
    A(f"v_add_f32 {v(T)}, {v(T)}, {v(T + 1)}")
    xor_reduce(A, "v_add_f32", T, T + 1, bits)
    A(f"ds_write_b32 {v(wr)}, {v(T)} offset:{off}")
    A("s_waitcnt lgkmcnt(0)")
    A("s_barrier")
    A(f"ds_read_b128 {v(T, 4)}, {v(rd)} offset:{off}")
    A("s_waitcnt lgkmcnt(0)")
    A(f"v_pk_add_f32 {v(T, 2)}, {v(T, 2)}, {v(T + 2, 2)}")
    A(f"v_add_f32 {v(T)}, {v(T)}, {v(T + 1)}")
    A(f"v_mul_f32 {v(T)}, 0x3a800000, {v(T)}")


def normalise(A, F, n, T, bits, wr, rd):
    A(f"v_pk_add_f32 {v(T, 2)}, {v(F, 2)}, {v(F + 2, 2)}")
    for i in range(2, n // 2):
        A(f"v_pk_add_f32 {v(T, 2)}, {v(T, 2)}, {v(F + 2 * i, 2)}")
    row_total(A, T, bits, wr, rd, 512)
    for i in range(n // 2):
        A(f"v_pk_add_f32 {v(F + 2 * i, 2)}, {v(F + 2 * i, 2)}, {v(T, 2)} op_sel_hi:[1,0] neg_lo:[0,1] neg_hi:[0,1]")
    A(f"v_pk_mul_f32 {v(T, 2)}, {v(F, 2)}, {v(F, 2)}")
    for i in range(1, n // 2):
        A(f"v_pk_fma_f32 {v(T, 2)}, {v(F + 2 * i, 2)}, {v(F + 2 * i, 2)}, {v(T, 2)}")
    row_total(A, T, bits, wr, rd, 768)
    A(f"v_add_f32 {v(T)}, 0x3727c5ac, {v(T)}")
    A(f"v_rsq_f32 {v(T)}, {v(T)}")
    A("s_nop 0")
    for i in range(n // 2):
        A(f"v_pk_mul_f32 {v(F + 2 * i, 2)}, {v(F + 2 * i, 2)}, {v(T, 2)} op_sel_hi:[1,0]")


def stat_addrs(A, wr, rd, mask):
    A(f"v_and_b32 {v(rd)}, {mask}, {v(LANE)}")
    A(f"v_lshlrev_b32 {v(rd)}, 4, {v(rd)}")
    A(f"s_lshl_b32 {s(S_T0)}, {s(S_WAVE)}, 2")
    A(f"v_add_u32 {v(wr)}, {s(S_T0)}, {v(rd)}")


def helper_start(A, cfg, end):
    X, F, SH, SC, T = 16, 48, 112, 176, 240
    P1A, WR, RD, VA, VX, VG = 10, 11, 12, 13, 6, 7
    A(f"v_mov_b32 {v(LANE)}, v1")
    A(f"s_sub_u32 {s(S_T2)}, {s(S_GRP)}, 4")
    A(f"s_lshl_b32 {s(S_K)}, {s(S_TK)}, 2")
    A(f"s_add_u32 {s(S_K)}, {s(S_K)}, {s(S_T2)}")
    A(f"s_sub_u32 {s(S_K)}, {s(S_K)}, 64")
    A(f"s_lshr_b32 {s(S_T0)}, {s(S_T2)}, 1")
    A(f"s_lshl_b32 {s(S_T1)}, {s(S_T0)}, 3")
    A(f"s_add_u32 {s(S_T1)}, {s(S_T1)}, 16")
    A(f"s_lshl_b32 {s(S_T0)}, {s(S_T0)}, 2")
    A(f"s_cmp_ge_u32 {s(S_TK)}, 28")
    A(f"s_cselect_b32 {s(S_T3)}, 28, 24")
    A(f"s_add_u32 {s(S_T0)}, {s(S_T0)}, {s(S_T3)}")
    A(f"s_cmp_ge_u32 {s(S_TK)}, 24")
    A(f"s_cselect_b32 {s(S_T0)}, {s(S_T0)}, {s(S_T1)}")
    A(f"s_lshl_b32 {s(S_T1)}, {s(S_T2)}, 3")
    A(f"s_sub_u32 {s(S_T1)}, {s(S_T1)}, 16")
    A(f"s_bitcmp1_b32 {s(S_T2)}, 0")
    A(f"s_cselect_b32 {s(S_T0)}, {s(S_T0)}, {s(S_T1)}")
    A(f"s_add_u32 {s(S_CU)}, {s(S_T0)}, {s(S_TK)}")
    ptr(A, 16, "wmod")
    ptr(A, 18, "c")
    ptr(A, 20, "x")
    line_addr(A, P1A, 0, L.P1, S_K, TMP)
    line_addr(A, 8, 0, L.P45, S_CU, TMP)
    A("v_mov_b32 v14, 0")
    A("v_mov_b32 v15, 0")
    A(f"buffer_store_dword v14, {v(P1A)}, {s(SWS, 4)}, 0 offen sc1")
    A(f"buffer_store_dwordx2 v[14:15], v8, {s(SWS, 4)}, 0 offen sc1")
    A("s_waitcnt lgkmcnt(0)")
    A.srd(SW, 16, SIZE["wmod"])
    A.srd(SW2, 18, SIZE["c"])
    A.srd(SW3, 20, SIZE["x"])

    def stage(n, join=True):
        A(f"v_mov_b32 v14, {n}")
        A("s_waitcnt vmcnt(0)")
        if join:
            A("s_barrier")
        A(f"buffer_store_dword v14, {v(P1A)}, {s(SWS, 4)}, 0 offen sc1")

    stat_addrs(A, WR, RD, 15)
    A(f"v_lshlrev_b32 {v(VA)}, 4, {v(LANE)}")
    A(f"v_lshrrev_b32 {v(VG)}, 4, {v(LANE)}")
    A(f"v_lshlrev_b32 {v(VX)}, 7, {v(RD)}")
    A(f"v_lshl_add_u32 {v(VX)}, {v(VG)}, 4, {v(VX)}")
    A(f"v_lshlrev_b32 {v(VG)}, 5, {v(VG)}")

    def x_rows():
        for rep in range(2):
            A(f"s_add_u32 {s(S_T2)}, {s(S_K)}, {64 * rep}")
            A(f"s_lshl_b32 s41, {s(S_T2)}, 15")
            A(f"s_lshl_b32 s42, {s(S_WAVE)}, 9")
            A("s_add_u32 s41, s41, s42")
            for k in range(8):
                A(f"buffer_load_dwordx4 {a(32 * rep + 4 * k, 4)}, {v(VX)}, {s(SW3, 4)}, s41 offen offset:{64 * k}")
        return 16
    A(f"s_lshr_b32 {s(S_P0)}, {s(S_K)}, 1")
    A(f"s_and_b32 {s(S_P1)}, {s(S_K)}, 1")
    A(f"s_lshl_b32 {s(S_P2)}, {s(S_P0)}, 8")
    A(f"s_lshl_b32 {s(S_T0)}, {s(S_P1)}, 13")
    A(f"s_add_u32 {s(S_P2)}, {s(S_P2)}, {s(S_T0)}")
    A(f"s_add_u32 {s(S_P2)}, {s(S_P2)}, {L.MODP}")
    A(f"s_min_u32 {s(S_T0)}, {s(S_WAVE)}, 1")
    A(f"s_lshl_b32 {s(S_T0)}, {s(S_T0)}, 30")
    A(f"s_add_u32 {s(S_T0)}, {s(S_T0)}, {s(S_P2)}")
    A(f"v_lshlrev_b32 v2, 2, {v(LANE)}")
    A("v_mov_b32 v3, -1")
    A(f"buffer_store_dword v3, v2, {s(SWS, 4)}, {s(S_T0)} offen sc1")
    A(f"s_mov_b32 {s(S_T2)}, 1")
    arrive(A, S_T2, True, join=False, t=14)
    mod_addr(A)
    mod_pass(A, S_P0, S_P1, SW, SW2, WFLAG[cfg.wmod], x_rows)
    mod_finish(A, S_WAVE, S_P2, False)
    await_start(A, end, 14, True)
    mark(A, cfg, 4)
    for rep in range(2):
        A(f"s_add_u32 {s(S_T2)}, {s(S_K)}, {64 * rep}")
        for k in range(32):
            A(f"v_accvgpr_read_b32 {v(X + k)}, {a(32 * rep + k)}")
        A(f"s_lshr_b32 s40, {s(S_T2)}, 1")
        A("s_lshl_b32 s40, s40, 2")
        A(f"s_add_u32 s40, s40, {s(S_WAVE)}")
        A("s_lshl_b32 s40, s40, 14")
        A(f"s_and_b32 s41, {s(S_T2)}, 1")
        A("s_lshl_b32 s41, s41, 10")
        A("s_add_u32 s40, s40, s41")
        unpack(A, F, X, 32)
        normalise(A, F, 64, T, (16, 32), WR, RD)
        if rep == 0:
            A.c("shift and 1+scale, summed and rounded once per workgroup, shared through LDS")
            A("v_lshlrev_b32 v14, 5, v0")

            def parts():
                for h in range(2):
                    A(f"s_mov_b32 s42, {L.MODP + 8192 * h}")
                    for i in range(2):
                        A(f"buffer_load_dwordx4 {v(X + 8 * h + 4 * i, 4)}, v14, {s(SWS, 4)}, s42 offen offset:{16 * i} sc1")
            block_on(A, parts, lambda: check(A, X, 16, 15), end, 4)
            A(f"s_cmp_ge_u32 {s(S_WAVE)}, 2")
            A("s_cselect_b32 s42, 1.0, 0")
            A(f"s_lshl_b32 s43, {s(S_WAVE)}, 10")
            A(f"v_add_u32 {v(VG)}, s43, {v(VG)}")
            A("s_waitcnt vmcnt(0)")
            for i in range(8):
                A(f"v_add_f32 {v(X + i)}, {v(X + i)}, {v(X + 8 + i)}")
            for i in range(8):
                A(f"v_cvt_pk_bf16_f32 {v(X + i)}, 0, {v(X + i)}")
            for i in range(8):
                A(f"v_add_f32 {v(X + i)}, s42, {v(X + i)}")
            for i in range(2):
                A(f"ds_write_b128 v14, {v(X + 4 * i, 4)} offset:{4096 + 16 * i}")
            A("s_waitcnt lgkmcnt(0)")
            A("s_barrier")
            for n in range(16):
                off = 4096 + 128 * (n >> 1) + 16 * (n & 1)
                A(f"ds_read_b128 {v(SH + 4 * n, 4)}, {v(VG)} offset:{off}")
                A(f"ds_read_b128 {v(SC + 4 * n, 4)}, {v(VG)} offset:{off + 4096}")
            A("s_waitcnt lgkmcnt(0)")
        for k in range(8):
            for i in range(4):
                x = 8 * k + 2 * i
                A(f"v_pk_fma_f32 {v(F + x, 2)}, {v(F + x, 2)}, {v(SC + x, 2)}, {v(SH + x, 2)}")
            pack8(A, X + 4 * k, F + 8 * k, F + 8 * k + 4)
            A(f"s_add_u32 s41, s40, {L.H1 + 2048 * k}")
            A(f"buffer_store_dwordx4 {v(X + 4 * k, 4)}, {v(VA)}, {s(SWS, 4)}, s41 offen sc1")
        stage(2 + rep)
        mark(A, cfg, 5 + rep)
    loop = A.new("md")
    A(f"s_add_u32 {s(S_P0)}, {s(S_K)}, 32")
    A(f"s_mov_b32 {s(S_P1)}, 0")
    mod_addr(A)
    A.label(loop)
    mod_pass(A, S_P0, S_P1, SW, SW2, WFLAG[cfg.wmod])
    A(f"s_add_u32 {s(S_P1)}, {s(S_P1)}, 1")
    A(f"s_cmp_lt_u32 {s(S_P1)}, 2")
    A(f"s_cbranch_scc1 {loop}")
    A(f"s_lshl_b32 {s(S_P0)}, {s(S_P0)}, 8")
    A(f"s_add_u32 {s(S_P0)}, {s(S_P0)}, {L.MOD}")
    mod_finish(A, S_WAVE, S_P0, True)
    stage(4, False)
    A(f"v_mov_b32 {v(VPA)}, v8")
    A(f"v_mov_b32 {v(VP)}, 0")
    mark(A, cfg, 7)


def ln_role(A, cfg, end):
    A.c("x1 = x + ga * attention, h2 = modulated layer norm of x1, for 8 tokens of every other segment")
    PB, XB, F, GA, SC, SH, T, WR, RD = 16, 80, 96, 128, 160, 192, 224, 11, 12
    A(f"s_sub_u32 {s(S_K)}, {s(S_CU)}, 56")
    A(f"s_and_b32 {s(S_T2)}, {s(S_K)}, 3")
    A(f"s_lshl_b32 {s(S_T3)}, {s(S_WAVE)}, 2")
    octet_addrs(A, S_T2, S_T3)
    stat_addrs(A, WR, RD, 7)
    unit_consts(A)
    lines_addr(A, VFA, LANE, 32)
    A(f"s_lshr_b32 {s(S_FA)}, {s(S_K)}, 2")
    A(f"s_xor_b32 {s(S_FA)}, {s(S_FA)}, 1")
    A(f"s_lshl_b32 {s(S_FA)}, {s(S_FA)}, 12")
    A(f"s_add_u32 {s(S_FA)}, {s(S_FA)}, {L.P3}")
    await_start(A, end)
    await_helpers(A, 4, end)
    for reg, part in ((GA, 2), (SH, 3), (SC, 4)):
        A(f"s_mov_b32 {s(S_T0)}, {L.MOD + 4096 * part}")
        for i in range(8):
            A(f"buffer_load_dwordx4 {v(reg + 4 * i, 4)}, {v(VO + 2)}, {s(SWS, 4)}, {s(S_T0)} offen offset:{256 * (i >> 1) + 16 * (i & 1)} sc1")
    A("s_waitcnt vmcnt(0)")
    for i in range(16):
        A(f"v_pk_add_f32 {v(SC + 2 * i, 2)}, {v(SC + 2 * i, 2)}, 1.0 op_sel_hi:[1,0]")
    A(f"s_lshr_b32 {s(S_STEP)}, {s(S_K)}, 2")
    loop = A.new("ln")
    A.label(loop)
    A(f"s_lshl_b32 {s(S_OUT)}, {s(S_STEP)}, 16")
    for i in range(4):
        A(f"buffer_load_dwordx4 {v(XB + 4 * i, 4)}, {v(VO + 1)}, {s(SW3, 4)}, {s(S_OUT)} offen offset:{128 * i}")
    A(f"s_add_u32 {s(S_NEED)}, {s(S_STEP)}, 1")

    block_on(A, lambda: A(f"buffer_load_dword {v(VF)}, {v(VFA)}, {s(SWS, 4)}, {s(S_FA)} offen sc1"),
             lambda: A(f"v_cmp_gt_u32 vcc, {s(S_NEED)}, {v(VF)}"), end, cfg.ln_sleep)
    for i in range(4):
        for x in range(4):
            A(f"s_add_u32 {s(S_T1)}, {s(S_OUT)}, {L.PART3 + x * 4 * L.MB + 4096 * i}")
            A(f"buffer_load_dwordx4 {v(PB + 16 * i + 4 * x, 4)}, {v(VO)}, {s(SWS, 4)}, {s(S_T1)} offen sc1")
    unpack(A, F, XB, 16)
    for i in range(4):
        A(f"s_waitcnt vmcnt({4 * (3 - i) + i})")
        sum_bf(A, T, [PB + 16 * i + 4 * x for x in range(4)], 4)
        A("s_nop 1")
        for q in range(4):
            x = 8 * i + 2 * q
            A(f"v_pk_fma_f32 {v(F + x, 2)}, {v(T + 2 * q, 2)}, {v(GA + x, 2)}, {v(F + x, 2)}")
        pack8(A, XB + 4 * i, F + 8 * i, F + 8 * i + 4)
        A(f"s_add_u32 {s(S_T1)}, {s(S_OUT)}, {L.X1 + 4096 * i}")
        A(f"buffer_store_dwordx4 {v(XB + 4 * i, 4)}, {v(VO)}, {s(SWS, 4)}, {s(S_T1)} offen sc1")
        unpack(A, F + 8 * i, XB + 4 * i, 4)
    normalise(A, F, 32, T, (8, 16, 32), WR, RD)
    for i in range(4):
        for q in range(4):
            x = 8 * i + 2 * q
            A(f"v_pk_fma_f32 {v(F + x, 2)}, {v(F + x, 2)}, {v(SC + x, 2)}, {v(SH + x, 2)}")
        pack8(A, PB + 4 * i, F + 8 * i, F + 8 * i + 4)
        A(f"s_add_u32 {s(S_T1)}, {s(S_OUT)}, {L.H2 + 4096 * i}")
        A(f"buffer_store_dwordx4 {v(PB + 4 * i, 4)}, {v(VO)}, {s(SWS, 4)}, {s(S_T1)} offen sc1")
    A(f"v_mov_b32 {v(VP)}, {s(S_NEED)}")
    A("s_waitcnt vmcnt(0)")
    A("s_barrier")
    A(f"buffer_store_dword {v(VP)}, {v(VPA)}, {s(SWS, 4)}, 0 offen sc1")
    mark(A, cfg, s(S_NEED))
    A(f"s_add_u32 {s(S_STEP)}, {s(S_STEP)}, 2")
    A(f"s_cmp_lt_u32 {s(S_STEP)}, 64")
    A(f"s_cbranch_scc1 {loop}")
    A("s_endpgm")


def g45_role(A, cfg, end):
    A.c("64 hidden units of silu(h w1) * (h w3) and a 512 x 128 slice of the down projection")
    VD5, VR5, VFA5, VF5 = VD, 11, 12, 13
    AC5, TE, VS, HV = 64, 88, 100, 104
    LAG = cfg.lag
    ptr(A, 16, "w1")
    ptr(A, 18, "w3")
    ptr(A, 20, "w2")
    A("s_waitcnt lgkmcnt(0)")
    A.srd(SW, 16, SIZE["w1"])
    A.srd(SW2, 18, SIZE["w3"])
    A.srd(SW3, 20, SIZE["w2"])
    A(f"s_lshl_b32 {s(S_P0)}, {s(S_CU)}, 7")
    A(f"s_lshl_b32 {s(S_T2)}, {s(S_WAVE)}, 5")
    for p in range(2):
        tile_addr(A, TMP + p, "N", False, S_T2, 16384 * p, TMP + 4, TMP + 5)
    load_w(A, [(SW, S_P0), (SW2, S_P0)], 7168, 8, [(TMP, 256), (TMP + 1, 384)], "N", TMP + 4, WFLAG[cfg.wff])
    A(f"s_lshr_b32 {s(S_K)}, {s(S_CU)}, 3")
    A(f"s_and_b32 {s(S_P2)}, {s(S_CU)}, 7")
    A(f"s_lshl_b32 {s(S_P0)}, {s(S_K)}, 20")
    A(f"s_lshl_b32 {s(S_T0)}, {s(S_P2)}, 8")
    A(f"s_add_u32 {s(S_P0)}, {s(S_P0)}, {s(S_T0)}")
    A(f"s_add_u32 {s(S_P1)}, {s(S_P0)}, 128")
    pair_tiles(A, "N")
    load_w(A, [(SW3, S_P0), (SW3, S_P1)], 2048, 4, [(TMP, 128), (TMP + 1, 192)], "N", TMP + 4, WFLAG[cfg.wff])
    mark(A, cfg, 1)
    common_regs(A, 4096)
    S_M5, S_FA5, S_NL, S_OUT4 = S_P0, S_P1, 64, 65
    A(f"s_mov_b32 {s(S_M5)}, {s(S_M0)}")
    A(f"v_add_u32 {v(VR5)}, 0x20000, {v(VR)}")
    A(f"v_mov_b32 {v(VO + 1)}, {v(VR)}")
    lines_addr(A, VFA, LANE, 4)
    lines_addr(A, VFA5, LANE, 8)
    A(f"s_lshl_b32 {s(S_FA5)}, {s(S_K)}, 10")
    A(f"s_add_u32 {s(S_FA5)}, {s(S_FA5)}, {L.P45}")
    A(f"s_lshl_b32 {s(S_T0)}, {s(S_CU)}, 1")
    A(f"s_lshr_b32 {s(S_T1)}, {s(S_WAVE)}, 1")
    A(f"s_add_u32 {s(S_T0)}, {s(S_T0)}, {s(S_T1)}")
    A(f"s_lshl_b32 {s(S_T0)}, {s(S_T0)}, 11")
    A(f"s_and_b32 {s(S_T1)}, {s(S_WAVE)}, 1")
    A(f"s_lshl_b32 {s(S_T1)}, {s(S_T1)}, 9")
    A(f"s_add_u32 {s(S_T0)}, {s(S_T0)}, {s(S_T1)}")
    A(f"v_and_b32 {v(TMP)}, 15, {v(LANE)}")
    A(f"v_lshl_add_u32 {v(VO)}, {v(TMP)}, 4, {s(S_T0)}")
    A(f"v_bfe_u32 {v(TMP)}, {v(LANE)}, 4, 1")
    A(f"v_lshl_add_u32 {v(VO)}, {v(TMP)}, 10, {v(VO)}")
    A(f"v_lshrrev_b32 {v(TMP)}, 5, {v(LANE)}")
    A(f"v_lshl_add_u32 {v(VO)}, {v(TMP)}, 8, {v(VO)}")
    A(f"s_mov_b32 {s(S_OUT)}, {L.HH}")
    A(f"s_mov_b32 {s(S_NXT)}, {L.H2}")
    A(f"s_lshl_b32 {s(S_NXT5)}, {s(S_K)}, 15")
    A(f"s_add_u32 {s(S_NXT5)}, {s(S_NXT5)}, {L.HH - LAG * 229376}")
    A(f"s_lshl_b32 {s(S_T0)}, {s(S_P2)}, 2")
    A(f"s_add_u32 {s(S_T0)}, {s(S_T0)}, {s(S_WAVE)}")
    A(f"s_lshl_b32 {s(S_T0)}, {s(S_T0)}, 11")
    A(f"s_lshl_b32 {s(S_P2)}, {s(S_K)}, 22")
    A(f"s_add_u32 {s(S_P2)}, {s(S_P2)}, {s(S_T0)}")
    A(f"s_add_u32 {s(S_P2)}, {s(S_P2)}, {L.PART5 - LAG * 65536}")
    A(f"s_mov_b32 {s(S_NL)}, 0xbfb8aa3b")
    A(f"v_mov_b32 {v(VS)}, 0")
    A(f"v_mov_b32 {v(VS + 1)}, 0")

    ldf = lambda B=A: B(f"buffer_load_dword {v(VF)}, {v(VFA)}, {s(SWS, 4)}, {s(S_FA)} offen sc1")
    ldf5 = lambda B=A: B(f"buffer_load_dword {v(VF5)}, {v(VFA5)}, {s(SWS, 4)}, {s(S_FA5)} offen sc1")
    tst5 = lambda: A(f"v_cmp_gt_u32 vcc, {s(S_NEED5)}, {v(VF5)}")

    def sig(back5, B=A):
        B(f"v_min_u32 {v(VS)}, {s(S_STEP)}, 64")
        B(f"s_sub_u32 {s(S_T0)}, {s(S_STEP)}, {LAG + back5}")
        B(f"v_max_i32 {v(VS + 1)}, {s(S_T0)}, 0")
        B(f"buffer_store_dwordx2 {v(VS, 2)}, {v(VPA)}, {s(SWS, 4)}, 0 offen sc1")

    def store4(B=A):
        B(f"buffer_store_dwordx4 {v(TE + 8, 4)}, {v(VO)}, {s(SWS, 4)}, {s(S_OUT)} offen sc1")

    def flag_for(B, d):
        B(f"s_add_u32 {s(S_NEED)}, {s(S_STEP)}, {d}")
        B(f"s_and_b32 {s(S_FA)}, {s(S_NEED)}, 1")
        B(f"s_lshl_b32 {s(S_FA)}, {s(S_FA)}, 9")
        B(f"s_add_u32 {s(S_FA)}, {s(S_FA)}, {L.PL}")
        B(f"s_add_u32 {s(S_NEED)}, {s(S_NEED)}, 1")

    def need5(B=A):
        B(f"s_sub_u32 {s(S_NEED5)}, {s(S_STEP)}, {LAG - 1}")
        B(f"s_max_i32 {s(S_NEED5)}, {s(S_NEED5)}, 0")

    def epi4(B, T):
        G, U, H = ACC + 4 * T, ACC + 8 + 4 * T, HV + 4 * T
        for i in range(4):
            B(f"v_mul_f32 {v(TE + i)}, {s(S_NL)}, {v(G + i)}")
        for i in range(4):
            B(f"v_exp_f32 {v(TE + i)}, {v(TE + i)}")
        for i in range(4):
            B(f"v_mul_f32 {v(H + i)}, {v(G + i)}, {v(U + i)}")
        for i in range(4):
            B(f"v_add_f32 {v(TE + i)}, 1.0, {v(TE + i)}")
        for i in range(4):
            B(f"v_rcp_f32 {v(TE + i)}, {v(TE + i)}")
        for i in range(4):
            B(f"v_mul_f32 {v(H + i)}, {v(H + i)}, {v(TE + i)}")
        if T:
            pack8(B, TE + 8, HV, HV + 4)
            B("GAP 2")
            B(f"v_permlane16_swap_b32 {v(TE + 8)}, {v(TE + 10)}")
            B(f"v_permlane16_swap_b32 {v(TE + 9)}, {v(TE + 11)}")

    def epi5(B=A, part=3):
        if part & 1:
            for T in range(2):
                pack8(B, TMP + 4 * T, AC5 + 8 * T, AC5 + 8 * T + 4)
        if part & 2:
            for T in range(2):
                B(f"buffer_store_dwordx4 {v(TMP + 4 * T, 4)}, {v(VO + 1)}, {s(SWS, 4)}, {s(S_OUT5)} offen offset:{1024 * T} sc1")

    def after5(B=A):
        B(f"s_cmp_ge_u32 {s(S_STEP)}, {LAG}")
        B(f"s_cselect_b32 {s(S_OUT5)}, {s(S_P2)}, {hex(OOB)}")
        B(f"s_add_u32 {s(S_OUT)}, {s(S_OUT)}, 229376")
        B(f"s_add_u32 {s(S_P2)}, {s(S_P2)}, 65536")
        B(f"s_add_u32 {s(S_NXT5)}, {s(S_NXT5)}, 229376")
        B(f"s_add_u32 {s(S_STEP)}, {s(S_STEP)}, 1")
    t4 = [(lambda T: ACC + 4 * T, lambda ks: 256 + 4 * ks, False),
          (lambda T: ACC + 8 + 4 * T, lambda ks: 384 + 4 * ks, False)]
    t5 = [(lambda T: AC5 + 8 * T, lambda ks: 128 + 4 * ks, False),
          (lambda T: AC5 + 8 * T + 4, lambda ks: 192 + 4 * ks, False)]
    assert LAG == 3
    if cfg.gate45:
        A("s_memrealtime s[90:91]")
        gate(A, cfg.gate45)
    body, wait, late5, go5, starved, final = (A.new(x) for x in ("fb", "fw", "fl", "fg", "fs", "fz"))
    tst = lambda: A(f"v_cmp_gt_u32 vcc, {s(S_NEED)}, {v(VF)}")
    rd4, rd5 = reader(VR, 64, True), reader(VR5, 32, False)
    A(f"s_mov_b32 {s(S_STEP)}, 0")
    lap_init(A, cfg)
    lap(A, cfg, 7)
    A.label(wait)
    flag_for(A, 0)
    block_on(A, ldf, tst, end, cfg.g4_sleep)
    for op in dma_list(4, S_M0, 0, S_NXT, VD, (0, 2)):
        A(op)
    flag_for(A, 1)
    ldf()
    ldf5()
    for op in dma_list(4, S_M0, 0, S_NXT, VD, (1, 3)):
        A(op)
    A(f"s_mov_b32 {s(S_OUT5)}, {hex(OOB)}")
    A("s_waitcnt vmcnt(8)")
    A("s_barrier")
    lap(A, cfg, 4)
    first_reads(A, rd4)
    A.label(body)

    def head(B):
        B(f"s_add_u32 {s(S_NXT)}, {s(S_NXT)}, 65536")
        B(f"s_xor_b32 {s(S_M0)}, {s(S_M0)}, 0x10000")
        need5(B)
        decide(B, S_NEED, VF, S_RDY, S_SRC, S_NXT, True)
        decide(B, S_NEED5, VF5, S_RDY5, S_SRC5, S_NXT5, True)
    first = len(A.lines)
    d5 = split_loads(tag(dma_list(2, S_M5, 0x20000, S_SRC5, VD5), "d5"), [6])
    t0 = split_loads(tag(dma_list(4, S_M0, 0, S_SRC, VD, (0, 2)), "t0"), [6])
    t1 = split_loads(tag(dma_list(4, S_M0, 0, S_SRC, VD, (1, 3)), "t1"), [7])
    job(A, 64, rd4, True, t4,
        [(0, 1, lines(head)), (0, 8, d5[0] + ["END 58"]), (-51, 3, lines(lambda B: sig(1, B))), (0, 8, d5[1] + t0[0]),
         (-10, 1, lines(lambda B: epi5(B, 1))), (-72, 1, lines(lambda B: epi4(B, 0)))], 0, 59,
        syncs={32: ["s_waitcnt vmcnt(@t1,st)", "s_barrier"]})
    lap(A, cfg, 0)
    A(f"s_cmp_eq_u32 {s(S_RDY5)}, 0")
    A(f"s_cbranch_scc1 {late5}")
    A("s_waitcnt vmcnt(@d5) lgkmcnt(0)")
    A.label(go5)
    A("s_barrier")
    lap(A, cfg, 1)
    job(A, 64, rd4, True, t4, [(1, 6, t0[1]), (-1, 1, lines(lambda B: flag_for(B, 2)) + tag(lines(ldf) + lines(ldf5), "fl") +
                                               [f"v_xor_b32 {v(VR)}, 0x10000, {v(VR)}"])], 59, 64, rd5)
    job(A, 32, rd5, False, t5,
        [(3, 8, t1[0]), (-7, 8, tag(lines(lambda B: epi5(B, 2)), "st") + ["END 40"]),
         (-8, 1, lines(lambda B: epi4(B, 1))), (40, 1, tag(lines(store4), "st") + lines(after5))], 0, 27)
    span(A, cfg)
    lap(A, cfg, 2)
    A(f"s_cmp_eq_u32 {s(S_RDY)}, 0")
    A(f"s_cbranch_scc1 {starved}")
    A("s_waitcnt vmcnt(@t0,fl) lgkmcnt(0)")
    A("s_barrier")
    lap(A, cfg, 3)
    job(A, 32, rd5, False, t5, [(5, 1, t1[1])], 27, 32, rd4)
    resolve(A, first)
    mark(A, cfg, s(S_STEP))
    A(f"s_branch {body}")
    A.label(starved)
    if cfg.marks in (2, 5):
        A("s_add_u32 s75, s75, 64")
    A("s_waitcnt lgkmcnt(0)")
    job(A, 32, rd5, False, t5, [], 27, 32)
    mark(A, cfg, s(S_STEP))
    A.nop(8)
    epi5(A, 1)
    A(f"s_cmp_eq_u32 {s(S_STEP)}, 64")
    A(f"s_cbranch_scc1 {final}")
    epi5(A, 2)
    A(f"s_branch {wait}")
    A.label(late5)
    if cfg.marks in (2, 5):
        A("s_add_u32 s76, s76, 64")
    block_on(A, ldf5, tst5, end)
    for op in dma_list(2, S_M5, 0x20000, S_NXT5, VD5):
        A(op)
    A("s_waitcnt vmcnt(0) lgkmcnt(0)")
    A(f"s_branch {go5}")

    A.label(final)
    A.c("last three down projections; the first two go to the free up-projection buffer")
    have, no63, got63 = A.new("fh"), A.new("fn"), A.new("fy")
    lap_dump(A, cfg)
    A(f"s_mov_b32 {s(S_NEED5)}, 63")
    A("s_waitcnt vmcnt(0)")
    tst5()
    A("s_barrier")
    sig(1)
    A(f"s_cbranch_vccz {have}")
    block_on(A, ldf5, tst5, end, 1)
    A.label(have)
    for i in range(2):
        A(f"s_add_u32 {s(S_SRC5)}, {s(S_NXT5)}, {229376 * i}")
        for op in dma_list(2, S_M5, 0x10000 + 0x8000 * i, S_SRC5, VD5):
            A(op)
    epi5(A, 2)
    A(f"s_add_u32 {s(S_SRC5)}, {s(S_NXT5)}, {229376 * 2}")
    A(f"s_mov_b32 {s(S_NEED5)}, 64")
    A(f"v_add_u32 {v(VR5)}, -0x10000, {v(VR5)}")

    def alone(fill):
        A("s_barrier")
        first_reads(A, rd5)
        job(A, 32, rd5, False, t5, fill)
        after5()
        A(f"v_add_u32 {v(VR5)}, 0x8000, {v(VR5)}")
        A("s_nop 0")
        epi5(A, 1)
        mark(A, cfg, s(S_STEP))
    A("s_waitcnt vmcnt(10)")
    alone([(24, 1, lines(ldf5))])
    A("s_waitcnt vmcnt(0)")
    tst5()
    A(f"s_mov_b32 {s(S_RDY5)}, 0")
    A(f"s_cbranch_vccnz {no63}")
    A(f"s_mov_b32 {s(S_RDY5)}, 1")
    for op in dma_list(2, S_M5, 0x20000, S_SRC5, VD5):
        A(op)
    A.label(no63)
    epi5(A, 2)
    alone([])
    A(f"s_cmp_lg_u32 {s(S_RDY5)}, 0")
    A(f"s_cbranch_scc1 {got63}")
    block_on(A, ldf5, tst5, end, 1)
    for op in dma_list(2, S_M5, 0x20000, S_SRC5, VD5):
        A(op)
    A.label(got63)
    epi5(A, 2)
    A("s_waitcnt vmcnt(2)")
    alone([])
    epi5(A, 2)
    A("s_waitcnt vmcnt(0)")
    A("s_barrier")
    sig(0)
    A("s_endpgm")
```

```python
from asmlib import *
import layout as L

SWS, SW, SDBG = 4, 8, 12
P_MEM0, P_WQ, P_WK, P_WV, P_WO, P_DBG, P_WS = 16, 18, 20, 22, 24, 28, 30
S_WAVE, S_GRP, S_TK, S_IRR, S_STEP, S_BUD, S_T0, S_T1 = 32, 33, 34, 35, 36, 37, 38, 39
S_CUR, S_NXT, S_RST, S_XCUR, S_XRST, S_RBASE, S_PAR, S_PF, S_C, S_NC, S_OT = range(40, 51)
S_XCC, S_T2, S_T3 = 51, 52, 53
S_FB, S_TAG = 59, 26
S_XC, S_XR = 84, 88
S_STAMP = 60
S_CNT = 80
BUDGET = 200000
SM = "v_smfmac_f32_16x16x64_bf16"
MF = "v_mfma_f32_16x16x32_bf16"


WFLAG = ("", " nt", " sc1")


class Cfg:
    trace = 0
    nsteps = 64
    lag = 3
    s1_flag = 36
    wlo = 0
    whi = 0
    wff = 0
    wmod = 0
    ramp_lo = 5
    ramp_hi = 3
    g3_after = 0
    meet = 1
    pmajor = 1
    spec = 0
    po_pos = 0
    fine = 0
    hmask = 16
    near = 2
    marks = 0
    qsig = 70
    codepf = 1
    qmap = 0
    gate2 = 0
    report = 0
    rep_step = 0
    gate45 = 0
    gate_entry = 0
    gate3 = 0
    gate = 0
    outflag = 2
    qkv_slow = 3
    g4_split = 4
    g4_step = 5
    st_step = 4
    q_step = 10
    g4_late = 1
    mark = staticmethod(lambda A, i: None)
    fin_sleep = 4
    ln_sleep = 2
    g4_sleep = 4
    solo = 0
    cyc = 0
    flip = 0
    nrep = 2
    xdelay = 17
    xgap = 8
    xfill = 4
    fm_delay = 22
    mdelay = 11
    fo_pos = 3
    use_fm = 1
    use_fo = 1
    nflag = 3
    qjoint = 1
    qown = 4
    fo_wait = 0
    fspace = 6
    lspace = 3
    ltail = 3
    kpos = 1
    vpos = 0
    ksplit = 1
    qsplit = 3
    rpos = 3
    vin = 1
    vk = 2
    vk2 = 4
    xdepth = 3
    xgap2 = 12
    xbf = 1
    vchk = 1
    qpipe = 0
    fillw = 0
    fillr = 0
    qfw = 0
    qfr = 0
    qfw2 = 0
    hw = 0
    hr = 0


def gate(A, us):
    if us:
        gl = A.new("gate")
        A.label(gl)
        A("s_memrealtime s[92:93]")
        A("s_waitcnt lgkmcnt(0)")
        A("s_sub_u32 s92, s92, s90")
        A(f"s_cmp_lt_u32 s92, {us * 100}")
        A(f"s_cbranch_scc1 {gl}")


def event(A, cfg, k, stepped=False):
    if cfg.report != k:
        return
    skip = A.new("ev")
    if stepped:
        A(f"s_cmp_lg_u32 {s(S_STEP)}, {cfg.rep_step}")
        A(f"s_cbranch_scc1 {skip}")
    A("s_memrealtime s[100:101]")
    A("s_waitcnt lgkmcnt(0)")
    A.label(skip)


def report(A, cfg, ks):
    if cfg.report in ks:
        A("s_mov_b32 s90, s100")
        gate(A, 200)


def pause(A, cfg, h, n, bit, keep=0):
    hot = n if cfg.hmask >> bit & 1 else min(n, keep)
    A.nop(4 * (n - hot))
    heat(A, h, hot)


def busy(A, h, n):
    for _ in range(n):
        A(f"v_mov_b32 {v(h)}, 0")


def heat(A, h, n):
    for _ in range(n):
        A(f"{MF} {v(h, 4)}, {v(h + 4, 4)}, {v(h + 4, 4)}, 0")


def stamp(A, cfg, i, lvl=1):
    if cfg.trace in (1, lvl):
        A(f"{'s_memtime' if cfg.cyc else 's_memrealtime'} {s(S_STAMP + 2 * i, 2)}")


def fine(A, cfg, i, grp):
    if cfg.trace == 1 and cfg.fine == grp:
        A(f"s_memtime {s(S_STAMP + 12 + 2 * i, 2)}")


def count(A, cfg, i):
    if cfg.trace == 1:
        A(f"s_add_u32 {s(S_CNT + i)}, {s(S_CNT + i)}, 1")


def flush_stamps(A, cfg, n, vt, va, lvl=1):
    if cfg.trace not in (1, lvl):
        return
    A("s_waitcnt lgkmcnt(0)")
    for i in range(n):
        A(f"v_writelane_b32 {v(vt)}, {s(S_STAMP + 2 * i)}, {i}")
    A(f"v_writelane_b32 {v(vt)}, {s(S_BUD)}, 8")
    for i in range(4):
        A(f"v_writelane_b32 {v(vt)}, {s(S_CNT + i)}, {9 + i}")
    A(f"s_mul_i32 {s(S_T0)}, {s(S_GRP)}, 24")
    A(f"s_add_u32 {s(S_T0)}, {s(S_T0)}, {s(S_TK)}")
    A(f"s_lshl_b32 {s(S_T0)}, {s(S_T0)}, 2")
    A(f"s_add_u32 {s(S_T0)}, {s(S_T0)}, {s(S_WAVE)}")
    A(f"s_lshl_b32 {s(S_T0)}, {s(S_T0)}, 6")
    A(f"s_add_u32 {s(S_T0)}, {s(S_T0)}, {s(S_STEP)}")
    A(f"s_lshl_b32 {s(S_T0)}, {s(S_T0)}, 6")
    A(f"s_add_u32 {s(S_T0)}, {s(S_T0)}, {L.TRACE}")
    A(f"v_mbcnt_lo_u32_b32 {v(va)}, -1, 0")
    A(f"v_lshlrev_b32 {v(va)}, 2, {v(va)}")
    A("s_mov_b64 exec, 0xffff")
    A(f"buffer_store_dword {v(vt)}, {v(va)}, {s(SWS, 4)}, {s(S_T0)} offen")
    A("s_mov_b64 exec, -1")


def check(A, reg, n, tmp):
    if n == 4:
        A(f"v_max3_u32 {v(tmp)}, {v(reg)}, {v(reg + 1)}, {v(reg + 2)}")
        A(f"v_max_u32 {v(tmp)}, {v(tmp)}, {v(reg + 3)}")
    elif n > 4:
        A(f"v_max3_u32 {v(tmp)}, {v(reg)}, {v(reg + 1)}, {v(reg + 2)}")
        for i in range(3, n - 1, 2):
            A(f"v_max3_u32 {v(tmp)}, {v(tmp)}, {v(reg + i)}, {v(reg + i + 1)}")
        A(f"v_max_u32 {v(tmp)}, {v(tmp)}, {v(reg + n - 1)}")
    elif n == 2:
        A(f"v_max_u32 {v(tmp)}, {v(reg)}, {v(reg + 1)}")
    A(f"v_cmp_eq_u32 vcc, -1, {v(tmp)}")


def spend(A, abort):
    A(f"s_sub_u32 {s(S_BUD)}, {s(S_BUD)}, 1")
    A(f"s_cbranch_scc1 {abort}")


def fsm_poll(A, n, ld, chk, use, abort, finished=None, fast=None, onfail=None, undo=None):
    done = A.new("pd")
    labels, emitted, todo = {}, set(), []
    full = frozenset(range(n))
    if finished is None:
        finished = lambda got: got == full

    def lab(st):
        if st not in labels:
            labels[st] = A.new("ps")
            todo.append(st)
        return labels[st]

    fails = []

    def chain_from(st, last):
        while True:
            if st in emitted:
                A(f"s_branch {lab(st)}")
                return
            emitted.add(st)
            A.label(lab(st))
            fl = A.new("pf")
            fails.append((fl, st))
            A(f"s_waitcnt vmcnt({len(st) - 1})")
            chk(st[0])
            A(f"s_cbranch_vccnz {fl}")
            rest = st[1:]
            fin = finished(full - frozenset(rest))
            use(st[0], () if fin else rest)
            if fin:
                if not last:
                    A(f"s_branch {done}")
                return
            st = rest

    if fast is None:
        chain_from(tuple(range(n)), True)
    else:
        head, tail = fast[:2]
        joint = fast[2:] if len(fast) > 2 else None
        for i in range(n):
            if joint and i == n - 2:
                both = A.new("pj")
                A("s_waitcnt vmcnt(0)")
                joint[0]()
                tail(i - 1)
                A(f"s_cbranch_vccnz {both}")
                joint[1]()
                break
            fl = A.new("pf")
            fails.append((fl, tuple(range(i, n))))
            A(f"s_waitcnt vmcnt({n - 1 - i})")
            chk(i)
            if i:
                tail(i - 1)
            elif undo:
                head(0)
            A(f"s_cbranch_vccnz {fl}")
            if i or not undo:
                head(i)
        else:
            tail(n - 1)

    def rest_code():
        if fast is not None and joint:
            A.label(both)
            ld(n - 2)
            ld(n - 1)
            if onfail:
                onfail(True)
            spend(A, abort)
            A(f"s_branch {lab((n - 2, n - 1))}")
        nfast = len(fails) if fast is not None else 0
        i = 0
        while i < len(fails) or any(t not in emitted for t in todo):
            while i < len(fails):
                fl, st = fails[i]
                i += 1
                A.label(fl)
                ld(st[0])
                if undo and i == 1:
                    undo()
                if onfail:
                    onfail(i <= nfast)
                if st[0] == min(st):
                    spend(A, abort)
                chain_from(st[1:] + st[:1], False)
            for t in list(todo):
                if t not in emitted:
                    chain_from(t, False)
    return done, rest_code


def flag_wait(A, cfg, vaddr, buf, nl, abort):
    go, top = A.new("fg"), A.new("ft")
    ld = lambda b: A(f"buffer_load_dword {v(buf + b)}, {v(vaddr)}, {s(SWS, 4)}, {s(S_FB)} offen sc1")
    A(f"s_mov_b64 exec, {(1 << nl) - 1}")
    n = cfg.nflag
    for b in range(n):
        ld(b)
        if b < n - 1:
            A.nop(cfg.fspace)
    A.label(top)
    for b in range(n):
        A(f"s_waitcnt vmcnt({n - 1})")
        A(f"v_cmp_gt_u32 vcc, {s(S_TAG)}, {v(buf + b)}")
        ld(b)
        A(f"s_cbranch_vccz {go}")
    spend(A, abort)
    A(f"s_branch {top}")
    A.label(go)
    A("s_mov_b64 exec, -1")


def load_weights(A, chunks, flag="", first=None, ramp=5):
    NS = 5

    def issue(c):
        setup, stride, kind, vglob, vtr, dst = chunks[c]
        setup()
        A(f"s_mul_i32 {s(S_T0)}, {s(S_WAVE)}, 40960")
        A(f"s_add_u32 m0, {s(S_T0)}, {(c % NS) * 8192}")
        for j in range(8):
            if j:
                A(f"s_add_u32 m0, m0, 1024")
                A(f"s_add_u32 {s(S_T1)}, {s(S_T1)}, {8 * stride}")
            else:
                A("s_nop 0")
            A(f"buffer_load_dwordx4 {v(vglob)}, {s(SW, 4)}, {s(S_T1)} offen{flag} lds")

    n = len(chunks)
    for c in range(ramp):
        issue(c)
    if ramp < NS:
        A(f"s_waitcnt vmcnt({8 * (ramp - 1)})")
        for c in range(ramp, NS):
            issue(c)
    for c in range(n):
        setup, stride, kind, vglob, vtr, dst = chunks[c]
        A(f"s_waitcnt vmcnt({8 * (min(c + NS, n) - c - 1)})")
        if c == 0 and first:
            first()
        for t in range(4):
            col = 64 * (t >> 1) + 16 * (t & 1) if kind == "K" else 32 * t
            for H in range(2):
                for q in range(2):
                    row = 32 * H + 2 * q
                    off = (c % NS) * 8192 + row * 128 + col
                    A(f"ds_read_b64_tr_b16 {r(dst(t) + 4 * H + 2 * q, 2)}, {v(vtr)} offset:{off}")
        A("s_waitcnt lgkmcnt(0)")
        if c + NS < n:
            issue(c + NS)


def glob_addr(A, dst, lane, shift, sxor, t0):
    A(f"v_and_b32 {v(t0)}, 7, {v(lane)}")
    A(f"v_lshlrev_b32 {v(t0)}, 4, {v(t0)}")
    A(f"v_xor_b32 {v(t0)}, {s(sxor)}, {v(t0)}")
    A(f"v_lshrrev_b32 {v(dst)}, 3, {v(lane)}")
    A(f"v_lshl_add_u32 {v(dst)}, {v(dst)}, {shift}, {v(t0)}")


def tr_addr(A, dst, lane, kind, t0):
    A(f"v_bfe_u32 {v(dst)}, {v(lane)}, 2, 1")
    for bit, sh in (((4, 4), (5, 3), (3, 2)) if kind == "O" else ((5, 4), (4, 2), (3, 3))):
        A(f"v_bfe_u32 {v(t0)}, {v(lane)}, {bit}, 1")
        A(f"v_lshl_add_u32 {v(dst)}, {v(t0)}, {sh}, {v(dst)}")
    A(f"s_mul_i32 {s(S_T0)}, {s(S_WAVE)}, 40960")
    A(f"v_lshl_add_u32 {v(dst)}, {v(dst)}, 7, {s(S_T0)}")
    for bit, sh in (((0, 5), (1, 3)) if kind == "K" else ((0, 3), (1, 4))):
        A(f"v_bfe_u32 {v(t0)}, {v(lane)}, {bit}, 1")
        A(f"v_lshl_add_u32 {v(dst)}, {v(t0)}, {sh}, {v(dst)}")


def sparse_index(A, dst, lane):
    A(f"v_bfe_u32 {v(dst)}, {v(lane)}, 1, 1")
    A(f"v_mul_u32_u24 {v(dst)}, 0xaaaa, {v(dst)}")
    A(f"v_add_u32 {v(dst)}, 0x4444, {v(dst)}")


def role_prologue(A, end):
    A("s_cmp_ge_u32 s2, 256")
    A(f"s_cbranch_scc1 {end}")
    A(f"s_load_dwordx8 {s(P_MEM0, 8)}, s[0:1], {KA['mem0']}")
    A(f"s_load_dwordx2 {s(P_WO, 2)}, s[0:1], {KA['Wo']}")
    A(f"s_load_dwordx4 {s(P_DBG, 4)}, s[0:1], {KA['dbg']}")
    A(f"s_getreg_b32 {s(S_XCC)}, hwreg(HW_REG_XCC_ID, 0, 4)")
    A(f"s_and_b32 {s(S_XCC)}, {s(S_XCC)}, 7")
    A("v_lshrrev_b32 v1, 6, v0")
    A("s_nop 0")
    A(f"v_readfirstlane_b32 {s(S_WAVE)}, v1")
    A("v_and_b32 v1, 63, v0")
    A("s_waitcnt lgkmcnt(0)")
    A.srd(SWS, P_WS, SIZE["ws"])
    A.srd(SDBG, P_DBG, SIZE["dbg"])
    A(f"s_mov_b32 {s(S_BUD)}, {BUDGET}")
    for i in range(4):
        A(f"s_mov_b32 {s(S_CNT + i)}, 0")
    got, loop, skip = A.new("rg"), A.new("rl"), A.new("rs")
    A(f"s_cmp_lg_u32 {s(S_WAVE)}, 0")
    A(f"s_cbranch_scc1 {skip}")
    A(f"s_mov_b32 {s(S_GRP)}, {s(S_XCC)}")
    A(f"s_mov_b32 {s(S_IRR)}, 0")
    A("s_mov_b64 exec, 1")
    A.label(loop)
    A(f"s_and_b32 {s(S_T0)}, {s(S_GRP)}, 4")
    A(f"s_mul_i32 {s(S_T0)}, {s(S_T0)}, 7")
    A(f"s_add_u32 {s(S_T0)}, {s(S_T0)}, {s(S_GRP)}")
    A(f"v_lshlrev_b32 v2, 2, {s(S_T0)}")
    A("v_mov_b32 v3, 1")
    A(f"buffer_atomic_add v3, v2, {s(SDBG, 4)}, 0 offen sc0 sc1")
    A("s_waitcnt vmcnt(0)")
    A(f"v_readfirstlane_b32 {s(S_TK)}, v3")
    A("s_nop 3")
    A(f"s_cmp_lt_u32 {s(S_TK)}, 32")
    A(f"s_cbranch_scc1 {got}")
    A(f"s_add_u32 {s(S_GRP)}, {s(S_GRP)}, 1")
    A(f"s_and_b32 {s(S_GRP)}, {s(S_GRP)}, 7")
    A(f"s_add_u32 {s(S_IRR)}, {s(S_IRR)}, 1")
    A(f"s_cmp_lt_u32 {s(S_IRR)}, 8")
    A(f"s_cbranch_scc1 {loop}")
    A.label(got)
    A(f"s_lshl_b32 {s(S_T0)}, {s(S_GRP)}, 8")
    A(f"s_min_u32 {s(S_TK)}, {s(S_TK)}, 255")
    A(f"s_or_b32 {s(S_T0)}, {s(S_T0)}, {s(S_TK)}")
    A(f"s_lshl_b32 {s(S_T1)}, {s(S_IRR)}, 16")
    A(f"s_or_b32 {s(S_T0)}, {s(S_T0)}, {s(S_T1)}")
    A(f"v_mov_b32 v3, {s(S_T0)}")
    A("v_mov_b32 v2, 0")
    A("ds_write_b32 v2, v3")
    A("s_mov_b64 exec, -1")
    A.label(skip)
    A("s_waitcnt lgkmcnt(0)")
    A("s_barrier")
    A("v_mov_b32 v2, 0")
    A("ds_read_b32 v3, v2")
    A("s_waitcnt lgkmcnt(0)")
    A(f"v_readfirstlane_b32 {s(S_T0)}, v3")
    A("s_barrier")
    A(f"s_and_b32 {s(S_TK)}, {s(S_T0)}, 255")
    A(f"s_bfe_u32 {s(S_GRP)}, {s(S_T0)}, 0x80008")
    A(f"s_lshr_b32 {s(S_IRR)}, {s(S_T0)}, 16")
    A(f"s_min_u32 {s(S_IRR)}, {s(S_IRR)}, 1")
    A(f"s_cmp_ge_u32 {s(S_TK)}, 32")
    A(f"s_cbranch_scc1 {end}")
    A.c("the roles that must start first take the first tickets")
    A(f"s_cmp_ge_u32 {s(S_GRP)}, 4")
    A(f"s_cselect_b32 {s(S_T0)}, 16, 24")
    A(f"s_add_u32 {s(S_TK)}, {s(S_TK)}, {s(S_T0)}")
    A(f"s_and_b32 {s(S_TK)}, {s(S_TK)}, 31")


def arrive(A, add_reg, hi=False, wait=True, join=True, t=48):
    skip = A.new("ar")
    if wait:
        A("s_waitcnt vmcnt(0)")
    if join:
        A("s_barrier")
    A(f"s_cmp_lg_u32 {s(S_WAVE)}, 0")
    A(f"s_cbranch_scc1 {skip}")
    A("s_mov_b64 exec, 1")
    A(f"v_mov_b32 {v(t)}, {160 if hi else 32}")
    A(f"v_mov_b32 {v(t + 1)}, {s(add_reg)}")
    A(f"buffer_atomic_add {v(t + 1)}, {v(t)}, {s(SDBG, 4)}, 0 offen sc1")
    A("s_mov_b64 exec, -1")
    A.label(skip)


def await_start(A, abort, t=48, hi_only=False, probed=False):
    loop, out = A.new("st"), A.new("so")
    A.label(loop)
    A(f"buffer_load_dword {v(t)}, off, {s(SDBG, 4)}, 0 offset:{160 if hi_only else 32} sc1")
    A(f"buffer_load_dword {v(t + 1)}, off, {s(SDBG, 4)}, 0 offset:160 sc1")
    A("s_waitcnt vmcnt(0)")
    A(f"v_add_u32 {v(t)}, {v(t)}, {v(t + 1)}")
    A("s_nop 0")
    A(f"v_readfirstlane_b32 {s(S_T0)}, {v(t)}")
    A("s_nop 3")
    A(f"s_and_b32 {s(S_T1)}, {s(S_T0)}, {hex(0x200ffff if probed else 0xffff)}")
    A(f"s_cmp_eq_u32 {s(S_T1)}, {hex(0x2000100 if probed else 0x100)}")
    A(f"s_cbranch_scc1 {out}")
    spend(A, abort)
    A("s_sleep 8")
    A(f"s_branch {loop}")
    A.label(out)
    A(f"s_bfe_u32 {s(S_IRR)}, {s(S_T0)}, 0x80010")
    A(f"s_bfe_u32 {s(S_PAR)}, {s(S_T0)}, 0x10018")
    A(f"s_lshl_b32 {s(S_PAR)}, {s(S_PAR)}, 13")
    A("s_barrier")


def probe(A, lane, dst, dbg=False):
    skip = A.new("pb")
    A(f"s_cmp_lg_u32 {s(S_WAVE)}, 0")
    A(f"s_cbranch_scc1 {skip}")
    A(f"v_lshlrev_b32 v52, 8, {v(lane)}")
    A("v_mov_b32 v53, -1")
    A(f"s_mov_b32 {s(S_T3)}, {L.XRING + 0x8000}")
    A(f"buffer_store_dword v53, v52, {s(SWS, 4)}, {s(S_T3)} offen sc1")
    A("s_waitcnt vmcnt(0)")
    A("s_mov_b64 exec, 1")
    for h in range(2):
        A(f"s_mov_b32 {s(60 + h)}, -1")
    loop = A.new("pl")
    A("v_mov_b32 v52, 0")
    A("s_mov_b32 s66, 5")
    A.label(loop)
    for h in range(2):
        A(f"s_memtime {s(62, 2)}")
        A("s_waitcnt lgkmcnt(0)")
        A(f"buffer_load_dword v53, v52, {s(SWS, 4)}, {s(S_T3)} offen sc1")
        A("s_waitcnt vmcnt(0)")
        A(f"s_memtime {s(64, 2)}")
        A("s_waitcnt lgkmcnt(0)")
        A("s_sub_u32 s62, s64, s62")
        A(f"s_min_u32 {s(60 + h)}, {s(60 + h)}, s62")
        A(f"v_add_u32 v52, {8192 if h == 0 else 1280 - 8192}, v52")
    A("s_sub_u32 s66, s66, 1")
    A("s_cmp_lg_u32 s66, 0")
    A(f"s_cbranch_scc1 {loop}")
    A("s_mov_b64 exec, -1")
    if dbg:
        A("v_mov_b32 v52, s60")
        A("v_mov_b32 v53, s61")
        A(f"buffer_store_dwordx2 v[52:53], off, {s(SDBG, 4)}, 0 offset:48")
    A("s_cmp_lt_u32 s61, s60")
    A("s_cselect_b32 s62, 1, 0")
    A(f"s_lshr_b32 s63, {s(S_XCC)}, 2")
    A("s_xor_b32 s62, s62, s63")
    A("s_lshl_b32 s62, s62, 24")
    A(f"s_or_b32 {s(dst)}, {s(dst)}, s62")
    A.label(skip)


def xcopy(rr):
    return ((rr & 1) << 20) + ((rr >> 1) << 15)


def x_offsets(A, cfg, dst, slot):
    A(f"s_lshl_b32 {s(dst)}, {s(slot)}, 18")
    A(f"s_add_u32 {s(dst)}, {s(dst)}, {s(S_PAR)}")
    for rr in range(1, cfg.nrep):
        A(f"s_add_u32 {s(dst + rr)}, {s(dst)}, {hex(xcopy(rr))}")


def progress_addr(A, dst, lane, base, index, tmp, word=0):
    A(f"s_lshl_b32 {s(S_T0)}, {s(index)}, 5")
    A(f"s_add_u32 {s(S_T0)}, {s(S_T0)}, {s(S_WAVE)}")
    A(f"s_lshl_b32 {s(S_T0)}, {s(S_T0)}, 2")
    A(f"s_add_u32 {s(S_T0)}, {s(S_T0)}, {base + 4 * word}")
    A(f"v_min_u32 {v(tmp)}, 1, {v(lane)}")
    A(f"v_lshl_add_u32 {v(dst)}, {v(tmp)}, 30, {s(S_T0)}")


def line_addr(A, dst, tid, base, index, tmp):
    A(f"s_lshl_b32 {s(S_T0)}, {s(index)}, 7")
    A(f"s_add_u32 {s(S_T0)}, {s(S_T0)}, {base}")
    A(f"v_min_u32 {v(tmp)}, 1, {v(tid)}")
    A(f"v_lshl_add_u32 {v(dst)}, {v(tmp)}, 30, {s(S_T0)}")


def lines_addr(A, dst, lane, nlines, shift=7):
    A(f"v_min_u32 {v(dst)}, {nlines - 1}, {v(lane)}")
    A(f"v_lshlrev_b32 {v(dst)}, {shift}, {v(dst)}")


def words_addr(A, dst, lane, nlines, tmp, shift=2):
    A(f"v_lshrrev_b32 {v(tmp)}, 2, {v(lane)}")
    A(f"v_min_u32 {v(tmp)}, {nlines - 1}, {v(tmp)}")
    A(f"v_lshlrev_b32 {v(tmp)}, 7, {v(tmp)}")
    A(f"v_and_b32 {v(dst)}, 3, {v(lane)}")
    A(f"v_lshl_add_u32 {v(dst)}, {v(dst)}, {shift}, {v(tmp)}")


def block_on(A, ld, test, abort, sleep=2):
    top, out = A.new("bw"), A.new("bo")
    A.label(top)
    ld()
    A("s_waitcnt vmcnt(0)")
    test()
    A(f"s_cbranch_vccz {out}")
    spend(A, abort)
    A(f"s_sleep {sleep}")
    A(f"s_branch {top}")
    A.label(out)


def ring_slots(A):
    A(f"s_and_b32 {s(S_T0)}, {s(S_STEP)}, 3")
    A(f"s_lshl_b32 {s(S_T1)}, {s(S_T0)}, 16")
    A(f"s_add_u32 {s(S_CUR)}, {s(S_T1)}, {s(S_RBASE)}")
    A(f"s_xor_b32 {s(S_RST)}, {s(S_CUR)}, 0x20000")
    A(f"s_add_u32 {s(S_TAG)}, {s(S_STEP)}, 1")


def kvo_role(A, cfg, end):
    LRX, FOR, FMW, SEL, FBUF, TAGV = 0, 1, 2, 3, 4, 7
    VG, VGO, PUBM, PUBK, XOWN, XP, HT, LWS, PUBV = 8, 9, 10, 11, 12, 13, 16, 24, 27
    AP, ACK, ACV, ACO, HS, RD, SUM, PW, QD, CHK, XL, SENT, IDX = 28, 44, 60, 76, 92, 100, 106, 108, 109, 110, 112, 4, 126
    WK, WO, WV = 256, 256 + 128, 128
    RK, RV, RO = 0, 6144, 12288
    S_CI, S_X3 = 54, 57
    A.c("KVO role: 64-column slices of the k, v and output projections of head group S_GRP;")
    A.c("each wave covers a quarter of the rows; slot s of wave w holds column tile w^3^s")
    A("v_mov_b32 v44, v0")
    A("v_mov_b32 v45, v1")
    TID, LANE = 44, 45
    t2, t3, t4 = 46, 47, 50
    A(f"s_sub_u32 {s(S_CI)}, {s(S_TK)}, 8")
    A(f"s_xor_b32 {s(S_X3)}, {s(S_WAVE)}, 3")
    A(f"s_lshl_b32 {s(S_RBASE)}, {s(S_GRP)}, 18")
    A(f"s_add_u32 {s(S_RBASE)}, {s(S_RBASE)}, {L.LRING}")
    A(f"s_lshl_b32 {s(S_FB)}, {s(S_GRP)}, 12")
    A(f"s_add_u32 {s(S_FB)}, {s(S_FB)}, {L.FLAGS}")
    A(f"s_lshl_b32 {s(S_T0)}, {s(S_WAVE)}, 12")
    A(f"v_lshl_add_u32 {v(VG)}, {v(LANE)}, 4, {s(S_T0)}")
    A(f"v_add_u32 {v(VGO)}, 49152, {v(VG)}")
    A(f"s_lshl_b32 {s(S_T0)}, {s(S_CI)}, 10")
    A(f"s_lshl_b32 {s(S_T1)}, {s(S_WAVE)}, 8")
    A(f"s_add_u32 {s(S_T1)}, {s(S_T1)}, {s(S_T0)}")
    A(f"v_mov_b32 {v(PUBM)}, {s(S_T1)}")
    for bit, width, sh in ((1, 2, 6), (5, 1, 5), (0, 1, 4), (4, 1, 3), (3, 1, 30)):
        A(f"v_bfe_u32 {v(t2)}, {v(LANE)}, {bit}, {width}")
        A(f"v_lshl_add_u32 {v(PUBM)}, {v(t2)}, {sh}, {v(PUBM)}")
    A(f"v_and_b32 {v(t2)}, 0xf0, {v(TID)}")
    A(f"v_lshl_add_u32 {v(PUBK)}, {v(t2)}, 2, {s(S_T0)}")
    A(f"v_and_b32 {v(t2)}, 3, {v(LANE)}")
    A(f"v_lshl_add_u32 {v(PUBK)}, {v(t2)}, 4, {v(PUBK)}")
    A(f"v_and_b32 {v(t2)}, 12, {v(LANE)}")
    A(f"v_add_u32 {v(PUBK)}, {v(PUBK)}, {v(t2)}")
    A(f"v_xor_b32 {v(PUBK)}, {16384 + (4 << 10)}, {v(PUBK)}")
    A(f"s_lshr_b32 {s(S_T1)}, {s(S_WAVE)}, 1")
    A(f"s_lshl_b32 {s(S_T1)}, {s(S_T1)}, 9")
    A(f"s_add_u32 {s(S_T0)}, {s(S_T0)}, {s(S_T1)}")
    A(f"s_and_b32 {s(S_T1)}, {s(S_WAVE)}, 1")
    A(f"s_lshl_b32 {s(S_T1)}, {s(S_T1)}, 2")
    A(f"s_add_u32 {s(S_T0)}, {s(S_T0)}, {s(S_T1)}")
    A(f"s_xor_b32 {s(S_T0)}, {s(S_T0)}, {32768 + (2 << 10)}")
    A(f"v_lshl_add_u32 {v(PUBV)}, {v(LANE)}, 3, {s(S_T0)}")
    A(f"s_lshl_b32 {s(S_T0)}, {s(S_WAVE)}, 8")
    A(f"s_add_u32 {s(S_T0)}, {s(S_T0)}, 2048")
    A(f"v_lshl_add_u32 {v(FOR)}, {v(LANE)}, 2, {s(S_T0)}")
    A(f"s_lshr_b32 {s(S_T0)}, {s(S_CI)}, 2")
    A(f"s_lshl_b32 {s(S_T0)}, {s(S_T0)}, 8")
    A(f"s_and_b32 {s(S_T1)}, {s(S_CI)}, 3")
    A(f"s_lshl_b32 {s(S_T1)}, {s(S_T1)}, 2")
    A(f"s_add_u32 {s(S_T0)}, {s(S_T0)}, {s(S_T1)}")
    A(f"v_min_u32 {v(t2)}, 1, {v(TID)}")
    A(f"v_lshl_add_u32 {v(FMW)}, {v(t2)}, 30, {s(S_T0)}")
    A(f"s_lshr_b32 {s(S_T0)}, {s(S_CI)}, 3")
    A(f"s_lshl_b32 {s(S_T0)}, {s(S_T0)}, 14")
    A(f"s_and_b32 {s(S_T1)}, {s(S_CI)}, 7")
    A(f"s_lshl_b32 {s(S_T1)}, {s(S_T1)}, 10")
    A(f"s_add_u32 {s(S_T0)}, {s(S_T0)}, {s(S_T1)}")
    A(f"s_lshl_b32 {s(S_T1)}, {s(S_GRP)}, 16")
    A(f"s_add_u32 {s(S_T0)}, {s(S_T0)}, {s(S_T1)}")
    A(f"v_lshl_add_u32 {v(XOWN)}, {v(TID)}, 2, {s(S_T0)}")
    for j in range(3):
        A(f"v_xor_b32 {v(XP + j)}, {hex((j + 1) << 16)}, {v(XOWN)}")
    sparse_index(A, IDX, LANE)
    for i in range(3):
        A(f"s_xor_b32 {s(S_T0)}, {s(S_X3)}, {i}")
        A(f"s_mul_i32 {s(S_T0)}, {s(S_T0)}, 1536")
        A(f"s_add_u32 {s(S_T0)}, {s(S_T0)}, {512 * i}")
        A(f"v_lshl_add_u32 {v(LWS + i)}, {v(LANE)}, 3, {s(S_T0)}")
    A(f"s_mul_i32 {s(S_T0)}, {s(S_WAVE)}, 1536")
    A(f"v_lshl_add_u32 {v(LRX)}, {v(LANE)}, 3, {s(S_T0)}")
    A(f"v_and_b32 {v(t2)}, 1, {v(LANE)}")
    A(f"v_mov_b32 {v(SEL)}, 0x05040100")
    A(f"v_mov_b32 {v(t3)}, 0x03020706")
    A(f"v_cmp_eq_u32 vcc, 1, {v(t2)}")
    A("s_nop 1")
    A(f"v_cndmask_b32 {v(SEL)}, {v(SEL)}, {v(t3)}, vcc")
    A(f"v_and_b32 {v(t2)}, 7, {v(LANE)}")
    A(f"v_lshrrev_b32 {v(t3)}, 4, {v(LANE)}")
    A(f"v_lshlrev_b32 {v(t4)}, 3, {v(t3)}")
    A(f"v_lshl_add_u32 v57, {v(t2)}, 11, {v(t4)}")
    A.srd(SW, P_MEM0, SIZE["mem0"])
    A(f"v_bfe_u32 {v(t2)}, {v(LANE)}, 1, 3")
    A(f"v_cmp_eq_u32 vcc, {v(t2)}, {v(t3)}")
    A(f"v_and_b32 {v(t2)}, 1, {v(LANE)}")
    A(f"v_lshlrev_b32 {v(t2)}, 4, {v(t2)}")
    A(f"v_mov_b32 {v(t3)}, 0x3f80")
    A(f"v_lshlrev_b32 {v(t2)}, {v(t2)}, {v(t3)}")
    for i in range(4):
        A(f"v_cndmask_b32 {v(HT + 4 + i)}, 0, {v(t2)}, vcc")
    A(f"v_mov_b32 {v(SENT)}, -1")
    A(f"v_mov_b32 {v(SENT + 1)}, -1")

    def unwritten(soff, fl):
        A(f"buffer_store_dwordx2 {v(SENT, 2)}, {v(PUBM)}, {s(SWS, 4)}, {s(soff)} offen{fl}")
        for reg in (PUBK, PUBV):
            A(f"buffer_store_dword {v(SENT)}, {v(reg)}, {s(SWS, 4)}, {s(soff)} offen{fl}")
    A.c("'not written' marks in every ring slot this workgroup owns")
    for slot in range(4):
        A(f"s_add_u32 {s(S_T0)}, {s(S_RBASE)}, {slot << 16}")
        unwritten(S_T0, " sc1")
        for k in range(2 * cfg.nrep):
            A(f"s_mov_b32 {s(S_T1)}, {L.XRING + (slot << 18) + ((k & 1) << 13) + xcopy(k >> 1)}")
            A(f"buffer_store_dword {v(SENT)}, {v(XOWN)}, {s(SWS, 4)}, {s(S_T1)} offen sc1")
    A(f"v_mov_b32 {v(TAGV)}, 1")
    A(f"buffer_store_dword {v(TAGV)}, {v(FMW)}, {s(SWS, 4)}, {s(S_FB)} offen sc1")
    A(f"s_lshl_b32 {s(S_T2)}, {s(S_IRR)}, 16")
    A(f"s_or_b32 {s(S_T2)}, {s(S_T2)}, 1")
    arrive(A, S_T2)
    A(f"s_lshl_b32 {s(S_T0)}, {s(S_CI)}, 2")
    A(f"s_add_u32 {s(S_T0)}, {s(S_T0)}, {s(S_WAVE)}")
    A(f"s_lshl_b32 {s(S_T0)}, {s(S_T0)}, 5")
    A(f"buffer_load_dwordx2 v[58:59], v57, {s(SW, 4)}, {s(S_T0)} offen")

    def first():
        A("v_min_u32 v58, -2, v58")
        A("v_min_u32 v59, -2, v59")
        A(f"buffer_store_dwordx2 v[58:59], {v(PUBM)}, {s(SWS, 4)}, {s(S_RBASE)} offen sc1")
    A.c("weights into registers")
    GK, GV, GO, TK, TV, TO = 51, 52, 53, 54, 55, 56
    A(f"s_lshl_b32 {s(S_T2)}, {s(S_X3)}, 5")
    glob_addr(A, GV, LANE, 13, S_T2, t2)
    glob_addr(A, GO, LANE, 11, S_T2, t2)
    A(f"s_and_b32 {s(S_T3)}, {s(S_T2)}, 32")
    A(f"s_lshr_b32 {s(S_T3)}, {s(S_T3)}, 1")
    A(f"s_and_b32 {s(S_T2)}, {s(S_T2)}, 64")
    A(f"s_or_b32 {s(S_T2)}, {s(S_T2)}, {s(S_T3)}")
    glob_addr(A, GK, LANE, 13, S_T2, t2)
    for reg, kind in ((TK, "K"), (TV, "N"), (TO, "O")):
        tr_addr(A, reg, LANE, kind, t2)
    chunks = []
    for ptr, name, base, kind, vg, vt in ((P_WK, "Wk", WK, "K", GK, TK), (P_WV, "Wv", WV, "N", GV, TV), (P_WO, "Wo", WO, "O", GO, TO)):
        for j in range(4):
            def setup(ptr=ptr, name=name, j=j):
                A.srd(SW, ptr, SIZE[name])
                if name == "Wo":
                    A(f"s_lshl_b32 {s(S_T1)}, {s(S_GRP)}, 2")
                    A(f"s_add_u32 {s(S_T1)}, {s(S_T1)}, {s(S_WAVE)}")
                    A(f"s_lshl_b32 {s(S_T1)}, {s(S_T1)}, 19")
                    A(f"s_lshl_b32 {s(S_T0)}, {s(S_CI)}, 7")
                    A(f"s_add_u32 {s(S_T1)}, {s(S_T1)}, {s(S_T0)}")
                    A(f"s_add_u32 {s(S_T1)}, {s(S_T1)}, {j * 64 * 2048}")
                else:
                    A(f"s_lshl_b32 {s(S_T1)}, {s(S_WAVE)}, 21")
                    A(f"s_lshl_b32 {s(S_T0)}, {s(S_GRP)}, 4")
                    A(f"s_add_u32 {s(S_T0)}, {s(S_T0)}, {s(S_CI)}")
                    A(f"s_xor_b32 {s(S_T0)}, {s(S_T0)}, {4 if name == 'Wk' else 2}")
                    A(f"s_lshl_b32 {s(S_T0)}, {s(S_T0)}, 7")
                    A(f"s_add_u32 {s(S_T1)}, {s(S_T1)}, {s(S_T0)}")
                    A(f"s_add_u32 {s(S_T1)}, {s(S_T1)}, {j * 64 * 8192}")
            chunks.append((setup, 2048 if name == "Wo" else 8192, kind, vg, vt,
                           (lambda n, base=base, j=j: base + (j * 4 + n) * 8)))
    if cfg.meet:
        chunks = [chunks[i] for i in (3, 7, 2, 6, 1, 5, 0, 4, 8, 9, 10, 11)]
    load_weights(A, chunks, WFLAG[cfg.wlo], first, cfg.ramp_lo)
    cfg.mark(A, 1)
    await_start(A, end, probed=True)
    A.c("bring one sixteenth of the group's rings into L2")
    A(f"s_lshl_b32 {s(S_T0)}, {s(S_CI)}, 14")
    A(f"s_add_u32 {s(S_T0)}, {s(S_T0)}, {s(S_RBASE)}")
    for i in range(4):
        A(f"buffer_load_dwordx4 {v(AP + 4 * i, 4)}, {v(VG)}, {s(SWS, 4)}, {s(S_T0)} offen offset:{1024 * i} sc1")
    for q in range(48):
        A(f"v_mov_b32 {v(ACK + q)}, 0")
    A(f"s_mov_b32 {s(S_STEP)}, 0")
    ring_slots(A)
    slow_lbl = A.new("kvo_sc1")
    A(f"s_cmp_lg_u32 {s(S_IRR)}, 0")
    A(f"s_cbranch_scc1 {slow_lbl}")

    sm = lambda acc, W, j, n: A(f"{SM} {v(acc + 4 * n, 4)}, {v(AP + 4 * j, 4)}, {r(W + (j * 4 + n) * 8, 8)}, {v(IDX)}")

    def ad(acc, n):
        for b in range(2):
            A(f"v_add_f32 {v(HS + 2 * n + b)}, {v(acc + 4 * n + b)}, {v(acc + 4 * n + 2 + b)}")

    def undo(acc, vin):
        def f():
            A.nop(8)
            for n in range(min(cfg.ksplit + vin, 3 + vin)):
                for q in range(2):
                    A(f"v_pk_mul_f32 {v((acc + 4 * n if n < 3 else ACV + 4 * (n - 3)) + 2 * q, 2)}, 0, 0")
        return f if cfg.spec else None

    def clear_acc():
        for q in range(24):
            A(f"v_pk_mul_f32 {v(ACK + 2 * q, 2)}, 0, 0")
    wr = lambda n, R: A(f"ds_write_b64 {v(LWS + n)}, {v(HS + 2 * n, 2)} offset:{R}")

    def gather(ld):
        for i in range(4):
            ld(i)
            pause(A, cfg, HT, cfg.lspace if i < 3 else cfg.ltail, 4)

    def proj(acc, W, R, vin=0):
        def f(j, lo, hi):
            for n in range(lo, hi):
                sm(acc, W, j, n) if n < 3 else sm(ACV, WV, j, n - 3)

        def last(j):
            for n in range(3):
                sm(acc, W, j, n)
                A("s_nop 1")
            ad(acc, 0)
            sm(acc, W, 0, 3)
            ad(acc, 1)
            wr(0, R)
            ad(acc, 2)
            wr(1, R)
            sm(acc, W, 1, 3)
            wr(2, R)
            sm(acc, W, 2, 3)
            sm(acc, W, 3, 3)
            f(j, 3, 3 + vin)
        sp = min(cfg.ksplit + vin, 3 + vin)
        return (lambda j, rest: f(j, 0, 3 + vin) if rest else last(j)), \
            (lambda j: f(j, 0, sp) if j < 3 else None, lambda j: f(j, sp, 3 + vin) if j < 3 else last(j))

    def collect(acc, R, fill, pad=0, packed=True):
        if packed:
            busy(A, CHK, cfg.fillw)
        A("s_waitcnt lgkmcnt(0)")
        A("s_barrier")
        for i in range(3):
            A(f"ds_read_b64 {v(RD + 2 * i, 2)}, {v(LRX)} offset:{R + 512 * i}")
        A.nop(pad)
        ad(acc, 3)
        fill()
        if packed:
            busy(A, CHK, cfg.fillr)
        A("s_waitcnt lgkmcnt(0)")
        if packed:
            A(f"v_pk_add_f32 {v(RD, 2)}, {v(RD, 2)}, {v(HS + 6, 2)}")
            A(f"v_pk_add_f32 {v(RD + 2, 2)}, {v(RD + 2, 2)}, {v(RD + 4, 2)}")
            A(f"v_pk_add_f32 {v(RD, 2)}, {v(RD, 2)}, {v(RD + 2, 2)}")
        else:
            for b in range(2):
                A(f"v_add_f32 {v(RD + b)}, {v(RD + b)}, {v(HS + 6 + b)}")
                A(f"v_add_f32 {v(RD + 2 + b)}, {v(RD + 2 + b)}, {v(RD + 4 + b)}")
            for b in range(2):
                A(f"v_add_f32 {v(RD + b)}, {v(RD + b)}, {v(RD + 2 + b)}")
        A(f"v_cvt_pk_bf16_f32 {v(PW)}, {v(RD)}, {v(RD + 1)}")

    def to_columns(x):
        A(f"v_mov_b32_dpp {v(QD)}, {v(x)} quad_perm:[1,0,3,2] row_mask:0xf bank_mask:0xf")
        A(f"v_perm_b32 {v(QD)}, {v(QD)}, {v(x)}, {v(SEL)}")

    def body(loc):
        top = A.new("kvo")
        ldm = lambda i: A(f"buffer_load_dwordx4 {v(AP + 4 * i, 4)}, {v(VG)}, {s(SWS, 4)}, {s(S_CUR)} offen offset:{1024 * i} sc1")
        ldo = lambda i: A(f"buffer_load_dwordx4 {v(AP + 4 * i, 4)}, {v(VGO)}, {s(SWS, 4)}, {s(S_CUR)} offen offset:{1024 * i} sc1")
        vq = [(j, n) for n in range(cfg.vin, 4) for j in range(4)]

        def vmf(k):
            for _ in range(k):
                if vq:
                    sm(ACV, WV, *vq.pop(0))

        A.label(top)
        gather(ldm)
        chk4 = lambda i: check(A, AP + 4 * i, 4, CHK)
        onfail = lambda c: (lambda first: count(A, cfg, c) if first else None)
        use, fast = proj(ACK, WK, RK, cfg.vin)
        done, slow1 = fsm_poll(A, 4, ldm, chk4, use, end, fast=fast, onfail=onfail(2), undo=undo(ACK, cfg.vin))
        A.label(done)
        stamp(A, cfg, 0)
        vmf(cfg.vk)
        collect(ACK, RK, lambda: vmf(cfg.vk2), 3, packed=False)
        A("s_nop 1")
        to_columns(PW)
        A(f"buffer_store_dword {v(QD)}, {v(PUBK)}, {s(SWS, 4)}, {s(S_CUR)} offen{loc}")
        stamp(A, cfg, 1)
        if len(vq) > 4:
            vmf(len(vq) - 4)
            A.nop(max(0, 7 - 3 * cfg.vin))
        left = len(vq)
        vmf(1)
        ad(ACV, 0)
        vmf(1)
        ad(ACV, 1)
        wr(0, RV)
        vmf(1)
        ad(ACV, 2)
        wr(1, RV)
        wr(2, RV)
        vmf(1)
        collect(ACV, RV, lambda: None, 3 if left == 4 else 0)
        A(f"buffer_store_dword {v(PW)}, {v(PUBV)}, {s(SWS, 4)}, {s(S_CUR)} offen{loc}")
        stamp(A, cfg, 2)
        flush_stamps(A, cfg, 8, 124, 125)
        A(f"s_cmp_eq_u32 {s(S_STEP)}, {cfg.nsteps - 1}")
        A(f"s_cbranch_scc1 {end}")
        A(f"v_add_u32 {v(TAGV)}, 1, {v(TAGV)}")
        A(f"s_and_b32 {s(S_T0)}, {s(S_STEP)}, 3")
        x_offsets(A, cfg, S_XC, S_T0)
        flag_wait(A, cfg, FOR, XL, 2, end)
        A.nop(cfg.fo_wait)
        if cfg.fine >= 6:
            stamp(A, cfg, 6)
        gather(ldo)
        use, fast = proj(ACO, WO, RO)
        seen = []

        def chk4o(i):
            if len(seen) < 4 and cfg.fine == 10 + i:
                stamp(A, cfg, 7)
            seen.append(i)
            chk4(i)
        done, slow2 = fsm_poll(A, 4, ldo, chk4o, use, end, fast=fast, onfail=onfail(3), undo=undo(ACO, 0))
        A.label(done)
        stamp(A, cfg, 3)
        collect(ACO, RO, lambda: None, 3)
        A.c("exchange of partial sums with the other groups")
        for rr in range(cfg.nrep):
            A(f"buffer_store_dword {v(PW)}, {v(XOWN)}, {s(SWS, 4)}, {s(S_XC + rr)} offen sc1")
        stamp(A, cfg, 4)
        unwritten(S_RST, loc)
        for k in range(3):
            A(f"v_mov_b32 {v(XL + 4 * k)}, {v(PW)}")
        A(f"s_add_u32 {s(S_STEP)}, {s(S_STEP)}, 1")
        ring_slots(A)

        def ldx(k):
            for j in range(3):
                A(f"buffer_load_dword {v(XL + 4 * (k % 3) + 1 + j)}, {v(XP + j)}, {s(SWS, 4)}, {s(S_XC + k % cfg.nrep)} offen sc1")
        events = sorted([(cfg.xdelay, 0), (cfg.xdelay + cfg.xgap, 1), (cfg.xdelay + cfg.xgap + cfg.xgap2, 2), (cfg.fm_delay, 3)])
        now = 0
        for t, e in events:
            pause(A, cfg, HT, max(0, t - now), 1)
            now = max(now, t)
            if e == 0 and cfg.fine < 6:
                stamp(A, cfg, 6)
            if e < 3:
                ldx(e)
                if e == 0:
                    clear_acc()
                    now += 8
            else:
                A(f"buffer_store_dword {v(TAGV)}, {v(FMW)}, {s(SWS, 4)}, {s(S_FB)} offen{loc}")
        heat(A, HT, cfg.xfill)
        x2, xsum = A.new("x2"), A.new("xs")

        def final(x):
            A(f"{MF} {v(RD, 4)}, {v(x, 4)}, {v(HT + 4, 4)}, 0")
            A(f"v_max3_u32 {v(CHK)}, {v(x + 1)}, {v(x + 2)}, {v(x + 3)}")
            A(f"v_cmp_eq_u32 vcc, -1, {v(CHK)}")
            A("s_nop 5")
            for i in range(2):
                A(f"v_cvt_pk_bf16_f32 {v(SUM + i)}, {v(RD + 2 * i)}, {v(RD + 2 * i + 1)}")
        A(f"s_waitcnt vmcnt({7 if cfg.fm_delay >= cfg.xdelay else 6})")
        if cfg.fine < 10:
            stamp(A, cfg, 7)
        final(XL)
        A(f"s_cbranch_vccnz {x2}")
        A.label(xsum)
        A(f"buffer_store_dwordx2 {v(SUM, 2)}, {v(PUBM)}, {s(SWS, 4)}, {s(S_CUR)} offen{loc}")
        stamp(A, cfg, 5)
        pause(A, cfg, HT, cfg.mdelay, 3)
        A(f"s_branch {top}")
        A.label(x2)
        count(A, cfg, 0)
        for k in range(6):
            ldx(k + 3)
            A("s_waitcnt vmcnt(6)")
            final(XL + 4 * ((k + 1) % 3))
            A(f"s_cbranch_vccz {xsum}")
            count(A, cfg, 1)
        spend(A, end)
        A(f"s_branch {x2}")
        slow1()
        slow2()

    A.c("all members of the group share one L2: hand-offs inside the group use plain stores")
    body("")
    A.label(slow_lbl)
    A.c("some member runs on another die: every hand-off is written through")
    body(" sc1")


def q_role(A, cfg, end):
    WIN = 0
    VG, VK, VVA, VVB, VO, IDX, LR, QW, QR, LWS = 10, 11, 12, 13, 14, 15, 18, 19, 20, 211
    PFG, RDK, RDQ, RDVA, RDVB, OTA, OTB = 21, 22, 23, 24, 25, 26, 27
    FMR, FOW, FBUF, TAGV, XCL, POW, PQA, PQV, PQB = 192, 193, 194, 197, 198, 199, 208, 209, 210
    SENT, ONES, BIAS, CHK, T1, T2, T3 = 28, 32, 36, 44, 45, 46, 47
    AP, ACQ = 48, 64
    SX, SMM, RD, PX, LA, TM = 64, 72, 76, 76, 84, 88
    QOP, OA, KC, VM, PK = 96, 96, 112, 120, 124
    ST = 128
    SLOT0, SLOTX = 32768, 0x18000
    WQ = 256
    RQ, RB, HS = 0, 12288, 96
    HT, POV = 200, 214
    TID, LANE = 48, 49
    S_HEAD, S_PARW, S_EH, S_LDS, S_PQ, S_NEED = 54, 55, 56, 57, 58, 27
    A.c("Q role: q projection and attention of one head")
    if (cfg.gate or cfg.gate2 or cfg.gate3) and not cfg.gate_entry:
        A("s_memrealtime s[90:91]")
    A(f"v_mov_b32 {v(TID)}, v0")
    A(f"v_mov_b32 v50, v1")
    LANE = 50
    A(f"s_lshl_b32 {s(S_HEAD)}, {s(S_GRP)}, 3")
    A(f"s_add_u32 {s(S_HEAD)}, {s(S_HEAD)}, {s(S_TK)}")
    A(f"s_and_b32 {s(S_PARW)}, {s(S_WAVE)}, 1")
    A(f"s_lshr_b32 {s(S_EH)}, {s(S_WAVE)}, 1")
    A(f"s_lshl_b32 {s(S_RBASE)}, {s(S_GRP)}, 18")
    A(f"s_add_u32 {s(S_RBASE)}, {s(S_RBASE)}, {L.LRING}")
    A(f"s_lshl_b32 {s(S_T0)}, {s(S_WAVE)}, 12")
    A(f"v_lshl_add_u32 {v(VG)}, {v(LANE)}, 4, {s(S_T0)}")
    A(f"s_lshl_b32 {s(S_T0)}, {s(S_TK)}, 11")
    A(f"s_add_u32 {s(S_T1)}, {s(S_T0)}, 16384")
    A(f"v_lshl_add_u32 {v(VK)}, {v(LANE)}, 4, {s(S_T1)}")
    A(f"s_lshl_b32 {s(S_T1)}, {s(S_EH)}, 10")
    A(f"s_add_u32 {s(S_T0)}, {s(S_T0)}, {s(S_T1)}")
    A(f"s_lshl_b32 {s(S_T1)}, {s(S_PARW)}, 9")
    A(f"s_add_u32 {s(S_T1)}, {s(S_T1)}, {s(S_T0)}")
    A(f"s_add_u32 {s(S_T1)}, {s(S_T1)}, 32768")
    A(f"v_lshl_add_u32 {v(VVA)}, {v(LANE)}, 3, {s(S_T1)}")
    A(f"v_xor_b32 {v(VVB)}, 512, {v(VVA)}")
    A(f"s_add_u32 {s(S_T1)}, {s(S_T1)}, 16384")
    A(f"v_mov_b32 {v(VO)}, {s(S_T1)}")
    for bit, width, sh in ((5, 1, 8), (1, 2, 6), (4, 1, 5), (0, 1, 4), (3, 1, 30)):
        A(f"v_bfe_u32 v51, {v(LANE)}, {bit}, {width}")
        A(f"v_lshl_add_u32 {v(VO)}, v51, {sh}, {v(VO)}")
    sparse_index(A, IDX, LANE)
    for i in range(8):
        A(f"v_mov_b32 {v(HT + i)}, 0")
    for i in range(3):
        A(f"s_xor_b32 {s(S_T0)}, {s(S_WAVE)}, {3 ^ i}")
        A(f"s_mul_i32 {s(S_T0)}, {s(S_T0)}, 3072")
        A(f"s_add_u32 {s(S_T0)}, {s(S_T0)}, {1024 * i}")
        A(f"v_lshl_add_u32 {v(LWS + i)}, {v(LANE)}, 4, {s(S_T0)}")
    A(f"s_mul_i32 {s(S_T0)}, {s(S_WAVE)}, 3072")
    A(f"v_lshl_add_u32 {v(LR)}, {v(LANE)}, 4, {s(S_T0)}")
    A(f"s_lshl_b32 {s(S_T0)}, {s(S_WAVE)}, 9")
    A(f"v_and_b32 v51, 15, {v(LANE)}")
    A(f"v_lshl_add_u32 {v(QW)}, v51, 4, {s(S_T0)}")
    A(f"v_lshrrev_b32 v51, 4, {v(LANE)}")
    A(f"v_lshl_add_u32 {v(QW)}, v51, 2, {v(QW)}")
    A(f"v_lshrrev_b32 v51, 2, {v(LANE)}")
    A(f"v_and_b32 v52, 1, {v(LANE)}")
    A(f"v_lshlrev_b32 v52, 3, v52")
    A(f"v_lshl_add_u32 {v(QR)}, v51, 4, v52")
    A(f"v_lshlrev_b32 v51, 4, {v(LANE)}")
    A(f"s_mul_i32 {s(S_T0)}, {s(S_WAVE)}, 6144")
    A(f"v_add_u32 {v(PFG)}, {s(S_T0)}, v51")
    A(f"s_add_u32 {s(S_LDS)}, {s(S_T0)}, {SLOT0}")
    A(f"v_add_u32 {v(RDK)}, {SLOT0 + 8192}, v51")
    A(f"s_lshl_b32 {s(S_T0)}, {s(S_PARW)}, 12")
    A(f"s_add_u32 {s(S_T0)}, {s(S_T0)}, {SLOT0}")
    A(f"v_add_u32 {v(RDQ)}, {s(S_T0)}, v51")
    A(f"s_lshl_b32 {s(S_T0)}, {s(S_WAVE)}, 11")
    A(f"s_add_u32 {s(S_T0)}, {s(S_T0)}, {SLOT0 + 16384}")
    A(f"v_add_u32 {v(RDVA)}, {s(S_T0)}, v51")
    A(f"v_xor_b32 {v(RDVB)}, 2048, {v(RDVA)}")
    A(f"s_lshl_b32 {s(S_FB)}, {s(S_GRP)}, 12")
    A(f"s_add_u32 {s(S_FB)}, {s(S_FB)}, {L.FLAGS}")
    A(f"s_lshl_b32 {s(S_T0)}, {s(S_WAVE)}, 8")
    A(f"v_lshl_add_u32 {v(FMR)}, {v(LANE)}, 2, {s(S_T0)}")
    A(f"s_lshr_b32 {s(S_T0)}, {s(S_TK)}, 1")
    A(f"s_lshl_b32 {s(S_T0)}, {s(S_T0)}, 8")
    A(f"s_and_b32 {s(S_T1)}, {s(S_TK)}, 1")
    A(f"s_lshl_b32 {s(S_T1)}, {s(S_T1)}, 2")
    A(f"s_add_u32 {s(S_T0)}, {s(S_T0)}, {s(S_T1)}")
    A(f"s_add_u32 {s(S_T0)}, {s(S_T0)}, 2048")
    A(f"v_min_u32 v52, 1, {v(TID)}")
    A(f"v_lshl_add_u32 {v(FOW)}, v52, 30, {s(S_T0)}")
    A(f"v_mov_b32 {v(TAGV)}, 0")
    A(f"buffer_store_dword {v(TAGV)}, {v(FOW)}, {s(SWS, 4)}, {s(S_FB)} offen sc1")
    XN = 2 if cfg.xbf else 4
    A(f"s_lshr_b32 {s(S_T0)}, {s(S_TK)}, {2 if cfg.xbf else 1}")
    A(f"s_lshl_b32 {s(S_T0)}, {s(S_T0)}, 14")
    A(f"s_and_b32 {s(S_T1)}, {s(S_TK)}, {3 if cfg.xbf else 1}")
    A(f"s_lshl_b32 {s(S_T1)}, {s(S_T1)}, {11 if cfg.xbf else 12}")
    A(f"s_add_u32 {s(S_T0)}, {s(S_T0)}, {s(S_T1)}")
    A(f"s_lshl_b32 {s(S_T1)}, {s(S_GRP)}, 16")
    A(f"s_add_u32 {s(S_T0)}, {s(S_T0)}, {s(S_T1)}")
    A(f"v_lshl_add_u32 {v(XCL)}, {v(TID)}, {3 if cfg.xbf else 4}, {s(S_T0)}")
    A(f"s_lshl_b32 {s(S_T0)}, {s(S_HEAD)}, 2")
    A(f"s_add_u32 {s(S_T0)}, {s(S_T0)}, {s(S_WAVE)}")
    A(f"s_lshl_b32 {s(S_T0)}, {s(S_T0)}, 11")
    A(f"s_lshl_b32 {s(S_T1)}, {s(S_PARW)}, 10")
    A(f"s_add_u32 {s(S_T0)}, {s(S_T0)}, {s(S_T1)}")
    A(f"v_add_u32 {v(OTA)}, {s(S_T0)}, v51")
    A(f"v_xor_b32 {v(OTB)}, 2048, {v(OTA)}")
    progress_addr(A, POW, LANE, L.PO, S_HEAD, 52)
    A(f"buffer_store_dword {v(TAGV)}, {v(POW)}, {s(SWS, 4)}, 0 offen sc1")
    lines_addr(A, 53, LANE, 16)
    A(f"s_lshr_b32 {s(S_T0)}, {s(S_HEAD)}, 2")
    A(f"s_lshl_b32 {s(S_T0)}, {s(S_T0)}, 10")
    A(f"s_add_u32 {s(S_T0)}, {s(S_T0)}, {L.PQ}")
    A(f"v_add_u32 {v(PQA)}, {s(S_T0)}, v53")
    A(f"s_lshl_b32 {s(S_T0)}, {s(S_GRP)}, 10")
    A(f"s_add_u32 {s(S_T0)}, {s(S_T0)}, {L.PB - 1024}")
    A(f"v_add_u32 v53, {s(S_T0)}, v53")
    A(f"v_cmp_lt_u32 vcc, 7, {v(LANE)}")
    A("s_nop 1")
    A(f"v_cndmask_b32 {v(PQA)}, {v(PQA)}, v53, vcc")
    A(f"v_cndmask_b32 {v(PQB)}, 0, 8, vcc")
    for i in range(4):
        A(f"v_mov_b32 {v(SENT + i)}, -1")
        A(f"v_mov_b32 {v(ONES + i)}, 0x3f803f80")
    A(f"v_and_b32 v51, 15, {v(LANE)}")
    A(f"s_lshl_b32 {s(S_T0)}, {s(S_PARW)}, 4")
    A(f"v_add_u32 v51, {s(S_T0)}, v51")
    A(f"v_lshrrev_b32 v52, 4, {v(LANE)}")
    A(f"v_lshlrev_b32 v52, 2, v52")
    A(f"v_mov_b32 v54, 0xf149f2ca")
    for T in range(2):
        for q in range(4):
            A(f"v_add_u32 v53, {16 * T + q}, v52")
            A(f"v_cmp_gt_u32 vcc, v53, v51")
            A("s_nop 1")
            A(f"v_cndmask_b32 {v(BIAS + 4 * T + q)}, 0, v54, vcc")
    for i in range(10):
        A(f"v_mov_b32 {v(WIN + i)}, 0")
    A(f"s_mov_b32 {s(S_C)}, 0x3e0293ee")
    A(f"s_mov_b32 {s(S_NC)}, 0xbe0293ee")
    for slot in range(4):
        A(f"s_add_u32 {s(S_T0)}, {s(S_RBASE)}, {slot << 16}")
        A(f"buffer_store_dwordx4 {v(SENT, 4)}, {v(VO)}, {s(SWS, 4)}, {s(S_T0)} offen sc1")
    A(f"s_lshl_b32 {s(S_T2)}, {s(S_IRR)}, 16")
    A(f"s_or_b32 {s(S_T2)}, {s(S_T2)}, 1")
    arrive(A, S_T2)
    for hf in range(2):
        A(f"s_xor_b32 {s(S_T2)}, {s(S_WAVE)}, {3 ^ (2 * hf)}")
        A(f"s_lshl_b32 {s(S_T2)}, {s(S_T2)}, 6")
        glob_addr(A, 51 + hf, LANE, 13, S_T2, 54)
    tr_addr(A, 53, LANE, "N", 54)
    A.srd(SW, P_WQ, SIZE["Wq"])
    chunks = []
    for j in range(4):
        for hf in range(2):
            def setup(j=j):
                A(f"s_lshl_b32 {s(S_T1)}, {s(S_WAVE)}, 21")
                A(f"s_lshl_b32 {s(S_T0)}, {s(S_HEAD)}, 8")
                A(f"s_add_u32 {s(S_T1)}, {s(S_T1)}, {s(S_T0)}")
                A(f"s_add_u32 {s(S_T1)}, {s(S_T1)}, {j * 64 * 8192}")
            chunks.append((setup, 8192, "N", 51 + hf, 53, (lambda n, j=j, hf=hf: WQ + (j * 8 + hf * 4 + n) * 8)))
    load_weights(A, chunks[::-1] if cfg.meet else chunks, WFLAG[cfg.wlo], None, cfg.ramp_lo)
    cfg.mark(A, 1)
    noprobe = A.new("np")
    A(f"s_cmp_lg_u32 {s(S_HEAD)}, 0")
    A(f"s_cbranch_scc1 {noprobe}")
    A("s_barrier")
    A(f"s_mov_b32 {s(S_T2)}, 0x2000000")
    probe(A, LANE, S_T2, cfg.marks)
    arrive(A, S_T2)
    A.label(noprobe)
    await_start(A, end, probed=True)
    cfg.mark(A, 2)
    gate(A, cfg.gate)
    A(f"s_mul_i32 {s(S_PF)}, {s(S_HEAD)}, 24576")
    A(f"s_add_u32 {s(S_PF)}, {s(S_PF)}, {L.QKV}")
    A(f"s_mov_b32 {s(S_STEP)}, 0")

    def prefetch_parts(src):
        ld = lambda so, j: f"buffer_load_dwordx4 {v(PFG)}, {s(SWS, 4)}, {s(so)} offen offset:{1024 * j} sc1 lds"
        return [f"s_mov_b32 m0, {s(S_LDS)}\ns_add_u32 {s(S_T2)}, {s(src)}, 3072\n" + ld(src, 0), ld(src, 1), ld(src, 2),
                f"s_add_u32 m0, {s(S_LDS)}, 3072\ns_xor_b32 {s(S_LDS)}, {s(S_LDS)}, {SLOTX}\n" + ld(S_T2, 0), ld(S_T2, 1),
                ld(S_T2, 2) + f"\ns_add_u32 {s(S_PF)}, {s(S_PF)}, {32 * 24576}"]

    def prefetch():
        for x in prefetch_parts(S_PF):
            A(x)

    def operands():
        for i in range(8):
            A(f"ds_read_b128 {v(ST + 4 * i, 4)}, {v(RDK)} offset:{1024 * i}")
        for p, reg in ((0, RDVA), (1, RDVB)):
            for t in range(2):
                A(f"ds_read_b128 {v(ST + 32 + 8 * p + 4 * t, 4)}, {v(reg)} offset:{1024 * t}")
        for ks in range(4):
            A(f"ds_read_b128 {v(ST + 48 + 4 * ks, 4)}, {v(RDQ)} offset:{1024 * ks}")
        for reg in (RDK, RDVA, RDVB, RDQ):
            A(f"v_xor_b32 {v(reg)}, {SLOTX}, {v(reg)}")

    ldpq = lambda: A(f"buffer_load_dword {v(PQV)}, {v(PQA)}, {s(SWS, 4)}, 0 offen sc1")

    def tstpq():
        A(f"v_add_u32 {v(CHK)}, {v(PQV)}, {v(PQB)}")
        A(f"v_cmp_gt_u32 vcc, {s(S_NEED)}, {v(CHK)}")
    A(f"s_mov_b32 {s(S_NEED)}, 1")
    if not cfg.solo:
        block_on(A, ldpq, tstpq, end)
    prefetch()
    slow_lbl = A.new("q_sc1")
    A(f"s_cmp_lg_u32 {s(S_IRR)}, 0")
    A(f"s_cbranch_scc1 {slow_lbl}")

    def score_x(qreg, bias, before=None):
        for ks in range(4):
            if before:
                before(ks)
            for T in range(2):
                c = v(SX + 4 * T, 4) if ks else (v(BIAS + 4 * T, 4) if bias else "0")
                A(f"{MF} {v(SX + 4 * T, 4)}, {v(ST + 16 * T + 4 * ks, 4)}, {v(qreg + 4 * ks, 4)}, {c}")

    def max_x():
        A(f"v_max3_f32 {v(T1)}, {v(SX)}, {v(SX + 1)}, {v(SX + 2)}")
        A(f"v_max3_f32 {v(T1)}, {v(T1)}, {v(SX + 3)}, {v(SX + 4)}")
        A(f"v_max3_f32 {v(T1)}, {v(T1)}, {v(SX + 5)}, {v(SX + 6)}")
        A(f"v_max_f32 {v(T1)}, {v(T1)}, {v(SX + 7)}")

    def softmax(hook=lambda pos: None):
        A(f"v_pk_add_f32 {v(SMM, 2)}, {v(SMM, 2)}, {v(SMM + 2, 2)}")
        A(f"v_max3_f32 {v(T2)}, {v(T1)}, {v(SMM)}, {v(SMM + 1)}")
        A(f"v_max3_f32 {v(T3)}, {v(T1)}, {v(SMM)}, {v(SMM + 1)}")
        if not hook(0):
            A("s_nop 1")
        A(f"v_permlane32_swap_b32 {v(T2)}, {v(T3)}")
        A(f"v_max_f32 {v(T1)}, {v(T2)}, {v(T3)}")
        A(f"v_max_f32 {v(T2)}, {v(T2)}, {v(T3)}")
        A("s_nop 1")
        A(f"v_permlane16_swap_b32 {v(T1)}, {v(T2)}")
        A(f"v_max_f32 {v(T1)}, {v(T1)}, {v(T2)}")
        A(f"v_mul_f32 {v(T2)}, {s(S_NC)}, {v(T1)}")
        hook(1)
        for i in range(5):
            A(f"v_pk_fma_f32 {v(SX + 2 * i, 2)}, {v(SX + 2 * i, 2)}, {s(S_C, 2)}, {v(T2, 2)} op_sel_hi:[1,0,0]")
        for i in range(10):
            A(f"v_exp_f32 {v(SX + i)}, {v(SX + i)}")
            if i == 4:
                hook(2)
        hook(3)
        for i in range(4):
            A(f"v_cvt_pk_bf16_f32 {v(PX + i)}, {v(SX + 2 * i)}, {v(SX + 2 * i + 1)}")
        A(f"v_cvt_pk_bf16_f32 {v(WIN + 2)}, {v(SMM)}, {v(SMM + 1)}")
        A(f"v_cvt_pk_bf16_f32 {v(WIN + 7)}, {v(SMM)}, {v(SMM + 1)}")

    WOFF = (2, 6, 0, 4)

    def scale(n):
        for i in range(n // 2):
            A(f"v_pk_mul_f32 {v(OA + 2 * i, 2)}, {v(OA + 2 * i, 2)}, {v(T2, 2)} op_sel_hi:[1,0]")

    def pv(nt, pre=None, post=None, hook=lambda pos: None):
        A(f"{MF} {v(LA, 4)}, {v(ONES, 4)}, {v(PX, 4)}, 0")
        A(f"{MF} {v(LA, 4)}, {v(ONES, 4)}, {v(WIN + WOFF[0], 4)}, {v(LA, 4)}")
        for t in range(nt):
            if pre and t == cfg.vchk:
                pre()
            A(f"{MF} {v(OA + 4 * t, 4)}, {v(ST + 32 + 4 * t, 4)}, {v(PX, 4)}, 0")
        if post:
            post()
        hook(5)
        for t in range(nt):
            A(f"{MF} {v(OA + 4 * t, 4)}, {v(VM, 4)}, {v(WIN + WOFF[t], 4)}, {v(OA + 4 * t, 4)}")
        hook(6)
        A(f"v_rcp_f32 {v(T2)}, {v(LA)}")
        A.nop(8 - nt)

    def body(loc):
        top = A.new("q")
        ldm = lambda i: A(f"buffer_load_dwordx4 {v(AP + 4 * i, 4)}, {v(VG)}, {s(SWS, 4)}, {s(S_CUR)} offen offset:{1024 * i} sc1")
        ldk = lambda i: A(f"buffer_load_dwordx4 {v(AP + 4 * i, 4)}, {v(VK)}, {s(SWS, 4)}, {s(S_CUR)} offen offset:{1024 * (i & 1)} sc1")

        def ldv():
            A(f"buffer_load_dwordx2 {v(VM, 2)}, {v(VVA)}, {s(SWS, 4)}, {s(S_CUR)} offen sc1")
            A(f"buffer_load_dwordx2 {v(VM + 2, 2)}, {v(VVB)}, {s(SWS, 4)}, {s(S_CUR)} offen sc1")
        A.label(top)
        far = A.new("qf")
        A.c("the first segments are fetched one step ahead, later ones two steps ahead")
        A(f"s_cmp_gt_u32 {s(S_STEP)}, {cfg.near + 1}")
        A(f"s_cbranch_scc1 {far}")
        A("s_waitcnt vmcnt(0)")
        A("s_barrier")
        A.label(far)
        operands()
        ring_slots(A)
        for q in range(16):
            A(f"v_pk_mul_f32 {v(ACQ + 2 * q, 2)}, 0, 0")

        def publish(pos):
            if pos == cfg.po_pos:
                A(f"buffer_store_dword {v(POV)}, {v(POW)}, {s(SWS, 4)}, 0 offen{loc}")
        A(f"v_mov_b32 {v(POV)}, {v(TAGV)}")
        if cfg.po_pos == 0:
            A("s_waitcnt vmcnt(0)")
        publish(0)
        A(f"v_add_u32 {v(TAGV)}, 1, {v(TAGV)}")
        if cfg.fine == 6:
            stamp(A, cfg, 7)
        if cfg.use_fm:
            flag_wait(A, cfg, FMR, 216, 4, end)
        if cfg.fine == 6:
            stamp(A, cfg, 6)
        for i in range(4):
            ldm(i)
            pause(A, cfg, HT, cfg.lspace if i < 3 else cfg.ltail, 4)

        fq = lambda j, lo, hi: [A(f"{SM} {v(ACQ + 4 * n, 4)}, {v(AP + 4 * j, 4)}, {r(WQ + (j * 8 + n) * 8, 8)}, {v(IDX)}")
                                for n in range(lo, hi)]
        chk4 = lambda i: check(A, AP + 4 * i, 4, CHK)

        def ad(n):
            for b in range(2):
                A(f"v_add_f32 {v(HS + 2 * n + b)}, {v(ACQ + 4 * n + b)}, {v(ACQ + 4 * n + 2 + b)}")
        wr = lambda p: A(f"ds_write_b128 {v(LWS + p)}, {v(HS + 4 * p, 4)} offset:{RQ}")

        own = lambda i: fq(i & 3, 6 + (i >> 2), 7 + (i >> 2))

        def last(j):
            for n in range(6):
                fq(j, n, n + 1)
                ad(n - 3) if n >= 3 else A("s_nop 1")
            wr(0)
            own(0)
            ad(3)
            ad(4)
            wr(1)
            own(1)
            ad(5)
            wr(2)

        def last_two():
            for n in range(6):
                fq(2, n, n + 1)
                ad(n - 2) if n >= 2 else A("s_nop 1")
                fq(3, n, n + 1)
                if n in (3, 5):
                    wr((n - 3) >> 1)
                    A("s_nop 0")
                else:
                    A("s_nop 1")
            own(0)
            ad(4)
            own(1)
            A("s_nop 1")
            ad(5)
            wr(2)
        fast = (lambda j: fq(j, 0, cfg.qsplit) if j < 3 else None, lambda j: fq(j, cfg.qsplit, 6) if j < 3 else last(j))
        if cfg.qjoint:
            fast += (lambda: check(A, AP + 8, 8, CHK), last_two)
        done, slow1 = fsm_poll(A, 4, ldm, chk4, lambda j, rest: fq(j, 0, 6) if rest else last(j), end, fast=fast,
                               onfail=lambda first: count(A, cfg, 2) if first else None,
                               undo=(lambda: (A.nop(8), [A(f"v_pk_mul_f32 {v(ACQ + 2 * q, 2)}, 0, 0") for q in range(2 * cfg.qsplit)])) if cfg.spec else None)
        A.label(done)
        stamp(A, cfg, 0)
        publish(1)
        for i in range(2, 2 + cfg.qown):
            own(i)
        A("s_waitcnt lgkmcnt(0)")
        A("s_barrier")
        fine(A, cfg, 1, 1)
        for p in range(3):
            A(f"ds_read_b128 {v(RD + 4 * p, 4)}, {v(LR)} offset:{RQ + 1024 * p}")
        for i in range(2 + cfg.qown, 8):
            own(i)
        for i in range(4):
            A(f"v_mov_b32 {v(SMM + i)}, 0")

        def ldkc():
            for p in range(2):
                A(f"buffer_load_dwordx4 {v(KC + 4 * p, 4)}, {v(VK)}, {s(SWS, 4)}, {s(S_CUR)} offen offset:{1024 * p} sc1")
        if cfg.kpos == 0:
            ldkc()
        ad(6)
        A("s_nop 1")
        ad(7)
        A("s_waitcnt lgkmcnt(0)")
        fine(A, cfg, 0, 2)
        for h2 in range(2):
            A(f"v_pk_add_f32 {v(RD + 2 * h2, 2)}, {v(RD + 2 * h2, 2)}, {v(HS + 12 + 2 * h2, 2)}")
            A(f"v_pk_add_f32 {v(RD + 4 + 2 * h2, 2)}, {v(RD + 4 + 2 * h2, 2)}, {v(RD + 8 + 2 * h2, 2)}")
        for h2 in range(2):
            A(f"v_pk_add_f32 {v(RD + 2 * h2, 2)}, {v(RD + 2 * h2, 2)}, {v(RD + 4 + 2 * h2, 2)}")
        A(f"v_cvt_pk_bf16_f32 {v(RD)}, {v(RD)}, {v(RD + 1)}")
        A(f"v_cvt_pk_bf16_f32 {v(RD + 1)}, {v(RD + 2)}, {v(RD + 3)}")
        A(f"ds_write2st64_b32 {v(QW)}, {v(RD)}, {v(RD + 1)} offset0:{RB // 256} offset1:{RB // 256 + 1}")
        fine(A, cfg, 1, 2)
        if cfg.kpos == 1:
            ldkc()
        busy(A, CHK, cfg.qfw2)
        A("s_waitcnt lgkmcnt(0)")
        A("s_barrier")
        for i in range(8):
            A(f"ds_read_b64_tr_b16 {v(QOP + 2 * i, 2)}, {v(QR)} offset:{RB + 256 * i}")
        if cfg.kpos == 2:
            ldkc()

        def qwait(ks):
            A(f"s_waitcnt lgkmcnt({6 - 2 * ks})")
            if ks in (1, 2):
                ldk(ks - 1)
            if ks == 3:
                fine(A, cfg, 0, 3)
                A("s_waitcnt vmcnt(2)")
                fine(A, cfg, 1, 3)
                check(A, KC, 8, CHK)
        score_x(QOP, False, qwait)
        stamp(A, cfg, 1)
        kre, kok = A.new("kr"), A.new("ko")
        A(f"s_cbranch_vccnz {kre}")
        for p in range(2):
            A(f"{SM} {v(SMM, 4)}, {v(KC + 4 * p, 4)}, {v(QOP + 8 * p, 8)}, {v(IDX)}")
        A.label(kok)
        stamp(A, cfg, 2)
        if cfg.vpos < 0:
            ldv()
        A.nop(4 if cfg.vpos >= 0 else 2)
        max_x()

        def hook(pos):
            if pos in (1, 3):
                fine(A, cfg, pos >> 1, 4)
            if pos in (4, 6):
                fine(A, cfg, (pos - 4) >> 1, 5)
            if pos == cfg.vpos:
                ldv()
            if cfg.use_fo and pos == cfg.fo_pos:
                A(f"buffer_store_dword {v(TAGV)}, {v(FOW)}, {s(SWS, 4)}, {s(S_FB)} offen{loc}")
            return pos == cfg.vpos
        softmax(hook)
        vre, vok = A.new("vr"), A.new("vo")

        def wait_v():
            A(f"s_waitcnt vmcnt({1 if cfg.use_fo and 4 >= cfg.fo_pos >= cfg.vpos else 0})")
            check(A, VM, 4, CHK)

        def test_v():
            A(f"s_cbranch_vccnz {vre}")
            A.label(vok)
            publish(2)
        hook(4)
        pv(2, wait_v, test_v, hook)
        scale(8)
        for i in range(4):
            A(f"v_cvt_pk_bf16_f32 {v(PK + i)}, {v(OA + 2 * i)}, {v(OA + 2 * i + 1)}")
        A(f"buffer_store_dwordx4 {v(PK, 4)}, {v(VO)}, {s(SWS, 4)}, {s(S_CUR)} offen{loc}")
        stamp(A, cfg, 3)
        publish(3)
        A.c("off the recurrence path: operands of segment s+2, token rows of this segment")
        A("s_barrier")
        A(f"buffer_store_dwordx4 {v(SENT, 4)}, {v(VO)}, {s(SWS, 4)}, {s(S_RST)} offen{loc}")
        pqw, pqok, twice, once = A.new("pw"), A.new("pk"), A.new("p2"), A.new("p1")
        A(f"s_cmp_eq_u32 {s(S_STEP)}, {cfg.near}")
        A(f"s_cbranch_scc1 {twice}")
        A.label(once)
        A(f"s_add_u32 {s(S_NEED)}, {s(S_NEED)}, 1")
        A(f"s_min_u32 {s(S_NEED)}, {s(S_NEED)}, {cfg.nsteps}")
        if not cfg.solo:
            tstpq()
        for i in range(4):
            A(f"v_mov_b32 {v(SMM + i)}, 0")
        A(f"s_add_u32 {s(S_T0)}, {s(S_STEP)}, 2")
        A(f"s_and_b32 {s(S_T0)}, {s(S_T0)}, 3")
        x_offsets(A, cfg, S_XR, S_T0)
        A(f"s_cmp_lt_u32 {s(S_STEP)}, {cfg.nsteps - 2}")
        A(f"s_cselect_b32 {s(S_T3)}, {s(S_PF)}, 0x70000000")
        if not cfg.solo:
            A(f"s_cbranch_vccnz {pqw}")
            A.label(pqok)
        side = [f"buffer_store_dwordx{XN} {v(SENT, XN)}, {v(XCL)}, {s(SWS, 4)}, {s(S_XR + rr)} offen sc1" for rr in range(cfg.nrep)]
        side = ["\n".join(side)] + prefetch_parts(S_T3)
        if not cfg.solo:
            side[-1] += f"\nbuffer_load_dword {v(PQV)}, {v(PQA)}, {s(SWS, 4)}, 0 offen sc1"

        def aside(pos=None):
            if side:
                A(side.pop(0))
        score_x(ST + 48, True, lambda ks: aside() if ks in (0, 1, 3) else None)
        for p in range(2):
            A(f"{SM} {v(SMM, 4)}, {v(KC + 4 * p, 4)}, {v(ST + 48 + 8 * p, 8)}, {v(IDX)}")
        A(f"s_and_b32 {s(S_T0)}, {s(S_STEP)}, {63 if cfg.solo else 7}")
        A(f"s_lshl_b32 {s(S_T0)}, {s(S_T0)}, 18")
        A(f"s_add_u32 {s(S_OT)}, {s(S_T0)}, {L.OTOK}")
        aside()
        A.nop(2)
        max_x()
        softmax(lambda pos: aside() if pos else None)
        assert not side
        pv(4)
        scale(16)
        for i in range(8):
            A(f"v_cvt_pk_bf16_f32 {v(OA + i)}, {v(OA + 2 * i)}, {v(OA + 2 * i + 1)}")
        A(f"buffer_store_dwordx4 {v(OA, 4)}, {v(OTA)}, {s(SWS, 4)}, {s(S_OT)} offen{loc}")
        A(f"buffer_store_dwordx4 {v(OA + 4, 4)}, {v(OTB)}, {s(SWS, 4)}, {s(S_OT)} offen{loc}")
        event(A, cfg, 1, True)
        stamp(A, cfg, 4, 2)
        if cfg.trace:
            A(f"s_memtime {s(S_STAMP + 10, 2)}")
        flush_stamps(A, cfg, 8, T2, T3, 2)
        A(f"s_add_u32 {s(S_STEP)}, {s(S_STEP)}, 1")
        A(f"s_cmp_lt_u32 {s(S_STEP)}, {cfg.nsteps}")
        A(f"s_cbranch_scc1 {top}")
        gate(A, cfg.gate2)
        A("s_waitcnt vmcnt(0)")
        A(f"buffer_store_dword {v(TAGV)}, {v(POW)}, {s(SWS, 4)}, 0 offen{loc}")
        gate(A, cfg.gate3)
        report(A, cfg, (1,))
        A(f"s_branch {end}")
        A.label(twice)
        A(f"s_add_u32 {s(S_NEED)}, {s(S_NEED)}, 1")
        if not cfg.solo:
            block_on(A, ldpq, tstpq, end)
        prefetch()
        A(f"s_branch {once}")
        if not cfg.solo:
            A.label(pqw)
            block_on(A, ldpq, tstpq, end)
            A(f"s_branch {pqok}")
        slow1()
        A.label(kre)
        count(A, cfg, 0)
        ldk(2)
        ldk(3)

        def usekm(j, rest):
            p = j & 1
            if rest and (j ^ 2) not in rest:
                return
            A(f"{SM} {v(SMM, 4)}, {v(AP + 4 * j, 4)}, {v(QOP + 8 * p, 8)}, {v(IDX)}")
            for i in range(4):
                A(f"v_mov_b32 {v(KC + 4 * p + i)}, {v(AP + 4 * j + i)}")
        done, slow2 = fsm_poll(A, 4, ldk, chk4, usekm, end, lambda got: {x & 1 for x in got} == {0, 1})
        A.label(done)
        A(f"s_branch {kok}")
        slow2()
        A.label(vre)
        count(A, cfg, 1)
        ldv()
        spend(A, end)
        A("s_waitcnt vmcnt(0)")
        check(A, VM, 4, CHK)
        A(f"s_cbranch_vccnz {vre}")
        A(f"s_branch {vok}")

    body("")
    A.label(slow_lbl)
    body(" sc1")


def chain_kernel(A, cfg, name="chain_kernel"):
    end, kvo, other, noprobe = A.new("end"), A.new("kvo_role"), A.new("other"), A.new("np")
    A.kernel_begin(name)
    role_prologue(A, end)
    A(f"s_cmp_ge_u32 {s(S_GRP)}, 4")
    A(f"s_cbranch_scc1 {other}")
    A(f"s_cmp_ge_u32 {s(S_TK)}, 24")
    A(f"s_cbranch_scc1 {other}")
    A(f"s_cmp_ge_u32 {s(S_TK)}, 8")
    A(f"s_cbranch_scc1 {kvo}")
    q_role(A, cfg, end)
    A.label(other)
    A(f"s_mov_b32 {s(S_T2)}, 1")
    arrive(A, S_T2)
    A.label(end)
    A("s_endpgm")
    A.label(kvo)
    kvo_role(A, cfg, end)
```

```python
from asmlib import *
import layout as L
from chain import (WFLAG, SWS, SW, SDBG, S_WAVE, S_GRP, S_TK, S_IRR, S_STEP, S_T0, S_T1, S_T2, S_T3, MF,
                   arrive, await_start, probe, progress_addr, words_addr, line_addr, lines_addr,
                   block_on, spend, check, gate, event, report)
from small import xor_reduce, mod_addr, mod_pass, mod_finish

SW2, SW3 = 84, 88
S_CU, S_SRC, S_RDY, S_FA, S_NEED, S_OUT, S_M0, S_NXT = 44, 45, 46, 47, 48, 49, 50, 54
S_SRC5, S_RDY5, S_NEED5, S_OUT5, S_NXT5, S_K = 55, 56, 57, 58, 59, 26
S_P0, S_P1, S_P2 = 60, 61, 62
OOB = 0x70000000
LANE = 9
VD, VR, VFA, VF, VPA, VP, VO = 0, 1, 2, 3, 4, 5, 6
FR, ACC, TMP = 16, 48, 80
S_SIG = 63


def ptr(A, reg, key):
    A(f"s_load_dwordx2 {s(reg, 2)}, s[0:1], {KA[key]}")


def mark(A, cfg, i, reg=15):
    if cfg.marks != 1 and not (cfg.marks == 4 and i in (0, 3)):
        return
    skip = A.new("mk")
    if not isinstance(i, int):
        A(f"s_and_b32 s99, {i}, 63")
        A("s_lshr_b64 s[98:99], s[94:95], s99")
        A("s_and_b32 s98, s98, 1")
        A(f"s_cbranch_scc0 {skip}")
    elif i == 0:
        A("s_mov_b32 s94, 0x0202021f")
        A("s_mov_b32 s95, 0x82020202")
    A("s_memrealtime s[96:97]")
    A(f"s_lshl_b32 s98, {s(S_GRP)}, 5")
    A(f"s_add_u32 s98, s98, {s(S_TK)}")
    A("s_lshl_b32 s98, s98, 2")
    A(f"s_add_u32 s98, s98, {s(S_WAVE)}")
    A("s_lshl_b32 s98, s98, 9")
    if isinstance(i, int):
        A(f"s_add_u32 s98, s98, {L.TRACE + 2 * L.MB + 4 * i}")
    else:
        A(f"s_lshl_b32 s99, {i}, 2")
        A("s_add_u32 s98, s98, s99")
        A(f"s_add_u32 s98, s98, {L.TRACE + 2 * L.MB + 64}")
    A("s_waitcnt lgkmcnt(0)")
    A(f"v_mov_b32 {v(reg)}, s96")
    A("s_mov_b64 exec, 1")
    A(f"buffer_store_dword {v(reg)}, off, {s(SWS, 4)}, s98")
    A("s_mov_b64 exec, -1")
    A.label(skip)


def lap(A, cfg, i):
    if cfg.marks != 2:
        return
    A("s_memtime s[96:97]")
    A("s_waitcnt lgkmcnt(0)")
    A("s_sub_u32 s99, s96, s98")
    A(f"s_add_u32 s{70 + i}, s{70 + i}, s99")
    A("s_mov_b32 s98, s96")


def span(A, cfg):
    if cfg.marks != 5:
        return
    for k, st in enumerate((16, 48)):
        skip = A.new("sp")
        A(f"s_cmp_lg_u32 {s(S_STEP)}, {st}")
        A(f"s_cbranch_scc1 {skip}")
        A("s_memtime s[96:97]\ns_memrealtime s[98:99]\ns_waitcnt lgkmcnt(0)")
        A(f"s_mov_b32 s{70 + 2 * k}, s96\ns_mov_b32 s{71 + 2 * k}, s98")
        A.label(skip)


def lap_init(A, cfg):
    if cfg.marks in (2, 5):
        for i in range(8):
            A(f"s_mov_b32 s{70 + i}, 0")


def lap_dump(A, cfg):
    if cfg.marks not in (2, 5):
        return
    for i in range(8):
        A(f"v_writelane_b32 v15, s{70 + i}, {i}")
    A(f"s_lshl_b32 s98, {s(S_GRP)}, 5")
    A(f"s_add_u32 s98, s98, {s(S_TK)}")
    A("s_lshl_b32 s98, s98, 2")
    A(f"s_add_u32 s98, s98, {s(S_WAVE)}")
    A("s_lshl_b32 s98, s98, 5")
    A(f"s_add_u32 s98, s98, {L.TRACE + 3 * L.MB}")
    A(f"v_lshlrev_b32 v14, 2, {v(LANE)}")
    A("s_mov_b64 exec, 0xff")
    A(f"buffer_store_dword v15, v14, {s(SWS, 4)}, s98 offen")
    A("s_mov_b64 exec, -1")


def tile_addr(A, dst, order, inter, sbase, extra, t0, t1):
    A(f"v_bfe_u32 {v(t0)}, {v(LANE)}, 2, 2")
    A(f"v_lshrrev_b32 {v(t1)}, 4, {v(LANE)}")
    A(f"v_lshl_add_u32 {v(t0)}, {v(t1)}, {3 if order == 'N' else 2}, {v(t0)}")
    A(f"v_lshl_add_u32 {v(t0)}, {v(t0)}, 7, {s(sbase)}")
    A(f"v_and_b32 {v(t1)}, 3, {v(LANE)}")
    A(f"v_lshl_add_u32 {v(t0)}, {v(t1)}, {4 if inter else 3}, {v(t0)}")
    A(f"v_add_u32 {v(dst)}, {extra}, {v(t0)}")


def load_w(A, panels, stride, nst, tiles, order, vg, flag="", first=None, ramp=None):
    SZ = len(panels) * 16384
    n = 4 * len(panels)
    NS = min(nst, 163840 // SZ)
    ramp = NS if ramp is None else ramp
    qstep = 512 if order == "N" else 2048
    A(f"v_lshrrev_b32 {v(vg)}, 3, {v(LANE)}")
    A(f"s_mul_i32 {s(S_T0)}, {s(S_WAVE)}, {32 * nst}")
    A(f"v_add_u32 {v(vg)}, {s(S_T0)}, {v(vg)}")
    A(f"v_mul_u32_u24 {v(vg)}, {stride}, {v(vg)}")
    A(f"v_and_b32 {v(vg + 1)}, 7, {v(LANE)}")
    A(f"v_lshl_add_u32 {v(vg)}, {v(vg + 1)}, 4, {v(vg)}")
    A(f"s_lshl_b32 {s(S_T0)}, {s(S_WAVE)}, 12")

    def issue(t):
        for p, (srd, off) in enumerate(panels):
            for j in range(4):
                A(f"s_add_u32 m0, {s(S_T0)}, {(t % NS) * SZ + p * 16384 + j * 1024}")
                A(f"s_add_u32 {s(S_T1)}, {s(off)}, {(32 * t + 8 * j) * stride}")
                A(f"buffer_load_dwordx4 {v(vg)}, {s(srd, 4)}, {s(S_T1)} offen{flag} lds")
    A("s_barrier")
    for t in range(ramp):
        issue(t)
    if ramp < NS:
        A(f"s_waitcnt vmcnt({n * (ramp - 1)})")
        for t in range(ramp, NS):
            issue(t)
    for t in range(nst):
        A(f"s_waitcnt vmcnt({n * (min(t + NS, nst) - t - 1)})")
        A("s_barrier")
        if t == 0 and first:
            first()
        for reg, dst in tiles:
            for k in range(4):
                for q in range(2):
                    A(f"ds_read_b64_tr_b16 {r(dst + (nst * k + t) * 4 + 2 * q, 2)}, {v(reg)} offset:{k * 4096 + q * qstep}")
        for reg, dst in tiles:
            A(f"v_add_u32 {v(reg)}, {SZ if t % NS < NS - 1 else -(NS - 1) * SZ}, {v(reg)}")
        A("s_waitcnt lgkmcnt(0)")
        A("s_barrier")
        if t + NS < nst:
            issue(t + NS)


def load_w_panels(A, panels, stride, order, vg, flag=""):
    NS, SZ = 5, 32768
    qstep = 512 if order == "N" else 2048
    A(f"v_lshrrev_b32 {v(vg)}, 3, {v(LANE)}")
    A(f"s_lshl_b32 {s(S_T0)}, {s(S_WAVE)}, 8")
    A(f"v_add_u32 {v(vg)}, {s(S_T0)}, {v(vg)}")
    A(f"v_mul_u32_u24 {v(vg)}, {stride}, {v(vg)}")
    A(f"v_and_b32 {v(vg + 1)}, 7, {v(LANE)}")
    A(f"v_lshl_add_u32 {v(vg)}, {v(vg + 1)}, 4, {v(vg)}")
    A(f"s_lshl_b32 {s(S_T0)}, {s(S_WAVE)}, 13")
    stages = [(p, t) for p in panels for t in range(4)]
    regs = sorted({reg for p in panels for reg, _ in p[3]})

    def issue(i):
        (srd, off, _, _), t = stages[i]
        for j in range(8):
            A(f"s_add_u32 m0, {s(S_T0)}, {(i % NS) * SZ + j * 1024}")
            A(f"s_add_u32 {s(S_T1)}, {s(off)}, {(64 * t + 8 * j) * stride}")
            A(f"buffer_load_dwordx4 {v(vg)}, {s(srd, 4)}, {s(S_T1)} offen{flag} lds")
    A("s_barrier")
    for i in range(NS):
        issue(i)
    n = len(stages)
    for i, ((_, _, pair, tiles), t) in enumerate(stages):
        A(f"s_waitcnt vmcnt({8 * (min(i + NS, n) - i - 1)})")
        A("s_barrier")
        skip = A.new("lw")
        if pair is not None:
            A(f"s_bitcmp{1 - pair}_b32 {s(S_WAVE)}, 1")
            A(f"s_cbranch_scc1 {skip}")
        for reg, dst in tiles:
            for k in range(8):
                for q in range(2):
                    A(f"ds_read_b64_tr_b16 {r(dst + (8 * (k >> 1) + 2 * t + (k & 1)) * 4 + 2 * q, 2)}, {v(reg)} offset:{k * 4096 + q * qstep}")
        A.label(skip)
        for reg in regs:
            A(f"v_add_u32 {v(reg)}, {SZ if i % NS < NS - 1 else -(NS - 1) * SZ}, {v(reg)}")
        A("s_waitcnt lgkmcnt(0)")
        A("s_barrier")
        if i + NS < n:
            issue(i + NS)


def dma_list(ngroups, m0base, m0add, src, vd, js=(0, 1, 2, 3)):
    ops = []
    for gi in range(ngroups):
        ops.append(f"s_add_u32 m0, {s(m0base)}, {m0add + gi * 16384}")
        ops.append(f"s_add_u32 {s(S_T1)}, {s(src)}, {gi * 16384}")
        for j in js:
            ops.append(f"buffer_load_dwordx4 {v(vd)}, {s(SWS, 4)}, {s(S_T1)} offen offset:{1024 * j} sc1 lds")
    return ops


def reader(vr, nblk, tmajor):
    def rd(i):
        T, ks = (i // (nblk // 2), i % (nblk // 2)) if tmajor else (i & 1, i >> 1)
        return f"ds_read_b128 {v(FR + 4 * (i % 8), 4)}, {v(vr)} offset:{2048 * ks + 1024 * T}"
    return rd


def first_reads(A, rd):
    for b in range(7):
        A(rd(b))


def fits(ops):
    t = 4
    for op in ops:
        if op.startswith("s_"):
            t += 4
        else:
            t = max(t, 8) + (8 if op.startswith(("v_exp", "v_rcp", "buffer_store_dwordx4")) else 4)
    return t <= 16


def job(A, nblk, rd, tmajor, tiles, fillers, lo=0, hi=None, nxt=None, syncs={}):
    hi = nblk if hi is None else hi
    mf, pre, nt = [], {}, len(tiles)
    for b in range(lo, hi):
        T, ks = (b // (nblk // 2), b % (nblk // 2)) if tmajor else (b & 1, b >> 1)
        if b % 2 == 0 and nxt is None:
            pre[len(mf)] = f"s_waitcnt lgkmcnt({min(5, nblk - 2 - b)})"
        for acc, w, swap in tiles:
            x, y = r(w(ks), 4), v(FR + 4 * (b % 8), 4)
            if swap:
                x, y = y, x
            mf.append(f"{MF} {v(acc(T), 4)}, {x}, {y}, {v(acc(T), 4) if ks else 0}")
    n = len(mf)
    at = [[] for _ in range(n)]
    for i, w in pre.items():
        if i:
            at[i - 1].append(w)
    for b in range(lo, min(hi, nblk - 7)):
        at[(b - lo) * nt] += syncs.get(b + 7, []) + [rd(b + 7)]
    if nxt:
        assert lo == nblk - 5 and hi == nblk
        for k, j in ((0, 0), (0, 1), (1, 2), (nt, 3), (2 * nt, 4), (3 * nt, 5), (4 * nt, 6)):
            at[k].append(nxt(j))
    k = 0
    for start, step, ops in fillers:
        k = max(k, start) if start >= 0 else -start
        for op in ops:
            if op.startswith("END"):
                assert k < int(op[4:]), "sequence ends too late"
                continue
            if op.startswith("GAP"):
                k += int(op[4:])
                continue
            while True:
                assert k < n, "fillers do not fit"
                front = op.startswith("s_") and all(x.startswith("ds_read") for x in at[k])
                cand = [op] + at[k] if front else at[k] + [op]
                if fits(cand):
                    at[k] = cand
                    break
                k += 1
            if op.startswith("buffer"):
                k += step
    if 0 in pre:
        A(pre[0])
    scc = None
    for i in range(n):
        A(mf[i])
        for op in at[i]:
            if op.startswith("s_cselect"):
                assert scc.startswith("s_cmp"), "SCC overwritten"
            elif op.startswith("s_") and not op.startswith(("s_waitcnt", "s_mov", "s_nop", "s_mul", "s_barrier")):
                scc = op
            A(op)


def tag(ops, name):
    return [op + f" ;@{name}" if op.startswith("buffer") else op for op in ops]


def resolve(A, first):
    body = A.lines[first:]
    out = list(body)
    for i, ln in enumerate(body):
        if "vmcnt(@" in ln:
            names = ln[ln.index("(@") + 2:ln.index(")")].split(",")
            n, k = 0, i
            while True:
                k -= 1
                x = body[k % len(body)]
                if x.startswith("buffer"):
                    if any(x.endswith(";@" + t) for t in names):
                        break
                    n += 1
            out[i] = ln[:ln.index("(@")] + f"({n}" + ln[ln.index(")"):]
    A.lines[first:] = [x.split(" ;@")[0] for x in out]


def split_loads(ops, counts):
    idx = [i for i, op in enumerate(ops) if op.startswith("buffer")]
    cuts, acc = [0], 0
    for c in counts:
        acc += c
        cuts.append(idx[acc - 1] + 1 if acc else 0)
    cuts.append(len(ops))
    return [ops[a:b] for a, b in zip(cuts, cuts[1:])]


def lines(f):
    B = Asm()
    f(B)
    return B.lines


def decide(A, need, vf, rdy, src, nxt, spaced=False):
    A(f"v_cmp_gt_u32 vcc, {s(need)}, {v(vf)}")
    if spaced:
        A("GAP 2")
    A("s_cmp_eq_u64 vcc, 0")
    A(f"s_cselect_b32 {s(rdy)}, 1, 0")
    A(f"s_cselect_b32 {s(src)}, {s(nxt)}, {hex(OOB)}")


def common_regs(A, share):
    A(f"s_mul_i32 {s(S_M0)}, {s(S_WAVE)}, {share}")
    A(f"v_lshlrev_b32 {v(VR)}, 4, {v(LANE)}")
    A(f"v_add_u32 {v(VD)}, {s(S_M0)}, {v(VR)}")


def start_role(A, base, extra=None):
    line_addr(A, VPA, 0, base, S_CU, TMP)
    A(f"v_mov_b32 {v(VP)}, 0")
    A(f"buffer_store_dword {v(VP)}, {v(VPA)}, {s(SWS, 4)}, 0 offen sc1")
    A(f"s_mov_b32 {s(S_T2)}, 1")
    if extra:
        extra()
    arrive(A, S_T2, extra is None, join=False)


def stream1(A, cfg, tiles, epi, flag_for, advance_src, outstep, abort, sig, limit, landed=None):
    wait, entry, out, skip, join = (A.new(x) for x in ("sw", "se", "so", "sk", "sj"))
    ldf = lambda B=A: B(f"buffer_load_dword {v(VF)}, {v(VFA)}, {s(SWS, 4)}, {s(S_FA)} offen sc1")
    tst = lambda: A(f"v_cmp_gt_u32 vcc, {s(S_NEED)}, {v(VF)}")
    rd = reader(VR, 64, False)
    A(f"s_mov_b32 {s(S_STEP)}, 0")
    lap_init(A, cfg)
    lap(A, cfg, 7)
    flag_for(A, 0)
    A.label(wait)
    block_on(A, ldf, tst, abort, 1)
    lap(A, cfg, 5)
    for op in dma_list(4, S_M0, 0, S_NXT, VD):
        A(op)
    ldf()
    A.label(entry)
    A("s_waitcnt vmcnt(13)")
    A("s_barrier")
    lap(A, cfg, 6)
    first_reads(A, rd)
    advance_src()
    A(f"s_xor_b32 {s(S_M0)}, {s(S_M0)}, 0x10000")
    A(f"s_add_u32 {s(S_OUT)}, {s(S_OUT)}, {outstep}")
    A(f"s_add_u32 {s(S_STEP)}, {s(S_STEP)}, 1")
    flag_for(A, 0)
    nt = len(tiles)
    lap(A, cfg, 2)
    job(A, 64, rd, False, tiles, [(64 * nt - cfg.s1_flag, 1, lines(ldf))],
        syncs={16 * c: [f"s_waitcnt vmcnt({13 - 4 * c})", "s_barrier"] for c in (1, 2, 3)})
    lap(A, cfg, 3)
    A(f"v_xor_b32 {v(VR)}, 0x10000, {v(VR)}")
    A(f"v_mov_b32 {v(VP)}, {s(S_STEP)}")
    mark(A, cfg, s(S_STEP))
    A("s_waitcnt vmcnt(0)")
    tst()
    if landed:
        landed()
    A.nop(4)
    epi()
    A(f"s_mov_b32 {s(S_RDY)}, 0")
    A(f"s_cbranch_vccnz {skip}")
    A(f"s_mov_b32 {s(S_RDY)}, 1")
    for op in dma_list(4, S_M0, 0, S_NXT, VD):
        A(op)
    A("s_waitcnt vmcnt(16)")
    A(f"s_branch {join}")
    A.label(skip)
    A("s_waitcnt vmcnt(0)")
    A.label(join)
    A("s_barrier")
    sig()
    lap(A, cfg, 4)
    A(f"s_cmp_eq_u32 {s(S_STEP)}, {limit}")
    A(f"s_cbranch_scc1 {out}")
    A(f"s_cmp_lg_u32 {s(S_RDY)}, 0")
    A(f"s_cbranch_scc1 {entry}")
    A(f"s_branch {wait}")
    A.label(out)


def pack8(A, dst, a, b):
    for i in range(2):
        A(f"v_cvt_pk_bf16_f32 {v(dst + i)}, {v(a + 2 * i)}, {v(a + 2 * i + 1)}")
    for i in range(2):
        A(f"v_cvt_pk_bf16_f32 {v(dst + 2 + i)}, {v(b + 2 * i)}, {v(b + 2 * i + 1)}")


def await_helpers(A, n, abort, t=TMP):
    A(f"v_lshlrev_b32 {v(t)}, 7, {v(LANE)}")
    A(f"s_mov_b32 {s(S_T0)}, {L.P1}")
    block_on(A, lambda: A(f"buffer_load_dword {v(t + 1)}, {v(t)}, {s(SWS, 4)}, {s(S_T0)} offen sc1"),
             lambda: A(f"v_cmp_gt_u32 vcc, {n}, {v(t + 1)}"), abort, 2)


def octet_addrs(A, s_oct, s_cg):
    A(f"v_lshrrev_b32 {v(TMP)}, 3, {v(LANE)}")
    A(f"v_and_b32 {v(TMP + 1)}, 7, {v(LANE)}")
    A(f"s_lshr_b32 {s(S_T0)}, {s(s_oct)}, 1")
    A(f"s_lshl_b32 {s(S_T0)}, {s(S_T0)}, 10")
    A(f"s_and_b32 {s(S_T1)}, {s(s_oct)}, 1")
    A(f"s_lshl_b32 {s(S_T1)}, {s(S_T1)}, 7")
    A(f"s_add_u32 {s(S_T0)}, {s(S_T0)}, {s(S_T1)}")
    A(f"s_lshl_b32 {s(S_T1)}, {s(s_cg)}, 12")
    A(f"s_add_u32 {s(S_T0)}, {s(S_T0)}, {s(S_T1)}")
    A(f"v_lshl_add_u32 {v(VO)}, {v(TMP + 1)}, 4, {s(S_T0)}")
    A(f"v_and_b32 {v(TMP + 2)}, 3, {v(TMP)}")
    A(f"v_lshl_add_u32 {v(VO)}, {v(TMP + 2)}, 8, {v(VO)}")
    A(f"v_lshrrev_b32 {v(TMP + 2)}, 2, {v(TMP)}")
    A(f"v_lshl_add_u32 {v(VO)}, {v(TMP + 2)}, 11, {v(VO)}")
    A(f"s_lshl_b32 {s(S_T0)}, {s(s_oct)}, 14")
    A(f"s_lshl_b32 {s(S_T1)}, {s(s_cg)}, 7")
    A(f"s_add_u32 {s(S_T0)}, {s(S_T0)}, {s(S_T1)}")
    A(f"v_lshl_add_u32 {v(VO + 1)}, {v(TMP + 1)}, 11, {s(S_T0)}")
    A(f"v_lshl_add_u32 {v(VO + 1)}, {v(TMP)}, 4, {v(VO + 1)}")
    A(f"s_lshl_b32 {s(S_T0)}, {s(s_cg)}, 8")
    A(f"v_lshl_add_u32 {v(VO + 2)}, {v(TMP)}, 5, {s(S_T0)}")


def unit_consts(A):
    A(f"s_mov_b32 {s(S_P0)}, 0x00003f80")
    A(f"s_mov_b32 {s(S_P1)}, 0x3f800000")


def sum_bf(A, dst, srcs, n):
    for k, x in enumerate(srcs):
        for i in range(2 * n):
            A(f"v_dot2_f32_bf16 {v(dst + i)}, {v(x + (i >> 1))}, {s(S_P0 + (i & 1))}, {v(dst + i) if k else 0}")


def unpack(A, dst, src, n):
    for i in range(n):
        A(f"v_lshlrev_b32 {v(dst + 2 * i)}, 16, {v(src + i)}")
        A(f"v_and_b32 {v(dst + 2 * i + 1)}, 0xffff0000, {v(src + i)}")


def qkv_role(A, cfg, end):
    A.c("projection of token rows onto half a head of q, k and v; afterwards the final sums")
    A(f"v_mov_b32 {v(LANE)}, v1")
    A(f"s_sub_u32 {s(S_CU)}, {s(S_GRP)}, 4")
    if cfg.qmap:
        A(f"s_lshl_b32 {s(S_CU)}, {s(S_CU)}, 1")
        A(f"s_and_b32 {s(S_T0)}, {s(S_TK)}, 1")
        A(f"s_add_u32 {s(S_CU)}, {s(S_CU)}, {s(S_T0)}")
        A(f"s_lshr_b32 {s(S_T0)}, {s(S_TK)}, 1")
        A(f"s_lshl_b32 {s(S_T0)}, {s(S_T0)}, 3")
        A(f"s_add_u32 {s(S_CU)}, {s(S_CU)}, {s(S_T0)}")
    else:
        A(f"s_lshl_b32 {s(S_CU)}, {s(S_CU)}, 4")
        A(f"s_add_u32 {s(S_CU)}, {s(S_CU)}, {s(S_TK)}")
    start_role(A, L.PQ)
    A.srd(SW, 18, SIZE["Wq"])
    A.srd(SW2, 20, SIZE["Wk"])
    A.srd(SW3, 22, SIZE["Wv"])
    A(f"s_lshl_b32 {s(S_P0)}, {s(S_CU)}, 7")
    A(f"s_xor_b32 {s(S_P1)}, {s(S_P0)}, {4 << 7}")
    A(f"s_xor_b32 {s(S_P2)}, {s(S_P0)}, {2 << 7}")
    if cfg.pmajor:
        A(f"s_and_b32 {s(S_T2)}, {s(S_WAVE)}, 1")
        A(f"s_lshl_b32 {s(S_T2)}, {s(S_T2)}, 6")
        for T in range(2):
            tile_addr(A, TMP + T, "N", False, S_T2, 32 * T, TMP + 4, TMP + 5)
        A(f"s_lshl_b32 {s(S_T2)}, {s(S_WAVE)}, 5")
        tile_addr(A, TMP + 2, "N", False, S_T2, 0, TMP + 4, TMP + 5)
        pair = [(TMP, 256), (TMP + 1, 384)]
        load_w_panels(A, [(SW3, S_P2, None, [(TMP + 2, 128)]), (SW2, S_P1, 1, pair), (SW, S_P0, 0, pair)], 8192, "N",
                      TMP + 4, WFLAG[cfg.whi])
    else:
        A(f"s_lshr_b32 {s(S_T2)}, {s(S_WAVE)}, 1")
        A(f"s_lshl_b32 {s(S_T2)}, {s(S_T2)}, 14")
        A(f"s_and_b32 {s(S_T3)}, {s(S_WAVE)}, 1")
        A(f"s_lshl_b32 {s(S_T3)}, {s(S_T3)}, 6")
        A(f"s_add_u32 {s(S_T2)}, {s(S_T2)}, {s(S_T3)}")
        for T in range(2):
            tile_addr(A, TMP + T, "N", False, S_T2, 32 * T, TMP + 4, TMP + 5)
        A(f"s_lshl_b32 {s(S_T2)}, {s(S_WAVE)}, 5")
        tile_addr(A, TMP + 2, "N", False, S_T2, 32768, TMP + 4, TMP + 5)
        load_w(A, [(SW, S_P0), (SW2, S_P1), (SW3, S_P2)], 8192, 8,
               [(TMP, 256), (TMP + 1, 384), (TMP + 2, 128)], "N", TMP + 4, WFLAG[cfg.whi], None, cfg.ramp_hi)
    mark(A, cfg, 1)
    event(A, cfg, 4)
    await_start(A, end, hi_only=True)
    common_regs(A, 4096)
    lines_addr(A, VFA, LANE, 2)
    A(f"s_and_b32 {s(S_T2)}, {s(S_CU)}, 1")
    A(f"s_lshr_b32 {s(S_T0)}, {s(S_WAVE)}, 1")
    A(f"s_lshl_b32 {s(S_T0)}, {s(S_T0)}, 3")
    A(f"s_and_b32 {s(S_T1)}, {s(S_WAVE)}, 1")
    A(f"s_add_u32 {s(S_T0)}, {s(S_T0)}, {s(S_T1)}")
    A(f"s_lshl_b32 {s(S_T1)}, {s(S_T2)}, 1")
    A(f"s_add_u32 {s(S_T0)}, {s(S_T0)}, {s(S_T1)}")
    A(f"s_lshl_b32 {s(S_T0)}, {s(S_T0)}, 10")
    A(f"s_lshr_b32 {s(S_T3)}, {s(S_CU)}, 1")
    A(f"s_and_b32 {s(S_T1)}, {s(S_WAVE)}, 2")
    A(f"s_xor_b32 {s(S_T1)}, {s(S_T1)}, {s(S_T3)}")
    A(f"s_mul_i32 {s(S_T1)}, {s(S_T1)}, 24576")
    A(f"s_add_u32 {s(S_T0)}, {s(S_T0)}, {s(S_T1)}")
    A(f"v_add_u32 {v(VO)}, {s(S_T0)}, {v(VR)}")
    A(f"v_add_u32 {v(VO + 1)}, 4096, {v(VO)}")
    A(f"s_lshl_b32 {s(S_T0)}, {s(S_T2)}, 2")
    A(f"s_add_u32 {s(S_T0)}, {s(S_T0)}, {s(S_WAVE)}")
    A(f"s_add_u32 {s(S_T0)}, {s(S_T0)}, 16")
    A(f"s_lshl_b32 {s(S_T0)}, {s(S_T0)}, 10")
    A(f"s_xor_b32 {s(S_T1)}, {s(S_T3)}, 1")
    A(f"s_mul_i32 {s(S_T1)}, {s(S_T1)}, 24576")
    A(f"s_add_u32 {s(S_T0)}, {s(S_T0)}, {s(S_T1)}")
    A(f"v_add_u32 {v(VO + 2)}, {s(S_T0)}, {v(VR)}")
    A(f"s_mov_b32 {s(S_OUT)}, {L.QKV - 32 * 24576}")
    A(f"s_mov_b32 {s(S_NXT)}, {L.H1}")

    def epi():
        for i in range(3):
            pack8(A, TMP + 4 * i, ACC + 8 * i, ACC + 8 * i + 4)
            A(f"buffer_store_dwordx4 {v(TMP + 4 * i, 4)}, {v(VO + i)}, {s(SWS, 4)}, {s(S_OUT)} offen sc1")

    def flag_for(B, d):
        B(f"s_add_u32 {s(S_NEED)}, {s(S_STEP)}, {d}")
        B(f"s_and_b32 {s(S_FA)}, {s(S_NEED)}, 31")
        B(f"s_lshl_b32 {s(S_FA)}, {s(S_FA)}, 8")
        B(f"s_add_u32 {s(S_FA)}, {s(S_FA)}, {L.P1}")
        B(f"s_lshr_b32 {s(S_NEED)}, {s(S_NEED)}, 5")
        B(f"s_lshl_b32 {s(S_NEED)}, 1, {s(S_NEED)}")
        B(f"s_add_u32 {s(S_NEED)}, {s(S_NEED)}, 1")
    tiles = [(lambda T: ACC + 8 * T, lambda ks: 256 + 4 * ks, False),
             (lambda T: ACC + 8 * T + 4, lambda ks: 384 + 4 * ks, False),
             (lambda T: ACC + 16 + 4 * T, lambda ks: 128 + 4 * ks, True)]
    sig = lambda B=A: B(f"buffer_store_dword {v(VP)}, {v(VPA)}, {s(SWS, 4)}, 0 offen sc1")
    A.c("continuous stream; results are stored one segment later")
    loop, more, back = A.new("ql"), A.new("qm"), A.new("qe")
    A(f"s_mov_b32 {s(S_STEP)}, 0")
    lap_init(A, cfg)
    await_helpers(A, 2, end)
    for js in ((0, 2), (1, 3)):
        for op in dma_list(4, S_M0, 0, S_NXT, VD, js):
            A(op)
    A("s_waitcnt vmcnt(8)")
    A("s_barrier")
    rd = reader(VR, 64, True)
    first_reads(A, rd)
    A(f"s_mov_b32 {s(S_SRC5)}, {hex(OOB)}")
    A(f"s_mov_b32 {s(S_NEED)}, 28")
    cvt = lambda d, x: f"v_cvt_pk_bf16_f32 {v(d)}, {v(x)}, {v(x + 1)}"
    half = lambda T: [cvt(TMP + 4 * T + i, ACC + 8 * T + 2 * i) for i in range(4)] + \
        [cvt(TMP + 8 + 2 * T + i, ACC + 16 + 4 * T + 2 * i) for i in range(2)]
    stores = [f"buffer_store_dwordx4 {v(TMP + 4 * i, 4)}, {v(VO + i)}, {s(SWS, 4)}, {s(S_SRC5)} offen sc1" for i in range(3)]
    A.label(loop)
    head = [f"s_add_u32 {s(S_NXT)}, {s(S_NXT)}, 65536", f"s_xor_b32 {s(S_M0)}, {s(S_M0)}, 0x10000",
            f"s_cmp_lt_u32 {s(S_STEP)}, 63", f"s_cselect_b32 {s(S_SRC)}, {s(S_NXT)}, {hex(OOB)}"]
    first = len(A.lines)
    q = cfg.q_step
    t0 = split_loads(tag(dma_list(4, S_M0, 0, S_SRC, VD, (0, 2)), "t0"), [(75 - 26) // q + 1])
    t1 = split_loads(tag(dma_list(4, S_M0, 0, S_SRC, VD, (1, 3)), "t1"), [7])
    job(A, 64, rd, True, tiles,
        [(0, 1, head), (8, cfg.st_step, half(1) + tag(stores, "st") + [f"v_mov_b32 {v(VP)}, {s(S_STEP)}"]),
         (26, q, t0[0]), (-76, q // 2, lines(sig)), (0, q, t0[1] + t1[0]), (-105, 1, half(0)),
         (0, 1, [f"s_add_u32 {s(S_OUT)}, {s(S_OUT)}, {32 * 24576}", f"s_mov_b32 {s(S_SRC5)}, {s(S_OUT)}",
                 f"s_add_u32 {s(S_STEP)}, {s(S_STEP)}, 1"])], 0, 59,
        syncs={32: ["s_waitcnt vmcnt(@st,t1)", "s_barrier"]})
    A(f"v_xor_b32 {v(VR)}, 0x10000, {v(VR)}")
    event(A, cfg, 2, True)
    span(A, cfg)
    A("s_waitcnt vmcnt(@t0) lgkmcnt(0)")
    A("s_barrier")
    job(A, 64, rd, True, tiles, [(7, 1, t1[1]), (11, 1, [f"s_cmp_lt_u32 {s(S_STEP)}, {s(S_NEED)}"])], 59, 64, rd)
    resolve(A, first)
    if cfg.marks == 1:
        mark(A, cfg, s(S_STEP))
        A(f"s_cmp_lt_u32 {s(S_STEP)}, {s(S_NEED)}")
    A(f"s_cbranch_scc1 {loop}")
    A(f"s_cmp_eq_u32 {s(S_STEP)}, 64")
    A(f"s_cbranch_scc1 {back}")
    A.c("the second half of the rows must be normalised by now")
    await_helpers(A, 3, end, 14)
    A(f"s_mov_b32 {s(S_NEED)}, 64")
    A(f"s_branch {loop}")
    A.label(back)
    A.nop(8)
    for op in half(1) + stores:
        A(op)
    A(f"v_mov_b32 {v(VP)}, 64")
    A("s_waitcnt vmcnt(0) lgkmcnt(0)")
    A("s_barrier")
    sig()

    lap_dump(A, cfg)
    A.c("out = x1 + gb * (sum of the seven partial down projections)")
    GB, SUMS, X8, BUF = 16, 24, 32, 64
    ptr(A, 16, "out")
    A(f"s_and_b32 {s(S_T2)}, {s(S_CU)}, 3")
    A(f"s_lshr_b32 {s(S_T3)}, {s(S_CU)}, 2")
    octet_addrs(A, S_T2, S_T3)
    lines_addr(A, VFA, LANE, 7, 10)
    A(f"s_lshr_b32 {s(S_FA)}, {s(S_CU)}, 3")
    A(f"s_lshl_b32 {s(S_FA)}, {s(S_FA)}, 7")
    A(f"s_add_u32 {s(S_FA)}, {s(S_FA)}, {L.P45 + 4}")
    unit_consts(A)
    A("s_waitcnt lgkmcnt(0)")
    A.srd(SW, 16, SIZE["out"])
    await_helpers(A, 4, end)
    A(f"s_mov_b32 {s(S_T0)}, {L.MOD + 4 * 5120}")
    for i in range(2):
        A(f"buffer_load_dwordx4 {v(GB + 4 * i, 4)}, {v(VO + 2)}, {s(SWS, 4)}, {s(S_T0)} offen offset:{16 * i} sc1")
    A(f"s_mov_b32 {s(S_STEP)}, {s(S_WAVE)}")
    for nb, limit in ((4, 48), (1, 64)):
        loop = A.new("fin")
        A.label(loop)
        A(f"s_add_u32 {s(S_NEED)}, {s(S_STEP)}, {4 * (nb - 1) + 1}")
        block_on(A, lambda: A(f"buffer_load_dword {v(VF)}, {v(VFA)}, {s(SWS, 4)}, {s(S_FA)} offen sc1"),
                 lambda: A(f"v_cmp_gt_u32 vcc, {s(S_NEED)}, {v(VF)}"), end, 32 if nb == 4 else cfg.fin_sleep)
        A(f"s_lshl_b32 {s(S_OUT)}, {s(S_STEP)}, 16")
        for b in range(nb):
            for k in range(8):
                base = L.X1 if k == 7 else L.PART5 + k * 4 * L.MB
                A(f"s_add_u32 {s(S_T1)}, {s(S_OUT)}, {base + b * 4 * 65536}")
                A(f"buffer_load_dwordx4 {v(BUF + 32 * b + 4 * k, 4)}, {v(VO)}, {s(SWS, 4)}, {s(S_T1)} offen sc1")
        for b in range(nb):
            A(f"s_waitcnt vmcnt({8 * (nb - 1 - b) + b})")
            sum_bf(A, SUMS, [BUF + 32 * b + 4 * k for k in range(7)], 4)
            unpack(A, X8, BUF + 32 * b + 28, 4)
            for i in range(4):
                A(f"v_pk_fma_f32 {v(X8 + 2 * i, 2)}, {v(SUMS + 2 * i, 2)}, {v(GB + 2 * i, 2)}, {v(X8 + 2 * i, 2)}")
            pack8(A, 40 + 4 * b, X8, X8 + 4)
            A(f"s_add_u32 {s(S_T1)}, {s(S_OUT)}, {b * 4 * 65536}")
            A(f"buffer_store_dwordx4 {v(40 + 4 * b, 4)}, {v(VO + 1)}, {s(SW, 4)}, {s(S_T1)} offen{WFLAG[cfg.outflag]}")
        A(f"s_add_u32 {s(S_STEP)}, {s(S_STEP)}, {4 * nb}")
        A(f"s_cmp_lt_u32 {s(S_STEP)}, {limit}")
        A(f"s_cbranch_scc1 {loop}")
        mark(A, cfg, 2 if nb == 4 else 3)
    report(A, cfg, (2, 4))
    A("s_endpgm")


def g3_role(A, cfg, end):
    A.c("output projection of token rows: this group's heads x 128 columns")
    A(f"v_mov_b32 {v(LANE)}, v1")
    A(f"s_sub_u32 {s(S_K)}, {s(S_TK)}, 24")
    A(f"s_lshl_b32 {s(S_CU)}, {s(S_GRP)}, 3")
    A(f"s_add_u32 {s(S_CU)}, {s(S_CU)}, {s(S_K)}")

    def extra():
        skip = A.new("np")
        A(f"s_mov_b32 {s(S_T0)}, 4096")
        A(f"buffer_store_dword {v(VP)}, {v(VPA)}, {s(SWS, 4)}, {s(S_T0)} offen sc1")
        line_addr(A, VO + 1, 0, L.PB, S_CU, TMP)
        A(f"buffer_store_dword {v(VP)}, {v(VO + 1)}, {s(SWS, 4)}, 0 offen sc1")
        A(f"s_lshl_b32 {s(S_T0)}, {s(S_IRR)}, 16")
        A(f"s_or_b32 {s(S_T2)}, {s(S_T2)}, {s(S_T0)}")
    start_role(A, L.P3, extra)
    A.srd(SW, 24, SIZE["Wo"])
    A(f"s_lshl_b32 {s(S_P0)}, {s(S_GRP)}, 21")
    A(f"s_lshl_b32 {s(S_T0)}, {s(S_K)}, 8")
    A(f"s_add_u32 {s(S_P0)}, {s(S_P0)}, {s(S_T0)}")
    A(f"s_add_u32 {s(S_P1)}, {s(S_P0)}, 128")
    pair_tiles(A, "P")
    load_w(A, [(SW, S_P0), (SW, S_P1)], 2048, 8, [(TMP, 256), (TMP + 1, 384)], "P", TMP + 4)
    mark(A, cfg, 1)
    await_start(A, end, probed=True)
    common_regs(A, 4096)
    words_addr(A, VFA, LANE, 8, TMP)
    A(f"s_lshl_b32 {s(S_FA)}, {s(S_GRP)}, 10")
    A(f"s_add_u32 {s(S_FA)}, {s(S_FA)}, {L.PO}")
    A(f"v_mov_b32 {v(VO)}, {v(VR)}")
    A(f"s_lshl_b32 {s(S_T0)}, {s(S_K)}, 2")
    A(f"s_add_u32 {s(S_T0)}, {s(S_T0)}, {s(S_WAVE)}")
    A(f"s_lshl_b32 {s(S_T0)}, {s(S_T0)}, 11")
    A(f"s_lshl_b32 {s(S_OUT)}, {s(S_GRP)}, 22")
    A(f"s_add_u32 {s(S_OUT)}, {s(S_OUT)}, {s(S_T0)}")
    A(f"s_add_u32 {s(S_OUT)}, {s(S_OUT)}, {L.PART3 - 65536}")
    A(f"s_lshl_b32 {s(S_NXT)}, {s(S_GRP)}, 16")
    A(f"s_add_u32 {s(S_NXT)}, {s(S_NXT)}, {L.OTOK}")
    A.c("bring one slot of the token-output ring into this die's L2")
    A(f"s_lshl_b32 {s(S_SRC)}, {s(S_K)}, 18")
    A(f"s_add_u32 {s(S_SRC)}, {s(S_SRC)}, {s(S_NXT)}")
    for op in dma_list(4, S_M0, 0, S_SRC, VD):
        A(op)

    def epi():
        for T in range(2):
            pack8(A, TMP + 4 * T, ACC + 8 * T, ACC + 8 * T + 4)
            A(f"buffer_store_dwordx4 {v(TMP + 4 * T, 4)}, {v(VO)}, {s(SWS, 4)}, {s(S_OUT)} offen offset:{1024 * T} sc1")
    tiles = [(lambda T: ACC + 8 * T, lambda ks: 256 + 4 * ks, False),
             (lambda T: ACC + 8 * T + 4, lambda ks: 384 + 4 * ks, False)]

    def sig():
        A(f"s_and_b32 {s(S_T0)}, {s(S_STEP)}, 1")
        A(f"s_lshl_b32 {s(S_T0)}, {s(S_T0)}, 12")
        A(f"buffer_store_dword {v(VP)}, {v(VPA)}, {s(SWS, 4)}, {s(S_T0)} offen sc1")

    def landed():
        far, out = A.new("lf"), A.new("lo")
        A(f"v_add_u32 {v(VO + 2)}, 1, {v(VO + 2)}")
        A(f"s_cmp_lg_u32 {s(S_IRR)}, 0")
        A(f"s_cbranch_scc1 {far}")
        A(f"buffer_store_dword {v(VO + 2)}, {v(VO + 1)}, {s(SWS, 4)}, 0 offen")
        A(f"s_branch {out}")
        A.label(far)
        A(f"buffer_store_dword {v(VO + 2)}, {v(VO + 1)}, {s(SWS, 4)}, 0 offen sc1")
        A.label(out)
    A(f"v_mov_b32 {v(VO + 2)}, 0")

    def advance():
        A(f"s_add_u32 {s(S_NXT)}, {s(S_NXT)}, 262144")
        A(f"s_bitset0_b32 {s(S_NXT)}, 21")
    stream1(A, cfg, tiles, epi, lambda B, d: B(f"s_add_u32 {s(S_NEED)}, {s(S_STEP)}, {d + 1}"), advance, 65536, end,
            sig, 64, landed)
    lap_dump(A, cfg)
    A("s_endpgm")


def pair_tiles(A, order):
    A(f"s_lshr_b32 {s(S_T2)}, {s(S_WAVE)}, 1")
    A(f"s_lshl_b32 {s(S_T2)}, {s(S_T2)}, 14")
    A(f"s_and_b32 {s(S_T3)}, {s(S_WAVE)}, 1")
    A(f"s_lshl_b32 {s(S_T3)}, {s(S_T3)}, 6")
    A(f"s_add_u32 {s(S_T2)}, {s(S_T2)}, {s(S_T3)}")
    for T in range(2):
        tile_addr(A, TMP + T, order, True, S_T2, 8 * T, TMP + 4, TMP + 5)


def row_total(A, T, bits, wr, rd, off):
    A(f"v_add_f32 {v(T)}, {v(T)}, {v(T + 1)}")
    xor_reduce(A, "v_add_f32", T, T + 1, bits)
    A(f"ds_write_b32 {v(wr)}, {v(T)} offset:{off}")
    A("s_waitcnt lgkmcnt(0)")
    A("s_barrier")
    A(f"ds_read_b128 {v(T, 4)}, {v(rd)} offset:{off}")
    A("s_waitcnt lgkmcnt(0)")
    A(f"v_pk_add_f32 {v(T, 2)}, {v(T, 2)}, {v(T + 2, 2)}")
    A(f"v_add_f32 {v(T)}, {v(T)}, {v(T + 1)}")
    A(f"v_mul_f32 {v(T)}, 0x3a800000, {v(T)}")


def normalise(A, F, n, T, bits, wr, rd):
    A(f"v_pk_add_f32 {v(T, 2)}, {v(F, 2)}, {v(F + 2, 2)}")
    for i in range(2, n // 2):
        A(f"v_pk_add_f32 {v(T, 2)}, {v(T, 2)}, {v(F + 2 * i, 2)}")
    row_total(A, T, bits, wr, rd, 512)
    for i in range(n // 2):
        A(f"v_pk_add_f32 {v(F + 2 * i, 2)}, {v(F + 2 * i, 2)}, {v(T, 2)} op_sel_hi:[1,0] neg_lo:[0,1] neg_hi:[0,1]")
    A(f"v_pk_mul_f32 {v(T, 2)}, {v(F, 2)}, {v(F, 2)}")
    for i in range(1, n // 2):
        A(f"v_pk_fma_f32 {v(T, 2)}, {v(F + 2 * i, 2)}, {v(F + 2 * i, 2)}, {v(T, 2)}")
    row_total(A, T, bits, wr, rd, 768)
    A(f"v_add_f32 {v(T)}, 0x3727c5ac, {v(T)}")
    A(f"v_rsq_f32 {v(T)}, {v(T)}")
    A("s_nop 0")
    for i in range(n // 2):
        A(f"v_pk_mul_f32 {v(F + 2 * i, 2)}, {v(F + 2 * i, 2)}, {v(T, 2)} op_sel_hi:[1,0]")


def stat_addrs(A, wr, rd, mask):
    A(f"v_and_b32 {v(rd)}, {mask}, {v(LANE)}")
    A(f"v_lshlrev_b32 {v(rd)}, 4, {v(rd)}")
    A(f"s_lshl_b32 {s(S_T0)}, {s(S_WAVE)}, 2")
    A(f"v_add_u32 {v(wr)}, {s(S_T0)}, {v(rd)}")


def helper_start(A, cfg, end):
    X, F, SH, SC, T = 16, 48, 112, 176, 240
    P1A, WR, RD, VA, VX, VG = 10, 11, 12, 13, 6, 7
    A(f"v_mov_b32 {v(LANE)}, v1")
    A(f"s_sub_u32 {s(S_T2)}, {s(S_GRP)}, 4")
    A(f"s_lshl_b32 {s(S_K)}, {s(S_TK)}, 2")
    A(f"s_add_u32 {s(S_K)}, {s(S_K)}, {s(S_T2)}")
    A(f"s_sub_u32 {s(S_K)}, {s(S_K)}, 64")
    A(f"s_lshr_b32 {s(S_T0)}, {s(S_T2)}, 1")
    A(f"s_lshl_b32 {s(S_T1)}, {s(S_T0)}, 3")
    A(f"s_add_u32 {s(S_T1)}, {s(S_T1)}, 16")
    A(f"s_lshl_b32 {s(S_T0)}, {s(S_T0)}, 2")
    A(f"s_cmp_ge_u32 {s(S_TK)}, 28")
    A(f"s_cselect_b32 {s(S_T3)}, 28, 24")
    A(f"s_add_u32 {s(S_T0)}, {s(S_T0)}, {s(S_T3)}")
    A(f"s_cmp_ge_u32 {s(S_TK)}, 24")
    A(f"s_cselect_b32 {s(S_T0)}, {s(S_T0)}, {s(S_T1)}")
    A(f"s_lshl_b32 {s(S_T1)}, {s(S_T2)}, 3")
    A(f"s_sub_u32 {s(S_T1)}, {s(S_T1)}, 16")
    A(f"s_bitcmp1_b32 {s(S_T2)}, 0")
    A(f"s_cselect_b32 {s(S_T0)}, {s(S_T0)}, {s(S_T1)}")
    A(f"s_add_u32 {s(S_CU)}, {s(S_T0)}, {s(S_TK)}")
    ptr(A, 16, "wmod")
    ptr(A, 18, "c")
    ptr(A, 20, "x")
    line_addr(A, P1A, 0, L.P1, S_K, TMP)
    line_addr(A, 8, 0, L.P45, S_CU, TMP)
    A("v_mov_b32 v14, 0")
    A("v_mov_b32 v15, 0")
    A(f"buffer_store_dword v14, {v(P1A)}, {s(SWS, 4)}, 0 offen sc1")
    A(f"buffer_store_dwordx2 v[14:15], v8, {s(SWS, 4)}, 0 offen sc1")
    A("s_waitcnt lgkmcnt(0)")
    A.srd(SW, 16, SIZE["wmod"])
    A.srd(SW2, 18, SIZE["c"])
    A.srd(SW3, 20, SIZE["x"])

    def stage(n, join=True):
        A(f"v_mov_b32 v14, {n}")
        A("s_waitcnt vmcnt(0)")
        if join:
            A("s_barrier")
        A(f"buffer_store_dword v14, {v(P1A)}, {s(SWS, 4)}, 0 offen sc1")

    stat_addrs(A, WR, RD, 15)
    A(f"v_lshlrev_b32 {v(VA)}, 4, {v(LANE)}")
    A(f"v_lshrrev_b32 {v(VG)}, 4, {v(LANE)}")
    A(f"v_lshlrev_b32 {v(VX)}, 7, {v(RD)}")
    A(f"v_lshl_add_u32 {v(VX)}, {v(VG)}, 4, {v(VX)}")
    A(f"v_lshlrev_b32 {v(VG)}, 5, {v(VG)}")

    def x_rows():
        for rep in range(2):
            A(f"s_add_u32 {s(S_T2)}, {s(S_K)}, {64 * rep}")
            A(f"s_lshl_b32 s41, {s(S_T2)}, 15")
            A(f"s_lshl_b32 s42, {s(S_WAVE)}, 9")
            A("s_add_u32 s41, s41, s42")
            for k in range(8):
                A(f"buffer_load_dwordx4 {a(32 * rep + 4 * k, 4)}, {v(VX)}, {s(SW3, 4)}, s41 offen offset:{64 * k}")
        return 16
    A(f"s_lshr_b32 {s(S_P0)}, {s(S_K)}, 1")
    A(f"s_and_b32 {s(S_P1)}, {s(S_K)}, 1")
    A(f"s_lshl_b32 {s(S_P2)}, {s(S_P0)}, 8")
    A(f"s_lshl_b32 {s(S_T0)}, {s(S_P1)}, 13")
    A(f"s_add_u32 {s(S_P2)}, {s(S_P2)}, {s(S_T0)}")
    A(f"s_add_u32 {s(S_P2)}, {s(S_P2)}, {L.MODP}")
    A(f"s_min_u32 {s(S_T0)}, {s(S_WAVE)}, 1")
    A(f"s_lshl_b32 {s(S_T0)}, {s(S_T0)}, 30")
    A(f"s_add_u32 {s(S_T0)}, {s(S_T0)}, {s(S_P2)}")
    A(f"v_lshlrev_b32 v2, 2, {v(LANE)}")
    A("v_mov_b32 v3, -1")
    A(f"buffer_store_dword v3, v2, {s(SWS, 4)}, {s(S_T0)} offen sc1")
    A(f"s_mov_b32 {s(S_T2)}, 1")
    arrive(A, S_T2, True, join=False, t=14)
    mod_addr(A)
    mod_pass(A, S_P0, S_P1, SW, SW2, WFLAG[cfg.wmod], x_rows)
    mod_finish(A, S_WAVE, S_P2, False)
    await_start(A, end, 14, True)
    mark(A, cfg, 4)
    for rep in range(2):
        A(f"s_add_u32 {s(S_T2)}, {s(S_K)}, {64 * rep}")
        for k in range(32):
            A(f"v_accvgpr_read_b32 {v(X + k)}, {a(32 * rep + k)}")
        A(f"s_lshr_b32 s40, {s(S_T2)}, 1")
        A("s_lshl_b32 s40, s40, 2")
        A(f"s_add_u32 s40, s40, {s(S_WAVE)}")
        A("s_lshl_b32 s40, s40, 14")
        A(f"s_and_b32 s41, {s(S_T2)}, 1")
        A("s_lshl_b32 s41, s41, 10")
        A("s_add_u32 s40, s40, s41")
        unpack(A, F, X, 32)
        normalise(A, F, 64, T, (16, 32), WR, RD)
        if rep == 0:
            A.c("shift and 1+scale, summed and rounded once per workgroup, shared through LDS")
            A("v_lshlrev_b32 v14, 5, v0")

            def parts():
                for h in range(2):
                    A(f"s_mov_b32 s42, {L.MODP + 8192 * h}")
                    for i in range(2):
                        A(f"buffer_load_dwordx4 {v(X + 8 * h + 4 * i, 4)}, v14, {s(SWS, 4)}, s42 offen offset:{16 * i} sc1")
            block_on(A, parts, lambda: check(A, X, 16, 15), end, 4)
            A(f"s_cmp_ge_u32 {s(S_WAVE)}, 2")
            A("s_cselect_b32 s42, 1.0, 0")
            A(f"s_lshl_b32 s43, {s(S_WAVE)}, 10")
            A(f"v_add_u32 {v(VG)}, s43, {v(VG)}")
            A("s_waitcnt vmcnt(0)")
            for i in range(8):
                A(f"v_add_f32 {v(X + i)}, {v(X + i)}, {v(X + 8 + i)}")
            for i in range(8):
                A(f"v_cvt_pk_bf16_f32 {v(X + i)}, 0, {v(X + i)}")
            for i in range(8):
                A(f"v_add_f32 {v(X + i)}, s42, {v(X + i)}")
            for i in range(2):
                A(f"ds_write_b128 v14, {v(X + 4 * i, 4)} offset:{4096 + 16 * i}")
            A("s_waitcnt lgkmcnt(0)")
            A("s_barrier")
            for n in range(16):
                off = 4096 + 128 * (n >> 1) + 16 * (n & 1)
                A(f"ds_read_b128 {v(SH + 4 * n, 4)}, {v(VG)} offset:{off}")
                A(f"ds_read_b128 {v(SC + 4 * n, 4)}, {v(VG)} offset:{off + 4096}")
            A("s_waitcnt lgkmcnt(0)")
        for k in range(8):
            for i in range(4):
                x = 8 * k + 2 * i
                A(f"v_pk_fma_f32 {v(F + x, 2)}, {v(F + x, 2)}, {v(SC + x, 2)}, {v(SH + x, 2)}")
            pack8(A, X + 4 * k, F + 8 * k, F + 8 * k + 4)
            A(f"s_add_u32 s41, s40, {L.H1 + 2048 * k}")
            A(f"buffer_store_dwordx4 {v(X + 4 * k, 4)}, {v(VA)}, {s(SWS, 4)}, s41 offen sc1")
        stage(2 + rep)
        mark(A, cfg, 5 + rep)
    loop = A.new("md")
    A(f"s_add_u32 {s(S_P0)}, {s(S_K)}, 32")
    A(f"s_mov_b32 {s(S_P1)}, 0")
    mod_addr(A)
    A.label(loop)
    mod_pass(A, S_P0, S_P1, SW, SW2, WFLAG[cfg.wmod])
    A(f"s_add_u32 {s(S_P1)}, {s(S_P1)}, 1")
    A(f"s_cmp_lt_u32 {s(S_P1)}, 2")
    A(f"s_cbranch_scc1 {loop}")
    A(f"s_lshl_b32 {s(S_P0)}, {s(S_P0)}, 8")
    A(f"s_add_u32 {s(S_P0)}, {s(S_P0)}, {L.MOD}")
    mod_finish(A, S_WAVE, S_P0, True)
    stage(4, False)
    A(f"v_mov_b32 {v(VPA)}, v8")
    A(f"v_mov_b32 {v(VP)}, 0")
    mark(A, cfg, 7)


def ln_role(A, cfg, end):
    A.c("x1 = x + ga * attention, h2 = modulated layer norm of x1, for 8 tokens of every other segment")
    PB, XB, F, GA, SC, SH, T, WR, RD = 16, 80, 96, 128, 160, 192, 224, 11, 12
    A(f"s_sub_u32 {s(S_K)}, {s(S_CU)}, 56")
    A(f"s_and_b32 {s(S_T2)}, {s(S_K)}, 3")
    A(f"s_lshl_b32 {s(S_T3)}, {s(S_WAVE)}, 2")
    octet_addrs(A, S_T2, S_T3)
    stat_addrs(A, WR, RD, 7)
    unit_consts(A)
    lines_addr(A, VFA, LANE, 32)
    A(f"s_lshr_b32 {s(S_FA)}, {s(S_K)}, 2")
    A(f"s_xor_b32 {s(S_FA)}, {s(S_FA)}, 1")
    A(f"s_lshl_b32 {s(S_FA)}, {s(S_FA)}, 12")
    A(f"s_add_u32 {s(S_FA)}, {s(S_FA)}, {L.P3}")
    await_start(A, end)
    await_helpers(A, 4, end)
    for reg, part in ((GA, 2), (SH, 3), (SC, 4)):
        A(f"s_mov_b32 {s(S_T0)}, {L.MOD + 4096 * part}")
        for i in range(8):
            A(f"buffer_load_dwordx4 {v(reg + 4 * i, 4)}, {v(VO + 2)}, {s(SWS, 4)}, {s(S_T0)} offen offset:{256 * (i >> 1) + 16 * (i & 1)} sc1")
    A("s_waitcnt vmcnt(0)")
    for i in range(16):
        A(f"v_pk_add_f32 {v(SC + 2 * i, 2)}, {v(SC + 2 * i, 2)}, 1.0 op_sel_hi:[1,0]")
    A(f"s_lshr_b32 {s(S_STEP)}, {s(S_K)}, 2")
    loop = A.new("ln")
    A.label(loop)
    A(f"s_lshl_b32 {s(S_OUT)}, {s(S_STEP)}, 16")
    for i in range(4):
        A(f"buffer_load_dwordx4 {v(XB + 4 * i, 4)}, {v(VO + 1)}, {s(SW3, 4)}, {s(S_OUT)} offen offset:{128 * i}")
    A(f"s_add_u32 {s(S_NEED)}, {s(S_STEP)}, 1")

    block_on(A, lambda: A(f"buffer_load_dword {v(VF)}, {v(VFA)}, {s(SWS, 4)}, {s(S_FA)} offen sc1"),
             lambda: A(f"v_cmp_gt_u32 vcc, {s(S_NEED)}, {v(VF)}"), end, cfg.ln_sleep)
    for i in range(4):
        for x in range(4):
            A(f"s_add_u32 {s(S_T1)}, {s(S_OUT)}, {L.PART3 + x * 4 * L.MB + 4096 * i}")
            A(f"buffer_load_dwordx4 {v(PB + 16 * i + 4 * x, 4)}, {v(VO)}, {s(SWS, 4)}, {s(S_T1)} offen sc1")
    unpack(A, F, XB, 16)
    for i in range(4):
        A(f"s_waitcnt vmcnt({4 * (3 - i) + i})")
        sum_bf(A, T, [PB + 16 * i + 4 * x for x in range(4)], 4)
        A("s_nop 1")
        for q in range(4):
            x = 8 * i + 2 * q
            A(f"v_pk_fma_f32 {v(F + x, 2)}, {v(T + 2 * q, 2)}, {v(GA + x, 2)}, {v(F + x, 2)}")
        pack8(A, XB + 4 * i, F + 8 * i, F + 8 * i + 4)
        A(f"s_add_u32 {s(S_T1)}, {s(S_OUT)}, {L.X1 + 4096 * i}")
        A(f"buffer_store_dwordx4 {v(XB + 4 * i, 4)}, {v(VO)}, {s(SWS, 4)}, {s(S_T1)} offen sc1")
        unpack(A, F + 8 * i, XB + 4 * i, 4)
    normalise(A, F, 32, T, (8, 16, 32), WR, RD)
    for i in range(4):
        for q in range(4):
            x = 8 * i + 2 * q
            A(f"v_pk_fma_f32 {v(F + x, 2)}, {v(F + x, 2)}, {v(SC + x, 2)}, {v(SH + x, 2)}")
        pack8(A, PB + 4 * i, F + 8 * i, F + 8 * i + 4)
        A(f"s_add_u32 {s(S_T1)}, {s(S_OUT)}, {L.H2 + 4096 * i}")
        A(f"buffer_store_dwordx4 {v(PB + 4 * i, 4)}, {v(VO)}, {s(SWS, 4)}, {s(S_T1)} offen sc1")
    A(f"v_mov_b32 {v(VP)}, {s(S_NEED)}")
    A("s_waitcnt vmcnt(0)")
    A("s_barrier")
    A(f"buffer_store_dword {v(VP)}, {v(VPA)}, {s(SWS, 4)}, 0 offen sc1")
    mark(A, cfg, s(S_NEED))
    A(f"s_add_u32 {s(S_STEP)}, {s(S_STEP)}, 2")
    A(f"s_cmp_lt_u32 {s(S_STEP)}, 64")
    A(f"s_cbranch_scc1 {loop}")
    A("s_endpgm")


def g45_role(A, cfg, end):
    A.c("64 hidden units of silu(h w1) * (h w3) and a 512 x 128 slice of the down projection")
    VD5, VR5, VFA5, VF5 = VD, 11, 12, 13
    AC5, TE, VS, HV = 64, 88, 100, 104
    LAG = cfg.lag
    ptr(A, 16, "w1")
    ptr(A, 18, "w3")
    ptr(A, 20, "w2")
    A("s_waitcnt lgkmcnt(0)")
    A.srd(SW, 16, SIZE["w1"])
    A.srd(SW2, 18, SIZE["w3"])
    A.srd(SW3, 20, SIZE["w2"])
    A(f"s_lshl_b32 {s(S_P0)}, {s(S_CU)}, 7")
    A(f"s_lshl_b32 {s(S_T2)}, {s(S_WAVE)}, 5")
    for p in range(2):
        tile_addr(A, TMP + p, "N", False, S_T2, 16384 * p, TMP + 4, TMP + 5)
    load_w(A, [(SW, S_P0), (SW2, S_P0)], 7168, 8, [(TMP, 256), (TMP + 1, 384)], "N", TMP + 4, WFLAG[cfg.wff])
    A(f"s_lshr_b32 {s(S_K)}, {s(S_CU)}, 3")
    A(f"s_and_b32 {s(S_P2)}, {s(S_CU)}, 7")
    A(f"s_lshl_b32 {s(S_P0)}, {s(S_K)}, 20")
    A(f"s_lshl_b32 {s(S_T0)}, {s(S_P2)}, 8")
    A(f"s_add_u32 {s(S_P0)}, {s(S_P0)}, {s(S_T0)}")
    A(f"s_add_u32 {s(S_P1)}, {s(S_P0)}, 128")
    pair_tiles(A, "N")
    load_w(A, [(SW3, S_P0), (SW3, S_P1)], 2048, 4, [(TMP, 128), (TMP + 1, 192)], "N", TMP + 4, WFLAG[cfg.wff])
    mark(A, cfg, 1)
    common_regs(A, 4096)
    S_M5, S_FA5, S_NL, S_OUT4 = S_P0, S_P1, 64, 65
    A(f"s_mov_b32 {s(S_M5)}, {s(S_M0)}")
    A(f"v_add_u32 {v(VR5)}, 0x20000, {v(VR)}")
    A(f"v_mov_b32 {v(VO + 1)}, {v(VR)}")
    lines_addr(A, VFA, LANE, 4)
    lines_addr(A, VFA5, LANE, 8)
    A(f"s_lshl_b32 {s(S_FA5)}, {s(S_K)}, 10")
    A(f"s_add_u32 {s(S_FA5)}, {s(S_FA5)}, {L.P45}")
    A(f"s_lshl_b32 {s(S_T0)}, {s(S_CU)}, 1")
    A(f"s_lshr_b32 {s(S_T1)}, {s(S_WAVE)}, 1")
    A(f"s_add_u32 {s(S_T0)}, {s(S_T0)}, {s(S_T1)}")
    A(f"s_lshl_b32 {s(S_T0)}, {s(S_T0)}, 11")
    A(f"s_and_b32 {s(S_T1)}, {s(S_WAVE)}, 1")
    A(f"s_lshl_b32 {s(S_T1)}, {s(S_T1)}, 9")
    A(f"s_add_u32 {s(S_T0)}, {s(S_T0)}, {s(S_T1)}")
    A(f"v_and_b32 {v(TMP)}, 15, {v(LANE)}")
    A(f"v_lshl_add_u32 {v(VO)}, {v(TMP)}, 4, {s(S_T0)}")
    A(f"v_bfe_u32 {v(TMP)}, {v(LANE)}, 4, 1")
    A(f"v_lshl_add_u32 {v(VO)}, {v(TMP)}, 10, {v(VO)}")
    A(f"v_lshrrev_b32 {v(TMP)}, 5, {v(LANE)}")
    A(f"v_lshl_add_u32 {v(VO)}, {v(TMP)}, 8, {v(VO)}")
    A(f"s_mov_b32 {s(S_OUT)}, {L.HH}")
    A(f"s_mov_b32 {s(S_NXT)}, {L.H2}")
    A(f"s_lshl_b32 {s(S_NXT5)}, {s(S_K)}, 15")
    A(f"s_add_u32 {s(S_NXT5)}, {s(S_NXT5)}, {L.HH - LAG * 229376}")
    A(f"s_lshl_b32 {s(S_T0)}, {s(S_P2)}, 2")
    A(f"s_add_u32 {s(S_T0)}, {s(S_T0)}, {s(S_WAVE)}")
    A(f"s_lshl_b32 {s(S_T0)}, {s(S_T0)}, 11")
    A(f"s_lshl_b32 {s(S_P2)}, {s(S_K)}, 22")
    A(f"s_add_u32 {s(S_P2)}, {s(S_P2)}, {s(S_T0)}")
    A(f"s_add_u32 {s(S_P2)}, {s(S_P2)}, {L.PART5 - LAG * 65536}")
    A(f"s_mov_b32 {s(S_NL)}, 0xbfb8aa3b")
    A(f"v_mov_b32 {v(VS)}, 0")
    A(f"v_mov_b32 {v(VS + 1)}, 0")

    ldf = lambda B=A: B(f"buffer_load_dword {v(VF)}, {v(VFA)}, {s(SWS, 4)}, {s(S_FA)} offen sc1")
    ldf5 = lambda B=A: B(f"buffer_load_dword {v(VF5)}, {v(VFA5)}, {s(SWS, 4)}, {s(S_FA5)} offen sc1")
    tst5 = lambda: A(f"v_cmp_gt_u32 vcc, {s(S_NEED5)}, {v(VF5)}")

    def sig(back5, B=A):
        B(f"v_min_u32 {v(VS)}, {s(S_STEP)}, 64")
        B(f"s_sub_u32 {s(S_T0)}, {s(S_STEP)}, {LAG + back5}")
        B(f"v_max_i32 {v(VS + 1)}, {s(S_T0)}, 0")
        B(f"buffer_store_dwordx2 {v(VS, 2)}, {v(VPA)}, {s(SWS, 4)}, 0 offen sc1")

    def store4(B=A):
        B(f"buffer_store_dwordx4 {v(TE + 8, 4)}, {v(VO)}, {s(SWS, 4)}, {s(S_OUT)} offen sc1")

    def flag_for(B, d):
        B(f"s_add_u32 {s(S_NEED)}, {s(S_STEP)}, {d}")
        B(f"s_and_b32 {s(S_FA)}, {s(S_NEED)}, 1")
        B(f"s_lshl_b32 {s(S_FA)}, {s(S_FA)}, 9")
        B(f"s_add_u32 {s(S_FA)}, {s(S_FA)}, {L.PL}")
        B(f"s_add_u32 {s(S_NEED)}, {s(S_NEED)}, 1")

    def need5(B=A):
        B(f"s_sub_u32 {s(S_NEED5)}, {s(S_STEP)}, {LAG - 1}")
        B(f"s_max_i32 {s(S_NEED5)}, {s(S_NEED5)}, 0")

    def epi4(B, T):
        G, U, H = ACC + 4 * T, ACC + 8 + 4 * T, HV + 4 * T
        for i in range(4):
            B(f"v_mul_f32 {v(TE + i)}, {s(S_NL)}, {v(G + i)}")
        for i in range(4):
            B(f"v_exp_f32 {v(TE + i)}, {v(TE + i)}")
        for i in range(4):
            B(f"v_mul_f32 {v(H + i)}, {v(G + i)}, {v(U + i)}")
        for i in range(4):
            B(f"v_add_f32 {v(TE + i)}, 1.0, {v(TE + i)}")
        for i in range(4):
            B(f"v_rcp_f32 {v(TE + i)}, {v(TE + i)}")
        for i in range(4):
            B(f"v_mul_f32 {v(H + i)}, {v(H + i)}, {v(TE + i)}")
        if T:
            pack8(B, TE + 8, HV, HV + 4)
            B("GAP 2")
            B(f"v_permlane16_swap_b32 {v(TE + 8)}, {v(TE + 10)}")
            B(f"v_permlane16_swap_b32 {v(TE + 9)}, {v(TE + 11)}")

    def epi5(B=A, part=3):
        if part & 1:
            for T in range(2):
                pack8(B, TMP + 4 * T, AC5 + 8 * T, AC5 + 8 * T + 4)
        if part & 2:
            for T in range(2):
                B(f"buffer_store_dwordx4 {v(TMP + 4 * T, 4)}, {v(VO + 1)}, {s(SWS, 4)}, {s(S_OUT5)} offen offset:{1024 * T} sc1")

    def after5(B=A):
        B(f"s_cmp_ge_u32 {s(S_STEP)}, {LAG}")
        B(f"s_cselect_b32 {s(S_OUT5)}, {s(S_P2)}, {hex(OOB)}")
        B(f"s_add_u32 {s(S_OUT)}, {s(S_OUT)}, 229376")
        B(f"s_add_u32 {s(S_P2)}, {s(S_P2)}, 65536")
        B(f"s_add_u32 {s(S_NXT5)}, {s(S_NXT5)}, 229376")
        B(f"s_add_u32 {s(S_STEP)}, {s(S_STEP)}, 1")
    t4 = [(lambda T: ACC + 4 * T, lambda ks: 256 + 4 * ks, False),
          (lambda T: ACC + 8 + 4 * T, lambda ks: 384 + 4 * ks, False)]
    t5 = [(lambda T: AC5 + 8 * T, lambda ks: 128 + 4 * ks, False),
          (lambda T: AC5 + 8 * T + 4, lambda ks: 192 + 4 * ks, False)]
    assert LAG == 3
    event(A, cfg, 5)
    if cfg.gate45:
        A("s_memrealtime s[90:91]")
        gate(A, cfg.gate45)
    body, wait, late5, go5, starved, final = (A.new(x) for x in ("fb", "fw", "fl", "fg", "fs", "fz"))
    tst = lambda: A(f"v_cmp_gt_u32 vcc, {s(S_NEED)}, {v(VF)}")
    rd4, rd5 = reader(VR, 64, True), reader(VR5, 32, False)
    A(f"s_mov_b32 {s(S_STEP)}, 0")
    lap_init(A, cfg)
    lap(A, cfg, 7)
    A.label(wait)
    flag_for(A, 0)
    block_on(A, ldf, tst, end, cfg.g4_sleep)
    for op in dma_list(4, S_M0, 0, S_NXT, VD, (0, 2)):
        A(op)
    flag_for(A, 1)
    ldf()
    ldf5()
    for op in dma_list(4, S_M0, 0, S_NXT, VD, (1, 3)):
        A(op)
    A(f"s_mov_b32 {s(S_OUT5)}, {hex(OOB)}")
    A("s_waitcnt vmcnt(8)")
    A("s_barrier")
    lap(A, cfg, 4)
    first_reads(A, rd4)
    A.label(body)

    def head(B):
        B(f"s_add_u32 {s(S_NXT)}, {s(S_NXT)}, 65536")
        B(f"s_xor_b32 {s(S_M0)}, {s(S_M0)}, 0x10000")
        need5(B)
        decide(B, S_NEED, VF, S_RDY, S_SRC, S_NXT, True)
        decide(B, S_NEED5, VF5, S_RDY5, S_SRC5, S_NXT5, True)
    first = len(A.lines)
    d5 = split_loads(tag(dma_list(2, S_M5, 0x20000, S_SRC5, VD5), "d5"), [6])
    t0 = split_loads(tag(dma_list(4, S_M0, 0, S_SRC, VD, (0, 2)), "t0"), [6])
    t1 = split_loads(tag(dma_list(4, S_M0, 0, S_SRC, VD, (1, 3)), "t1"), [7])
    job(A, 64, rd4, True, t4,
        [(0, 1, lines(head)), (0, 8, d5[0] + ["END 58"]), (-51, 3, lines(lambda B: sig(1, B))), (0, 8, d5[1] + t0[0]),
         (-10, 1, lines(lambda B: epi5(B, 1))), (-72, 1, lines(lambda B: epi4(B, 0)))], 0, 59,
        syncs={32: ["s_waitcnt vmcnt(@t1,st)", "s_barrier"]})
    lap(A, cfg, 0)
    A(f"s_cmp_eq_u32 {s(S_RDY5)}, 0")
    A(f"s_cbranch_scc1 {late5}")
    A("s_waitcnt vmcnt(@d5) lgkmcnt(0)")
    A.label(go5)
    A("s_barrier")
    lap(A, cfg, 1)
    job(A, 64, rd4, True, t4, [(1, 6, t0[1]), (-1, 1, lines(lambda B: flag_for(B, 2)) + tag(lines(ldf) + lines(ldf5), "fl") +
                                               [f"v_xor_b32 {v(VR)}, 0x10000, {v(VR)}"])], 59, 64, rd5)
    job(A, 32, rd5, False, t5,
        [(3, 8, t1[0]), (-7, 8, tag(lines(lambda B: epi5(B, 2)), "st") + ["END 40"]),
         (-8, 1, lines(lambda B: epi4(B, 1))), (40, 1, tag(lines(store4), "st") + lines(after5))], 0, 27)
    event(A, cfg, 6, True)
    span(A, cfg)
    lap(A, cfg, 2)
    A(f"s_cmp_eq_u32 {s(S_RDY)}, 0")
    A(f"s_cbranch_scc1 {starved}")
    A("s_waitcnt vmcnt(@t0,fl) lgkmcnt(0)")
    A("s_barrier")
    lap(A, cfg, 3)
    job(A, 32, rd5, False, t5, [(5, 1, t1[1])], 27, 32, rd4)
    resolve(A, first)
    mark(A, cfg, s(S_STEP))
    A(f"s_branch {body}")
    A.label(starved)
    if cfg.marks in (2, 5):
        A("s_add_u32 s75, s75, 64")
    A("s_waitcnt lgkmcnt(0)")
    job(A, 32, rd5, False, t5, [], 27, 32)
    mark(A, cfg, s(S_STEP))
    A.nop(8)
    epi5(A, 1)
    A(f"s_cmp_eq_u32 {s(S_STEP)}, 64")
    A(f"s_cbranch_scc1 {final}")
    epi5(A, 2)
    A(f"s_branch {wait}")
    A.label(late5)
    if cfg.marks in (2, 5):
        A("s_add_u32 s76, s76, 64")
    block_on(A, ldf5, tst5, end)
    for op in dma_list(2, S_M5, 0x20000, S_NXT5, VD5):
        A(op)
    A("s_waitcnt vmcnt(0) lgkmcnt(0)")
    A(f"s_branch {go5}")

    A.label(final)
    A.c("last three down projections; the first two go to the free up-projection buffer")
    have, no63, got63 = A.new("fh"), A.new("fn"), A.new("fy")
    lap_dump(A, cfg)
    A(f"s_mov_b32 {s(S_NEED5)}, 63")
    A("s_waitcnt vmcnt(0)")
    tst5()
    A("s_barrier")
    sig(1)
    A(f"s_cbranch_vccz {have}")
    block_on(A, ldf5, tst5, end, 1)
    A.label(have)
    for i in range(2):
        A(f"s_add_u32 {s(S_SRC5)}, {s(S_NXT5)}, {229376 * i}")
        for op in dma_list(2, S_M5, 0x10000 + 0x8000 * i, S_SRC5, VD5):
            A(op)
    epi5(A, 2)
    A(f"s_add_u32 {s(S_SRC5)}, {s(S_NXT5)}, {229376 * 2}")
    A(f"s_mov_b32 {s(S_NEED5)}, 64")
    A(f"v_add_u32 {v(VR5)}, -0x10000, {v(VR5)}")

    def alone(fill):
        A("s_barrier")
        first_reads(A, rd5)
        job(A, 32, rd5, False, t5, fill)
        after5()
        A(f"v_add_u32 {v(VR5)}, 0x8000, {v(VR5)}")
        A("s_nop 0")
        epi5(A, 1)
        mark(A, cfg, s(S_STEP))
    A("s_waitcnt vmcnt(10)")
    alone([(24, 1, lines(ldf5))])
    A("s_waitcnt vmcnt(0)")
    tst5()
    A(f"s_mov_b32 {s(S_RDY5)}, 0")
    A(f"s_cbranch_vccnz {no63}")
    A(f"s_mov_b32 {s(S_RDY5)}, 1")
    for op in dma_list(2, S_M5, 0x20000, S_SRC5, VD5):
        A(op)
    A.label(no63)
    epi5(A, 2)
    alone([])
    A(f"s_cmp_lg_u32 {s(S_RDY5)}, 0")
    A(f"s_cbranch_scc1 {got63}")
    block_on(A, ldf5, tst5, end, 1)
    for op in dma_list(2, S_M5, 0x20000, S_SRC5, VD5):
        A(op)
    A.label(got63)
    epi5(A, 2)
    A("s_waitcnt vmcnt(2)")
    alone([])
    epi5(A, 2)
    A("s_waitcnt vmcnt(0)")
    A("s_barrier")
    sig(0)
    report(A, cfg, (5, 6))
    A("s_endpgm")
```

```python
from asmlib import *
import layout as L

SWS, SW, SDBG = 4, 8, 12
P_MEM0, P_WQ, P_WK, P_WV, P_WO, P_DBG, P_WS = 16, 18, 20, 22, 24, 28, 30
S_WAVE, S_GRP, S_TK, S_IRR, S_STEP, S_BUD, S_T0, S_T1 = 32, 33, 34, 35, 36, 37, 38, 39
S_CUR, S_NXT, S_RST, S_XCUR, S_XRST, S_RBASE, S_PAR, S_PF, S_C, S_NC, S_OT = range(40, 51)
S_XCC, S_T2, S_T3 = 51, 52, 53
S_FB, S_TAG = 59, 26
S_XC, S_XR = 84, 88
S_STAMP = 60
S_CNT = 80
BUDGET = 200000
SM = "v_smfmac_f32_16x16x64_bf16"
MF = "v_mfma_f32_16x16x32_bf16"


WFLAG = ("", " nt", " sc1")


class Cfg:
    trace = 0
    nsteps = 64
    lag = 3
    s1_flag = 36
    wlo = 0
    whi = 0
    wff = 0
    wmod = 0
    ramp_lo = 5
    ramp_hi = 3
    g3_after = 0
    meet = 1
    dense = 0
    wbl2 = 0
    dgap = 20
    dsets = 2
    f63 = 45
    nap_o = 0
    nap_m = 0
    usesleep = 0
    g3_sleep = 1
    spec = 0
    po_pos = 0
    fine = 0
    hmask = 0
    near = 2
    marks = 0
    qsig = 70
    codepf = 1
    qmap = 0
    gate2 = 0
    report = 0
    rep_step = 0
    gate45 = 0
    gate_entry = 0
    gate3 = 0
    gate = 0
    outflag = 2
    qkv_slow = 3
    g4_split = 4
    g4_step = 5
    st_step = 4
    q_step = 10
    g4_late = 1
    mark = staticmethod(lambda A, i: None)
    fin_sleep = 4
    ln_sleep = 2
    g4_sleep = 4
    solo = 0
    cyc = 0
    flip = 0
    nrep = 2
    xdelay = 17
    xgap = 8
    xfill = 0
    fm_delay = 22
    mdelay = 11
    fo_pos = 3
    use_fm = 1
    use_fo = 1
    nflag = 3
    qjoint = 1
    qown = 4
    fo_wait = 0
    fspace = 6
    lspace = 3
    ltail = 3
    kpos = 1
    vpos = 0
    ksplit = 1
    qsplit = 3
    rpos = 3
    vin = 1
    vk = 2
    vk2 = 4
    xdepth = 3
    xgap2 = 12
    xbf = 1
    vchk = 1
    qpipe = 0
    fillw = 0
    fillr = 0
    qfw = 0
    qfr = 0
    qfw2 = 0
    hw = 0
    hr = 0


def gate(A, us):
    if us:
        gl = A.new("gate")
        A.label(gl)
        A("s_memrealtime s[92:93]")
        A("s_waitcnt lgkmcnt(0)")
        A("s_sub_u32 s92, s92, s90")
        A(f"s_cmp_lt_u32 s92, {us * 100}")
        A(f"s_cbranch_scc1 {gl}")


def event(A, cfg, k, stepped=False):
    if cfg.report != k:
        return
    skip = A.new("ev")
    if stepped:
        A(f"s_cmp_lg_u32 {s(S_STEP)}, {cfg.rep_step}")
        A(f"s_cbranch_scc1 {skip}")
    A("s_memrealtime s[100:101]")
    A("s_waitcnt lgkmcnt(0)")
    A.label(skip)


def report(A, cfg, ks):
    if cfg.report in ks:
        A("s_mov_b32 s90, s100")
        gate(A, 200)


def pause(A, cfg, h, n, bit, keep=0):
    hot = n if cfg.hmask >> bit & 1 else min(n, keep)
    idle = n - hot
    if cfg.usesleep and idle >= 5:
        A(f"s_sleep {(idle - 1) // 4}")
        idle -= 4 * ((idle - 1) // 4) + 1
    A.nop(4 * idle)
    heat(A, h, hot)


def busy(A, h, n):
    for _ in range(n):
        A(f"v_mov_b32 {v(h)}, 0")


def heat(A, h, n):
    for _ in range(n):
        A(f"{MF} {v(h, 4)}, {v(h + 4, 4)}, {v(h + 4, 4)}, 0")


def stamp(A, cfg, i, lvl=1):
    if cfg.trace in (1, lvl):
        A(f"{'s_memtime' if cfg.cyc else 's_memrealtime'} {s(S_STAMP + 2 * i, 2)}")


def fine(A, cfg, i, grp):
    if cfg.trace == 1 and cfg.fine == grp:
        A(f"s_memtime {s(S_STAMP + 12 + 2 * i, 2)}")


def count(A, cfg, i):
    if cfg.trace == 1:
        A(f"s_add_u32 {s(S_CNT + i)}, {s(S_CNT + i)}, 1")


def flush_stamps(A, cfg, n, vt, va, lvl=1):
    if cfg.trace not in (1, lvl):
        return
    A("s_waitcnt lgkmcnt(0)")
    for i in range(n):
        A(f"v_writelane_b32 {v(vt)}, {s(S_STAMP + 2 * i)}, {i}")
    A(f"v_writelane_b32 {v(vt)}, {s(S_BUD)}, 8")
    for i in range(4):
        A(f"v_writelane_b32 {v(vt)}, {s(S_CNT + i)}, {9 + i}")
    A(f"s_mul_i32 {s(S_T0)}, {s(S_GRP)}, 24")
    A(f"s_add_u32 {s(S_T0)}, {s(S_T0)}, {s(S_TK)}")
    A(f"s_lshl_b32 {s(S_T0)}, {s(S_T0)}, 2")
    A(f"s_add_u32 {s(S_T0)}, {s(S_T0)}, {s(S_WAVE)}")
    A(f"s_lshl_b32 {s(S_T0)}, {s(S_T0)}, 6")
    A(f"s_add_u32 {s(S_T0)}, {s(S_T0)}, {s(S_STEP)}")
    A(f"s_lshl_b32 {s(S_T0)}, {s(S_T0)}, 6")
    A(f"s_add_u32 {s(S_T0)}, {s(S_T0)}, {L.TRACE}")
    A(f"v_mbcnt_lo_u32_b32 {v(va)}, -1, 0")
    A(f"v_lshlrev_b32 {v(va)}, 2, {v(va)}")
    A("s_mov_b64 exec, 0xffff")
    A(f"buffer_store_dword {v(vt)}, {v(va)}, {s(SWS, 4)}, {s(S_T0)} offen")
    A("s_mov_b64 exec, -1")


def check(A, reg, n, tmp):
    if n == 4:
        A(f"v_max3_u32 {v(tmp)}, {v(reg)}, {v(reg + 1)}, {v(reg + 2)}")
        A(f"v_max_u32 {v(tmp)}, {v(tmp)}, {v(reg + 3)}")
    elif n > 4:
        A(f"v_max3_u32 {v(tmp)}, {v(reg)}, {v(reg + 1)}, {v(reg + 2)}")
        for i in range(3, n - 1, 2):
            A(f"v_max3_u32 {v(tmp)}, {v(tmp)}, {v(reg + i)}, {v(reg + i + 1)}")
        A(f"v_max_u32 {v(tmp)}, {v(tmp)}, {v(reg + n - 1)}")
    elif n == 2:
        A(f"v_max_u32 {v(tmp)}, {v(reg)}, {v(reg + 1)}")
    A(f"v_cmp_eq_u32 vcc, -1, {v(tmp)}")


def spend(A, abort):
    A(f"s_sub_u32 {s(S_BUD)}, {s(S_BUD)}, 1")
    A(f"s_cbranch_scc1 {abort}")


def fsm_poll(A, n, ld, chk, use, abort, finished=None, fast=None, onfail=None, undo=None, dense=None):
    done = A.new("pd")
    labels, emitted, todo = {}, set(), []
    full = frozenset(range(n))
    if finished is None:
        finished = lambda got: got == full

    def lab(st):
        if st not in labels:
            labels[st] = A.new("ps")
            todo.append(st)
        return labels[st]

    fails = []

    def chain_from(st, last):
        while True:
            if st in emitted:
                A(f"s_branch {lab(st)}")
                return
            emitted.add(st)
            A.label(lab(st))
            fl = A.new("pf")
            fails.append((fl, st))
            A(f"s_waitcnt vmcnt({len(st) - 1})")
            chk(st[0])
            A(f"s_cbranch_vccnz {fl}")
            rest = st[1:]
            fin = finished(full - frozenset(rest))
            use(st[0], () if fin else rest)
            if fin:
                if not last:
                    A(f"s_branch {done}")
                return
            st = rest

    if fast is None:
        chain_from(tuple(range(n)), True)
    else:
        head, tail = fast[:2]
        joint = fast[2:] if len(fast) > 2 else None
        for i in range(n):
            if joint and i == n - 2:
                both = A.new("pj")
                A("s_waitcnt vmcnt(0)")
                joint[0]()
                tail(i - 1)
                A(f"s_cbranch_vccnz {both}")
                joint[1]()
                break
            fl = A.new("pf")
            fails.append((fl, tuple(range(i, n))))
            A(f"s_waitcnt vmcnt({n - 1 - i})")
            chk(i)
            if i:
                tail(i - 1)
            elif undo:
                head(0)
            A(f"s_cbranch_vccnz {fl}")
            if i or not undo:
                head(i)
        else:
            tail(n - 1)

    dense_at = {}

    def dense_loop(st):
        _, ldto, home, spare, gap, tmp, nset = dense
        k = len(st)
        top, got = A.new("pt"), A.new("pg")
        outs = [A.new("pa") for _ in range(nset)]
        issue = lambda w: [ldto(j, spare + 4 * (k * w + x)) for x, j in enumerate(st)]
        for w in range(nset):
            if w:
                A.nop(gap)
            issue(w)
        A.label(top)
        for w in range(nset):
            A(f"s_waitcnt vmcnt({k * (nset - 1)})")
            check(A, spare + 4 * k * w, 4 * k, tmp)
            for x, j in enumerate(st):
                for h in range(2):
                    A(f"v_mov_b64 {v(home + 4 * j + 2 * h, 2)}, {v(spare + 4 * (k * w + x) + 2 * h, 2)}")
            A(f"s_cbranch_vccz {got}")
            issue(w)
        spend(A, abort)
        A(f"s_branch {top}")
        A.label(got)
        A("s_nop 0")
        for x, j in enumerate(st):
            use(j, st[x + 1:])
        A(f"s_branch {done}")

    def rest_code():
        if fast is not None and joint:
            A.label(both)
            ld(n - 2)
            ld(n - 1)
            if onfail:
                onfail(True)
            spend(A, abort)
            A(f"s_branch {lab((n - 2, n - 1))}")
        nfast = len(fails) if fast is not None else 0
        i = 0
        while i < len(fails) or any(t not in emitted for t in todo):
            while i < len(fails):
                fl, st = fails[i]
                i += 1
                A.label(fl)
                if dense and dense[0](st):
                    if onfail:
                        onfail(i <= nfast)
                    key = tuple(sorted(st))
                    if key in dense_at:
                        A(f"s_branch {dense_at[key]}")
                    else:
                        dense_at[key] = A.new("pe")
                        A.label(dense_at[key])
                        dense_loop(key)
                    continue
                ld(st[0])
                if undo and i == 1:
                    undo()
                if onfail:
                    onfail(i <= nfast)
                if st[0] == min(st):
                    spend(A, abort)
                chain_from(st[1:] + st[:1], False)
            for t in list(todo):
                if t not in emitted:
                    chain_from(t, False)
    return done, rest_code


def flag_wait(A, cfg, vaddr, buf, nl, abort, nap=0):
    go, top = A.new("fg"), A.new("ft")
    ld = lambda b: A(f"buffer_load_dword {v(buf + b)}, {v(vaddr)}, {s(SWS, 4)}, {s(S_FB)} offen sc1")
    if nap:
        A(f"s_sleep {nap}")
    A(f"s_mov_b64 exec, {(1 << nl) - 1}")
    n = cfg.nflag
    for b in range(n):
        ld(b)
        if b < n - 1:
            A.nop(cfg.fspace)
    A.label(top)
    for b in range(n):
        A(f"s_waitcnt vmcnt({n - 1})")
        A(f"v_cmp_gt_u32 vcc, {s(S_TAG)}, {v(buf + b)}")
        ld(b)
        A(f"s_cbranch_vccz {go}")
    spend(A, abort)
    A(f"s_branch {top}")
    A.label(go)
    A("s_mov_b64 exec, -1")


def load_weights(A, chunks, flag="", first=None, ramp=5):
    NS = 5

    def issue(c):
        setup, stride, kind, vglob, vtr, dst = chunks[c]
        setup()
        A(f"s_mul_i32 {s(S_T0)}, {s(S_WAVE)}, 40960")
        A(f"s_add_u32 m0, {s(S_T0)}, {(c % NS) * 8192}")
        for j in range(8):
            if j:
                A(f"s_add_u32 m0, m0, 1024")
                A(f"s_add_u32 {s(S_T1)}, {s(S_T1)}, {8 * stride}")
            else:
                A("s_nop 0")
            A(f"buffer_load_dwordx4 {v(vglob)}, {s(SW, 4)}, {s(S_T1)} offen{flag} lds")

    n = len(chunks)
    for c in range(ramp):
        issue(c)
    if ramp < NS:
        A(f"s_waitcnt vmcnt({8 * (ramp - 1)})")
        for c in range(ramp, NS):
            issue(c)
    for c in range(n):
        setup, stride, kind, vglob, vtr, dst = chunks[c]
        A(f"s_waitcnt vmcnt({8 * (min(c + NS, n) - c - 1)})")
        if c == 0 and first:
            first()
        for t in range(4):
            col = 64 * (t >> 1) + 16 * (t & 1) if kind == "K" else 32 * t
            for H in range(2):
                for q in range(2):
                    row = 32 * H + 2 * q
                    off = (c % NS) * 8192 + row * 128 + col
                    A(f"ds_read_b64_tr_b16 {r(dst(t) + 4 * H + 2 * q, 2)}, {v(vtr)} offset:{off}")
        A("s_waitcnt lgkmcnt(0)")
        if c + NS < n:
            issue(c + NS)


def glob_addr(A, dst, lane, shift, sxor, t0):
    A(f"v_and_b32 {v(t0)}, 7, {v(lane)}")
    A(f"v_lshlrev_b32 {v(t0)}, 4, {v(t0)}")
    A(f"v_xor_b32 {v(t0)}, {s(sxor)}, {v(t0)}")
    A(f"v_lshrrev_b32 {v(dst)}, 3, {v(lane)}")
    A(f"v_lshl_add_u32 {v(dst)}, {v(dst)}, {shift}, {v(t0)}")


def tr_addr(A, dst, lane, kind, t0):
    A(f"v_bfe_u32 {v(dst)}, {v(lane)}, 2, 1")
    for bit, sh in (((4, 4), (5, 3), (3, 2)) if kind == "O" else ((5, 4), (4, 2), (3, 3))):
        A(f"v_bfe_u32 {v(t0)}, {v(lane)}, {bit}, 1")
        A(f"v_lshl_add_u32 {v(dst)}, {v(t0)}, {sh}, {v(dst)}")
    A(f"s_mul_i32 {s(S_T0)}, {s(S_WAVE)}, 40960")
    A(f"v_lshl_add_u32 {v(dst)}, {v(dst)}, 7, {s(S_T0)}")
    for bit, sh in (((0, 5), (1, 3)) if kind == "K" else ((0, 3), (1, 4))):
        A(f"v_bfe_u32 {v(t0)}, {v(lane)}, {bit}, 1")
        A(f"v_lshl_add_u32 {v(dst)}, {v(t0)}, {sh}, {v(dst)}")


def sparse_index(A, dst, lane):
    A(f"v_bfe_u32 {v(dst)}, {v(lane)}, 1, 1")
    A(f"v_mul_u32_u24 {v(dst)}, 0xaaaa, {v(dst)}")
    A(f"v_add_u32 {v(dst)}, 0x4444, {v(dst)}")


def role_prologue(A, end):
    A("s_cmp_ge_u32 s2, 256")
    A(f"s_cbranch_scc1 {end}")
    A(f"s_load_dwordx8 {s(P_MEM0, 8)}, s[0:1], {KA['mem0']}")
    A(f"s_load_dwordx2 {s(P_WO, 2)}, s[0:1], {KA['Wo']}")
    A(f"s_load_dwordx4 {s(P_DBG, 4)}, s[0:1], {KA['dbg']}")
    A(f"s_getreg_b32 {s(S_XCC)}, hwreg(HW_REG_XCC_ID, 0, 4)")
    A(f"s_and_b32 {s(S_XCC)}, {s(S_XCC)}, 7")
    A("v_lshrrev_b32 v1, 6, v0")
    A("s_nop 0")
    A(f"v_readfirstlane_b32 {s(S_WAVE)}, v1")
    A("v_and_b32 v1, 63, v0")
    A("s_waitcnt lgkmcnt(0)")
    A.srd(SWS, P_WS, SIZE["ws"])
    A.srd(SDBG, P_DBG, SIZE["dbg"])
    A(f"s_mov_b32 {s(S_BUD)}, {BUDGET}")
    for i in range(4):
        A(f"s_mov_b32 {s(S_CNT + i)}, 0")
    got, loop, skip = A.new("rg"), A.new("rl"), A.new("rs")
    A(f"s_cmp_lg_u32 {s(S_WAVE)}, 0")
    A(f"s_cbranch_scc1 {skip}")
    A(f"s_mov_b32 {s(S_GRP)}, {s(S_XCC)}")
    A(f"s_mov_b32 {s(S_IRR)}, 0")
    A("s_mov_b64 exec, 1")
    A.label(loop)
    A(f"v_lshlrev_b32 v2, 5, {s(S_GRP)}")
    A("v_mov_b32 v3, 1")
    A(f"buffer_atomic_add v3, v2, {s(SDBG, 4)}, 0 offen sc0 sc1")
    A("s_waitcnt vmcnt(0)")
    A(f"v_readfirstlane_b32 {s(S_TK)}, v3")
    A("s_nop 3")
    A(f"s_cmp_lt_u32 {s(S_TK)}, 32")
    A(f"s_cbranch_scc1 {got}")
    A(f"s_add_u32 {s(S_GRP)}, {s(S_GRP)}, 1")
    A(f"s_and_b32 {s(S_GRP)}, {s(S_GRP)}, 7")
    A(f"s_add_u32 {s(S_IRR)}, {s(S_IRR)}, 1")
    A(f"s_cmp_lt_u32 {s(S_IRR)}, 8")
    A(f"s_cbranch_scc1 {loop}")
    A.label(got)
    A(f"s_lshl_b32 {s(S_T0)}, {s(S_GRP)}, 8")
    A(f"s_min_u32 {s(S_TK)}, {s(S_TK)}, 255")
    A(f"s_or_b32 {s(S_T0)}, {s(S_T0)}, {s(S_TK)}")
    A(f"s_lshl_b32 {s(S_T1)}, {s(S_IRR)}, 16")
    A(f"s_or_b32 {s(S_T0)}, {s(S_T0)}, {s(S_T1)}")
    A(f"v_mov_b32 v3, {s(S_T0)}")
    A("v_mov_b32 v2, 0")
    A("ds_write_b32 v2, v3")
    A("s_mov_b64 exec, -1")
    A.label(skip)
    A("s_waitcnt lgkmcnt(0)")
    A("s_barrier")
    A("v_mov_b32 v2, 0")
    A("ds_read_b32 v3, v2")
    A("s_waitcnt lgkmcnt(0)")
    A(f"v_readfirstlane_b32 {s(S_T0)}, v3")
    A("s_barrier")
    A(f"s_and_b32 {s(S_TK)}, {s(S_T0)}, 255")
    A(f"s_bfe_u32 {s(S_GRP)}, {s(S_T0)}, 0x80008")
    A(f"s_lshr_b32 {s(S_IRR)}, {s(S_T0)}, 16")
    A(f"s_min_u32 {s(S_IRR)}, {s(S_IRR)}, 1")
    A(f"s_cmp_ge_u32 {s(S_TK)}, 32")
    A(f"s_cbranch_scc1 {end}")
    A.c("the roles that must start first take the first tickets")
    A(f"s_cmp_ge_u32 {s(S_GRP)}, 4")
    A(f"s_cselect_b32 {s(S_T0)}, 16, 24")
    A(f"s_add_u32 {s(S_TK)}, {s(S_TK)}, {s(S_T0)}")
    A(f"s_and_b32 {s(S_TK)}, {s(S_TK)}, 31")


def arrive(A, add_reg, hi=False, wait=True, join=True, t=48):
    skip = A.new("ar")
    if wait:
        A("s_waitcnt vmcnt(0)")
    if join:
        A("s_barrier")
    A(f"s_cmp_lg_u32 {s(S_WAVE)}, 0")
    A(f"s_cbranch_scc1 {skip}")
    A("s_mov_b64 exec, 1")
    A(f"v_mov_b32 {v(t)}, {144 if hi else 16}")
    A(f"v_mov_b32 {v(t + 1)}, {s(add_reg)}")
    A(f"buffer_atomic_add {v(t + 1)}, {v(t)}, {s(SDBG, 4)}, 0 offen sc1")
    A("s_mov_b64 exec, -1")
    A.label(skip)


def await_start(A, abort, t=48, hi_only=False, probed=False, join=True):
    loop, out = A.new("st"), A.new("so")
    A.label(loop)
    A(f"buffer_load_dword {v(t)}, off, {s(SDBG, 4)}, 0 offset:{144 if hi_only else 16} sc1")
    A(f"buffer_load_dword {v(t + 1)}, off, {s(SDBG, 4)}, 0 offset:144 sc1")
    A("s_waitcnt vmcnt(0)")
    A(f"v_add_u32 {v(t)}, {v(t)}, {v(t + 1)}")
    A("s_nop 0")
    A(f"v_readfirstlane_b32 {s(S_T0)}, {v(t)}")
    A("s_nop 3")
    A(f"s_and_b32 {s(S_T1)}, {s(S_T0)}, {hex(0x200ffff if probed else 0xffff)}")
    A(f"s_cmp_eq_u32 {s(S_T1)}, {hex(0x2000100 if probed else 0x100)}")
    A(f"s_cbranch_scc1 {out}")
    spend(A, abort)
    A("s_sleep 8")
    A(f"s_branch {loop}")
    A.label(out)
    A(f"s_bfe_u32 {s(S_IRR)}, {s(S_T0)}, 0x80010")
    A(f"s_bfe_u32 {s(S_PAR)}, {s(S_T0)}, 0x10018")
    A(f"s_lshl_b32 {s(S_PAR)}, {s(S_PAR)}, 13")
    if join:
        A("s_barrier")


def probe(A, lane, dst, dbg=False):
    skip = A.new("pb")
    A(f"s_cmp_lg_u32 {s(S_WAVE)}, 0")
    A(f"s_cbranch_scc1 {skip}")
    A(f"v_lshlrev_b32 v52, 8, {v(lane)}")
    A("v_mov_b32 v53, -1")
    A(f"s_mov_b32 {s(S_T3)}, {L.XRING + 0x8000}")
    A(f"buffer_store_dword v53, v52, {s(SWS, 4)}, {s(S_T3)} offen sc1")
    A("s_waitcnt vmcnt(0)")
    A("s_mov_b64 exec, 1")
    for h in range(2):
        A(f"s_mov_b32 {s(60 + h)}, -1")
    loop = A.new("pl")
    A("v_mov_b32 v52, 0")
    A("s_mov_b32 s66, 5")
    A.label(loop)
    for h in range(2):
        A(f"s_memtime {s(62, 2)}")
        A("s_waitcnt lgkmcnt(0)")
        A(f"buffer_load_dword v53, v52, {s(SWS, 4)}, {s(S_T3)} offen sc1")
        A("s_waitcnt vmcnt(0)")
        A(f"s_memtime {s(64, 2)}")
        A("s_waitcnt lgkmcnt(0)")
        A("s_sub_u32 s62, s64, s62")
        A(f"s_min_u32 {s(60 + h)}, {s(60 + h)}, s62")
        A(f"v_add_u32 v52, {8192 if h == 0 else 1280 - 8192}, v52")
    A("s_sub_u32 s66, s66, 1")
    A("s_cmp_lg_u32 s66, 0")
    A(f"s_cbranch_scc1 {loop}")
    A("s_mov_b64 exec, -1")
    if dbg:
        A("v_mov_b32 v52, s60")
        A("v_mov_b32 v53, s61")
        A(f"buffer_store_dwordx2 v[52:53], off, {s(SDBG, 4)}, 0 offset:48")
    A("s_cmp_lt_u32 s61, s60")
    A("s_cselect_b32 s62, 1, 0")
    A(f"s_lshr_b32 s63, {s(S_XCC)}, 2")
    A("s_xor_b32 s62, s62, s63")
    A("s_lshl_b32 s62, s62, 24")
    A(f"s_or_b32 {s(dst)}, {s(dst)}, s62")
    A.label(skip)


def xcopy(rr):
    return ((rr & 1) << 20) + ((rr >> 1) << 15)


def x_offsets(A, cfg, dst, slot):
    A(f"s_lshl_b32 {s(dst)}, {s(slot)}, 18")
    A(f"s_add_u32 {s(dst)}, {s(dst)}, {s(S_PAR)}")
    for rr in range(1, cfg.nrep):
        A(f"s_add_u32 {s(dst + rr)}, {s(dst)}, {hex(xcopy(rr))}")


def progress_addr(A, dst, lane, base, index, tmp, word=0):
    A(f"s_lshl_b32 {s(S_T0)}, {s(index)}, 5")
    A(f"s_add_u32 {s(S_T0)}, {s(S_T0)}, {s(S_WAVE)}")
    A(f"s_lshl_b32 {s(S_T0)}, {s(S_T0)}, 2")
    A(f"s_add_u32 {s(S_T0)}, {s(S_T0)}, {base + 4 * word}")
    A(f"v_min_u32 {v(tmp)}, 1, {v(lane)}")
    A(f"v_lshl_add_u32 {v(dst)}, {v(tmp)}, 30, {s(S_T0)}")


def line_addr(A, dst, tid, base, index, tmp):
    A(f"s_lshl_b32 {s(S_T0)}, {s(index)}, 7")
    A(f"s_add_u32 {s(S_T0)}, {s(S_T0)}, {base}")
    A(f"v_min_u32 {v(tmp)}, 1, {v(tid)}")
    A(f"v_lshl_add_u32 {v(dst)}, {v(tmp)}, 30, {s(S_T0)}")


def lines_addr(A, dst, lane, nlines, shift=7):
    A(f"v_min_u32 {v(dst)}, {nlines - 1}, {v(lane)}")
    A(f"v_lshlrev_b32 {v(dst)}, {shift}, {v(dst)}")


def words_addr(A, dst, lane, nlines, tmp, shift=2):
    A(f"v_lshrrev_b32 {v(tmp)}, 2, {v(lane)}")
    A(f"v_min_u32 {v(tmp)}, {nlines - 1}, {v(tmp)}")
    A(f"v_lshlrev_b32 {v(tmp)}, 7, {v(tmp)}")
    A(f"v_and_b32 {v(dst)}, 3, {v(lane)}")
    A(f"v_lshl_add_u32 {v(dst)}, {v(dst)}, {shift}, {v(tmp)}")


def block_on(A, ld, test, abort, sleep=2):
    top, out = A.new("bw"), A.new("bo")
    A.label(top)
    ld()
    A("s_waitcnt vmcnt(0)")
    test()
    A(f"s_cbranch_vccz {out}")
    spend(A, abort)
    A(f"s_sleep {sleep}")
    A(f"s_branch {top}")
    A.label(out)


def ring_slots(A):
    A(f"s_and_b32 {s(S_T0)}, {s(S_STEP)}, 3")
    A(f"s_lshl_b32 {s(S_T1)}, {s(S_T0)}, 16")
    A(f"s_add_u32 {s(S_CUR)}, {s(S_T1)}, {s(S_RBASE)}")
    A(f"s_xor_b32 {s(S_RST)}, {s(S_CUR)}, 0x20000")
    A(f"s_add_u32 {s(S_TAG)}, {s(S_STEP)}, 1")


def kvo_role(A, cfg, end):
    LRX, FOR, FMW, SEL, FBUF, TAGV = 0, 1, 2, 3, 4, 7
    VG, VGO, PUBM, PUBK, XOWN, XP, HT, LWS, PUBV = 8, 9, 10, 11, 12, 13, 16, 24, 27
    AP, ACK, ACV, ACO, HS, RD, SUM, PW, QD, CHK, XL, SENT, IDX = 28, 44, 60, 76, 92, 100, 106, 108, 109, 110, 112, 4, 126
    WK, WO, WV = 256, 256 + 128, 128
    RK, RV, RO = 0, 6144, 12288
    S_CI, S_X3 = 54, 57
    A.c("KVO role: 64-column slices of the k, v and output projections of head group S_GRP;")
    A.c("each wave covers a quarter of the rows; slot s of wave w holds column tile w^3^s")
    A("v_mov_b32 v44, v0")
    A("v_mov_b32 v45, v1")
    TID, LANE = 44, 45
    t2, t3, t4 = 46, 47, 50
    A(f"s_sub_u32 {s(S_CI)}, {s(S_TK)}, 8")
    A(f"s_xor_b32 {s(S_X3)}, {s(S_WAVE)}, 3")
    A(f"s_lshl_b32 {s(S_RBASE)}, {s(S_GRP)}, 18")
    A(f"s_add_u32 {s(S_RBASE)}, {s(S_RBASE)}, {L.LRING}")
    A(f"s_lshl_b32 {s(S_FB)}, {s(S_GRP)}, 12")
    A(f"s_add_u32 {s(S_FB)}, {s(S_FB)}, {L.FLAGS}")
    A(f"s_lshl_b32 {s(S_T0)}, {s(S_WAVE)}, 12")
    A(f"v_lshl_add_u32 {v(VG)}, {v(LANE)}, 4, {s(S_T0)}")
    A(f"v_add_u32 {v(VGO)}, 49152, {v(VG)}")
    A(f"s_lshl_b32 {s(S_T0)}, {s(S_CI)}, 10")
    A(f"s_lshl_b32 {s(S_T1)}, {s(S_WAVE)}, 8")
    A(f"s_add_u32 {s(S_T1)}, {s(S_T1)}, {s(S_T0)}")
    A(f"v_mov_b32 {v(PUBM)}, {s(S_T1)}")
    for bit, width, sh in ((1, 2, 6), (5, 1, 5), (0, 1, 4), (4, 1, 3), (3, 1, 30)):
        A(f"v_bfe_u32 {v(t2)}, {v(LANE)}, {bit}, {width}")
        A(f"v_lshl_add_u32 {v(PUBM)}, {v(t2)}, {sh}, {v(PUBM)}")
    A(f"v_and_b32 {v(t2)}, 0xf0, {v(TID)}")
    A(f"v_lshl_add_u32 {v(PUBK)}, {v(t2)}, 2, {s(S_T0)}")
    A(f"v_and_b32 {v(t2)}, 3, {v(LANE)}")
    A(f"v_lshl_add_u32 {v(PUBK)}, {v(t2)}, 4, {v(PUBK)}")
    A(f"v_and_b32 {v(t2)}, 12, {v(LANE)}")
    A(f"v_add_u32 {v(PUBK)}, {v(PUBK)}, {v(t2)}")
    A(f"v_xor_b32 {v(PUBK)}, {16384 + (4 << 10)}, {v(PUBK)}")
    A(f"s_lshr_b32 {s(S_T1)}, {s(S_WAVE)}, 1")
    A(f"s_lshl_b32 {s(S_T1)}, {s(S_T1)}, 9")
    A(f"s_add_u32 {s(S_T0)}, {s(S_T0)}, {s(S_T1)}")
    A(f"s_and_b32 {s(S_T1)}, {s(S_WAVE)}, 1")
    A(f"s_lshl_b32 {s(S_T1)}, {s(S_T1)}, 2")
    A(f"s_add_u32 {s(S_T0)}, {s(S_T0)}, {s(S_T1)}")
    A(f"s_xor_b32 {s(S_T0)}, {s(S_T0)}, {32768 + (2 << 10)}")
    A(f"v_lshl_add_u32 {v(PUBV)}, {v(LANE)}, 3, {s(S_T0)}")
    A(f"s_lshl_b32 {s(S_T0)}, {s(S_WAVE)}, 8")
    A(f"s_add_u32 {s(S_T0)}, {s(S_T0)}, 2048")
    A(f"v_lshl_add_u32 {v(FOR)}, {v(LANE)}, 2, {s(S_T0)}")
    A(f"s_lshr_b32 {s(S_T0)}, {s(S_CI)}, 2")
    A(f"s_lshl_b32 {s(S_T0)}, {s(S_T0)}, 8")
    A(f"s_and_b32 {s(S_T1)}, {s(S_CI)}, 3")
    A(f"s_lshl_b32 {s(S_T1)}, {s(S_T1)}, 2")
    A(f"s_add_u32 {s(S_T0)}, {s(S_T0)}, {s(S_T1)}")
    A(f"v_min_u32 {v(t2)}, 1, {v(TID)}")
    A(f"v_lshl_add_u32 {v(FMW)}, {v(t2)}, 30, {s(S_T0)}")
    A(f"s_lshr_b32 {s(S_T0)}, {s(S_CI)}, 3")
    A(f"s_lshl_b32 {s(S_T0)}, {s(S_T0)}, 14")
    A(f"s_and_b32 {s(S_T1)}, {s(S_CI)}, 7")
    A(f"s_lshl_b32 {s(S_T1)}, {s(S_T1)}, 10")
    A(f"s_add_u32 {s(S_T0)}, {s(S_T0)}, {s(S_T1)}")
    A(f"s_lshl_b32 {s(S_T1)}, {s(S_GRP)}, 16")
    A(f"s_add_u32 {s(S_T0)}, {s(S_T0)}, {s(S_T1)}")
    A(f"v_lshl_add_u32 {v(XOWN)}, {v(TID)}, 2, {s(S_T0)}")
    for j in range(3):
        A(f"v_xor_b32 {v(XP + j)}, {hex((j + 1) << 16)}, {v(XOWN)}")
    sparse_index(A, IDX, LANE)
    for i in range(3):
        A(f"s_xor_b32 {s(S_T0)}, {s(S_X3)}, {i}")
        A(f"s_mul_i32 {s(S_T0)}, {s(S_T0)}, 1536")
        A(f"s_add_u32 {s(S_T0)}, {s(S_T0)}, {512 * i}")
        A(f"v_lshl_add_u32 {v(LWS + i)}, {v(LANE)}, 3, {s(S_T0)}")
    A(f"s_mul_i32 {s(S_T0)}, {s(S_WAVE)}, 1536")
    A(f"v_lshl_add_u32 {v(LRX)}, {v(LANE)}, 3, {s(S_T0)}")
    A(f"v_and_b32 {v(t2)}, 1, {v(LANE)}")
    A(f"v_mov_b32 {v(SEL)}, 0x05040100")
    A(f"v_mov_b32 {v(t3)}, 0x03020706")
    A(f"v_cmp_eq_u32 vcc, 1, {v(t2)}")
    A("s_nop 1")
    A(f"v_cndmask_b32 {v(SEL)}, {v(SEL)}, {v(t3)}, vcc")
    A(f"v_and_b32 {v(t2)}, 7, {v(LANE)}")
    A(f"v_lshrrev_b32 {v(t3)}, 4, {v(LANE)}")
    A(f"v_lshlrev_b32 {v(t4)}, 3, {v(t3)}")
    A(f"v_lshl_add_u32 v57, {v(t2)}, 11, {v(t4)}")
    A.srd(SW, P_MEM0, SIZE["mem0"])
    A(f"v_bfe_u32 {v(t2)}, {v(LANE)}, 1, 3")
    A(f"v_cmp_eq_u32 vcc, {v(t2)}, {v(t3)}")
    A(f"v_and_b32 {v(t2)}, 1, {v(LANE)}")
    A(f"v_lshlrev_b32 {v(t2)}, 4, {v(t2)}")
    A(f"v_mov_b32 {v(t3)}, 0x3f80")
    A(f"v_lshlrev_b32 {v(t2)}, {v(t2)}, {v(t3)}")
    for i in range(4):
        A(f"v_cndmask_b32 {v(HT + 4 + i)}, 0, {v(t2)}, vcc")
    A(f"v_mov_b32 {v(SENT)}, -1")
    A(f"v_mov_b32 {v(SENT + 1)}, -1")

    def unwritten(soff, fl):
        A(f"buffer_store_dwordx2 {v(SENT, 2)}, {v(PUBM)}, {s(SWS, 4)}, {s(soff)} offen{fl}")
        for reg in (PUBK, PUBV):
            A(f"buffer_store_dword {v(SENT)}, {v(reg)}, {s(SWS, 4)}, {s(soff)} offen{fl}")
    A.c("'not written' marks in every ring slot this workgroup owns")
    for slot in range(4):
        A(f"s_add_u32 {s(S_T0)}, {s(S_RBASE)}, {slot << 16}")
        unwritten(S_T0, " sc1")
        for k in range(2 * cfg.nrep):
            A(f"s_mov_b32 {s(S_T1)}, {L.XRING + (slot << 18) + ((k & 1) << 13) + xcopy(k >> 1)}")
            A(f"buffer_store_dword {v(SENT)}, {v(XOWN)}, {s(SWS, 4)}, {s(S_T1)} offen sc1")
    A(f"v_mov_b32 {v(TAGV)}, 1")
    A(f"buffer_store_dword {v(TAGV)}, {v(FMW)}, {s(SWS, 4)}, {s(S_FB)} offen sc1")
    A(f"s_lshl_b32 {s(S_T2)}, {s(S_IRR)}, 16")
    A(f"s_or_b32 {s(S_T2)}, {s(S_T2)}, 1")
    arrive(A, S_T2)
    A(f"s_lshl_b32 {s(S_T0)}, {s(S_CI)}, 2")
    A(f"s_add_u32 {s(S_T0)}, {s(S_T0)}, {s(S_WAVE)}")
    A(f"s_lshl_b32 {s(S_T0)}, {s(S_T0)}, 5")
    A(f"buffer_load_dwordx2 v[58:59], v57, {s(SW, 4)}, {s(S_T0)} offen")

    def first():
        A("v_min_u32 v58, -2, v58")
        A("v_min_u32 v59, -2, v59")
        A(f"buffer_store_dwordx2 v[58:59], {v(PUBM)}, {s(SWS, 4)}, {s(S_RBASE)} offen sc1")
    A.c("weights into registers")
    GK, GV, GO, TK, TV, TO = 51, 52, 53, 54, 55, 56
    A(f"s_lshl_b32 {s(S_T2)}, {s(S_X3)}, 5")
    glob_addr(A, GV, LANE, 13, S_T2, t2)
    glob_addr(A, GO, LANE, 11, S_T2, t2)
    A(f"s_and_b32 {s(S_T3)}, {s(S_T2)}, 32")
    A(f"s_lshr_b32 {s(S_T3)}, {s(S_T3)}, 1")
    A(f"s_and_b32 {s(S_T2)}, {s(S_T2)}, 64")
    A(f"s_or_b32 {s(S_T2)}, {s(S_T2)}, {s(S_T3)}")
    glob_addr(A, GK, LANE, 13, S_T2, t2)
    for reg, kind in ((TK, "K"), (TV, "N"), (TO, "O")):
        tr_addr(A, reg, LANE, kind, t2)
    chunks = []
    for ptr, name, base, kind, vg, vt in ((P_WK, "Wk", WK, "K", GK, TK), (P_WV, "Wv", WV, "N", GV, TV), (P_WO, "Wo", WO, "O", GO, TO)):
        for j in range(4):
            def setup(ptr=ptr, name=name, j=j):
                A.srd(SW, ptr, SIZE[name])
                if name == "Wo":
                    A(f"s_lshl_b32 {s(S_T1)}, {s(S_GRP)}, 2")
                    A(f"s_add_u32 {s(S_T1)}, {s(S_T1)}, {s(S_WAVE)}")
                    A(f"s_lshl_b32 {s(S_T1)}, {s(S_T1)}, 19")
                    A(f"s_lshl_b32 {s(S_T0)}, {s(S_CI)}, 7")
                    A(f"s_add_u32 {s(S_T1)}, {s(S_T1)}, {s(S_T0)}")
                    A(f"s_add_u32 {s(S_T1)}, {s(S_T1)}, {j * 64 * 2048}")
                else:
                    A(f"s_lshl_b32 {s(S_T1)}, {s(S_WAVE)}, 21")
                    A(f"s_lshl_b32 {s(S_T0)}, {s(S_GRP)}, 4")
                    A(f"s_add_u32 {s(S_T0)}, {s(S_T0)}, {s(S_CI)}")
                    A(f"s_xor_b32 {s(S_T0)}, {s(S_T0)}, {4 if name == 'Wk' else 2}")
                    A(f"s_lshl_b32 {s(S_T0)}, {s(S_T0)}, 7")
                    A(f"s_add_u32 {s(S_T1)}, {s(S_T1)}, {s(S_T0)}")
                    A(f"s_add_u32 {s(S_T1)}, {s(S_T1)}, {j * 64 * 8192}")
            chunks.append((setup, 2048 if name == "Wo" else 8192, kind, vg, vt,
                           (lambda n, base=base, j=j: base + (j * 4 + n) * 8)))
    if cfg.meet:
        chunks = [chunks[i] for i in (3, 7, 2, 6, 1, 5, 0, 4, 8, 9, 10, 11)]
    load_weights(A, chunks, WFLAG[cfg.wlo], first, cfg.ramp_lo)
    cfg.mark(A, 1)
    await_start(A, end, probed=True)
    A.c("bring one sixteenth of the group's rings into L2")
    A(f"s_lshl_b32 {s(S_T0)}, {s(S_CI)}, 14")
    A(f"s_add_u32 {s(S_T0)}, {s(S_T0)}, {s(S_RBASE)}")
    for i in range(4):
        A(f"buffer_load_dwordx4 {v(AP + 4 * i, 4)}, {v(VG)}, {s(SWS, 4)}, {s(S_T0)} offen offset:{1024 * i} sc1")
    for q in range(48):
        A(f"v_mov_b32 {v(ACK + q)}, 0")
    A(f"s_mov_b32 {s(S_STEP)}, 0")
    ring_slots(A)
    slow_lbl = A.new("kvo_sc1")
    A(f"s_cmp_lg_u32 {s(S_IRR)}, 0")
    A(f"s_cbranch_scc1 {slow_lbl}")

    sm = lambda acc, W, j, n: A(f"{SM} {v(acc + 4 * n, 4)}, {v(AP + 4 * j, 4)}, {r(W + (j * 4 + n) * 8, 8)}, {v(IDX)}")

    def ad(acc, n):
        for b in range(2):
            A(f"v_add_f32 {v(HS + 2 * n + b)}, {v(acc + 4 * n + b)}, {v(acc + 4 * n + 2 + b)}")

    def undo(acc, vin):
        def f():
            A.nop(8)
            for n in range(min(cfg.ksplit + vin, 3 + vin)):
                for q in range(2):
                    A(f"v_pk_mul_f32 {v((acc + 4 * n if n < 3 else ACV + 4 * (n - 3)) + 2 * q, 2)}, 0, 0")
        return f if cfg.spec else None

    def clear_acc():
        for q in range(24):
            A(f"v_pk_mul_f32 {v(ACK + 2 * q, 2)}, 0, 0")
    wr = lambda n, R: A(f"ds_write_b64 {v(LWS + n)}, {v(HS + 2 * n, 2)} offset:{R}")

    def gather(ld):
        for i in range(4):
            ld(i)
            pause(A, cfg, HT, cfg.lspace if i < 3 else cfg.ltail, 4)

    def proj(acc, W, R, vin=0):
        def f(j, lo, hi):
            for n in range(lo, hi):
                sm(acc, W, j, n) if n < 3 else sm(ACV, WV, j, n - 3)

        def last(j):
            for n in range(3):
                sm(acc, W, j, n)
                A("s_nop 1")
            ad(acc, 0)
            sm(acc, W, 0, 3)
            ad(acc, 1)
            wr(0, R)
            ad(acc, 2)
            wr(1, R)
            sm(acc, W, 1, 3)
            wr(2, R)
            sm(acc, W, 2, 3)
            sm(acc, W, 3, 3)
            f(j, 3, 3 + vin)
        sp = min(cfg.ksplit + vin, 3 + vin)
        return (lambda j, rest: f(j, 0, 3 + vin) if rest else last(j)), \
            (lambda j: f(j, 0, sp) if j < 3 else None, lambda j: f(j, sp, 3 + vin) if j < 3 else last(j))

    def collect(acc, R, fill, pad=0, packed=True):
        if packed:
            busy(A, CHK, cfg.fillw)
        A("s_waitcnt lgkmcnt(0)")
        A("s_barrier")
        for i in range(3):
            A(f"ds_read_b64 {v(RD + 2 * i, 2)}, {v(LRX)} offset:{R + 512 * i}")
        A.nop(pad)
        ad(acc, 3)
        fill()
        if packed:
            busy(A, CHK, cfg.fillr)
        A("s_waitcnt lgkmcnt(0)")
        if packed:
            A(f"v_pk_add_f32 {v(RD, 2)}, {v(RD, 2)}, {v(HS + 6, 2)}")
            A(f"v_pk_add_f32 {v(RD + 2, 2)}, {v(RD + 2, 2)}, {v(RD + 4, 2)}")
            A(f"v_pk_add_f32 {v(RD, 2)}, {v(RD, 2)}, {v(RD + 2, 2)}")
        else:
            for b in range(2):
                A(f"v_add_f32 {v(RD + b)}, {v(RD + b)}, {v(HS + 6 + b)}")
                A(f"v_add_f32 {v(RD + 2 + b)}, {v(RD + 2 + b)}, {v(RD + 4 + b)}")
            for b in range(2):
                A(f"v_add_f32 {v(RD + b)}, {v(RD + b)}, {v(RD + 2 + b)}")
        A(f"v_cvt_pk_bf16_f32 {v(PW)}, {v(RD)}, {v(RD + 1)}")

    def to_columns(x):
        A(f"v_mov_b32_dpp {v(QD)}, {v(x)} quad_perm:[1,0,3,2] row_mask:0xf bank_mask:0xf")
        A(f"v_perm_b32 {v(QD)}, {v(QD)}, {v(x)}, {v(SEL)}")

    def body(loc):
        top = A.new("kvo")
        ldm = lambda i, d=None: A(f"buffer_load_dwordx4 {v(d or AP + 4 * i, 4)}, {v(VG)}, {s(SWS, 4)}, {s(S_CUR)} offen offset:{1024 * i} sc1")
        ldo = lambda i, d=None: A(f"buffer_load_dwordx4 {v(d or AP + 4 * i, 4)}, {v(VGO)}, {s(SWS, 4)}, {s(S_CUR)} offen offset:{1024 * i} sc1")
        vq = [(j, n) for n in range(cfg.vin, 4) for j in range(4)]

        def vmf(k):
            for _ in range(k):
                if vq:
                    sm(ACV, WV, *vq.pop(0))

        A.label(top)
        gather(ldm)
        chk4 = lambda i: check(A, AP + 4 * i, 4, CHK)
        onfail = lambda c: (lambda first: count(A, cfg, c) if first else None)
        use, fast = proj(ACK, WK, RK, cfg.vin)
        done, slow1 = fsm_poll(A, 4, ldm, chk4, use, end, fast=fast, onfail=onfail(2), undo=undo(ACK, cfg.vin),
                               dense=(lambda st: len(st) == 1, ldm, AP, XL, cfg.dgap, CHK, cfg.dsets) if cfg.dense & 1 else None)
        A.label(done)
        stamp(A, cfg, 0)
        vmf(cfg.vk)
        collect(ACK, RK, lambda: vmf(cfg.vk2), 3, packed=False)
        A("s_nop 1")
        to_columns(PW)
        A(f"buffer_store_dword {v(QD)}, {v(PUBK)}, {s(SWS, 4)}, {s(S_CUR)} offen{loc}")
        stamp(A, cfg, 1)
        if len(vq) > 4:
            vmf(len(vq) - 4)
            A.nop(max(0, 7 - 3 * cfg.vin))
        left = len(vq)
        vmf(1)
        ad(ACV, 0)
        vmf(1)
        ad(ACV, 1)
        wr(0, RV)
        vmf(1)
        ad(ACV, 2)
        wr(1, RV)
        wr(2, RV)
        vmf(1)
        collect(ACV, RV, lambda: None, 3 if left == 4 else 0)
        A(f"buffer_store_dword {v(PW)}, {v(PUBV)}, {s(SWS, 4)}, {s(S_CUR)} offen{loc}")
        stamp(A, cfg, 2)
        flush_stamps(A, cfg, 8, 124, 125)
        A(f"s_cmp_eq_u32 {s(S_STEP)}, {cfg.nsteps - 1}")
        A(f"s_cbranch_scc1 {end}")
        A(f"v_add_u32 {v(TAGV)}, 1, {v(TAGV)}")
        A(f"s_and_b32 {s(S_T0)}, {s(S_STEP)}, 3")
        x_offsets(A, cfg, S_XC, S_T0)
        flag_wait(A, cfg, FOR, XL, 2, end, cfg.nap_o)
        A.nop(cfg.fo_wait)
        if cfg.fine >= 6:
            stamp(A, cfg, 6)
        gather(ldo)
        use, fast = proj(ACO, WO, RO)
        seen = []

        def chk4o(i):
            if len(seen) < 4 and cfg.fine == 10 + i:
                stamp(A, cfg, 7)
            seen.append(i)
            chk4(i)
        done, slow2 = fsm_poll(A, 4, ldo, chk4o, use, end, fast=fast, onfail=onfail(3), undo=undo(ACO, 0),
                               dense=(lambda st: len(st) == 1 or (cfg.dense & 8 and sorted(st) in ([0, 1], [2, 3])), ldo, AP, ACK,
                                      cfg.dgap, CHK, cfg.dsets) if cfg.dense & 2 else None)
        A.label(done)
        stamp(A, cfg, 3)
        collect(ACO, RO, lambda: None, 3)
        A.c("exchange of partial sums with the other groups")
        for rr in range(cfg.nrep):
            A(f"buffer_store_dword {v(PW)}, {v(XOWN)}, {s(SWS, 4)}, {s(S_XC + rr)} offen sc1")
        stamp(A, cfg, 4)
        A(f"s_waitcnt vmcnt({cfg.nrep})")
        unwritten(S_RST, loc)
        for k in range(3):
            A(f"v_mov_b32 {v(XL + 4 * k)}, {v(PW)}")
        A(f"s_add_u32 {s(S_STEP)}, {s(S_STEP)}, 1")
        ring_slots(A)

        def ldx(k):
            for j in range(3):
                A(f"buffer_load_dword {v(XL + 4 * (k % 3) + 1 + j)}, {v(XP + j)}, {s(SWS, 4)}, {s(S_XC + k % cfg.nrep)} offen sc1")
        events = sorted([(cfg.xdelay, 0), (cfg.xdelay + cfg.xgap, 1), (cfg.xdelay + cfg.xgap + cfg.xgap2, 2), (cfg.fm_delay, 3)])
        now = 0
        for t, e in events:
            pause(A, cfg, HT, max(0, t - now), 1)
            now = max(now, t)
            if e == 0 and cfg.fine < 6:
                stamp(A, cfg, 6)
            if e < 3:
                ldx(e)
                if e == 0:
                    clear_acc()
                    now += 8
            else:
                A(f"buffer_store_dword {v(TAGV)}, {v(FMW)}, {s(SWS, 4)}, {s(S_FB)} offen{loc}")
        heat(A, HT, cfg.xfill)
        x2, xsum = A.new("x2"), A.new("xs")

        def final(x):
            A(f"{MF} {v(RD, 4)}, {v(x, 4)}, {v(HT + 4, 4)}, 0")
            A(f"v_max3_u32 {v(CHK)}, {v(x + 1)}, {v(x + 2)}, {v(x + 3)}")
            A(f"v_cmp_eq_u32 vcc, -1, {v(CHK)}")
            A("s_nop 5")
            for i in range(2):
                A(f"v_cvt_pk_bf16_f32 {v(SUM + i)}, {v(RD + 2 * i)}, {v(RD + 2 * i + 1)}")
        A(f"s_waitcnt vmcnt({7 if cfg.fm_delay >= cfg.xdelay else 6})")
        if cfg.fine < 10:
            stamp(A, cfg, 7)
        final(XL)
        A(f"s_cbranch_vccnz {x2}")
        A.label(xsum)
        A(f"buffer_store_dwordx2 {v(SUM, 2)}, {v(PUBM)}, {s(SWS, 4)}, {s(S_CUR)} offen{loc}")
        stamp(A, cfg, 5)
        pause(A, cfg, HT, cfg.mdelay, 3)
        A(f"s_branch {top}")
        A.label(x2)
        count(A, cfg, 0)
        for k in range(6):
            ldx(k + 3)
            A("s_waitcnt vmcnt(6)")
            final(XL + 4 * ((k + 1) % 3))
            A(f"s_cbranch_vccz {xsum}")
            count(A, cfg, 1)
        spend(A, end)
        A(f"s_branch {x2}")
        slow1()
        slow2()

    A.c("all members of the group share one L2: hand-offs inside the group use plain stores")
    body("")
    A.label(slow_lbl)
    A.c("some member runs on another die: every hand-off is written through")
    body(" sc1")


def q_role(A, cfg, end):
    WIN = 0
    VG, VK, VVA, VVB, VO, IDX, LR, QW, QR, LWS = 10, 11, 12, 13, 14, 15, 18, 19, 20, 211
    PFG, RDK, RDQ, RDVA, RDVB, OTA, OTB = 21, 22, 23, 24, 25, 26, 27
    FMR, FOW, FBUF, TAGV, XCL, POW, PQA, PQV, PQB = 192, 193, 194, 197, 198, 199, 208, 209, 210
    SENT, ONES, BIAS, CHK, T1, T2, T3 = 28, 32, 36, 44, 45, 46, 47
    AP, ACQ = 48, 64
    SX, SMM, RD, PX, LA, TM = 64, 72, 76, 76, 84, 88
    QOP, OA, KC, VM, PK = 96, 96, 112, 120, 124
    ST = 128
    SLOT0, SLOTX = 32768, 0x18000
    WQ = 256
    RQ, RB, HS = 0, 12288, 96
    HT, POV = 200, 214
    TID, LANE = 48, 49
    S_HEAD, S_PARW, S_EH, S_LDS, S_PQ, S_NEED = 54, 55, 56, 57, 58, 27
    A.c("Q role: q projection and attention of one head")
    if (cfg.gate or cfg.gate2 or cfg.gate3) and not cfg.gate_entry:
        A("s_memrealtime s[90:91]")
    A(f"v_mov_b32 {v(TID)}, v0")
    A(f"v_mov_b32 v50, v1")
    LANE = 50
    A(f"s_lshl_b32 {s(S_HEAD)}, {s(S_GRP)}, 3")
    A(f"s_add_u32 {s(S_HEAD)}, {s(S_HEAD)}, {s(S_TK)}")
    A(f"s_and_b32 {s(S_PARW)}, {s(S_WAVE)}, 1")
    A(f"s_lshr_b32 {s(S_EH)}, {s(S_WAVE)}, 1")
    A(f"s_lshl_b32 {s(S_RBASE)}, {s(S_GRP)}, 18")
    A(f"s_add_u32 {s(S_RBASE)}, {s(S_RBASE)}, {L.LRING}")
    A(f"s_lshl_b32 {s(S_T0)}, {s(S_WAVE)}, 12")
    A(f"v_lshl_add_u32 {v(VG)}, {v(LANE)}, 4, {s(S_T0)}")
    A(f"s_lshl_b32 {s(S_T0)}, {s(S_TK)}, 11")
    A(f"s_add_u32 {s(S_T1)}, {s(S_T0)}, 16384")
    A(f"v_lshl_add_u32 {v(VK)}, {v(LANE)}, 4, {s(S_T1)}")
    A(f"s_lshl_b32 {s(S_T1)}, {s(S_EH)}, 10")
    A(f"s_add_u32 {s(S_T0)}, {s(S_T0)}, {s(S_T1)}")
    A(f"s_lshl_b32 {s(S_T1)}, {s(S_PARW)}, 9")
    A(f"s_add_u32 {s(S_T1)}, {s(S_T1)}, {s(S_T0)}")
    A(f"s_add_u32 {s(S_T1)}, {s(S_T1)}, 32768")
    A(f"v_lshl_add_u32 {v(VVA)}, {v(LANE)}, 3, {s(S_T1)}")
    A(f"v_xor_b32 {v(VVB)}, 512, {v(VVA)}")
    A(f"s_add_u32 {s(S_T1)}, {s(S_T1)}, 16384")
    A(f"v_mov_b32 {v(VO)}, {s(S_T1)}")
    for bit, width, sh in ((5, 1, 8), (1, 2, 6), (4, 1, 5), (0, 1, 4), (3, 1, 30)):
        A(f"v_bfe_u32 v51, {v(LANE)}, {bit}, {width}")
        A(f"v_lshl_add_u32 {v(VO)}, v51, {sh}, {v(VO)}")
    sparse_index(A, IDX, LANE)
    for i in range(8):
        A(f"v_mov_b32 {v(HT + i)}, 0")
    for i in range(3):
        A(f"s_xor_b32 {s(S_T0)}, {s(S_WAVE)}, {3 ^ i}")
        A(f"s_mul_i32 {s(S_T0)}, {s(S_T0)}, 3072")
        A(f"s_add_u32 {s(S_T0)}, {s(S_T0)}, {1024 * i}")
        A(f"v_lshl_add_u32 {v(LWS + i)}, {v(LANE)}, 4, {s(S_T0)}")
    A(f"s_mul_i32 {s(S_T0)}, {s(S_WAVE)}, 3072")
    A(f"v_lshl_add_u32 {v(LR)}, {v(LANE)}, 4, {s(S_T0)}")
    A(f"s_lshl_b32 {s(S_T0)}, {s(S_WAVE)}, 9")
    A(f"v_and_b32 v51, 15, {v(LANE)}")
    A(f"v_lshl_add_u32 {v(QW)}, v51, 4, {s(S_T0)}")
    A(f"v_lshrrev_b32 v51, 4, {v(LANE)}")
    A(f"v_lshl_add_u32 {v(QW)}, v51, 2, {v(QW)}")
    A(f"v_lshrrev_b32 v51, 2, {v(LANE)}")
    A(f"v_and_b32 v52, 1, {v(LANE)}")
    A(f"v_lshlrev_b32 v52, 3, v52")
    A(f"v_lshl_add_u32 {v(QR)}, v51, 4, v52")
    A(f"v_lshlrev_b32 v51, 4, {v(LANE)}")
    A(f"s_mul_i32 {s(S_T0)}, {s(S_WAVE)}, 6144")
    A(f"v_add_u32 {v(PFG)}, {s(S_T0)}, v51")
    A(f"s_add_u32 {s(S_LDS)}, {s(S_T0)}, {SLOT0}")
    A(f"v_add_u32 {v(RDK)}, {SLOT0 + 8192}, v51")
    A(f"s_lshl_b32 {s(S_T0)}, {s(S_PARW)}, 12")
    A(f"s_add_u32 {s(S_T0)}, {s(S_T0)}, {SLOT0}")
    A(f"v_add_u32 {v(RDQ)}, {s(S_T0)}, v51")
    A(f"s_lshl_b32 {s(S_T0)}, {s(S_WAVE)}, 11")
    A(f"s_add_u32 {s(S_T0)}, {s(S_T0)}, {SLOT0 + 16384}")
    A(f"v_add_u32 {v(RDVA)}, {s(S_T0)}, v51")
    A(f"v_xor_b32 {v(RDVB)}, 2048, {v(RDVA)}")
    A(f"s_lshl_b32 {s(S_FB)}, {s(S_GRP)}, 12")
    A(f"s_add_u32 {s(S_FB)}, {s(S_FB)}, {L.FLAGS}")
    A(f"s_lshl_b32 {s(S_T0)}, {s(S_WAVE)}, 8")
    A(f"v_lshl_add_u32 {v(FMR)}, {v(LANE)}, 2, {s(S_T0)}")
    A(f"s_lshr_b32 {s(S_T0)}, {s(S_TK)}, 1")
    A(f"s_lshl_b32 {s(S_T0)}, {s(S_T0)}, 8")
    A(f"s_and_b32 {s(S_T1)}, {s(S_TK)}, 1")
    A(f"s_lshl_b32 {s(S_T1)}, {s(S_T1)}, 2")
    A(f"s_add_u32 {s(S_T0)}, {s(S_T0)}, {s(S_T1)}")
    A(f"s_add_u32 {s(S_T0)}, {s(S_T0)}, 2048")
    A(f"v_min_u32 v52, 1, {v(TID)}")
    A(f"v_lshl_add_u32 {v(FOW)}, v52, 30, {s(S_T0)}")
    A(f"v_mov_b32 {v(TAGV)}, 0")
    A(f"buffer_store_dword {v(TAGV)}, {v(FOW)}, {s(SWS, 4)}, {s(S_FB)} offen sc1")
    XN = 2 if cfg.xbf else 4
    A(f"s_lshr_b32 {s(S_T0)}, {s(S_TK)}, {2 if cfg.xbf else 1}")
    A(f"s_lshl_b32 {s(S_T0)}, {s(S_T0)}, 14")
    A(f"s_and_b32 {s(S_T1)}, {s(S_TK)}, {3 if cfg.xbf else 1}")
    A(f"s_lshl_b32 {s(S_T1)}, {s(S_T1)}, {11 if cfg.xbf else 12}")
    A(f"s_add_u32 {s(S_T0)}, {s(S_T0)}, {s(S_T1)}")
    A(f"s_lshl_b32 {s(S_T1)}, {s(S_GRP)}, 16")
    A(f"s_add_u32 {s(S_T0)}, {s(S_T0)}, {s(S_T1)}")
    A(f"v_lshl_add_u32 {v(XCL)}, {v(TID)}, {3 if cfg.xbf else 4}, {s(S_T0)}")
    A(f"s_lshl_b32 {s(S_T0)}, {s(S_HEAD)}, 2")
    A(f"s_add_u32 {s(S_T0)}, {s(S_T0)}, {s(S_WAVE)}")
    A(f"s_lshl_b32 {s(S_T0)}, {s(S_T0)}, 11")
    A(f"s_lshl_b32 {s(S_T1)}, {s(S_PARW)}, 10")
    A(f"s_add_u32 {s(S_T0)}, {s(S_T0)}, {s(S_T1)}")
    A(f"v_add_u32 {v(OTA)}, {s(S_T0)}, v51")
    A(f"v_xor_b32 {v(OTB)}, 2048, {v(OTA)}")
    progress_addr(A, POW, LANE, L.PO, S_HEAD, 52)
    A(f"buffer_store_dword {v(TAGV)}, {v(POW)}, {s(SWS, 4)}, 0 offen sc1")
    lines_addr(A, 53, LANE, 16)
    A(f"s_lshr_b32 {s(S_T0)}, {s(S_HEAD)}, 2")
    A(f"s_lshl_b32 {s(S_T0)}, {s(S_T0)}, 10")
    A(f"s_add_u32 {s(S_T0)}, {s(S_T0)}, {L.PQ}")
    A(f"v_add_u32 {v(PQA)}, {s(S_T0)}, v53")
    A(f"s_lshl_b32 {s(S_T0)}, {s(S_GRP)}, 10")
    A(f"s_add_u32 {s(S_T0)}, {s(S_T0)}, {L.PB - 1024}")
    A(f"v_add_u32 v53, {s(S_T0)}, v53")
    A(f"v_cmp_lt_u32 vcc, 7, {v(LANE)}")
    A("s_nop 1")
    A(f"v_cndmask_b32 {v(PQA)}, {v(PQA)}, v53, vcc")
    A(f"v_cndmask_b32 {v(PQB)}, 0, 8, vcc")
    for i in range(4):
        A(f"v_mov_b32 {v(SENT + i)}, -1")
        A(f"v_mov_b32 {v(ONES + i)}, 0x3f803f80")
    A(f"v_and_b32 v51, 15, {v(LANE)}")
    A(f"s_lshl_b32 {s(S_T0)}, {s(S_PARW)}, 4")
    A(f"v_add_u32 v51, {s(S_T0)}, v51")
    A(f"v_lshrrev_b32 v52, 4, {v(LANE)}")
    A(f"v_lshlrev_b32 v52, 2, v52")
    A(f"v_mov_b32 v54, 0xf149f2ca")
    for T in range(2):
        for q in range(4):
            A(f"v_add_u32 v53, {16 * T + q}, v52")
            A(f"v_cmp_gt_u32 vcc, v53, v51")
            A("s_nop 1")
            A(f"v_cndmask_b32 {v(BIAS + 4 * T + q)}, 0, v54, vcc")
    for i in range(10):
        A(f"v_mov_b32 {v(WIN + i)}, 0")
    A(f"s_mov_b32 {s(S_C)}, 0x3e0293ee")
    A(f"s_mov_b32 {s(S_NC)}, 0xbe0293ee")
    for slot in range(4):
        A(f"s_add_u32 {s(S_T0)}, {s(S_RBASE)}, {slot << 16}")
        A(f"buffer_store_dwordx4 {v(SENT, 4)}, {v(VO)}, {s(SWS, 4)}, {s(S_T0)} offen sc1")
    A(f"s_lshl_b32 {s(S_T2)}, {s(S_IRR)}, 16")
    A(f"s_or_b32 {s(S_T2)}, {s(S_T2)}, 1")
    arrive(A, S_T2)
    for hf in range(2):
        A(f"s_xor_b32 {s(S_T2)}, {s(S_WAVE)}, {3 ^ (2 * hf)}")
        A(f"s_lshl_b32 {s(S_T2)}, {s(S_T2)}, 6")
        glob_addr(A, 51 + hf, LANE, 13, S_T2, 54)
    tr_addr(A, 53, LANE, "N", 54)
    A.srd(SW, P_WQ, SIZE["Wq"])
    chunks = []
    for j in range(4):
        for hf in range(2):
            def setup(j=j):
                A(f"s_lshl_b32 {s(S_T1)}, {s(S_WAVE)}, 21")
                A(f"s_lshl_b32 {s(S_T0)}, {s(S_HEAD)}, 8")
                A(f"s_add_u32 {s(S_T1)}, {s(S_T1)}, {s(S_T0)}")
                A(f"s_add_u32 {s(S_T1)}, {s(S_T1)}, {j * 64 * 8192}")
            chunks.append((setup, 8192, "N", 51 + hf, 53, (lambda n, j=j, hf=hf: WQ + (j * 8 + hf * 4 + n) * 8)))
    load_weights(A, chunks[::-1] if cfg.meet else chunks, WFLAG[cfg.wlo], None, cfg.ramp_lo)
    cfg.mark(A, 1)
    noprobe = A.new("np")
    A(f"s_cmp_lg_u32 {s(S_HEAD)}, 0")
    A(f"s_cbranch_scc1 {noprobe}")
    A("s_barrier")
    A(f"s_mov_b32 {s(S_T2)}, 0x2000000")
    probe(A, LANE, S_T2, cfg.marks)
    arrive(A, S_T2)
    A.label(noprobe)
    await_start(A, end, probed=True)
    cfg.mark(A, 2)
    gate(A, cfg.gate)
    A(f"s_mul_i32 {s(S_PF)}, {s(S_HEAD)}, 24576")
    A(f"s_add_u32 {s(S_PF)}, {s(S_PF)}, {L.QKV}")
    A(f"s_mov_b32 {s(S_STEP)}, 0")

    def prefetch_parts(src):
        ld = lambda so, j: f"buffer_load_dwordx4 {v(PFG)}, {s(SWS, 4)}, {s(so)} offen offset:{1024 * j} sc1 lds"
        return [f"s_mov_b32 m0, {s(S_LDS)}\ns_add_u32 {s(S_T2)}, {s(src)}, 3072\n" + ld(src, 0), ld(src, 1), ld(src, 2),
                f"s_add_u32 m0, {s(S_LDS)}, 3072\ns_xor_b32 {s(S_LDS)}, {s(S_LDS)}, {SLOTX}\n" + ld(S_T2, 0), ld(S_T2, 1),
                ld(S_T2, 2) + f"\ns_add_u32 {s(S_PF)}, {s(S_PF)}, {32 * 24576}"]

    def prefetch():
        for x in prefetch_parts(S_PF):
            A(x)

    def operands():
        for i in range(8):
            A(f"ds_read_b128 {v(ST + 4 * i, 4)}, {v(RDK)} offset:{1024 * i}")
        for p, reg in ((0, RDVA), (1, RDVB)):
            for t in range(2):
                A(f"ds_read_b128 {v(ST + 32 + 8 * p + 4 * t, 4)}, {v(reg)} offset:{1024 * t}")
        for ks in range(4):
            A(f"ds_read_b128 {v(ST + 48 + 4 * ks, 4)}, {v(RDQ)} offset:{1024 * ks}")
        for reg in (RDK, RDVA, RDVB, RDQ):
            A(f"v_xor_b32 {v(reg)}, {SLOTX}, {v(reg)}")

    ldpq = lambda: A(f"buffer_load_dword {v(PQV)}, {v(PQA)}, {s(SWS, 4)}, 0 offen sc1")

    def tstpq():
        A(f"v_add_u32 {v(CHK)}, {v(PQV)}, {v(PQB)}")
        A(f"v_cmp_gt_u32 vcc, {s(S_NEED)}, {v(CHK)}")
    A(f"s_mov_b32 {s(S_NEED)}, 1")
    if not cfg.solo:
        block_on(A, ldpq, tstpq, end)
    prefetch()
    slow_lbl = A.new("q_sc1")
    A(f"s_cmp_lg_u32 {s(S_IRR)}, 0")
    A(f"s_cbranch_scc1 {slow_lbl}")

    def score_x(qreg, bias, before=None):
        for ks in range(4):
            if before:
                before(ks)
            for T in range(2):
                c = v(SX + 4 * T, 4) if ks else (v(BIAS + 4 * T, 4) if bias else "0")
                A(f"{MF} {v(SX + 4 * T, 4)}, {v(ST + 16 * T + 4 * ks, 4)}, {v(qreg + 4 * ks, 4)}, {c}")

    def max_x():
        A(f"v_max3_f32 {v(T1)}, {v(SX)}, {v(SX + 1)}, {v(SX + 2)}")
        A(f"v_max3_f32 {v(T1)}, {v(T1)}, {v(SX + 3)}, {v(SX + 4)}")
        A(f"v_max3_f32 {v(T1)}, {v(T1)}, {v(SX + 5)}, {v(SX + 6)}")
        A(f"v_max_f32 {v(T1)}, {v(T1)}, {v(SX + 7)}")

    def softmax(hook=lambda pos: None):
        A(f"v_pk_add_f32 {v(SMM, 2)}, {v(SMM, 2)}, {v(SMM + 2, 2)}")
        A(f"v_max3_f32 {v(T2)}, {v(T1)}, {v(SMM)}, {v(SMM + 1)}")
        A(f"v_max3_f32 {v(T3)}, {v(T1)}, {v(SMM)}, {v(SMM + 1)}")
        if not hook(0):
            A("s_nop 1")
        A(f"v_permlane32_swap_b32 {v(T2)}, {v(T3)}")
        A(f"v_max_f32 {v(T1)}, {v(T2)}, {v(T3)}")
        A(f"v_max_f32 {v(T2)}, {v(T2)}, {v(T3)}")
        A("s_nop 1")
        A(f"v_permlane16_swap_b32 {v(T1)}, {v(T2)}")
        A(f"v_max_f32 {v(T1)}, {v(T1)}, {v(T2)}")
        A(f"v_mul_f32 {v(T2)}, {s(S_NC)}, {v(T1)}")
        hook(1)
        for i in range(5):
            A(f"v_pk_fma_f32 {v(SX + 2 * i, 2)}, {v(SX + 2 * i, 2)}, {s(S_C, 2)}, {v(T2, 2)} op_sel_hi:[1,0,0]")
        for i in range(10):
            A(f"v_exp_f32 {v(SX + i)}, {v(SX + i)}")
            if i == 4:
                hook(2)
        hook(3)
        for i in range(4):
            A(f"v_cvt_pk_bf16_f32 {v(PX + i)}, {v(SX + 2 * i)}, {v(SX + 2 * i + 1)}")
        A(f"v_cvt_pk_bf16_f32 {v(WIN + 2)}, {v(SMM)}, {v(SMM + 1)}")
        A(f"v_cvt_pk_bf16_f32 {v(WIN + 7)}, {v(SMM)}, {v(SMM + 1)}")

    WOFF = (2, 6, 0, 4)

    def scale(n):
        for i in range(n // 2):
            A(f"v_pk_mul_f32 {v(OA + 2 * i, 2)}, {v(OA + 2 * i, 2)}, {v(T2, 2)} op_sel_hi:[1,0]")

    def pv(nt, pre=None, post=None, hook=lambda pos: None):
        A(f"{MF} {v(LA, 4)}, {v(ONES, 4)}, {v(PX, 4)}, 0")
        A(f"{MF} {v(LA, 4)}, {v(ONES, 4)}, {v(WIN + WOFF[0], 4)}, {v(LA, 4)}")
        for t in range(nt):
            if pre and t == cfg.vchk:
                pre()
            A(f"{MF} {v(OA + 4 * t, 4)}, {v(ST + 32 + 4 * t, 4)}, {v(PX, 4)}, 0")
        if post:
            post()
        hook(5)
        for t in range(nt):
            A(f"{MF} {v(OA + 4 * t, 4)}, {v(VM, 4)}, {v(WIN + WOFF[t], 4)}, {v(OA + 4 * t, 4)}")
        hook(6)
        A(f"v_rcp_f32 {v(T2)}, {v(LA)}")
        A.nop(8 - nt)

    def body(loc):
        top = A.new("q")
        ldm = lambda i, d=None: A(f"buffer_load_dwordx4 {v(d or AP + 4 * i, 4)}, {v(VG)}, {s(SWS, 4)}, {s(S_CUR)} offen offset:{1024 * i} sc1")
        ldk = lambda i: A(f"buffer_load_dwordx4 {v(AP + 4 * i, 4)}, {v(VK)}, {s(SWS, 4)}, {s(S_CUR)} offen offset:{1024 * (i & 1)} sc1")

        def ldv():
            A(f"buffer_load_dwordx2 {v(VM, 2)}, {v(VVA)}, {s(SWS, 4)}, {s(S_CUR)} offen sc1")
            A(f"buffer_load_dwordx2 {v(VM + 2, 2)}, {v(VVB)}, {s(SWS, 4)}, {s(S_CUR)} offen sc1")
        A.label(top)
        far = A.new("qf")
        A.c("the first segments are fetched one step ahead, later ones two steps ahead")
        A(f"s_cmp_gt_u32 {s(S_STEP)}, {cfg.near + 1}")
        A(f"s_cbranch_scc1 {far}")
        A("s_waitcnt vmcnt(0)")
        A("s_barrier")
        A.label(far)
        operands()
        ring_slots(A)
        for q in range(16):
            A(f"v_pk_mul_f32 {v(ACQ + 2 * q, 2)}, 0, 0")

        def publish(pos):
            if pos == cfg.po_pos:
                A(f"buffer_store_dword {v(POV)}, {v(POW)}, {s(SWS, 4)}, 0 offen{loc}")
        A(f"v_mov_b32 {v(POV)}, {v(TAGV)}")
        if cfg.po_pos == 0:
            A("s_waitcnt vmcnt(0)")
        publish(0)
        A(f"v_add_u32 {v(TAGV)}, 1, {v(TAGV)}")
        if cfg.fine == 6:
            stamp(A, cfg, 7)
        if cfg.use_fm:
            flag_wait(A, cfg, FMR, 216, 4, end, cfg.nap_m)
        if cfg.fine == 6:
            stamp(A, cfg, 6)
        for i in range(4):
            ldm(i)
            pause(A, cfg, HT, cfg.lspace if i < 3 else cfg.ltail, 4)

        fq = lambda j, lo, hi: [A(f"{SM} {v(ACQ + 4 * n, 4)}, {v(AP + 4 * j, 4)}, {r(WQ + (j * 8 + n) * 8, 8)}, {v(IDX)}")
                                for n in range(lo, hi)]
        chk4 = lambda i: check(A, AP + 4 * i, 4, CHK)

        def ad(n):
            for b in range(2):
                A(f"v_add_f32 {v(HS + 2 * n + b)}, {v(ACQ + 4 * n + b)}, {v(ACQ + 4 * n + 2 + b)}")
        wr = lambda p: A(f"ds_write_b128 {v(LWS + p)}, {v(HS + 4 * p, 4)} offset:{RQ}")

        own = lambda i: fq(i & 3, 6 + (i >> 2), 7 + (i >> 2))

        def last(j):
            for n in range(6):
                fq(j, n, n + 1)
                ad(n - 3) if n >= 3 else A("s_nop 1")
            wr(0)
            own(0)
            ad(3)
            ad(4)
            wr(1)
            own(1)
            ad(5)
            wr(2)

        def last_two():
            for n in range(6):
                fq(2, n, n + 1)
                ad(n - 2) if n >= 2 else A("s_nop 1")
                fq(3, n, n + 1)
                if n in (3, 5):
                    wr((n - 3) >> 1)
                    A("s_nop 0")
                else:
                    A("s_nop 1")
            own(0)
            ad(4)
            own(1)
            A("s_nop 1")
            ad(5)
            wr(2)
        fast = (lambda j: fq(j, 0, cfg.qsplit) if j < 3 else None, lambda j: fq(j, cfg.qsplit, 6) if j < 3 else last(j))
        if cfg.qjoint:
            fast += (lambda: check(A, AP + 8, 8, CHK), last_two)
        done, slow1 = fsm_poll(A, 4, ldm, chk4, lambda j, rest: fq(j, 0, 6) if rest else last(j), end, fast=fast,
                               onfail=lambda first: count(A, cfg, 2) if first else None,
                               undo=(lambda: (A.nop(8), [A(f"v_pk_mul_f32 {v(ACQ + 2 * q, 2)}, 0, 0") for q in range(2 * cfg.qsplit)])) if cfg.spec else None,
                               dense=(lambda st: len(st) <= (2 if cfg.dense & 16 else 1), ldm, AP, 220, cfg.dgap, CHK, cfg.dsets) if cfg.dense & 4 else None)
        A.label(done)
        stamp(A, cfg, 0)
        publish(1)
        for i in range(2, 2 + cfg.qown):
            own(i)
        A("s_waitcnt lgkmcnt(0)")
        A("s_barrier")
        fine(A, cfg, 1, 1)
        for p in range(3):
            A(f"ds_read_b128 {v(RD + 4 * p, 4)}, {v(LR)} offset:{RQ + 1024 * p}")
        for i in range(2 + cfg.qown, 8):
            own(i)
        for i in range(4):
            A(f"v_mov_b32 {v(SMM + i)}, 0")

        def ldkc():
            for p in range(2):
                A(f"buffer_load_dwordx4 {v(KC + 4 * p, 4)}, {v(VK)}, {s(SWS, 4)}, {s(S_CUR)} offen offset:{1024 * p} sc1")
        if cfg.kpos == 0:
            ldkc()
        ad(6)
        A("s_nop 1")
        ad(7)
        A("s_waitcnt lgkmcnt(0)")
        fine(A, cfg, 0, 2)
        for h2 in range(2):
            A(f"v_pk_add_f32 {v(RD + 2 * h2, 2)}, {v(RD + 2 * h2, 2)}, {v(HS + 12 + 2 * h2, 2)}")
            A(f"v_pk_add_f32 {v(RD + 4 + 2 * h2, 2)}, {v(RD + 4 + 2 * h2, 2)}, {v(RD + 8 + 2 * h2, 2)}")
        for h2 in range(2):
            A(f"v_pk_add_f32 {v(RD + 2 * h2, 2)}, {v(RD + 2 * h2, 2)}, {v(RD + 4 + 2 * h2, 2)}")
        A(f"v_cvt_pk_bf16_f32 {v(RD)}, {v(RD)}, {v(RD + 1)}")
        A(f"v_cvt_pk_bf16_f32 {v(RD + 1)}, {v(RD + 2)}, {v(RD + 3)}")
        A(f"ds_write2st64_b32 {v(QW)}, {v(RD)}, {v(RD + 1)} offset0:{RB // 256} offset1:{RB // 256 + 1}")
        fine(A, cfg, 1, 2)
        if cfg.kpos == 1:
            ldkc()
        busy(A, CHK, cfg.qfw2)
        A("s_waitcnt lgkmcnt(0)")
        A("s_barrier")
        for i in range(8):
            A(f"ds_read_b64_tr_b16 {v(QOP + 2 * i, 2)}, {v(QR)} offset:{RB + 256 * i}")
        if cfg.kpos == 2:
            ldkc()

        def qwait(ks):
            A(f"s_waitcnt lgkmcnt({6 - 2 * ks})")
            if ks in (1, 2):
                ldk(ks - 1)
            if ks == 3:
                fine(A, cfg, 0, 3)
                A("s_waitcnt vmcnt(2)")
                fine(A, cfg, 1, 3)
                check(A, KC, 8, CHK)
        score_x(QOP, False, qwait)
        stamp(A, cfg, 1)
        kre, kok = A.new("kr"), A.new("ko")
        A(f"s_cbranch_vccnz {kre}")
        for p in range(2):
            A(f"{SM} {v(SMM, 4)}, {v(KC + 4 * p, 4)}, {v(QOP + 8 * p, 8)}, {v(IDX)}")
        A.label(kok)
        stamp(A, cfg, 2)
        if cfg.vpos < 0:
            ldv()
        A.nop(4 if cfg.vpos >= 0 else 2)
        max_x()

        def hook(pos):
            if pos in (1, 3):
                fine(A, cfg, pos >> 1, 4)
            if pos in (4, 6):
                fine(A, cfg, (pos - 4) >> 1, 5)
            if pos == cfg.vpos:
                ldv()
            if cfg.use_fo and pos == cfg.fo_pos:
                A(f"buffer_store_dword {v(TAGV)}, {v(FOW)}, {s(SWS, 4)}, {s(S_FB)} offen{loc}")
            return pos == cfg.vpos
        softmax(hook)
        vre, vok = A.new("vr"), A.new("vo")

        def wait_v():
            A(f"s_waitcnt vmcnt({1 if cfg.use_fo and 4 >= cfg.fo_pos >= cfg.vpos else 0})")
            check(A, VM, 4, CHK)

        def test_v():
            A(f"s_cbranch_vccnz {vre}")
            A.label(vok)
            publish(2)
        hook(4)
        pv(2, wait_v, test_v, hook)
        scale(8)
        for i in range(4):
            A(f"v_cvt_pk_bf16_f32 {v(PK + i)}, {v(OA + 2 * i)}, {v(OA + 2 * i + 1)}")
        A(f"buffer_store_dwordx4 {v(PK, 4)}, {v(VO)}, {s(SWS, 4)}, {s(S_CUR)} offen{loc}")
        stamp(A, cfg, 3)
        publish(3)
        A.c("off the recurrence path: operands of segment s+2, token rows of this segment")
        A("s_barrier")
        A(f"buffer_store_dwordx4 {v(SENT, 4)}, {v(VO)}, {s(SWS, 4)}, {s(S_RST)} offen{loc}")
        pqw, pqok, twice, once = A.new("pw"), A.new("pk"), A.new("p2"), A.new("p1")
        A(f"s_cmp_eq_u32 {s(S_STEP)}, {cfg.near}")
        A(f"s_cbranch_scc1 {twice}")
        A.label(once)
        A(f"s_add_u32 {s(S_NEED)}, {s(S_NEED)}, 1")
        A(f"s_min_u32 {s(S_NEED)}, {s(S_NEED)}, {cfg.nsteps}")
        if not cfg.solo:
            tstpq()
        for i in range(4):
            A(f"v_mov_b32 {v(SMM + i)}, 0")
        A(f"s_add_u32 {s(S_T0)}, {s(S_STEP)}, 2")
        A(f"s_and_b32 {s(S_T0)}, {s(S_T0)}, 3")
        x_offsets(A, cfg, S_XR, S_T0)
        A(f"s_cmp_lt_u32 {s(S_STEP)}, {cfg.nsteps - 2}")
        A(f"s_cselect_b32 {s(S_T3)}, {s(S_PF)}, 0x70000000")
        if not cfg.solo:
            A(f"s_cbranch_vccnz {pqw}")
            A.label(pqok)
        side = [f"buffer_store_dwordx{XN} {v(SENT, XN)}, {v(XCL)}, {s(SWS, 4)}, {s(S_XR + rr)} offen sc1" for rr in range(cfg.nrep)]
        side = ["\n".join(side)] + prefetch_parts(S_T3)
        if not cfg.solo:
            side[-1] += f"\nbuffer_load_dword {v(PQV)}, {v(PQA)}, {s(SWS, 4)}, 0 offen sc1"

        def aside(pos=None):
            if side:
                A(side.pop(0))
        score_x(ST + 48, True, lambda ks: aside() if ks in (0, 1, 3) else None)
        for p in range(2):
            A(f"{SM} {v(SMM, 4)}, {v(KC + 4 * p, 4)}, {v(ST + 48 + 8 * p, 8)}, {v(IDX)}")
        A(f"s_and_b32 {s(S_T0)}, {s(S_STEP)}, {63 if cfg.solo else 7}")
        A(f"s_lshl_b32 {s(S_T0)}, {s(S_T0)}, 18")
        A(f"s_add_u32 {s(S_OT)}, {s(S_T0)}, {L.OTOK}")
        aside()
        A.nop(2)
        max_x()
        softmax(lambda pos: aside() if pos else None)
        assert not side
        pv(4)
        scale(16)
        for i in range(8):
            A(f"v_cvt_pk_bf16_f32 {v(OA + i)}, {v(OA + 2 * i)}, {v(OA + 2 * i + 1)}")
        A(f"buffer_store_dwordx4 {v(OA, 4)}, {v(OTA)}, {s(SWS, 4)}, {s(S_OT)} offen{loc}")
        A(f"buffer_store_dwordx4 {v(OA + 4, 4)}, {v(OTB)}, {s(SWS, 4)}, {s(S_OT)} offen{loc}")
        event(A, cfg, 1, True)
        stamp(A, cfg, 4, 2)
        if cfg.trace:
            A(f"s_memtime {s(S_STAMP + 10, 2)}")
        flush_stamps(A, cfg, 8, T2, T3, 2)
        A(f"s_add_u32 {s(S_STEP)}, {s(S_STEP)}, 1")
        A(f"s_cmp_lt_u32 {s(S_STEP)}, {cfg.nsteps}")
        A(f"s_cbranch_scc1 {top}")
        gate(A, cfg.gate2)
        A("s_waitcnt vmcnt(0)")
        A(f"buffer_store_dword {v(TAGV)}, {v(POW)}, {s(SWS, 4)}, 0 offen{loc}")
        gate(A, cfg.gate3)
        report(A, cfg, (1,))
        A(f"s_branch {end}")
        A.label(twice)
        A(f"s_add_u32 {s(S_NEED)}, {s(S_NEED)}, 1")
        if not cfg.solo:
            block_on(A, ldpq, tstpq, end)
        prefetch()
        A(f"s_branch {once}")
        if not cfg.solo:
            A.label(pqw)
            block_on(A, ldpq, tstpq, end)
            A(f"s_branch {pqok}")
        slow1()
        A.label(kre)
        count(A, cfg, 0)
        ldk(2)
        ldk(3)

        def usekm(j, rest):
            p = j & 1
            if rest and (j ^ 2) not in rest:
                return
            A(f"{SM} {v(SMM, 4)}, {v(AP + 4 * j, 4)}, {v(QOP + 8 * p, 8)}, {v(IDX)}")
            for i in range(4):
                A(f"v_mov_b32 {v(KC + 4 * p + i)}, {v(AP + 4 * j + i)}")
        done, slow2 = fsm_poll(A, 4, ldk, chk4, usekm, end, lambda got: {x & 1 for x in got} == {0, 1})
        A.label(done)
        A(f"s_branch {kok}")
        slow2()
        A.label(vre)
        count(A, cfg, 1)
        ldv()
        spend(A, end)
        A("s_waitcnt vmcnt(0)")
        check(A, VM, 4, CHK)
        A(f"s_cbranch_vccnz {vre}")
        A(f"s_branch {vok}")

    body("")
    A.label(slow_lbl)
    body(" sc1")


def chain_kernel(A, cfg, name="chain_kernel"):
    end, kvo, other, noprobe = A.new("end"), A.new("kvo_role"), A.new("other"), A.new("np")
    A.kernel_begin(name)
    role_prologue(A, end)
    A(f"s_cmp_ge_u32 {s(S_GRP)}, 4")
    A(f"s_cbranch_scc1 {other}")
    A(f"s_cmp_ge_u32 {s(S_TK)}, 24")
    A(f"s_cbranch_scc1 {other}")
    A(f"s_cmp_ge_u32 {s(S_TK)}, 8")
    A(f"s_cbranch_scc1 {kvo}")
    q_role(A, cfg, end)
    A.label(other)
    A(f"s_mov_b32 {s(S_T2)}, 1")
    arrive(A, S_T2)
    A.label(end)
    A("s_endpgm")
    A.label(kvo)
    kvo_role(A, cfg, end)
```

```python
from asmlib import *
import layout as L

SWS = 4


def xor_reduce(A, op, xs, ts, steps):
    for b in steps:
        if b >= 16:
            for x, t in zip(xs, ts):
                A(f"v_mov_b32 {v(t)}, {v(x)}")
            A("s_nop 1")
            for x, t in zip(xs, ts):
                A(f"v_permlane{b}_swap_b32 {v(x)}, {v(t)}")
            for x, t in zip(xs, ts):
                A(f"{op} {v(x)}, {v(x)}, {v(t)}")
        else:
            A("s_nop 1")
            for x in xs:
                A(f"{op}_dpp {v(x)}, {v(x)}, {v(x)} row_ror:{b} row_mask:0xf bank_mask:0xf")


M_W, M_CV, M_ACC, M_T = 16, 80, 96, 104


def mod_addr(A):
    A("v_lshrrev_b32 v2, 3, v0")
    A("v_and_b32 v3, 7, v0")
    A("v_mul_u32_u24 v4, 12288, v2")
    A("v_lshl_add_u32 v4, v3, 4, v4")
    A("v_lshlrev_b32 v5, 1, v2")
    for i in range(8):
        A(f"v_mov_b32 {v(M_ACC + i)}, 0")


def mod_pass(A, grp, half, sw, sc, flag="", more=None):
    W, CV, ACC, T = M_W, M_CV, M_ACC, M_T
    A(f"s_lshl_b32 s41, {s(half)}, 10")
    A(f"s_mul_i32 s40, {s(half)}, {512 * 12288}")
    A(f"s_lshl_b32 s42, {s(grp)}, 7")
    A("s_add_u32 s40, s40, s42")
    for i in range(16):
        A(f"buffer_load_ushort {v(CV + i)}, v5, {s(sc, 4)}, s41 offen offset:{64 * i}")
    for i in range(16):
        A(f"buffer_load_dwordx4 {v(W + 4 * i, 4)}, v4, {s(sw, 4)}, s40 offen{flag}")
        A(f"s_add_u32 s40, s40, {32 * 12288}")
    extra = more() if more else 0
    A(f"s_waitcnt vmcnt({16 + extra})")
    for i in range(16):
        A(f"v_lshlrev_b32 {v(CV + i)}, 16, {v(CV + i)}")
        A(f"v_mul_f32 {v(T)}, 0xbfb8aa3b, {v(CV + i)}")
        A(f"v_exp_f32 {v(T)}, {v(T)}")
        A("s_nop 0")
        A(f"v_add_f32 {v(T)}, 1.0, {v(T)}")
        A(f"v_rcp_f32 {v(T)}, {v(T)}")
        A("s_nop 0")
        A(f"v_mul_f32 {v(T)}, {v(T)}, {v(CV + i)}")
        A(f"v_cvt_pk_bf16_f32 {v(CV + i)}, 0, {v(T)}")
    for i in range(16):
        A(f"s_waitcnt vmcnt({15 - i + extra})")
        for d in range(4):
            A(f"v_lshlrev_b32 {v(T)}, 16, {v(W + 4 * i + d)}")
            A(f"v_and_b32 {v(T + 1)}, 0xffff0000, {v(W + 4 * i + d)}")
            A(f"v_fmac_f32 {v(ACC + 2 * d)}, {v(T)}, {v(CV + i)}")
            A(f"v_fmac_f32 {v(ACC + 2 * d + 1)}, {v(T + 1)}, {v(CV + i)}")


def mod_finish(A, wave, dst, rounded):
    ACC, T = M_ACC, M_T
    for b in (8, 16, 32):
        if b == 8:
            A("s_nop 1")
            for i in range(8):
                A(f"v_add_f32_dpp {v(ACC + i)}, {v(ACC + i)}, {v(ACC + i)} row_ror:8 row_mask:0xf bank_mask:0xf")
        else:
            for i in range(8):
                A(f"v_mov_b32 {v(M_W + i)}, {v(ACC + i)}")
            for i in range(8):
                A(f"v_permlane{b}_swap_b32 {v(ACC + i)}, {v(M_W + i)}")
            for i in range(8):
                A(f"v_add_f32 {v(ACC + i)}, {v(ACC + i)}, {v(M_W + i)}")
    A(f"s_lshl_b32 s40, {s(wave)}, 8")
    A("v_lshl_add_u32 v2, v3, 5, s40")
    A(f"ds_write_b128 v2, {v(ACC, 4)} offset:1024")
    A(f"ds_write_b128 v2, {v(ACC + 4, 4)} offset:1040")
    A("s_waitcnt lgkmcnt(0)")
    A("s_barrier")
    A("v_and_b32 v2, 63, v0")
    A("v_lshlrev_b32 v2, 2, v2")
    for w in range(4):
        A(f"ds_read_b32 {v(ACC + w)}, v2 offset:{1024 + 256 * w}")
    A(f"s_min_u32 s40, {s(wave)}, 1")
    A("s_lshl_b32 s40, s40, 30")
    A(f"s_add_u32 s40, s40, {s(dst)}")
    A("s_waitcnt lgkmcnt(0)")
    A(f"v_add_f32 {v(ACC)}, {v(ACC)}, {v(ACC + 1)}")
    A(f"v_add_f32 {v(ACC + 2)}, {v(ACC + 2)}, {v(ACC + 3)}")
    A(f"v_add_f32 {v(ACC)}, {v(ACC)}, {v(ACC + 2)}")
    if rounded:
        A(f"v_cvt_pk_bf16_f32 {v(ACC)}, 0, {v(ACC)}")
    else:
        A(f"v_min_u32 {v(ACC)}, -2, {v(ACC)}")
    A(f"buffer_store_dword {v(ACC)}, v2, {s(SWS, 4)}, s40 offen sc1")
```

```python
from asmlib import *
import layout as L
from chain import (WFLAG, SWS, SW, SDBG, S_WAVE, S_GRP, S_TK, S_IRR, S_STEP, S_T0, S_T1, S_T2, S_T3, MF,
                   arrive, await_start, probe, progress_addr, words_addr, line_addr, lines_addr,
                   block_on, spend, check, gate, event, report)
from small import xor_reduce, mod_addr, mod_pass, mod_finish

SW2, SW3 = 84, 88
S_CU, S_SRC, S_RDY, S_FA, S_NEED, S_OUT, S_M0, S_NXT = 44, 45, 46, 47, 48, 49, 50, 54
S_SRC5, S_RDY5, S_NEED5, S_OUT5, S_NXT5, S_K = 55, 56, 57, 58, 59, 26
S_P0, S_P1, S_P2 = 60, 61, 62
OOB = 0x70000000
LANE = 9
VD, VR, VFA, VF, VPA, VP, VO = 0, 1, 2, 3, 4, 5, 6
FR, ACC, TMP = 16, 48, 80
S_SIG = 63


def ptr(A, reg, key):
    A(f"s_load_dwordx2 {s(reg, 2)}, s[0:1], {KA[key]}")


def mark(A, cfg, i, reg=15):
    if cfg.marks != 1 and not (cfg.marks == 4 and i in (0, 3)):
        return
    skip = A.new("mk")
    if not isinstance(i, int):
        A(f"s_and_b32 s99, {i}, 63")
        A("s_lshr_b64 s[98:99], s[94:95], s99")
        A("s_and_b32 s98, s98, 1")
        A(f"s_cbranch_scc0 {skip}")
    elif i == 0:
        A("s_mov_b32 s94, 0x0202021f")
        A("s_mov_b32 s95, 0x82020202")
    A("s_memrealtime s[96:97]")
    A(f"s_lshl_b32 s98, {s(S_GRP)}, 5")
    A(f"s_add_u32 s98, s98, {s(S_TK)}")
    A("s_lshl_b32 s98, s98, 2")
    A(f"s_add_u32 s98, s98, {s(S_WAVE)}")
    A("s_lshl_b32 s98, s98, 9")
    if isinstance(i, int):
        A(f"s_add_u32 s98, s98, {L.TRACE + 2 * L.MB + 4 * i}")
    else:
        A(f"s_lshl_b32 s99, {i}, 2")
        A("s_add_u32 s98, s98, s99")
        A(f"s_add_u32 s98, s98, {L.TRACE + 2 * L.MB + 64}")
    A("s_waitcnt lgkmcnt(0)")
    A(f"v_mov_b32 {v(reg)}, s96")
    A("s_mov_b64 exec, 1")
    A(f"buffer_store_dword {v(reg)}, off, {s(SWS, 4)}, s98")
    A("s_mov_b64 exec, -1")
    A.label(skip)


def lap(A, cfg, i):
    if cfg.marks != 2:
        return
    A("s_memtime s[96:97]")
    A("s_waitcnt lgkmcnt(0)")
    A("s_sub_u32 s99, s96, s98")
    A(f"s_add_u32 s{70 + i}, s{70 + i}, s99")
    A("s_mov_b32 s98, s96")


def span(A, cfg):
    if cfg.marks != 5:
        return
    for k, st in enumerate((16, 48)):
        skip = A.new("sp")
        A(f"s_cmp_lg_u32 {s(S_STEP)}, {st}")
        A(f"s_cbranch_scc1 {skip}")
        A("s_memtime s[96:97]\ns_memrealtime s[98:99]\ns_waitcnt lgkmcnt(0)")
        A(f"s_mov_b32 s{70 + 2 * k}, s96\ns_mov_b32 s{71 + 2 * k}, s98")
        A.label(skip)


def lap_init(A, cfg):
    if cfg.marks in (2, 5):
        for i in range(8):
            A(f"s_mov_b32 s{70 + i}, 0")


def lap_dump(A, cfg):
    if cfg.marks not in (2, 5):
        return
    for i in range(8):
        A(f"v_writelane_b32 v15, s{70 + i}, {i}")
    A(f"s_lshl_b32 s98, {s(S_GRP)}, 5")
    A(f"s_add_u32 s98, s98, {s(S_TK)}")
    A("s_lshl_b32 s98, s98, 2")
    A(f"s_add_u32 s98, s98, {s(S_WAVE)}")
    A("s_lshl_b32 s98, s98, 5")
    A(f"s_add_u32 s98, s98, {L.TRACE + 3 * L.MB}")
    A(f"v_lshlrev_b32 v14, 2, {v(LANE)}")
    A("s_mov_b64 exec, 0xff")
    A(f"buffer_store_dword v15, v14, {s(SWS, 4)}, s98 offen")
    A("s_mov_b64 exec, -1")


def tile_addr(A, dst, order, inter, sbase, extra, t0, t1):
    A(f"v_bfe_u32 {v(t0)}, {v(LANE)}, 2, 2")
    A(f"v_lshrrev_b32 {v(t1)}, 4, {v(LANE)}")
    A(f"v_lshl_add_u32 {v(t0)}, {v(t1)}, {3 if order == 'N' else 2}, {v(t0)}")
    A(f"v_lshl_add_u32 {v(t0)}, {v(t0)}, 7, {s(sbase)}")
    A(f"v_and_b32 {v(t1)}, 3, {v(LANE)}")
    A(f"v_lshl_add_u32 {v(t0)}, {v(t1)}, {4 if inter else 3}, {v(t0)}")
    A(f"v_add_u32 {v(dst)}, {extra}, {v(t0)}")


def load_w(A, panels, stride, nst, tiles, order, vg, flag="", first=None, ramp=None):
    SZ = len(panels) * 16384
    n = 4 * len(panels)
    NS = min(nst, 163840 // SZ)
    ramp = NS if ramp is None else ramp
    qstep = 512 if order == "N" else 2048
    A(f"v_lshrrev_b32 {v(vg)}, 3, {v(LANE)}")
    A(f"s_mul_i32 {s(S_T0)}, {s(S_WAVE)}, {32 * nst}")
    A(f"v_add_u32 {v(vg)}, {s(S_T0)}, {v(vg)}")
    A(f"v_mul_u32_u24 {v(vg)}, {stride}, {v(vg)}")
    A(f"v_and_b32 {v(vg + 1)}, 7, {v(LANE)}")
    A(f"v_lshl_add_u32 {v(vg)}, {v(vg + 1)}, 4, {v(vg)}")
    A(f"s_lshl_b32 {s(S_T0)}, {s(S_WAVE)}, 12")

    def issue(t):
        for p, (srd, off) in enumerate(panels):
            for j in range(4):
                A(f"s_add_u32 m0, {s(S_T0)}, {(t % NS) * SZ + p * 16384 + j * 1024}")
                A(f"s_add_u32 {s(S_T1)}, {s(off)}, {(32 * t + 8 * j) * stride}")
                A(f"buffer_load_dwordx4 {v(vg)}, {s(srd, 4)}, {s(S_T1)} offen{flag} lds")
    A("s_barrier")
    for t in range(ramp):
        issue(t)
    if ramp < NS:
        A(f"s_waitcnt vmcnt({n * (ramp - 1)})")
        for t in range(ramp, NS):
            issue(t)
    for t in range(nst):
        A(f"s_waitcnt vmcnt({n * (min(t + NS, nst) - t - 1)})")
        A("s_barrier")
        if t == 0 and first:
            first()
        for reg, dst in tiles:
            for k in range(4):
                for q in range(2):
                    A(f"ds_read_b64_tr_b16 {r(dst + (nst * k + t) * 4 + 2 * q, 2)}, {v(reg)} offset:{k * 4096 + q * qstep}")
        for reg, dst in tiles:
            A(f"v_add_u32 {v(reg)}, {SZ if t % NS < NS - 1 else -(NS - 1) * SZ}, {v(reg)}")
        A("s_waitcnt lgkmcnt(0)")
        A("s_barrier")
        if t + NS < nst:
            issue(t + NS)


def load_w_panels(A, panels, stride, order, vg, flag="", ask=None, act=None):
    NS, SZ = 5, 32768
    qstep = 512 if order == "N" else 2048
    A(f"v_lshrrev_b32 {v(vg)}, 3, {v(LANE)}")
    A(f"s_lshl_b32 {s(S_T0)}, {s(S_WAVE)}, 8")
    A(f"v_add_u32 {v(vg)}, {s(S_T0)}, {v(vg)}")
    A(f"v_mul_u32_u24 {v(vg)}, {stride}, {v(vg)}")
    A(f"v_and_b32 {v(vg + 1)}, 7, {v(LANE)}")
    A(f"v_lshl_add_u32 {v(vg)}, {v(vg + 1)}, 4, {v(vg)}")
    A(f"s_lshl_b32 {s(S_T0)}, {s(S_WAVE)}, 13")
    stages = [(p, t) for p in panels for t in range(4)]
    regs = sorted({reg for p in panels for reg, _ in p[3]})

    def issue(i):
        (srd, off, _, _), t = stages[i]
        for j in range(8):
            A(f"s_add_u32 m0, {s(S_T0)}, {(i % NS) * SZ + j * 1024}")
            A(f"s_add_u32 {s(S_T1)}, {s(off)}, {(64 * t + 8 * j) * stride}")
            A(f"buffer_load_dwordx4 {v(vg)}, {s(srd, 4)}, {s(S_T1)} offen{flag} lds")
    A("s_barrier")
    for i in range(NS):
        issue(i)
    n = len(stages)
    for i, ((_, _, pair, tiles), t) in enumerate(stages):
        if i == n - 1 and act:
            act(1)
        else:
            A(f"s_waitcnt vmcnt({8 * (min(i + NS, n) - i - 1)})")
        if i == n - 2 and act:
            act(0)
        A("s_barrier")
        skip = A.new("lw")
        if pair is not None:
            A(f"s_bitcmp{1 - pair}_b32 {s(S_WAVE)}, 1")
            A(f"s_cbranch_scc1 {skip}")
        for reg, dst in tiles:
            for k in range(8):
                for q in range(2):
                    A(f"ds_read_b64_tr_b16 {r(dst + (8 * (k >> 1) + 2 * t + (k & 1)) * 4 + 2 * q, 2)}, {v(reg)} offset:{k * 4096 + q * qstep}")
        A.label(skip)
        for reg in regs:
            A(f"v_add_u32 {v(reg)}, {SZ if i % NS < NS - 1 else -(NS - 1) * SZ}, {v(reg)}")
        A("s_waitcnt lgkmcnt(0)")
        A("s_barrier")
        if ask and i + NS in (n - 1 - NS, n - 1):
            ask(i + NS == n - 1)
        if i + NS < n:
            issue(i + NS)


def dma_list(ngroups, m0base, m0add, src, vd, js=(0, 1, 2, 3)):
    ops = []
    for gi in range(ngroups):
        ops.append(f"s_add_u32 m0, {s(m0base)}, {m0add + gi * 16384}")
        ops.append(f"s_add_u32 {s(S_T1)}, {s(src)}, {gi * 16384}")
        for j in js:
            ops.append(f"buffer_load_dwordx4 {v(vd)}, {s(SWS, 4)}, {s(S_T1)} offen offset:{1024 * j} sc1 lds")
    return ops


def reader(vr, nblk, tmajor):
    def rd(i):
        T, ks = (i // (nblk // 2), i % (nblk // 2)) if tmajor else (i & 1, i >> 1)
        return f"ds_read_b128 {v(FR + 4 * (i % 8), 4)}, {v(vr)} offset:{2048 * ks + 1024 * T}"
    return rd


def first_reads(A, rd):
    for b in range(7):
        A(rd(b))


def fits(ops):
    t = 4
    for op in ops:
        if op.startswith("s_"):
            t += 4
        else:
            t = max(t, 8) + (8 if op.startswith(("v_exp", "v_rcp", "buffer_store_dwordx4")) else 4)
    return t <= 16


def job(A, nblk, rd, tmajor, tiles, fillers, lo=0, hi=None, nxt=None, syncs={}):
    hi = nblk if hi is None else hi
    mf, pre, nt = [], {}, len(tiles)
    for b in range(lo, hi):
        T, ks = (b // (nblk // 2), b % (nblk // 2)) if tmajor else (b & 1, b >> 1)
        if b % 2 == 0 and nxt is None:
            pre[len(mf)] = f"s_waitcnt lgkmcnt({min(5, nblk - 2 - b)})"
        for acc, w, swap in tiles:
            x, y = r(w(ks), 4), v(FR + 4 * (b % 8), 4)
            if swap:
                x, y = y, x
            mf.append(f"{MF} {v(acc(T), 4)}, {x}, {y}, {v(acc(T), 4) if ks else 0}")
    n = len(mf)
    at = [[] for _ in range(n)]
    for i, w in pre.items():
        if i:
            at[i - 1].append(w)
    for b in range(lo, min(hi, nblk - 7)):
        at[(b - lo) * nt] += syncs.get(b + 7, []) + [rd(b + 7)]
    if nxt:
        assert lo == nblk - 5 and hi == nblk
        for k, j in ((0, 0), (0, 1), (1, 2), (nt, 3), (2 * nt, 4), (3 * nt, 5), (4 * nt, 6)):
            at[k].append(nxt(j))
    k = 0
    for start, step, ops in fillers:
        k = max(k, start) if start >= 0 else -start
        for op in ops:
            if op.startswith("END"):
                assert k < int(op[4:]), "sequence ends too late"
                continue
            if op.startswith("GAP"):
                k += int(op[4:])
                continue
            while True:
                assert k < n, "fillers do not fit"
                front = op.startswith("s_") and all(x.startswith("ds_read") for x in at[k])
                cand = [op] + at[k] if front else at[k] + [op]
                if fits(cand):
                    at[k] = cand
                    break
                k += 1
            if op.startswith("buffer"):
                k += step
    if 0 in pre:
        A(pre[0])
    scc = None
    for i in range(n):
        A(mf[i])
        for op in at[i]:
            if op.startswith("s_cselect"):
                assert scc.startswith("s_cmp"), "SCC overwritten"
            elif op.startswith("s_") and not op.startswith(("s_waitcnt", "s_mov", "s_nop", "s_mul", "s_barrier")):
                scc = op
            A(op)


def tag(ops, name):
    return [op + f" ;@{name}" if op.startswith("buffer") else op for op in ops]


def resolve(A, first):
    body = A.lines[first:]
    out = list(body)
    for i, ln in enumerate(body):
        if "vmcnt(@" in ln:
            names = ln[ln.index("(@") + 2:ln.index(")")].split(",")
            n, k = 0, i
            while True:
                k -= 1
                x = body[k % len(body)]
                if x.startswith("buffer"):
                    if any(x.endswith(";@" + t) for t in names):
                        break
                    n += 1
            out[i] = ln[:ln.index("(@")] + f"({n}" + ln[ln.index(")"):]
    A.lines[first:] = [x.split(" ;@")[0] for x in out]


def split_loads(ops, counts):
    idx = [i for i, op in enumerate(ops) if op.startswith("buffer")]
    cuts, acc = [0], 0
    for c in counts:
        acc += c
        cuts.append(idx[acc - 1] + 1 if acc else 0)
    cuts.append(len(ops))
    return [ops[a:b] for a, b in zip(cuts, cuts[1:])]


def lines(f):
    B = Asm()
    f(B)
    return B.lines


def decide(A, need, vf, rdy, src, nxt, spaced=False):
    A(f"v_cmp_gt_u32 vcc, {s(need)}, {v(vf)}")
    if spaced:
        A("GAP 2")
    A("s_cmp_eq_u64 vcc, 0")
    A(f"s_cselect_b32 {s(rdy)}, 1, 0")
    A(f"s_cselect_b32 {s(src)}, {s(nxt)}, {hex(OOB)}")


def common_regs(A, share):
    A(f"s_mul_i32 {s(S_M0)}, {s(S_WAVE)}, {share}")
    A(f"v_lshlrev_b32 {v(VR)}, 4, {v(LANE)}")
    A(f"v_add_u32 {v(VD)}, {s(S_M0)}, {v(VR)}")


def start_role(A, base, extra=None):
    line_addr(A, VPA, 0, base, S_CU, TMP)
    A(f"v_mov_b32 {v(VP)}, 0")
    A(f"buffer_store_dword {v(VP)}, {v(VPA)}, {s(SWS, 4)}, 0 offen sc1")
    A(f"s_mov_b32 {s(S_T2)}, 1")
    if extra:
        extra()
    arrive(A, S_T2, extra is None, join=False)


def stream1(A, cfg, tiles, epi, flag_for, advance_src, outstep, abort, sig, limit, landed=None):
    wait, entry, out, skip, join = (A.new(x) for x in ("sw", "se", "so", "sk", "sj"))
    ldf = lambda B=A: B(f"buffer_load_dword {v(VF)}, {v(VFA)}, {s(SWS, 4)}, {s(S_FA)} offen sc1")
    tst = lambda: A(f"v_cmp_gt_u32 vcc, {s(S_NEED)}, {v(VF)}")
    rd = reader(VR, 64, False)
    A(f"s_mov_b32 {s(S_STEP)}, 0")
    lap_init(A, cfg)
    lap(A, cfg, 7)
    flag_for(A, 0)
    A.label(wait)
    block_on(A, ldf, tst, abort, cfg.g3_sleep)
    lap(A, cfg, 5)
    for op in dma_list(4, S_M0, 0, S_NXT, VD):
        A(op)
    ldf()
    A.label(entry)
    A("s_waitcnt vmcnt(13)")
    A("s_barrier")
    lap(A, cfg, 6)
    first_reads(A, rd)
    advance_src()
    A(f"s_xor_b32 {s(S_M0)}, {s(S_M0)}, 0x10000")
    A(f"s_add_u32 {s(S_OUT)}, {s(S_OUT)}, {outstep}")
    A(f"s_add_u32 {s(S_STEP)}, {s(S_STEP)}, 1")
    flag_for(A, 0)
    nt = len(tiles)
    lap(A, cfg, 2)
    job(A, 64, rd, False, tiles, [(64 * nt - cfg.s1_flag, 1, lines(ldf))],
        syncs={16 * c: [f"s_waitcnt vmcnt({13 - 4 * c})", "s_barrier"] for c in (1, 2, 3)})
    lap(A, cfg, 3)
    A(f"v_xor_b32 {v(VR)}, 0x10000, {v(VR)}")
    A(f"v_mov_b32 {v(VP)}, {s(S_STEP)}")
    mark(A, cfg, s(S_STEP))
    A("s_waitcnt vmcnt(0)")
    tst()
    if landed:
        landed()
    A.nop(4)
    epi()
    A(f"s_mov_b32 {s(S_RDY)}, 0")
    A(f"s_cbranch_vccnz {skip}")
    A(f"s_mov_b32 {s(S_RDY)}, 1")
    for op in dma_list(4, S_M0, 0, S_NXT, VD):
        A(op)
    A("s_waitcnt vmcnt(16)")
    A(f"s_branch {join}")
    A.label(skip)
    A("s_waitcnt vmcnt(0)")
    A.label(join)
    A("s_barrier")
    sig()
    lap(A, cfg, 4)
    A(f"s_cmp_eq_u32 {s(S_STEP)}, {limit}")
    A(f"s_cbranch_scc1 {out}")
    A(f"s_cmp_lg_u32 {s(S_RDY)}, 0")
    A(f"s_cbranch_scc1 {entry}")
    A(f"s_branch {wait}")
    A.label(out)


def pack8(A, dst, a, b):
    for i in range(2):
        A(f"v_cvt_pk_bf16_f32 {v(dst + i)}, {v(a + 2 * i)}, {v(a + 2 * i + 1)}")
    for i in range(2):
        A(f"v_cvt_pk_bf16_f32 {v(dst + 2 + i)}, {v(b + 2 * i)}, {v(b + 2 * i + 1)}")


def await_helpers(A, n, abort, t=TMP):
    A(f"v_lshlrev_b32 {v(t)}, 7, {v(LANE)}")
    A(f"s_mov_b32 {s(S_T0)}, {L.P1}")
    block_on(A, lambda: A(f"buffer_load_dword {v(t + 1)}, {v(t)}, {s(SWS, 4)}, {s(S_T0)} offen sc1"),
             lambda: A(f"v_cmp_gt_u32 vcc, {n}, {v(t + 1)}"), abort, 2)


def octet_addrs(A, s_oct, s_cg):
    A(f"v_lshrrev_b32 {v(TMP)}, 3, {v(LANE)}")
    A(f"v_and_b32 {v(TMP + 1)}, 7, {v(LANE)}")
    A(f"s_lshr_b32 {s(S_T0)}, {s(s_oct)}, 1")
    A(f"s_lshl_b32 {s(S_T0)}, {s(S_T0)}, 10")
    A(f"s_and_b32 {s(S_T1)}, {s(s_oct)}, 1")
    A(f"s_lshl_b32 {s(S_T1)}, {s(S_T1)}, 7")
    A(f"s_add_u32 {s(S_T0)}, {s(S_T0)}, {s(S_T1)}")
    A(f"s_lshl_b32 {s(S_T1)}, {s(s_cg)}, 12")
    A(f"s_add_u32 {s(S_T0)}, {s(S_T0)}, {s(S_T1)}")
    A(f"v_lshl_add_u32 {v(VO)}, {v(TMP + 1)}, 4, {s(S_T0)}")
    A(f"v_and_b32 {v(TMP + 2)}, 3, {v(TMP)}")
    A(f"v_lshl_add_u32 {v(VO)}, {v(TMP + 2)}, 8, {v(VO)}")
    A(f"v_lshrrev_b32 {v(TMP + 2)}, 2, {v(TMP)}")
    A(f"v_lshl_add_u32 {v(VO)}, {v(TMP + 2)}, 11, {v(VO)}")
    A(f"s_lshl_b32 {s(S_T0)}, {s(s_oct)}, 14")
    A(f"s_lshl_b32 {s(S_T1)}, {s(s_cg)}, 7")
    A(f"s_add_u32 {s(S_T0)}, {s(S_T0)}, {s(S_T1)}")
    A(f"v_lshl_add_u32 {v(VO + 1)}, {v(TMP + 1)}, 11, {s(S_T0)}")
    A(f"v_lshl_add_u32 {v(VO + 1)}, {v(TMP)}, 4, {v(VO + 1)}")
    A(f"s_lshl_b32 {s(S_T0)}, {s(s_cg)}, 8")
    A(f"v_lshl_add_u32 {v(VO + 2)}, {v(TMP)}, 5, {s(S_T0)}")


def unit_consts(A):
    A(f"s_mov_b32 {s(S_P0)}, 0x00003f80")
    A(f"s_mov_b32 {s(S_P1)}, 0x3f800000")


def sum_bf(A, dst, srcs, n):
    for k, x in enumerate(srcs):
        for i in range(2 * n):
            A(f"v_dot2_f32_bf16 {v(dst + i)}, {v(x + (i >> 1))}, {s(S_P0 + (i & 1))}, {v(dst + i) if k else 0}")


def unpack(A, dst, src, n):
    for i in range(n):
        A(f"v_lshlrev_b32 {v(dst + 2 * i)}, 16, {v(src + i)}")
        A(f"v_and_b32 {v(dst + 2 * i + 1)}, 0xffff0000, {v(src + i)}")


def qkv_role(A, cfg, end):
    A.c("projection of token rows onto half a head of q, k and v; afterwards the final sums")
    A(f"v_mov_b32 {v(LANE)}, v1")
    A(f"s_sub_u32 {s(S_CU)}, {s(S_GRP)}, 4")
    if cfg.qmap:
        A(f"s_lshl_b32 {s(S_CU)}, {s(S_CU)}, 1")
        A(f"s_and_b32 {s(S_T0)}, {s(S_TK)}, 1")
        A(f"s_add_u32 {s(S_CU)}, {s(S_CU)}, {s(S_T0)}")
        A(f"s_lshr_b32 {s(S_T0)}, {s(S_TK)}, 1")
        A(f"s_lshl_b32 {s(S_T0)}, {s(S_T0)}, 3")
        A(f"s_add_u32 {s(S_CU)}, {s(S_CU)}, {s(S_T0)}")
    else:
        A(f"s_lshl_b32 {s(S_CU)}, {s(S_CU)}, 4")
        A(f"s_add_u32 {s(S_CU)}, {s(S_CU)}, {s(S_TK)}")
    start_role(A, L.PQ)
    A.srd(SW, 18, SIZE["Wq"])
    A.srd(SW2, 20, SIZE["Wk"])
    A.srd(SW3, 22, SIZE["Wv"])
    A(f"s_lshl_b32 {s(S_P0)}, {s(S_CU)}, 7")
    A(f"s_xor_b32 {s(S_P1)}, {s(S_P0)}, {4 << 7}")
    A(f"s_xor_b32 {s(S_P2)}, {s(S_P0)}, {2 << 7}")

    def request():
        for js in ((0, 2), (1, 3)):
            for op in dma_list(4, S_M0, 0, S_NXT, VD, js):
                A(op)
    A(f"s_and_b32 {s(S_T2)}, {s(S_WAVE)}, 1")
    A(f"s_lshl_b32 {s(S_T2)}, {s(S_T2)}, 6")
    for T in range(2):
        tile_addr(A, TMP + T, "N", False, S_T2, 32 * T, TMP + 4, TMP + 5)
    A(f"s_lshl_b32 {s(S_T2)}, {s(S_WAVE)}, 5")
    tile_addr(A, TMP + 2, "N", False, S_T2, 0, TMP + 4, TMP + 5)
    common_regs(A, 4096)
    A(f"s_xor_b32 {s(S_M0)}, {s(S_M0)}, 0x10000")
    A(f"s_mov_b32 {s(S_NXT)}, {L.H1}")

    def ask(k):
        if not k:
            A(f"buffer_load_dword v12, off, {s(SDBG, 4)}, 0 offset:144 sc1")
        else:
            A(f"v_lshlrev_b32 v14, 7, {v(LANE)}")
            A(f"s_mov_b32 {s(S_T1)}, {L.P1}")
            A(f"buffer_load_dword v13, v14, {s(SWS, 4)}, {s(S_T1)} offen sc1")

    def act(k):
        skip, out = A.new("qa"), A.new("qb")
        if k == 0:
            A("v_cmp_ne_u32 vcc, 0x80, v12")
            A("s_mov_b64 s[92:93], vcc")
            A("v_cmp_gt_u32 vcc, 2, v13")
            A("s_or_b64 vcc, vcc, s[92:93]")
            A(f"s_cselect_b32 {s(S_RDY)}, 0, 1")
            A(f"s_cbranch_scc1 {skip}")
            request()
            A.label(skip)
        else:
            A(f"s_cmp_lg_u32 {s(S_RDY)}, 0")
            A(f"s_cbranch_scc1 {skip}")
            A("s_waitcnt vmcnt(0)")
            A.label(skip)
            A("s_waitcnt vmcnt(16)")
    pair = [(TMP, 256), (TMP + 1, 384)]
    load_w_panels(A, [(SW3, S_P2, None, [(TMP + 2, 128)]), (SW2, S_P1, 1, pair), (SW, S_P0, 0, pair)], 8192, "N",
                  TMP + 4, WFLAG[cfg.whi], ask, act)
    mark(A, cfg, 1)
    event(A, cfg, 4)
    A(f"s_and_b32 {s(S_T2)}, {s(S_CU)}, 1")
    A(f"s_lshr_b32 {s(S_T0)}, {s(S_WAVE)}, 1")
    A(f"s_lshl_b32 {s(S_T0)}, {s(S_T0)}, 3")
    A(f"s_and_b32 {s(S_T1)}, {s(S_WAVE)}, 1")
    A(f"s_add_u32 {s(S_T0)}, {s(S_T0)}, {s(S_T1)}")
    A(f"s_lshl_b32 {s(S_T1)}, {s(S_T2)}, 1")
    A(f"s_add_u32 {s(S_T0)}, {s(S_T0)}, {s(S_T1)}")
    A(f"s_lshl_b32 {s(S_T0)}, {s(S_T0)}, 10")
    A(f"s_lshr_b32 {s(S_T3)}, {s(S_CU)}, 1")
    A(f"s_and_b32 {s(S_T1)}, {s(S_WAVE)}, 2")
    A(f"s_xor_b32 {s(S_T1)}, {s(S_T1)}, {s(S_T3)}")
    A(f"s_mul_i32 {s(S_T1)}, {s(S_T1)}, 24576")
    A(f"s_add_u32 {s(S_T0)}, {s(S_T0)}, {s(S_T1)}")
    A(f"v_add_u32 {v(VO)}, {s(S_T0)}, {v(VR)}")
    A(f"v_add_u32 {v(VO + 1)}, 4096, {v(VO)}")
    A(f"s_lshl_b32 {s(S_T0)}, {s(S_T2)}, 2")
    A(f"s_add_u32 {s(S_T0)}, {s(S_T0)}, {s(S_WAVE)}")
    A(f"s_add_u32 {s(S_T0)}, {s(S_T0)}, 16")
    A(f"s_lshl_b32 {s(S_T0)}, {s(S_T0)}, 10")
    A(f"s_xor_b32 {s(S_T1)}, {s(S_T3)}, 1")
    A(f"s_mul_i32 {s(S_T1)}, {s(S_T1)}, 24576")
    A(f"s_add_u32 {s(S_T0)}, {s(S_T0)}, {s(S_T1)}")
    A(f"v_add_u32 {v(VO + 2)}, {s(S_T0)}, {v(VR)}")
    A(f"s_mov_b32 {s(S_OUT)}, {L.QKV - 32 * 24576}")
    A(f"v_xor_b32 {v(VR)}, 0x10000, {v(VR)}")
    tiles = [(lambda T: ACC + 8 * T, lambda ks: 256 + 4 * ks, False),
             (lambda T: ACC + 8 * T + 4, lambda ks: 384 + 4 * ks, False),
             (lambda T: ACC + 16 + 4 * T, lambda ks: 128 + 4 * ks, True)]
    sig = lambda B=A: B(f"buffer_store_dword {v(VP)}, {v(VPA)}, {s(SWS, 4)}, 0 offen sc1")
    A.c("continuous stream; results are stored one segment later")
    loop, more, back = A.new("ql"), A.new("qm"), A.new("qe")
    A(f"s_mov_b32 {s(S_STEP)}, 0")
    lap_init(A, cfg)
    A(f"s_cmp_lg_u32 {s(S_RDY)}, 0")
    A(f"s_cbranch_scc1 {more}")
    await_start(A, end, hi_only=True, join=False)
    await_helpers(A, 2, end)
    request()
    A.label(more)
    A("s_waitcnt vmcnt(8)")
    A("s_barrier")
    rd = reader(VR, 64, True)
    first_reads(A, rd)
    A(f"s_mov_b32 {s(S_SRC5)}, {hex(OOB)}")
    A(f"s_mov_b32 {s(S_NEED)}, 28")
    cvt = lambda d, x: f"v_cvt_pk_bf16_f32 {v(d)}, {v(x)}, {v(x + 1)}"
    half = lambda T: [cvt(TMP + 4 * T + i, ACC + 8 * T + 2 * i) for i in range(4)] + \
        [cvt(TMP + 8 + 2 * T + i, ACC + 16 + 4 * T + 2 * i) for i in range(2)]
    stores = [f"buffer_store_dwordx4 {v(TMP + 4 * i, 4)}, {v(VO + i)}, {s(SWS, 4)}, {s(S_SRC5)} offen sc1" for i in range(3)]
    A.label(loop)
    head = [f"s_add_u32 {s(S_NXT)}, {s(S_NXT)}, 65536", f"s_xor_b32 {s(S_M0)}, {s(S_M0)}, 0x10000",
            f"s_cmp_lt_u32 {s(S_STEP)}, 63", f"s_cselect_b32 {s(S_SRC)}, {s(S_NXT)}, {hex(OOB)}"]
    first = len(A.lines)
    q = cfg.q_step
    t0 = split_loads(tag(dma_list(4, S_M0, 0, S_SRC, VD, (0, 2)), "t0"), [(75 - 26) // q + 1])
    t1 = split_loads(tag(dma_list(4, S_M0, 0, S_SRC, VD, (1, 3)), "t1"), [7])
    job(A, 64, rd, True, tiles,
        [(0, 1, head), (8, cfg.st_step, half(1) + tag(stores, "st") + [f"v_mov_b32 {v(VP)}, {s(S_STEP)}"]),
         (26, q, t0[0]), (-76, q // 2, lines(sig)), (0, q, t0[1] + t1[0]), (-105, 1, half(0)),
         (0, 1, [f"s_add_u32 {s(S_OUT)}, {s(S_OUT)}, {32 * 24576}", f"s_mov_b32 {s(S_SRC5)}, {s(S_OUT)}",
                 f"s_add_u32 {s(S_STEP)}, {s(S_STEP)}, 1"])], 0, 59,
        syncs={32: ["s_waitcnt vmcnt(@st,t1)", "s_barrier"]})
    A(f"v_xor_b32 {v(VR)}, 0x10000, {v(VR)}")
    event(A, cfg, 2, True)
    span(A, cfg)
    A("s_waitcnt vmcnt(@t0) lgkmcnt(0)")
    A("s_barrier")
    job(A, 64, rd, True, tiles, [(7, 1, t1[1]), (11, 1, [f"s_cmp_lt_u32 {s(S_STEP)}, {s(S_NEED)}"])], 59, 64, rd)
    resolve(A, first)
    if cfg.marks == 1:
        mark(A, cfg, s(S_STEP))
        A(f"s_cmp_lt_u32 {s(S_STEP)}, {s(S_NEED)}")
    A(f"s_cbranch_scc1 {loop}")
    A(f"s_cmp_eq_u32 {s(S_STEP)}, 64")
    A(f"s_cbranch_scc1 {back}")
    A.c("the second half of the rows must be normalised by now")
    await_helpers(A, 3, end, 14)
    A(f"s_mov_b32 {s(S_NEED)}, 64")
    A(f"s_branch {loop}")
    A.label(back)
    A.nop(8)
    for op in half(1) + stores:
        A(op)
    A(f"v_mov_b32 {v(VP)}, 64")
    A("s_waitcnt vmcnt(0) lgkmcnt(0)")
    A("s_barrier")
    sig()

    lap_dump(A, cfg)
    A.c("out = x1 + gb * (sum of the seven partial down projections)")
    GB, SUMS, X8, BUF = 16, 24, 32, 64
    ptr(A, 16, "out")
    A(f"s_and_b32 {s(S_T2)}, {s(S_CU)}, 3")
    A(f"s_lshr_b32 {s(S_T3)}, {s(S_CU)}, 2")
    octet_addrs(A, S_T2, S_T3)
    lines_addr(A, VFA, LANE, 7, 10)
    A(f"s_lshr_b32 {s(S_FA)}, {s(S_CU)}, 3")
    A(f"s_lshl_b32 {s(S_FA)}, {s(S_FA)}, 7")
    A(f"s_add_u32 {s(S_FA)}, {s(S_FA)}, {L.P45 + 4}")
    unit_consts(A)
    A("s_waitcnt lgkmcnt(0)")
    A.srd(SW, 16, SIZE["out"])
    await_helpers(A, 4, end)
    A(f"s_mov_b32 {s(S_T0)}, {L.MOD + 4 * 5120}")
    for i in range(2):
        A(f"buffer_load_dwordx4 {v(GB + 4 * i, 4)}, {v(VO + 2)}, {s(SWS, 4)}, {s(S_T0)} offen offset:{16 * i} sc1")
    A(f"s_mov_b32 {s(S_STEP)}, {s(S_WAVE)}")
    for nb, limit in ((4, 48), (1, 64)):
        loop = A.new("fin")
        A.label(loop)
        A(f"s_add_u32 {s(S_NEED)}, {s(S_STEP)}, {4 * (nb - 1) + 1}")
        block_on(A, lambda: A(f"buffer_load_dword {v(VF)}, {v(VFA)}, {s(SWS, 4)}, {s(S_FA)} offen sc1"),
                 lambda: A(f"v_cmp_gt_u32 vcc, {s(S_NEED)}, {v(VF)}"), end, 32 if nb == 4 else cfg.fin_sleep)
        A(f"s_lshl_b32 {s(S_OUT)}, {s(S_STEP)}, 16")
        for b in range(nb):
            for k in range(8):
                base = L.X1 if k == 7 else L.PART5 + k * 4 * L.MB
                A(f"s_add_u32 {s(S_T1)}, {s(S_OUT)}, {base + b * 4 * 65536}")
                A(f"buffer_load_dwordx4 {v(BUF + 32 * b + 4 * k, 4)}, {v(VO)}, {s(SWS, 4)}, {s(S_T1)} offen sc1")
        for b in range(nb):
            A(f"s_waitcnt vmcnt({8 * (nb - 1 - b) + b})")
            sum_bf(A, SUMS, [BUF + 32 * b + 4 * k for k in range(7)], 4)
            unpack(A, X8, BUF + 32 * b + 28, 4)
            for i in range(4):
                A(f"v_pk_fma_f32 {v(X8 + 2 * i, 2)}, {v(SUMS + 2 * i, 2)}, {v(GB + 2 * i, 2)}, {v(X8 + 2 * i, 2)}")
            pack8(A, 40 + 4 * b, X8, X8 + 4)
            A(f"s_add_u32 {s(S_T1)}, {s(S_OUT)}, {b * 4 * 65536}")
            A(f"buffer_store_dwordx4 {v(40 + 4 * b, 4)}, {v(VO + 1)}, {s(SW, 4)}, {s(S_T1)} offen{WFLAG[cfg.outflag]}")
        A(f"s_add_u32 {s(S_STEP)}, {s(S_STEP)}, {4 * nb}")
        A(f"s_cmp_lt_u32 {s(S_STEP)}, {limit}")
        A(f"s_cbranch_scc1 {loop}")
        mark(A, cfg, 2 if nb == 4 else 3)
    report(A, cfg, (2, 4))
    A("s_endpgm")


def g3_role(A, cfg, end):
    A.c("output projection of token rows: this group's heads x 128 columns")
    A(f"v_mov_b32 {v(LANE)}, v1")
    A(f"s_sub_u32 {s(S_K)}, {s(S_TK)}, 24")
    A(f"s_lshl_b32 {s(S_CU)}, {s(S_GRP)}, 3")
    A(f"s_add_u32 {s(S_CU)}, {s(S_CU)}, {s(S_K)}")

    def extra():
        skip = A.new("np")
        A(f"s_mov_b32 {s(S_T0)}, 4096")
        A(f"buffer_store_dword {v(VP)}, {v(VPA)}, {s(SWS, 4)}, {s(S_T0)} offen sc1")
        line_addr(A, VO + 1, 0, L.PB, S_CU, TMP)
        A(f"buffer_store_dword {v(VP)}, {v(VO + 1)}, {s(SWS, 4)}, 0 offen sc1")
        A(f"s_lshl_b32 {s(S_T0)}, {s(S_IRR)}, 16")
        A(f"s_or_b32 {s(S_T2)}, {s(S_T2)}, {s(S_T0)}")
    start_role(A, L.P3, extra)
    A.srd(SW, 24, SIZE["Wo"])
    A(f"s_lshl_b32 {s(S_P0)}, {s(S_GRP)}, 21")
    A(f"s_lshl_b32 {s(S_T0)}, {s(S_K)}, 8")
    A(f"s_add_u32 {s(S_P0)}, {s(S_P0)}, {s(S_T0)}")
    A(f"s_add_u32 {s(S_P1)}, {s(S_P0)}, 128")
    pair_tiles(A, "P")
    load_w(A, [(SW, S_P0), (SW, S_P1)], 2048, 8, [(TMP, 256), (TMP + 1, 384)], "P", TMP + 4)
    mark(A, cfg, 1)
    await_start(A, end, probed=True)
    common_regs(A, 4096)
    words_addr(A, VFA, LANE, 8, TMP)
    A(f"s_lshl_b32 {s(S_FA)}, {s(S_GRP)}, 10")
    A(f"s_add_u32 {s(S_FA)}, {s(S_FA)}, {L.PO}")
    A(f"v_mov_b32 {v(VO)}, {v(VR)}")
    A(f"s_lshl_b32 {s(S_T0)}, {s(S_K)}, 2")
    A(f"s_add_u32 {s(S_T0)}, {s(S_T0)}, {s(S_WAVE)}")
    A(f"s_lshl_b32 {s(S_T0)}, {s(S_T0)}, 11")
    A(f"s_lshl_b32 {s(S_OUT)}, {s(S_GRP)}, 22")
    A(f"s_add_u32 {s(S_OUT)}, {s(S_OUT)}, {s(S_T0)}")
    A(f"s_add_u32 {s(S_OUT)}, {s(S_OUT)}, {L.PART3 - 65536}")
    A(f"s_lshl_b32 {s(S_NXT)}, {s(S_GRP)}, 16")
    A(f"s_add_u32 {s(S_NXT)}, {s(S_NXT)}, {L.OTOK}")
    A.c("bring one slot of the token-output ring into this die's L2")
    A(f"s_lshl_b32 {s(S_SRC)}, {s(S_K)}, 18")
    A(f"s_add_u32 {s(S_SRC)}, {s(S_SRC)}, {s(S_NXT)}")
    for op in dma_list(4, S_M0, 0, S_SRC, VD):
        A(op)

    def epi():
        for T in range(2):
            pack8(A, TMP + 4 * T, ACC + 8 * T, ACC + 8 * T + 4)
            A(f"buffer_store_dwordx4 {v(TMP + 4 * T, 4)}, {v(VO)}, {s(SWS, 4)}, {s(S_OUT)} offen offset:{1024 * T} sc1")
    tiles = [(lambda T: ACC + 8 * T, lambda ks: 256 + 4 * ks, False),
             (lambda T: ACC + 8 * T + 4, lambda ks: 384 + 4 * ks, False)]

    def sig():
        A(f"s_and_b32 {s(S_T0)}, {s(S_STEP)}, 1")
        A(f"s_lshl_b32 {s(S_T0)}, {s(S_T0)}, 12")
        A(f"buffer_store_dword {v(VP)}, {v(VPA)}, {s(SWS, 4)}, {s(S_T0)} offen sc1")

    def landed():
        far, out = A.new("lf"), A.new("lo")
        A(f"v_add_u32 {v(VO + 2)}, 1, {v(VO + 2)}")
        A(f"s_cmp_lg_u32 {s(S_IRR)}, 0")
        A(f"s_cbranch_scc1 {far}")
        A(f"buffer_store_dword {v(VO + 2)}, {v(VO + 1)}, {s(SWS, 4)}, 0 offen")
        A(f"s_branch {out}")
        A.label(far)
        A(f"buffer_store_dword {v(VO + 2)}, {v(VO + 1)}, {s(SWS, 4)}, 0 offen sc1")
        A.label(out)
    A(f"v_mov_b32 {v(VO + 2)}, 0")

    def advance():
        A(f"s_add_u32 {s(S_NXT)}, {s(S_NXT)}, 262144")
        A(f"s_bitset0_b32 {s(S_NXT)}, 21")
    stream1(A, cfg, tiles, epi, lambda B, d: B(f"s_add_u32 {s(S_NEED)}, {s(S_STEP)}, {d + 1}"), advance, 65536, end,
            sig, 64, landed)
    lap_dump(A, cfg)
    if cfg.wbl2:
        A.c("the group is finished: its rings need not wait for the end of the launch to be written back")
        A("s_waitcnt vmcnt(0)")
        A(f"s_or_b32 {s(S_T0)}, {s(S_K)}, {s(S_WAVE)}")
        A(f"s_cbranch_scc1 {end}")
        A("buffer_wbl2 sc1")
        A("s_waitcnt vmcnt(0)")
    A("s_endpgm")


def pair_tiles(A, order):
    A(f"s_lshr_b32 {s(S_T2)}, {s(S_WAVE)}, 1")
    A(f"s_lshl_b32 {s(S_T2)}, {s(S_T2)}, 14")
    A(f"s_and_b32 {s(S_T3)}, {s(S_WAVE)}, 1")
    A(f"s_lshl_b32 {s(S_T3)}, {s(S_T3)}, 6")
    A(f"s_add_u32 {s(S_T2)}, {s(S_T2)}, {s(S_T3)}")
    for T in range(2):
        tile_addr(A, TMP + T, order, True, S_T2, 8 * T, TMP + 4, TMP + 5)


def moments(A, S, F, n, first):
    for i in range(n // 2):
        x = v(F + 2 * i, 2)
        if first and i == 0:
            A(f"v_pk_mul_f32 {v(S, 2)}, {x}, 1.0 op_sel_hi:[1,0]")
            A(f"v_pk_mul_f32 {v(S + 2, 2)}, {x}, {x}")
        else:
            A(f"v_pk_add_f32 {v(S, 2)}, {v(S, 2)}, {x}")
            A(f"v_pk_fma_f32 {v(S + 2, 2)}, {x}, {x}, {v(S + 2, 2)}")


def normalise(A, F, n, S, bits, wr, rd):
    A(f"v_add_f32 {v(S)}, {v(S)}, {v(S + 1)}")
    A(f"v_add_f32 {v(S + 1)}, {v(S + 2)}, {v(S + 3)}")
    xor_reduce(A, "v_add_f32", (S, S + 1), (S + 2, S + 3), bits)
    A(f"ds_write_b64 {v(wr)}, {v(S, 2)} offset:2048")
    A("s_waitcnt lgkmcnt(0)")
    A("s_barrier")
    for i in range(2):
        A(f"ds_read_b128 {v(S + 4 * i, 4)}, {v(rd)} offset:{2048 + 16 * i}")
    A(f"v_xor_b32 {v(wr)}, 512, {v(wr)}")
    A(f"v_xor_b32 {v(rd)}, 512, {v(rd)}")
    A(f"s_mov_b32 {s(S_T0)}, 0x3a800000")
    A("s_waitcnt lgkmcnt(0)")
    A(f"v_pk_add_f32 {v(S, 2)}, {v(S, 2)}, {v(S + 2, 2)}")
    A(f"v_pk_add_f32 {v(S + 4, 2)}, {v(S + 4, 2)}, {v(S + 6, 2)}")
    A(f"v_pk_add_f32 {v(S, 2)}, {v(S, 2)}, {v(S + 4, 2)}")
    A(f"v_pk_mul_f32 {v(S, 2)}, {v(S, 2)}, {s(S_T0, 2)} op_sel_hi:[1,0]")
    A(f"v_fma_f32 {v(S + 1)}, -{v(S)}, {v(S)}, {v(S + 1)}")
    A(f"v_max_f32 {v(S + 1)}, 0, {v(S + 1)}")
    A(f"v_add_f32 {v(S + 1)}, 0x3727c5ac, {v(S + 1)}")
    A(f"v_rsq_f32 {v(S + 1)}, {v(S + 1)}")
    A("s_nop 0")
    A(f"v_mul_f32 {v(S)}, -{v(S)}, {v(S + 1)}")
    for i in range(n // 2):
        A(f"v_pk_fma_f32 {v(F + 2 * i, 2)}, {v(F + 2 * i, 2)}, {v(S, 2)}, {v(S, 2)} op_sel:[0,1,0] op_sel_hi:[1,1,0]")


def stat_addrs(A, wr, rd, mask):
    A(f"v_and_b32 {v(rd)}, {mask}, {v(LANE)}")
    A(f"v_lshlrev_b32 {v(rd)}, 5, {v(rd)}")
    A(f"s_lshl_b32 {s(S_T0)}, {s(S_WAVE)}, 3")
    A(f"v_add_u32 {v(wr)}, {s(S_T0)}, {v(rd)}")


def helper_start(A, cfg, end):
    X, F, SH, SC, T = 16, 48, 112, 176, 240
    P1A, WR, RD, VA, VX, VG = 10, 11, 12, 13, 6, 7
    A(f"v_mov_b32 {v(LANE)}, v1")
    A(f"s_sub_u32 {s(S_T2)}, {s(S_GRP)}, 4")
    A(f"s_lshl_b32 {s(S_K)}, {s(S_TK)}, 2")
    A(f"s_add_u32 {s(S_K)}, {s(S_K)}, {s(S_T2)}")
    A(f"s_sub_u32 {s(S_K)}, {s(S_K)}, 64")
    A(f"s_lshr_b32 {s(S_T0)}, {s(S_T2)}, 1")
    A(f"s_lshl_b32 {s(S_T1)}, {s(S_T0)}, 3")
    A(f"s_add_u32 {s(S_T1)}, {s(S_T1)}, 16")
    A(f"s_lshl_b32 {s(S_T0)}, {s(S_T0)}, 2")
    A(f"s_cmp_ge_u32 {s(S_TK)}, 28")
    A(f"s_cselect_b32 {s(S_T3)}, 28, 24")
    A(f"s_add_u32 {s(S_T0)}, {s(S_T0)}, {s(S_T3)}")
    A(f"s_cmp_ge_u32 {s(S_TK)}, 24")
    A(f"s_cselect_b32 {s(S_T0)}, {s(S_T0)}, {s(S_T1)}")
    A(f"s_lshl_b32 {s(S_T1)}, {s(S_T2)}, 3")
    A(f"s_sub_u32 {s(S_T1)}, {s(S_T1)}, 16")
    A(f"s_bitcmp1_b32 {s(S_T2)}, 0")
    A(f"s_cselect_b32 {s(S_T0)}, {s(S_T0)}, {s(S_T1)}")
    A(f"s_add_u32 {s(S_CU)}, {s(S_T0)}, {s(S_TK)}")
    ptr(A, 16, "wmod")
    ptr(A, 18, "c")
    ptr(A, 20, "x")
    line_addr(A, P1A, 0, L.P1, S_K, TMP)
    line_addr(A, 8, 0, L.P45, S_CU, TMP)
    A("v_mov_b32 v14, 0")
    A("v_mov_b32 v15, 0")
    A(f"buffer_store_dword v14, {v(P1A)}, {s(SWS, 4)}, 0 offen sc1")
    A(f"buffer_store_dwordx2 v[14:15], v8, {s(SWS, 4)}, 0 offen sc1")
    A("s_waitcnt lgkmcnt(0)")
    A.srd(SW, 16, SIZE["wmod"])
    A.srd(SW2, 18, SIZE["c"])
    A.srd(SW3, 20, SIZE["x"])

    def stage(n, join=True):
        A(f"v_mov_b32 v14, {n}")
        A("s_waitcnt vmcnt(0)")
        if join:
            A("s_barrier")
        A(f"buffer_store_dword v14, {v(P1A)}, {s(SWS, 4)}, 0 offen sc1")

    stat_addrs(A, WR, RD, 15)
    A(f"v_lshlrev_b32 {v(VA)}, 4, {v(LANE)}")
    A(f"v_lshrrev_b32 {v(VG)}, 4, {v(LANE)}")
    A(f"v_lshlrev_b32 {v(VX)}, 6, {v(RD)}")
    A(f"v_lshl_add_u32 {v(VX)}, {v(VG)}, 4, {v(VX)}")
    A(f"v_lshlrev_b32 {v(VG)}, 5, {v(VG)}")

    def x_rows():
        for rep in range(2):
            A(f"s_add_u32 {s(S_T2)}, {s(S_K)}, {64 * rep}")
            A(f"s_lshl_b32 s41, {s(S_T2)}, 15")
            A(f"s_lshl_b32 s42, {s(S_WAVE)}, 9")
            A("s_add_u32 s41, s41, s42")
            for k in range(8):
                A(f"buffer_load_dwordx4 {a(32 * rep + 4 * k, 4)}, {v(VX)}, {s(SW3, 4)}, s41 offen offset:{64 * k}")
        return 16
    A(f"s_lshr_b32 {s(S_P0)}, {s(S_K)}, 1")
    A(f"s_and_b32 {s(S_P1)}, {s(S_K)}, 1")
    A(f"s_lshl_b32 {s(S_P2)}, {s(S_P0)}, 8")
    A(f"s_lshl_b32 {s(S_T0)}, {s(S_P1)}, 13")
    A(f"s_add_u32 {s(S_P2)}, {s(S_P2)}, {s(S_T0)}")
    A(f"s_add_u32 {s(S_P2)}, {s(S_P2)}, {L.MODP}")
    A(f"s_min_u32 {s(S_T0)}, {s(S_WAVE)}, 1")
    A(f"s_lshl_b32 {s(S_T0)}, {s(S_T0)}, 30")
    A(f"s_add_u32 {s(S_T0)}, {s(S_T0)}, {s(S_P2)}")
    A(f"v_lshlrev_b32 v2, 2, {v(LANE)}")
    A("v_mov_b32 v3, -1")
    A(f"buffer_store_dword v3, v2, {s(SWS, 4)}, {s(S_T0)} offen sc1")
    A(f"s_mov_b32 {s(S_T2)}, 1")
    arrive(A, S_T2, True, join=False, t=14)
    mod_addr(A)
    mod_pass(A, S_P0, S_P1, SW, SW2, WFLAG[cfg.wmod], x_rows)
    mod_finish(A, S_WAVE, S_P2, False)
    await_start(A, end, 14, True)
    mark(A, cfg, 4)
    for rep in range(2):
        A(f"s_add_u32 {s(S_T2)}, {s(S_K)}, {64 * rep}")
        for k in range(32):
            A(f"v_accvgpr_read_b32 {v(X + k)}, {a(32 * rep + k)}")
        A(f"s_lshr_b32 s40, {s(S_T2)}, 1")
        A("s_lshl_b32 s40, s40, 2")
        A(f"s_add_u32 s40, s40, {s(S_WAVE)}")
        A("s_lshl_b32 s40, s40, 14")
        A(f"s_and_b32 s41, {s(S_T2)}, 1")
        A("s_lshl_b32 s41, s41, 10")
        A("s_add_u32 s40, s40, s41")
        unpack(A, F, X, 32)
        moments(A, T, F, 64, True)
        normalise(A, F, 64, T, (16, 32), WR, RD)
        if rep == 0:
            A.c("shift and 1+scale, summed and rounded once per workgroup, shared through LDS")
            A("v_lshlrev_b32 v14, 5, v0")

            def parts():
                for h in range(2):
                    A(f"s_mov_b32 s42, {L.MODP + 8192 * h}")
                    for i in range(2):
                        A(f"buffer_load_dwordx4 {v(X + 8 * h + 4 * i, 4)}, v14, {s(SWS, 4)}, s42 offen offset:{16 * i} sc1")
            block_on(A, parts, lambda: check(A, X, 16, 15), end, 4)
            A(f"s_cmp_ge_u32 {s(S_WAVE)}, 2")
            A("s_cselect_b32 s42, 1.0, 0")
            A(f"s_lshl_b32 s43, {s(S_WAVE)}, 10")
            A(f"v_add_u32 {v(VG)}, s43, {v(VG)}")
            A("s_waitcnt vmcnt(0)")
            for i in range(8):
                A(f"v_add_f32 {v(X + i)}, {v(X + i)}, {v(X + 8 + i)}")
            for i in range(8):
                A(f"v_cvt_pk_bf16_f32 {v(X + i)}, 0, {v(X + i)}")
            for i in range(8):
                A(f"v_add_f32 {v(X + i)}, s42, {v(X + i)}")
            for i in range(2):
                A(f"ds_write_b128 v14, {v(X + 4 * i, 4)} offset:{4096 + 16 * i}")
            A("s_waitcnt lgkmcnt(0)")
            A("s_barrier")
            for n in range(16):
                off = 4096 + 128 * (n >> 1) + 16 * (n & 1)
                A(f"ds_read_b128 {v(SH + 4 * n, 4)}, {v(VG)} offset:{off}")
                A(f"ds_read_b128 {v(SC + 4 * n, 4)}, {v(VG)} offset:{off + 4096}")
            A("s_waitcnt lgkmcnt(0)")
        for k in range(8):
            for i in range(4):
                x = 8 * k + 2 * i
                A(f"v_pk_fma_f32 {v(F + x, 2)}, {v(F + x, 2)}, {v(SC + x, 2)}, {v(SH + x, 2)}")
            pack8(A, X + 4 * k, F + 8 * k, F + 8 * k + 4)
            A(f"s_add_u32 s41, s40, {L.H1 + 2048 * k}")
            A(f"buffer_store_dwordx4 {v(X + 4 * k, 4)}, {v(VA)}, {s(SWS, 4)}, s41 offen sc1")
        stage(2 + rep)
        mark(A, cfg, 5 + rep)
    loop = A.new("md")
    A(f"s_add_u32 {s(S_P0)}, {s(S_K)}, 32")
    A(f"s_mov_b32 {s(S_P1)}, 0")
    mod_addr(A)
    A.label(loop)
    mod_pass(A, S_P0, S_P1, SW, SW2, WFLAG[cfg.wmod])
    A(f"s_add_u32 {s(S_P1)}, {s(S_P1)}, 1")
    A(f"s_cmp_lt_u32 {s(S_P1)}, 2")
    A(f"s_cbranch_scc1 {loop}")
    A(f"s_lshl_b32 {s(S_P0)}, {s(S_P0)}, 8")
    A(f"s_add_u32 {s(S_P0)}, {s(S_P0)}, {L.MOD}")
    mod_finish(A, S_WAVE, S_P0, True)
    stage(4, False)
    A(f"v_mov_b32 {v(VPA)}, v8")
    A(f"v_mov_b32 {v(VP)}, 0")
    mark(A, cfg, 7)


def ln_role(A, cfg, end):
    A.c("x1 = x + ga * attention, h2 = modulated layer norm of x1, for 8 tokens of every other segment")
    PB, XB, F, GA, SC, SH, T, WR, RD = 16, 80, 96, 128, 160, 192, 224, 11, 12
    A(f"s_sub_u32 {s(S_K)}, {s(S_CU)}, 56")
    A(f"s_and_b32 {s(S_T2)}, {s(S_K)}, 3")
    A(f"s_lshl_b32 {s(S_T3)}, {s(S_WAVE)}, 2")
    octet_addrs(A, S_T2, S_T3)
    stat_addrs(A, WR, RD, 7)
    unit_consts(A)
    lines_addr(A, VFA, LANE, 32)
    A(f"s_lshr_b32 {s(S_FA)}, {s(S_K)}, 2")
    A(f"s_xor_b32 {s(S_FA)}, {s(S_FA)}, 1")
    A(f"s_lshl_b32 {s(S_FA)}, {s(S_FA)}, 12")
    A(f"s_add_u32 {s(S_FA)}, {s(S_FA)}, {L.P3}")
    await_start(A, end)
    await_helpers(A, 4, end)
    for reg, part in ((GA, 2), (SH, 3), (SC, 4)):
        A(f"s_mov_b32 {s(S_T0)}, {L.MOD + 4096 * part}")
        for i in range(8):
            A(f"buffer_load_dwordx4 {v(reg + 4 * i, 4)}, {v(VO + 2)}, {s(SWS, 4)}, {s(S_T0)} offen offset:{256 * (i >> 1) + 16 * (i & 1)} sc1")
    A("s_waitcnt vmcnt(0)")
    for i in range(16):
        A(f"v_pk_add_f32 {v(SC + 2 * i, 2)}, {v(SC + 2 * i, 2)}, 1.0 op_sel_hi:[1,0]")
    A(f"s_lshr_b32 {s(S_STEP)}, {s(S_K)}, 2")
    lap_init(A, cfg)
    lap(A, cfg, 7)
    loop = A.new("ln")
    A.label(loop)
    A(f"s_lshl_b32 {s(S_OUT)}, {s(S_STEP)}, 16")
    for i in range(4):
        A(f"buffer_load_dwordx4 {v(XB + 4 * i, 4)}, {v(VO + 1)}, {s(SW3, 4)}, {s(S_OUT)} offen offset:{128 * i}")
    A(f"s_add_u32 {s(S_NEED)}, {s(S_STEP)}, 1")

    block_on(A, lambda: A(f"buffer_load_dword {v(VF)}, {v(VFA)}, {s(SWS, 4)}, {s(S_FA)} offen sc1"),
             lambda: A(f"v_cmp_gt_u32 vcc, {s(S_NEED)}, {v(VF)}"), end, cfg.ln_sleep)
    lap(A, cfg, 0)
    for i in range(4):
        for x in range(4):
            A(f"s_add_u32 {s(S_T1)}, {s(S_OUT)}, {L.PART3 + x * 4 * L.MB + 4096 * i}")
            A(f"buffer_load_dwordx4 {v(PB + 16 * i + 4 * x, 4)}, {v(VO)}, {s(SWS, 4)}, {s(S_T1)} offen sc1")
    unpack(A, F, XB, 16)
    for i in range(4):
        A(f"s_waitcnt vmcnt({4 * (3 - i) + i})")
        if i in (0, 3):
            lap(A, cfg, 1 + i // 3)
        sum_bf(A, T, [PB + 16 * i + 4 * x for x in range(4)], 4)
        A("s_nop 1")
        for q in range(4):
            x = 8 * i + 2 * q
            A(f"v_pk_fma_f32 {v(F + x, 2)}, {v(T + 2 * q, 2)}, {v(GA + x, 2)}, {v(F + x, 2)}")
        pack8(A, XB + 4 * i, F + 8 * i, F + 8 * i + 4)
        A(f"s_add_u32 {s(S_T1)}, {s(S_OUT)}, {L.X1 + 4096 * i}")
        A(f"buffer_store_dwordx4 {v(XB + 4 * i, 4)}, {v(VO)}, {s(SWS, 4)}, {s(S_T1)} offen sc1")
        unpack(A, F + 8 * i, XB + 4 * i, 4)
        moments(A, T + 8, F + 8 * i, 8, i == 0)
    lap(A, cfg, 3)
    normalise(A, F, 32, T + 8, (8, 16, 32), WR, RD)
    lap(A, cfg, 4)
    for i in range(4):
        for q in range(4):
            x = 8 * i + 2 * q
            A(f"v_pk_fma_f32 {v(F + x, 2)}, {v(F + x, 2)}, {v(SC + x, 2)}, {v(SH + x, 2)}")
        pack8(A, PB + 4 * i, F + 8 * i, F + 8 * i + 4)
        A(f"s_add_u32 {s(S_T1)}, {s(S_OUT)}, {L.H2 + 4096 * i}")
        A(f"buffer_store_dwordx4 {v(PB + 4 * i, 4)}, {v(VO)}, {s(SWS, 4)}, {s(S_T1)} offen sc1")
    lap(A, cfg, 5)
    A(f"v_mov_b32 {v(VP)}, {s(S_NEED)}")
    A("s_waitcnt vmcnt(0)")
    A("s_barrier")
    lap(A, cfg, 6)
    A(f"buffer_store_dword {v(VP)}, {v(VPA)}, {s(SWS, 4)}, 0 offen sc1")
    mark(A, cfg, s(S_NEED))
    A(f"s_add_u32 {s(S_STEP)}, {s(S_STEP)}, 2")
    A(f"s_cmp_lt_u32 {s(S_STEP)}, 64")
    A(f"s_cbranch_scc1 {loop}")
    lap_dump(A, cfg)
    A("s_endpgm")


def g45_role(A, cfg, end):
    A.c("64 hidden units of silu(h w1) * (h w3) and a 512 x 128 slice of the down projection")
    VD5, VR5, VFA5, VF5 = VD, 11, 12, 13
    AC5, TE, VS, HV = 64, 88, 100, 104
    LAG = cfg.lag
    ptr(A, 16, "w1")
    ptr(A, 18, "w3")
    ptr(A, 20, "w2")
    A("s_waitcnt lgkmcnt(0)")
    A.srd(SW, 16, SIZE["w1"])
    A.srd(SW2, 18, SIZE["w3"])
    A.srd(SW3, 20, SIZE["w2"])
    A(f"s_lshl_b32 {s(S_P0)}, {s(S_CU)}, 7")
    A(f"s_lshl_b32 {s(S_T2)}, {s(S_WAVE)}, 5")
    for p in range(2):
        tile_addr(A, TMP + p, "N", False, S_T2, 16384 * p, TMP + 4, TMP + 5)
    load_w(A, [(SW, S_P0), (SW2, S_P0)], 7168, 8, [(TMP, 256), (TMP + 1, 384)], "N", TMP + 4, WFLAG[cfg.wff])
    A(f"s_lshr_b32 {s(S_K)}, {s(S_CU)}, 3")
    A(f"s_and_b32 {s(S_P2)}, {s(S_CU)}, 7")
    A(f"s_lshl_b32 {s(S_P0)}, {s(S_K)}, 20")
    A(f"s_lshl_b32 {s(S_T0)}, {s(S_P2)}, 8")
    A(f"s_add_u32 {s(S_P0)}, {s(S_P0)}, {s(S_T0)}")
    A(f"s_add_u32 {s(S_P1)}, {s(S_P0)}, 128")
    pair_tiles(A, "N")
    load_w(A, [(SW3, S_P0), (SW3, S_P1)], 2048, 4, [(TMP, 128), (TMP + 1, 192)], "N", TMP + 4, WFLAG[cfg.wff])
    mark(A, cfg, 1)
    common_regs(A, 4096)
    S_M5, S_FA5, S_NL, S_OUT4 = S_P0, S_P1, 64, 65
    A(f"s_mov_b32 {s(S_M5)}, {s(S_M0)}")
    A(f"v_add_u32 {v(VR5)}, 0x20000, {v(VR)}")
    A(f"v_mov_b32 {v(VO + 1)}, {v(VR)}")
    lines_addr(A, VFA, LANE, 4)
    lines_addr(A, VFA5, LANE, 8)
    A(f"s_lshl_b32 {s(S_FA5)}, {s(S_K)}, 10")
    A(f"s_add_u32 {s(S_FA5)}, {s(S_FA5)}, {L.P45}")
    A(f"s_lshl_b32 {s(S_T0)}, {s(S_CU)}, 1")
    A(f"s_lshr_b32 {s(S_T1)}, {s(S_WAVE)}, 1")
    A(f"s_add_u32 {s(S_T0)}, {s(S_T0)}, {s(S_T1)}")
    A(f"s_lshl_b32 {s(S_T0)}, {s(S_T0)}, 11")
    A(f"s_and_b32 {s(S_T1)}, {s(S_WAVE)}, 1")
    A(f"s_lshl_b32 {s(S_T1)}, {s(S_T1)}, 9")
    A(f"s_add_u32 {s(S_T0)}, {s(S_T0)}, {s(S_T1)}")
    A(f"v_and_b32 {v(TMP)}, 15, {v(LANE)}")
    A(f"v_lshl_add_u32 {v(VO)}, {v(TMP)}, 4, {s(S_T0)}")
    A(f"v_bfe_u32 {v(TMP)}, {v(LANE)}, 4, 1")
    A(f"v_lshl_add_u32 {v(VO)}, {v(TMP)}, 10, {v(VO)}")
    A(f"v_lshrrev_b32 {v(TMP)}, 5, {v(LANE)}")
    A(f"v_lshl_add_u32 {v(VO)}, {v(TMP)}, 8, {v(VO)}")
    A(f"s_mov_b32 {s(S_OUT)}, {L.HH}")
    A(f"s_mov_b32 {s(S_NXT)}, {L.H2}")
    A(f"s_lshl_b32 {s(S_NXT5)}, {s(S_K)}, 15")
    A(f"s_add_u32 {s(S_NXT5)}, {s(S_NXT5)}, {L.HH - LAG * 229376}")
    A(f"s_lshl_b32 {s(S_T0)}, {s(S_P2)}, 2")
    A(f"s_add_u32 {s(S_T0)}, {s(S_T0)}, {s(S_WAVE)}")
    A(f"s_lshl_b32 {s(S_T0)}, {s(S_T0)}, 11")
    A(f"s_lshl_b32 {s(S_P2)}, {s(S_K)}, 22")
    A(f"s_add_u32 {s(S_P2)}, {s(S_P2)}, {s(S_T0)}")
    A(f"s_add_u32 {s(S_P2)}, {s(S_P2)}, {L.PART5 - LAG * 65536}")
    A(f"s_mov_b32 {s(S_NL)}, 0xbfb8aa3b")
    A(f"v_mov_b32 {v(VS)}, 0")
    A(f"v_mov_b32 {v(VS + 1)}, 0")

    ldf = lambda B=A: B(f"buffer_load_dword {v(VF)}, {v(VFA)}, {s(SWS, 4)}, {s(S_FA)} offen sc1")
    ldf5 = lambda B=A: B(f"buffer_load_dword {v(VF5)}, {v(VFA5)}, {s(SWS, 4)}, {s(S_FA5)} offen sc1")
    tst5 = lambda: A(f"v_cmp_gt_u32 vcc, {s(S_NEED5)}, {v(VF5)}")

    def sig(back5, B=A):
        B(f"v_min_u32 {v(VS)}, {s(S_STEP)}, 64")
        B(f"s_sub_u32 {s(S_T0)}, {s(S_STEP)}, {LAG + back5}")
        B(f"v_max_i32 {v(VS + 1)}, {s(S_T0)}, 0")
        B(f"buffer_store_dwordx2 {v(VS, 2)}, {v(VPA)}, {s(SWS, 4)}, 0 offen sc1")

    def store4(B=A):
        B(f"buffer_store_dwordx4 {v(TE + 8, 4)}, {v(VO)}, {s(SWS, 4)}, {s(S_OUT)} offen sc1")

    def flag_for(B, d):
        B(f"s_add_u32 {s(S_NEED)}, {s(S_STEP)}, {d}")
        B(f"s_and_b32 {s(S_FA)}, {s(S_NEED)}, 1")
        B(f"s_lshl_b32 {s(S_FA)}, {s(S_FA)}, 9")
        B(f"s_add_u32 {s(S_FA)}, {s(S_FA)}, {L.PL}")
        B(f"s_add_u32 {s(S_NEED)}, {s(S_NEED)}, 1")

    def need5(B=A):
        B(f"s_sub_u32 {s(S_NEED5)}, {s(S_STEP)}, {LAG - 1}")
        B(f"s_max_i32 {s(S_NEED5)}, {s(S_NEED5)}, 0")

    def epi4(B, T):
        G, U, H = ACC + 4 * T, ACC + 8 + 4 * T, HV + 4 * T
        for i in range(4):
            B(f"v_mul_f32 {v(TE + i)}, {s(S_NL)}, {v(G + i)}")
        for i in range(4):
            B(f"v_exp_f32 {v(TE + i)}, {v(TE + i)}")
        for i in range(4):
            B(f"v_mul_f32 {v(H + i)}, {v(G + i)}, {v(U + i)}")
        for i in range(4):
            B(f"v_add_f32 {v(TE + i)}, 1.0, {v(TE + i)}")
        for i in range(4):
            B(f"v_rcp_f32 {v(TE + i)}, {v(TE + i)}")
        for i in range(4):
            B(f"v_mul_f32 {v(H + i)}, {v(H + i)}, {v(TE + i)}")
        if T:
            pack8(B, TE + 8, HV, HV + 4)
            B("GAP 2")
            B(f"v_permlane16_swap_b32 {v(TE + 8)}, {v(TE + 10)}")
            B(f"v_permlane16_swap_b32 {v(TE + 9)}, {v(TE + 11)}")

    def epi5(B=A, part=3):
        if part & 1:
            for T in range(2):
                pack8(B, TMP + 4 * T, AC5 + 8 * T, AC5 + 8 * T + 4)
        if part & 2:
            for T in range(2):
                B(f"buffer_store_dwordx4 {v(TMP + 4 * T, 4)}, {v(VO + 1)}, {s(SWS, 4)}, {s(S_OUT5)} offen offset:{1024 * T} sc1")

    def after5(B=A):
        B(f"s_cmp_ge_u32 {s(S_STEP)}, {LAG}")
        B(f"s_cselect_b32 {s(S_OUT5)}, {s(S_P2)}, {hex(OOB)}")
        B(f"s_add_u32 {s(S_OUT)}, {s(S_OUT)}, 229376")
        B(f"s_add_u32 {s(S_P2)}, {s(S_P2)}, 65536")
        B(f"s_add_u32 {s(S_NXT5)}, {s(S_NXT5)}, 229376")
        B(f"s_add_u32 {s(S_STEP)}, {s(S_STEP)}, 1")
    t4 = [(lambda T: ACC + 4 * T, lambda ks: 256 + 4 * ks, False),
          (lambda T: ACC + 8 + 4 * T, lambda ks: 384 + 4 * ks, False)]
    t5 = [(lambda T: AC5 + 8 * T, lambda ks: 128 + 4 * ks, False),
          (lambda T: AC5 + 8 * T + 4, lambda ks: 192 + 4 * ks, False)]
    assert LAG == 3
    event(A, cfg, 5)
    if cfg.gate45:
        A("s_memrealtime s[90:91]")
        gate(A, cfg.gate45)
    body, wait, late5, go5, starved, final = (A.new(x) for x in ("fb", "fw", "fl", "fg", "fs", "fz"))
    tst = lambda: A(f"v_cmp_gt_u32 vcc, {s(S_NEED)}, {v(VF)}")
    rd4, rd5 = reader(VR, 64, True), reader(VR5, 32, False)
    A(f"s_mov_b32 {s(S_STEP)}, 0")
    lap_init(A, cfg)
    lap(A, cfg, 7)
    entry, idle = A.new("fe"), A.new("fd")
    flag_for(A, 0)

    def request():
        for js in ((0, 2), (1, 3)):
            for op in dma_list(4, S_M0, 0, S_NXT, VD, js):
                A(op)
    A.label(wait)
    block_on(A, lambda: (ldf5(), ldf()), tst, end, cfg.g4_sleep)
    request()
    A("s_waitcnt vmcnt(8)")
    A.label(entry)
    A(f"s_mov_b32 {s(S_OUT5)}, {hex(OOB)}")
    A("s_barrier")
    lap(A, cfg, 4)
    first_reads(A, rd4)
    A.label(body)

    def head(B):
        need5(B)
        decide(B, S_NEED5, VF5, S_RDY5, S_SRC5, S_NXT5, True)
        flag_for(B, 1)
        ldf(B)
        B(f"s_add_u32 {s(S_NXT)}, {s(S_NXT)}, 65536")
        B(f"s_xor_b32 {s(S_M0)}, {s(S_M0)}, 0x10000")

    def look(B):
        B("s_waitcnt vmcnt(@f4)")
        decide(B, S_NEED, VF, S_RDY, S_SRC, S_NXT, True)
        B(f"v_cmp_gt_u32 vcc, 62, {v(VF5)}")
        B(f"s_add_u32 {s(S_T2)}, {s(S_NXT5)}, 229376")
        B("GAP 2")
        B("s_cmp_eq_u64 vcc, 0")
        B(f"s_cselect_b32 {s(S_T2)}, {s(S_T2)}, {hex(OOB)}")
        B(f"s_cmp_eq_u32 {s(S_STEP)}, 63")
        B(f"s_cselect_b32 {s(S_SRC)}, {s(S_T2)}, {s(S_SRC)}")
    first = len(A.lines)
    d5 = split_loads(tag(dma_list(2, S_M5, 0x20000, S_SRC5, VD5), "d5"), [6])
    t0 = split_loads(tag(dma_list(4, S_M0, 0, S_SRC, VD, (0, 2)), "t0"), [6])
    t1 = split_loads(tag(dma_list(4, S_M0, 0, S_SRC, VD, (1, 3)), "t1"), [7])
    job(A, 64, rd4, True, t4,
        [(0, 1, tag(lines(head), "f4")), (0, 8, d5[0] + ["END 58"]), (-51, 3, lines(lambda B: sig(1, B))), (0, 7, d5[1]),
         (-60, 1, lines(look) + ["END 72"]), (72, 8, t0[0]),
         (-10, 1, lines(lambda B: epi5(B, 1))), (-72, 1, lines(lambda B: epi4(B, 0)))], 0, 59,
        syncs={32: ["s_waitcnt vmcnt(@t1,st)", "s_barrier"]})
    lap(A, cfg, 0)
    A(f"s_cmp_eq_u32 {s(S_RDY5)}, 0")
    A(f"s_cbranch_scc1 {late5}")
    A("s_waitcnt vmcnt(@d5) lgkmcnt(0)")
    A.label(go5)
    A("s_barrier")
    lap(A, cfg, 1)
    job(A, 64, rd4, True, t4, [(1, 6, t0[1]), (-4, 1, tag(lines(ldf) + lines(ldf5), "fl") +
                                               [f"v_xor_b32 {v(VR)}, 0x10000, {v(VR)}"])], 59, 64, rd5)
    job(A, 32, rd5, False, t5,
        [(3, 8, t1[0]), (-7, 8, tag(lines(lambda B: epi5(B, 2)), "st") + ["END 40"]),
         (-8, 1, lines(lambda B: epi4(B, 1))), (40, 1, tag(lines(store4), "st") + lines(after5))], 0, 27)
    event(A, cfg, 6, True)
    span(A, cfg)
    lap(A, cfg, 2)
    A(f"s_cmp_eq_u32 {s(S_RDY)}, 0")
    A("s_waitcnt vmcnt(@t0,fl) lgkmcnt(0)")
    A(f"s_cbranch_scc1 {starved}")
    A("s_barrier")
    lap(A, cfg, 3)
    job(A, 32, rd5, False, t5, [(5, 1, t1[1])], 27, 32, rd4)
    resolve(A, first)
    mark(A, cfg, s(S_STEP))
    A(f"s_branch {body}")
    A.label(starved)
    if cfg.marks in (2, 5):
        A("s_add_u32 s75, s75, 64")
    A.c("second look at the next input")
    tst()
    A(f"s_cbranch_vccnz {idle}")
    request()
    job(A, 32, rd5, False, t5, [], 27, 32)
    A.nop(8)
    epi5()
    A("s_waitcnt vmcnt(10)")
    mark(A, cfg, s(S_STEP))
    A(f"s_branch {entry}")
    A.label(idle)
    job(A, 32, rd5, False, t5, [], 27, 32)
    mark(A, cfg, s(S_STEP))
    A.nop(8)
    epi5(A, 1)
    A(f"s_cmp_eq_u32 {s(S_STEP)}, 64")
    A(f"s_cbranch_scc1 {final}")
    epi5(A, 2)
    A(f"s_branch {wait}")
    A.label(late5)
    if cfg.marks in (2, 5):
        A("s_add_u32 s76, s76, 64")
    block_on(A, ldf5, tst5, end)
    for op in dma_list(2, S_M5, 0x20000, S_NXT5, VD5):
        A(op)
    A("s_waitcnt vmcnt(0) lgkmcnt(0)")
    A(f"s_branch {go5}")

    A.label(final)
    A.c("last three down projections, with inputs in the free up-projection buffers")
    lap_dump(A, cfg)
    A("s_waitcnt vmcnt(0)")
    A("s_barrier")
    sig(1)
    A(f"v_add_u32 {v(VR5)}, -0x20000, {v(VR5)}")

    def fetch(i, block):
        out = A.new("fq")
        A(f"s_mov_b32 {s(S_NEED5)}, {62 + i}")
        if block:
            A(f"s_cmp_lg_u32 {s(S_RDY5)}, 0")
            A(f"s_cbranch_scc1 {out}")
            block_on(A, ldf5, tst5, end, 1)
        else:
            tst5()
            A(f"s_mov_b32 {s(S_RDY5)}, 0")
            A(f"s_cbranch_vccnz {out}")
            A(f"s_mov_b32 {s(S_RDY5)}, 1")
        A(f"s_add_u32 {s(S_SRC5)}, {s(S_T3)}, {229376 * i}")
        for op in dma_list(2, S_M5, 0x10000 * i, S_SRC5, VD5):
            A(op)
        if block:
            A("s_waitcnt vmcnt(0)")
        A.label(out)

    def alone(fill):
        A("s_barrier")
        first_reads(A, rd5)
        job(A, 32, rd5, False, t5, fill)
        after5()
        A(f"v_add_u32 {v(VR5)}, 0x10000, {v(VR5)}")
        A("s_nop 0")
        epi5(A, 1)
        mark(A, cfg, s(S_STEP))
    A(f"s_mov_b32 {s(S_T3)}, {s(S_NXT5)}")
    A(f"s_cmp_lg_u32 {s(S_SRC)}, {hex(OOB)}")
    A(f"s_cselect_b32 {s(S_RDY5)}, 1, 0")
    fetch(0, True)
    fetch(1, False)
    alone([(2, 6, lines(lambda B: epi5(B, 2))), (cfg.f63, 1, lines(ldf5))])
    A("s_waitcnt vmcnt(0)")
    fetch(1, True)
    fetch(2, False)
    alone([(2, 6, lines(lambda B: epi5(B, 2)))])
    A("s_waitcnt vmcnt(2)")
    fetch(2, True)
    alone([(2, 6, lines(lambda B: epi5(B, 2)))])
    epi5(A, 2)
    A("s_waitcnt vmcnt(0)")
    A("s_barrier")
    sig(0)
    report(A, cfg, (5, 6))
    A("s_endpgm")
```

```python
from asmlib import *
import layout as L

SWS, SW, SDBG = 4, 8, 12
P_MEM0, P_WQ, P_WK, P_WV, P_WO, P_DBG, P_WS = 16, 18, 20, 22, 24, 28, 30
S_WAVE, S_GRP, S_TK, S_IRR, S_STEP, S_BUD, S_T0, S_T1 = 32, 33, 34, 35, 36, 37, 38, 39
S_CUR, S_NXT, S_RST, S_XCUR, S_XRST, S_RBASE, S_PAR, S_PF, S_C, S_NC, S_OT = range(40, 51)
S_XCC, S_T2, S_T3 = 51, 52, 53
S_FB, S_TAG = 59, 26
S_XC, S_XR = 84, 88
S_STAMP = 60
S_CNT = 80
BUDGET = 200000
SM = "v_smfmac_f32_16x16x64_bf16"
MF = "v_mfma_f32_16x16x32_bf16"


WFLAG = ("", " nt", " sc1")


class Cfg:
    trace = 0
    nsteps = 64
    lag = 3
    s1_flag = 36
    wlo = 0
    whi = 0
    wff = 0
    wmod = 0
    ramp_lo = 5
    ramp_hi = 3
    g3_after = 0
    q_after = 0
    x2late = 1
    hi_first = 0
    lo_first = 8
    k_after = 0
    meet = 1
    ln_one = 1
    d5_step = 8
    st5_pos = 2
    early3 = 40
    nearly = 4
    early5 = 30
    fin_nb = 2
    skip63 = 1
    dense = 0
    wbl2 = 1
    dgap = 20
    dsets = 2
    f63 = 45
    nap_o = 0
    nap_m = 0
    usesleep = 0
    g3_sleep = 1
    spec = 0
    po_pos = 0
    fine = 0
    hmask = 0
    near = 2
    marks = 0
    qsig = 70
    codepf = 1
    qmap = 0
    gate2 = 0
    report = 0
    rep_step = 0
    gate45 = 0
    gate_entry = 0
    gate3 = 0
    gate = 0
    outflag = 2
    qkv_slow = 3
    g4_split = 4
    g4_step = 5
    st_step = 4
    q_step = 10
    g4_late = 1
    mark = staticmethod(lambda A, i: None)
    fin_sleep = 4
    ln_sleep = 2
    g4_sleep = 4
    solo = 0
    cyc = 0
    flip = 0
    nrep = 2
    xdelay = 20
    xgap = 8
    xfill = 0
    fm_delay = 28
    mdelay = 11
    fo_pos = 3
    use_fm = 1
    use_fo = 1
    nflag = 3
    qjoint = 1
    qown = 4
    fo_wait = 0
    fspace = 6
    lspace = 3
    ltail = 3
    kpos = 1
    vpos = 0
    ksplit = 1
    qsplit = 3
    rpos = 3
    vin = 1
    vk = 2
    vk2 = 4
    xdepth = 3
    xgap2 = 12
    xbf = 1
    vchk = 1
    qpipe = 0
    fillw = 0
    fillr = 0
    qfw = 0
    qfr = 0
    qfw2 = 0
    hw = 0
    hr = 0


def gate(A, us):
    if us:
        gl = A.new("gate")
        A.label(gl)
        A("s_memrealtime s[92:93]")
        A("s_waitcnt lgkmcnt(0)")
        A("s_sub_u32 s92, s92, s90")
        A(f"s_cmp_lt_u32 s92, {us * 100}")
        A(f"s_cbranch_scc1 {gl}")


def event(A, cfg, k, stepped=False):
    if cfg.report != k:
        return
    skip = A.new("ev")
    if stepped:
        A(f"s_cmp_lg_u32 {s(S_STEP)}, {cfg.rep_step}")
        A(f"s_cbranch_scc1 {skip}")
    A("s_memrealtime s[100:101]")
    A("s_waitcnt lgkmcnt(0)")
    A.label(skip)


def report(A, cfg, ks):
    if cfg.report in ks:
        A("s_mov_b32 s90, s100")
        gate(A, 200)


def pause(A, cfg, h, n, bit, keep=0):
    hot = n if cfg.hmask >> bit & 1 else min(n, keep)
    idle = n - hot
    if cfg.usesleep and idle >= 5:
        A(f"s_sleep {(idle - 1) // 4}")
        idle -= 4 * ((idle - 1) // 4) + 1
    A.nop(4 * idle)
    heat(A, h, hot)


def busy(A, h, n):
    for _ in range(n):
        A(f"v_mov_b32 {v(h)}, 0")


def heat(A, h, n):
    for _ in range(n):
        A(f"{MF} {v(h, 4)}, {v(h + 4, 4)}, {v(h + 4, 4)}, 0")


def stamp(A, cfg, i, lvl=1):
    if cfg.trace in (1, lvl):
        A(f"{'s_memtime' if cfg.cyc else 's_memrealtime'} {s(S_STAMP + 2 * i, 2)}")


def fine(A, cfg, i, grp):
    if cfg.trace == 1 and cfg.fine == grp:
        A(f"s_memtime {s(S_STAMP + 12 + 2 * i, 2)}")


def count(A, cfg, i):
    if cfg.trace == 1:
        A(f"s_add_u32 {s(S_CNT + i)}, {s(S_CNT + i)}, 1")


def flush_stamps(A, cfg, n, vt, va, lvl=1):
    if cfg.trace not in (1, lvl):
        return
    A("s_waitcnt lgkmcnt(0)")
    for i in range(n):
        A(f"v_writelane_b32 {v(vt)}, {s(S_STAMP + 2 * i)}, {i}")
    A(f"v_writelane_b32 {v(vt)}, {s(S_BUD)}, 8")
    for i in range(4):
        A(f"v_writelane_b32 {v(vt)}, {s(S_CNT + i)}, {9 + i}")
    A(f"s_mul_i32 {s(S_T0)}, {s(S_GRP)}, 24")
    A(f"s_add_u32 {s(S_T0)}, {s(S_T0)}, {s(S_TK)}")
    A(f"s_lshl_b32 {s(S_T0)}, {s(S_T0)}, 2")
    A(f"s_add_u32 {s(S_T0)}, {s(S_T0)}, {s(S_WAVE)}")
    A(f"s_lshl_b32 {s(S_T0)}, {s(S_T0)}, 6")
    A(f"s_add_u32 {s(S_T0)}, {s(S_T0)}, {s(S_STEP)}")
    A(f"s_lshl_b32 {s(S_T0)}, {s(S_T0)}, 6")
    A(f"s_add_u32 {s(S_T0)}, {s(S_T0)}, {L.TRACE}")
    A(f"v_mbcnt_lo_u32_b32 {v(va)}, -1, 0")
    A(f"v_lshlrev_b32 {v(va)}, 2, {v(va)}")
    A("s_mov_b64 exec, 0xffff")
    A(f"buffer_store_dword {v(vt)}, {v(va)}, {s(SWS, 4)}, {s(S_T0)} offen")
    A("s_mov_b64 exec, -1")


def check(A, reg, n, tmp):
    if n == 4:
        A(f"v_max3_u32 {v(tmp)}, {v(reg)}, {v(reg + 1)}, {v(reg + 2)}")
        A(f"v_max_u32 {v(tmp)}, {v(tmp)}, {v(reg + 3)}")
    elif n > 4:
        A(f"v_max3_u32 {v(tmp)}, {v(reg)}, {v(reg + 1)}, {v(reg + 2)}")
        for i in range(3, n - 1, 2):
            A(f"v_max3_u32 {v(tmp)}, {v(tmp)}, {v(reg + i)}, {v(reg + i + 1)}")
        A(f"v_max_u32 {v(tmp)}, {v(tmp)}, {v(reg + n - 1)}")
    elif n == 2:
        A(f"v_max_u32 {v(tmp)}, {v(reg)}, {v(reg + 1)}")
    A(f"v_cmp_eq_u32 vcc, -1, {v(tmp)}")


def spend(A, abort):
    A(f"s_sub_u32 {s(S_BUD)}, {s(S_BUD)}, 1")
    A(f"s_cbranch_scc1 {abort}")


def fsm_poll(A, n, ld, chk, use, abort, finished=None, fast=None, onfail=None, undo=None, dense=None):
    done = A.new("pd")
    labels, emitted, todo = {}, set(), []
    full = frozenset(range(n))
    if finished is None:
        finished = lambda got: got == full

    def lab(st):
        if st not in labels:
            labels[st] = A.new("ps")
            todo.append(st)
        return labels[st]

    fails = []

    def chain_from(st, last):
        while True:
            if st in emitted:
                A(f"s_branch {lab(st)}")
                return
            emitted.add(st)
            A.label(lab(st))
            fl = A.new("pf")
            fails.append((fl, st))
            A(f"s_waitcnt vmcnt({len(st) - 1})")
            chk(st[0])
            A(f"s_cbranch_vccnz {fl}")
            rest = st[1:]
            fin = finished(full - frozenset(rest))
            use(st[0], () if fin else rest)
            if fin:
                if not last:
                    A(f"s_branch {done}")
                return
            st = rest

    if fast is None:
        chain_from(tuple(range(n)), True)
    else:
        head, tail = fast[:2]
        joint = fast[2:] if len(fast) > 2 else None
        for i in range(n):
            if joint and i == n - 2:
                both = A.new("pj")
                A("s_waitcnt vmcnt(0)")
                joint[0]()
                tail(i - 1)
                A(f"s_cbranch_vccnz {both}")
                joint[1]()
                break
            fl = A.new("pf")
            fails.append((fl, tuple(range(i, n))))
            A(f"s_waitcnt vmcnt({n - 1 - i})")
            chk(i)
            if i:
                tail(i - 1)
            elif undo:
                head(0)
            A(f"s_cbranch_vccnz {fl}")
            if i or not undo:
                head(i)
        else:
            tail(n - 1)

    dense_at = {}

    def dense_loop(st):
        _, ldto, home, spare, gap, tmp, nset = dense
        k = len(st)
        top, got = A.new("pt"), A.new("pg")
        outs = [A.new("pa") for _ in range(nset)]
        issue = lambda w: [ldto(j, spare + 4 * (k * w + x)) for x, j in enumerate(st)]
        for w in range(nset):
            if w:
                A.nop(gap)
            issue(w)
        A.label(top)
        for w in range(nset):
            A(f"s_waitcnt vmcnt({k * (nset - 1)})")
            check(A, spare + 4 * k * w, 4 * k, tmp)
            for x, j in enumerate(st):
                for h in range(2):
                    A(f"v_mov_b64 {v(home + 4 * j + 2 * h, 2)}, {v(spare + 4 * (k * w + x) + 2 * h, 2)}")
            A(f"s_cbranch_vccz {got}")
            issue(w)
        spend(A, abort)
        A(f"s_branch {top}")
        A.label(got)
        A("s_nop 0")
        for x, j in enumerate(st):
            use(j, st[x + 1:])
        A(f"s_branch {done}")

    def rest_code():
        if fast is not None and joint:
            A.label(both)
            ld(n - 2)
            ld(n - 1)
            if onfail:
                onfail(True)
            spend(A, abort)
            A(f"s_branch {lab((n - 2, n - 1))}")
        nfast = len(fails) if fast is not None else 0
        i = 0
        while i < len(fails) or any(t not in emitted for t in todo):
            while i < len(fails):
                fl, st = fails[i]
                i += 1
                A.label(fl)
                if dense and dense[0](st):
                    if onfail:
                        onfail(i <= nfast)
                    key = tuple(sorted(st))
                    if key in dense_at:
                        A(f"s_branch {dense_at[key]}")
                    else:
                        dense_at[key] = A.new("pe")
                        A.label(dense_at[key])
                        dense_loop(key)
                    continue
                ld(st[0])
                if undo and i == 1:
                    undo()
                if onfail:
                    onfail(i <= nfast)
                if st[0] == min(st):
                    spend(A, abort)
                chain_from(st[1:] + st[:1], False)
            for t in list(todo):
                if t not in emitted:
                    chain_from(t, False)
    return done, rest_code


def flag_wait(A, cfg, vaddr, buf, nl, abort, nap=0):
    go, top = A.new("fg"), A.new("ft")
    ld = lambda b: A(f"buffer_load_dword {v(buf + b)}, {v(vaddr)}, {s(SWS, 4)}, {s(S_FB)} offen sc1")
    if nap:
        A(f"s_sleep {nap}")
    A(f"s_mov_b64 exec, {(1 << nl) - 1}")
    n = cfg.nflag
    for b in range(n):
        ld(b)
        if b < n - 1:
            A.nop(cfg.fspace)
    A.label(top)
    for b in range(n):
        A(f"s_waitcnt vmcnt({n - 1})")
        A(f"v_cmp_gt_u32 vcc, {s(S_TAG)}, {v(buf + b)}")
        ld(b)
        A(f"s_cbranch_vccz {go}")
    spend(A, abort)
    A(f"s_branch {top}")
    A.label(go)
    A("s_mov_b64 exec, -1")


def load_weights(A, chunks, flag="", first=None, ramp=5):
    NS = 5

    def issue(c):
        setup, stride, kind, vglob, vtr, dst = chunks[c]
        setup()
        A(f"s_mul_i32 {s(S_T0)}, {s(S_WAVE)}, 40960")
        A(f"s_add_u32 m0, {s(S_T0)}, {(c % NS) * 8192}")
        for j in range(8):
            if j:
                A(f"s_add_u32 m0, m0, 1024")
                A(f"s_add_u32 {s(S_T1)}, {s(S_T1)}, {8 * stride}")
            else:
                A("s_nop 0")
            A(f"buffer_load_dwordx4 {v(vglob)}, {s(SW, 4)}, {s(S_T1)} offen{flag} lds")

    n = len(chunks)
    for c in range(ramp):
        issue(c)
    if ramp < NS:
        A(f"s_waitcnt vmcnt({8 * (ramp - 1)})")
        for c in range(ramp, NS):
            issue(c)
    for c in range(n):
        setup, stride, kind, vglob, vtr, dst = chunks[c]
        A(f"s_waitcnt vmcnt({8 * (min(c + NS, n) - c - 1)})")
        if c == 0 and first:
            first()
        for t in range(4):
            col = 64 * (t >> 1) + 16 * (t & 1) if kind == "K" else 32 * t
            for H in range(2):
                for q in range(2):
                    row = 32 * H + 2 * q
                    off = (c % NS) * 8192 + row * 128 + col
                    A(f"ds_read_b64_tr_b16 {r(dst(t) + 4 * H + 2 * q, 2)}, {v(vtr)} offset:{off}")
        A("s_waitcnt lgkmcnt(0)")
        if c + NS < n:
            issue(c + NS)


def glob_addr(A, dst, lane, shift, sxor, t0):
    A(f"v_and_b32 {v(t0)}, 7, {v(lane)}")
    A(f"v_lshlrev_b32 {v(t0)}, 4, {v(t0)}")
    A(f"v_xor_b32 {v(t0)}, {s(sxor)}, {v(t0)}")
    A(f"v_lshrrev_b32 {v(dst)}, 3, {v(lane)}")
    A(f"v_lshl_add_u32 {v(dst)}, {v(dst)}, {shift}, {v(t0)}")


def tr_addr(A, dst, lane, kind, t0):
    A(f"v_bfe_u32 {v(dst)}, {v(lane)}, 2, 1")
    for bit, sh in (((4, 4), (5, 3), (3, 2)) if kind == "O" else ((5, 4), (4, 2), (3, 3))):
        A(f"v_bfe_u32 {v(t0)}, {v(lane)}, {bit}, 1")
        A(f"v_lshl_add_u32 {v(dst)}, {v(t0)}, {sh}, {v(dst)}")
    A(f"s_mul_i32 {s(S_T0)}, {s(S_WAVE)}, 40960")
    A(f"v_lshl_add_u32 {v(dst)}, {v(dst)}, 7, {s(S_T0)}")
    for bit, sh in (((0, 5), (1, 3)) if kind == "K" else ((0, 3), (1, 4))):
        A(f"v_bfe_u32 {v(t0)}, {v(lane)}, {bit}, 1")
        A(f"v_lshl_add_u32 {v(dst)}, {v(t0)}, {sh}, {v(dst)}")


def sparse_index(A, dst, lane):
    A(f"v_bfe_u32 {v(dst)}, {v(lane)}, 1, 1")
    A(f"v_mul_u32_u24 {v(dst)}, 0xaaaa, {v(dst)}")
    A(f"v_add_u32 {v(dst)}, 0x4444, {v(dst)}")


def role_prologue(A, end, cfg=Cfg):
    A("s_cmp_ge_u32 s2, 256")
    A(f"s_cbranch_scc1 {end}")
    A(f"s_load_dwordx8 {s(P_MEM0, 8)}, s[0:1], {KA['mem0']}")
    A(f"s_load_dwordx2 {s(P_WO, 2)}, s[0:1], {KA['Wo']}")
    A(f"s_load_dwordx4 {s(P_DBG, 4)}, s[0:1], {KA['dbg']}")
    A(f"s_getreg_b32 {s(S_XCC)}, hwreg(HW_REG_XCC_ID, 0, 4)")
    A(f"s_and_b32 {s(S_XCC)}, {s(S_XCC)}, 7")
    A("v_lshrrev_b32 v1, 6, v0")
    A("s_nop 0")
    A(f"v_readfirstlane_b32 {s(S_WAVE)}, v1")
    A("v_and_b32 v1, 63, v0")
    A("s_waitcnt lgkmcnt(0)")
    A.srd(SWS, P_WS, SIZE["ws"])
    A.srd(SDBG, P_DBG, SIZE["dbg"])
    A(f"s_mov_b32 {s(S_BUD)}, {BUDGET}")
    for i in range(4):
        A(f"s_mov_b32 {s(S_CNT + i)}, 0")
    got, loop, skip = A.new("rg"), A.new("rl"), A.new("rs")
    A(f"s_cmp_lg_u32 {s(S_WAVE)}, 0")
    A(f"s_cbranch_scc1 {skip}")
    A(f"s_mov_b32 {s(S_GRP)}, {s(S_XCC)}")
    A(f"s_mov_b32 {s(S_IRR)}, 0")
    A("s_mov_b64 exec, 1")
    A.label(loop)
    A(f"v_lshlrev_b32 v2, 5, {s(S_GRP)}")
    A("v_mov_b32 v3, 1")
    A(f"buffer_atomic_add v3, v2, {s(SDBG, 4)}, 0 offen sc0 sc1")
    A("s_waitcnt vmcnt(0)")
    A(f"v_readfirstlane_b32 {s(S_TK)}, v3")
    A("s_nop 3")
    A(f"s_cmp_lt_u32 {s(S_TK)}, 32")
    A(f"s_cbranch_scc1 {got}")
    A(f"s_add_u32 {s(S_GRP)}, {s(S_GRP)}, 1")
    A(f"s_and_b32 {s(S_GRP)}, {s(S_GRP)}, 7")
    A(f"s_add_u32 {s(S_IRR)}, {s(S_IRR)}, 1")
    A(f"s_cmp_lt_u32 {s(S_IRR)}, 8")
    A(f"s_cbranch_scc1 {loop}")
    A.label(got)
    A(f"s_lshl_b32 {s(S_T0)}, {s(S_GRP)}, 8")
    A(f"s_min_u32 {s(S_TK)}, {s(S_TK)}, 255")
    A(f"s_or_b32 {s(S_T0)}, {s(S_T0)}, {s(S_TK)}")
    A(f"s_lshl_b32 {s(S_T1)}, {s(S_IRR)}, 16")
    A(f"s_or_b32 {s(S_T0)}, {s(S_T0)}, {s(S_T1)}")
    A(f"v_mov_b32 v3, {s(S_T0)}")
    A("v_mov_b32 v2, 0")
    A("ds_write_b32 v2, v3")
    A("s_mov_b64 exec, -1")
    A.label(skip)
    A("s_waitcnt lgkmcnt(0)")
    A("s_barrier")
    A("v_mov_b32 v2, 0")
    A("ds_read_b32 v3, v2")
    A("s_waitcnt lgkmcnt(0)")
    A(f"v_readfirstlane_b32 {s(S_T0)}, v3")
    A("s_barrier")
    A(f"s_and_b32 {s(S_TK)}, {s(S_T0)}, 255")
    A(f"s_bfe_u32 {s(S_GRP)}, {s(S_T0)}, 0x80008")
    A(f"s_lshr_b32 {s(S_IRR)}, {s(S_T0)}, 16")
    A(f"s_min_u32 {s(S_IRR)}, {s(S_IRR)}, 1")
    A(f"s_cmp_ge_u32 {s(S_TK)}, 32")
    A(f"s_cbranch_scc1 {end}")
    A.c("the roles that must start first take the first tickets")
    A(f"s_cmp_ge_u32 {s(S_GRP)}, 4")
    A(f"s_cselect_b32 {s(S_T0)}, {cfg.hi_first}, {cfg.lo_first}")
    A(f"s_add_u32 {s(S_TK)}, {s(S_TK)}, {s(S_T0)}")
    A(f"s_and_b32 {s(S_TK)}, {s(S_TK)}, 31")


def arrive(A, add_reg, hi=False, wait=True, join=True, t=48):
    skip = A.new("ar")
    if wait:
        A("s_waitcnt vmcnt(0)")
    if join:
        A("s_barrier")
    A(f"s_cmp_lg_u32 {s(S_WAVE)}, 0")
    A(f"s_cbranch_scc1 {skip}")
    A("s_mov_b64 exec, 1")
    A(f"v_mov_b32 {v(t)}, {144 if hi else 16}")
    A(f"v_mov_b32 {v(t + 1)}, {s(add_reg)}")
    A(f"buffer_atomic_add {v(t + 1)}, {v(t)}, {s(SDBG, 4)}, 0 offen sc1")
    A("s_mov_b64 exec, -1")
    A.label(skip)


def await_start(A, abort, t=48, hi_only=False, probed=False, join=True):
    loop, out = A.new("st"), A.new("so")
    A.label(loop)
    A(f"buffer_load_dword {v(t)}, off, {s(SDBG, 4)}, 0 offset:{144 if hi_only else 16} sc1")
    A(f"buffer_load_dword {v(t + 1)}, off, {s(SDBG, 4)}, 0 offset:144 sc1")
    A("s_waitcnt vmcnt(0)")
    A(f"v_add_u32 {v(t)}, {v(t)}, {v(t + 1)}")
    A("s_nop 0")
    A(f"v_readfirstlane_b32 {s(S_T0)}, {v(t)}")
    A("s_nop 3")
    A(f"s_and_b32 {s(S_T1)}, {s(S_T0)}, {hex(0x200ffff if probed else 0xffff)}")
    A(f"s_cmp_eq_u32 {s(S_T1)}, {hex(0x2000100 if probed else 0x100)}")
    A(f"s_cbranch_scc1 {out}")
    spend(A, abort)
    A("s_sleep 8")
    A(f"s_branch {loop}")
    A.label(out)
    A(f"s_bfe_u32 {s(S_IRR)}, {s(S_T0)}, 0x80010")
    A(f"s_bfe_u32 {s(S_PAR)}, {s(S_T0)}, 0x10018")
    A(f"s_lshl_b32 {s(S_PAR)}, {s(S_PAR)}, 13")
    if join:
        A("s_barrier")


def probe(A, lane, dst, dbg=False):
    skip = A.new("pb")
    A(f"s_cmp_lg_u32 {s(S_WAVE)}, 0")
    A(f"s_cbranch_scc1 {skip}")
    A(f"v_lshlrev_b32 v52, 8, {v(lane)}")
    A("v_mov_b32 v53, -1")
    A(f"s_mov_b32 {s(S_T3)}, {L.XRING + 0x8000}")
    A(f"buffer_store_dword v53, v52, {s(SWS, 4)}, {s(S_T3)} offen sc1")
    A("s_waitcnt vmcnt(0)")
    A("s_mov_b64 exec, 1")
    for h in range(2):
        A(f"s_mov_b32 {s(60 + h)}, -1")
    loop = A.new("pl")
    A("v_mov_b32 v52, 0")
    A("s_mov_b32 s66, 5")
    A.label(loop)
    for h in range(2):
        A(f"s_memtime {s(62, 2)}")
        A("s_waitcnt lgkmcnt(0)")
        A(f"buffer_load_dword v53, v52, {s(SWS, 4)}, {s(S_T3)} offen sc1")
        A("s_waitcnt vmcnt(0)")
        A(f"s_memtime {s(64, 2)}")
        A("s_waitcnt lgkmcnt(0)")
        A("s_sub_u32 s62, s64, s62")
        A(f"s_min_u32 {s(60 + h)}, {s(60 + h)}, s62")
        A(f"v_add_u32 v52, {8192 if h == 0 else 1280 - 8192}, v52")
    A("s_sub_u32 s66, s66, 1")
    A("s_cmp_lg_u32 s66, 0")
    A(f"s_cbranch_scc1 {loop}")
    A("s_mov_b64 exec, -1")
    if dbg:
        A("v_mov_b32 v52, s60")
        A("v_mov_b32 v53, s61")
        A(f"buffer_store_dwordx2 v[52:53], off, {s(SDBG, 4)}, 0 offset:48")
    A("s_cmp_lt_u32 s61, s60")
    A("s_cselect_b32 s62, 1, 0")
    A(f"s_lshr_b32 s63, {s(S_XCC)}, 2")
    A("s_xor_b32 s62, s62, s63")
    A("s_lshl_b32 s62, s62, 24")
    A(f"s_or_b32 {s(dst)}, {s(dst)}, s62")
    A.label(skip)


def xcopy(rr):
    return ((rr & 1) << 20) + ((rr >> 1) << 15)


def x_offsets(A, cfg, dst, slot):
    A(f"s_lshl_b32 {s(dst)}, {s(slot)}, 18")
    A(f"s_add_u32 {s(dst)}, {s(dst)}, {s(S_PAR)}")
    for rr in range(1, cfg.nrep):
        A(f"s_add_u32 {s(dst + rr)}, {s(dst)}, {hex(xcopy(rr))}")


def progress_addr(A, dst, lane, base, index, tmp, word=0):
    A(f"s_lshl_b32 {s(S_T0)}, {s(index)}, 5")
    A(f"s_add_u32 {s(S_T0)}, {s(S_T0)}, {s(S_WAVE)}")
    A(f"s_lshl_b32 {s(S_T0)}, {s(S_T0)}, 2")
    A(f"s_add_u32 {s(S_T0)}, {s(S_T0)}, {base + 4 * word}")
    A(f"v_min_u32 {v(tmp)}, 1, {v(lane)}")
    A(f"v_lshl_add_u32 {v(dst)}, {v(tmp)}, 30, {s(S_T0)}")


def line_addr(A, dst, tid, base, index, tmp):
    A(f"s_lshl_b32 {s(S_T0)}, {s(index)}, 7")
    A(f"s_add_u32 {s(S_T0)}, {s(S_T0)}, {base}")
    A(f"v_min_u32 {v(tmp)}, 1, {v(tid)}")
    A(f"v_lshl_add_u32 {v(dst)}, {v(tmp)}, 30, {s(S_T0)}")


def lines_addr(A, dst, lane, nlines, shift=7):
    A(f"v_min_u32 {v(dst)}, {nlines - 1}, {v(lane)}")
    A(f"v_lshlrev_b32 {v(dst)}, {shift}, {v(dst)}")


def words_addr(A, dst, lane, nlines, tmp, shift=2):
    A(f"v_lshrrev_b32 {v(tmp)}, 2, {v(lane)}")
    A(f"v_min_u32 {v(tmp)}, {nlines - 1}, {v(tmp)}")
    A(f"v_lshlrev_b32 {v(tmp)}, 7, {v(tmp)}")
    A(f"v_and_b32 {v(dst)}, 3, {v(lane)}")
    A(f"v_lshl_add_u32 {v(dst)}, {v(dst)}, {shift}, {v(tmp)}")


def block_on(A, ld, test, abort, sleep=2):
    top, out = A.new("bw"), A.new("bo")
    A.label(top)
    ld()
    A("s_waitcnt vmcnt(0)")
    test()
    A(f"s_cbranch_vccz {out}")
    spend(A, abort)
    if sleep:
        A(f"s_sleep {sleep}")
    A(f"s_branch {top}")
    A.label(out)


def after_stage(A, n, abort, t):
    A(f"s_mov_b32 {s(S_T0)}, {L.MODP + 4096 if n == 1 else L.P1 + 128 * 40}")
    block_on(A, lambda: A(f"buffer_load_dword {v(t)}, off, {s(SWS, 4)}, {s(S_T0)} sc1"),
             lambda: A(f"v_cmp_eq_u32 vcc, -1, {v(t)}" if n == 1 else f"v_cmp_gt_u32 vcc, {n}, {v(t)}"), abort, 8)


def ring_slots(A):
    A(f"s_and_b32 {s(S_T0)}, {s(S_STEP)}, 3")
    A(f"s_lshl_b32 {s(S_T1)}, {s(S_T0)}, 16")
    A(f"s_add_u32 {s(S_CUR)}, {s(S_T1)}, {s(S_RBASE)}")
    A(f"s_xor_b32 {s(S_RST)}, {s(S_CUR)}, 0x20000")
    A(f"s_add_u32 {s(S_TAG)}, {s(S_STEP)}, 1")


def kvo_role(A, cfg, end):
    LRX, FOR, FMW, SEL, FBUF, TAGV = 0, 1, 2, 3, 4, 7
    VG, VGO, PUBM, PUBK, XOWN, XP, HT, LWS, PUBV = 8, 9, 10, 11, 12, 13, 16, 24, 27
    AP, ACK, ACV, ACO, HS, RD, SUM, PW, QD, CHK, XL, SENT, IDX = 28, 44, 60, 76, 92, 100, 106, 108, 109, 110, 112, 4, 126
    WK, WO, WV = 256, 256 + 128, 128
    RK, RV, RO = 0, 6144, 12288
    S_CI, S_X3 = 54, 57
    A.c("KVO role: 64-column slices of the k, v and output projections of head group S_GRP;")
    A.c("each wave covers a quarter of the rows; slot s of wave w holds column tile w^3^s")
    A("v_mov_b32 v44, v0")
    A("v_mov_b32 v45, v1")
    TID, LANE = 44, 45
    t2, t3, t4 = 46, 47, 50
    A(f"s_sub_u32 {s(S_CI)}, {s(S_TK)}, 8")
    A(f"s_xor_b32 {s(S_X3)}, {s(S_WAVE)}, 3")
    A(f"s_lshl_b32 {s(S_RBASE)}, {s(S_GRP)}, 18")
    A(f"s_add_u32 {s(S_RBASE)}, {s(S_RBASE)}, {L.LRING}")
    A(f"s_lshl_b32 {s(S_FB)}, {s(S_GRP)}, 12")
    A(f"s_add_u32 {s(S_FB)}, {s(S_FB)}, {L.FLAGS}")
    A(f"s_lshl_b32 {s(S_T0)}, {s(S_WAVE)}, 12")
    A(f"v_lshl_add_u32 {v(VG)}, {v(LANE)}, 4, {s(S_T0)}")
    A(f"v_add_u32 {v(VGO)}, 49152, {v(VG)}")
    A(f"s_lshl_b32 {s(S_T0)}, {s(S_CI)}, 10")
    A(f"s_lshl_b32 {s(S_T1)}, {s(S_WAVE)}, 8")
    A(f"s_add_u32 {s(S_T1)}, {s(S_T1)}, {s(S_T0)}")
    A(f"v_mov_b32 {v(PUBM)}, {s(S_T1)}")
    for bit, width, sh in ((1, 2, 6), (5, 1, 5), (0, 1, 4), (4, 1, 3), (3, 1, 30)):
        A(f"v_bfe_u32 {v(t2)}, {v(LANE)}, {bit}, {width}")
        A(f"v_lshl_add_u32 {v(PUBM)}, {v(t2)}, {sh}, {v(PUBM)}")
    A(f"v_and_b32 {v(t2)}, 0xf0, {v(TID)}")
    A(f"v_lshl_add_u32 {v(PUBK)}, {v(t2)}, 2, {s(S_T0)}")
    A(f"v_and_b32 {v(t2)}, 3, {v(LANE)}")
    A(f"v_lshl_add_u32 {v(PUBK)}, {v(t2)}, 4, {v(PUBK)}")
    A(f"v_and_b32 {v(t2)}, 12, {v(LANE)}")
    A(f"v_add_u32 {v(PUBK)}, {v(PUBK)}, {v(t2)}")
    A(f"v_xor_b32 {v(PUBK)}, {16384 + (4 << 10)}, {v(PUBK)}")
    A(f"s_lshr_b32 {s(S_T1)}, {s(S_WAVE)}, 1")
    A(f"s_lshl_b32 {s(S_T1)}, {s(S_T1)}, 9")
    A(f"s_add_u32 {s(S_T0)}, {s(S_T0)}, {s(S_T1)}")
    A(f"s_and_b32 {s(S_T1)}, {s(S_WAVE)}, 1")
    A(f"s_lshl_b32 {s(S_T1)}, {s(S_T1)}, 2")
    A(f"s_add_u32 {s(S_T0)}, {s(S_T0)}, {s(S_T1)}")
    A(f"s_xor_b32 {s(S_T0)}, {s(S_T0)}, {32768 + (2 << 10)}")
    A(f"v_lshl_add_u32 {v(PUBV)}, {v(LANE)}, 3, {s(S_T0)}")
    A(f"s_lshl_b32 {s(S_T0)}, {s(S_WAVE)}, 8")
    A(f"s_add_u32 {s(S_T0)}, {s(S_T0)}, 2048")
    A(f"v_lshl_add_u32 {v(FOR)}, {v(LANE)}, 2, {s(S_T0)}")
    A(f"s_lshr_b32 {s(S_T0)}, {s(S_CI)}, 2")
    A(f"s_lshl_b32 {s(S_T0)}, {s(S_T0)}, 8")
    A(f"s_and_b32 {s(S_T1)}, {s(S_CI)}, 3")
    A(f"s_lshl_b32 {s(S_T1)}, {s(S_T1)}, 2")
    A(f"s_add_u32 {s(S_T0)}, {s(S_T0)}, {s(S_T1)}")
    A(f"v_min_u32 {v(t2)}, 1, {v(TID)}")
    A(f"v_lshl_add_u32 {v(FMW)}, {v(t2)}, 30, {s(S_T0)}")
    A(f"s_lshr_b32 {s(S_T0)}, {s(S_CI)}, 3")
    A(f"s_lshl_b32 {s(S_T0)}, {s(S_T0)}, 14")
    A(f"s_and_b32 {s(S_T1)}, {s(S_CI)}, 7")
    A(f"s_lshl_b32 {s(S_T1)}, {s(S_T1)}, 10")
    A(f"s_add_u32 {s(S_T0)}, {s(S_T0)}, {s(S_T1)}")
    A(f"s_lshl_b32 {s(S_T1)}, {s(S_GRP)}, 16")
    A(f"s_add_u32 {s(S_T0)}, {s(S_T0)}, {s(S_T1)}")
    A(f"v_lshl_add_u32 {v(XOWN)}, {v(TID)}, 2, {s(S_T0)}")
    for j in range(3):
        A(f"v_xor_b32 {v(XP + j)}, {hex((j + 1) << 16)}, {v(XOWN)}")
    sparse_index(A, IDX, LANE)
    for i in range(3):
        A(f"s_xor_b32 {s(S_T0)}, {s(S_X3)}, {i}")
        A(f"s_mul_i32 {s(S_T0)}, {s(S_T0)}, 1536")
        A(f"s_add_u32 {s(S_T0)}, {s(S_T0)}, {512 * i}")
        A(f"v_lshl_add_u32 {v(LWS + i)}, {v(LANE)}, 3, {s(S_T0)}")
    A(f"s_mul_i32 {s(S_T0)}, {s(S_WAVE)}, 1536")
    A(f"v_lshl_add_u32 {v(LRX)}, {v(LANE)}, 3, {s(S_T0)}")
    A(f"v_and_b32 {v(t2)}, 1, {v(LANE)}")
    A(f"v_mov_b32 {v(SEL)}, 0x05040100")
    A(f"v_mov_b32 {v(t3)}, 0x03020706")
    A(f"v_cmp_eq_u32 vcc, 1, {v(t2)}")
    A("s_nop 1")
    A(f"v_cndmask_b32 {v(SEL)}, {v(SEL)}, {v(t3)}, vcc")
    A(f"v_and_b32 {v(t2)}, 7, {v(LANE)}")
    A(f"v_lshrrev_b32 {v(t3)}, 4, {v(LANE)}")
    A(f"v_lshlrev_b32 {v(t4)}, 3, {v(t3)}")
    A(f"v_lshl_add_u32 v57, {v(t2)}, 11, {v(t4)}")
    A.srd(SW, P_MEM0, SIZE["mem0"])
    A(f"v_bfe_u32 {v(t2)}, {v(LANE)}, 1, 3")
    A(f"v_cmp_eq_u32 vcc, {v(t2)}, {v(t3)}")
    A(f"v_and_b32 {v(t2)}, 1, {v(LANE)}")
    A(f"v_lshlrev_b32 {v(t2)}, 4, {v(t2)}")
    A(f"v_mov_b32 {v(t3)}, 0x3f80")
    A(f"v_lshlrev_b32 {v(t2)}, {v(t2)}, {v(t3)}")
    for i in range(4):
        A(f"v_cndmask_b32 {v(HT + 4 + i)}, 0, {v(t2)}, vcc")
    A(f"v_mov_b32 {v(SENT)}, -1")
    A(f"v_mov_b32 {v(SENT + 1)}, -1")

    def unwritten(soff, fl):
        A(f"buffer_store_dwordx2 {v(SENT, 2)}, {v(PUBM)}, {s(SWS, 4)}, {s(soff)} offen{fl}")
        for reg in (PUBK, PUBV):
            A(f"buffer_store_dword {v(SENT)}, {v(reg)}, {s(SWS, 4)}, {s(soff)} offen{fl}")
    A.c("'not written' marks in every ring slot this workgroup owns")
    for slot in range(4):
        A(f"s_add_u32 {s(S_T0)}, {s(S_RBASE)}, {slot << 16}")
        unwritten(S_T0, " sc1")
        for k in range(2 * cfg.nrep):
            A(f"s_mov_b32 {s(S_T1)}, {L.XRING + (slot << 18) + ((k & 1) << 13) + xcopy(k >> 1)}")
            A(f"buffer_store_dword {v(SENT)}, {v(XOWN)}, {s(SWS, 4)}, {s(S_T1)} offen sc1")
    A(f"v_mov_b32 {v(TAGV)}, 1")
    A(f"buffer_store_dword {v(TAGV)}, {v(FMW)}, {s(SWS, 4)}, {s(S_FB)} offen sc1")
    A(f"s_lshl_b32 {s(S_T2)}, {s(S_IRR)}, 16")
    A(f"s_or_b32 {s(S_T2)}, {s(S_T2)}, 1")
    arrive(A, S_T2)
    A(f"s_lshl_b32 {s(S_T0)}, {s(S_CI)}, 2")
    A(f"s_add_u32 {s(S_T0)}, {s(S_T0)}, {s(S_WAVE)}")
    A(f"s_lshl_b32 {s(S_T0)}, {s(S_T0)}, 5")
    A(f"buffer_load_dwordx2 v[58:59], v57, {s(SW, 4)}, {s(S_T0)} offen")

    def first():
        A("v_min_u32 v58, -2, v58")
        A("v_min_u32 v59, -2, v59")
        A(f"buffer_store_dwordx2 v[58:59], {v(PUBM)}, {s(SWS, 4)}, {s(S_RBASE)} offen sc1")
    if cfg.k_after and not cfg.solo:
        await_start(A, end)
        after_stage(A, cfg.k_after, end, 51)
    A.c("weights into registers")
    GK, GV, GO, TK, TV, TO = 51, 52, 53, 54, 55, 56
    A(f"s_lshl_b32 {s(S_T2)}, {s(S_X3)}, 5")
    glob_addr(A, GV, LANE, 13, S_T2, t2)
    glob_addr(A, GO, LANE, 11, S_T2, t2)
    A(f"s_and_b32 {s(S_T3)}, {s(S_T2)}, 32")
    A(f"s_lshr_b32 {s(S_T3)}, {s(S_T3)}, 1")
    A(f"s_and_b32 {s(S_T2)}, {s(S_T2)}, 64")
    A(f"s_or_b32 {s(S_T2)}, {s(S_T2)}, {s(S_T3)}")
    glob_addr(A, GK, LANE, 13, S_T2, t2)
    for reg, kind in ((TK, "K"), (TV, "N"), (TO, "O")):
        tr_addr(A, reg, LANE, kind, t2)
    chunks = []
    for ptr, name, base, kind, vg, vt in ((P_WK, "Wk", WK, "K", GK, TK), (P_WV, "Wv", WV, "N", GV, TV), (P_WO, "Wo", WO, "O", GO, TO)):
        for j in range(4):
            def setup(ptr=ptr, name=name, j=j):
                A.srd(SW, ptr, SIZE[name])
                if name == "Wo":
                    A(f"s_lshl_b32 {s(S_T1)}, {s(S_GRP)}, 2")
                    A(f"s_add_u32 {s(S_T1)}, {s(S_T1)}, {s(S_WAVE)}")
                    A(f"s_lshl_b32 {s(S_T1)}, {s(S_T1)}, 19")
                    A(f"s_lshl_b32 {s(S_T0)}, {s(S_CI)}, 7")
                    A(f"s_add_u32 {s(S_T1)}, {s(S_T1)}, {s(S_T0)}")
                    A(f"s_add_u32 {s(S_T1)}, {s(S_T1)}, {j * 64 * 2048}")
                else:
                    A(f"s_lshl_b32 {s(S_T1)}, {s(S_WAVE)}, 21")
                    A(f"s_lshl_b32 {s(S_T0)}, {s(S_GRP)}, 4")
                    A(f"s_add_u32 {s(S_T0)}, {s(S_T0)}, {s(S_CI)}")
                    A(f"s_xor_b32 {s(S_T0)}, {s(S_T0)}, {4 if name == 'Wk' else 2}")
                    A(f"s_lshl_b32 {s(S_T0)}, {s(S_T0)}, 7")
                    A(f"s_add_u32 {s(S_T1)}, {s(S_T1)}, {s(S_T0)}")
                    A(f"s_add_u32 {s(S_T1)}, {s(S_T1)}, {j * 64 * 8192}")
            chunks.append((setup, 2048 if name == "Wo" else 8192, kind, vg, vt,
                           (lambda n, base=base, j=j: base + (j * 4 + n) * 8)))
    if cfg.meet:
        chunks = [chunks[i] for i in (3, 7, 2, 6, 1, 5, 0, 4, 8, 9, 10, 11)]
    load_weights(A, chunks, WFLAG[cfg.wlo], first, cfg.ramp_lo)
    cfg.mark(A, 1)
    await_start(A, end, probed=True)
    A.c("bring one sixteenth of the group's rings into L2")
    A(f"s_lshl_b32 {s(S_T0)}, {s(S_CI)}, 14")
    A(f"s_add_u32 {s(S_T0)}, {s(S_T0)}, {s(S_RBASE)}")
    for i in range(4):
        A(f"buffer_load_dwordx4 {v(AP + 4 * i, 4)}, {v(VG)}, {s(SWS, 4)}, {s(S_T0)} offen offset:{1024 * i} sc1")
    for q in range(48):
        A(f"v_mov_b32 {v(ACK + q)}, 0")
    A(f"s_mov_b32 {s(S_STEP)}, 0")
    ring_slots(A)
    slow_lbl = A.new("kvo_sc1")
    A(f"s_cmp_lg_u32 {s(S_IRR)}, 0")
    A(f"s_cbranch_scc1 {slow_lbl}")

    sm = lambda acc, W, j, n: A(f"{SM} {v(acc + 4 * n, 4)}, {v(AP + 4 * j, 4)}, {r(W + (j * 4 + n) * 8, 8)}, {v(IDX)}")

    def ad(acc, n):
        for b in range(2):
            A(f"v_add_f32 {v(HS + 2 * n + b)}, {v(acc + 4 * n + b)}, {v(acc + 4 * n + 2 + b)}")

    def undo(acc, vin):
        def f():
            A.nop(8)
            for n in range(min(cfg.ksplit + vin, 3 + vin)):
                for q in range(2):
                    A(f"v_pk_mul_f32 {v((acc + 4 * n if n < 3 else ACV + 4 * (n - 3)) + 2 * q, 2)}, 0, 0")
        return f if cfg.spec else None

    def clear_acc():
        for q in range(24):
            A(f"v_pk_mul_f32 {v(ACK + 2 * q, 2)}, 0, 0")
    wr = lambda n, R: A(f"ds_write_b64 {v(LWS + n)}, {v(HS + 2 * n, 2)} offset:{R}")

    def gather(ld):
        for i in range(4):
            ld(i)
            pause(A, cfg, HT, cfg.lspace if i < 3 else cfg.ltail, 4)

    def proj(acc, W, R, vin=0):
        def f(j, lo, hi):
            for n in range(lo, hi):
                sm(acc, W, j, n) if n < 3 else sm(ACV, WV, j, n - 3)

        def last(j):
            for n in range(3):
                sm(acc, W, j, n)
                A("s_nop 1")
            ad(acc, 0)
            sm(acc, W, 0, 3)
            ad(acc, 1)
            wr(0, R)
            ad(acc, 2)
            wr(1, R)
            sm(acc, W, 1, 3)
            wr(2, R)
            sm(acc, W, 2, 3)
            sm(acc, W, 3, 3)
            f(j, 3, 3 + vin)
        sp = min(cfg.ksplit + vin, 3 + vin)
        return (lambda j, rest: f(j, 0, 3 + vin) if rest else last(j)), \
            (lambda j: f(j, 0, sp) if j < 3 else None, lambda j: f(j, sp, 3 + vin) if j < 3 else last(j))

    def collect(acc, R, fill, pad=0, packed=True):
        if packed:
            busy(A, CHK, cfg.fillw)
        A("s_waitcnt lgkmcnt(0)")
        A("s_barrier")
        for i in range(3):
            A(f"ds_read_b64 {v(RD + 2 * i, 2)}, {v(LRX)} offset:{R + 512 * i}")
        A.nop(pad)
        ad(acc, 3)
        fill()
        if packed:
            busy(A, CHK, cfg.fillr)
        A("s_waitcnt lgkmcnt(0)")
        if packed:
            A(f"v_pk_add_f32 {v(RD, 2)}, {v(RD, 2)}, {v(HS + 6, 2)}")
            A(f"v_pk_add_f32 {v(RD + 2, 2)}, {v(RD + 2, 2)}, {v(RD + 4, 2)}")
            A(f"v_pk_add_f32 {v(RD, 2)}, {v(RD, 2)}, {v(RD + 2, 2)}")
        else:
            for b in range(2):
                A(f"v_add_f32 {v(RD + b)}, {v(RD + b)}, {v(HS + 6 + b)}")
                A(f"v_add_f32 {v(RD + 2 + b)}, {v(RD + 2 + b)}, {v(RD + 4 + b)}")
            for b in range(2):
                A(f"v_add_f32 {v(RD + b)}, {v(RD + b)}, {v(RD + 2 + b)}")
        A(f"v_cvt_pk_bf16_f32 {v(PW)}, {v(RD)}, {v(RD + 1)}")

    def to_columns(x):
        A(f"v_mov_b32_dpp {v(QD)}, {v(x)} quad_perm:[1,0,3,2] row_mask:0xf bank_mask:0xf")
        A(f"v_perm_b32 {v(QD)}, {v(QD)}, {v(x)}, {v(SEL)}")

    def body(loc):
        top = A.new("kvo")
        ldm = lambda i, d=None: A(f"buffer_load_dwordx4 {v(d or AP + 4 * i, 4)}, {v(VG)}, {s(SWS, 4)}, {s(S_CUR)} offen offset:{1024 * i} sc1")
        ldo = lambda i, d=None: A(f"buffer_load_dwordx4 {v(d or AP + 4 * i, 4)}, {v(VGO)}, {s(SWS, 4)}, {s(S_CUR)} offen offset:{1024 * i} sc1")
        vq = [(j, n) for n in range(cfg.vin, 4) for j in range(4)]

        def vmf(k):
            for _ in range(k):
                if vq:
                    sm(ACV, WV, *vq.pop(0))

        A.label(top)
        gather(ldm)
        chk4 = lambda i: check(A, AP + 4 * i, 4, CHK)
        onfail = lambda c: (lambda first: count(A, cfg, c) if first else None)
        use, fast = proj(ACK, WK, RK, cfg.vin)
        done, slow1 = fsm_poll(A, 4, ldm, chk4, use, end, fast=fast, onfail=onfail(2), undo=undo(ACK, cfg.vin),
                               dense=(lambda st: len(st) == 1, ldm, AP, XL, cfg.dgap, CHK, cfg.dsets) if cfg.dense & 1 else None)
        A.label(done)
        stamp(A, cfg, 0)
        vmf(cfg.vk)
        collect(ACK, RK, lambda: vmf(cfg.vk2), 3, packed=False)
        A("s_nop 1")
        to_columns(PW)
        A(f"buffer_store_dword {v(QD)}, {v(PUBK)}, {s(SWS, 4)}, {s(S_CUR)} offen{loc}")
        stamp(A, cfg, 1)
        if len(vq) > 4:
            vmf(len(vq) - 4)
            A.nop(max(0, 7 - 3 * cfg.vin))
        left = len(vq)
        vmf(1)
        ad(ACV, 0)
        vmf(1)
        ad(ACV, 1)
        wr(0, RV)
        vmf(1)
        ad(ACV, 2)
        wr(1, RV)
        wr(2, RV)
        vmf(1)
        collect(ACV, RV, lambda: None, 3 if left == 4 else 0)
        A(f"buffer_store_dword {v(PW)}, {v(PUBV)}, {s(SWS, 4)}, {s(S_CUR)} offen{loc}")
        stamp(A, cfg, 2)
        flush_stamps(A, cfg, 8, 124, 125)
        A(f"s_cmp_eq_u32 {s(S_STEP)}, {cfg.nsteps - 1}")
        A(f"s_cbranch_scc1 {end}")
        A(f"v_add_u32 {v(TAGV)}, 1, {v(TAGV)}")
        A(f"s_and_b32 {s(S_T0)}, {s(S_STEP)}, 3")
        x_offsets(A, cfg, S_XC, S_T0)
        flag_wait(A, cfg, FOR, XL, 2, end, cfg.nap_o)
        A.nop(cfg.fo_wait)
        if cfg.fine >= 6:
            stamp(A, cfg, 6)
        gather(ldo)
        use, fast = proj(ACO, WO, RO)
        seen = []

        def chk4o(i):
            if len(seen) < 4 and cfg.fine == 10 + i:
                stamp(A, cfg, 7)
            seen.append(i)
            chk4(i)
        done, slow2 = fsm_poll(A, 4, ldo, chk4o, use, end, fast=fast, onfail=onfail(3), undo=undo(ACO, 0),
                               dense=(lambda st: len(st) == 1 or (cfg.dense & 8 and sorted(st) in ([0, 1], [2, 3])), ldo, AP, ACK,
                                      cfg.dgap, CHK, cfg.dsets) if cfg.dense & 2 else None)
        A.label(done)
        stamp(A, cfg, 3)
        collect(ACO, RO, lambda: None, 3)
        A.c("exchange of partial sums with the other groups")
        for rr in range(cfg.nrep):
            A(f"buffer_store_dword {v(PW)}, {v(XOWN)}, {s(SWS, 4)}, {s(S_XC + rr)} offen sc1")
        stamp(A, cfg, 4)
        A(f"s_waitcnt vmcnt({cfg.nrep})")
        unwritten(S_RST, loc)
        for k in range(3):
            A(f"v_mov_b32 {v(XL + 4 * k)}, {v(PW)}")
        A(f"s_add_u32 {s(S_STEP)}, {s(S_STEP)}, 1")
        ring_slots(A)

        def ldx(k):
            for j in range(3):
                A(f"buffer_load_dword {v(XL + 4 * (k % 3) + 1 + j)}, {v(XP + j)}, {s(SWS, 4)}, {s(S_XC + k % cfg.nrep)} offen sc1")
        events = sorted([(cfg.xdelay, 0), (cfg.xdelay + cfg.xgap, 1), (cfg.xdelay + cfg.xgap + cfg.xgap2, 2), (cfg.fm_delay, 3)])
        now = 0
        for t, e in events:
            pause(A, cfg, HT, max(0, t - now), 1)
            now = max(now, t)
            if e == 0 and cfg.fine < 6:
                stamp(A, cfg, 6)
            if e < 3:
                ldx(e)
                if e == 0:
                    clear_acc()
                    now += 8
            else:
                A(f"buffer_store_dword {v(TAGV)}, {v(FMW)}, {s(SWS, 4)}, {s(S_FB)} offen{loc}")
        heat(A, HT, cfg.xfill)
        x2, xsum = A.new("x2"), A.new("xs")

        def final(x):
            A(f"{MF} {v(RD, 4)}, {v(x, 4)}, {v(HT + 4, 4)}, 0")
            A(f"v_max3_u32 {v(CHK)}, {v(x + 1)}, {v(x + 2)}, {v(x + 3)}")
            A(f"v_cmp_eq_u32 vcc, -1, {v(CHK)}")
            A("s_nop 5")
            for i in range(2):
                A(f"v_cvt_pk_bf16_f32 {v(SUM + i)}, {v(RD + 2 * i)}, {v(RD + 2 * i + 1)}")
        A(f"s_waitcnt vmcnt({7 if cfg.fm_delay >= cfg.xdelay else 6})")
        if cfg.fine < 10:
            stamp(A, cfg, 7)
        final(XL)
        A(f"s_cbranch_vccnz {x2}")
        A.label(xsum)
        A(f"buffer_store_dwordx2 {v(SUM, 2)}, {v(PUBM)}, {s(SWS, 4)}, {s(S_CUR)} offen{loc}")
        stamp(A, cfg, 5)
        pause(A, cfg, HT, cfg.mdelay, 3)
        A(f"s_branch {top}")
        A.label(x2)
        count(A, cfg, 0)
        for k in range(6):
            ldx(k + 3)
            A("s_waitcnt vmcnt(6)")
            final(XL + 4 * ((k + 1) % 3))
            A(f"s_cbranch_vccz {xsum}")
            count(A, cfg, 1)
        spend(A, end)
        A(f"s_branch {x2}")
        slow1()
        slow2()

    A.c("all members of the group share one L2: hand-offs inside the group use plain stores")
    body("")
    A.label(slow_lbl)
    A.c("some member runs on another die: every hand-off is written through")
    body(" sc1")


def q_role(A, cfg, end):
    WIN = 0
    VG, VK, VVA, VVB, VO, IDX, LR, QW, QR, LWS = 10, 11, 12, 13, 14, 15, 18, 19, 20, 211
    PFG, RDK, RDQ, RDVA, RDVB, OTA, OTB = 21, 22, 23, 24, 25, 26, 27
    FMR, FOW, FBUF, TAGV, XCL, POW, PQA, PQV, PQB = 192, 193, 194, 197, 198, 199, 208, 209, 210
    SENT, ONES, BIAS, CHK, T1, T2, T3 = 28, 32, 36, 44, 45, 46, 47
    AP, ACQ = 48, 64
    SX, SMM, RD, PX, LA, TM = 64, 72, 76, 76, 84, 88
    QOP, OA, KC, VM, PK = 96, 96, 112, 120, 124
    ST = 128
    SLOT0, SLOTX = 32768, 0x18000
    WQ = 256
    RQ, RB, HS = 0, 12288, 96
    HT, POV = 200, 214
    TID, LANE = 48, 49
    S_HEAD, S_PARW, S_EH, S_LDS, S_PQ, S_NEED = 54, 55, 56, 57, 58, 27
    A.c("Q role: q projection and attention of one head")
    if (cfg.gate or cfg.gate2 or cfg.gate3) and not cfg.gate_entry:
        A("s_memrealtime s[90:91]")
    A(f"v_mov_b32 {v(TID)}, v0")
    A(f"v_mov_b32 v50, v1")
    LANE = 50
    A(f"s_lshl_b32 {s(S_HEAD)}, {s(S_GRP)}, 3")
    A(f"s_add_u32 {s(S_HEAD)}, {s(S_HEAD)}, {s(S_TK)}")
    A(f"s_and_b32 {s(S_PARW)}, {s(S_WAVE)}, 1")
    A(f"s_lshr_b32 {s(S_EH)}, {s(S_WAVE)}, 1")
    A(f"s_lshl_b32 {s(S_RBASE)}, {s(S_GRP)}, 18")
    A(f"s_add_u32 {s(S_RBASE)}, {s(S_RBASE)}, {L.LRING}")
    A(f"s_lshl_b32 {s(S_T0)}, {s(S_WAVE)}, 12")
    A(f"v_lshl_add_u32 {v(VG)}, {v(LANE)}, 4, {s(S_T0)}")
    A(f"s_lshl_b32 {s(S_T0)}, {s(S_TK)}, 11")
    A(f"s_add_u32 {s(S_T1)}, {s(S_T0)}, 16384")
    A(f"v_lshl_add_u32 {v(VK)}, {v(LANE)}, 4, {s(S_T1)}")
    A(f"s_lshl_b32 {s(S_T1)}, {s(S_EH)}, 10")
    A(f"s_add_u32 {s(S_T0)}, {s(S_T0)}, {s(S_T1)}")
    A(f"s_lshl_b32 {s(S_T1)}, {s(S_PARW)}, 9")
    A(f"s_add_u32 {s(S_T1)}, {s(S_T1)}, {s(S_T0)}")
    A(f"s_add_u32 {s(S_T1)}, {s(S_T1)}, 32768")
    A(f"v_lshl_add_u32 {v(VVA)}, {v(LANE)}, 3, {s(S_T1)}")
    A(f"v_xor_b32 {v(VVB)}, 512, {v(VVA)}")
    A(f"s_add_u32 {s(S_T1)}, {s(S_T1)}, 16384")
    A(f"v_mov_b32 {v(VO)}, {s(S_T1)}")
    for bit, width, sh in ((5, 1, 8), (1, 2, 6), (4, 1, 5), (0, 1, 4), (3, 1, 30)):
        A(f"v_bfe_u32 v51, {v(LANE)}, {bit}, {width}")
        A(f"v_lshl_add_u32 {v(VO)}, v51, {sh}, {v(VO)}")
    sparse_index(A, IDX, LANE)
    for i in range(8):
        A(f"v_mov_b32 {v(HT + i)}, 0")
    for i in range(3):
        A(f"s_xor_b32 {s(S_T0)}, {s(S_WAVE)}, {3 ^ i}")
        A(f"s_mul_i32 {s(S_T0)}, {s(S_T0)}, 3072")
        A(f"s_add_u32 {s(S_T0)}, {s(S_T0)}, {1024 * i}")
        A(f"v_lshl_add_u32 {v(LWS + i)}, {v(LANE)}, 4, {s(S_T0)}")
    A(f"s_mul_i32 {s(S_T0)}, {s(S_WAVE)}, 3072")
    A(f"v_lshl_add_u32 {v(LR)}, {v(LANE)}, 4, {s(S_T0)}")
    A(f"s_lshl_b32 {s(S_T0)}, {s(S_WAVE)}, 9")
    A(f"v_and_b32 v51, 15, {v(LANE)}")
    A(f"v_lshl_add_u32 {v(QW)}, v51, 4, {s(S_T0)}")
    A(f"v_lshrrev_b32 v51, 4, {v(LANE)}")
    A(f"v_lshl_add_u32 {v(QW)}, v51, 2, {v(QW)}")
    A(f"v_lshrrev_b32 v51, 2, {v(LANE)}")
    A(f"v_and_b32 v52, 1, {v(LANE)}")
    A(f"v_lshlrev_b32 v52, 3, v52")
    A(f"v_lshl_add_u32 {v(QR)}, v51, 4, v52")
    A(f"v_lshlrev_b32 v51, 4, {v(LANE)}")
    A(f"s_mul_i32 {s(S_T0)}, {s(S_WAVE)}, 6144")
    A(f"v_add_u32 {v(PFG)}, {s(S_T0)}, v51")
    A(f"s_add_u32 {s(S_LDS)}, {s(S_T0)}, {SLOT0}")
    A(f"v_add_u32 {v(RDK)}, {SLOT0 + 8192}, v51")
    A(f"s_lshl_b32 {s(S_T0)}, {s(S_PARW)}, 12")
    A(f"s_add_u32 {s(S_T0)}, {s(S_T0)}, {SLOT0}")
    A(f"v_add_u32 {v(RDQ)}, {s(S_T0)}, v51")
    A(f"s_lshl_b32 {s(S_T0)}, {s(S_WAVE)}, 11")
    A(f"s_add_u32 {s(S_T0)}, {s(S_T0)}, {SLOT0 + 16384}")
    A(f"v_add_u32 {v(RDVA)}, {s(S_T0)}, v51")
    A(f"v_xor_b32 {v(RDVB)}, 2048, {v(RDVA)}")
    A(f"s_lshl_b32 {s(S_FB)}, {s(S_GRP)}, 12")
    A(f"s_add_u32 {s(S_FB)}, {s(S_FB)}, {L.FLAGS}")
    A(f"s_lshl_b32 {s(S_T0)}, {s(S_WAVE)}, 8")
    A(f"v_lshl_add_u32 {v(FMR)}, {v(LANE)}, 2, {s(S_T0)}")
    A(f"s_lshr_b32 {s(S_T0)}, {s(S_TK)}, 1")
    A(f"s_lshl_b32 {s(S_T0)}, {s(S_T0)}, 8")
    A(f"s_and_b32 {s(S_T1)}, {s(S_TK)}, 1")
    A(f"s_lshl_b32 {s(S_T1)}, {s(S_T1)}, 2")
    A(f"s_add_u32 {s(S_T0)}, {s(S_T0)}, {s(S_T1)}")
    A(f"s_add_u32 {s(S_T0)}, {s(S_T0)}, 2048")
    A(f"v_min_u32 v52, 1, {v(TID)}")
    A(f"v_lshl_add_u32 {v(FOW)}, v52, 30, {s(S_T0)}")
    A(f"v_mov_b32 {v(TAGV)}, 0")
    A(f"buffer_store_dword {v(TAGV)}, {v(FOW)}, {s(SWS, 4)}, {s(S_FB)} offen sc1")
    XN = 2 if cfg.xbf else 4
    A(f"s_lshr_b32 {s(S_T0)}, {s(S_TK)}, {2 if cfg.xbf else 1}")
    A(f"s_lshl_b32 {s(S_T0)}, {s(S_T0)}, 14")
    A(f"s_and_b32 {s(S_T1)}, {s(S_TK)}, {3 if cfg.xbf else 1}")
    A(f"s_lshl_b32 {s(S_T1)}, {s(S_T1)}, {11 if cfg.xbf else 12}")
    A(f"s_add_u32 {s(S_T0)}, {s(S_T0)}, {s(S_T1)}")
    A(f"s_lshl_b32 {s(S_T1)}, {s(S_GRP)}, 16")
    A(f"s_add_u32 {s(S_T0)}, {s(S_T0)}, {s(S_T1)}")
    A(f"v_lshl_add_u32 {v(XCL)}, {v(TID)}, {3 if cfg.xbf else 4}, {s(S_T0)}")
    A(f"s_lshl_b32 {s(S_T0)}, {s(S_HEAD)}, 2")
    A(f"s_add_u32 {s(S_T0)}, {s(S_T0)}, {s(S_WAVE)}")
    A(f"s_lshl_b32 {s(S_T0)}, {s(S_T0)}, 11")
    A(f"s_lshl_b32 {s(S_T1)}, {s(S_PARW)}, 10")
    A(f"s_add_u32 {s(S_T0)}, {s(S_T0)}, {s(S_T1)}")
    A(f"v_add_u32 {v(OTA)}, {s(S_T0)}, v51")
    A(f"v_xor_b32 {v(OTB)}, 2048, {v(OTA)}")
    progress_addr(A, POW, LANE, L.PO, S_HEAD, 52)
    A(f"buffer_store_dword {v(TAGV)}, {v(POW)}, {s(SWS, 4)}, 0 offen sc1")
    lines_addr(A, 53, LANE, 16)
    A(f"s_lshr_b32 {s(S_T0)}, {s(S_HEAD)}, 2")
    A(f"s_lshl_b32 {s(S_T0)}, {s(S_T0)}, 10")
    A(f"s_add_u32 {s(S_T0)}, {s(S_T0)}, {L.PQ}")
    A(f"v_add_u32 {v(PQA)}, {s(S_T0)}, v53")
    A(f"s_lshl_b32 {s(S_T0)}, {s(S_GRP)}, 10")
    A(f"s_add_u32 {s(S_T0)}, {s(S_T0)}, {L.PB - 1024}")
    A(f"v_add_u32 v53, {s(S_T0)}, v53")
    A(f"v_cmp_lt_u32 vcc, 7, {v(LANE)}")
    A("s_nop 1")
    A(f"v_cndmask_b32 {v(PQA)}, {v(PQA)}, v53, vcc")
    A(f"v_cndmask_b32 {v(PQB)}, 0, 8, vcc")
    for i in range(4):
        A(f"v_mov_b32 {v(SENT + i)}, -1")
        A(f"v_mov_b32 {v(ONES + i)}, 0x3f803f80")
    A(f"v_and_b32 v51, 15, {v(LANE)}")
    A(f"s_lshl_b32 {s(S_T0)}, {s(S_PARW)}, 4")
    A(f"v_add_u32 v51, {s(S_T0)}, v51")
    A(f"v_lshrrev_b32 v52, 4, {v(LANE)}")
    A(f"v_lshlrev_b32 v52, 2, v52")
    A(f"v_mov_b32 v54, 0xf149f2ca")
    for T in range(2):
        for q in range(4):
            A(f"v_add_u32 v53, {16 * T + q}, v52")
            A(f"v_cmp_gt_u32 vcc, v53, v51")
            A("s_nop 1")
            A(f"v_cndmask_b32 {v(BIAS + 4 * T + q)}, 0, v54, vcc")
    for i in range(10):
        A(f"v_mov_b32 {v(WIN + i)}, 0")
    A(f"s_mov_b32 {s(S_C)}, 0x3e0293ee")
    A(f"s_mov_b32 {s(S_NC)}, 0xbe0293ee")
    for slot in range(4):
        A(f"s_add_u32 {s(S_T0)}, {s(S_RBASE)}, {slot << 16}")
        A(f"buffer_store_dwordx4 {v(SENT, 4)}, {v(VO)}, {s(SWS, 4)}, {s(S_T0)} offen sc1")
    A(f"s_lshl_b32 {s(S_T2)}, {s(S_IRR)}, 16")
    A(f"s_or_b32 {s(S_T2)}, {s(S_T2)}, 1")
    arrive(A, S_T2)

    def probe_here():
        noprobe = A.new("np")
        A(f"s_cmp_lg_u32 {s(S_HEAD)}, 0")
        A(f"s_cbranch_scc1 {noprobe}")
        A("s_barrier")
        A(f"s_mov_b32 {s(S_T2)}, 0x2000000")
        probe(A, LANE, S_T2, cfg.marks)
        arrive(A, S_T2)
        A.label(noprobe)
    if cfg.q_after:
        A.c("these weights load quickly: the more urgent loads go first")
        probe_here()
        if not cfg.solo:
            await_start(A, end)
            after_stage(A, cfg.q_after, end, 51)
    for hf in range(2):
        A(f"s_xor_b32 {s(S_T2)}, {s(S_WAVE)}, {3 ^ (2 * hf)}")
        A(f"s_lshl_b32 {s(S_T2)}, {s(S_T2)}, 6")
        glob_addr(A, 51 + hf, LANE, 13, S_T2, 54)
    tr_addr(A, 53, LANE, "N", 54)
    A.srd(SW, P_WQ, SIZE["Wq"])
    chunks = []
    for j in range(4):
        for hf in range(2):
            def setup(j=j):
                A(f"s_lshl_b32 {s(S_T1)}, {s(S_WAVE)}, 21")
                A(f"s_lshl_b32 {s(S_T0)}, {s(S_HEAD)}, 8")
                A(f"s_add_u32 {s(S_T1)}, {s(S_T1)}, {s(S_T0)}")
                A(f"s_add_u32 {s(S_T1)}, {s(S_T1)}, {j * 64 * 8192}")
            chunks.append((setup, 8192, "N", 51 + hf, 53, (lambda n, j=j, hf=hf: WQ + (j * 8 + hf * 4 + n) * 8)))
    load_weights(A, chunks[::-1] if cfg.meet else chunks, WFLAG[cfg.wlo], None, cfg.ramp_lo)
    cfg.mark(A, 1)
    if not cfg.q_after:
        probe_here()
    await_start(A, end, probed=True)
    cfg.mark(A, 2)
    gate(A, cfg.gate)
    A(f"s_mul_i32 {s(S_PF)}, {s(S_HEAD)}, 24576")
    A(f"s_add_u32 {s(S_PF)}, {s(S_PF)}, {L.QKV}")
    A(f"s_mov_b32 {s(S_STEP)}, 0")

    def prefetch_parts(src):
        ld = lambda so, j: f"buffer_load_dwordx4 {v(PFG)}, {s(SWS, 4)}, {s(so)} offen offset:{1024 * j} sc1 lds"
        return [f"s_mov_b32 m0, {s(S_LDS)}\ns_add_u32 {s(S_T2)}, {s(src)}, 3072\n" + ld(src, 0), ld(src, 1), ld(src, 2),
                f"s_add_u32 m0, {s(S_LDS)}, 3072\ns_xor_b32 {s(S_LDS)}, {s(S_LDS)}, {SLOTX}\n" + ld(S_T2, 0), ld(S_T2, 1),
                ld(S_T2, 2) + f"\ns_add_u32 {s(S_PF)}, {s(S_PF)}, {32 * 24576}"]

    def prefetch():
        for x in prefetch_parts(S_PF):
            A(x)

    def operands():
        for i in range(8):
            A(f"ds_read_b128 {v(ST + 4 * i, 4)}, {v(RDK)} offset:{1024 * i}")
        for p, reg in ((0, RDVA), (1, RDVB)):
            for t in range(2):
                A(f"ds_read_b128 {v(ST + 32 + 8 * p + 4 * t, 4)}, {v(reg)} offset:{1024 * t}")
        for ks in range(4):
            A(f"ds_read_b128 {v(ST + 48 + 4 * ks, 4)}, {v(RDQ)} offset:{1024 * ks}")
        for reg in (RDK, RDVA, RDVB, RDQ):
            A(f"v_xor_b32 {v(reg)}, {SLOTX}, {v(reg)}")

    ldpq = lambda: A(f"buffer_load_dword {v(PQV)}, {v(PQA)}, {s(SWS, 4)}, 0 offen sc1")

    def tstpq():
        A(f"v_add_u32 {v(CHK)}, {v(PQV)}, {v(PQB)}")
        A(f"v_cmp_gt_u32 vcc, {s(S_NEED)}, {v(CHK)}")
    A(f"s_mov_b32 {s(S_NEED)}, 1")
    if not cfg.solo:
        block_on(A, ldpq, tstpq, end)
    prefetch()
    slow_lbl = A.new("q_sc1")
    A(f"s_cmp_lg_u32 {s(S_IRR)}, 0")
    A(f"s_cbranch_scc1 {slow_lbl}")

    def score_x(qreg, bias, before=None):
        for ks in range(4):
            if before:
                before(ks)
            for T in range(2):
                c = v(SX + 4 * T, 4) if ks else (v(BIAS + 4 * T, 4) if bias else "0")
                A(f"{MF} {v(SX + 4 * T, 4)}, {v(ST + 16 * T + 4 * ks, 4)}, {v(qreg + 4 * ks, 4)}, {c}")

    def max_x():
        A(f"v_max3_f32 {v(T1)}, {v(SX)}, {v(SX + 1)}, {v(SX + 2)}")
        A(f"v_max3_f32 {v(T1)}, {v(T1)}, {v(SX + 3)}, {v(SX + 4)}")
        A(f"v_max3_f32 {v(T1)}, {v(T1)}, {v(SX + 5)}, {v(SX + 6)}")
        A(f"v_max_f32 {v(T1)}, {v(T1)}, {v(SX + 7)}")

    def softmax(hook=lambda pos: None):
        A(f"v_pk_add_f32 {v(SMM, 2)}, {v(SMM, 2)}, {v(SMM + 2, 2)}")
        A(f"v_max3_f32 {v(T2)}, {v(T1)}, {v(SMM)}, {v(SMM + 1)}")
        A(f"v_max3_f32 {v(T3)}, {v(T1)}, {v(SMM)}, {v(SMM + 1)}")
        if not hook(0):
            A("s_nop 1")
        A(f"v_permlane32_swap_b32 {v(T2)}, {v(T3)}")
        A(f"v_max_f32 {v(T1)}, {v(T2)}, {v(T3)}")
        A(f"v_max_f32 {v(T2)}, {v(T2)}, {v(T3)}")
        A("s_nop 1")
        A(f"v_permlane16_swap_b32 {v(T1)}, {v(T2)}")
        A(f"v_max_f32 {v(T1)}, {v(T1)}, {v(T2)}")
        A(f"v_mul_f32 {v(T2)}, {s(S_NC)}, {v(T1)}")
        hook(1)
        for i in range(5):
            A(f"v_pk_fma_f32 {v(SX + 2 * i, 2)}, {v(SX + 2 * i, 2)}, {s(S_C, 2)}, {v(T2, 2)} op_sel_hi:[1,0,0]")
        for i in range(10):
            A(f"v_exp_f32 {v(SX + i)}, {v(SX + i)}")
            if i == 4:
                hook(2)
        hook(3)
        for i in range(4):
            A(f"v_cvt_pk_bf16_f32 {v(PX + i)}, {v(SX + 2 * i)}, {v(SX + 2 * i + 1)}")
        A(f"v_cvt_pk_bf16_f32 {v(WIN + 2)}, {v(SMM)}, {v(SMM + 1)}")
        A(f"v_cvt_pk_bf16_f32 {v(WIN + 7)}, {v(SMM)}, {v(SMM + 1)}")

    WOFF = (2, 6, 0, 4)

    def scale(n):
        for i in range(n // 2):
            A(f"v_pk_mul_f32 {v(OA + 2 * i, 2)}, {v(OA + 2 * i, 2)}, {v(T2, 2)} op_sel_hi:[1,0]")

    def pv(nt, pre=None, post=None, hook=lambda pos: None):
        A(f"{MF} {v(LA, 4)}, {v(ONES, 4)}, {v(PX, 4)}, 0")
        A(f"{MF} {v(LA, 4)}, {v(ONES, 4)}, {v(WIN + WOFF[0], 4)}, {v(LA, 4)}")
        for t in range(nt):
            if pre and t == cfg.vchk:
                pre()
            A(f"{MF} {v(OA + 4 * t, 4)}, {v(ST + 32 + 4 * t, 4)}, {v(PX, 4)}, 0")
        if post:
            post()
        hook(5)
        for t in range(nt):
            A(f"{MF} {v(OA + 4 * t, 4)}, {v(VM, 4)}, {v(WIN + WOFF[t], 4)}, {v(OA + 4 * t, 4)}")
        hook(6)
        A(f"v_rcp_f32 {v(T2)}, {v(LA)}")
        A.nop(8 - nt)

    def body(loc):
        top = A.new("q")
        ldm = lambda i, d=None: A(f"buffer_load_dwordx4 {v(d or AP + 4 * i, 4)}, {v(VG)}, {s(SWS, 4)}, {s(S_CUR)} offen offset:{1024 * i} sc1")
        ldk = lambda i: A(f"buffer_load_dwordx4 {v(AP + 4 * i, 4)}, {v(VK)}, {s(SWS, 4)}, {s(S_CUR)} offen offset:{1024 * (i & 1)} sc1")

        def ldv():
            A(f"buffer_load_dwordx2 {v(VM, 2)}, {v(VVA)}, {s(SWS, 4)}, {s(S_CUR)} offen sc1")
            A(f"buffer_load_dwordx2 {v(VM + 2, 2)}, {v(VVB)}, {s(SWS, 4)}, {s(S_CUR)} offen sc1")
        A.label(top)
        far = A.new("qf")
        A.c("the first segments are fetched one step ahead, later ones two steps ahead")
        A(f"s_cmp_gt_u32 {s(S_STEP)}, {cfg.near + 1}")
        A(f"s_cbranch_scc1 {far}")
        A("s_waitcnt vmcnt(0)")
        A("s_barrier")
        A.label(far)
        operands()
        ring_slots(A)
        for q in range(16):
            A(f"v_pk_mul_f32 {v(ACQ + 2 * q, 2)}, 0, 0")

        def publish(pos):
            if pos == cfg.po_pos:
                A(f"buffer_store_dword {v(POV)}, {v(POW)}, {s(SWS, 4)}, 0 offen{loc}")
        A(f"v_mov_b32 {v(POV)}, {v(TAGV)}")
        if cfg.po_pos == 0:
            A("s_waitcnt vmcnt(0)")
        publish(0)
        A(f"v_add_u32 {v(TAGV)}, 1, {v(TAGV)}")
        if cfg.fine == 6:
            stamp(A, cfg, 7)
        lastseg = A.new("qz")
        if cfg.skip63:
            A(f"s_cmp_eq_u32 {s(S_STEP)}, {cfg.nsteps - 1}")
            A(f"s_cbranch_scc1 {lastseg}")
        if cfg.use_fm:
            flag_wait(A, cfg, FMR, 216, 4, end, cfg.nap_m)
        if cfg.fine == 6:
            stamp(A, cfg, 6)
        for i in range(4):
            ldm(i)
            pause(A, cfg, HT, cfg.lspace if i < 3 else cfg.ltail, 4)

        fq = lambda j, lo, hi: [A(f"{SM} {v(ACQ + 4 * n, 4)}, {v(AP + 4 * j, 4)}, {r(WQ + (j * 8 + n) * 8, 8)}, {v(IDX)}")
                                for n in range(lo, hi)]
        chk4 = lambda i: check(A, AP + 4 * i, 4, CHK)

        def ad(n):
            for b in range(2):
                A(f"v_add_f32 {v(HS + 2 * n + b)}, {v(ACQ + 4 * n + b)}, {v(ACQ + 4 * n + 2 + b)}")
        wr = lambda p: A(f"ds_write_b128 {v(LWS + p)}, {v(HS + 4 * p, 4)} offset:{RQ}")

        own = lambda i: fq(i & 3, 6 + (i >> 2), 7 + (i >> 2))

        def last(j):
            for n in range(6):
                fq(j, n, n + 1)
                ad(n - 3) if n >= 3 else A("s_nop 1")
            wr(0)
            own(0)
            ad(3)
            ad(4)
            wr(1)
            own(1)
            ad(5)
            wr(2)

        def last_two():
            for n in range(6):
                fq(2, n, n + 1)
                ad(n - 2) if n >= 2 else A("s_nop 1")
                fq(3, n, n + 1)
                if n in (3, 5):
                    wr((n - 3) >> 1)
                    A("s_nop 0")
                else:
                    A("s_nop 1")
            own(0)
            ad(4)
            own(1)
            A("s_nop 1")
            ad(5)
            wr(2)
        fast = (lambda j: fq(j, 0, cfg.qsplit) if j < 3 else None, lambda j: fq(j, cfg.qsplit, 6) if j < 3 else last(j))
        if cfg.qjoint:
            fast += (lambda: check(A, AP + 8, 8, CHK), last_two)
        done, slow1 = fsm_poll(A, 4, ldm, chk4, lambda j, rest: fq(j, 0, 6) if rest else last(j), end, fast=fast,
                               onfail=lambda first: count(A, cfg, 2) if first else None,
                               undo=(lambda: (A.nop(8), [A(f"v_pk_mul_f32 {v(ACQ + 2 * q, 2)}, 0, 0") for q in range(2 * cfg.qsplit)])) if cfg.spec else None,
                               dense=(lambda st: len(st) <= (2 if cfg.dense & 16 else 1), ldm, AP, 220, cfg.dgap, CHK, cfg.dsets) if cfg.dense & 4 else None)
        A.label(done)
        stamp(A, cfg, 0)
        publish(1)
        for i in range(2, 2 + cfg.qown):
            own(i)
        A("s_waitcnt lgkmcnt(0)")
        A("s_barrier")
        fine(A, cfg, 1, 1)
        for p in range(3):
            A(f"ds_read_b128 {v(RD + 4 * p, 4)}, {v(LR)} offset:{RQ + 1024 * p}")
        for i in range(2 + cfg.qown, 8):
            own(i)
        for i in range(4):
            A(f"v_mov_b32 {v(SMM + i)}, 0")

        def ldkc():
            for p in range(2):
                A(f"buffer_load_dwordx4 {v(KC + 4 * p, 4)}, {v(VK)}, {s(SWS, 4)}, {s(S_CUR)} offen offset:{1024 * p} sc1")
        if cfg.kpos == 0:
            ldkc()
        ad(6)
        A("s_nop 1")
        ad(7)
        A("s_waitcnt lgkmcnt(0)")
        fine(A, cfg, 0, 2)
        for h2 in range(2):
            A(f"v_pk_add_f32 {v(RD + 2 * h2, 2)}, {v(RD + 2 * h2, 2)}, {v(HS + 12 + 2 * h2, 2)}")
            A(f"v_pk_add_f32 {v(RD + 4 + 2 * h2, 2)}, {v(RD + 4 + 2 * h2, 2)}, {v(RD + 8 + 2 * h2, 2)}")
        for h2 in range(2):
            A(f"v_pk_add_f32 {v(RD + 2 * h2, 2)}, {v(RD + 2 * h2, 2)}, {v(RD + 4 + 2 * h2, 2)}")
        A(f"v_cvt_pk_bf16_f32 {v(RD)}, {v(RD)}, {v(RD + 1)}")
        A(f"v_cvt_pk_bf16_f32 {v(RD + 1)}, {v(RD + 2)}, {v(RD + 3)}")
        A(f"ds_write2st64_b32 {v(QW)}, {v(RD)}, {v(RD + 1)} offset0:{RB // 256} offset1:{RB // 256 + 1}")
        fine(A, cfg, 1, 2)
        if cfg.kpos == 1:
            ldkc()
        busy(A, CHK, cfg.qfw2)
        A("s_waitcnt lgkmcnt(0)")
        A("s_barrier")
        for i in range(8):
            A(f"ds_read_b64_tr_b16 {v(QOP + 2 * i, 2)}, {v(QR)} offset:{RB + 256 * i}")
        if cfg.kpos == 2:
            ldkc()

        def qwait(ks):
            A(f"s_waitcnt lgkmcnt({6 - 2 * ks})")
            if ks in (1, 2):
                ldk(ks - 1)
            if ks == 3:
                fine(A, cfg, 0, 3)
                A("s_waitcnt vmcnt(2)")
                fine(A, cfg, 1, 3)
                check(A, KC, 8, CHK)
        score_x(QOP, False, qwait)
        stamp(A, cfg, 1)
        kre, kok = A.new("kr"), A.new("ko")
        A(f"s_cbranch_vccnz {kre}")
        for p in range(2):
            A(f"{SM} {v(SMM, 4)}, {v(KC + 4 * p, 4)}, {v(QOP + 8 * p, 8)}, {v(IDX)}")
        A.label(kok)
        stamp(A, cfg, 2)
        if cfg.vpos < 0:
            ldv()
        A.nop(4 if cfg.vpos >= 0 else 2)
        max_x()

        def hook(pos):
            if pos in (1, 3):
                fine(A, cfg, pos >> 1, 4)
            if pos in (4, 6):
                fine(A, cfg, (pos - 4) >> 1, 5)
            if pos == cfg.vpos:
                ldv()
            if cfg.use_fo and pos == cfg.fo_pos:
                A(f"buffer_store_dword {v(TAGV)}, {v(FOW)}, {s(SWS, 4)}, {s(S_FB)} offen{loc}")
            return pos == cfg.vpos
        softmax(hook)
        vre, vok = A.new("vr"), A.new("vo")

        def wait_v():
            A(f"s_waitcnt vmcnt({1 if cfg.use_fo and 4 >= cfg.fo_pos >= cfg.vpos else 0})")
            check(A, VM, 4, CHK)

        def test_v():
            A(f"s_cbranch_vccnz {vre}")
            A.label(vok)
            publish(2)
        hook(4)
        pv(2, wait_v, test_v, hook)
        scale(8)
        for i in range(4):
            A(f"v_cvt_pk_bf16_f32 {v(PK + i)}, {v(OA + 2 * i)}, {v(OA + 2 * i + 1)}")
        A(f"buffer_store_dwordx4 {v(PK, 4)}, {v(VO)}, {s(SWS, 4)}, {s(S_CUR)} offen{loc}")
        stamp(A, cfg, 3)
        publish(3)
        A.c("off the recurrence path: operands of segment s+2, token rows of this segment")
        A("s_barrier")
        A(f"buffer_store_dwordx4 {v(SENT, 4)}, {v(VO)}, {s(SWS, 4)}, {s(S_RST)} offen{loc}")
        pqw, pqok, twice, once = A.new("pw"), A.new("pk"), A.new("p2"), A.new("p1")
        A(f"s_cmp_eq_u32 {s(S_STEP)}, {cfg.near}")
        A(f"s_cbranch_scc1 {twice}")
        A.label(once)
        A(f"s_add_u32 {s(S_NEED)}, {s(S_NEED)}, 1")
        A(f"s_min_u32 {s(S_NEED)}, {s(S_NEED)}, {cfg.nsteps}")
        if not cfg.solo:
            tstpq()
        for i in range(4):
            A(f"v_mov_b32 {v(SMM + i)}, 0")
        A(f"s_add_u32 {s(S_T0)}, {s(S_STEP)}, 2")
        A(f"s_and_b32 {s(S_T0)}, {s(S_T0)}, 3")
        x_offsets(A, cfg, S_XR, S_T0)
        A(f"s_cmp_lt_u32 {s(S_STEP)}, {cfg.nsteps - 2}")
        A(f"s_cselect_b32 {s(S_T3)}, {s(S_PF)}, 0x70000000")
        if not cfg.solo:
            A(f"s_cbranch_vccnz {pqw}")
            A.label(pqok)
        side = [f"buffer_store_dwordx{XN} {v(SENT, XN)}, {v(XCL)}, {s(SWS, 4)}, {s(S_XR + rr)} offen sc1" for rr in range(cfg.nrep)]
        side = ["\n".join(side)] + prefetch_parts(S_T3)
        if not cfg.solo:
            side[-1] += f"\nbuffer_load_dword {v(PQV)}, {v(PQA)}, {s(SWS, 4)}, 0 offen sc1"

        def aside(pos=None):
            if side:
                A(side.pop(0))
        score_x(ST + 48, True, lambda ks: aside() if ks in (0, 1, 3) else None)
        for p in range(2):
            A(f"{SM} {v(SMM, 4)}, {v(KC + 4 * p, 4)}, {v(ST + 48 + 8 * p, 8)}, {v(IDX)}")
        A(f"s_and_b32 {s(S_T0)}, {s(S_STEP)}, {63 if cfg.solo else 7}")
        A(f"s_lshl_b32 {s(S_T0)}, {s(S_T0)}, 18")
        A(f"s_add_u32 {s(S_OT)}, {s(S_T0)}, {L.OTOK}")
        aside()
        A.nop(2)
        max_x()
        softmax(lambda pos: aside() if pos else None)
        assert not side
        pv(4)
        scale(16)
        for i in range(8):
            A(f"v_cvt_pk_bf16_f32 {v(OA + i)}, {v(OA + 2 * i)}, {v(OA + 2 * i + 1)}")
        A(f"buffer_store_dwordx4 {v(OA, 4)}, {v(OTA)}, {s(SWS, 4)}, {s(S_OT)} offen{loc}")
        A(f"buffer_store_dwordx4 {v(OA + 4, 4)}, {v(OTB)}, {s(SWS, 4)}, {s(S_OT)} offen{loc}")
        event(A, cfg, 1, True)
        stamp(A, cfg, 4, 2)
        if cfg.trace:
            A(f"s_memtime {s(S_STAMP + 10, 2)}")
        flush_stamps(A, cfg, 8, T2, T3, 2)
        A(f"s_add_u32 {s(S_STEP)}, {s(S_STEP)}, 1")
        A(f"s_cmp_lt_u32 {s(S_STEP)}, {cfg.nsteps}")
        A(f"s_cbranch_scc1 {top}")
        gate(A, cfg.gate2)
        A("s_waitcnt vmcnt(0)")
        A(f"buffer_store_dword {v(TAGV)}, {v(POW)}, {s(SWS, 4)}, 0 offen{loc}")
        gate(A, cfg.gate3)
        report(A, cfg, (1,))
        A(f"s_branch {end}")
        if cfg.skip63:
            A.label(lastseg)
            A.c("the memory after the last segment is not used: only k and v are awaited")
            block_on(A, lambda: (ldkc(), ldv()), lambda: check(A, KC, 12, CHK), end, 0)
            A("s_waitcnt lgkmcnt(0)")
            A("s_barrier")
            A(f"s_branch {once}")
        A.label(twice)
        A(f"s_add_u32 {s(S_NEED)}, {s(S_NEED)}, 1")
        if not cfg.solo:
            block_on(A, ldpq, tstpq, end)
        prefetch()
        A(f"s_branch {once}")
        if not cfg.solo:
            A.label(pqw)
            block_on(A, ldpq, tstpq, end)
            A(f"s_branch {pqok}")
        slow1()
        A.label(kre)
        count(A, cfg, 0)
        ldk(2)
        ldk(3)

        def usekm(j, rest):
            p = j & 1
            if rest and (j ^ 2) not in rest:
                return
            A(f"{SM} {v(SMM, 4)}, {v(AP + 4 * j, 4)}, {v(QOP + 8 * p, 8)}, {v(IDX)}")
            for i in range(4):
                A(f"v_mov_b32 {v(KC + 4 * p + i)}, {v(AP + 4 * j + i)}")
        done, slow2 = fsm_poll(A, 4, ldk, chk4, usekm, end, lambda got: {x & 1 for x in got} == {0, 1})
        A.label(done)
        A(f"s_branch {kok}")
        slow2()
        A.label(vre)
        count(A, cfg, 1)
        ldv()
        spend(A, end)
        A("s_waitcnt vmcnt(0)")
        check(A, VM, 4, CHK)
        A(f"s_cbranch_vccnz {vre}")
        A(f"s_branch {vok}")

    body("")
    A.label(slow_lbl)
    body(" sc1")


def chain_kernel(A, cfg, name="chain_kernel"):
    end, kvo, other, noprobe = A.new("end"), A.new("kvo_role"), A.new("other"), A.new("np")
    A.kernel_begin(name)
    role_prologue(A, end)
    A(f"s_cmp_ge_u32 {s(S_GRP)}, 4")
    A(f"s_cbranch_scc1 {other}")
    A(f"s_cmp_ge_u32 {s(S_TK)}, 24")
    A(f"s_cbranch_scc1 {other}")
    A(f"s_cmp_ge_u32 {s(S_TK)}, 8")
    A(f"s_cbranch_scc1 {kvo}")
    q_role(A, cfg, end)
    A.label(other)
    A(f"s_mov_b32 {s(S_T2)}, 1")
    arrive(A, S_T2)
    A.label(end)
    A("s_endpgm")
    A.label(kvo)
    kvo_role(A, cfg, end)
```

```python
from asmlib import *
import layout as L

SWS = 4


def xor_reduce(A, op, xs, ts, steps):
    for b in steps:
        if b >= 16:
            for x, t in zip(xs, ts):
                A(f"v_mov_b32 {v(t)}, {v(x)}")
            A("s_nop 1")
            for x, t in zip(xs, ts):
                A(f"v_permlane{b}_swap_b32 {v(x)}, {v(t)}")
            for x, t in zip(xs, ts):
                A(f"{op} {v(x)}, {v(x)}, {v(t)}")
        else:
            A("s_nop 1")
            for x in xs:
                A(f"{op}_dpp {v(x)}, {v(x)}, {v(x)} row_ror:{b} row_mask:0xf bank_mask:0xf")


M_W, M_CV, M_ACC, M_T = 16, 80, 96, 104


def mod_addr(A):
    A("v_lshrrev_b32 v2, 3, v0")
    A("v_and_b32 v3, 7, v0")
    A("v_mul_u32_u24 v4, 12288, v2")
    A("v_lshl_add_u32 v4, v3, 4, v4")
    A("v_lshlrev_b32 v5, 1, v2")
    for i in range(8):
        A(f"v_mov_b32 {v(M_ACC + i)}, 0")


def mod_silu(A, CV, n):
    T = M_T
    for i in range(n):
        A(f"v_lshlrev_b32 {v(CV + i)}, 16, {v(CV + i)}")
        A(f"v_mul_f32 {v(T)}, 0xbfb8aa3b, {v(CV + i)}")
        A(f"v_exp_f32 {v(T)}, {v(T)}")
        A("s_nop 0")
        A(f"v_add_f32 {v(T)}, 1.0, {v(T)}")
        A(f"v_rcp_f32 {v(T)}, {v(T)}")
        A("s_nop 0")
        A(f"v_mul_f32 {v(T)}, {v(T)}, {v(CV + i)}")
        A(f"v_cvt_pk_bf16_f32 {v(CV + i)}, 0, {v(T)}")


def mod_rows(A, W, CV, n, extra, again=None):
    ACC, T = M_ACC, M_T
    for i in range(n):
        A(f"s_waitcnt vmcnt({n - 1 + extra - (0 if again else i)})")
        for d in range(4):
            A(f"v_lshlrev_b32 {v(T)}, 16, {v(W + 4 * i + d)}")
            A(f"v_and_b32 {v(T + 1)}, 0xffff0000, {v(W + 4 * i + d)}")
            A(f"v_fmac_f32 {v(ACC + 2 * d)}, {v(T)}, {v(CV + i)}")
            A(f"v_fmac_f32 {v(ACC + 2 * d + 1)}, {v(T + 1)}, {v(CV + i)}")
        if again:
            again(i)


def mod_pass(A, grp, half, sw, sc, flag="", more=None):
    W, CV = M_W, M_CV
    A(f"s_lshl_b32 s41, {s(half)}, 10")
    A(f"s_mul_i32 s40, {s(half)}, {512 * 12288}")
    A(f"s_lshl_b32 s42, {s(grp)}, 7")
    A("s_add_u32 s40, s40, s42")
    for i in range(16):
        A(f"buffer_load_ushort {v(CV + i)}, v5, {s(sc, 4)}, s41 offen offset:{64 * i}")
    for i in range(16):
        A(f"buffer_load_dwordx4 {v(W + 4 * i, 4)}, v4, {s(sw, 4)}, s40 offen{flag}")
        A(f"s_add_u32 s40, s40, {32 * 12288}")
    extra = more() if more else 0
    A(f"s_waitcnt vmcnt({16 + extra})")
    mod_silu(A, CV, 16)
    mod_rows(A, W, CV, 16, extra)


def mod_two(A, grp, wave, dst, sw, sc, flag=""):
    W, CV = 128, 32

    def row(i):
        A(f"buffer_load_dwordx4 {v(W + 4 * i, 4)}, v4, {s(sw, 4)}, s43 offen{flag}")
        A(f"s_add_u32 s43, s43, {32 * 12288}")
    mod_addr(A)
    for i in range(32):
        A(f"buffer_load_ushort {v(CV + i)}, v5, {s(sc, 4)}, 0 offen offset:{64 * i}")
    A(f"s_lshl_b32 s43, {s(grp)}, 7")
    A("s_waitcnt vmcnt(1)")
    for i in range(32):
        row(i)
    A("s_waitcnt vmcnt(32)")
    mod_silu(A, CV, 32)
    A(f"s_xor_b32 s43, {s(grp)}, 0x62")
    A("s_lshl_b32 s43, s43, 7")
    mod_rows(A, W, CV, 32, 0, row)
    for k in range(2):
        A(f"s_lshl_b32 {s(dst)}, {s(grp)}, 8")
        A(f"s_add_u32 {s(dst)}, {s(dst)}, {L.MOD}")
        mod_finish(A, wave, dst, True)
        if k == 0:
            A(f"s_xor_b32 {s(grp)}, {s(grp)}, 0x62")
            A("s_nop 0")
            for i in range(8):
                A(f"v_mov_b32 {v(M_ACC + i)}, 0")
            mod_rows(A, W, CV, 32, 1)
            A("s_barrier")


def mod_finish(A, wave, dst, rounded):
    ACC, T = M_ACC, M_T
    for b in (8, 16, 32):
        if b == 8:
            A("s_nop 1")
            for i in range(8):
                A(f"v_add_f32_dpp {v(ACC + i)}, {v(ACC + i)}, {v(ACC + i)} row_ror:8 row_mask:0xf bank_mask:0xf")
        else:
            for i in range(8):
                A(f"v_mov_b32 {v(M_W + i)}, {v(ACC + i)}")
            for i in range(8):
                A(f"v_permlane{b}_swap_b32 {v(ACC + i)}, {v(M_W + i)}")
            for i in range(8):
                A(f"v_add_f32 {v(ACC + i)}, {v(ACC + i)}, {v(M_W + i)}")
    A(f"s_lshl_b32 s40, {s(wave)}, 8")
    A("v_lshl_add_u32 v2, v3, 5, s40")
    A(f"ds_write_b128 v2, {v(ACC, 4)} offset:1024")
    A(f"ds_write_b128 v2, {v(ACC + 4, 4)} offset:1040")
    A("s_waitcnt lgkmcnt(0)")
    A("s_barrier")
    A("v_and_b32 v2, 63, v0")
    A("v_lshlrev_b32 v2, 2, v2")
    for w in range(4):
        A(f"ds_read_b32 {v(ACC + w)}, v2 offset:{1024 + 256 * w}")
    A(f"s_min_u32 s40, {s(wave)}, 1")
    A("s_lshl_b32 s40, s40, 30")
    A(f"s_add_u32 s40, s40, {s(dst)}")
    A("s_waitcnt lgkmcnt(0)")
    A(f"v_add_f32 {v(ACC)}, {v(ACC)}, {v(ACC + 1)}")
    A(f"v_add_f32 {v(ACC + 2)}, {v(ACC + 2)}, {v(ACC + 3)}")
    A(f"v_add_f32 {v(ACC)}, {v(ACC)}, {v(ACC + 2)}")
    if rounded:
        A(f"v_cvt_pk_bf16_f32 {v(ACC)}, 0, {v(ACC)}")
    else:
        A(f"v_min_u32 {v(ACC)}, -2, {v(ACC)}")
    A(f"buffer_store_dword {v(ACC)}, v2, {s(SWS, 4)}, s40 offen sc1")
```

```python
from asmlib import *
import layout as L
from chain import (WFLAG, SWS, SW, SDBG, S_WAVE, S_GRP, S_TK, S_IRR, S_STEP, S_T0, S_T1, S_T2, S_T3, MF,
                   arrive, await_start, probe, progress_addr, words_addr, line_addr, lines_addr,
                   block_on, spend, check, gate, event, report, after_stage)
from small import xor_reduce, mod_addr, mod_pass, mod_finish, mod_two

SW2, SW3 = 84, 88
S_CU, S_SRC, S_RDY, S_FA, S_NEED, S_OUT, S_M0, S_NXT = 44, 45, 46, 47, 48, 49, 50, 54
S_SRC5, S_RDY5, S_NEED5, S_OUT5, S_NXT5, S_K = 55, 56, 57, 58, 59, 26
S_P0, S_P1, S_P2 = 60, 61, 62
OOB = 0x70000000
STRICT = 0
LANE = 9
VD, VR, VFA, VF, VPA, VP, VO = 0, 1, 2, 3, 4, 5, 6
FR, ACC, TMP = 16, 48, 80
S_SIG = 63


def ptr(A, reg, key):
    A(f"s_load_dwordx2 {s(reg, 2)}, s[0:1], {KA[key]}")


def mark(A, cfg, i, reg=15):
    if cfg.marks != 1 and not (cfg.marks == 4 and i in (0, 3)):
        return
    skip = A.new("mk")
    if not isinstance(i, int):
        A(f"s_and_b32 s99, {i}, 63")
        A("s_lshr_b64 s[98:99], s[94:95], s99")
        A("s_and_b32 s98, s98, 1")
        A(f"s_cbranch_scc0 {skip}")
    elif i == 0:
        A("s_mov_b32 s94, 0x0202021f")
        A("s_mov_b32 s95, 0xe2020202")
    A("s_memrealtime s[96:97]")
    A(f"s_lshl_b32 s98, {s(S_GRP)}, 5")
    A(f"s_add_u32 s98, s98, {s(S_TK)}")
    A("s_lshl_b32 s98, s98, 2")
    A(f"s_add_u32 s98, s98, {s(S_WAVE)}")
    A("s_lshl_b32 s98, s98, 9")
    if isinstance(i, int):
        A(f"s_add_u32 s98, s98, {L.TRACE + 2 * L.MB + 4 * i}")
    else:
        A(f"s_lshl_b32 s99, {i}, 2")
        A("s_add_u32 s98, s98, s99")
        A(f"s_add_u32 s98, s98, {L.TRACE + 2 * L.MB + 64}")
    A("s_waitcnt lgkmcnt(0)")
    A(f"v_mov_b32 {v(reg)}, s96")
    A("s_mov_b64 exec, 1")
    A(f"buffer_store_dword {v(reg)}, off, {s(SWS, 4)}, s98")
    A("s_mov_b64 exec, -1")
    A.label(skip)


def lap(A, cfg, i):
    if cfg.marks != 2:
        return
    A("s_memtime s[96:97]")
    A("s_waitcnt lgkmcnt(0)")
    A("s_sub_u32 s99, s96, s98")
    A(f"s_add_u32 s{70 + i}, s{70 + i}, s99")
    A("s_mov_b32 s98, s96")


def span(A, cfg):
    if cfg.marks != 5:
        return
    for k, st in enumerate((8, 40)):
        skip = A.new("sp")
        A(f"s_cmp_lg_u32 {s(S_STEP)}, {st}")
        A(f"s_cbranch_scc1 {skip}")
        A("s_memtime s[96:97]\ns_memrealtime s[98:99]\ns_waitcnt lgkmcnt(0)")
        A(f"s_mov_b32 s{70 + 2 * k}, s96\ns_mov_b32 s{71 + 2 * k}, s98")
        A.label(skip)


def lap_init(A, cfg):
    if cfg.marks in (2, 5):
        for i in range(8):
            A(f"s_mov_b32 s{70 + i}, 0")


def lap_dump(A, cfg):
    if cfg.marks not in (2, 5):
        return
    for i in range(8):
        A(f"v_writelane_b32 v15, s{70 + i}, {i}")
    A(f"s_lshl_b32 s98, {s(S_GRP)}, 5")
    A(f"s_add_u32 s98, s98, {s(S_TK)}")
    A("s_lshl_b32 s98, s98, 2")
    A(f"s_add_u32 s98, s98, {s(S_WAVE)}")
    A("s_lshl_b32 s98, s98, 5")
    A(f"s_add_u32 s98, s98, {L.TRACE + 3 * L.MB}")
    A(f"v_lshlrev_b32 v14, 2, {v(LANE)}")
    A("s_mov_b64 exec, 0xff")
    A(f"buffer_store_dword v15, v14, {s(SWS, 4)}, s98 offen")
    A("s_mov_b64 exec, -1")


def tile_addr(A, dst, order, inter, sbase, extra, t0, t1):
    A(f"v_bfe_u32 {v(t0)}, {v(LANE)}, 2, 2")
    A(f"v_lshrrev_b32 {v(t1)}, 4, {v(LANE)}")
    A(f"v_lshl_add_u32 {v(t0)}, {v(t1)}, {3 if order == 'N' else 2}, {v(t0)}")
    A(f"v_lshl_add_u32 {v(t0)}, {v(t0)}, 7, {s(sbase)}")
    A(f"v_and_b32 {v(t1)}, 3, {v(LANE)}")
    A(f"v_lshl_add_u32 {v(t0)}, {v(t1)}, {4 if inter else 3}, {v(t0)}")
    A(f"v_add_u32 {v(dst)}, {extra}, {v(t0)}")


def load_w(A, panels, stride, nst, tiles, order, vg, flag="", first=None, ramp=None):
    SZ = len(panels) * 16384
    n = 4 * len(panels)
    NS = min(nst, 163840 // SZ)
    ramp = NS if ramp is None else ramp
    qstep = 512 if order == "N" else 2048
    A(f"v_lshrrev_b32 {v(vg)}, 3, {v(LANE)}")
    A(f"s_mul_i32 {s(S_T0)}, {s(S_WAVE)}, {32 * nst}")
    A(f"v_add_u32 {v(vg)}, {s(S_T0)}, {v(vg)}")
    A(f"v_mul_u32_u24 {v(vg)}, {stride}, {v(vg)}")
    A(f"v_and_b32 {v(vg + 1)}, 7, {v(LANE)}")
    A(f"v_lshl_add_u32 {v(vg)}, {v(vg + 1)}, 4, {v(vg)}")
    A(f"s_lshl_b32 {s(S_T0)}, {s(S_WAVE)}, 12")

    def issue(t):
        for p, (srd, off) in enumerate(panels):
            for j in range(4):
                A(f"s_add_u32 m0, {s(S_T0)}, {(t % NS) * SZ + p * 16384 + j * 1024}")
                A(f"s_add_u32 {s(S_T1)}, {s(off)}, {(32 * t + 8 * j) * stride}")
                A(f"buffer_load_dwordx4 {v(vg)}, {s(srd, 4)}, {s(S_T1)} offen{flag} lds")
    A("s_barrier")
    for t in range(ramp):
        issue(t)
    if ramp < NS:
        A(f"s_waitcnt vmcnt({n * (ramp - 1)})")
        for t in range(ramp, NS):
            issue(t)
    for t in range(nst):
        A(f"s_waitcnt vmcnt({n * (min(t + NS, nst) - t - 1)})")
        A("s_barrier")
        if t == 0 and first:
            first()
        for reg, dst in tiles:
            for k in range(4):
                for q in range(2):
                    A(f"ds_read_b64_tr_b16 {r(dst + (nst * k + t) * 4 + 2 * q, 2)}, {v(reg)} offset:{k * 4096 + q * qstep}")
        for reg, dst in tiles:
            A(f"v_add_u32 {v(reg)}, {SZ if t % NS < NS - 1 else -(NS - 1) * SZ}, {v(reg)}")
        A("s_waitcnt lgkmcnt(0)")
        A("s_barrier")
        if t + NS < nst:
            issue(t + NS)


def load_w_panels(A, panels, stride, order, vg, flag="", ask=None, act=None):
    NS, SZ = 5, 32768
    qstep = 512 if order == "N" else 2048
    A(f"v_lshrrev_b32 {v(vg)}, 3, {v(LANE)}")
    A(f"s_lshl_b32 {s(S_T0)}, {s(S_WAVE)}, 8")
    A(f"v_add_u32 {v(vg)}, {s(S_T0)}, {v(vg)}")
    A(f"v_mul_u32_u24 {v(vg)}, {stride}, {v(vg)}")
    A(f"v_and_b32 {v(vg + 1)}, 7, {v(LANE)}")
    A(f"v_lshl_add_u32 {v(vg)}, {v(vg + 1)}, 4, {v(vg)}")
    A(f"s_lshl_b32 {s(S_T0)}, {s(S_WAVE)}, 13")
    stages = [(p, t) for p in panels for t in range(4)]
    regs = sorted({reg for p in panels for reg, _ in p[3]})

    def issue(i):
        (srd, off, _, _), t = stages[i]
        for j in range(8):
            A(f"s_add_u32 m0, {s(S_T0)}, {(i % NS) * SZ + j * 1024}")
            A(f"s_add_u32 {s(S_T1)}, {s(off)}, {(64 * t + 8 * j) * stride}")
            A(f"buffer_load_dwordx4 {v(vg)}, {s(srd, 4)}, {s(S_T1)} offen{flag} lds")
    A("s_barrier")
    for i in range(NS):
        issue(i)
    n = len(stages)
    for i, ((_, _, pair, tiles), t) in enumerate(stages):
        if i == n - 1 and act:
            act(1)
        else:
            A(f"s_waitcnt vmcnt({8 * (min(i + NS, n) - i - 1)})")
        if i == n - 2 and act:
            act(0)
        A("s_barrier")
        skip = A.new("lw")
        if pair is not None:
            A(f"s_bitcmp{1 - pair}_b32 {s(S_WAVE)}, 1")
            A(f"s_cbranch_scc1 {skip}")
        for reg, dst in tiles:
            for k in range(8):
                for q in range(2):
                    A(f"ds_read_b64_tr_b16 {r(dst + (8 * (k >> 1) + 2 * t + (k & 1)) * 4 + 2 * q, 2)}, {v(reg)} offset:{k * 4096 + q * qstep}")
        A.label(skip)
        for reg in regs:
            A(f"v_add_u32 {v(reg)}, {SZ if i % NS < NS - 1 else -(NS - 1) * SZ}, {v(reg)}")
        A("s_waitcnt lgkmcnt(0)")
        A("s_barrier")
        if ask and i + NS in (n - 1 - NS, n - 1):
            ask(i + NS == n - 1)
        if i + NS < n:
            issue(i + NS)


def dma_list(ngroups, m0base, m0add, src, vd, js=(0, 1, 2, 3)):
    ops = []
    for gi in range(ngroups):
        ops.append(f"s_add_u32 m0, {s(m0base)}, {m0add + gi * 16384}")
        ops.append(f"s_add_u32 {s(S_T1)}, {s(src)}, {gi * 16384}")
        for j in js:
            ops.append(f"buffer_load_dwordx4 {v(vd)}, {s(SWS, 4)}, {s(S_T1)} offen offset:{1024 * j} sc1 lds")
    return ops


def reader(vr, nblk, tmajor):
    def rd(i):
        T, ks = (i // (nblk // 2), i % (nblk // 2)) if tmajor else (i & 1, i >> 1)
        return f"ds_read_b128 {v(FR + 4 * (i % 8), 4)}, {v(vr)} offset:{2048 * ks + 1024 * T}"
    return rd


def first_reads(A, rd):
    for b in range(7):
        A(rd(b))


def fits(ops):
    t = 4
    for op in ops:
        if op.startswith("s_"):
            t += 4
        else:
            t = max(t, 8) + (8 if op.startswith(("v_exp", "v_rcp", "buffer_store_dwordx4")) else 4)
    return t <= 16


def job(A, nblk, rd, tmajor, tiles, fillers, lo=0, hi=None, nxt=None, syncs={}):
    hi = nblk if hi is None else hi
    mf, pre, nt = [], {}, len(tiles)
    for b in range(lo, hi):
        T, ks = (b // (nblk // 2), b % (nblk // 2)) if tmajor else (b & 1, b >> 1)
        if b % 2 == 0 and nxt is None:
            pre[len(mf)] = f"s_waitcnt lgkmcnt({min(5, nblk - 2 - b)})"
        for acc, w, swap in tiles:
            x, y = r(w(ks), 4), v(FR + 4 * (b % 8), 4)
            if swap:
                x, y = y, x
            mf.append(f"{MF} {v(acc(T), 4)}, {x}, {y}, {v(acc(T), 4) if ks else 0}")
    n = len(mf)
    at = [[] for _ in range(n)]
    for i, w in pre.items():
        if i:
            at[i - 1].append(w)
    for b in range(lo, min(hi, nblk - 7)):
        at[(b - lo) * nt] += syncs.get(b + 7, []) + [rd(b + 7)]
    if nxt:
        assert lo == nblk - 5 and hi == nblk
        for k, j in ((0, 0), (0, 1), (1, 2), (nt, 3), (2 * nt, 4), (3 * nt, 5), (4 * nt, 6)):
            at[k].append(nxt(j))
    k = kmin = 0
    for start, step, ops in fillers:
        k, kmin = (max(k, kmin, start) if start >= 0 else -start), 0
        for op in ops:
            setup = op.startswith(("s_add_u32 m0", f"s_add_u32 {s(S_T1)},"))
            if not setup and not op.startswith("END"):
                k = max(k, kmin)
            if op.startswith("END"):
                assert k < int(op[4:]), "sequence ends too late"
                continue
            if op.startswith("GAP"):
                k += int(op[4:])
                continue
            while True:
                assert k < n, "fillers do not fit"
                front = op.startswith("s_") and all(x.startswith("ds_read") for x in at[k])
                cand = [op] + at[k] if front else at[k] + [op]
                reads = any(x.startswith("ds_read") for x in at[k])
                tail = k >= (nblk - 7 - lo) * nt
                bad = STRICT and ((reads and op.startswith("v_")) or
                                  (STRICT > 1 and nt == 2 and not reads and not tail and (setup or op.startswith("buffer_load"))))
                if fits(cand) and not bad:
                    at[k] = cand
                    break
                k += 1
            if op.startswith("buffer"):
                kmin = k + step
    if 0 in pre:
        A(pre[0])
    scc = None
    for i in range(n):
        A(mf[i])
        for op in at[i]:
            if op.startswith("s_cselect"):
                assert scc.startswith("s_cmp"), "SCC overwritten"
            elif op.startswith("s_") and not op.startswith(("s_waitcnt", "s_mov", "s_nop", "s_mul", "s_barrier")):
                scc = op
            A(op)


def tag(ops, name):
    return [op + f" ;@{name}" if op.startswith("buffer") else op for op in ops]


def resolve(A, first):
    body = A.lines[first:]
    out = list(body)
    for i, ln in enumerate(body):
        if "vmcnt(@" in ln:
            names = ln[ln.index("(@") + 2:ln.index(")")].split(",")
            n, k = 0, i
            while True:
                k -= 1
                x = body[k % len(body)]
                if x.startswith("buffer"):
                    if any(x.endswith(";@" + t) for t in names):
                        break
                    n += 1
            out[i] = ln[:ln.index("(@")] + f"({n}" + ln[ln.index(")"):]
    A.lines[first:] = [x.split(" ;@")[0] for x in out]


def split_loads(ops, counts):
    idx = [i for i, op in enumerate(ops) if op.startswith("buffer")]
    cuts, acc = [0], 0
    for c in counts:
        acc += c
        cuts.append(idx[acc - 1] + 1 if acc else 0)
    cuts.append(len(ops))
    return [ops[a:b] for a, b in zip(cuts, cuts[1:])]


def lines(f):
    B = Asm()
    f(B)
    return B.lines


def decide(A, need, vf, rdy, src, nxt, spaced=False):
    A(f"v_cmp_gt_u32 vcc, {s(need)}, {v(vf)}")
    if spaced:
        A("GAP 2")
    A("s_cmp_eq_u64 vcc, 0")
    A(f"s_cselect_b32 {s(rdy)}, 1, 0")
    A(f"s_cselect_b32 {s(src)}, {s(nxt)}, {hex(OOB)}")


def common_regs(A, share):
    A(f"s_mul_i32 {s(S_M0)}, {s(S_WAVE)}, {share}")
    A(f"v_lshlrev_b32 {v(VR)}, 4, {v(LANE)}")
    A(f"v_add_u32 {v(VD)}, {s(S_M0)}, {v(VR)}")


def start_role(A, base, extra=None):
    line_addr(A, VPA, 0, base, S_CU, TMP)
    A(f"v_mov_b32 {v(VP)}, 0")
    A(f"buffer_store_dword {v(VP)}, {v(VPA)}, {s(SWS, 4)}, 0 offen sc1")
    A(f"s_mov_b32 {s(S_T2)}, 1")
    if extra:
        extra()
    arrive(A, S_T2, extra is None, join=False)


def stream1(A, cfg, tiles, epi, flag_for, advance_src, outstep, abort, sig, limit, landed=None, hint=None):
    wait, entry, out, skip, join = (A.new(x) for x in ("sw", "se", "so", "sk", "sj"))
    ldf = lambda B=A: B(f"buffer_load_dword {v(VF)}, {v(VFA)}, {s(SWS, 4)}, {s(S_FA)} offen sc1")
    tst = lambda: A(f"v_cmp_gt_u32 vcc, {s(S_NEED)}, {v(VF)}")
    rd = reader(VR, 64, False)
    A(f"s_mov_b32 {s(S_STEP)}, 0")
    lap_init(A, cfg)
    lap(A, cfg, 7)
    flag_for(A, 0)
    A.label(wait)
    block_on(A, ldf, tst, abort, cfg.g3_sleep)
    lap(A, cfg, 5)
    for op in dma_list(4, S_M0, 0, S_NXT, VD):
        A(op)
    ldf()
    A.label(entry)
    A("s_waitcnt vmcnt(13)")
    A("s_barrier")
    lap(A, cfg, 6)
    first_reads(A, rd)
    advance_src()
    A(f"s_xor_b32 {s(S_M0)}, {s(S_M0)}, 0x10000")
    A(f"s_add_u32 {s(S_OUT)}, {s(S_OUT)}, {outstep}")
    A(f"s_add_u32 {s(S_STEP)}, {s(S_STEP)}, 1")
    flag_for(A, 0)
    nt = len(tiles)
    lap(A, cfg, 2)
    job(A, 64, rd, False, tiles, [(83, 1, lines(ldf)), hint] if hint else [(64 * nt - cfg.s1_flag, 1, lines(ldf))],
        syncs={16 * c: [f"s_waitcnt vmcnt({13 - 4 * c})", "s_barrier"] for c in (1, 2, 3)})
    lap(A, cfg, 3)
    A(f"v_xor_b32 {v(VR)}, 0x10000, {v(VR)}")
    A(f"v_mov_b32 {v(VP)}, {s(S_STEP)}")
    A(f"s_waitcnt vmcnt({1 if hint else 0})")
    mark(A, cfg, s(S_STEP))
    tst()
    if landed:
        landed()
    A.nop(4)
    epi()
    A(f"s_mov_b32 {s(S_RDY)}, 0")
    A(f"s_cbranch_vccnz {skip}")
    A(f"s_mov_b32 {s(S_RDY)}, 1")
    for op in dma_list(4, S_M0, 0, S_NXT, VD):
        A(op)
    A("s_waitcnt vmcnt(16)")
    A(f"s_branch {join}")
    A.label(skip)
    A("s_waitcnt vmcnt(0)")
    A.label(join)
    A("s_barrier")
    sig()
    lap(A, cfg, 4)
    A(f"s_cmp_eq_u32 {s(S_STEP)}, {limit}")
    A(f"s_cbranch_scc1 {out}")
    A(f"s_cmp_lg_u32 {s(S_RDY)}, 0")
    A(f"s_cbranch_scc1 {entry}")
    A(f"s_branch {wait}")
    A.label(out)


def pack8(A, dst, a, b):
    for i in range(2):
        A(f"v_cvt_pk_bf16_f32 {v(dst + i)}, {v(a + 2 * i)}, {v(a + 2 * i + 1)}")
    for i in range(2):
        A(f"v_cvt_pk_bf16_f32 {v(dst + 2 + i)}, {v(b + 2 * i)}, {v(b + 2 * i + 1)}")


def await_helpers(A, n, abort, t=TMP):
    A(f"v_lshlrev_b32 {v(t)}, 7, {v(LANE)}")
    A(f"s_mov_b32 {s(S_T0)}, {L.P1}")
    block_on(A, lambda: A(f"buffer_load_dword {v(t + 1)}, {v(t)}, {s(SWS, 4)}, {s(S_T0)} offen sc1"),
             lambda: A(f"v_cmp_gt_u32 vcc, {n}, {v(t + 1)}"), abort, 2)


def await_gates(A, abort):
    lines_addr(A, TMP, LANE, 32)
    A(f"s_mov_b32 {s(S_T0)}, {L.PM}")
    block_on(A, lambda: A(f"buffer_load_dword {v(TMP + 1)}, {v(TMP)}, {s(SWS, 4)}, {s(S_T0)} offen sc1"),
             lambda: A(f"v_cmp_gt_u32 vcc, 1, {v(TMP + 1)}"), abort, 8)


def octet_addrs(A, s_oct, s_cg):
    A(f"v_lshrrev_b32 {v(TMP)}, 3, {v(LANE)}")
    A(f"v_and_b32 {v(TMP + 1)}, 7, {v(LANE)}")
    A(f"s_lshr_b32 {s(S_T0)}, {s(s_oct)}, 1")
    A(f"s_lshl_b32 {s(S_T0)}, {s(S_T0)}, 10")
    A(f"s_and_b32 {s(S_T1)}, {s(s_oct)}, 1")
    A(f"s_lshl_b32 {s(S_T1)}, {s(S_T1)}, 7")
    A(f"s_add_u32 {s(S_T0)}, {s(S_T0)}, {s(S_T1)}")
    A(f"s_lshl_b32 {s(S_T1)}, {s(s_cg)}, 12")
    A(f"s_add_u32 {s(S_T0)}, {s(S_T0)}, {s(S_T1)}")
    A(f"v_lshl_add_u32 {v(VO)}, {v(TMP + 1)}, 4, {s(S_T0)}")
    A(f"v_and_b32 {v(TMP + 2)}, 3, {v(TMP)}")
    A(f"v_lshl_add_u32 {v(VO)}, {v(TMP + 2)}, 8, {v(VO)}")
    A(f"v_lshrrev_b32 {v(TMP + 2)}, 2, {v(TMP)}")
    A(f"v_lshl_add_u32 {v(VO)}, {v(TMP + 2)}, 11, {v(VO)}")
    A(f"s_lshl_b32 {s(S_T0)}, {s(s_oct)}, 14")
    A(f"s_lshl_b32 {s(S_T1)}, {s(s_cg)}, 7")
    A(f"s_add_u32 {s(S_T0)}, {s(S_T0)}, {s(S_T1)}")
    A(f"v_lshl_add_u32 {v(VO + 1)}, {v(TMP + 1)}, 11, {s(S_T0)}")
    A(f"v_lshl_add_u32 {v(VO + 1)}, {v(TMP)}, 4, {v(VO + 1)}")
    A(f"s_lshl_b32 {s(S_T0)}, {s(s_cg)}, 8")
    A(f"v_lshl_add_u32 {v(VO + 2)}, {v(TMP)}, 5, {s(S_T0)}")


def unit_consts(A):
    A(f"s_mov_b32 {s(S_P0)}, 0x00003f80")
    A(f"s_mov_b32 {s(S_P1)}, 0x3f800000")


def sum_bf(A, dst, srcs, n):
    for k, x in enumerate(srcs):
        for i in range(2 * n):
            A(f"v_dot2_f32_bf16 {v(dst + i)}, {v(x + (i >> 1))}, {s(S_P0 + (i & 1))}, {v(dst + i) if k else 0}")


def unpack(A, dst, src, n):
    for i in range(n):
        A(f"v_lshlrev_b32 {v(dst + 2 * i)}, 16, {v(src + i)}")
        A(f"v_and_b32 {v(dst + 2 * i + 1)}, 0xffff0000, {v(src + i)}")


def qkv_role(A, cfg, end):
    A.c("projection of token rows onto half a head of q, k and v; afterwards the final sums")
    A(f"v_mov_b32 {v(LANE)}, v1")
    A(f"s_sub_u32 {s(S_CU)}, {s(S_GRP)}, 4")
    A(f"s_lshl_b32 {s(S_CU)}, {s(S_CU)}, 4")
    A(f"s_and_b32 {s(S_T0)}, {s(S_TK)}, 7")
    A(f"s_lshl_b32 {s(S_T0)}, {s(S_T0)}, 1")
    A(f"s_add_u32 {s(S_CU)}, {s(S_CU)}, {s(S_T0)}")
    A(f"s_lshr_b32 {s(S_T0)}, {s(S_TK)}, 3")
    A(f"s_xor_b32 {s(S_T0)}, {s(S_T0)}, 1")
    A(f"s_add_u32 {s(S_CU)}, {s(S_CU)}, {s(S_T0)}")
    start_role(A, L.PQ)
    A.srd(SW, 18, SIZE["Wq"])
    A.srd(SW2, 20, SIZE["Wk"])
    A.srd(SW3, 22, SIZE["Wv"])
    A(f"s_lshl_b32 {s(S_P0)}, {s(S_CU)}, 7")
    A(f"s_xor_b32 {s(S_P1)}, {s(S_P0)}, {4 << 7}")
    A(f"s_xor_b32 {s(S_P2)}, {s(S_P0)}, {2 << 7}")

    def request():
        for js in ((0, 2), (1, 3)):
            for op in dma_list(4, S_M0, 0, S_NXT, VD, js):
                A(op)
    A(f"s_and_b32 {s(S_T2)}, {s(S_WAVE)}, 1")
    A(f"s_lshl_b32 {s(S_T2)}, {s(S_T2)}, 6")
    for T in range(2):
        tile_addr(A, TMP + T, "N", False, S_T2, 32 * T, TMP + 4, TMP + 5)
    A(f"s_lshl_b32 {s(S_T2)}, {s(S_WAVE)}, 5")
    tile_addr(A, TMP + 2, "N", False, S_T2, 0, TMP + 4, TMP + 5)
    common_regs(A, 4096)
    A(f"s_xor_b32 {s(S_M0)}, {s(S_M0)}, 0x10000")
    A(f"s_mov_b32 {s(S_NXT)}, {L.H1}")

    def ask(k):
        if not k:
            A(f"buffer_load_dword v12, off, {s(SDBG, 4)}, 0 offset:144 sc1")
        else:
            A(f"v_lshlrev_b32 v14, 7, {v(LANE)}")
            A(f"s_mov_b32 {s(S_T1)}, {L.P1}")
            A(f"buffer_load_dword v13, v14, {s(SWS, 4)}, {s(S_T1)} offen sc1")

    def act(k):
        skip, out = A.new("qa"), A.new("qb")
        if k == 0:
            A("v_cmp_ne_u32 vcc, 0x80, v12")
            A("s_mov_b64 s[92:93], vcc")
            A("v_cmp_gt_u32 vcc, 2, v13")
            A("s_or_b64 vcc, vcc, s[92:93]")
            A(f"s_cselect_b32 {s(S_RDY)}, 0, 1")
            A(f"s_cbranch_scc1 {skip}")
            request()
            A.label(skip)
        else:
            A(f"s_cmp_lg_u32 {s(S_RDY)}, 0")
            A(f"s_cbranch_scc1 {skip}")
            A("s_waitcnt vmcnt(0)")
            A.label(skip)
            A("s_waitcnt vmcnt(16)")
    pair = [(TMP, 256), (TMP + 1, 384)]
    load_w_panels(A, [(SW3, S_P2, None, [(TMP + 2, 128)]), (SW2, S_P1, 1, pair), (SW, S_P0, 0, pair)], 8192, "N",
                  TMP + 4, WFLAG[cfg.whi], ask, act)
    mark(A, cfg, 1)
    event(A, cfg, 4)
    A(f"s_and_b32 {s(S_T2)}, {s(S_CU)}, 1")
    A(f"s_lshr_b32 {s(S_T0)}, {s(S_WAVE)}, 1")
    A(f"s_lshl_b32 {s(S_T0)}, {s(S_T0)}, 3")
    A(f"s_and_b32 {s(S_T1)}, {s(S_WAVE)}, 1")
    A(f"s_add_u32 {s(S_T0)}, {s(S_T0)}, {s(S_T1)}")
    A(f"s_lshl_b32 {s(S_T1)}, {s(S_T2)}, 1")
    A(f"s_add_u32 {s(S_T0)}, {s(S_T0)}, {s(S_T1)}")
    A(f"s_lshl_b32 {s(S_T0)}, {s(S_T0)}, 10")
    A(f"s_lshr_b32 {s(S_T3)}, {s(S_CU)}, 1")
    A(f"s_and_b32 {s(S_T1)}, {s(S_WAVE)}, 2")
    A(f"s_xor_b32 {s(S_T1)}, {s(S_T1)}, {s(S_T3)}")
    A(f"s_mul_i32 {s(S_T1)}, {s(S_T1)}, 24576")
    A(f"s_add_u32 {s(S_T0)}, {s(S_T0)}, {s(S_T1)}")
    A(f"v_add_u32 {v(VO)}, {s(S_T0)}, {v(VR)}")
    A(f"v_add_u32 {v(VO + 1)}, 4096, {v(VO)}")
    A(f"s_lshl_b32 {s(S_T0)}, {s(S_T2)}, 2")
    A(f"s_add_u32 {s(S_T0)}, {s(S_T0)}, {s(S_WAVE)}")
    A(f"s_add_u32 {s(S_T0)}, {s(S_T0)}, 16")
    A(f"s_lshl_b32 {s(S_T0)}, {s(S_T0)}, 10")
    A(f"s_xor_b32 {s(S_T1)}, {s(S_T3)}, 1")
    A(f"s_mul_i32 {s(S_T1)}, {s(S_T1)}, 24576")
    A(f"s_add_u32 {s(S_T0)}, {s(S_T0)}, {s(S_T1)}")
    A(f"v_add_u32 {v(VO + 2)}, {s(S_T0)}, {v(VR)}")
    A(f"s_mov_b32 {s(S_OUT)}, {L.QKV - 32 * 24576}")
    A(f"v_xor_b32 {v(VR)}, 0x10000, {v(VR)}")
    tiles = [(lambda T: ACC + 8 * T, lambda ks: 256 + 4 * ks, False),
             (lambda T: ACC + 8 * T + 4, lambda ks: 384 + 4 * ks, False),
             (lambda T: ACC + 16 + 4 * T, lambda ks: 128 + 4 * ks, True)]
    sig = lambda B=A: B(f"buffer_store_dword {v(VP)}, {v(VPA)}, {s(SWS, 4)}, 0 offen sc1")
    A.c("continuous stream; results are stored one segment later")
    loop, more, back = A.new("ql"), A.new("qm"), A.new("qe")
    A(f"s_mov_b32 {s(S_STEP)}, 0")
    lap_init(A, cfg)
    A(f"s_cmp_lg_u32 {s(S_RDY)}, 0")
    A(f"s_cbranch_scc1 {more}")
    await_start(A, end, hi_only=True, join=False)
    await_helpers(A, 2, end)
    request()
    A.label(more)
    A("s_waitcnt vmcnt(8)")
    A("s_barrier")
    rd = reader(VR, 64, True)
    first_reads(A, rd)
    A(f"s_mov_b32 {s(S_SRC5)}, {hex(OOB)}")
    A(f"s_mov_b32 {s(S_NEED)}, 28")
    cvt = lambda d, x: f"v_cvt_pk_bf16_f32 {v(d)}, {v(x)}, {v(x + 1)}"
    half = lambda T: [cvt(TMP + 4 * T + i, ACC + 8 * T + 2 * i) for i in range(4)] + \
        [cvt(TMP + 8 + 2 * T + i, ACC + 16 + 4 * T + 2 * i) for i in range(2)]
    stores = [f"buffer_store_dwordx4 {v(TMP + 4 * i, 4)}, {v(VO + i)}, {s(SWS, 4)}, {s(S_SRC5)} offen sc1" for i in range(3)]
    A.label(loop)
    head = [f"s_add_u32 {s(S_NXT)}, {s(S_NXT)}, 65536", f"s_xor_b32 {s(S_M0)}, {s(S_M0)}, 0x10000",
            f"s_cmp_lt_u32 {s(S_STEP)}, 63", f"s_cselect_b32 {s(S_SRC)}, {s(S_NXT)}, {hex(OOB)}"]
    first = len(A.lines)
    q = cfg.q_step
    t0 = split_loads(tag(dma_list(4, S_M0, 0, S_SRC, VD, (0, 2)), "t0"), [(75 - 26) // q + 1])
    t1 = split_loads(tag(dma_list(4, S_M0, 0, S_SRC, VD, (1, 3)), "t1"), [7])
    job(A, 64, rd, True, tiles,
        [(0, 1, head), (8, cfg.st_step, half(1) + tag(stores, "st") + [f"v_mov_b32 {v(VP)}, {s(S_STEP)}"]),
         (26, q, t0[0]), (-76, q // 2, lines(sig)), (0, q, t0[1] + t1[0]), (-105, 1, half(0)),
         (0, 1, [f"s_add_u32 {s(S_OUT)}, {s(S_OUT)}, {32 * 24576}", f"s_mov_b32 {s(S_SRC5)}, {s(S_OUT)}",
                 f"s_add_u32 {s(S_STEP)}, {s(S_STEP)}, 1"])], 0, 59,
        syncs={32: ["s_waitcnt vmcnt(@st,t1)", "s_barrier"]})
    A(f"v_xor_b32 {v(VR)}, 0x10000, {v(VR)}")
    event(A, cfg, 2, True)
    span(A, cfg)
    A("s_waitcnt vmcnt(@t0) lgkmcnt(0)")
    A("s_barrier")
    job(A, 64, rd, True, tiles, [(7, 1, t1[1]), (11, 1, [f"s_cmp_lt_u32 {s(S_STEP)}, {s(S_NEED)}"])], 59, 64, rd)
    resolve(A, first)
    if cfg.marks == 1:
        mark(A, cfg, s(S_STEP))
        A(f"s_cmp_lt_u32 {s(S_STEP)}, {s(S_NEED)}")
    A(f"s_cbranch_scc1 {loop}")
    A(f"s_cmp_eq_u32 {s(S_STEP)}, 64")
    A(f"s_cbranch_scc1 {back}")
    A.c("the second half of the rows must be normalised by now")
    await_helpers(A, 3, end, 14)
    A(f"s_mov_b32 {s(S_NEED)}, 64")
    A(f"s_branch {loop}")
    A.label(back)
    A.nop(8)
    for op in half(1) + stores:
        A(op)
    A(f"v_mov_b32 {v(VP)}, 64")
    A("s_waitcnt vmcnt(0) lgkmcnt(0)")
    A("s_barrier")
    sig()

    lap_dump(A, cfg)
    A.c("out = x1 + gb * (sum of the seven partial down projections)")
    GB, SUMS, X8, BUF = 16, 24, 32, 64
    ptr(A, 16, "out")
    A(f"s_and_b32 {s(S_T2)}, {s(S_CU)}, 3")
    A(f"s_lshr_b32 {s(S_T3)}, {s(S_CU)}, 2")
    octet_addrs(A, S_T2, S_T3)
    lines_addr(A, VFA, LANE, 7, 10)
    A(f"s_lshr_b32 {s(S_FA)}, {s(S_CU)}, 3")
    A(f"s_lshl_b32 {s(S_FA)}, {s(S_FA)}, 7")
    A(f"s_add_u32 {s(S_FA)}, {s(S_FA)}, {L.P45 + 4}")
    unit_consts(A)
    A("s_waitcnt lgkmcnt(0)")
    A.srd(SW, 16, SIZE["out"])
    await_start(A, end)
    await_gates(A, end)
    A(f"s_mov_b32 {s(S_T0)}, {L.MOD + 4 * 5120}")
    for i in range(2):
        A(f"buffer_load_dwordx4 {v(GB + 4 * i, 4)}, {v(VO + 2)}, {s(SWS, 4)}, {s(S_T0)} offen offset:{16 * i} sc1")
    A(f"s_mov_b32 {s(S_STEP)}, {s(S_WAVE)}")
    for nb, limit in ((cfg.fin_nb, 48), (1, 64)):
        loop = A.new("fin")
        A.label(loop)
        A(f"s_add_u32 {s(S_NEED)}, {s(S_STEP)}, {4 * (nb - 1) + 1}")
        block_on(A, lambda: A(f"buffer_load_dword {v(VF)}, {v(VFA)}, {s(SWS, 4)}, {s(S_FA)} offen sc1"),
                 lambda: A(f"v_cmp_gt_u32 vcc, {s(S_NEED)}, {v(VF)}"), end, 32 if limit == 48 else cfg.fin_sleep)
        A(f"s_lshl_b32 {s(S_OUT)}, {s(S_STEP)}, 16")
        again = A.new("fa")
        A.label(again)
        for b in range(nb):
            for k in range(8):
                base = L.X1 if k == 7 else L.PART5 + k * 4 * L.MB
                A(f"s_add_u32 {s(S_T1)}, {s(S_OUT)}, {base + b * 4 * 65536}")
                A(f"buffer_load_dwordx4 {v(BUF + 32 * b + 4 * k, 4)}, {v(VO)}, {s(SWS, 4)}, {s(S_T1)} offen sc1")
        for b in range(nb):
            A(f"s_waitcnt vmcnt({8 * (nb - 1 - b) + b})")
            if limit == 64 and cfg.early5:
                spend(A, end)
                check(A, BUF, 28, SUMS)
                A(f"s_cbranch_vccnz {again}")
            sum_bf(A, SUMS, [BUF + 32 * b + 4 * k for k in range(7)], 4)
            unpack(A, X8, BUF + 32 * b + 28, 4)
            for i in range(4):
                A(f"v_pk_fma_f32 {v(X8 + 2 * i, 2)}, {v(SUMS + 2 * i, 2)}, {v(GB + 2 * i, 2)}, {v(X8 + 2 * i, 2)}")
            pack8(A, 40 + 4 * b, X8, X8 + 4)
            A(f"s_add_u32 {s(S_T1)}, {s(S_OUT)}, {b * 4 * 65536}")
            A(f"buffer_store_dwordx4 {v(40 + 4 * b, 4)}, {v(VO + 1)}, {s(SW, 4)}, {s(S_T1)} offen{WFLAG[cfg.outflag]}")
        A(f"s_add_u32 {s(S_STEP)}, {s(S_STEP)}, {4 * nb}")
        A(f"s_cmp_lt_u32 {s(S_STEP)}, {limit}")
        A(f"s_cbranch_scc1 {loop}")
        mark(A, cfg, 2 if limit == 48 else 3)
    report(A, cfg, (2, 4))
    A("s_endpgm")


def g3_role(A, cfg, end):
    A.c("output projection of token rows: this group's heads x 128 columns")
    A(f"v_mov_b32 {v(LANE)}, v1")
    A(f"s_sub_u32 {s(S_K)}, {s(S_TK)}, 24")
    A(f"s_lshl_b32 {s(S_CU)}, {s(S_GRP)}, 3")
    A(f"s_add_u32 {s(S_CU)}, {s(S_CU)}, {s(S_K)}")

    def extra():
        skip = A.new("np")
        A(f"s_mov_b32 {s(S_T0)}, 4096")
        A(f"buffer_store_dword {v(VP)}, {v(VPA)}, {s(SWS, 4)}, {s(S_T0)} offen sc1")
        A(f"s_mov_b32 {s(S_T0)}, {L.PM - L.P3}")
        A(f"buffer_store_dword {v(VP)}, {v(VPA)}, {s(SWS, 4)}, {s(S_T0)} offen sc1")
        line_addr(A, VO + 1, 0, L.PB, S_CU, TMP)
        A(f"buffer_store_dword {v(VP)}, {v(VO + 1)}, {s(SWS, 4)}, 0 offen sc1")
        A(f"s_lshl_b32 {s(S_T0)}, {s(S_IRR)}, 16")
        A(f"s_or_b32 {s(S_T2)}, {s(S_T2)}, {s(S_T0)}")
    start_role(A, L.P3, extra)
    if cfg.g3_after:
        A.c("these weights are needed last: the more urgent loads go first")
        await_start(A, end)
        after_stage(A, cfg.g3_after, end, TMP)
    A.srd(SW, 24, SIZE["Wo"])
    A(f"s_lshl_b32 {s(S_P0)}, {s(S_GRP)}, 21")
    A(f"s_lshl_b32 {s(S_T0)}, {s(S_K)}, 8")
    A(f"s_add_u32 {s(S_P0)}, {s(S_P0)}, {s(S_T0)}")
    A(f"s_add_u32 {s(S_P1)}, {s(S_P0)}, 128")
    pair_tiles(A, "P")
    load_w(A, [(SW, S_P0), (SW, S_P1)], 2048, 8, [(TMP, 256), (TMP + 1, 384)], "P", TMP + 4)
    mark(A, cfg, 1)
    A.c("128 of the conditioning values that are first needed after attention")
    ptr(A, 16, "wmod")
    ptr(A, 18, "c")
    A(f"v_mov_b32 v10, {v(VPA)}")
    A(f"s_add_u32 {s(S_P0)}, {s(S_CU)}, 32")
    A("s_waitcnt lgkmcnt(0)")
    A.srd(SW, 16, SIZE["wmod"])
    A.srd(SW2, 18, SIZE["c"])
    mod_two(A, S_P0, S_WAVE, S_P2, SW, SW2, WFLAG[cfg.wmod])
    A(f"v_mov_b32 {v(VPA)}, v10")
    A(f"v_mov_b32 {v(VP)}, 1")
    A(f"s_mov_b32 {s(S_T0)}, {L.PM - L.P3}")
    A("s_waitcnt vmcnt(0)")
    A(f"buffer_store_dword {v(VP)}, {v(VPA)}, {s(SWS, 4)}, {s(S_T0)} offen sc1")
    mark(A, cfg, 7)
    await_start(A, end, probed=True)
    common_regs(A, 4096)
    words_addr(A, VFA, LANE, 8, TMP)
    A(f"s_lshl_b32 {s(S_FA)}, {s(S_GRP)}, 10")
    A(f"s_add_u32 {s(S_FA)}, {s(S_FA)}, {L.PO}")
    A(f"v_mov_b32 {v(VO)}, {v(VR)}")
    A(f"s_lshl_b32 {s(S_T0)}, {s(S_K)}, 2")
    A(f"s_add_u32 {s(S_T0)}, {s(S_T0)}, {s(S_WAVE)}")
    A(f"s_lshl_b32 {s(S_T0)}, {s(S_T0)}, 11")
    A(f"s_lshl_b32 {s(S_OUT)}, {s(S_GRP)}, 22")
    A(f"s_add_u32 {s(S_OUT)}, {s(S_OUT)}, {s(S_T0)}")
    A(f"s_add_u32 {s(S_OUT)}, {s(S_OUT)}, {L.PART3 - 65536}")
    A(f"s_lshl_b32 {s(S_NXT)}, {s(S_GRP)}, 16")
    A(f"s_add_u32 {s(S_NXT)}, {s(S_NXT)}, {L.OTOK}")
    A.c("bring one slot of the token-output ring into this die's L2")
    A(f"s_lshl_b32 {s(S_SRC)}, {s(S_K)}, 18")
    A(f"s_add_u32 {s(S_SRC)}, {s(S_SRC)}, {s(S_NXT)}")
    for op in dma_list(4, S_M0, 0, S_SRC, VD):
        A(op)

    def epi():
        for T in range(2):
            pack8(A, TMP + 4 * T, ACC + 8 * T, ACC + 8 * T + 4)
            A(f"buffer_store_dwordx4 {v(TMP + 4 * T, 4)}, {v(VO)}, {s(SWS, 4)}, {s(S_OUT)} offen offset:{1024 * T} sc1")
    tiles = [(lambda T: ACC + 8 * T, lambda ks: 256 + 4 * ks, False),
             (lambda T: ACC + 8 * T + 4, lambda ks: 384 + 4 * ks, False)]

    def sig():
        A(f"s_and_b32 {s(S_T0)}, {s(S_STEP)}, 1")
        A(f"s_lshl_b32 {s(S_T0)}, {s(S_T0)}, 12")
        A(f"buffer_store_dword {v(VP)}, {v(VPA)}, {s(SWS, 4)}, {s(S_T0)} offen sc1")

    def landed():
        far, out = A.new("lf"), A.new("lo")
        A(f"v_add_u32 {v(VO + 2)}, 1, {v(VO + 2)}")
        A(f"s_cmp_lg_u32 {s(S_IRR)}, 0")
        A(f"s_cbranch_scc1 {far}")
        A(f"buffer_store_dword {v(VO + 2)}, {v(VO + 1)}, {s(SWS, 4)}, 0 offen")
        A(f"s_branch {out}")
        A.label(far)
        A(f"buffer_store_dword {v(VO + 2)}, {v(VO + 1)}, {s(SWS, 4)}, 0 offen sc1")
        A.label(out)
    A(f"v_mov_b32 {v(VO + 2)}, 0")
    hint = None
    if cfg.early3:
        A.c("the last segments are announced early and validated by their reader through 'not written' marks")
        for i in range(4):
            A(f"v_mov_b32 {v(TMP + i)}, -1")
        for sg in range(64 - cfg.nearly, 64):
            A(f"s_add_u32 {s(S_T0)}, {s(S_OUT)}, {(sg + 1) * 65536}")
            for T in range(2):
                A(f"buffer_store_dwordx4 {v(TMP, 4)}, {v(VO)}, {s(SWS, 4)}, {s(S_T0)} offen offset:{1024 * T} sc1")
        hint = (128 - cfg.early3, 1, [f"v_mov_b32 v10, {s(S_STEP)}", f"s_and_b32 {s(S_T0)}, {s(S_STEP)}, 1",
                f"s_lshl_b32 {s(S_T0)}, {s(S_T0)}, 12", f"s_cmp_gt_u32 {s(S_STEP)}, {64 - cfg.nearly}",
                f"s_cselect_b32 {s(S_T0)}, {s(S_T0)}, {hex(OOB)}",
                f"buffer_store_dword v10, {v(VPA)}, {s(SWS, 4)}, {s(S_T0)} offen sc1"])

    def advance():
        A(f"s_add_u32 {s(S_NXT)}, {s(S_NXT)}, 262144")
        A(f"s_bitset0_b32 {s(S_NXT)}, 21")
    stream1(A, cfg, tiles, epi, lambda B, d: B(f"s_add_u32 {s(S_NEED)}, {s(S_STEP)}, {d + 1}"), advance, 65536, end,
            sig, 64, landed, hint)
    lap_dump(A, cfg)
    if cfg.wbl2:
        A.c("the group is finished: its rings need not wait for the end of the launch to be written back")
        A("s_waitcnt vmcnt(0)")
        A(f"s_or_b32 {s(S_T0)}, {s(S_K)}, {s(S_WAVE)}")
        A(f"s_cbranch_scc1 {end}")
        A("buffer_wbl2 sc1")
        A("s_waitcnt vmcnt(0)")
    A("s_endpgm")


def pair_tiles(A, order):
    A(f"s_lshr_b32 {s(S_T2)}, {s(S_WAVE)}, 1")
    A(f"s_lshl_b32 {s(S_T2)}, {s(S_T2)}, 14")
    A(f"s_and_b32 {s(S_T3)}, {s(S_WAVE)}, 1")
    A(f"s_lshl_b32 {s(S_T3)}, {s(S_T3)}, 6")
    A(f"s_add_u32 {s(S_T2)}, {s(S_T2)}, {s(S_T3)}")
    for T in range(2):
        tile_addr(A, TMP + T, order, True, S_T2, 8 * T, TMP + 4, TMP + 5)


def moments(A, S, F, n, first):
    for i in range(n // 2):
        x = v(F + 2 * i, 2)
        if first and i == 0:
            A(f"v_pk_mul_f32 {v(S, 2)}, {x}, 1.0 op_sel_hi:[1,0]")
            A(f"v_pk_mul_f32 {v(S + 2, 2)}, {x}, {x}")
        else:
            A(f"v_pk_add_f32 {v(S, 2)}, {v(S, 2)}, {x}")
            A(f"v_pk_fma_f32 {v(S + 2, 2)}, {x}, {x}, {v(S + 2, 2)}")


def normalise(A, F, n, S, bits, wr, rd):
    A(f"v_add_f32 {v(S)}, {v(S)}, {v(S + 1)}")
    A(f"v_add_f32 {v(S + 1)}, {v(S + 2)}, {v(S + 3)}")
    xor_reduce(A, "v_add_f32", (S, S + 1), (S + 2, S + 3), bits)
    A(f"ds_write_b64 {v(wr)}, {v(S, 2)} offset:2048")
    A("s_waitcnt lgkmcnt(0)")
    A("s_barrier")
    for i in range(2):
        A(f"ds_read_b128 {v(S + 4 * i, 4)}, {v(rd)} offset:{2048 + 16 * i}")
    A(f"v_xor_b32 {v(wr)}, 512, {v(wr)}")
    A(f"v_xor_b32 {v(rd)}, 512, {v(rd)}")
    A(f"s_mov_b32 {s(S_T0)}, 0x3a800000")
    A("s_waitcnt lgkmcnt(0)")
    A(f"v_pk_add_f32 {v(S, 2)}, {v(S, 2)}, {v(S + 2, 2)}")
    A(f"v_pk_add_f32 {v(S + 4, 2)}, {v(S + 4, 2)}, {v(S + 6, 2)}")
    A(f"v_pk_add_f32 {v(S, 2)}, {v(S, 2)}, {v(S + 4, 2)}")
    A(f"v_pk_mul_f32 {v(S, 2)}, {v(S, 2)}, {s(S_T0, 2)} op_sel_hi:[1,0]")
    A(f"v_fma_f32 {v(S + 1)}, -{v(S)}, {v(S)}, {v(S + 1)}")
    A(f"v_max_f32 {v(S + 1)}, 0, {v(S + 1)}")
    A(f"v_add_f32 {v(S + 1)}, 0x3727c5ac, {v(S + 1)}")
    A(f"v_rsq_f32 {v(S + 1)}, {v(S + 1)}")
    A("s_nop 0")
    A(f"v_mul_f32 {v(S)}, -{v(S)}, {v(S + 1)}")
    for i in range(n // 2):
        A(f"v_pk_fma_f32 {v(F + 2 * i, 2)}, {v(F + 2 * i, 2)}, {v(S, 2)}, {v(S, 2)} op_sel:[0,1,0] op_sel_hi:[1,1,0]")


def stat_addrs(A, wr, rd, mask):
    A(f"v_and_b32 {v(rd)}, {mask}, {v(LANE)}")
    A(f"v_lshlrev_b32 {v(rd)}, 5, {v(rd)}")
    A(f"s_lshl_b32 {s(S_T0)}, {s(S_WAVE)}, 3")
    A(f"v_add_u32 {v(wr)}, {s(S_T0)}, {v(rd)}")


def helper_start(A, cfg, end):
    X, F, SH, SC, T = 16, 48, 112, 176, 240
    P1A, WR, RD, VA, VX, VG = 10, 11, 12, 13, 6, 7
    A(f"v_mov_b32 {v(LANE)}, v1")
    A(f"s_sub_u32 {s(S_T2)}, {s(S_GRP)}, 4")
    A(f"s_lshl_b32 {s(S_K)}, {s(S_TK)}, 2")
    A(f"s_add_u32 {s(S_K)}, {s(S_K)}, {s(S_T2)}")
    A(f"s_sub_u32 {s(S_K)}, {s(S_K)}, 64")
    A(f"s_lshr_b32 {s(S_T0)}, {s(S_T2)}, 1")
    A(f"s_lshl_b32 {s(S_T1)}, {s(S_T0)}, 3")
    A(f"s_add_u32 {s(S_T1)}, {s(S_T1)}, 16")
    A(f"s_lshl_b32 {s(S_T0)}, {s(S_T0)}, 2")
    A(f"s_cmp_ge_u32 {s(S_TK)}, 28")
    A(f"s_cselect_b32 {s(S_T3)}, 28, 24")
    A(f"s_add_u32 {s(S_T0)}, {s(S_T0)}, {s(S_T3)}")
    A(f"s_cmp_ge_u32 {s(S_TK)}, 24")
    A(f"s_cselect_b32 {s(S_T0)}, {s(S_T0)}, {s(S_T1)}")
    A(f"s_lshl_b32 {s(S_T1)}, {s(S_T2)}, 3")
    A(f"s_sub_u32 {s(S_T1)}, {s(S_T1)}, 16")
    A(f"s_bitcmp1_b32 {s(S_T2)}, 0")
    A(f"s_cselect_b32 {s(S_T0)}, {s(S_T0)}, {s(S_T1)}")
    A(f"s_add_u32 {s(S_CU)}, {s(S_T0)}, {s(S_TK)}")
    ptr(A, 16, "wmod")
    ptr(A, 18, "c")
    ptr(A, 20, "x")
    line_addr(A, P1A, 0, L.P1, S_K, TMP)
    line_addr(A, 8, 0, L.P45, S_CU, TMP)
    A("v_mov_b32 v14, 0")
    A("v_mov_b32 v15, 0")
    A(f"buffer_store_dword v14, {v(P1A)}, {s(SWS, 4)}, 0 offen sc1")
    A(f"buffer_store_dwordx2 v[14:15], v8, {s(SWS, 4)}, 0 offen sc1")
    A("s_waitcnt lgkmcnt(0)")
    A.srd(SW, 16, SIZE["wmod"])
    A.srd(SW2, 18, SIZE["c"])
    A.srd(SW3, 20, SIZE["x"])

    def stage(n, join=True):
        A(f"v_mov_b32 v14, {n}")
        A("s_waitcnt vmcnt(0)")
        if join:
            A("s_barrier")
        A(f"buffer_store_dword v14, {v(P1A)}, {s(SWS, 4)}, 0 offen sc1")

    stat_addrs(A, WR, RD, 15)
    A(f"v_lshlrev_b32 {v(VA)}, 4, {v(LANE)}")
    A(f"v_lshrrev_b32 {v(VG)}, 4, {v(LANE)}")
    A(f"v_lshlrev_b32 {v(VX)}, 6, {v(RD)}")
    A(f"v_lshl_add_u32 {v(VX)}, {v(VG)}, 4, {v(VX)}")
    A(f"v_lshlrev_b32 {v(VG)}, 5, {v(VG)}")

    def x_rows(reps=(0,) if cfg.x2late else (0, 1)):
        for rep in reps:
            A(f"s_add_u32 {s(S_T2)}, {s(S_K)}, {64 * rep}")
            A(f"s_lshl_b32 s41, {s(S_T2)}, 15")
            A(f"s_lshl_b32 s42, {s(S_WAVE)}, 9")
            A("s_add_u32 s41, s41, s42")
            for k in range(8):
                A(f"buffer_load_dwordx4 {a(32 * rep + 4 * k, 4)}, {v(VX)}, {s(SW3, 4)}, s41 offen offset:{64 * k}")
        return 8 * len(reps)
    A(f"s_and_b32 {s(S_P0)}, {s(S_K)}, 2")
    A(f"s_lshl_b32 {s(S_P0)}, {s(S_P0)}, 3")
    A(f"s_lshr_b32 {s(S_P1)}, {s(S_K)}, 2")
    A(f"s_add_u32 {s(S_P0)}, {s(S_P0)}, {s(S_P1)}")
    A(f"s_and_b32 {s(S_P1)}, {s(S_K)}, 1")
    A(f"s_lshl_b32 {s(S_P2)}, {s(S_P0)}, 8")
    A(f"s_lshl_b32 {s(S_T0)}, {s(S_P1)}, 13")
    A(f"s_add_u32 {s(S_P2)}, {s(S_P2)}, {s(S_T0)}")
    A(f"s_add_u32 {s(S_P2)}, {s(S_P2)}, {L.MODP}")
    A(f"s_min_u32 {s(S_T0)}, {s(S_WAVE)}, 1")
    A(f"s_lshl_b32 {s(S_T0)}, {s(S_T0)}, 30")
    A(f"s_add_u32 {s(S_T0)}, {s(S_T0)}, {s(S_P2)}")
    A(f"v_lshlrev_b32 v2, 2, {v(LANE)}")
    A("v_mov_b32 v3, -1")
    A(f"buffer_store_dword v3, v2, {s(SWS, 4)}, {s(S_T0)} offen sc1")
    A(f"s_mov_b32 {s(S_T2)}, 1")
    arrive(A, S_T2, True, join=False, t=14)
    mod_addr(A)
    mod_pass(A, S_P0, S_P1, SW, SW2, WFLAG[cfg.wmod], x_rows)
    mod_finish(A, S_WAVE, S_P2, False)
    await_start(A, end, 14, True)
    mark(A, cfg, 4)
    for rep in range(2):
        A(f"s_add_u32 {s(S_T2)}, {s(S_K)}, {64 * rep}")
        for k in range(32):
            A(f"v_accvgpr_read_b32 {v(X + k)}, {a(32 * rep + k)}")
        A(f"s_lshr_b32 s40, {s(S_T2)}, 1")
        A("s_lshl_b32 s40, s40, 2")
        A(f"s_add_u32 s40, s40, {s(S_WAVE)}")
        A("s_lshl_b32 s40, s40, 14")
        A(f"s_and_b32 s41, {s(S_T2)}, 1")
        A("s_lshl_b32 s41, s41, 10")
        A("s_add_u32 s40, s40, s41")
        unpack(A, F, X, 32)
        moments(A, T, F, 64, True)
        normalise(A, F, 64, T, (16, 32), WR, RD)
        if rep == 0:
            A.c("shift and 1+scale, summed and rounded once per workgroup, shared through LDS")
            A("v_lshlrev_b32 v14, 5, v0")

            def parts():
                for h in range(2):
                    A(f"s_mov_b32 s42, {L.MODP + 8192 * h}")
                    for i in range(2):
                        A(f"buffer_load_dwordx4 {v(X + 8 * h + 4 * i, 4)}, v14, {s(SWS, 4)}, s42 offen offset:{16 * i} sc1")
            block_on(A, parts, lambda: check(A, X, 16, 15), end, 4)
            if cfg.x2late:
                x_rows((1,))
            A(f"s_cmp_ge_u32 {s(S_WAVE)}, 2")
            A("s_cselect_b32 s42, 1.0, 0")
            A(f"s_lshl_b32 s43, {s(S_WAVE)}, 10")
            A(f"v_add_u32 {v(VG)}, s43, {v(VG)}")
            for i in range(8):
                A(f"v_add_f32 {v(X + i)}, {v(X + i)}, {v(X + 8 + i)}")
            for i in range(8):
                A(f"v_cvt_pk_bf16_f32 {v(X + i)}, 0, {v(X + i)}")
            for i in range(8):
                A(f"v_add_f32 {v(X + i)}, s42, {v(X + i)}")
            for i in range(2):
                A(f"ds_write_b128 v14, {v(X + 4 * i, 4)} offset:{4096 + 16 * i}")
            A("s_waitcnt lgkmcnt(0)")
            A("s_barrier")
            for n in range(16):
                off = 4096 + 128 * (n >> 1) + 16 * (n & 1)
                A(f"ds_read_b128 {v(SH + 4 * n, 4)}, {v(VG)} offset:{off}")
                A(f"ds_read_b128 {v(SC + 4 * n, 4)}, {v(VG)} offset:{off + 4096}")
            A("s_waitcnt lgkmcnt(0)")
        for k in range(8):
            for i in range(4):
                x = 8 * k + 2 * i
                A(f"v_pk_fma_f32 {v(F + x, 2)}, {v(F + x, 2)}, {v(SC + x, 2)}, {v(SH + x, 2)}")
            pack8(A, X + 4 * k, F + 8 * k, F + 8 * k + 4)
            A(f"s_add_u32 s41, s40, {L.H1 + 2048 * k}")
            A(f"buffer_store_dwordx4 {v(X + 4 * k, 4)}, {v(VA)}, {s(SWS, 4)}, s41 offen sc1")
        stage(2 + rep)
        mark(A, cfg, 5 + rep)
    A(f"v_mov_b32 {v(VPA)}, v8")
    A(f"v_mov_b32 {v(VP)}, 0")
    mark(A, cfg, 7)


def ln_role(A, cfg, end):
    A.c("x1 = x + ga * attention, h2 = modulated layer norm of x1, for 8 tokens of every other segment")
    PB, XB, F, GA, SC, SH, T, WR, RD = 16, 80, 96, 128, 160, 192, 224, 11, 12
    A(f"s_sub_u32 {s(S_K)}, {s(S_CU)}, 56")
    A(f"s_and_b32 {s(S_T2)}, {s(S_K)}, 3")
    A(f"s_lshl_b32 {s(S_T3)}, {s(S_WAVE)}, 2")
    octet_addrs(A, S_T2, S_T3)
    stat_addrs(A, WR, RD, 7)
    unit_consts(A)
    lines_addr(A, VFA, LANE, 32)
    A(f"s_lshr_b32 {s(S_FA)}, {s(S_K)}, 2")
    A(f"s_xor_b32 {s(S_FA)}, {s(S_FA)}, 1")
    A(f"s_lshl_b32 {s(S_FA)}, {s(S_FA)}, 12")
    A(f"s_add_u32 {s(S_FA)}, {s(S_FA)}, {L.P3}")
    await_start(A, end)
    await_gates(A, end)
    for reg, part in ((GA, 2), (SH, 3), (SC, 4)):
        A(f"s_mov_b32 {s(S_T0)}, {L.MOD + 4096 * part}")
        for i in range(8):
            A(f"buffer_load_dwordx4 {v(reg + 4 * i, 4)}, {v(VO + 2)}, {s(SWS, 4)}, {s(S_T0)} offen offset:{256 * (i >> 1) + 16 * (i & 1)} sc1")
    A("s_waitcnt vmcnt(0)")
    for i in range(16):
        A(f"v_pk_add_f32 {v(SC + 2 * i, 2)}, {v(SC + 2 * i, 2)}, 1.0 op_sel_hi:[1,0]")
    A(f"s_lshr_b32 {s(S_STEP)}, {s(S_K)}, 2")
    lap_init(A, cfg)
    lap(A, cfg, 7)
    loop, dead = A.new("ln"), end
    A.label(loop)
    A(f"s_lshl_b32 {s(S_OUT)}, {s(S_STEP)}, 16")
    for i in range(4):
        A(f"buffer_load_dwordx4 {v(XB + 4 * i, 4)}, {v(VO + 1)}, {s(SW3, 4)}, {s(S_OUT)} offen offset:{128 * i}")
    A(f"s_add_u32 {s(S_NEED)}, {s(S_STEP)}, 1")

    others = A.new("lo")
    if cfg.ln_one:
        A(f"s_cmp_lg_u32 {s(S_WAVE)}, 0")
        A(f"s_cbranch_scc1 {others}")
    block_on(A, lambda: A(f"buffer_load_dword {v(VF)}, {v(VFA)}, {s(SWS, 4)}, {s(S_FA)} offen sc1"),
             lambda: A(f"v_cmp_gt_u32 vcc, {s(S_NEED)}, {v(VF)}"), dead if cfg.ln_one else end, cfg.ln_sleep)
    if cfg.ln_one:
        A.label(others)
        A("s_waitcnt vmcnt(0)")
        A("s_barrier")
    lap(A, cfg, 0)

    def partials():
        for i in range(4):
            for x in range(4):
                A(f"s_add_u32 {s(S_T1)}, {s(S_OUT)}, {L.PART3 + x * 4 * L.MB + 4096 * i}")
                A(f"buffer_load_dwordx4 {v(PB + 16 * i + 4 * x, 4)}, {v(VO)}, {s(SWS, 4)}, {s(S_T1)} offen sc1")
    again, sure = A.new("la"), A.new("ls")
    A.label(again)
    partials()
    if cfg.early3:
        A(f"s_cmp_lt_u32 {s(S_STEP)}, {64 - cfg.nearly}")
        A(f"s_cbranch_scc1 {sure}")
        spend(A, end)
        A(f"v_mov_b32 {v(T)}, 0")
        for i in range(4):
            A(f"s_waitcnt vmcnt({4 * (3 - i)})")
            for q in range(8):
                A(f"v_max3_u32 {v(T)}, {v(T)}, {v(PB + 16 * i + 2 * q)}, {v(PB + 16 * i + 2 * q + 1)}")
        A(f"v_cmp_eq_u32 vcc, -1, {v(T)}")
        A(f"s_cbranch_vccnz {again}")
        A.label(sure)
    unpack(A, F, XB, 16)
    for i in range(4):
        A(f"s_waitcnt vmcnt({4 * (3 - i) + i})")
        if i in (0, 3):
            lap(A, cfg, 1 + i // 3)
        sum_bf(A, T, [PB + 16 * i + 4 * x for x in range(4)], 4)
        A("s_nop 1")
        for q in range(4):
            x = 8 * i + 2 * q
            A(f"v_pk_fma_f32 {v(F + x, 2)}, {v(T + 2 * q, 2)}, {v(GA + x, 2)}, {v(F + x, 2)}")
        pack8(A, XB + 4 * i, F + 8 * i, F + 8 * i + 4)
        A(f"s_add_u32 {s(S_T1)}, {s(S_OUT)}, {L.X1 + 4096 * i}")
        A(f"buffer_store_dwordx4 {v(XB + 4 * i, 4)}, {v(VO)}, {s(SWS, 4)}, {s(S_T1)} offen sc1")
        unpack(A, F + 8 * i, XB + 4 * i, 4)
        moments(A, T + 8, F + 8 * i, 8, i == 0)
    lap(A, cfg, 3)
    normalise(A, F, 32, T + 8, (8, 16, 32), WR, RD)
    lap(A, cfg, 4)
    for i in range(4):
        for q in range(4):
            x = 8 * i + 2 * q
            A(f"v_pk_fma_f32 {v(F + x, 2)}, {v(F + x, 2)}, {v(SC + x, 2)}, {v(SH + x, 2)}")
        pack8(A, PB + 4 * i, F + 8 * i, F + 8 * i + 4)
        A(f"s_add_u32 {s(S_T1)}, {s(S_OUT)}, {L.H2 + 4096 * i}")
        A(f"buffer_store_dwordx4 {v(PB + 4 * i, 4)}, {v(VO)}, {s(SWS, 4)}, {s(S_T1)} offen sc1")
    lap(A, cfg, 5)
    A(f"v_mov_b32 {v(VP)}, {s(S_NEED)}")
    A("s_waitcnt vmcnt(0)")
    A("s_barrier")
    lap(A, cfg, 6)
    A(f"buffer_store_dword {v(VP)}, {v(VPA)}, {s(SWS, 4)}, 0 offen sc1")
    mark(A, cfg, s(S_NEED))
    A(f"s_add_u32 {s(S_STEP)}, {s(S_STEP)}, 2")
    A(f"s_cmp_lt_u32 {s(S_STEP)}, 64")
    A(f"s_cbranch_scc1 {loop}")
    lap_dump(A, cfg)
    A("s_endpgm")


def g45_role(A, cfg, end):
    A.c("64 hidden units of silu(h w1) * (h w3) and a 512 x 128 slice of the down projection")
    VD5, VR5, VFA5, VF5 = VD, 11, 12, 13
    AC5, TE, VS, HV = 64, 88, 100, 104
    LAG = cfg.lag
    ptr(A, 16, "w1")
    ptr(A, 18, "w3")
    ptr(A, 20, "w2")
    A("s_waitcnt lgkmcnt(0)")
    A.srd(SW, 16, SIZE["w1"])
    A.srd(SW2, 18, SIZE["w3"])
    A.srd(SW3, 20, SIZE["w2"])
    A(f"s_lshl_b32 {s(S_P0)}, {s(S_CU)}, 7")
    A(f"s_lshl_b32 {s(S_T2)}, {s(S_WAVE)}, 5")
    for p in range(2):
        tile_addr(A, TMP + p, "N", False, S_T2, 16384 * p, TMP + 4, TMP + 5)
    load_w(A, [(SW, S_P0), (SW2, S_P0)], 7168, 8, [(TMP, 256), (TMP + 1, 384)], "N", TMP + 4, WFLAG[cfg.wff])
    A(f"s_lshr_b32 {s(S_K)}, {s(S_CU)}, 3")
    A(f"s_and_b32 {s(S_P2)}, {s(S_CU)}, 7")
    A(f"s_lshl_b32 {s(S_P0)}, {s(S_K)}, 20")
    A(f"s_lshl_b32 {s(S_T0)}, {s(S_P2)}, 8")
    A(f"s_add_u32 {s(S_P0)}, {s(S_P0)}, {s(S_T0)}")
    A(f"s_add_u32 {s(S_P1)}, {s(S_P0)}, 128")
    pair_tiles(A, "N")
    load_w(A, [(SW3, S_P0), (SW3, S_P1)], 2048, 4, [(TMP, 128), (TMP + 1, 192)], "N", TMP + 4, WFLAG[cfg.wff])
    mark(A, cfg, 1)
    common_regs(A, 4096)
    S_M5, S_FA5, S_NL, S_OUT4 = S_P0, S_P1, 64, 65
    A(f"s_mov_b32 {s(S_M5)}, {s(S_M0)}")
    A(f"v_add_u32 {v(VR5)}, 0x20000, {v(VR)}")
    A(f"v_mov_b32 {v(VO + 1)}, {v(VR)}")
    lines_addr(A, VFA, LANE, 4)
    lines_addr(A, VFA5, LANE, 8)
    A(f"s_lshl_b32 {s(S_FA5)}, {s(S_K)}, 10")
    A(f"s_add_u32 {s(S_FA5)}, {s(S_FA5)}, {L.P45}")
    A(f"s_lshl_b32 {s(S_T0)}, {s(S_CU)}, 1")
    A(f"s_lshr_b32 {s(S_T1)}, {s(S_WAVE)}, 1")
    A(f"s_add_u32 {s(S_T0)}, {s(S_T0)}, {s(S_T1)}")
    A(f"s_lshl_b32 {s(S_T0)}, {s(S_T0)}, 11")
    A(f"s_and_b32 {s(S_T1)}, {s(S_WAVE)}, 1")
    A(f"s_lshl_b32 {s(S_T1)}, {s(S_T1)}, 9")
    A(f"s_add_u32 {s(S_T0)}, {s(S_T0)}, {s(S_T1)}")
    A(f"v_and_b32 {v(TMP)}, 15, {v(LANE)}")
    A(f"v_lshl_add_u32 {v(VO)}, {v(TMP)}, 4, {s(S_T0)}")
    A(f"v_bfe_u32 {v(TMP)}, {v(LANE)}, 4, 1")
    A(f"v_lshl_add_u32 {v(VO)}, {v(TMP)}, 10, {v(VO)}")
    A(f"v_lshrrev_b32 {v(TMP)}, 5, {v(LANE)}")
    A(f"v_lshl_add_u32 {v(VO)}, {v(TMP)}, 8, {v(VO)}")
    A(f"s_mov_b32 {s(S_OUT)}, {L.HH}")
    A(f"s_mov_b32 {s(S_NXT)}, {L.H2}")
    A(f"s_lshl_b32 {s(S_NXT5)}, {s(S_K)}, 15")
    A(f"s_add_u32 {s(S_NXT5)}, {s(S_NXT5)}, {L.HH - LAG * 229376}")
    A(f"s_lshl_b32 {s(S_T0)}, {s(S_P2)}, 2")
    A(f"s_add_u32 {s(S_T0)}, {s(S_T0)}, {s(S_WAVE)}")
    A(f"s_lshl_b32 {s(S_T0)}, {s(S_T0)}, 11")
    A(f"s_lshl_b32 {s(S_P2)}, {s(S_K)}, 22")
    A(f"s_add_u32 {s(S_P2)}, {s(S_P2)}, {s(S_T0)}")
    A(f"s_add_u32 {s(S_P2)}, {s(S_P2)}, {L.PART5 - LAG * 65536}")
    A(f"s_mov_b32 {s(S_NL)}, 0xbfb8aa3b")
    A(f"v_mov_b32 {v(VS)}, 0")
    A(f"v_mov_b32 {v(VS + 1)}, 0")

    ldf = lambda B=A: B(f"buffer_load_dword {v(VF)}, {v(VFA)}, {s(SWS, 4)}, {s(S_FA)} offen sc1")
    ldf5 = lambda B=A: B(f"buffer_load_dword {v(VF5)}, {v(VFA5)}, {s(SWS, 4)}, {s(S_FA5)} offen sc1")
    tst5 = lambda: A(f"v_cmp_gt_u32 vcc, {s(S_NEED5)}, {v(VF5)}")

    def sig(back5, B=A):
        B(f"v_min_u32 {v(VS)}, {s(S_STEP)}, 64")
        B(f"s_sub_u32 {s(S_T0)}, {s(S_STEP)}, {LAG + back5}")
        B(f"v_max_i32 {v(VS + 1)}, {s(S_T0)}, 0")
        B(f"buffer_store_dwordx2 {v(VS, 2)}, {v(VPA)}, {s(SWS, 4)}, 0 offen sc1")

    def store4(B=A):
        B(f"buffer_store_dwordx4 {v(TE + 8, 4)}, {v(VO)}, {s(SWS, 4)}, {s(S_OUT)} offen sc1")

    def flag_for(B, d):
        B(f"s_add_u32 {s(S_NEED)}, {s(S_STEP)}, {d}")
        B(f"s_and_b32 {s(S_FA)}, {s(S_NEED)}, 1")
        B(f"s_lshl_b32 {s(S_FA)}, {s(S_FA)}, 9")
        B(f"s_add_u32 {s(S_FA)}, {s(S_FA)}, {L.PL}")
        B(f"s_add_u32 {s(S_NEED)}, {s(S_NEED)}, 1")

    def need5(B=A):
        B(f"s_sub_u32 {s(S_NEED5)}, {s(S_STEP)}, {LAG - 1}")
        B(f"s_max_i32 {s(S_NEED5)}, {s(S_NEED5)}, 0")

    def epi4(B, T):
        G, U, H = ACC + 4 * T, ACC + 8 + 4 * T, HV + 4 * T
        for i in range(4):
            B(f"v_mul_f32 {v(TE + i)}, {s(S_NL)}, {v(G + i)}")
        for i in range(4):
            B(f"v_exp_f32 {v(TE + i)}, {v(TE + i)}")
        for i in range(4):
            B(f"v_mul_f32 {v(H + i)}, {v(G + i)}, {v(U + i)}")
        for i in range(4):
            B(f"v_add_f32 {v(TE + i)}, 1.0, {v(TE + i)}")
        for i in range(4):
            B(f"v_rcp_f32 {v(TE + i)}, {v(TE + i)}")
        for i in range(4):
            B(f"v_mul_f32 {v(H + i)}, {v(H + i)}, {v(TE + i)}")
        if T:
            pack8(B, TE + 8, HV, HV + 4)
            B("GAP 2")
            B(f"v_permlane16_swap_b32 {v(TE + 8)}, {v(TE + 10)}")
            B(f"v_permlane16_swap_b32 {v(TE + 9)}, {v(TE + 11)}")

    def epi5(B=A, part=3):
        if part & 1:
            for T in range(2):
                pack8(B, TMP + 4 * T, AC5 + 8 * T, AC5 + 8 * T + 4)
        if part & 2:
            for T in range(2):
                B(f"buffer_store_dwordx4 {v(TMP + 4 * T, 4)}, {v(VO + 1)}, {s(SWS, 4)}, {s(S_OUT5)} offen offset:{1024 * T} sc1")

    def after5(B=A):
        B(f"s_cmp_ge_u32 {s(S_STEP)}, {LAG}")
        B(f"s_cselect_b32 {s(S_OUT5)}, {s(S_P2)}, {hex(OOB)}")
        B(f"s_add_u32 {s(S_OUT)}, {s(S_OUT)}, 229376")
        B(f"s_add_u32 {s(S_P2)}, {s(S_P2)}, 65536")
        B(f"s_add_u32 {s(S_NXT5)}, {s(S_NXT5)}, 229376")
        B(f"s_add_u32 {s(S_STEP)}, {s(S_STEP)}, 1")
    t4 = [(lambda T: ACC + 4 * T, lambda ks: 256 + 4 * ks, False),
          (lambda T: ACC + 8 + 4 * T, lambda ks: 384 + 4 * ks, False)]
    t5 = [(lambda T: AC5 + 8 * T, lambda ks: 128 + 4 * ks, False),
          (lambda T: AC5 + 8 * T + 4, lambda ks: 192 + 4 * ks, False)]
    assert LAG == 3
    if cfg.early5:
        A.c("the last four segments are announced early and validated by their reader")
        for i in range(4):
            A(f"v_mov_b32 {v(TMP + i)}, -1")
        for sg in range(60, 64):
            A(f"s_add_u32 {s(S_T0)}, {s(S_P2)}, {(sg + LAG) * 65536}")
            for T in range(2):
                A(f"buffer_store_dwordx4 {v(TMP, 4)}, {v(VO + 1)}, {s(SWS, 4)}, {s(S_T0)} offen offset:{1024 * T} sc1")
    event(A, cfg, 5)
    if cfg.gate45:
        A("s_memrealtime s[90:91]")
        gate(A, cfg.gate45)
    body, wait, late5, go5, starved, final = (A.new(x) for x in ("fb", "fw", "fl", "fg", "fs", "fz"))
    tst = lambda: A(f"v_cmp_gt_u32 vcc, {s(S_NEED)}, {v(VF)}")
    rd4, rd5 = reader(VR, 64, True), reader(VR5, 32, False)
    A(f"s_mov_b32 {s(S_STEP)}, 0")
    lap_init(A, cfg)
    lap(A, cfg, 7)
    entry, idle = A.new("fe"), A.new("fd")
    flag_for(A, 0)

    def request():
        for js in ((0, 2), (1, 3)):
            for op in dma_list(4, S_M0, 0, S_NXT, VD, js):
                A(op)
    A.label(wait)
    block_on(A, lambda: (ldf5(), ldf()), tst, end, cfg.g4_sleep)
    request()
    A("s_waitcnt vmcnt(8)")
    A.label(entry)
    A(f"s_mov_b32 {s(S_OUT5)}, {hex(OOB)}")
    A("s_barrier")
    lap(A, cfg, 4)
    first_reads(A, rd4)
    A.label(body)

    def head(B):
        need5(B)
        decide(B, S_NEED5, VF5, S_RDY5, S_SRC5, S_NXT5, True)
        flag_for(B, 1)
        ldf(B)
        B(f"s_add_u32 {s(S_NXT)}, {s(S_NXT)}, 65536")
        B(f"s_xor_b32 {s(S_M0)}, {s(S_M0)}, 0x10000")

    def look(B):
        B("s_waitcnt vmcnt(@f4)")
        decide(B, S_NEED, VF, S_RDY, S_SRC, S_NXT, True)
        B(f"v_cmp_gt_u32 vcc, 62, {v(VF5)}")
        B(f"s_add_u32 {s(S_T2)}, {s(S_NXT5)}, 229376")
        B("GAP 2")
        B("s_cmp_eq_u64 vcc, 0")
        B(f"s_cselect_b32 {s(S_T2)}, {s(S_T2)}, {hex(OOB)}")
        B(f"s_cmp_eq_u32 {s(S_STEP)}, 63")
        B(f"s_cselect_b32 {s(S_SRC)}, {s(S_T2)}, {s(S_SRC)}")
    first = len(A.lines)
    nd5 = min(8, (48 - 10) // cfg.d5_step + 1)
    d5 = split_loads(tag(dma_list(2, S_M5, 0x20000, S_SRC5, VD5), "d5"), [nd5])
    t0 = split_loads(tag(dma_list(4, S_M0, 0, S_SRC, VD, (0, 2)), "t0"), [6])
    t1 = split_loads(tag(dma_list(4, S_M0, 0, S_SRC, VD, (1, 3)), "t1"), [7])
    st5 = lines(lambda B: epi5(B, 2))
    job(A, 64, rd4, True, t4,
        [(0, 1, tag(lines(head), "f4")), (0, cfg.d5_step, d5[0] + ["END 50"]), (-51, 3, lines(lambda B: sig(1, B))),
         (0, 6, d5[1] + ["END 70"]), (-60, 1, lines(look) + ["END 74"]), (70, 8, t0[0]),
         (-10, 8, lines(lambda B: epi5(B, 1)) + (st5 if cfg.st5_pos == 0 else [])),
         (-72, 4, lines(lambda B: epi4(B, 0)) + (st5 if cfg.st5_pos == 1 else []))], 0, 59,
        syncs={32: ["s_waitcnt vmcnt(@t1,st)", "s_barrier"]})
    lap(A, cfg, 0)
    A(f"s_cmp_eq_u32 {s(S_RDY5)}, 0")
    A(f"s_cbranch_scc1 {late5}")
    A("s_waitcnt vmcnt(@d5) lgkmcnt(0)")
    A.label(go5)
    A("s_barrier")
    lap(A, cfg, 1)
    job(A, 64, rd4, True, t4, [(1, 6, t0[1]), (-4, 1, tag(lines(ldf) + lines(ldf5), "fl") +
                                               [f"v_xor_b32 {v(VR)}, 0x10000, {v(VR)}"])], 59, 64, rd5)
    job(A, 32, rd5, False, t5,
        [(0, 8, t1[0]), (-1, 4, st5 if cfg.st5_pos == 2 else []), (-8, 1, lines(lambda B: epi4(B, 1)) + tag(lines(store4), "st") + lines(after5))], 0, 27)
    event(A, cfg, 6, True)
    span(A, cfg)
    lap(A, cfg, 2)
    A(f"s_cmp_eq_u32 {s(S_RDY)}, 0")
    A("s_waitcnt vmcnt(@t0,fl) lgkmcnt(0)")
    A(f"s_cbranch_scc1 {starved}")
    A("s_barrier")
    lap(A, cfg, 3)
    job(A, 32, rd5, False, t5, [(5, 1, t1[1])], 27, 32, rd4)
    resolve(A, first)
    mark(A, cfg, s(S_STEP))
    A(f"s_branch {body}")
    A.label(starved)
    if cfg.marks in (2, 5):
        A("s_add_u32 s75, s75, 64")
    A.c("second look at the next input")
    tst()
    A(f"s_cbranch_vccnz {idle}")
    request()
    job(A, 32, rd5, False, t5, [], 27, 32)
    A.nop(8)
    epi5()
    A("s_waitcnt vmcnt(10)")
    mark(A, cfg, s(S_STEP))
    A(f"s_branch {entry}")
    A.label(idle)
    job(A, 32, rd5, False, t5, [], 27, 32)
    mark(A, cfg, s(S_STEP))
    A.nop(8)
    epi5(A, 1)
    A(f"s_cmp_eq_u32 {s(S_STEP)}, 64")
    A(f"s_cbranch_scc1 {final}")
    epi5(A, 2)
    A(f"s_branch {wait}")
    A.label(late5)
    if cfg.marks in (2, 5):
        A("s_add_u32 s76, s76, 64")
    block_on(A, ldf5, tst5, end)
    for op in dma_list(2, S_M5, 0x20000, S_NXT5, VD5):
        A(op)
    A("s_waitcnt vmcnt(0) lgkmcnt(0)")
    A(f"s_branch {go5}")

    A.label(final)
    A.c("last three down projections, with inputs in the free up-projection buffers")
    lap_dump(A, cfg)
    A("s_waitcnt vmcnt(0)")
    A("s_barrier")
    sig(1)
    A(f"v_add_u32 {v(VR5)}, -0x20000, {v(VR5)}")

    def fetch(i, block):
        out = A.new("fq")
        A(f"s_mov_b32 {s(S_NEED5)}, {62 + i}")
        if block:
            A(f"s_cmp_lg_u32 {s(S_RDY5)}, 0")
            A(f"s_cbranch_scc1 {out}")
            block_on(A, ldf5, tst5, end, 1)
        else:
            tst5()
            A(f"s_mov_b32 {s(S_RDY5)}, 0")
            A(f"s_cbranch_vccnz {out}")
            A(f"s_mov_b32 {s(S_RDY5)}, 1")
        A(f"s_add_u32 {s(S_SRC5)}, {s(S_T3)}, {229376 * i}")
        for op in dma_list(2, S_M5, 0x10000 * i, S_SRC5, VD5):
            A(op)
        if block:
            A("s_waitcnt vmcnt(0)")
        A.label(out)

    def alone(fill):
        A("s_barrier")
        first_reads(A, rd5)
        job(A, 32, rd5, False, t5, fill)
        after5()
        A(f"v_add_u32 {v(VR5)}, 0x10000, {v(VR5)}")
        A("s_nop 0")
        epi5(A, 1)
        mark(A, cfg, s(S_STEP))
    A(f"s_mov_b32 {s(S_T3)}, {s(S_NXT5)}")
    A(f"s_cmp_lg_u32 {s(S_SRC)}, {hex(OOB)}")
    A(f"s_cselect_b32 {s(S_RDY5)}, 1, 0")
    fetch(0, True)
    fetch(1, False)
    alone([(2, 6, lines(lambda B: epi5(B, 2))), (cfg.f63, 1, lines(ldf5))])
    A("s_waitcnt vmcnt(0)")
    fetch(1, True)
    fetch(2, False)
    alone([(2, 6, lines(lambda B: epi5(B, 2)))])
    A("s_waitcnt vmcnt(2)")
    fetch(2, True)
    if cfg.early5:
        alone([(2, 4, lines(lambda B: epi5(B, 2))), (-cfg.early5, 1, lines(lambda B: sig(-1, B)))])
        epi5(A, 2)
    else:
        alone([(2, 6, lines(lambda B: epi5(B, 2)))])
        epi5(A, 2)
        A("s_waitcnt vmcnt(0)")
        A("s_barrier")
        sig(0)
    report(A, cfg, (5, 6))
    A("s_endpgm")
```

```python
from asmlib import *
import layout as L

SWS, SW, SDBG = 4, 8, 12
P_MEM0, P_WQ, P_WK, P_WV, P_WO, P_DBG, P_WS = 16, 18, 20, 22, 24, 28, 30
S_WAVE, S_GRP, S_TK, S_IRR, S_STEP, S_BUD, S_T0, S_T1 = 32, 33, 34, 35, 36, 37, 38, 39
S_CUR, S_NXT, S_RST, S_XCUR, S_XRST, S_RBASE, S_PAR, S_PF, S_C, S_NC, S_OT = range(40, 51)
S_XCC, S_T2, S_T3 = 51, 52, 53
S_FB, S_TAG = 59, 26
S_XC, S_XR = 84, 88
S_STAMP = 60
S_CNT = 80
BUDGET = 200000
SM = "v_smfmac_f32_16x16x64_bf16"
MF = "v_mfma_f32_16x16x32_bf16"


WFLAG = ("", " nt", " sc1")


class Cfg:
    trace = 0
    nsteps = 64
    lag = 3
    s1_flag = 36
    wlo = 0
    whi = 0
    wff = 0
    wmod = 0
    ramp_lo = 2
    ramp_hi = 3
    g3_after = 0
    q_after = 0
    x2late = 1
    hi_first = 0
    lo_first = 8
    k_after = 0
    meet = 1
    qbreak = 3
    hold45 = 0
    lazy = 1
    ln_one = 1
    d5_step = 8
    st5_pos = 2
    early3 = 40
    nearly = 4
    early5 = 30
    fin_nb = 2
    skip63 = 1
    dense = 0
    wbl2 = 1
    dgap = 20
    dsets = 2
    f63 = 45
    nap_o = 0
    nap_m = 0
    usesleep = 0
    g3_sleep = 1
    spec = 0
    po_pos = 0
    fine = 0
    hmask = 0
    near = 2
    marks = 0
    qsig = 70
    codepf = 1
    qmap = 0
    gate2 = 0
    report = 0
    rep_step = 0
    gate45 = 0
    gate_entry = 0
    gate3 = 0
    gate = 0
    outflag = 2
    qkv_slow = 3
    g4_split = 4
    g4_step = 5
    st_step = 4
    q_step = 10
    g4_late = 1
    mark = staticmethod(lambda A, i: None)
    fin_sleep = 4
    ln_sleep = 2
    g4_sleep = 4
    solo = 0
    cyc = 0
    flip = 0
    nrep = 2
    xdelay = 20
    xgap = 8
    xfill = 0
    fm_delay = 28
    mdelay = 11
    fo_pos = 3
    use_fm = 1
    use_fo = 1
    nflag = 3
    qjoint = 1
    qown = 4
    fo_wait = 0
    fspace = 6
    lspace = 3
    ltail = 3
    kpos = 1
    vpos = 0
    ksplit = 1
    qsplit = 3
    rpos = 3
    vin = 1
    vk = 2
    vk2 = 4
    xdepth = 3
    xgap2 = 12
    xbf = 1
    vchk = 1
    qpipe = 0
    fillw = 0
    fillr = 0
    qfw = 0
    qfr = 0
    qfw2 = 0
    hw = 0
    hr = 0


def gate(A, us):
    if us:
        gl = A.new("gate")
        A.label(gl)
        A("s_memrealtime s[92:93]")
        A("s_waitcnt lgkmcnt(0)")
        A("s_sub_u32 s92, s92, s90")
        A(f"s_cmp_lt_u32 s92, {us * 100}")
        A(f"s_cbranch_scc1 {gl}")


def event(A, cfg, k, stepped=False):
    if cfg.report != k:
        return
    skip = A.new("ev")
    if stepped:
        A(f"s_cmp_lg_u32 {s(S_STEP)}, {cfg.rep_step}")
        A(f"s_cbranch_scc1 {skip}")
    A("s_memrealtime s[100:101]")
    A("s_waitcnt lgkmcnt(0)")
    A.label(skip)


def report(A, cfg, ks):
    if cfg.report in ks:
        A("s_mov_b32 s90, s100")
        gate(A, 200)


def pause(A, cfg, h, n, bit, keep=0):
    hot = n if cfg.hmask >> bit & 1 else min(n, keep)
    idle = n - hot
    if cfg.usesleep and idle >= 5:
        A(f"s_sleep {(idle - 1) // 4}")
        idle -= 4 * ((idle - 1) // 4) + 1
    A.nop(4 * idle)
    heat(A, h, hot)


def busy(A, h, n):
    for _ in range(n):
        A(f"v_mov_b32 {v(h)}, 0")


def heat(A, h, n):
    for _ in range(n):
        A(f"{MF} {v(h, 4)}, {v(h + 4, 4)}, {v(h + 4, 4)}, 0")


def stamp(A, cfg, i, lvl=1):
    if cfg.trace in (1, lvl):
        A(f"{'s_memtime' if cfg.cyc else 's_memrealtime'} {s(S_STAMP + 2 * i, 2)}")


def fine(A, cfg, i, grp):
    if cfg.trace == 1 and cfg.fine == grp:
        A(f"s_memtime {s(S_STAMP + 12 + 2 * i, 2)}")


def count(A, cfg, i):
    if cfg.trace == 1:
        A(f"s_add_u32 {s(S_CNT + i)}, {s(S_CNT + i)}, 1")


def flush_stamps(A, cfg, n, vt, va, lvl=1):
    if cfg.trace not in (1, lvl):
        return
    A("s_waitcnt lgkmcnt(0)")
    for i in range(n):
        A(f"v_writelane_b32 {v(vt)}, {s(S_STAMP + 2 * i)}, {i}")
    A(f"v_writelane_b32 {v(vt)}, {s(S_BUD)}, 8")
    for i in range(4):
        A(f"v_writelane_b32 {v(vt)}, {s(S_CNT + i)}, {9 + i}")
    A(f"s_mul_i32 {s(S_T0)}, {s(S_GRP)}, 24")
    A(f"s_add_u32 {s(S_T0)}, {s(S_T0)}, {s(S_TK)}")
    A(f"s_lshl_b32 {s(S_T0)}, {s(S_T0)}, 2")
    A(f"s_add_u32 {s(S_T0)}, {s(S_T0)}, {s(S_WAVE)}")
    A(f"s_lshl_b32 {s(S_T0)}, {s(S_T0)}, 6")
    A(f"s_add_u32 {s(S_T0)}, {s(S_T0)}, {s(S_STEP)}")
    A(f"s_lshl_b32 {s(S_T0)}, {s(S_T0)}, 6")
    A(f"s_add_u32 {s(S_T0)}, {s(S_T0)}, {L.TRACE}")
    A(f"v_mbcnt_lo_u32_b32 {v(va)}, -1, 0")
    A(f"v_lshlrev_b32 {v(va)}, 2, {v(va)}")
    A("s_mov_b64 exec, 0xffff")
    A(f"buffer_store_dword {v(vt)}, {v(va)}, {s(SWS, 4)}, {s(S_T0)} offen")
    A("s_mov_b64 exec, -1")


def check(A, reg, n, tmp):
    if n == 4:
        A(f"v_max3_u32 {v(tmp)}, {v(reg)}, {v(reg + 1)}, {v(reg + 2)}")
        A(f"v_max_u32 {v(tmp)}, {v(tmp)}, {v(reg + 3)}")
    elif n > 4:
        A(f"v_max3_u32 {v(tmp)}, {v(reg)}, {v(reg + 1)}, {v(reg + 2)}")
        for i in range(3, n - 1, 2):
            A(f"v_max3_u32 {v(tmp)}, {v(tmp)}, {v(reg + i)}, {v(reg + i + 1)}")
        A(f"v_max_u32 {v(tmp)}, {v(tmp)}, {v(reg + n - 1)}")
    elif n == 2:
        A(f"v_max_u32 {v(tmp)}, {v(reg)}, {v(reg + 1)}")
    A(f"v_cmp_eq_u32 vcc, -1, {v(tmp)}")


def spend(A, abort):
    A(f"s_sub_u32 {s(S_BUD)}, {s(S_BUD)}, 1")
    A(f"s_cbranch_scc1 {abort}")


def fsm_poll(A, n, ld, chk, use, abort, finished=None, fast=None, onfail=None, undo=None, dense=None):
    done = A.new("pd")
    labels, emitted, todo = {}, set(), []
    full = frozenset(range(n))
    if finished is None:
        finished = lambda got: got == full

    def lab(st):
        if st not in labels:
            labels[st] = A.new("ps")
            todo.append(st)
        return labels[st]

    fails = []

    def chain_from(st, last):
        while True:
            if st in emitted:
                A(f"s_branch {lab(st)}")
                return
            emitted.add(st)
            A.label(lab(st))
            fl = A.new("pf")
            fails.append((fl, st))
            A(f"s_waitcnt vmcnt({len(st) - 1})")
            chk(st[0])
            A(f"s_cbranch_vccnz {fl}")
            rest = st[1:]
            fin = finished(full - frozenset(rest))
            use(st[0], () if fin else rest)
            if fin:
                if not last:
                    A(f"s_branch {done}")
                return
            st = rest

    if fast is None:
        chain_from(tuple(range(n)), True)
    else:
        head, tail = fast[:2]
        joint = fast[2:] if len(fast) > 2 else None
        for i in range(n):
            if joint and i == n - 2:
                both = A.new("pj")
                A("s_waitcnt vmcnt(0)")
                joint[0]()
                tail(i - 1)
                A(f"s_cbranch_vccnz {both}")
                joint[1]()
                break
            fl = A.new("pf")
            fails.append((fl, tuple(range(i, n))))
            A(f"s_waitcnt vmcnt({n - 1 - i})")
            chk(i)
            if i:
                tail(i - 1)
            elif undo:
                head(0)
            A(f"s_cbranch_vccnz {fl}")
            if i or not undo:
                head(i)
        else:
            tail(n - 1)

    dense_at = {}

    def dense_loop(st):
        _, ldto, home, spare, gap, tmp, nset = dense
        k = len(st)
        top, got = A.new("pt"), A.new("pg")
        outs = [A.new("pa") for _ in range(nset)]
        issue = lambda w: [ldto(j, spare + 4 * (k * w + x)) for x, j in enumerate(st)]
        for w in range(nset):
            if w:
                A.nop(gap)
            issue(w)
        A.label(top)
        for w in range(nset):
            A(f"s_waitcnt vmcnt({k * (nset - 1)})")
            check(A, spare + 4 * k * w, 4 * k, tmp)
            for x, j in enumerate(st):
                for h in range(2):
                    A(f"v_mov_b64 {v(home + 4 * j + 2 * h, 2)}, {v(spare + 4 * (k * w + x) + 2 * h, 2)}")
            A(f"s_cbranch_vccz {got}")
            issue(w)
        spend(A, abort)
        A(f"s_branch {top}")
        A.label(got)
        A("s_nop 0")
        for x, j in enumerate(st):
            use(j, st[x + 1:])
        A(f"s_branch {done}")

    def rest_code():
        if fast is not None and joint:
            A.label(both)
            ld(n - 2)
            ld(n - 1)
            if onfail:
                onfail(True)
            spend(A, abort)
            A(f"s_branch {lab((n - 2, n - 1))}")
        nfast = len(fails) if fast is not None else 0
        i = 0
        while i < len(fails) or any(t not in emitted for t in todo):
            while i < len(fails):
                fl, st = fails[i]
                i += 1
                A.label(fl)
                if dense and dense[0](st):
                    if onfail:
                        onfail(i <= nfast)
                    key = tuple(sorted(st))
                    if key in dense_at:
                        A(f"s_branch {dense_at[key]}")
                    else:
                        dense_at[key] = A.new("pe")
                        A.label(dense_at[key])
                        dense_loop(key)
                    continue
                ld(st[0])
                if undo and i == 1:
                    undo()
                if onfail:
                    onfail(i <= nfast)
                if st[0] == min(st):
                    spend(A, abort)
                chain_from(st[1:] + st[:1], False)
            for t in list(todo):
                if t not in emitted:
                    chain_from(t, False)
    return done, rest_code


def flag_wait(A, cfg, vaddr, buf, nl, abort, nap=0):
    go, top = A.new("fg"), A.new("ft")
    ld = lambda b: A(f"buffer_load_dword {v(buf + b)}, {v(vaddr)}, {s(SWS, 4)}, {s(S_FB)} offen sc1")
    if nap:
        A(f"s_sleep {nap}")
    A(f"s_mov_b64 exec, {(1 << nl) - 1}")
    n = cfg.nflag
    for b in range(n):
        ld(b)
        if b < n - 1:
            A.nop(cfg.fspace)
    A.label(top)
    for b in range(n):
        A(f"s_waitcnt vmcnt({n - 1})")
        A(f"v_cmp_gt_u32 vcc, {s(S_TAG)}, {v(buf + b)}")
        ld(b)
        A(f"s_cbranch_vccz {go}")
    spend(A, abort)
    A(f"s_branch {top}")
    A.label(go)
    A("s_mov_b64 exec, -1")


def load_weights(A, chunks, flag="", first=None, ramp=5):
    NS = 5
    assert ramp < NS

    def issue(c):
        setup, stride, kind, vglob, vtr, dst = chunks[c]
        setup()
        A(f"s_mul_i32 {s(S_T0)}, {s(S_WAVE)}, 40960")
        A(f"s_add_u32 m0, {s(S_T0)}, {(c % NS) * 8192}")
        for j in range(8):
            if j:
                A(f"s_add_u32 m0, m0, 1024")
                A(f"s_add_u32 {s(S_T1)}, {s(S_T1)}, {8 * stride}")
            else:
                A("s_nop 0")
            A(f"buffer_load_dwordx4 {v(vglob)}, {s(SW, 4)}, {s(S_T1)} offen{flag} lds")

    n = len(chunks)
    for c in range(ramp):
        issue(c)
    for c in range(n):
        setup, stride, kind, vglob, vtr, dst = chunks[c]
        A(f"s_waitcnt vmcnt({8 * (min(c + ramp, n) - c - 1)})")
        if c == 0 and first:
            first()
        for t in range(4):
            col = 64 * (t >> 1) + 16 * (t & 1) if kind == "K" else 32 * t
            for H in range(2):
                for q in range(2):
                    row = 32 * H + 2 * q
                    off = (c % NS) * 8192 + row * 128 + col
                    A(f"ds_read_b64_tr_b16 {r(dst(t) + 4 * H + 2 * q, 2)}, {v(vtr)} offset:{off}")
        if c + ramp < n:
            issue(c + ramp)
        A("s_waitcnt lgkmcnt(0)")


def glob_addr(A, dst, lane, shift, sxor, t0):
    A(f"v_and_b32 {v(t0)}, 7, {v(lane)}")
    A(f"v_lshlrev_b32 {v(t0)}, 4, {v(t0)}")
    A(f"v_xor_b32 {v(t0)}, {s(sxor)}, {v(t0)}")
    A(f"v_lshrrev_b32 {v(dst)}, 3, {v(lane)}")
    A(f"v_lshl_add_u32 {v(dst)}, {v(dst)}, {shift}, {v(t0)}")


def tr_addr(A, dst, lane, kind, t0):
    A(f"v_bfe_u32 {v(dst)}, {v(lane)}, 2, 1")
    for bit, sh in (((4, 4), (5, 3), (3, 2)) if kind == "O" else ((5, 4), (4, 2), (3, 3))):
        A(f"v_bfe_u32 {v(t0)}, {v(lane)}, {bit}, 1")
        A(f"v_lshl_add_u32 {v(dst)}, {v(t0)}, {sh}, {v(dst)}")
    A(f"s_mul_i32 {s(S_T0)}, {s(S_WAVE)}, 40960")
    A(f"v_lshl_add_u32 {v(dst)}, {v(dst)}, 7, {s(S_T0)}")
    for bit, sh in (((0, 5), (1, 3)) if kind == "K" else ((0, 3), (1, 4))):
        A(f"v_bfe_u32 {v(t0)}, {v(lane)}, {bit}, 1")
        A(f"v_lshl_add_u32 {v(dst)}, {v(t0)}, {sh}, {v(dst)}")


def sparse_index(A, dst, lane):
    A(f"v_bfe_u32 {v(dst)}, {v(lane)}, 1, 1")
    A(f"v_mul_u32_u24 {v(dst)}, 0xaaaa, {v(dst)}")
    A(f"v_add_u32 {v(dst)}, 0x4444, {v(dst)}")


def role_prologue(A, end, cfg=Cfg):
    A("s_cmp_ge_u32 s2, 256")
    A(f"s_cbranch_scc1 {end}")
    A(f"s_load_dwordx8 {s(P_MEM0, 8)}, s[0:1], {KA['mem0']}")
    A(f"s_load_dwordx2 {s(P_WO, 2)}, s[0:1], {KA['Wo']}")
    A(f"s_load_dwordx4 {s(P_DBG, 4)}, s[0:1], {KA['dbg']}")
    A(f"s_getreg_b32 {s(S_XCC)}, hwreg(HW_REG_XCC_ID, 0, 4)")
    A(f"s_and_b32 {s(S_XCC)}, {s(S_XCC)}, 7")
    A("v_lshrrev_b32 v1, 6, v0")
    A("s_nop 0")
    A(f"v_readfirstlane_b32 {s(S_WAVE)}, v1")
    A("v_and_b32 v1, 63, v0")
    A("s_waitcnt lgkmcnt(0)")
    A.srd(SWS, P_WS, SIZE["ws"])
    A.srd(SDBG, P_DBG, SIZE["dbg"])
    A(f"s_mov_b32 {s(S_BUD)}, {BUDGET}")
    for i in range(4):
        A(f"s_mov_b32 {s(S_CNT + i)}, 0")
    got, loop, skip = A.new("rg"), A.new("rl"), A.new("rs")
    A(f"s_cmp_lg_u32 {s(S_WAVE)}, 0")
    A(f"s_cbranch_scc1 {skip}")
    A(f"s_mov_b32 {s(S_GRP)}, {s(S_XCC)}")
    A(f"s_mov_b32 {s(S_IRR)}, 0")
    A("s_mov_b64 exec, 1")
    A.label(loop)
    A(f"v_lshlrev_b32 v2, 5, {s(S_GRP)}")
    A("v_mov_b32 v3, 1")
    A(f"buffer_atomic_add v3, v2, {s(SDBG, 4)}, 0 offen sc0 sc1")
    A("s_waitcnt vmcnt(0)")
    A(f"v_readfirstlane_b32 {s(S_TK)}, v3")
    A("s_nop 3")
    A(f"s_cmp_lt_u32 {s(S_TK)}, 32")
    A(f"s_cbranch_scc1 {got}")
    A(f"s_add_u32 {s(S_GRP)}, {s(S_GRP)}, 1")
    A(f"s_and_b32 {s(S_GRP)}, {s(S_GRP)}, 7")
    A(f"s_add_u32 {s(S_IRR)}, {s(S_IRR)}, 1")
    A(f"s_cmp_lt_u32 {s(S_IRR)}, 8")
    A(f"s_cbranch_scc1 {loop}")
    A.label(got)
    A(f"s_lshl_b32 {s(S_T0)}, {s(S_GRP)}, 8")
    A(f"s_min_u32 {s(S_TK)}, {s(S_TK)}, 255")
    A(f"s_or_b32 {s(S_T0)}, {s(S_T0)}, {s(S_TK)}")
    A(f"s_lshl_b32 {s(S_T1)}, {s(S_IRR)}, 16")
    A(f"s_or_b32 {s(S_T0)}, {s(S_T0)}, {s(S_T1)}")
    A(f"v_mov_b32 v3, {s(S_T0)}")
    A("v_mov_b32 v2, 0")
    A("ds_write_b32 v2, v3")
    A("s_mov_b64 exec, -1")
    A.label(skip)
    A("s_waitcnt lgkmcnt(0)")
    A("s_barrier")
    A("v_mov_b32 v2, 0")
    A("ds_read_b32 v3, v2")
    A("s_waitcnt lgkmcnt(0)")
    A(f"v_readfirstlane_b32 {s(S_T0)}, v3")
    A("s_barrier")
    A(f"s_and_b32 {s(S_TK)}, {s(S_T0)}, 255")
    A(f"s_bfe_u32 {s(S_GRP)}, {s(S_T0)}, 0x80008")
    A(f"s_lshr_b32 {s(S_IRR)}, {s(S_T0)}, 16")
    A(f"s_min_u32 {s(S_IRR)}, {s(S_IRR)}, 1")
    A(f"s_cmp_ge_u32 {s(S_TK)}, 32")
    A(f"s_cbranch_scc1 {end}")
    A.c("the roles that must start first take the first tickets")
    A(f"s_cmp_ge_u32 {s(S_GRP)}, 4")
    A(f"s_cselect_b32 {s(S_T0)}, {cfg.hi_first}, {cfg.lo_first}")
    A(f"s_add_u32 {s(S_TK)}, {s(S_TK)}, {s(S_T0)}")
    A(f"s_and_b32 {s(S_TK)}, {s(S_TK)}, 31")


def arrive(A, add_reg, hi=False, wait=True, join=True, t=48):
    skip = A.new("ar")
    if wait:
        A("s_waitcnt vmcnt(0)")
    if join:
        A("s_barrier")
    A(f"s_cmp_lg_u32 {s(S_WAVE)}, 0")
    A(f"s_cbranch_scc1 {skip}")
    A("s_mov_b64 exec, 1")
    A(f"v_mov_b32 {v(t)}, {144 if hi else 16}")
    A(f"v_mov_b32 {v(t + 1)}, {s(add_reg)}")
    A(f"buffer_atomic_add {v(t + 1)}, {v(t)}, {s(SDBG, 4)}, 0 offen sc1")
    A("s_mov_b64 exec, -1")
    A.label(skip)


def await_start(A, abort, t=48, hi_only=False, probed=False, join=True):
    loop, out = A.new("st"), A.new("so")
    A.label(loop)
    A(f"buffer_load_dword {v(t)}, off, {s(SDBG, 4)}, 0 offset:{144 if hi_only else 16} sc1")
    A(f"buffer_load_dword {v(t + 1)}, off, {s(SDBG, 4)}, 0 offset:144 sc1")
    A("s_waitcnt vmcnt(0)")
    A(f"v_add_u32 {v(t)}, {v(t)}, {v(t + 1)}")
    A("s_nop 0")
    A(f"v_readfirstlane_b32 {s(S_T0)}, {v(t)}")
    A("s_nop 3")
    A(f"s_and_b32 {s(S_T1)}, {s(S_T0)}, {hex(0x200ffff if probed else 0xffff)}")
    A(f"s_cmp_eq_u32 {s(S_T1)}, {hex(0x2000100 if probed else 0x100)}")
    A(f"s_cbranch_scc1 {out}")
    spend(A, abort)
    A("s_sleep 8")
    A(f"s_branch {loop}")
    A.label(out)
    A(f"s_bfe_u32 {s(S_IRR)}, {s(S_T0)}, 0x80010")
    A(f"s_bfe_u32 {s(S_PAR)}, {s(S_T0)}, 0x10018")
    A(f"s_lshl_b32 {s(S_PAR)}, {s(S_PAR)}, 13")
    if join:
        A("s_barrier")


def probe(A, lane, dst, dbg=False):
    skip = A.new("pb")
    A(f"s_cmp_lg_u32 {s(S_WAVE)}, 0")
    A(f"s_cbranch_scc1 {skip}")
    A(f"v_lshlrev_b32 v52, 8, {v(lane)}")
    A("v_mov_b32 v53, -1")
    A(f"s_mov_b32 {s(S_T3)}, {L.XRING + 0x8000}")
    A(f"buffer_store_dword v53, v52, {s(SWS, 4)}, {s(S_T3)} offen sc1")
    A("s_waitcnt vmcnt(0)")
    A("s_mov_b64 exec, 1")
    for h in range(2):
        A(f"s_mov_b32 {s(60 + h)}, -1")
    loop = A.new("pl")
    A("v_mov_b32 v52, 0")
    A("s_mov_b32 s66, 5")
    A.label(loop)
    for h in range(2):
        A(f"s_memtime {s(62, 2)}")
        A("s_waitcnt lgkmcnt(0)")
        A(f"buffer_load_dword v53, v52, {s(SWS, 4)}, {s(S_T3)} offen sc1")
        A("s_waitcnt vmcnt(0)")
        A(f"s_memtime {s(64, 2)}")
        A("s_waitcnt lgkmcnt(0)")
        A("s_sub_u32 s62, s64, s62")
        A(f"s_min_u32 {s(60 + h)}, {s(60 + h)}, s62")
        A(f"v_add_u32 v52, {8192 if h == 0 else 1280 - 8192}, v52")
    A("s_sub_u32 s66, s66, 1")
    A("s_cmp_lg_u32 s66, 0")
    A(f"s_cbranch_scc1 {loop}")
    A("s_mov_b64 exec, -1")
    if dbg:
        A("v_mov_b32 v52, s60")
        A("v_mov_b32 v53, s61")
        A(f"buffer_store_dwordx2 v[52:53], off, {s(SDBG, 4)}, 0 offset:48")
    A("s_cmp_lt_u32 s61, s60")
    A("s_cselect_b32 s62, 1, 0")
    A(f"s_lshr_b32 s63, {s(S_XCC)}, 2")
    A("s_xor_b32 s62, s62, s63")
    A("s_lshl_b32 s62, s62, 24")
    A(f"s_or_b32 {s(dst)}, {s(dst)}, s62")
    A.label(skip)


def xcopy(rr):
    return ((rr & 1) << 20) + ((rr >> 1) << 15)


def x_offsets(A, cfg, dst, slot):
    A(f"s_lshl_b32 {s(dst)}, {s(slot)}, 18")
    A(f"s_add_u32 {s(dst)}, {s(dst)}, {s(S_PAR)}")
    for rr in range(1, cfg.nrep):
        A(f"s_add_u32 {s(dst + rr)}, {s(dst)}, {hex(xcopy(rr))}")


def progress_addr(A, dst, lane, base, index, tmp, word=0):
    A(f"s_lshl_b32 {s(S_T0)}, {s(index)}, 5")
    A(f"s_add_u32 {s(S_T0)}, {s(S_T0)}, {s(S_WAVE)}")
    A(f"s_lshl_b32 {s(S_T0)}, {s(S_T0)}, 2")
    A(f"s_add_u32 {s(S_T0)}, {s(S_T0)}, {base + 4 * word}")
    A(f"v_min_u32 {v(tmp)}, 1, {v(lane)}")
    A(f"v_lshl_add_u32 {v(dst)}, {v(tmp)}, 30, {s(S_T0)}")


def line_addr(A, dst, tid, base, index, tmp):
    A(f"s_lshl_b32 {s(S_T0)}, {s(index)}, 7")
    A(f"s_add_u32 {s(S_T0)}, {s(S_T0)}, {base}")
    A(f"v_min_u32 {v(tmp)}, 1, {v(tid)}")
    A(f"v_lshl_add_u32 {v(dst)}, {v(tmp)}, 30, {s(S_T0)}")


def lines_addr(A, dst, lane, nlines, shift=7):
    A(f"v_min_u32 {v(dst)}, {nlines - 1}, {v(lane)}")
    A(f"v_lshlrev_b32 {v(dst)}, {shift}, {v(dst)}")


def words_addr(A, dst, lane, nlines, tmp, shift=2):
    A(f"v_lshrrev_b32 {v(tmp)}, 2, {v(lane)}")
    A(f"v_min_u32 {v(tmp)}, {nlines - 1}, {v(tmp)}")
    A(f"v_lshlrev_b32 {v(tmp)}, 7, {v(tmp)}")
    A(f"v_and_b32 {v(dst)}, 3, {v(lane)}")
    A(f"v_lshl_add_u32 {v(dst)}, {v(dst)}, {shift}, {v(tmp)}")


def block_on(A, ld, test, abort, sleep=2):
    top, out = A.new("bw"), A.new("bo")
    A.label(top)
    ld()
    A("s_waitcnt vmcnt(0)")
    test()
    A(f"s_cbranch_vccz {out}")
    spend(A, abort)
    if sleep:
        A(f"s_sleep {sleep}")
    A(f"s_branch {top}")
    A.label(out)


def after_stage(A, n, abort, t):
    skip = A.new("as")
    A(f"s_cmp_lg_u32 {s(S_WAVE)}, 0")
    A(f"s_cbranch_scc1 {skip}")
    A("s_sleep 64")
    await_start(A, abort, t, True, join=False)
    A(f"s_mov_b32 {s(S_T0)}, {L.MODP + 4096 if n == 1 else L.P1 + 128 * 40}")
    block_on(A, lambda: A(f"buffer_load_dword {v(t)}, off, {s(SWS, 4)}, {s(S_T0)} sc1"),
             lambda: A(f"v_cmp_eq_u32 vcc, -1, {v(t)}" if n == 1 else f"v_cmp_gt_u32 vcc, {n}, {v(t)}"), abort, 16)
    A.label(skip)
    A("s_barrier")


def ring_slots(A):
    A(f"s_and_b32 {s(S_T0)}, {s(S_STEP)}, 3")
    A(f"s_lshl_b32 {s(S_T1)}, {s(S_T0)}, 16")
    A(f"s_add_u32 {s(S_CUR)}, {s(S_T1)}, {s(S_RBASE)}")
    A(f"s_xor_b32 {s(S_RST)}, {s(S_CUR)}, 0x20000")
    A(f"s_add_u32 {s(S_TAG)}, {s(S_STEP)}, 1")


def kvo_role(A, cfg, end):
    LRX, FOR, FMW, SEL, FBUF, TAGV = 0, 1, 2, 3, 4, 7
    VG, VGO, PUBM, PUBK, XOWN, XP, HT, LWS, PUBV = 8, 9, 10, 11, 12, 13, 16, 24, 27
    AP, ACK, ACV, ACO, HS, RD, SUM, PW, QD, CHK, XL, SENT, IDX = 28, 44, 60, 76, 92, 100, 106, 108, 109, 110, 112, 4, 126
    WK, WO, WV = 256, 256 + 128, 128
    RK, RV, RO = 0, 6144, 12288
    S_CI, S_X3 = 54, 57
    A.c("KVO role: 64-column slices of the k, v and output projections of head group S_GRP;")
    A.c("each wave covers a quarter of the rows; slot s of wave w holds column tile w^3^s")
    A("v_mov_b32 v44, v0")
    A("v_mov_b32 v45, v1")
    TID, LANE = 44, 45
    t2, t3, t4 = 46, 47, 50
    A(f"s_sub_u32 {s(S_CI)}, {s(S_TK)}, 8")
    A(f"s_xor_b32 {s(S_X3)}, {s(S_WAVE)}, 3")
    A(f"s_lshl_b32 {s(S_RBASE)}, {s(S_GRP)}, 18")
    A(f"s_add_u32 {s(S_RBASE)}, {s(S_RBASE)}, {L.LRING}")
    A(f"s_lshl_b32 {s(S_FB)}, {s(S_GRP)}, 12")
    A(f"s_add_u32 {s(S_FB)}, {s(S_FB)}, {L.FLAGS}")
    A(f"s_lshl_b32 {s(S_T0)}, {s(S_WAVE)}, 12")
    A(f"v_lshl_add_u32 {v(VG)}, {v(LANE)}, 4, {s(S_T0)}")
    A(f"v_add_u32 {v(VGO)}, 49152, {v(VG)}")
    A(f"s_lshl_b32 {s(S_T0)}, {s(S_CI)}, 10")
    A(f"s_lshl_b32 {s(S_T1)}, {s(S_WAVE)}, 8")
    A(f"s_add_u32 {s(S_T1)}, {s(S_T1)}, {s(S_T0)}")
    A(f"v_mov_b32 {v(PUBM)}, {s(S_T1)}")
    for bit, width, sh in ((1, 2, 6), (5, 1, 5), (0, 1, 4), (4, 1, 3), (3, 1, 30)):
        A(f"v_bfe_u32 {v(t2)}, {v(LANE)}, {bit}, {width}")
        A(f"v_lshl_add_u32 {v(PUBM)}, {v(t2)}, {sh}, {v(PUBM)}")
    A(f"v_and_b32 {v(t2)}, 0xf0, {v(TID)}")
    A(f"v_lshl_add_u32 {v(PUBK)}, {v(t2)}, 2, {s(S_T0)}")
    A(f"v_and_b32 {v(t2)}, 3, {v(LANE)}")
    A(f"v_lshl_add_u32 {v(PUBK)}, {v(t2)}, 4, {v(PUBK)}")
    A(f"v_and_b32 {v(t2)}, 12, {v(LANE)}")
    A(f"v_add_u32 {v(PUBK)}, {v(PUBK)}, {v(t2)}")
    A(f"v_xor_b32 {v(PUBK)}, {16384 + (4 << 10)}, {v(PUBK)}")
    A(f"s_lshr_b32 {s(S_T1)}, {s(S_WAVE)}, 1")
    A(f"s_lshl_b32 {s(S_T1)}, {s(S_T1)}, 9")
    A(f"s_add_u32 {s(S_T0)}, {s(S_T0)}, {s(S_T1)}")
    A(f"s_and_b32 {s(S_T1)}, {s(S_WAVE)}, 1")
    A(f"s_lshl_b32 {s(S_T1)}, {s(S_T1)}, 2")
    A(f"s_add_u32 {s(S_T0)}, {s(S_T0)}, {s(S_T1)}")
    A(f"s_xor_b32 {s(S_T0)}, {s(S_T0)}, {32768 + (2 << 10)}")
    A(f"v_lshl_add_u32 {v(PUBV)}, {v(LANE)}, 3, {s(S_T0)}")
    A(f"s_lshl_b32 {s(S_T0)}, {s(S_WAVE)}, 8")
    A(f"s_add_u32 {s(S_T0)}, {s(S_T0)}, 2048")
    A(f"v_lshl_add_u32 {v(FOR)}, {v(LANE)}, 2, {s(S_T0)}")
    A(f"s_lshr_b32 {s(S_T0)}, {s(S_CI)}, 2")
    A(f"s_lshl_b32 {s(S_T0)}, {s(S_T0)}, 8")
    A(f"s_and_b32 {s(S_T1)}, {s(S_CI)}, 3")
    A(f"s_lshl_b32 {s(S_T1)}, {s(S_T1)}, 2")
    A(f"s_add_u32 {s(S_T0)}, {s(S_T0)}, {s(S_T1)}")
    A(f"v_min_u32 {v(t2)}, 1, {v(TID)}")
    A(f"v_lshl_add_u32 {v(FMW)}, {v(t2)}, 30, {s(S_T0)}")
    A(f"s_lshr_b32 {s(S_T0)}, {s(S_CI)}, 3")
    A(f"s_lshl_b32 {s(S_T0)}, {s(S_T0)}, 14")
    A(f"s_and_b32 {s(S_T1)}, {s(S_CI)}, 7")
    A(f"s_lshl_b32 {s(S_T1)}, {s(S_T1)}, 10")
    A(f"s_add_u32 {s(S_T0)}, {s(S_T0)}, {s(S_T1)}")
    A(f"s_lshl_b32 {s(S_T1)}, {s(S_GRP)}, 16")
    A(f"s_add_u32 {s(S_T0)}, {s(S_T0)}, {s(S_T1)}")
    A(f"v_lshl_add_u32 {v(XOWN)}, {v(TID)}, 2, {s(S_T0)}")
    for j in range(3):
        A(f"v_xor_b32 {v(XP + j)}, {hex((j + 1) << 16)}, {v(XOWN)}")
    sparse_index(A, IDX, LANE)
    for i in range(3):
        A(f"s_xor_b32 {s(S_T0)}, {s(S_X3)}, {i}")
        A(f"s_mul_i32 {s(S_T0)}, {s(S_T0)}, 1536")
        A(f"s_add_u32 {s(S_T0)}, {s(S_T0)}, {512 * i}")
        A(f"v_lshl_add_u32 {v(LWS + i)}, {v(LANE)}, 3, {s(S_T0)}")
    A(f"s_mul_i32 {s(S_T0)}, {s(S_WAVE)}, 1536")
    A(f"v_lshl_add_u32 {v(LRX)}, {v(LANE)}, 3, {s(S_T0)}")
    A(f"v_and_b32 {v(t2)}, 1, {v(LANE)}")
    A(f"v_mov_b32 {v(SEL)}, 0x05040100")
    A(f"v_mov_b32 {v(t3)}, 0x03020706")
    A(f"v_cmp_eq_u32 vcc, 1, {v(t2)}")
    A("s_nop 1")
    A(f"v_cndmask_b32 {v(SEL)}, {v(SEL)}, {v(t3)}, vcc")
    A(f"v_and_b32 {v(t2)}, 7, {v(LANE)}")
    A(f"v_lshrrev_b32 {v(t3)}, 4, {v(LANE)}")
    A(f"v_lshlrev_b32 {v(t4)}, 3, {v(t3)}")
    A(f"v_lshl_add_u32 v57, {v(t2)}, 11, {v(t4)}")
    A.srd(SW, P_MEM0, SIZE["mem0"])
    A(f"v_bfe_u32 {v(t2)}, {v(LANE)}, 1, 3")
    A(f"v_cmp_eq_u32 vcc, {v(t2)}, {v(t3)}")
    A(f"v_and_b32 {v(t2)}, 1, {v(LANE)}")
    A(f"v_lshlrev_b32 {v(t2)}, 4, {v(t2)}")
    A(f"v_mov_b32 {v(t3)}, 0x3f80")
    A(f"v_lshlrev_b32 {v(t2)}, {v(t2)}, {v(t3)}")
    for i in range(4):
        A(f"v_cndmask_b32 {v(HT + 4 + i)}, 0, {v(t2)}, vcc")
    A(f"v_mov_b32 {v(SENT)}, -1")
    A(f"v_mov_b32 {v(SENT + 1)}, -1")

    def unwritten(soff, fl):
        A(f"buffer_store_dwordx2 {v(SENT, 2)}, {v(PUBM)}, {s(SWS, 4)}, {s(soff)} offen{fl}")
        for reg in (PUBK, PUBV):
            A(f"buffer_store_dword {v(SENT)}, {v(reg)}, {s(SWS, 4)}, {s(soff)} offen{fl}")
    A.c("'not written' marks in every ring slot this workgroup owns")
    for slot in range(4):
        A(f"s_add_u32 {s(S_T0)}, {s(S_RBASE)}, {slot << 16}")
        unwritten(S_T0, " sc1")
        for k in range(2 * cfg.nrep):
            A(f"s_mov_b32 {s(S_T1)}, {L.XRING + (slot << 18) + ((k & 1) << 13) + xcopy(k >> 1)}")
            A(f"buffer_store_dword {v(SENT)}, {v(XOWN)}, {s(SWS, 4)}, {s(S_T1)} offen sc1")
    A(f"v_mov_b32 {v(TAGV)}, 1")
    A(f"buffer_store_dword {v(TAGV)}, {v(FMW)}, {s(SWS, 4)}, {s(S_FB)} offen sc1")
    A(f"s_lshl_b32 {s(S_T2)}, {s(S_IRR)}, 16")
    A(f"s_or_b32 {s(S_T2)}, {s(S_T2)}, 1")
    arrive(A, S_T2)
    A(f"s_lshl_b32 {s(S_T0)}, {s(S_CI)}, 2")
    A(f"s_add_u32 {s(S_T0)}, {s(S_T0)}, {s(S_WAVE)}")
    A(f"s_lshl_b32 {s(S_T0)}, {s(S_T0)}, 5")
    A(f"buffer_load_dwordx2 v[58:59], v57, {s(SW, 4)}, {s(S_T0)} offen")

    def first():
        A("v_min_u32 v58, -2, v58")
        A("v_min_u32 v59, -2, v59")
        A(f"buffer_store_dwordx2 v[58:59], {v(PUBM)}, {s(SWS, 4)}, {s(S_RBASE)} offen sc1")
    if cfg.k_after and not cfg.solo:
        after_stage(A, cfg.k_after, end, 51)
    A.c("weights into registers")
    GK, GV, GO, TK, TV, TO = 51, 52, 53, 54, 55, 56
    A(f"s_lshl_b32 {s(S_T2)}, {s(S_X3)}, 5")
    glob_addr(A, GV, LANE, 13, S_T2, t2)
    glob_addr(A, GO, LANE, 11, S_T2, t2)
    A(f"s_and_b32 {s(S_T3)}, {s(S_T2)}, 32")
    A(f"s_lshr_b32 {s(S_T3)}, {s(S_T3)}, 1")
    A(f"s_and_b32 {s(S_T2)}, {s(S_T2)}, 64")
    A(f"s_or_b32 {s(S_T2)}, {s(S_T2)}, {s(S_T3)}")
    glob_addr(A, GK, LANE, 13, S_T2, t2)
    for reg, kind in ((TK, "K"), (TV, "N"), (TO, "O")):
        tr_addr(A, reg, LANE, kind, t2)
    chunks = []
    for ptr, name, base, kind, vg, vt in ((P_WK, "Wk", WK, "K", GK, TK), (P_WV, "Wv", WV, "N", GV, TV), (P_WO, "Wo", WO, "O", GO, TO)):
        for j in range(4):
            def setup(ptr=ptr, name=name, j=j):
                A.srd(SW, ptr, SIZE[name])
                if name == "Wo":
                    A(f"s_lshl_b32 {s(S_T1)}, {s(S_GRP)}, 2")
                    A(f"s_add_u32 {s(S_T1)}, {s(S_T1)}, {s(S_WAVE)}")
                    A(f"s_lshl_b32 {s(S_T1)}, {s(S_T1)}, 19")
                    A(f"s_lshl_b32 {s(S_T0)}, {s(S_CI)}, 7")
                    A(f"s_add_u32 {s(S_T1)}, {s(S_T1)}, {s(S_T0)}")
                    A(f"s_add_u32 {s(S_T1)}, {s(S_T1)}, {j * 64 * 2048}")
                else:
                    A(f"s_lshl_b32 {s(S_T1)}, {s(S_WAVE)}, 21")
                    A(f"s_lshl_b32 {s(S_T0)}, {s(S_GRP)}, 4")
                    A(f"s_add_u32 {s(S_T0)}, {s(S_T0)}, {s(S_CI)}")
                    A(f"s_xor_b32 {s(S_T0)}, {s(S_T0)}, {4 if name == 'Wk' else 2}")
                    A(f"s_lshl_b32 {s(S_T0)}, {s(S_T0)}, 7")
                    A(f"s_add_u32 {s(S_T1)}, {s(S_T1)}, {s(S_T0)}")
                    A(f"s_add_u32 {s(S_T1)}, {s(S_T1)}, {j * 64 * 8192}")
            chunks.append((setup, 2048 if name == "Wo" else 8192, kind, vg, vt,
                           (lambda n, base=base, j=j: base + (j * 4 + n) * 8)))
    if cfg.meet:
        chunks = [chunks[i] for i in (3, 7, 2, 6, 1, 5, 0, 4, 8, 9, 10, 11)]
    load_weights(A, chunks, WFLAG[cfg.wlo], first, cfg.ramp_lo)
    cfg.mark(A, 1)
    await_start(A, end, probed=True)
    A.c("bring one sixteenth of the group's rings into L2")
    A(f"s_lshl_b32 {s(S_T0)}, {s(S_CI)}, 14")
    A(f"s_add_u32 {s(S_T0)}, {s(S_T0)}, {s(S_RBASE)}")
    for i in range(4):
        A(f"buffer_load_dwordx4 {v(AP + 4 * i, 4)}, {v(VG)}, {s(SWS, 4)}, {s(S_T0)} offen offset:{1024 * i} sc1")
    for q in range(48):
        A(f"v_mov_b32 {v(ACK + q)}, 0")
    A(f"s_mov_b32 {s(S_STEP)}, 0")
    ring_slots(A)
    slow_lbl = A.new("kvo_sc1")
    A(f"s_cmp_lg_u32 {s(S_IRR)}, 0")
    A(f"s_cbranch_scc1 {slow_lbl}")

    sm = lambda acc, W, j, n: A(f"{SM} {v(acc + 4 * n, 4)}, {v(AP + 4 * j, 4)}, {r(W + (j * 4 + n) * 8, 8)}, {v(IDX)}")

    def ad(acc, n):
        for b in range(2):
            A(f"v_add_f32 {v(HS + 2 * n + b)}, {v(acc + 4 * n + b)}, {v(acc + 4 * n + 2 + b)}")

    def undo(acc, vin):
        def f():
            A.nop(8)
            for n in range(min(cfg.ksplit + vin, 3 + vin)):
                for q in range(2):
                    A(f"v_pk_mul_f32 {v((acc + 4 * n if n < 3 else ACV + 4 * (n - 3)) + 2 * q, 2)}, 0, 0")
        return f if cfg.spec else None

    def clear_acc():
        for q in range(24):
            A(f"v_pk_mul_f32 {v(ACK + 2 * q, 2)}, 0, 0")
    wr = lambda n, R: A(f"ds_write_b64 {v(LWS + n)}, {v(HS + 2 * n, 2)} offset:{R}")

    def gather(ld):
        for i in range(4):
            ld(i)
            pause(A, cfg, HT, cfg.lspace if i < 3 else cfg.ltail, 4)

    def proj(acc, W, R, vin=0):
        def f(j, lo, hi):
            for n in range(lo, hi):
                sm(acc, W, j, n) if n < 3 else sm(ACV, WV, j, n - 3)

        def last(j):
            for n in range(3):
                sm(acc, W, j, n)
                A("s_nop 1")
            ad(acc, 0)
            sm(acc, W, 0, 3)
            ad(acc, 1)
            wr(0, R)
            ad(acc, 2)
            wr(1, R)
            sm(acc, W, 1, 3)
            wr(2, R)
            sm(acc, W, 2, 3)
            sm(acc, W, 3, 3)
            f(j, 3, 3 + vin)
        sp = min(cfg.ksplit + vin, 3 + vin)
        return (lambda j, rest: f(j, 0, 3 + vin) if rest else last(j)), \
            (lambda j: f(j, 0, sp) if j < 3 else None, lambda j: f(j, sp, 3 + vin) if j < 3 else last(j))

    def collect(acc, R, fill, pad=0, packed=True):
        if packed:
            busy(A, CHK, cfg.fillw)
        A("s_waitcnt lgkmcnt(0)")
        A("s_barrier")
        for i in range(3):
            A(f"ds_read_b64 {v(RD + 2 * i, 2)}, {v(LRX)} offset:{R + 512 * i}")
        A.nop(pad)
        ad(acc, 3)
        fill()
        if packed:
            busy(A, CHK, cfg.fillr)
        A("s_waitcnt lgkmcnt(0)")
        if packed:
            A(f"v_pk_add_f32 {v(RD, 2)}, {v(RD, 2)}, {v(HS + 6, 2)}")
            A(f"v_pk_add_f32 {v(RD + 2, 2)}, {v(RD + 2, 2)}, {v(RD + 4, 2)}")
            A(f"v_pk_add_f32 {v(RD, 2)}, {v(RD, 2)}, {v(RD + 2, 2)}")
        else:
            for b in range(2):
                A(f"v_add_f32 {v(RD + b)}, {v(RD + b)}, {v(HS + 6 + b)}")
                A(f"v_add_f32 {v(RD + 2 + b)}, {v(RD + 2 + b)}, {v(RD + 4 + b)}")
            for b in range(2):
                A(f"v_add_f32 {v(RD + b)}, {v(RD + b)}, {v(RD + 2 + b)}")
        A(f"v_cvt_pk_bf16_f32 {v(PW)}, {v(RD)}, {v(RD + 1)}")

    def to_columns(x):
        A(f"v_mov_b32_dpp {v(QD)}, {v(x)} quad_perm:[1,0,3,2] row_mask:0xf bank_mask:0xf")
        A(f"v_perm_b32 {v(QD)}, {v(QD)}, {v(x)}, {v(SEL)}")

    def body(loc):
        top = A.new("kvo")
        ldm = lambda i, d=None: A(f"buffer_load_dwordx4 {v(d or AP + 4 * i, 4)}, {v(VG)}, {s(SWS, 4)}, {s(S_CUR)} offen offset:{1024 * i} sc1")
        ldo = lambda i, d=None: A(f"buffer_load_dwordx4 {v(d or AP + 4 * i, 4)}, {v(VGO)}, {s(SWS, 4)}, {s(S_CUR)} offen offset:{1024 * i} sc1")
        vq = [(j, n) for n in range(cfg.vin, 4) for j in range(4)]

        def vmf(k):
            for _ in range(k):
                if vq:
                    sm(ACV, WV, *vq.pop(0))

        A.label(top)
        gather(ldm)
        chk4 = lambda i: check(A, AP + 4 * i, 4, CHK)
        onfail = lambda c: (lambda first: count(A, cfg, c) if first else None)
        use, fast = proj(ACK, WK, RK, cfg.vin)
        done, slow1 = fsm_poll(A, 4, ldm, chk4, use, end, fast=fast, onfail=onfail(2), undo=undo(ACK, cfg.vin),
                               dense=(lambda st: len(st) == 1, ldm, AP, XL, cfg.dgap, CHK, cfg.dsets) if cfg.dense & 1 else None)
        A.label(done)
        stamp(A, cfg, 0)
        vmf(cfg.vk)
        collect(ACK, RK, lambda: vmf(cfg.vk2), 3, packed=False)
        A("s_nop 1")
        to_columns(PW)
        A(f"buffer_store_dword {v(QD)}, {v(PUBK)}, {s(SWS, 4)}, {s(S_CUR)} offen{loc}")
        stamp(A, cfg, 1)
        if len(vq) > 4:
            vmf(len(vq) - 4)
            A.nop(max(0, 7 - 3 * cfg.vin))
        left = len(vq)
        vmf(1)
        ad(ACV, 0)
        vmf(1)
        ad(ACV, 1)
        wr(0, RV)
        vmf(1)
        ad(ACV, 2)
        wr(1, RV)
        wr(2, RV)
        vmf(1)
        collect(ACV, RV, lambda: None, 3 if left == 4 else 0)
        A(f"buffer_store_dword {v(PW)}, {v(PUBV)}, {s(SWS, 4)}, {s(S_CUR)} offen{loc}")
        stamp(A, cfg, 2)
        flush_stamps(A, cfg, 8, 124, 125)
        A(f"s_cmp_eq_u32 {s(S_STEP)}, {cfg.nsteps - 1}")
        A(f"s_cbranch_scc1 {end}")
        A(f"v_add_u32 {v(TAGV)}, 1, {v(TAGV)}")
        A(f"s_and_b32 {s(S_T0)}, {s(S_STEP)}, 3")
        x_offsets(A, cfg, S_XC, S_T0)
        flag_wait(A, cfg, FOR, XL, 2, end, cfg.nap_o)
        A.nop(cfg.fo_wait)
        if cfg.fine >= 6:
            stamp(A, cfg, 6)
        gather(ldo)
        use, fast = proj(ACO, WO, RO)
        seen = []

        def chk4o(i):
            if len(seen) < 4 and cfg.fine == 10 + i:
                stamp(A, cfg, 7)
            seen.append(i)
            chk4(i)
        done, slow2 = fsm_poll(A, 4, ldo, chk4o, use, end, fast=fast, onfail=onfail(3), undo=undo(ACO, 0),
                               dense=(lambda st: len(st) == 1 or (cfg.dense & 8 and sorted(st) in ([0, 1], [2, 3])), ldo, AP, ACK,
                                      cfg.dgap, CHK, cfg.dsets) if cfg.dense & 2 else None)
        A.label(done)
        stamp(A, cfg, 3)
        collect(ACO, RO, lambda: None, 3)
        A.c("exchange of partial sums with the other groups")
        for rr in range(cfg.nrep):
            A(f"buffer_store_dword {v(PW)}, {v(XOWN)}, {s(SWS, 4)}, {s(S_XC + rr)} offen sc1")
        stamp(A, cfg, 4)
        A(f"s_waitcnt vmcnt({cfg.nrep})")
        unwritten(S_RST, loc)
        for k in range(3):
            A(f"v_mov_b32 {v(XL + 4 * k)}, {v(PW)}")
        A(f"s_add_u32 {s(S_STEP)}, {s(S_STEP)}, 1")
        ring_slots(A)

        def ldx(k):
            for j in range(3):
                A(f"buffer_load_dword {v(XL + 4 * (k % 3) + 1 + j)}, {v(XP + j)}, {s(SWS, 4)}, {s(S_XC + k % cfg.nrep)} offen sc1")
        events = sorted([(cfg.xdelay, 0), (cfg.xdelay + cfg.xgap, 1), (cfg.xdelay + cfg.xgap + cfg.xgap2, 2), (cfg.fm_delay, 3)])
        now = 0
        for t, e in events:
            pause(A, cfg, HT, max(0, t - now), 1)
            now = max(now, t)
            if e == 0 and cfg.fine < 6:
                stamp(A, cfg, 6)
            if e < 3:
                ldx(e)
                if e == 0:
                    clear_acc()
                    now += 8
            else:
                A(f"buffer_store_dword {v(TAGV)}, {v(FMW)}, {s(SWS, 4)}, {s(S_FB)} offen{loc}")
        heat(A, HT, cfg.xfill)
        x2, xsum = A.new("x2"), A.new("xs")

        def final(x):
            A(f"{MF} {v(RD, 4)}, {v(x, 4)}, {v(HT + 4, 4)}, 0")
            A(f"v_max3_u32 {v(CHK)}, {v(x + 1)}, {v(x + 2)}, {v(x + 3)}")
            A(f"v_cmp_eq_u32 vcc, -1, {v(CHK)}")
            A("s_nop 5")
            for i in range(2):
                A(f"v_cvt_pk_bf16_f32 {v(SUM + i)}, {v(RD + 2 * i)}, {v(RD + 2 * i + 1)}")
        A(f"s_waitcnt vmcnt({7 if cfg.fm_delay >= cfg.xdelay else 6})")
        if cfg.fine < 10:
            stamp(A, cfg, 7)
        final(XL)
        A(f"s_cbranch_vccnz {x2}")
        A.label(xsum)
        A(f"buffer_store_dwordx2 {v(SUM, 2)}, {v(PUBM)}, {s(SWS, 4)}, {s(S_CUR)} offen{loc}")
        stamp(A, cfg, 5)
        pause(A, cfg, HT, cfg.mdelay, 3)
        A(f"s_branch {top}")
        A.label(x2)
        count(A, cfg, 0)
        for k in range(6):
            ldx(k + 3)
            A("s_waitcnt vmcnt(6)")
            final(XL + 4 * ((k + 1) % 3))
            A(f"s_cbranch_vccz {xsum}")
            count(A, cfg, 1)
        spend(A, end)
        A(f"s_branch {x2}")
        slow1()
        slow2()

    A.c("all members of the group share one L2: hand-offs inside the group use plain stores")
    body("")
    A.label(slow_lbl)
    A.c("some member runs on another die: every hand-off is written through")
    body(" sc1")


def q_role(A, cfg, end):
    WIN = 0
    VG, VK, VVA, VVB, VO, IDX, LR, QW, QR, LWS = 10, 11, 12, 13, 14, 15, 18, 19, 20, 211
    PFG, RDK, RDQ, RDVA, RDVB, OTA, OTB = 21, 22, 23, 24, 25, 26, 27
    FMR, FOW, FBUF, TAGV, XCL, POW, PQA, PQV, PQB = 192, 193, 194, 197, 198, 199, 208, 209, 210
    SENT, ONES, BIAS, CHK, T1, T2, T3 = 28, 32, 36, 44, 45, 46, 47
    AP, ACQ = 48, 64
    SX, SMM, RD, PX, LA, TM = 64, 72, 76, 76, 84, 88
    QOP, OA, KC, VM, PK = 96, 96, 112, 120, 124
    ST = 128
    SLOT0, SLOTX = 32768, 0x18000
    WQ = 256
    RQ, RB, HS = 0, 12288, 96
    HT, POV = 200, 214
    TID, LANE = 48, 49
    S_HEAD, S_PARW, S_EH, S_LDS, S_PQ, S_NEED = 54, 55, 56, 57, 58, 27
    A.c("Q role: q projection and attention of one head")
    if (cfg.gate or cfg.gate2 or cfg.gate3) and not cfg.gate_entry:
        A("s_memrealtime s[90:91]")
    A(f"v_mov_b32 {v(TID)}, v0")
    A(f"v_mov_b32 v50, v1")
    LANE = 50
    A(f"s_lshl_b32 {s(S_HEAD)}, {s(S_GRP)}, 3")
    A(f"s_add_u32 {s(S_HEAD)}, {s(S_HEAD)}, {s(S_TK)}")
    A(f"s_and_b32 {s(S_PARW)}, {s(S_WAVE)}, 1")
    A(f"s_lshr_b32 {s(S_EH)}, {s(S_WAVE)}, 1")
    A(f"s_lshl_b32 {s(S_RBASE)}, {s(S_GRP)}, 18")
    A(f"s_add_u32 {s(S_RBASE)}, {s(S_RBASE)}, {L.LRING}")
    A(f"s_lshl_b32 {s(S_T0)}, {s(S_WAVE)}, 12")
    A(f"v_lshl_add_u32 {v(VG)}, {v(LANE)}, 4, {s(S_T0)}")
    A(f"s_lshl_b32 {s(S_T0)}, {s(S_TK)}, 11")
    A(f"s_add_u32 {s(S_T1)}, {s(S_T0)}, 16384")
    A(f"v_lshl_add_u32 {v(VK)}, {v(LANE)}, 4, {s(S_T1)}")
    A(f"s_lshl_b32 {s(S_T1)}, {s(S_EH)}, 10")
    A(f"s_add_u32 {s(S_T0)}, {s(S_T0)}, {s(S_T1)}")
    A(f"s_lshl_b32 {s(S_T1)}, {s(S_PARW)}, 9")
    A(f"s_add_u32 {s(S_T1)}, {s(S_T1)}, {s(S_T0)}")
    A(f"s_add_u32 {s(S_T1)}, {s(S_T1)}, 32768")
    A(f"v_lshl_add_u32 {v(VVA)}, {v(LANE)}, 3, {s(S_T1)}")
    A(f"v_xor_b32 {v(VVB)}, 512, {v(VVA)}")
    A(f"s_add_u32 {s(S_T1)}, {s(S_T1)}, 16384")
    A(f"v_mov_b32 {v(VO)}, {s(S_T1)}")
    for bit, width, sh in ((5, 1, 8), (1, 2, 6), (4, 1, 5), (0, 1, 4), (3, 1, 30)):
        A(f"v_bfe_u32 v51, {v(LANE)}, {bit}, {width}")
        A(f"v_lshl_add_u32 {v(VO)}, v51, {sh}, {v(VO)}")
    sparse_index(A, IDX, LANE)
    for i in range(8):
        A(f"v_mov_b32 {v(HT + i)}, 0")
    for i in range(3):
        A(f"s_xor_b32 {s(S_T0)}, {s(S_WAVE)}, {3 ^ i}")
        A(f"s_mul_i32 {s(S_T0)}, {s(S_T0)}, 3072")
        A(f"s_add_u32 {s(S_T0)}, {s(S_T0)}, {1024 * i}")
        A(f"v_lshl_add_u32 {v(LWS + i)}, {v(LANE)}, 4, {s(S_T0)}")
    A(f"s_mul_i32 {s(S_T0)}, {s(S_WAVE)}, 3072")
    A(f"v_lshl_add_u32 {v(LR)}, {v(LANE)}, 4, {s(S_T0)}")
    A(f"s_lshl_b32 {s(S_T0)}, {s(S_WAVE)}, 9")
    A(f"v_and_b32 v51, 15, {v(LANE)}")
    A(f"v_lshl_add_u32 {v(QW)}, v51, 4, {s(S_T0)}")
    A(f"v_lshrrev_b32 v51, 4, {v(LANE)}")
    A(f"v_lshl_add_u32 {v(QW)}, v51, 2, {v(QW)}")
    A(f"v_lshrrev_b32 v51, 2, {v(LANE)}")
    A(f"v_and_b32 v52, 1, {v(LANE)}")
    A(f"v_lshlrev_b32 v52, 3, v52")
    A(f"v_lshl_add_u32 {v(QR)}, v51, 4, v52")
    A(f"v_lshlrev_b32 v51, 4, {v(LANE)}")
    A(f"s_mul_i32 {s(S_T0)}, {s(S_WAVE)}, 6144")
    A(f"v_add_u32 {v(PFG)}, {s(S_T0)}, v51")
    A(f"s_add_u32 {s(S_LDS)}, {s(S_T0)}, {SLOT0}")
    A(f"v_add_u32 {v(RDK)}, {SLOT0 + 8192}, v51")
    A(f"s_lshl_b32 {s(S_T0)}, {s(S_PARW)}, 12")
    A(f"s_add_u32 {s(S_T0)}, {s(S_T0)}, {SLOT0}")
    A(f"v_add_u32 {v(RDQ)}, {s(S_T0)}, v51")
    A(f"s_lshl_b32 {s(S_T0)}, {s(S_WAVE)}, 11")
    A(f"s_add_u32 {s(S_T0)}, {s(S_T0)}, {SLOT0 + 16384}")
    A(f"v_add_u32 {v(RDVA)}, {s(S_T0)}, v51")
    A(f"v_xor_b32 {v(RDVB)}, 2048, {v(RDVA)}")
    A(f"s_lshl_b32 {s(S_FB)}, {s(S_GRP)}, 12")
    A(f"s_add_u32 {s(S_FB)}, {s(S_FB)}, {L.FLAGS}")
    A(f"s_lshl_b32 {s(S_T0)}, {s(S_WAVE)}, 8")
    A(f"v_lshl_add_u32 {v(FMR)}, {v(LANE)}, 2, {s(S_T0)}")
    A(f"s_lshr_b32 {s(S_T0)}, {s(S_TK)}, 1")
    A(f"s_lshl_b32 {s(S_T0)}, {s(S_T0)}, 8")
    A(f"s_and_b32 {s(S_T1)}, {s(S_TK)}, 1")
    A(f"s_lshl_b32 {s(S_T1)}, {s(S_T1)}, 2")
    A(f"s_add_u32 {s(S_T0)}, {s(S_T0)}, {s(S_T1)}")
    A(f"s_add_u32 {s(S_T0)}, {s(S_T0)}, 2048")
    A(f"v_min_u32 v52, 1, {v(TID)}")
    A(f"v_lshl_add_u32 {v(FOW)}, v52, 30, {s(S_T0)}")
    A(f"v_mov_b32 {v(TAGV)}, 0")
    A(f"buffer_store_dword {v(TAGV)}, {v(FOW)}, {s(SWS, 4)}, {s(S_FB)} offen sc1")
    XN = 2 if cfg.xbf else 4
    A(f"s_lshr_b32 {s(S_T0)}, {s(S_TK)}, {2 if cfg.xbf else 1}")
    A(f"s_lshl_b32 {s(S_T0)}, {s(S_T0)}, 14")
    A(f"s_and_b32 {s(S_T1)}, {s(S_TK)}, {3 if cfg.xbf else 1}")
    A(f"s_lshl_b32 {s(S_T1)}, {s(S_T1)}, {11 if cfg.xbf else 12}")
    A(f"s_add_u32 {s(S_T0)}, {s(S_T0)}, {s(S_T1)}")
    A(f"s_lshl_b32 {s(S_T1)}, {s(S_GRP)}, 16")
    A(f"s_add_u32 {s(S_T0)}, {s(S_T0)}, {s(S_T1)}")
    A(f"v_lshl_add_u32 {v(XCL)}, {v(TID)}, {3 if cfg.xbf else 4}, {s(S_T0)}")
    A(f"s_lshl_b32 {s(S_T0)}, {s(S_HEAD)}, 2")
    A(f"s_add_u32 {s(S_T0)}, {s(S_T0)}, {s(S_WAVE)}")
    A(f"s_lshl_b32 {s(S_T0)}, {s(S_T0)}, 11")
    A(f"s_lshl_b32 {s(S_T1)}, {s(S_PARW)}, 10")
    A(f"s_add_u32 {s(S_T0)}, {s(S_T0)}, {s(S_T1)}")
    A(f"v_add_u32 {v(OTA)}, {s(S_T0)}, v51")
    A(f"v_xor_b32 {v(OTB)}, 2048, {v(OTA)}")
    progress_addr(A, POW, LANE, L.PO, S_HEAD, 52)
    A(f"buffer_store_dword {v(TAGV)}, {v(POW)}, {s(SWS, 4)}, 0 offen sc1")
    lines_addr(A, 53, LANE, 16)
    A(f"s_lshr_b32 {s(S_T0)}, {s(S_HEAD)}, 2")
    A(f"s_lshl_b32 {s(S_T0)}, {s(S_T0)}, 10")
    A(f"s_add_u32 {s(S_T0)}, {s(S_T0)}, {L.PQ}")
    A(f"v_add_u32 {v(PQA)}, {s(S_T0)}, v53")
    A(f"s_lshl_b32 {s(S_T0)}, {s(S_GRP)}, 10")
    A(f"s_add_u32 {s(S_T0)}, {s(S_T0)}, {L.PB - 1024}")
    A(f"v_add_u32 v53, {s(S_T0)}, v53")
    A(f"v_cmp_lt_u32 vcc, 7, {v(LANE)}")
    A("s_nop 1")
    A(f"v_cndmask_b32 {v(PQA)}, {v(PQA)}, v53, vcc")
    A(f"v_cndmask_b32 {v(PQB)}, 0, 8, vcc")
    for i in range(4):
        A(f"v_mov_b32 {v(SENT + i)}, -1")
        A(f"v_mov_b32 {v(ONES + i)}, 0x3f803f80")
    A(f"v_and_b32 v51, 15, {v(LANE)}")
    A(f"s_lshl_b32 {s(S_T0)}, {s(S_PARW)}, 4")
    A(f"v_add_u32 v51, {s(S_T0)}, v51")
    A(f"v_lshrrev_b32 v52, 4, {v(LANE)}")
    A(f"v_lshlrev_b32 v52, 2, v52")
    A(f"v_mov_b32 v54, 0xf149f2ca")
    for T in range(2):
        for q in range(4):
            A(f"v_add_u32 v53, {16 * T + q}, v52")
            A(f"v_cmp_gt_u32 vcc, v53, v51")
            A("s_nop 1")
            A(f"v_cndmask_b32 {v(BIAS + 4 * T + q)}, 0, v54, vcc")
    for i in range(10):
        A(f"v_mov_b32 {v(WIN + i)}, 0")
    A(f"s_mov_b32 {s(S_C)}, 0x3e0293ee")
    A(f"s_mov_b32 {s(S_NC)}, 0xbe0293ee")
    for slot in range(4):
        A(f"s_add_u32 {s(S_T0)}, {s(S_RBASE)}, {slot << 16}")
        A(f"buffer_store_dwordx4 {v(SENT, 4)}, {v(VO)}, {s(SWS, 4)}, {s(S_T0)} offen sc1")
    A(f"s_lshl_b32 {s(S_T2)}, {s(S_IRR)}, 16")
    A(f"s_or_b32 {s(S_T2)}, {s(S_T2)}, 1")
    arrive(A, S_T2)

    def probe_here():
        noprobe = A.new("np")
        A(f"s_cmp_lg_u32 {s(S_HEAD)}, 0")
        A(f"s_cbranch_scc1 {noprobe}")
        A("s_barrier")
        A(f"s_mov_b32 {s(S_T2)}, 0x2000000")
        probe(A, LANE, S_T2, cfg.marks)
        arrive(A, S_T2)
        A.label(noprobe)
    if cfg.q_after:
        A.c("these weights load quickly: the more urgent loads go first")
        probe_here()
        if not cfg.solo:
            after_stage(A, cfg.q_after, end, 51)
    for hf in range(2):
        A(f"s_xor_b32 {s(S_T2)}, {s(S_WAVE)}, {3 ^ (2 * hf)}")
        A(f"s_lshl_b32 {s(S_T2)}, {s(S_T2)}, 6")
        glob_addr(A, 51 + hf, LANE, 13, S_T2, 54)
    tr_addr(A, 53, LANE, "N", 54)
    A.srd(SW, P_WQ, SIZE["Wq"])
    chunks = []
    for j in range(4):
        for hf in range(2):
            def setup(j=j):
                A(f"s_lshl_b32 {s(S_T1)}, {s(S_WAVE)}, 21")
                A(f"s_lshl_b32 {s(S_T0)}, {s(S_HEAD)}, 8")
                A(f"s_add_u32 {s(S_T1)}, {s(S_T1)}, {s(S_T0)}")
                A(f"s_add_u32 {s(S_T1)}, {s(S_T1)}, {j * 64 * 8192}")
            chunks.append((setup, 8192, "N", 51 + hf, 53, (lambda n, j=j, hf=hf: WQ + (j * 8 + hf * 4 + n) * 8)))
    load_weights(A, chunks[::-1] if cfg.meet else chunks, WFLAG[cfg.wlo], None, cfg.ramp_lo)
    cfg.mark(A, 1)
    if not cfg.q_after:
        probe_here()
    await_start(A, end, probed=True)
    cfg.mark(A, 2)
    gate(A, cfg.gate)
    A(f"s_mul_i32 {s(S_PF)}, {s(S_HEAD)}, 24576")
    A(f"s_add_u32 {s(S_PF)}, {s(S_PF)}, {L.QKV}")
    A(f"s_mov_b32 {s(S_STEP)}, 0")

    def prefetch_parts(src):
        ld = lambda so, j: f"buffer_load_dwordx4 {v(PFG)}, {s(SWS, 4)}, {s(so)} offen offset:{1024 * j} sc1 lds"
        return [f"s_mov_b32 m0, {s(S_LDS)}\ns_add_u32 {s(S_T2)}, {s(src)}, 3072\n" + ld(src, 0), ld(src, 1), ld(src, 2),
                f"s_add_u32 m0, {s(S_LDS)}, 3072\ns_xor_b32 {s(S_LDS)}, {s(S_LDS)}, {SLOTX}\n" + ld(S_T2, 0), ld(S_T2, 1),
                ld(S_T2, 2) + f"\ns_add_u32 {s(S_PF)}, {s(S_PF)}, {32 * 24576}"]

    def prefetch():
        for x in prefetch_parts(S_PF):
            A(x)

    def operands():
        for i in range(8):
            A(f"ds_read_b128 {v(ST + 4 * i, 4)}, {v(RDK)} offset:{1024 * i}")
        for p, reg in ((0, RDVA), (1, RDVB)):
            for t in range(2):
                A(f"ds_read_b128 {v(ST + 32 + 8 * p + 4 * t, 4)}, {v(reg)} offset:{1024 * t}")
        for ks in range(4):
            A(f"ds_read_b128 {v(ST + 48 + 4 * ks, 4)}, {v(RDQ)} offset:{1024 * ks}")
        for reg in (RDK, RDVA, RDVB, RDQ):
            A(f"v_xor_b32 {v(reg)}, {SLOTX}, {v(reg)}")

    ldpq = lambda: A(f"buffer_load_dword {v(PQV)}, {v(PQA)}, {s(SWS, 4)}, 0 offen sc1")

    def tstpq():
        A(f"v_add_u32 {v(CHK)}, {v(PQV)}, {v(PQB)}")
        A(f"v_cmp_gt_u32 vcc, {s(S_NEED)}, {v(CHK)}")
    A(f"s_mov_b32 {s(S_NEED)}, 1")
    if not cfg.lazy:
        if not cfg.solo:
            block_on(A, ldpq, tstpq, end)
        prefetch()
    slow_lbl = A.new("q_sc1")
    A(f"s_cmp_lg_u32 {s(S_IRR)}, 0")
    A(f"s_cbranch_scc1 {slow_lbl}")

    def score_x(qreg, bias, before=None):
        for ks in range(4):
            if before:
                before(ks)
            for T in range(2):
                c = v(SX + 4 * T, 4) if ks else (v(BIAS + 4 * T, 4) if bias else "0")
                A(f"{MF} {v(SX + 4 * T, 4)}, {v(ST + 16 * T + 4 * ks, 4)}, {v(qreg + 4 * ks, 4)}, {c}")

    def max_x():
        A(f"v_max3_f32 {v(T1)}, {v(SX)}, {v(SX + 1)}, {v(SX + 2)}")
        A(f"v_max3_f32 {v(T1)}, {v(T1)}, {v(SX + 3)}, {v(SX + 4)}")
        A(f"v_max3_f32 {v(T1)}, {v(T1)}, {v(SX + 5)}, {v(SX + 6)}")
        A(f"v_max_f32 {v(T1)}, {v(T1)}, {v(SX + 7)}")

    def softmax(hook=lambda pos: None):
        A(f"v_pk_add_f32 {v(SMM, 2)}, {v(SMM, 2)}, {v(SMM + 2, 2)}")
        A(f"v_max3_f32 {v(T2)}, {v(T1)}, {v(SMM)}, {v(SMM + 1)}")
        A(f"v_max3_f32 {v(T3)}, {v(T1)}, {v(SMM)}, {v(SMM + 1)}")
        if not hook(0):
            A("s_nop 1")
        A(f"v_permlane32_swap_b32 {v(T2)}, {v(T3)}")
        A(f"v_max_f32 {v(T1)}, {v(T2)}, {v(T3)}")
        A(f"v_max_f32 {v(T2)}, {v(T2)}, {v(T3)}")
        A("s_nop 1")
        A(f"v_permlane16_swap_b32 {v(T1)}, {v(T2)}")
        A(f"v_max_f32 {v(T1)}, {v(T1)}, {v(T2)}")
        A(f"v_mul_f32 {v(T2)}, {s(S_NC)}, {v(T1)}")
        hook(1)
        for i in range(5):
            A(f"v_pk_fma_f32 {v(SX + 2 * i, 2)}, {v(SX + 2 * i, 2)}, {s(S_C, 2)}, {v(T2, 2)} op_sel_hi:[1,0,0]")
        for i in range(10):
            A(f"v_exp_f32 {v(SX + i)}, {v(SX + i)}")
            if i == 4:
                hook(2)
        hook(3)
        for i in range(4):
            A(f"v_cvt_pk_bf16_f32 {v(PX + i)}, {v(SX + 2 * i)}, {v(SX + 2 * i + 1)}")
        A(f"v_cvt_pk_bf16_f32 {v(WIN + 2)}, {v(SMM)}, {v(SMM + 1)}")
        A(f"v_cvt_pk_bf16_f32 {v(WIN + 7)}, {v(SMM)}, {v(SMM + 1)}")

    WOFF = (2, 6, 0, 4)

    def scale(n):
        for i in range(n // 2):
            A(f"v_pk_mul_f32 {v(OA + 2 * i, 2)}, {v(OA + 2 * i, 2)}, {v(T2, 2)} op_sel_hi:[1,0]")

    def pv(nt, pre=None, post=None, hook=lambda pos: None):
        A(f"{MF} {v(LA, 4)}, {v(ONES, 4)}, {v(PX, 4)}, 0")
        A(f"{MF} {v(LA, 4)}, {v(ONES, 4)}, {v(WIN + WOFF[0], 4)}, {v(LA, 4)}")
        for t in range(nt):
            if pre and t == cfg.vchk:
                pre()
            A(f"{MF} {v(OA + 4 * t, 4)}, {v(ST + 32 + 4 * t, 4)}, {v(PX, 4)}, 0")
        if post:
            post()
        hook(5)
        for t in range(nt):
            A(f"{MF} {v(OA + 4 * t, 4)}, {v(VM, 4)}, {v(WIN + WOFF[t], 4)}, {v(OA + 4 * t, 4)}")
        hook(6)
        A(f"v_rcp_f32 {v(T2)}, {v(LA)}")
        A.nop(8 - nt)

    def body(loc):
        top = A.new("q")
        ldm = lambda i, d=None: A(f"buffer_load_dwordx4 {v(d or AP + 4 * i, 4)}, {v(VG)}, {s(SWS, 4)}, {s(S_CUR)} offen offset:{1024 * i} sc1")
        ldk = lambda i: A(f"buffer_load_dwordx4 {v(AP + 4 * i, 4)}, {v(VK)}, {s(SWS, 4)}, {s(S_CUR)} offen offset:{1024 * (i & 1)} sc1")

        def ldv():
            A(f"buffer_load_dwordx2 {v(VM, 2)}, {v(VVA)}, {s(SWS, 4)}, {s(S_CUR)} offen sc1")
            A(f"buffer_load_dwordx2 {v(VM + 2, 2)}, {v(VVB)}, {s(SWS, 4)}, {s(S_CUR)} offen sc1")
        A.label(top)
        far = A.new("qf")
        A.c("the first segments are fetched one step ahead, later ones two steps ahead")
        A(f"s_cmp_gt_u32 {s(S_STEP)}, {cfg.near + 1}")
        A(f"s_cbranch_scc1 {far}")
        A("s_waitcnt vmcnt(0)")
        A("s_barrier")
        noop = A.new("qn")
        if cfg.lazy:
            A(f"s_cmp_eq_u32 {s(S_STEP)}, 0")
            A(f"s_cbranch_scc1 {noop}")
        A.label(far)
        operands()
        A.label(noop)
        ring_slots(A)
        for q in range(16):
            A(f"v_pk_mul_f32 {v(ACQ + 2 * q, 2)}, 0, 0")

        def publish(pos):
            if pos == cfg.po_pos:
                A(f"buffer_store_dword {v(POV)}, {v(POW)}, {s(SWS, 4)}, 0 offen{loc}")
        A(f"v_mov_b32 {v(POV)}, {v(TAGV)}")
        if cfg.po_pos == 0:
            A("s_waitcnt vmcnt(0)")
        publish(0)
        A(f"v_add_u32 {v(TAGV)}, 1, {v(TAGV)}")
        if cfg.fine == 6:
            stamp(A, cfg, 7)
        lastseg = A.new("qz")
        if cfg.skip63:
            A(f"s_cmp_eq_u32 {s(S_STEP)}, {cfg.nsteps - 1}")
            A(f"s_cbranch_scc1 {lastseg}")
        if cfg.use_fm:
            flag_wait(A, cfg, FMR, 216, 4, end, cfg.nap_m)
        if cfg.fine == 6:
            stamp(A, cfg, 6)
        for i in range(4):
            ldm(i)
            pause(A, cfg, HT, cfg.lspace if i < 3 else cfg.ltail, 4)

        fq = lambda j, lo, hi: [A(f"{SM} {v(ACQ + 4 * n, 4)}, {v(AP + 4 * j, 4)}, {r(WQ + (j * 8 + n) * 8, 8)}, {v(IDX)}")
                                for n in range(lo, hi)]
        chk4 = lambda i: check(A, AP + 4 * i, 4, CHK)

        def ad(n):
            for b in range(2):
                A(f"v_add_f32 {v(HS + 2 * n + b)}, {v(ACQ + 4 * n + b)}, {v(ACQ + 4 * n + 2 + b)}")
        wr = lambda p: A(f"ds_write_b128 {v(LWS + p)}, {v(HS + 4 * p, 4)} offset:{RQ}")

        own = lambda i: fq(i & 3, 6 + (i >> 2), 7 + (i >> 2))

        def last(j):
            for n in range(6):
                fq(j, n, n + 1)
                ad(n - 3) if n >= 3 else A("s_nop 1")
            wr(0)
            own(0)
            ad(3)
            ad(4)
            wr(1)
            own(1)
            ad(5)
            wr(2)

        def last_two():
            for n in range(6):
                fq(2, n, n + 1)
                ad(n - 2) if n >= 2 else A("s_nop 1")
                fq(3, n, n + 1)
                if n in (3, 5):
                    wr((n - 3) >> 1)
                    A("s_nop 0")
                else:
                    A("s_nop 1")
            own(0)
            ad(4)
            own(1)
            A("s_nop 1")
            ad(5)
            wr(2)
        fast = (lambda j: fq(j, 0, cfg.qsplit) if j < 3 else None, lambda j: fq(j, cfg.qsplit, 6) if j < 3 else last(j))
        if cfg.qjoint:
            fast += (lambda: check(A, AP + 8, 8, CHK), last_two)
        done, slow1 = fsm_poll(A, 4, ldm, chk4, lambda j, rest: fq(j, 0, 6) if rest else last(j), end, fast=fast,
                               onfail=lambda first: count(A, cfg, 2) if first else None,
                               undo=(lambda: (A.nop(8), [A(f"v_pk_mul_f32 {v(ACQ + 2 * q, 2)}, 0, 0") for q in range(2 * cfg.qsplit)])) if cfg.spec else None,
                               dense=(lambda st: len(st) <= (2 if cfg.dense & 16 else 1), ldm, AP, 220, cfg.dgap, CHK, cfg.dsets) if cfg.dense & 4 else None)
        A.label(done)
        stamp(A, cfg, 0)
        publish(1)
        for i in range(2, 2 + cfg.qown):
            own(i)
        A("s_waitcnt lgkmcnt(0)")
        A("s_barrier")
        fine(A, cfg, 1, 1)
        for p in range(3):
            A(f"ds_read_b128 {v(RD + 4 * p, 4)}, {v(LR)} offset:{RQ + 1024 * p}")
        for i in range(2 + cfg.qown, 8):
            own(i)
        for i in range(4):
            A(f"v_mov_b32 {v(SMM + i)}, 0")

        def ldkc():
            for p in range(2):
                A(f"buffer_load_dwordx4 {v(KC + 4 * p, 4)}, {v(VK)}, {s(SWS, 4)}, {s(S_CUR)} offen offset:{1024 * p} sc1")
        if cfg.kpos == 0:
            ldkc()
        ad(6)
        A("s_nop 1")
        ad(7)
        A("s_waitcnt lgkmcnt(0)")
        fine(A, cfg, 0, 2)
        for h2 in range(2):
            A(f"v_pk_add_f32 {v(RD + 2 * h2, 2)}, {v(RD + 2 * h2, 2)}, {v(HS + 12 + 2 * h2, 2)}")
            A(f"v_pk_add_f32 {v(RD + 4 + 2 * h2, 2)}, {v(RD + 4 + 2 * h2, 2)}, {v(RD + 8 + 2 * h2, 2)}")
        for h2 in range(2):
            A(f"v_pk_add_f32 {v(RD + 2 * h2, 2)}, {v(RD + 2 * h2, 2)}, {v(RD + 4 + 2 * h2, 2)}")
        A(f"v_cvt_pk_bf16_f32 {v(RD)}, {v(RD)}, {v(RD + 1)}")
        A(f"v_cvt_pk_bf16_f32 {v(RD + 1)}, {v(RD + 2)}, {v(RD + 3)}")
        A(f"ds_write2st64_b32 {v(QW)}, {v(RD)}, {v(RD + 1)} offset0:{RB // 256} offset1:{RB // 256 + 1}")
        fine(A, cfg, 1, 2)
        first, resume = A.new("q0"), A.new("q1")
        if cfg.lazy:
            A(f"s_cmp_eq_u32 {s(S_STEP)}, 0")
            A(f"s_cbranch_scc1 {first}")
            A.label(resume)
        if cfg.kpos == 1:
            ldkc()
        busy(A, CHK, cfg.qfw2)
        A("s_waitcnt lgkmcnt(0)")
        A("s_barrier")
        for i in range(8):
            A(f"ds_read_b64_tr_b16 {v(QOP + 2 * i, 2)}, {v(QR)} offset:{RB + 256 * i}")
        if cfg.kpos == 2:
            ldkc()

        def qwait(ks):
            A(f"s_waitcnt lgkmcnt({6 - 2 * ks})")
            if ks in (1, 2):
                ldk(ks - 1)
            if ks == 3:
                fine(A, cfg, 0, 3)
                A("s_waitcnt vmcnt(2)")
                fine(A, cfg, 1, 3)
                check(A, KC, 8, CHK)
        score_x(QOP, False, qwait)
        stamp(A, cfg, 1)
        kre, kok = A.new("kr"), A.new("ko")
        A(f"s_cbranch_vccnz {kre}")
        for p in range(2):
            A(f"{SM} {v(SMM, 4)}, {v(KC + 4 * p, 4)}, {v(QOP + 8 * p, 8)}, {v(IDX)}")
        A.label(kok)
        stamp(A, cfg, 2)
        if cfg.vpos < 0:
            ldv()
        A.nop(4 if cfg.vpos >= 0 else 2)
        max_x()

        def hook(pos):
            if pos in (1, 3):
                fine(A, cfg, pos >> 1, 4)
            if pos in (4, 6):
                fine(A, cfg, (pos - 4) >> 1, 5)
            if pos == cfg.vpos:
                ldv()
            if cfg.use_fo and pos == cfg.fo_pos:
                A(f"buffer_store_dword {v(TAGV)}, {v(FOW)}, {s(SWS, 4)}, {s(S_FB)} offen{loc}")
            return pos == cfg.vpos
        softmax(hook)
        vre, vok = A.new("vr"), A.new("vo")

        def wait_v():
            A(f"s_waitcnt vmcnt({1 if cfg.use_fo and 4 >= cfg.fo_pos >= cfg.vpos else 0})")
            check(A, VM, 4, CHK)

        def test_v():
            A(f"s_cbranch_vccnz {vre}")
            A.label(vok)
            publish(2)
        hook(4)
        pv(2, wait_v, test_v, hook)
        scale(8)
        for i in range(4):
            A(f"v_cvt_pk_bf16_f32 {v(PK + i)}, {v(OA + 2 * i)}, {v(OA + 2 * i + 1)}")
        A(f"buffer_store_dwordx4 {v(PK, 4)}, {v(VO)}, {s(SWS, 4)}, {s(S_CUR)} offen{loc}")
        stamp(A, cfg, 3)
        publish(3)
        A.c("off the recurrence path: operands of segment s+2, token rows of this segment")
        A("s_barrier")
        A(f"buffer_store_dwordx4 {v(SENT, 4)}, {v(VO)}, {s(SWS, 4)}, {s(S_RST)} offen{loc}")
        pqw, pqok, twice, once = A.new("pw"), A.new("pk"), A.new("p2"), A.new("p1")
        A(f"s_cmp_eq_u32 {s(S_STEP)}, {cfg.near}")
        A(f"s_cbranch_scc1 {twice}")
        A.label(once)
        A(f"s_add_u32 {s(S_NEED)}, {s(S_NEED)}, 1")
        A(f"s_min_u32 {s(S_NEED)}, {s(S_NEED)}, {cfg.nsteps}")
        if not cfg.solo:
            tstpq()
        for i in range(4):
            A(f"v_mov_b32 {v(SMM + i)}, 0")
        A(f"s_add_u32 {s(S_T0)}, {s(S_STEP)}, 2")
        A(f"s_and_b32 {s(S_T0)}, {s(S_T0)}, 3")
        x_offsets(A, cfg, S_XR, S_T0)
        A(f"s_cmp_lt_u32 {s(S_STEP)}, {cfg.nsteps - 2}")
        A(f"s_cselect_b32 {s(S_T3)}, {s(S_PF)}, 0x70000000")
        if not cfg.solo:
            A(f"s_cbranch_vccnz {pqw}")
            A.label(pqok)
        side = [f"buffer_store_dwordx{XN} {v(SENT, XN)}, {v(XCL)}, {s(SWS, 4)}, {s(S_XR + rr)} offen sc1" for rr in range(cfg.nrep)]
        side = ["\n".join(side)] + prefetch_parts(S_T3)
        if not cfg.solo:
            side[-1] += f"\nbuffer_load_dword {v(PQV)}, {v(PQA)}, {s(SWS, 4)}, 0 offen sc1"

        def aside(pos=None):
            if side:
                A(side.pop(0))
        score_x(ST + 48, True, lambda ks: aside() if ks in (0, 1, 3) else None)
        for p in range(2):
            A(f"{SM} {v(SMM, 4)}, {v(KC + 4 * p, 4)}, {v(ST + 48 + 8 * p, 8)}, {v(IDX)}")
        A(f"s_and_b32 {s(S_T0)}, {s(S_STEP)}, {63 if cfg.solo else 7}")
        A(f"s_lshl_b32 {s(S_T0)}, {s(S_T0)}, 18")
        A(f"s_add_u32 {s(S_OT)}, {s(S_T0)}, {L.OTOK}")
        aside()
        A.nop(2)
        max_x()
        softmax(lambda pos: aside() if pos else None)
        assert not side
        pv(4)
        scale(16)
        for i in range(8):
            A(f"v_cvt_pk_bf16_f32 {v(OA + i)}, {v(OA + 2 * i)}, {v(OA + 2 * i + 1)}")
        A(f"buffer_store_dwordx4 {v(OA, 4)}, {v(OTA)}, {s(SWS, 4)}, {s(S_OT)} offen{loc}")
        A(f"buffer_store_dwordx4 {v(OA + 4, 4)}, {v(OTB)}, {s(SWS, 4)}, {s(S_OT)} offen{loc}")
        event(A, cfg, 1, True)
        stamp(A, cfg, 4, 2)
        if cfg.trace:
            A(f"s_memtime {s(S_STAMP + 10, 2)}")
        flush_stamps(A, cfg, 8, T2, T3, 2)
        A(f"s_add_u32 {s(S_STEP)}, {s(S_STEP)}, 1")
        A(f"s_cmp_lt_u32 {s(S_STEP)}, {cfg.nsteps}")
        A(f"s_cbranch_scc1 {top}")
        gate(A, cfg.gate2)
        A("s_waitcnt vmcnt(0)")
        A(f"buffer_store_dword {v(TAGV)}, {v(POW)}, {s(SWS, 4)}, 0 offen{loc}")
        gate(A, cfg.gate3)
        report(A, cfg, (1,))
        A(f"s_branch {end}")
        if cfg.skip63:
            A.label(lastseg)
            A.c("the memory after the last segment is not used: only k and v are awaited")
            block_on(A, lambda: (ldkc(), ldv()), lambda: check(A, KC, 12, CHK), end, 0)
            A("s_waitcnt lgkmcnt(0)")
            A("s_barrier")
            A(f"s_branch {once}")
        if cfg.lazy:
            A.label(first)
            A.c("step 0 has q ready before the operands of segment 0 exist")
            if not cfg.solo:
                block_on(A, ldpq, tstpq, end)
            prefetch()
            A("s_waitcnt vmcnt(0)")
            A("s_barrier")
            operands()
            A(f"s_branch {resume}")
        A.label(twice)
        A(f"s_add_u32 {s(S_NEED)}, {s(S_NEED)}, 1")
        if not cfg.solo:
            block_on(A, ldpq, tstpq, end)
        prefetch()
        A(f"s_branch {once}")
        if not cfg.solo:
            A.label(pqw)
            block_on(A, ldpq, tstpq, end)
            A(f"s_branch {pqok}")
        slow1()
        A.label(kre)
        count(A, cfg, 0)
        ldk(2)
        ldk(3)

        def usekm(j, rest):
            p = j & 1
            if rest and (j ^ 2) not in rest:
                return
            A(f"{SM} {v(SMM, 4)}, {v(AP + 4 * j, 4)}, {v(QOP + 8 * p, 8)}, {v(IDX)}")
            for i in range(4):
                A(f"v_mov_b32 {v(KC + 4 * p + i)}, {v(AP + 4 * j + i)}")
        done, slow2 = fsm_poll(A, 4, ldk, chk4, usekm, end, lambda got: {x & 1 for x in got} == {0, 1})
        A.label(done)
        A(f"s_branch {kok}")
        slow2()
        A.label(vre)
        count(A, cfg, 1)
        ldv()
        spend(A, end)
        A("s_waitcnt vmcnt(0)")
        check(A, VM, 4, CHK)
        A(f"s_cbranch_vccnz {vre}")
        A(f"s_branch {vok}")

    body("")
    A.label(slow_lbl)
    body(" sc1")


def chain_kernel(A, cfg, name="chain_kernel"):
    end, kvo, other, noprobe = A.new("end"), A.new("kvo_role"), A.new("other"), A.new("np")
    A.kernel_begin(name)
    role_prologue(A, end)
    A(f"s_cmp_ge_u32 {s(S_GRP)}, 4")
    A(f"s_cbranch_scc1 {other}")
    A(f"s_cmp_ge_u32 {s(S_TK)}, 24")
    A(f"s_cbranch_scc1 {other}")
    A(f"s_cmp_ge_u32 {s(S_TK)}, 8")
    A(f"s_cbranch_scc1 {kvo}")
    q_role(A, cfg, end)
    A.label(other)
    A(f"s_mov_b32 {s(S_T2)}, 1")
    arrive(A, S_T2)
    A.label(end)
    A("s_endpgm")
    A.label(kvo)
    kvo_role(A, cfg, end)
```

```python
from asmlib import *
import layout as L
from chain import (WFLAG, SWS, SW, SDBG, S_WAVE, S_GRP, S_TK, S_IRR, S_STEP, S_T0, S_T1, S_T2, S_T3, MF,
                   arrive, await_start, probe, progress_addr, words_addr, line_addr, lines_addr,
                   block_on, spend, check, gate, event, report, after_stage)
from small import xor_reduce, mod_addr, mod_pass, mod_finish, mod_two

SW2, SW3 = 84, 88
S_CU, S_SRC, S_RDY, S_FA, S_NEED, S_OUT, S_M0, S_NXT = 44, 45, 46, 47, 48, 49, 50, 54
S_SRC5, S_RDY5, S_NEED5, S_OUT5, S_NXT5, S_K = 55, 56, 57, 58, 59, 26
S_P0, S_P1, S_P2 = 60, 61, 62
OOB = 0x70000000
STRICT = 0
LANE = 9
VD, VR, VFA, VF, VPA, VP, VO = 0, 1, 2, 3, 4, 5, 6
FR, ACC, TMP = 16, 48, 80
S_SIG = 63


def ptr(A, reg, key):
    A(f"s_load_dwordx2 {s(reg, 2)}, s[0:1], {KA[key]}")


def mark(A, cfg, i, reg=15):
    if cfg.marks != 1 and not (cfg.marks == 4 and i in (0, 3)):
        return
    skip = A.new("mk")
    if not isinstance(i, int):
        A(f"s_and_b32 s99, {i}, 63")
        A("s_lshr_b64 s[98:99], s[94:95], s99")
        A("s_and_b32 s98, s98, 1")
        A(f"s_cbranch_scc0 {skip}")
    elif i == 0:
        A("s_mov_b32 s94, 0x0202021f")
        A("s_mov_b32 s95, 0xe2020202")
    A("s_memrealtime s[96:97]")
    A(f"s_lshl_b32 s98, {s(S_GRP)}, 5")
    A(f"s_add_u32 s98, s98, {s(S_TK)}")
    A("s_lshl_b32 s98, s98, 2")
    A(f"s_add_u32 s98, s98, {s(S_WAVE)}")
    A("s_lshl_b32 s98, s98, 9")
    if isinstance(i, int):
        A(f"s_add_u32 s98, s98, {L.TRACE + 2 * L.MB + 4 * i}")
    else:
        A(f"s_lshl_b32 s99, {i}, 2")
        A("s_add_u32 s98, s98, s99")
        A(f"s_add_u32 s98, s98, {L.TRACE + 2 * L.MB + 64}")
    A("s_waitcnt lgkmcnt(0)")
    A(f"v_mov_b32 {v(reg)}, s96")
    A("s_mov_b64 exec, 1")
    A(f"buffer_store_dword {v(reg)}, off, {s(SWS, 4)}, s98")
    A("s_mov_b64 exec, -1")
    A.label(skip)


def lap(A, cfg, i):
    if cfg.marks != 2:
        return
    A("s_memtime s[96:97]")
    A("s_waitcnt lgkmcnt(0)")
    A("s_sub_u32 s99, s96, s98")
    A(f"s_add_u32 s{70 + i}, s{70 + i}, s99")
    A("s_mov_b32 s98, s96")


def span(A, cfg):
    if cfg.marks != 5:
        return
    for k, st in enumerate((8, 40)):
        skip = A.new("sp")
        A(f"s_cmp_lg_u32 {s(S_STEP)}, {st}")
        A(f"s_cbranch_scc1 {skip}")
        A("s_memtime s[96:97]\ns_memrealtime s[98:99]\ns_waitcnt lgkmcnt(0)")
        A(f"s_mov_b32 s{70 + 2 * k}, s96\ns_mov_b32 s{71 + 2 * k}, s98")
        A.label(skip)


def lap_init(A, cfg):
    if cfg.marks in (2, 5):
        for i in range(8):
            A(f"s_mov_b32 s{70 + i}, 0")


def lap_dump(A, cfg):
    if cfg.marks not in (2, 5):
        return
    for i in range(8):
        A(f"v_writelane_b32 v15, s{70 + i}, {i}")
    A(f"s_lshl_b32 s98, {s(S_GRP)}, 5")
    A(f"s_add_u32 s98, s98, {s(S_TK)}")
    A("s_lshl_b32 s98, s98, 2")
    A(f"s_add_u32 s98, s98, {s(S_WAVE)}")
    A("s_lshl_b32 s98, s98, 5")
    A(f"s_add_u32 s98, s98, {L.TRACE + 3 * L.MB}")
    A(f"v_lshlrev_b32 v14, 2, {v(LANE)}")
    A("s_mov_b64 exec, 0xff")
    A(f"buffer_store_dword v15, v14, {s(SWS, 4)}, s98 offen")
    A("s_mov_b64 exec, -1")


def tile_addr(A, dst, order, inter, sbase, extra, t0, t1):
    A(f"v_bfe_u32 {v(t0)}, {v(LANE)}, 2, 2")
    A(f"v_lshrrev_b32 {v(t1)}, 4, {v(LANE)}")
    A(f"v_lshl_add_u32 {v(t0)}, {v(t1)}, {3 if order == 'N' else 2}, {v(t0)}")
    A(f"v_lshl_add_u32 {v(t0)}, {v(t0)}, 7, {s(sbase)}")
    A(f"v_and_b32 {v(t1)}, 3, {v(LANE)}")
    A(f"v_lshl_add_u32 {v(t0)}, {v(t1)}, {4 if inter else 3}, {v(t0)}")
    A(f"v_add_u32 {v(t0)}, {extra}, {v(t0)}")
    A(f"v_bfe_u32 {v(t1)}, {v(LANE)}, 3, 2")
    A(f"v_lshlrev_b32 {v(t1)}, 5, {v(t1)}")
    A(f"v_xor_b32 {v(dst)}, {v(t0)}, {v(t1)}")


def stage_addr(A, vg, rows, stride, order):
    A(f"v_lshrrev_b32 {v(vg)}, 3, {v(LANE)}")
    A(f"s_mul_i32 {s(S_T0)}, {s(S_WAVE)}, {rows}")
    A(f"v_add_u32 {v(vg)}, {s(S_T0)}, {v(vg)}")
    A(f"v_mul_u32_u24 {v(vg)}, {stride}, {v(vg)}")
    A(f"v_and_b32 {v(vg + 1)}, 7, {v(LANE)}")
    A(f"v_lshl_add_u32 {v(vg)}, {v(vg + 1)}, 4, {v(vg)}")
    A(f"v_bfe_u32 {v(vg + 1)}, {v(LANE)}, 4, {1 if order == 'N' else 2}")
    A(f"v_lshlrev_b32 {v(vg + 1)}, 5, {v(vg + 1)}")
    A(f"v_xor_b32 {v(vg)}, {v(vg)}, {v(vg + 1)}")
    A(f"v_xor_b32 {v(vg + 1)}, {64 if order == 'N' else 0}, {v(vg)}")


def staged(A, n, regs, issue, reads, ask=None, act=None, note=lambda i: None, LA=2):
    NS, SZ = 5, 32768
    A("s_barrier")
    note(-2)
    for i in range(LA):
        issue(i, (i % NS) * SZ)
    note(-1)
    for i in range(n):
        if i == n - 1 and act:
            act(1)
        else:
            A(f"s_waitcnt vmcnt({8 * (min(i + LA, n) - i - 1)})")
        A("s_barrier")
        reads(i)
        for reg in regs:
            A(f"v_add_u32 {v(reg)}, {SZ if i % NS < NS - 1 else -(NS - 1) * SZ}, {v(reg)}")
        note(i)
        if ask and i + LA in (n - 5, n - 1):
            ask(i + LA == n - 1)
        if i + LA < n:
            issue(i + LA, ((i + LA) % NS) * SZ)
        if i == n - 2 and act:
            act(0)
        A("s_waitcnt lgkmcnt(0)")
    A("s_barrier")


def load_w(A, panels, stride, nst, tiles, order, vg, flag=""):
    qstep = 512 if order == "N" else 2048
    stage_addr(A, vg, 32 * nst, stride, order)
    A(f"s_lshl_b32 {s(S_T0)}, {s(S_WAVE)}, 12")

    def issue(t, base):
        for p, (srd, off) in enumerate(panels):
            for j in range(4):
                A(f"s_add_u32 m0, {s(S_T0)}, {base + p * 16384 + j * 1024}")
                A(f"s_add_u32 {s(S_T1)}, {s(off)}, {(32 * t + 8 * j) * stride}")
                A(f"buffer_load_dwordx4 {v(vg + (j & 1))}, {s(srd, 4)}, {s(S_T1)} offen{flag} lds")

    def reads(t):
        for reg, dst in tiles:
            for k in range(4):
                for q in range(2):
                    A(f"ds_read_b64_tr_b16 {r(dst + (nst * k + t) * 4 + 2 * q, 2)}, {v(reg)} offset:{k * 4096 + q * qstep}")
    staged(A, nst, [reg for reg, _ in tiles], issue, reads)


def load_w_panels(A, panels, stride, order, vg, flag="", ask=None, act=None, note=lambda i: None):
    qstep = 512 if order == "N" else 2048
    stage_addr(A, vg, 256, stride, order)
    A(f"s_lshl_b32 {s(S_T0)}, {s(S_WAVE)}, 13")
    stages = [(p, t) for p in panels for t in range(4)]

    def issue(i, base):
        (srd, off, _, _), t = stages[i]
        for j in range(8):
            A(f"s_add_u32 m0, {s(S_T0)}, {base + j * 1024}")
            A(f"s_add_u32 {s(S_T1)}, {s(off)}, {(64 * t + 8 * j) * stride}")
            A(f"buffer_load_dwordx4 {v(vg + (j & 1))}, {s(srd, 4)}, {s(S_T1)} offen{flag} lds")

    def reads(i):
        (_, _, pair, tiles), t = stages[i]
        skip = A.new("lw")
        if pair is not None:
            A(f"s_bitcmp{1 - pair}_b32 {s(S_WAVE)}, 1")
            A(f"s_cbranch_scc1 {skip}")
        for reg, dst in tiles:
            for k in range(8):
                for q in range(2):
                    A(f"ds_read_b64_tr_b16 {r(dst + (8 * (k >> 1) + 2 * t + (k & 1)) * 4 + 2 * q, 2)}, {v(reg)} offset:{k * 4096 + q * qstep}")
        A.label(skip)
    staged(A, len(stages), sorted({reg for p in panels for reg, _ in p[3]}), issue, reads, ask, act, note)


def dma_list(ngroups, m0base, m0add, src, vd, js=(0, 1, 2, 3)):
    ops = []
    for gi in range(ngroups):
        ops.append(f"s_add_u32 m0, {s(m0base)}, {m0add + gi * 16384}")
        ops.append(f"s_add_u32 {s(S_T1)}, {s(src)}, {gi * 16384}")
        for j in js:
            ops.append(f"buffer_load_dwordx4 {v(vd)}, {s(SWS, 4)}, {s(S_T1)} offen offset:{1024 * j} sc1 lds")
    return ops


def reader(vr, nblk, tmajor):
    def rd(i):
        T, ks = (i // (nblk // 2), i % (nblk // 2)) if tmajor else (i & 1, i >> 1)
        return f"ds_read_b128 {v(FR + 4 * (i % 8), 4)}, {v(vr)} offset:{2048 * ks + 1024 * T}"
    return rd


def first_reads(A, rd):
    for b in range(7):
        A(rd(b))


def fits(ops):
    t = 4
    for op in ops:
        if op.startswith("s_"):
            t += 4
        else:
            t = max(t, 8) + (8 if op.startswith(("v_exp", "v_rcp", "buffer_store_dwordx4")) else 4)
    return t <= 16


def job(A, nblk, rd, tmajor, tiles, fillers, lo=0, hi=None, nxt=None, syncs={}):
    hi = nblk if hi is None else hi
    mf, pre, nt = [], {}, len(tiles)
    for b in range(lo, hi):
        T, ks = (b // (nblk // 2), b % (nblk // 2)) if tmajor else (b & 1, b >> 1)
        if b % 2 == 0 and nxt is None:
            pre[len(mf)] = f"s_waitcnt lgkmcnt({min(5, nblk - 2 - b)})"
        for acc, w, swap in tiles:
            x, y = r(w(ks), 4), v(FR + 4 * (b % 8), 4)
            if swap:
                x, y = y, x
            mf.append(f"{MF} {v(acc(T), 4)}, {x}, {y}, {v(acc(T), 4) if ks else 0}")
    n = len(mf)
    at = [[] for _ in range(n)]
    for i, w in pre.items():
        if i:
            at[i - 1].append(w)
    for b in range(lo, min(hi, nblk - 7)):
        at[(b - lo) * nt] += syncs.get(b + 7, []) + [rd(b + 7)]
    if nxt:
        assert lo == nblk - 5 and hi == nblk
        for k, j in ((0, 0), (0, 1), (1, 2), (nt, 3), (2 * nt, 4), (3 * nt, 5), (4 * nt, 6)):
            at[k].append(nxt(j))
    k = kmin = 0
    for start, step, ops in fillers:
        k, kmin = (max(k, kmin, start) if start >= 0 else -start), 0
        for op in ops:
            setup = op.startswith(("s_add_u32 m0", f"s_add_u32 {s(S_T1)},"))
            if not setup and not op.startswith("END"):
                k = max(k, kmin)
            if op.startswith("END"):
                assert k < int(op[4:]), "sequence ends too late"
                continue
            if op.startswith("GAP"):
                k += int(op[4:])
                continue
            while True:
                assert k < n, "fillers do not fit"
                front = op.startswith("s_") and all(x.startswith("ds_read") for x in at[k])
                cand = [op] + at[k] if front else at[k] + [op]
                reads = any(x.startswith("ds_read") for x in at[k])
                tail = k >= (nblk - 7 - lo) * nt
                bad = STRICT and ((reads and op.startswith("v_")) or
                                  (STRICT > 1 and nt == 2 and not reads and not tail and (setup or op.startswith("buffer_load"))))
                if fits(cand) and not bad:
                    at[k] = cand
                    break
                k += 1
            if op.startswith("buffer"):
                kmin = k + step
    if 0 in pre:
        A(pre[0])
    scc = None
    for i in range(n):
        A(mf[i])
        for op in at[i]:
            if op.startswith("s_cselect"):
                assert scc.startswith("s_cmp"), "SCC overwritten"
            elif op.startswith("s_") and not op.startswith(("s_waitcnt", "s_mov", "s_nop", "s_mul", "s_barrier")):
                scc = op
            A(op)


def tag(ops, name):
    return [op + f" ;@{name}" if op.startswith("buffer") else op for op in ops]


def resolve(A, first):
    body = A.lines[first:]
    out = list(body)
    for i, ln in enumerate(body):
        if "vmcnt(@" in ln:
            names = ln[ln.index("(@") + 2:ln.index(")")].split(",")
            n, k = 0, i
            while True:
                k -= 1
                x = body[k % len(body)]
                if x.startswith("buffer"):
                    if any(x.endswith(";@" + t) for t in names):
                        break
                    n += 1
            out[i] = ln[:ln.index("(@")] + f"({n}" + ln[ln.index(")"):]
    A.lines[first:] = [x.split(" ;@")[0] for x in out]


def split_loads(ops, counts):
    idx = [i for i, op in enumerate(ops) if op.startswith("buffer")]
    cuts, acc = [0], 0
    for c in counts:
        acc += c
        cuts.append(idx[acc - 1] + 1 if acc else 0)
    cuts.append(len(ops))
    return [ops[a:b] for a, b in zip(cuts, cuts[1:])]


def lines(f):
    B = Asm()
    f(B)
    return B.lines


def decide(A, need, vf, rdy, src, nxt, spaced=False):
    A(f"v_cmp_gt_u32 vcc, {s(need)}, {v(vf)}")
    if spaced:
        A("GAP 2")
    A("s_cmp_eq_u64 vcc, 0")
    A(f"s_cselect_b32 {s(rdy)}, 1, 0")
    A(f"s_cselect_b32 {s(src)}, {s(nxt)}, {hex(OOB)}")


def common_regs(A, share):
    A(f"s_mul_i32 {s(S_M0)}, {s(S_WAVE)}, {share}")
    A(f"v_lshlrev_b32 {v(VR)}, 4, {v(LANE)}")
    A(f"v_add_u32 {v(VD)}, {s(S_M0)}, {v(VR)}")


def start_role(A, base, extra=None, also=None):
    line_addr(A, VPA, 0, base, S_CU, TMP)
    A(f"v_mov_b32 {v(VP)}, 0")
    A(f"buffer_store_dword {v(VP)}, {v(VPA)}, {s(SWS, 4)}, 0 offen sc1")
    if also:
        A(f"s_mov_b32 {s(S_T0)}, {also - base}")
        A(f"buffer_store_dword {v(VP)}, {v(VPA)}, {s(SWS, 4)}, {s(S_T0)} offen sc1")
    A(f"s_mov_b32 {s(S_T2)}, 1")
    if extra:
        extra()
    arrive(A, S_T2, extra is None, join=False)


def stream1(A, cfg, tiles, epi, flag_for, advance_src, outstep, abort, sig, limit, landed=None, hint=None):
    wait, entry, out, skip, join = (A.new(x) for x in ("sw", "se", "so", "sk", "sj"))
    ldf = lambda B=A: B(f"buffer_load_dword {v(VF)}, {v(VFA)}, {s(SWS, 4)}, {s(S_FA)} offen sc1")
    tst = lambda: A(f"v_cmp_gt_u32 vcc, {s(S_NEED)}, {v(VF)}")
    rd = reader(VR, 64, False)
    A(f"s_mov_b32 {s(S_STEP)}, 0")
    lap_init(A, cfg)
    lap(A, cfg, 7)
    flag_for(A, 0)
    A.label(wait)
    block_on(A, ldf, tst, abort, cfg.g3_sleep)
    lap(A, cfg, 5)
    for op in dma_list(4, S_M0, 0, S_NXT, VD):
        A(op)
    ldf()
    A.label(entry)
    A("s_waitcnt vmcnt(13)")
    A("s_barrier")
    lap(A, cfg, 6)
    first_reads(A, rd)
    advance_src()
    A(f"s_xor_b32 {s(S_M0)}, {s(S_M0)}, 0x10000")
    A(f"s_add_u32 {s(S_OUT)}, {s(S_OUT)}, {outstep}")
    A(f"s_add_u32 {s(S_STEP)}, {s(S_STEP)}, 1")
    flag_for(A, 0)
    nt = len(tiles)
    lap(A, cfg, 2)
    job(A, 64, rd, False, tiles, [(83, 1, lines(ldf)), hint] if hint else [(64 * nt - cfg.s1_flag, 1, lines(ldf))],
        syncs={16 * c: [f"s_waitcnt vmcnt({13 - 4 * c})", "s_barrier"] for c in (1, 2, 3)})
    lap(A, cfg, 3)
    A(f"v_xor_b32 {v(VR)}, 0x10000, {v(VR)}")
    A(f"v_mov_b32 {v(VP)}, {s(S_STEP)}")
    A(f"s_waitcnt vmcnt({1 if hint else 0})")
    mark(A, cfg, s(S_STEP))
    tst()
    if landed:
        landed()
    A.nop(4)
    epi()
    A(f"s_mov_b32 {s(S_RDY)}, 0")
    A(f"s_cbranch_vccnz {skip}")
    A(f"s_mov_b32 {s(S_RDY)}, 1")
    for op in dma_list(4, S_M0, 0, S_NXT, VD):
        A(op)
    A("s_waitcnt vmcnt(16)")
    A(f"s_branch {join}")
    A.label(skip)
    A("s_waitcnt vmcnt(0)")
    A.label(join)
    A("s_barrier")
    sig()
    lap(A, cfg, 4)
    A(f"s_cmp_eq_u32 {s(S_STEP)}, {limit}")
    A(f"s_cbranch_scc1 {out}")
    A(f"s_cmp_lg_u32 {s(S_RDY)}, 0")
    A(f"s_cbranch_scc1 {entry}")
    A(f"s_branch {wait}")
    A.label(out)


def pack8(A, dst, a, b):
    for i in range(2):
        A(f"v_cvt_pk_bf16_f32 {v(dst + i)}, {v(a + 2 * i)}, {v(a + 2 * i + 1)}")
    for i in range(2):
        A(f"v_cvt_pk_bf16_f32 {v(dst + 2 + i)}, {v(b + 2 * i)}, {v(b + 2 * i + 1)}")


def await_helpers(A, n, abort, t=TMP, count=64):
    lines_addr(A, t, LANE, count)
    A(f"s_mov_b32 {s(S_T0)}, {L.P1}")
    block_on(A, lambda: A(f"buffer_load_dword {v(t + 1)}, {v(t)}, {s(SWS, 4)}, {s(S_T0)} offen sc1"),
             lambda: A(f"v_cmp_gt_u32 vcc, {n}, {v(t + 1)}"), abort, 2)


def await_gates(A, abort):
    lines_addr(A, TMP, LANE, 32)
    A(f"s_mov_b32 {s(S_T0)}, {L.PM}")
    block_on(A, lambda: A(f"buffer_load_dword {v(TMP + 1)}, {v(TMP)}, {s(SWS, 4)}, {s(S_T0)} offen sc1"),
             lambda: A(f"v_cmp_gt_u32 vcc, 1, {v(TMP + 1)}"), abort, 8)


def octet_addrs(A, s_oct, s_cg):
    A(f"v_lshrrev_b32 {v(TMP)}, 3, {v(LANE)}")
    A(f"v_and_b32 {v(TMP + 1)}, 7, {v(LANE)}")
    A(f"s_lshr_b32 {s(S_T0)}, {s(s_oct)}, 1")
    A(f"s_lshl_b32 {s(S_T0)}, {s(S_T0)}, 10")
    A(f"s_and_b32 {s(S_T1)}, {s(s_oct)}, 1")
    A(f"s_lshl_b32 {s(S_T1)}, {s(S_T1)}, 7")
    A(f"s_add_u32 {s(S_T0)}, {s(S_T0)}, {s(S_T1)}")
    A(f"s_lshl_b32 {s(S_T1)}, {s(s_cg)}, 12")
    A(f"s_add_u32 {s(S_T0)}, {s(S_T0)}, {s(S_T1)}")
    A(f"v_lshl_add_u32 {v(VO)}, {v(TMP + 1)}, 4, {s(S_T0)}")
    A(f"v_and_b32 {v(TMP + 2)}, 3, {v(TMP)}")
    A(f"v_lshl_add_u32 {v(VO)}, {v(TMP + 2)}, 8, {v(VO)}")
    A(f"v_lshrrev_b32 {v(TMP + 2)}, 2, {v(TMP)}")
    A(f"v_lshl_add_u32 {v(VO)}, {v(TMP + 2)}, 11, {v(VO)}")
    A(f"s_lshl_b32 {s(S_T0)}, {s(s_oct)}, 14")
    A(f"s_lshl_b32 {s(S_T1)}, {s(s_cg)}, 7")
    A(f"s_add_u32 {s(S_T0)}, {s(S_T0)}, {s(S_T1)}")
    A(f"v_lshl_add_u32 {v(VO + 1)}, {v(TMP + 1)}, 11, {s(S_T0)}")
    A(f"v_lshl_add_u32 {v(VO + 1)}, {v(TMP)}, 4, {v(VO + 1)}")
    A(f"s_lshl_b32 {s(S_T0)}, {s(s_cg)}, 8")
    A(f"v_lshl_add_u32 {v(VO + 2)}, {v(TMP)}, 5, {s(S_T0)}")


def unit_consts(A):
    A(f"s_mov_b32 {s(S_P0)}, 0x00003f80")
    A(f"s_mov_b32 {s(S_P1)}, 0x3f800000")


def sum_bf(A, dst, srcs, n):
    for k, x in enumerate(srcs):
        for i in range(2 * n):
            A(f"v_dot2_f32_bf16 {v(dst + i)}, {v(x + (i >> 1))}, {s(S_P0 + (i & 1))}, {v(dst + i) if k else 0}")


def unpack(A, dst, src, n):
    for i in range(n):
        A(f"v_lshlrev_b32 {v(dst + 2 * i)}, 16, {v(src + i)}")
        A(f"v_and_b32 {v(dst + 2 * i + 1)}, 0xffff0000, {v(src + i)}")


def qkv_role(A, cfg, end):
    A.c("projection of token rows onto half a head of q, k and v; afterwards the final sums")
    A(f"v_mov_b32 {v(LANE)}, v1")
    A(f"s_sub_u32 {s(S_CU)}, {s(S_GRP)}, 4")
    A(f"s_lshl_b32 {s(S_CU)}, {s(S_CU)}, 4")
    A(f"s_and_b32 {s(S_T0)}, {s(S_TK)}, 7")
    A(f"s_lshl_b32 {s(S_T0)}, {s(S_T0)}, 1")
    A(f"s_add_u32 {s(S_CU)}, {s(S_CU)}, {s(S_T0)}")
    A(f"s_lshr_b32 {s(S_T0)}, {s(S_TK)}, 3")
    A(f"s_xor_b32 {s(S_T0)}, {s(S_T0)}, 1")
    A(f"s_add_u32 {s(S_CU)}, {s(S_CU)}, {s(S_T0)}")
    start_role(A, L.PQ, also=L.PW)
    A.srd(SW, 18, SIZE["Wq"])
    A.srd(SW2, 20, SIZE["Wk"])
    A.srd(SW3, 22, SIZE["Wv"])
    A(f"s_lshl_b32 {s(S_P0)}, {s(S_CU)}, 7")
    A(f"s_xor_b32 {s(S_P1)}, {s(S_P0)}, {4 << 7}")
    A(f"s_xor_b32 {s(S_P2)}, {s(S_P0)}, {2 << 7}")

    def request():
        for js in ((0, 2), (1, 3)):
            for op in dma_list(4, S_M0, 0, S_NXT, VD, js):
                A(op)
    A(f"s_and_b32 {s(S_T2)}, {s(S_WAVE)}, 1")
    A(f"s_lshl_b32 {s(S_T2)}, {s(S_T2)}, 6")
    for T in range(2):
        tile_addr(A, TMP + T, "N", False, S_T2, 32 * T, TMP + 4, TMP + 5)
    A(f"s_lshl_b32 {s(S_T2)}, {s(S_WAVE)}, 5")
    tile_addr(A, TMP + 2, "N", False, S_T2, 0, TMP + 4, TMP + 5)
    common_regs(A, 4096)
    A(f"s_xor_b32 {s(S_M0)}, {s(S_M0)}, 0x10000")
    A(f"s_mov_b32 {s(S_NXT)}, {L.H1}")

    def ask(k):
        if not k:
            A(f"buffer_load_dword v12, off, {s(SDBG, 4)}, 0 offset:144 sc1")
        else:
            lines_addr(A, 14, LANE, 2 * cfg.qbreak + 2)
            A(f"s_mov_b32 {s(S_T1)}, {L.P1}")
            A(f"buffer_load_dword v13, v14, {s(SWS, 4)}, {s(S_T1)} offen sc1")

    def act(k):
        skip, out = A.new("qa"), A.new("qb")
        if k == 0:
            if cfg.hold45:
                A("v_mov_b32 v15, 1")
                A(f"s_mov_b32 {s(S_T1)}, {L.PW - L.PQ}")
                A(f"buffer_store_dword v15, {v(VPA)}, {s(SWS, 4)}, {s(S_T1)} offen sc1")
            A("v_cmp_ne_u32 vcc, 0x80, v12")
            A("s_mov_b64 s[92:93], vcc")
            A("v_cmp_gt_u32 vcc, 2, v13")
            A("s_or_b64 vcc, vcc, s[92:93]")
            A(f"s_cselect_b32 {s(S_RDY)}, 0, 1")
            A(f"s_cbranch_scc1 {skip}")
            request()
            A.label(skip)
        else:
            A(f"s_cmp_lg_u32 {s(S_RDY)}, 0")
            A(f"s_cbranch_scc1 {skip}")
            A(f"s_waitcnt vmcnt({cfg.hold45})")
            A.label(skip)
            A(f"s_waitcnt vmcnt({16 + cfg.hold45})")
    pair = [(TMP, 256), (TMP + 1, 384)]
    load_w_panels(A, [(SW3, S_P2, None, [(TMP + 2, 128)]), (SW2, S_P1, 1, pair), (SW, S_P0, 0, pair)], 8192, "N",
                  TMP + 4, WFLAG[cfg.whi], ask, act,
                  lambda i: mark(A, cfg, {-2: 9, -1: 10, 2: 11, 6: 12, 8: 13}[i]) if i in (-2, -1, 2, 6, 8) else None)
    mark(A, cfg, 1)
    event(A, cfg, 4)
    A(f"s_and_b32 {s(S_T2)}, {s(S_CU)}, 1")
    A(f"s_lshr_b32 {s(S_T0)}, {s(S_WAVE)}, 1")
    A(f"s_lshl_b32 {s(S_T0)}, {s(S_T0)}, 3")
    A(f"s_and_b32 {s(S_T1)}, {s(S_WAVE)}, 1")
    A(f"s_add_u32 {s(S_T0)}, {s(S_T0)}, {s(S_T1)}")
    A(f"s_lshl_b32 {s(S_T1)}, {s(S_T2)}, 1")
    A(f"s_add_u32 {s(S_T0)}, {s(S_T0)}, {s(S_T1)}")
    A(f"s_lshl_b32 {s(S_T0)}, {s(S_T0)}, 10")
    A(f"s_lshr_b32 {s(S_T3)}, {s(S_CU)}, 1")
    A(f"s_and_b32 {s(S_T1)}, {s(S_WAVE)}, 2")
    A(f"s_xor_b32 {s(S_T1)}, {s(S_T1)}, {s(S_T3)}")
    A(f"s_mul_i32 {s(S_T1)}, {s(S_T1)}, 24576")
    A(f"s_add_u32 {s(S_T0)}, {s(S_T0)}, {s(S_T1)}")
    A(f"v_add_u32 {v(VO)}, {s(S_T0)}, {v(VR)}")
    A(f"v_add_u32 {v(VO + 1)}, 4096, {v(VO)}")
    A(f"s_lshl_b32 {s(S_T0)}, {s(S_T2)}, 2")
    A(f"s_add_u32 {s(S_T0)}, {s(S_T0)}, {s(S_WAVE)}")
    A(f"s_add_u32 {s(S_T0)}, {s(S_T0)}, 16")
    A(f"s_lshl_b32 {s(S_T0)}, {s(S_T0)}, 10")
    A(f"s_xor_b32 {s(S_T1)}, {s(S_T3)}, 1")
    A(f"s_mul_i32 {s(S_T1)}, {s(S_T1)}, 24576")
    A(f"s_add_u32 {s(S_T0)}, {s(S_T0)}, {s(S_T1)}")
    A(f"v_add_u32 {v(VO + 2)}, {s(S_T0)}, {v(VR)}")
    A(f"s_mov_b32 {s(S_OUT)}, {L.QKV - 32 * 24576}")
    A(f"v_xor_b32 {v(VR)}, 0x10000, {v(VR)}")
    tiles = [(lambda T: ACC + 8 * T, lambda ks: 256 + 4 * ks, False),
             (lambda T: ACC + 8 * T + 4, lambda ks: 384 + 4 * ks, False),
             (lambda T: ACC + 16 + 4 * T, lambda ks: 128 + 4 * ks, True)]
    sig = lambda B=A: B(f"buffer_store_dword {v(VP)}, {v(VPA)}, {s(SWS, 4)}, 0 offen sc1")
    A.c("continuous stream; results are stored one segment later")
    loop, more, back = A.new("ql"), A.new("qm"), A.new("qe")
    A(f"s_mov_b32 {s(S_STEP)}, 0")
    lap_init(A, cfg)
    A(f"s_cmp_lg_u32 {s(S_RDY)}, 0")
    A(f"s_cbranch_scc1 {more}")
    await_start(A, end, hi_only=True, join=False)
    await_helpers(A, 2, end, count=2 * cfg.qbreak + 2)
    request()
    A.label(more)
    A("s_waitcnt vmcnt(8)")
    A("s_barrier")
    rd = reader(VR, 64, True)
    first_reads(A, rd)
    A(f"s_mov_b32 {s(S_SRC5)}, {hex(OOB)}")
    A(f"s_mov_b32 {s(S_NEED)}, {cfg.qbreak}")
    cvt = lambda d, x: f"v_cvt_pk_bf16_f32 {v(d)}, {v(x)}, {v(x + 1)}"
    half = lambda T: [cvt(TMP + 4 * T + i, ACC + 8 * T + 2 * i) for i in range(4)] + \
        [cvt(TMP + 8 + 2 * T + i, ACC + 16 + 4 * T + 2 * i) for i in range(2)]
    stores = [f"buffer_store_dwordx4 {v(TMP + 4 * i, 4)}, {v(VO + i)}, {s(SWS, 4)}, {s(S_SRC5)} offen sc1" for i in range(3)]
    A.label(loop)
    head = [f"s_add_u32 {s(S_NXT)}, {s(S_NXT)}, 65536", f"s_xor_b32 {s(S_M0)}, {s(S_M0)}, 0x10000",
            f"s_cmp_lt_u32 {s(S_STEP)}, 63", f"s_cselect_b32 {s(S_SRC)}, {s(S_NXT)}, {hex(OOB)}"]
    first = len(A.lines)
    q = cfg.q_step
    t0 = split_loads(tag(dma_list(4, S_M0, 0, S_SRC, VD, (0, 2)), "t0"), [(75 - 26) // q + 1])
    t1 = split_loads(tag(dma_list(4, S_M0, 0, S_SRC, VD, (1, 3)), "t1"), [7])
    job(A, 64, rd, True, tiles,
        [(0, 1, head), (8, cfg.st_step, half(1) + tag(stores, "st") + [f"v_mov_b32 {v(VP)}, {s(S_STEP)}"]),
         (26, q, t0[0]), (-76, q // 2, lines(sig)), (0, q, t0[1] + t1[0]), (-105, 1, half(0)),
         (0, 1, [f"s_add_u32 {s(S_OUT)}, {s(S_OUT)}, {32 * 24576}", f"s_mov_b32 {s(S_SRC5)}, {s(S_OUT)}",
                 f"s_add_u32 {s(S_STEP)}, {s(S_STEP)}, 1"])], 0, 59,
        syncs={32: ["s_waitcnt vmcnt(@st,t1)", "s_barrier"]})
    A(f"v_xor_b32 {v(VR)}, 0x10000, {v(VR)}")
    event(A, cfg, 2, True)
    span(A, cfg)
    A("s_waitcnt vmcnt(@t0) lgkmcnt(0)")
    A("s_barrier")
    job(A, 64, rd, True, tiles, [(7, 1, t1[1]), (11, 1, [f"s_cmp_lt_u32 {s(S_STEP)}, {s(S_NEED)}"])], 59, 64, rd)
    resolve(A, first)
    if cfg.marks == 1:
        mark(A, cfg, s(S_STEP))
        A(f"s_cmp_lt_u32 {s(S_STEP)}, {s(S_NEED)}")
    A(f"s_cbranch_scc1 {loop}")
    A(f"s_cmp_eq_u32 {s(S_STEP)}, 64")
    A(f"s_cbranch_scc1 {back}")
    A.c("all remaining rows must be normalised by now")
    await_helpers(A, 3, end, 14)
    A(f"s_mov_b32 {s(S_NEED)}, 64")
    A(f"s_branch {loop}")
    A.label(back)
    A.nop(8)
    for op in half(1) + stores:
        A(op)
    A(f"v_mov_b32 {v(VP)}, 64")
    A("s_waitcnt vmcnt(0) lgkmcnt(0)")
    A("s_barrier")
    sig()

    lap_dump(A, cfg)
    A.c("out = x1 + gb * (sum of the seven partial down projections)")
    GB, SUMS, X8, BUF = 16, 24, 32, 64
    ptr(A, 16, "out")
    A(f"s_and_b32 {s(S_T2)}, {s(S_CU)}, 3")
    A(f"s_lshr_b32 {s(S_T3)}, {s(S_CU)}, 2")
    octet_addrs(A, S_T2, S_T3)
    lines_addr(A, VFA, LANE, 7, 10)
    A(f"s_lshr_b32 {s(S_FA)}, {s(S_CU)}, 3")
    A(f"s_lshl_b32 {s(S_FA)}, {s(S_FA)}, 7")
    A(f"s_add_u32 {s(S_FA)}, {s(S_FA)}, {L.P45 + 4}")
    unit_consts(A)
    A("s_waitcnt lgkmcnt(0)")
    A.srd(SW, 16, SIZE["out"])
    await_start(A, end)
    await_gates(A, end)
    A(f"s_mov_b32 {s(S_T0)}, {L.MOD + 4 * 5120}")
    for i in range(2):
        A(f"buffer_load_dwordx4 {v(GB + 4 * i, 4)}, {v(VO + 2)}, {s(SWS, 4)}, {s(S_T0)} offen offset:{16 * i} sc1")
    A(f"s_mov_b32 {s(S_STEP)}, {s(S_WAVE)}")
    for nb, limit in ((cfg.fin_nb, 48), (1, 64)):
        loop = A.new("fin")
        A.label(loop)
        A(f"s_add_u32 {s(S_NEED)}, {s(S_STEP)}, {4 * (nb - 1) + 1}")
        block_on(A, lambda: A(f"buffer_load_dword {v(VF)}, {v(VFA)}, {s(SWS, 4)}, {s(S_FA)} offen sc1"),
                 lambda: A(f"v_cmp_gt_u32 vcc, {s(S_NEED)}, {v(VF)}"), end, 32 if limit == 48 else cfg.fin_sleep)
        A(f"s_lshl_b32 {s(S_OUT)}, {s(S_STEP)}, 16")
        again = A.new("fa")
        A.label(again)
        for b in range(nb):
            for k in range(8):
                base = L.X1 if k == 7 else L.PART5 + k * 4 * L.MB
                A(f"s_add_u32 {s(S_T1)}, {s(S_OUT)}, {base + b * 4 * 65536}")
                A(f"buffer_load_dwordx4 {v(BUF + 32 * b + 4 * k, 4)}, {v(VO)}, {s(SWS, 4)}, {s(S_T1)} offen sc1")
        for b in range(nb):
            A(f"s_waitcnt vmcnt({8 * (nb - 1 - b) + b})")
            if limit == 64 and cfg.early5:
                spend(A, end)
                check(A, BUF, 28, SUMS)
                A(f"s_cbranch_vccnz {again}")
            sum_bf(A, SUMS, [BUF + 32 * b + 4 * k for k in range(7)], 4)
            unpack(A, X8, BUF + 32 * b + 28, 4)
            for i in range(4):
                A(f"v_pk_fma_f32 {v(X8 + 2 * i, 2)}, {v(SUMS + 2 * i, 2)}, {v(GB + 2 * i, 2)}, {v(X8 + 2 * i, 2)}")
            pack8(A, 40 + 4 * b, X8, X8 + 4)
            A(f"s_add_u32 {s(S_T1)}, {s(S_OUT)}, {b * 4 * 65536}")
            A(f"buffer_store_dwordx4 {v(40 + 4 * b, 4)}, {v(VO + 1)}, {s(SW, 4)}, {s(S_T1)} offen{WFLAG[cfg.outflag]}")
        A(f"s_add_u32 {s(S_STEP)}, {s(S_STEP)}, {4 * nb}")
        A(f"s_cmp_lt_u32 {s(S_STEP)}, {limit}")
        A(f"s_cbranch_scc1 {loop}")
        mark(A, cfg, 2 if limit == 48 else 3)
    report(A, cfg, (2, 4))
    A("s_endpgm")


def g3_role(A, cfg, end):
    A.c("output projection of token rows: this group's heads x 128 columns")
    A(f"v_mov_b32 {v(LANE)}, v1")
    A(f"s_sub_u32 {s(S_K)}, {s(S_TK)}, 24")
    A(f"s_lshl_b32 {s(S_CU)}, {s(S_GRP)}, 3")
    A(f"s_add_u32 {s(S_CU)}, {s(S_CU)}, {s(S_K)}")

    def extra():
        skip = A.new("np")
        A(f"s_mov_b32 {s(S_T0)}, 4096")
        A(f"buffer_store_dword {v(VP)}, {v(VPA)}, {s(SWS, 4)}, {s(S_T0)} offen sc1")
        A(f"s_mov_b32 {s(S_T0)}, {L.PM - L.P3}")
        A(f"buffer_store_dword {v(VP)}, {v(VPA)}, {s(SWS, 4)}, {s(S_T0)} offen sc1")
        line_addr(A, VO + 1, 0, L.PB, S_CU, TMP)
        A(f"buffer_store_dword {v(VP)}, {v(VO + 1)}, {s(SWS, 4)}, 0 offen sc1")
        A(f"s_lshl_b32 {s(S_T0)}, {s(S_IRR)}, 16")
        A(f"s_or_b32 {s(S_T2)}, {s(S_T2)}, {s(S_T0)}")
    start_role(A, L.P3, extra)
    if cfg.g3_after:
        A.c("these weights are needed last: the more urgent loads go first")
        after_stage(A, cfg.g3_after, end, TMP)
    A.srd(SW, 24, SIZE["Wo"])
    A(f"s_lshl_b32 {s(S_P0)}, {s(S_GRP)}, 21")
    A(f"s_lshl_b32 {s(S_T0)}, {s(S_K)}, 8")
    A(f"s_add_u32 {s(S_P0)}, {s(S_P0)}, {s(S_T0)}")
    A(f"s_add_u32 {s(S_P1)}, {s(S_P0)}, 128")
    pair_tiles(A, "P")
    load_w(A, [(SW, S_P0), (SW, S_P1)], 2048, 8, [(TMP, 256), (TMP + 1, 384)], "P", TMP + 4)
    mark(A, cfg, 1)
    A.c("128 of the conditioning values that are first needed after attention")
    ptr(A, 16, "wmod")
    ptr(A, 18, "c")
    A(f"v_mov_b32 v10, {v(VPA)}")
    A(f"s_add_u32 {s(S_P0)}, {s(S_CU)}, 32")
    A("s_waitcnt lgkmcnt(0)")
    A.srd(SW, 16, SIZE["wmod"])
    A.srd(SW2, 18, SIZE["c"])
    mod_two(A, S_P0, S_WAVE, S_P2, SW, SW2, WFLAG[cfg.wmod])
    A(f"v_mov_b32 {v(VPA)}, v10")
    A(f"v_mov_b32 {v(VP)}, 1")
    A(f"s_mov_b32 {s(S_T0)}, {L.PM - L.P3}")
    A("s_waitcnt vmcnt(0)")
    A(f"buffer_store_dword {v(VP)}, {v(VPA)}, {s(SWS, 4)}, {s(S_T0)} offen sc1")
    mark(A, cfg, 7)
    await_start(A, end, probed=True)
    common_regs(A, 4096)
    words_addr(A, VFA, LANE, 8, TMP)
    A(f"s_lshl_b32 {s(S_FA)}, {s(S_GRP)}, 10")
    A(f"s_add_u32 {s(S_FA)}, {s(S_FA)}, {L.PO}")
    A(f"v_mov_b32 {v(VO)}, {v(VR)}")
    A(f"s_lshl_b32 {s(S_T0)}, {s(S_K)}, 2")
    A(f"s_add_u32 {s(S_T0)}, {s(S_T0)}, {s(S_WAVE)}")
    A(f"s_lshl_b32 {s(S_T0)}, {s(S_T0)}, 11")
    A(f"s_lshl_b32 {s(S_OUT)}, {s(S_GRP)}, 22")
    A(f"s_add_u32 {s(S_OUT)}, {s(S_OUT)}, {s(S_T0)}")
    A(f"s_add_u32 {s(S_OUT)}, {s(S_OUT)}, {L.PART3 - 65536}")
    A(f"s_lshl_b32 {s(S_NXT)}, {s(S_GRP)}, 16")
    A(f"s_add_u32 {s(S_NXT)}, {s(S_NXT)}, {L.OTOK}")
    A.c("bring one slot of the token-output ring into this die's L2")
    A(f"s_lshl_b32 {s(S_SRC)}, {s(S_K)}, 18")
    A(f"s_add_u32 {s(S_SRC)}, {s(S_SRC)}, {s(S_NXT)}")
    for op in dma_list(4, S_M0, 0, S_SRC, VD):
        A(op)

    def epi():
        for T in range(2):
            pack8(A, TMP + 4 * T, ACC + 8 * T, ACC + 8 * T + 4)
            A(f"buffer_store_dwordx4 {v(TMP + 4 * T, 4)}, {v(VO)}, {s(SWS, 4)}, {s(S_OUT)} offen offset:{1024 * T} sc1")
    tiles = [(lambda T: ACC + 8 * T, lambda ks: 256 + 4 * ks, False),
             (lambda T: ACC + 8 * T + 4, lambda ks: 384 + 4 * ks, False)]

    def sig():
        A(f"s_and_b32 {s(S_T0)}, {s(S_STEP)}, 1")
        A(f"s_lshl_b32 {s(S_T0)}, {s(S_T0)}, 12")
        A(f"buffer_store_dword {v(VP)}, {v(VPA)}, {s(SWS, 4)}, {s(S_T0)} offen sc1")

    def landed():
        far, out = A.new("lf"), A.new("lo")
        A(f"v_add_u32 {v(VO + 2)}, 1, {v(VO + 2)}")
        A(f"s_cmp_lg_u32 {s(S_IRR)}, 0")
        A(f"s_cbranch_scc1 {far}")
        A(f"buffer_store_dword {v(VO + 2)}, {v(VO + 1)}, {s(SWS, 4)}, 0 offen")
        A(f"s_branch {out}")
        A.label(far)
        A(f"buffer_store_dword {v(VO + 2)}, {v(VO + 1)}, {s(SWS, 4)}, 0 offen sc1")
        A.label(out)
    A(f"v_mov_b32 {v(VO + 2)}, 0")
    hint = None
    if cfg.early3:
        A.c("the last segments are announced early and validated by their reader through 'not written' marks")
        for i in range(4):
            A(f"v_mov_b32 {v(TMP + i)}, -1")
        for sg in range(64 - cfg.nearly, 64):
            A(f"s_add_u32 {s(S_T0)}, {s(S_OUT)}, {(sg + 1) * 65536}")
            for T in range(2):
                A(f"buffer_store_dwordx4 {v(TMP, 4)}, {v(VO)}, {s(SWS, 4)}, {s(S_T0)} offen offset:{1024 * T} sc1")
        hint = (128 - cfg.early3, 1, [f"v_mov_b32 v10, {s(S_STEP)}", f"s_and_b32 {s(S_T0)}, {s(S_STEP)}, 1",
                f"s_lshl_b32 {s(S_T0)}, {s(S_T0)}, 12", f"s_cmp_gt_u32 {s(S_STEP)}, {64 - cfg.nearly}",
                f"s_cselect_b32 {s(S_T0)}, {s(S_T0)}, {hex(OOB)}",
                f"buffer_store_dword v10, {v(VPA)}, {s(SWS, 4)}, {s(S_T0)} offen sc1"])

    def advance():
        A(f"s_add_u32 {s(S_NXT)}, {s(S_NXT)}, 262144")
        A(f"s_bitset0_b32 {s(S_NXT)}, 21")
    stream1(A, cfg, tiles, epi, lambda B, d: B(f"s_add_u32 {s(S_NEED)}, {s(S_STEP)}, {d + 1}"), advance, 65536, end,
            sig, 64, landed, hint)
    lap_dump(A, cfg)
    if cfg.wbl2:
        A.c("the group is finished: its rings need not wait for the end of the launch to be written back")
        A("s_waitcnt vmcnt(0)")
        A(f"s_or_b32 {s(S_T0)}, {s(S_K)}, {s(S_WAVE)}")
        A(f"s_cbranch_scc1 {end}")
        A("buffer_wbl2 sc1")
        A("s_waitcnt vmcnt(0)")
    A("s_endpgm")


def pair_tiles(A, order):
    A(f"s_lshr_b32 {s(S_T2)}, {s(S_WAVE)}, 1")
    A(f"s_lshl_b32 {s(S_T2)}, {s(S_T2)}, 14")
    A(f"s_and_b32 {s(S_T3)}, {s(S_WAVE)}, 1")
    A(f"s_lshl_b32 {s(S_T3)}, {s(S_T3)}, 6")
    A(f"s_add_u32 {s(S_T2)}, {s(S_T2)}, {s(S_T3)}")
    for T in range(2):
        tile_addr(A, TMP + T, order, True, S_T2, 8 * T, TMP + 4, TMP + 5)


def moments(A, S, F, n, first):
    for i in range(n // 2):
        x = v(F + 2 * i, 2)
        if first and i == 0:
            A(f"v_pk_mul_f32 {v(S, 2)}, {x}, 1.0 op_sel_hi:[1,0]")
            A(f"v_pk_mul_f32 {v(S + 2, 2)}, {x}, {x}")
        else:
            A(f"v_pk_add_f32 {v(S, 2)}, {v(S, 2)}, {x}")
            A(f"v_pk_fma_f32 {v(S + 2, 2)}, {x}, {x}, {v(S + 2, 2)}")


def normalise(A, F, n, S, bits, wr, rd):
    A(f"v_add_f32 {v(S)}, {v(S)}, {v(S + 1)}")
    A(f"v_add_f32 {v(S + 1)}, {v(S + 2)}, {v(S + 3)}")
    xor_reduce(A, "v_add_f32", (S, S + 1), (S + 2, S + 3), bits)
    A(f"ds_write_b64 {v(wr)}, {v(S, 2)} offset:2048")
    A("s_waitcnt lgkmcnt(0)")
    A("s_barrier")
    for i in range(2):
        A(f"ds_read_b128 {v(S + 4 * i, 4)}, {v(rd)} offset:{2048 + 16 * i}")
    A(f"v_xor_b32 {v(wr)}, 512, {v(wr)}")
    A(f"v_xor_b32 {v(rd)}, 512, {v(rd)}")
    A(f"s_mov_b32 {s(S_T0)}, 0x3a800000")
    A("s_waitcnt lgkmcnt(0)")
    A(f"v_pk_add_f32 {v(S, 2)}, {v(S, 2)}, {v(S + 2, 2)}")
    A(f"v_pk_add_f32 {v(S + 4, 2)}, {v(S + 4, 2)}, {v(S + 6, 2)}")
    A(f"v_pk_add_f32 {v(S, 2)}, {v(S, 2)}, {v(S + 4, 2)}")
    A(f"v_pk_mul_f32 {v(S, 2)}, {v(S, 2)}, {s(S_T0, 2)} op_sel_hi:[1,0]")
    A(f"v_fma_f32 {v(S + 1)}, -{v(S)}, {v(S)}, {v(S + 1)}")
    A(f"v_max_f32 {v(S + 1)}, 0, {v(S + 1)}")
    A(f"v_add_f32 {v(S + 1)}, 0x3727c5ac, {v(S + 1)}")
    A(f"v_rsq_f32 {v(S + 1)}, {v(S + 1)}")
    A("s_nop 0")
    A(f"v_mul_f32 {v(S)}, -{v(S)}, {v(S + 1)}")
    for i in range(n // 2):
        A(f"v_pk_fma_f32 {v(F + 2 * i, 2)}, {v(F + 2 * i, 2)}, {v(S, 2)}, {v(S, 2)} op_sel:[0,1,0] op_sel_hi:[1,1,0]")


def stat_addrs(A, wr, rd, mask):
    A(f"v_and_b32 {v(rd)}, {mask}, {v(LANE)}")
    A(f"v_lshlrev_b32 {v(rd)}, 5, {v(rd)}")
    A(f"s_lshl_b32 {s(S_T0)}, {s(S_WAVE)}, 3")
    A(f"v_add_u32 {v(wr)}, {s(S_T0)}, {v(rd)}")


def helper_start(A, cfg, end):
    X, F, SH, SC, T = 16, 48, 112, 176, 240
    P1A, WR, RD, VA, VX, VG = 10, 11, 12, 13, 6, 7
    A(f"v_mov_b32 {v(LANE)}, v1")
    A(f"s_sub_u32 {s(S_T2)}, {s(S_GRP)}, 4")
    A(f"s_lshl_b32 {s(S_K)}, {s(S_TK)}, 2")
    A(f"s_add_u32 {s(S_K)}, {s(S_K)}, {s(S_T2)}")
    A(f"s_sub_u32 {s(S_K)}, {s(S_K)}, 64")
    A(f"s_lshr_b32 {s(S_T0)}, {s(S_T2)}, 1")
    A(f"s_lshl_b32 {s(S_T1)}, {s(S_T0)}, 3")
    A(f"s_add_u32 {s(S_T1)}, {s(S_T1)}, 16")
    A(f"s_lshl_b32 {s(S_T0)}, {s(S_T0)}, 2")
    A(f"s_cmp_ge_u32 {s(S_TK)}, 28")
    A(f"s_cselect_b32 {s(S_T3)}, 28, 24")
    A(f"s_add_u32 {s(S_T0)}, {s(S_T0)}, {s(S_T3)}")
    A(f"s_cmp_ge_u32 {s(S_TK)}, 24")
    A(f"s_cselect_b32 {s(S_T0)}, {s(S_T0)}, {s(S_T1)}")
    A(f"s_lshl_b32 {s(S_T1)}, {s(S_T2)}, 3")
    A(f"s_sub_u32 {s(S_T1)}, {s(S_T1)}, 16")
    A(f"s_bitcmp1_b32 {s(S_T2)}, 0")
    A(f"s_cselect_b32 {s(S_T0)}, {s(S_T0)}, {s(S_T1)}")
    A(f"s_add_u32 {s(S_CU)}, {s(S_T0)}, {s(S_TK)}")
    ptr(A, 16, "wmod")
    ptr(A, 18, "c")
    ptr(A, 20, "x")
    line_addr(A, P1A, 0, L.P1, S_K, TMP)
    line_addr(A, 8, 0, L.P45, S_CU, TMP)
    A("v_mov_b32 v14, 0")
    A("v_mov_b32 v15, 0")
    A(f"buffer_store_dword v14, {v(P1A)}, {s(SWS, 4)}, 0 offen sc1")
    A(f"buffer_store_dwordx2 v[14:15], v8, {s(SWS, 4)}, 0 offen sc1")
    A("s_waitcnt lgkmcnt(0)")
    A.srd(SW, 16, SIZE["wmod"])
    A.srd(SW2, 18, SIZE["c"])
    A.srd(SW3, 20, SIZE["x"])

    def stage(n, join=True):
        A(f"v_mov_b32 v14, {n}")
        A("s_waitcnt vmcnt(0)")
        if join:
            A("s_barrier")
        A(f"buffer_store_dword v14, {v(P1A)}, {s(SWS, 4)}, 0 offen sc1")

    stat_addrs(A, WR, RD, 15)
    A(f"v_lshlrev_b32 {v(VA)}, 4, {v(LANE)}")
    A(f"v_lshrrev_b32 {v(VG)}, 4, {v(LANE)}")
    A(f"v_lshlrev_b32 {v(VX)}, 6, {v(RD)}")
    A(f"v_lshl_add_u32 {v(VX)}, {v(VG)}, 4, {v(VX)}")
    A(f"v_lshlrev_b32 {v(VG)}, 5, {v(VG)}")

    def x_rows(reps=(0,) if cfg.x2late else (0, 1)):
        for rep in reps:
            A(f"s_add_u32 {s(S_T2)}, {s(S_K)}, {64 * rep}")
            A(f"s_lshl_b32 s41, {s(S_T2)}, 15")
            A(f"s_lshl_b32 s42, {s(S_WAVE)}, 9")
            A("s_add_u32 s41, s41, s42")
            for k in range(8):
                A(f"buffer_load_dwordx4 {a(32 * rep + 4 * k, 4)}, {v(VX)}, {s(SW3, 4)}, s41 offen offset:{64 * k}")
        return 8 * len(reps)
    A(f"s_and_b32 {s(S_P0)}, {s(S_K)}, 2")
    A(f"s_lshl_b32 {s(S_P0)}, {s(S_P0)}, 3")
    A(f"s_lshr_b32 {s(S_P1)}, {s(S_K)}, 2")
    A(f"s_add_u32 {s(S_P0)}, {s(S_P0)}, {s(S_P1)}")
    A(f"s_and_b32 {s(S_P1)}, {s(S_K)}, 1")
    A(f"s_lshl_b32 {s(S_P2)}, {s(S_P0)}, 8")
    A(f"s_lshl_b32 {s(S_T0)}, {s(S_P1)}, 13")
    A(f"s_add_u32 {s(S_P2)}, {s(S_P2)}, {s(S_T0)}")
    A(f"s_add_u32 {s(S_P2)}, {s(S_P2)}, {L.MODP}")
    A(f"s_min_u32 {s(S_T0)}, {s(S_WAVE)}, 1")
    A(f"s_lshl_b32 {s(S_T0)}, {s(S_T0)}, 30")
    A(f"s_add_u32 {s(S_T0)}, {s(S_T0)}, {s(S_P2)}")
    A(f"v_lshlrev_b32 v2, 2, {v(LANE)}")
    A("v_mov_b32 v3, -1")
    A(f"buffer_store_dword v3, v2, {s(SWS, 4)}, {s(S_T0)} offen sc1")
    A(f"s_mov_b32 {s(S_T2)}, 1")
    arrive(A, S_T2, True, join=False, t=14)
    mod_addr(A)
    mod_pass(A, S_P0, S_P1, SW, SW2, WFLAG[cfg.wmod], x_rows)
    mod_finish(A, S_WAVE, S_P2, False)
    await_start(A, end, 14, True)
    mark(A, cfg, 4)
    for rep in range(2):
        A(f"s_add_u32 {s(S_T2)}, {s(S_K)}, {64 * rep}")
        for k in range(32):
            A(f"v_accvgpr_read_b32 {v(X + k)}, {a(32 * rep + k)}")
        A(f"s_lshr_b32 s40, {s(S_T2)}, 1")
        A("s_lshl_b32 s40, s40, 2")
        A(f"s_add_u32 s40, s40, {s(S_WAVE)}")
        A("s_lshl_b32 s40, s40, 14")
        A(f"s_and_b32 s41, {s(S_T2)}, 1")
        A("s_lshl_b32 s41, s41, 10")
        A("s_add_u32 s40, s40, s41")
        unpack(A, F, X, 32)
        moments(A, T, F, 64, True)
        normalise(A, F, 64, T, (16, 32), WR, RD)
        if rep == 0:
            A.c("shift and 1+scale, summed and rounded once per workgroup, shared through LDS")
            A("v_lshlrev_b32 v14, 5, v0")

            def parts():
                for h in range(2):
                    A(f"s_mov_b32 s42, {L.MODP + 8192 * h}")
                    for i in range(2):
                        A(f"buffer_load_dwordx4 {v(X + 8 * h + 4 * i, 4)}, v14, {s(SWS, 4)}, s42 offen offset:{16 * i} sc1")
            block_on(A, parts, lambda: check(A, X, 16, 15), end, 4)
            if cfg.x2late:
                x_rows((1,))
            A(f"s_cmp_ge_u32 {s(S_WAVE)}, 2")
            A("s_cselect_b32 s42, 1.0, 0")
            A(f"s_lshl_b32 s43, {s(S_WAVE)}, 10")
            A(f"v_add_u32 {v(VG)}, s43, {v(VG)}")
            for i in range(8):
                A(f"v_add_f32 {v(X + i)}, {v(X + i)}, {v(X + 8 + i)}")
            for i in range(8):
                A(f"v_cvt_pk_bf16_f32 {v(X + i)}, 0, {v(X + i)}")
            for i in range(8):
                A(f"v_add_f32 {v(X + i)}, s42, {v(X + i)}")
            for i in range(2):
                A(f"ds_write_b128 v14, {v(X + 4 * i, 4)} offset:{4096 + 16 * i}")
            A("s_waitcnt lgkmcnt(0)")
            A("s_barrier")
            for n in range(16):
                off = 4096 + 128 * (n >> 1) + 16 * (n & 1)
                A(f"ds_read_b128 {v(SH + 4 * n, 4)}, {v(VG)} offset:{off}")
                A(f"ds_read_b128 {v(SC + 4 * n, 4)}, {v(VG)} offset:{off + 4096}")
            A("s_waitcnt lgkmcnt(0)")
        for k in range(8):
            for i in range(4):
                x = 8 * k + 2 * i
                A(f"v_pk_fma_f32 {v(F + x, 2)}, {v(F + x, 2)}, {v(SC + x, 2)}, {v(SH + x, 2)}")
            pack8(A, X + 4 * k, F + 8 * k, F + 8 * k + 4)
            A(f"s_add_u32 s41, s40, {L.H1 + 2048 * k}")
            A(f"buffer_store_dwordx4 {v(X + 4 * k, 4)}, {v(VA)}, {s(SWS, 4)}, s41 offen sc1")
        stage(2 + rep)
        mark(A, cfg, 5 + rep)
    A(f"v_mov_b32 {v(VPA)}, v8")
    A(f"v_mov_b32 {v(VP)}, 0")
    mark(A, cfg, 7)


def ln_role(A, cfg, end):
    A.c("x1 = x + ga * attention, h2 = modulated layer norm of x1, for 8 tokens of every other segment")
    PB, XB, F, GA, SC, SH, T, WR, RD = 16, 80, 96, 128, 160, 192, 224, 11, 12
    A(f"s_sub_u32 {s(S_K)}, {s(S_CU)}, 56")
    A(f"s_and_b32 {s(S_T2)}, {s(S_K)}, 3")
    A(f"s_lshl_b32 {s(S_T3)}, {s(S_WAVE)}, 2")
    octet_addrs(A, S_T2, S_T3)
    stat_addrs(A, WR, RD, 7)
    unit_consts(A)
    lines_addr(A, VFA, LANE, 32)
    A(f"s_lshr_b32 {s(S_FA)}, {s(S_K)}, 2")
    A(f"s_xor_b32 {s(S_FA)}, {s(S_FA)}, 1")
    A(f"s_lshl_b32 {s(S_FA)}, {s(S_FA)}, 12")
    A(f"s_add_u32 {s(S_FA)}, {s(S_FA)}, {L.P3}")
    await_start(A, end)
    await_gates(A, end)
    for reg, part in ((GA, 2), (SH, 3), (SC, 4)):
        A(f"s_mov_b32 {s(S_T0)}, {L.MOD + 4096 * part}")
        for i in range(8):
            A(f"buffer_load_dwordx4 {v(reg + 4 * i, 4)}, {v(VO + 2)}, {s(SWS, 4)}, {s(S_T0)} offen offset:{256 * (i >> 1) + 16 * (i & 1)} sc1")
    A("s_waitcnt vmcnt(0)")
    for i in range(16):
        A(f"v_pk_add_f32 {v(SC + 2 * i, 2)}, {v(SC + 2 * i, 2)}, 1.0 op_sel_hi:[1,0]")
    A(f"s_lshr_b32 {s(S_STEP)}, {s(S_K)}, 2")
    lap_init(A, cfg)
    lap(A, cfg, 7)
    loop, dead = A.new("ln"), end
    A.label(loop)
    A(f"s_lshl_b32 {s(S_OUT)}, {s(S_STEP)}, 16")
    for i in range(4):
        A(f"buffer_load_dwordx4 {v(XB + 4 * i, 4)}, {v(VO + 1)}, {s(SW3, 4)}, {s(S_OUT)} offen offset:{128 * i}")
    A(f"s_add_u32 {s(S_NEED)}, {s(S_STEP)}, 1")

    others = A.new("lo")
    if cfg.ln_one:
        A(f"s_cmp_lg_u32 {s(S_WAVE)}, 0")
        A(f"s_cbranch_scc1 {others}")
    block_on(A, lambda: A(f"buffer_load_dword {v(VF)}, {v(VFA)}, {s(SWS, 4)}, {s(S_FA)} offen sc1"),
             lambda: A(f"v_cmp_gt_u32 vcc, {s(S_NEED)}, {v(VF)}"), dead if cfg.ln_one else end, cfg.ln_sleep)
    if cfg.ln_one:
        A.label(others)
        A("s_waitcnt vmcnt(0)")
        A("s_barrier")
    lap(A, cfg, 0)

    def partials():
        for i in range(4):
            for x in range(4):
                A(f"s_add_u32 {s(S_T1)}, {s(S_OUT)}, {L.PART3 + x * 4 * L.MB + 4096 * i}")
                A(f"buffer_load_dwordx4 {v(PB + 16 * i + 4 * x, 4)}, {v(VO)}, {s(SWS, 4)}, {s(S_T1)} offen sc1")
    again, sure = A.new("la"), A.new("ls")
    A.label(again)
    partials()
    if cfg.early3:
        A(f"s_cmp_lt_u32 {s(S_STEP)}, {64 - cfg.nearly}")
        A(f"s_cbranch_scc1 {sure}")
        spend(A, end)
        A(f"v_mov_b32 {v(T)}, 0")
        for i in range(4):
            A(f"s_waitcnt vmcnt({4 * (3 - i)})")
            for q in range(8):
                A(f"v_max3_u32 {v(T)}, {v(T)}, {v(PB + 16 * i + 2 * q)}, {v(PB + 16 * i + 2 * q + 1)}")
        A(f"v_cmp_eq_u32 vcc, -1, {v(T)}")
        A(f"s_cbranch_vccnz {again}")
        A.label(sure)
    unpack(A, F, XB, 16)
    for i in range(4):
        A(f"s_waitcnt vmcnt({4 * (3 - i) + i})")
        if i in (0, 3):
            lap(A, cfg, 1 + i // 3)
        sum_bf(A, T, [PB + 16 * i + 4 * x for x in range(4)], 4)
        A("s_nop 1")
        for q in range(4):
            x = 8 * i + 2 * q
            A(f"v_pk_fma_f32 {v(F + x, 2)}, {v(T + 2 * q, 2)}, {v(GA + x, 2)}, {v(F + x, 2)}")
        pack8(A, XB + 4 * i, F + 8 * i, F + 8 * i + 4)
        A(f"s_add_u32 {s(S_T1)}, {s(S_OUT)}, {L.X1 + 4096 * i}")
        A(f"buffer_store_dwordx4 {v(XB + 4 * i, 4)}, {v(VO)}, {s(SWS, 4)}, {s(S_T1)} offen sc1")
        unpack(A, F + 8 * i, XB + 4 * i, 4)
        moments(A, T + 8, F + 8 * i, 8, i == 0)
    lap(A, cfg, 3)
    normalise(A, F, 32, T + 8, (8, 16, 32), WR, RD)
    lap(A, cfg, 4)
    for i in range(4):
        for q in range(4):
            x = 8 * i + 2 * q
            A(f"v_pk_fma_f32 {v(F + x, 2)}, {v(F + x, 2)}, {v(SC + x, 2)}, {v(SH + x, 2)}")
        pack8(A, PB + 4 * i, F + 8 * i, F + 8 * i + 4)
        A(f"s_add_u32 {s(S_T1)}, {s(S_OUT)}, {L.H2 + 4096 * i}")
        A(f"buffer_store_dwordx4 {v(PB + 4 * i, 4)}, {v(VO)}, {s(SWS, 4)}, {s(S_T1)} offen sc1")
    lap(A, cfg, 5)
    A(f"v_mov_b32 {v(VP)}, {s(S_NEED)}")
    A("s_waitcnt vmcnt(0)")
    A("s_barrier")
    lap(A, cfg, 6)
    A(f"buffer_store_dword {v(VP)}, {v(VPA)}, {s(SWS, 4)}, 0 offen sc1")
    mark(A, cfg, s(S_NEED))
    A(f"s_add_u32 {s(S_STEP)}, {s(S_STEP)}, 2")
    A(f"s_cmp_lt_u32 {s(S_STEP)}, 64")
    A(f"s_cbranch_scc1 {loop}")
    lap_dump(A, cfg)
    A("s_endpgm")


def g45_role(A, cfg, end):
    A.c("64 hidden units of silu(h w1) * (h w3) and a 512 x 128 slice of the down projection")
    VD5, VR5, VFA5, VF5 = VD, 11, 12, 13
    AC5, TE, VS, HV = 64, 88, 100, 104
    LAG = cfg.lag
    ptr(A, 16, "w1")
    ptr(A, 18, "w3")
    ptr(A, 20, "w2")
    A("s_waitcnt lgkmcnt(0)")
    A.srd(SW, 16, SIZE["w1"])
    A.srd(SW2, 18, SIZE["w3"])
    A.srd(SW3, 20, SIZE["w2"])
    if cfg.hold45:
        A.c("the q, k, v weights of this group are more urgent than these")
        lines_addr(A, TMP, LANE, 16)
        A(f"s_lshl_b32 {s(S_T0)}, {s(S_GRP)}, 11")
        A(f"s_add_u32 {s(S_T0)}, {s(S_T0)}, {L.PW - 4 * 2048}")
        block_on(A, lambda: A(f"buffer_load_dword {v(TMP + 1)}, {v(TMP)}, {s(SWS, 4)}, {s(S_T0)} offen sc1"),
                 lambda: A(f"v_cmp_gt_u32 vcc, 1, {v(TMP + 1)}"), end, 8)
    A(f"s_lshl_b32 {s(S_P0)}, {s(S_CU)}, 7")
    A(f"s_lshl_b32 {s(S_T2)}, {s(S_WAVE)}, 5")
    for p in range(2):
        tile_addr(A, TMP + p, "N", False, S_T2, 16384 * p, TMP + 4, TMP + 5)
    load_w(A, [(SW, S_P0), (SW2, S_P0)], 7168, 8, [(TMP, 256), (TMP + 1, 384)], "N", TMP + 4, WFLAG[cfg.wff])
    A(f"s_lshr_b32 {s(S_K)}, {s(S_CU)}, 3")
    A(f"s_and_b32 {s(S_P2)}, {s(S_CU)}, 7")
    A(f"s_lshl_b32 {s(S_P0)}, {s(S_K)}, 20")
    A(f"s_lshl_b32 {s(S_T0)}, {s(S_P2)}, 8")
    A(f"s_add_u32 {s(S_P0)}, {s(S_P0)}, {s(S_T0)}")
    A(f"s_add_u32 {s(S_P1)}, {s(S_P0)}, 128")
    pair_tiles(A, "N")
    load_w(A, [(SW3, S_P0), (SW3, S_P1)], 2048, 4, [(TMP, 128), (TMP + 1, 192)], "N", TMP + 4, WFLAG[cfg.wff])
    mark(A, cfg, 1)
    common_regs(A, 4096)
    S_M5, S_FA5, S_NL, S_OUT4 = S_P0, S_P1, 64, 65
    A(f"s_mov_b32 {s(S_M5)}, {s(S_M0)}")
    A(f"v_add_u32 {v(VR5)}, 0x20000, {v(VR)}")
    A(f"v_mov_b32 {v(VO + 1)}, {v(VR)}")
    lines_addr(A, VFA, LANE, 4)
    lines_addr(A, VFA5, LANE, 8)
    A(f"s_lshl_b32 {s(S_FA5)}, {s(S_K)}, 10")
    A(f"s_add_u32 {s(S_FA5)}, {s(S_FA5)}, {L.P45}")
    A(f"s_lshl_b32 {s(S_T0)}, {s(S_CU)}, 1")
    A(f"s_lshr_b32 {s(S_T1)}, {s(S_WAVE)}, 1")
    A(f"s_add_u32 {s(S_T0)}, {s(S_T0)}, {s(S_T1)}")
    A(f"s_lshl_b32 {s(S_T0)}, {s(S_T0)}, 11")
    A(f"s_and_b32 {s(S_T1)}, {s(S_WAVE)}, 1")
    A(f"s_lshl_b32 {s(S_T1)}, {s(S_T1)}, 9")
    A(f"s_add_u32 {s(S_T0)}, {s(S_T0)}, {s(S_T1)}")
    A(f"v_and_b32 {v(TMP)}, 15, {v(LANE)}")
    A(f"v_lshl_add_u32 {v(VO)}, {v(TMP)}, 4, {s(S_T0)}")
    A(f"v_bfe_u32 {v(TMP)}, {v(LANE)}, 4, 1")
    A(f"v_lshl_add_u32 {v(VO)}, {v(TMP)}, 10, {v(VO)}")
    A(f"v_lshrrev_b32 {v(TMP)}, 5, {v(LANE)}")
    A(f"v_lshl_add_u32 {v(VO)}, {v(TMP)}, 8, {v(VO)}")
    A(f"s_mov_b32 {s(S_OUT)}, {L.HH}")
    A(f"s_mov_b32 {s(S_NXT)}, {L.H2}")
    A(f"s_lshl_b32 {s(S_NXT5)}, {s(S_K)}, 15")
    A(f"s_add_u32 {s(S_NXT5)}, {s(S_NXT5)}, {L.HH - LAG * 229376}")
    A(f"s_lshl_b32 {s(S_T0)}, {s(S_P2)}, 2")
    A(f"s_add_u32 {s(S_T0)}, {s(S_T0)}, {s(S_WAVE)}")
    A(f"s_lshl_b32 {s(S_T0)}, {s(S_T0)}, 11")
    A(f"s_lshl_b32 {s(S_P2)}, {s(S_K)}, 22")
    A(f"s_add_u32 {s(S_P2)}, {s(S_P2)}, {s(S_T0)}")
    A(f"s_add_u32 {s(S_P2)}, {s(S_P2)}, {L.PART5 - LAG * 65536}")
    A(f"s_mov_b32 {s(S_NL)}, 0xbfb8aa3b")
    A(f"v_mov_b32 {v(VS)}, 0")
    A(f"v_mov_b32 {v(VS + 1)}, 0")

    ldf = lambda B=A: B(f"buffer_load_dword {v(VF)}, {v(VFA)}, {s(SWS, 4)}, {s(S_FA)} offen sc1")
    ldf5 = lambda B=A: B(f"buffer_load_dword {v(VF5)}, {v(VFA5)}, {s(SWS, 4)}, {s(S_FA5)} offen sc1")
    tst5 = lambda: A(f"v_cmp_gt_u32 vcc, {s(S_NEED5)}, {v(VF5)}")

    def sig(back5, B=A):
        B(f"v_min_u32 {v(VS)}, {s(S_STEP)}, 64")
        B(f"s_sub_u32 {s(S_T0)}, {s(S_STEP)}, {LAG + back5}")
        B(f"v_max_i32 {v(VS + 1)}, {s(S_T0)}, 0")
        B(f"buffer_store_dwordx2 {v(VS, 2)}, {v(VPA)}, {s(SWS, 4)}, 0 offen sc1")

    def store4(B=A):
        B(f"buffer_store_dwordx4 {v(TE + 8, 4)}, {v(VO)}, {s(SWS, 4)}, {s(S_OUT)} offen sc1")

    def flag_for(B, d):
        B(f"s_add_u32 {s(S_NEED)}, {s(S_STEP)}, {d}")
        B(f"s_and_b32 {s(S_FA)}, {s(S_NEED)}, 1")
        B(f"s_lshl_b32 {s(S_FA)}, {s(S_FA)}, 9")
        B(f"s_add_u32 {s(S_FA)}, {s(S_FA)}, {L.PL}")
        B(f"s_add_u32 {s(S_NEED)}, {s(S_NEED)}, 1")

    def need5(B=A):
        B(f"s_sub_u32 {s(S_NEED5)}, {s(S_STEP)}, {LAG - 1}")
        B(f"s_max_i32 {s(S_NEED5)}, {s(S_NEED5)}, 0")

    def epi4(B, T):
        G, U, H = ACC + 4 * T, ACC + 8 + 4 * T, HV + 4 * T
        for i in range(4):
            B(f"v_mul_f32 {v(TE + i)}, {s(S_NL)}, {v(G + i)}")
        for i in range(4):
            B(f"v_exp_f32 {v(TE + i)}, {v(TE + i)}")
        for i in range(4):
            B(f"v_mul_f32 {v(H + i)}, {v(G + i)}, {v(U + i)}")
        for i in range(4):
            B(f"v_add_f32 {v(TE + i)}, 1.0, {v(TE + i)}")
        for i in range(4):
            B(f"v_rcp_f32 {v(TE + i)}, {v(TE + i)}")
        for i in range(4):
            B(f"v_mul_f32 {v(H + i)}, {v(H + i)}, {v(TE + i)}")
        if T:
            pack8(B, TE + 8, HV, HV + 4)
            B("GAP 2")
            B(f"v_permlane16_swap_b32 {v(TE + 8)}, {v(TE + 10)}")
            B(f"v_permlane16_swap_b32 {v(TE + 9)}, {v(TE + 11)}")

    def epi5(B=A, part=3):
        if part & 1:
            for T in range(2):
                pack8(B, TMP + 4 * T, AC5 + 8 * T, AC5 + 8 * T + 4)
        if part & 2:
            for T in range(2):
                B(f"buffer_store_dwordx4 {v(TMP + 4 * T, 4)}, {v(VO + 1)}, {s(SWS, 4)}, {s(S_OUT5)} offen offset:{1024 * T} sc1")

    def after5(B=A):
        B(f"s_cmp_ge_u32 {s(S_STEP)}, {LAG}")
        B(f"s_cselect_b32 {s(S_OUT5)}, {s(S_P2)}, {hex(OOB)}")
        B(f"s_add_u32 {s(S_OUT)}, {s(S_OUT)}, 229376")
        B(f"s_add_u32 {s(S_P2)}, {s(S_P2)}, 65536")
        B(f"s_add_u32 {s(S_NXT5)}, {s(S_NXT5)}, 229376")
        B(f"s_add_u32 {s(S_STEP)}, {s(S_STEP)}, 1")
    t4 = [(lambda T: ACC + 4 * T, lambda ks: 256 + 4 * ks, False),
          (lambda T: ACC + 8 + 4 * T, lambda ks: 384 + 4 * ks, False)]
    t5 = [(lambda T: AC5 + 8 * T, lambda ks: 128 + 4 * ks, False),
          (lambda T: AC5 + 8 * T + 4, lambda ks: 192 + 4 * ks, False)]
    assert LAG == 3
    if cfg.early5:
        A.c("the last four segments are announced early and validated by their reader")
        for i in range(4):
            A(f"v_mov_b32 {v(TMP + i)}, -1")
        for sg in range(60, 64):
            A(f"s_add_u32 {s(S_T0)}, {s(S_P2)}, {(sg + LAG) * 65536}")
            for T in range(2):
                A(f"buffer_store_dwordx4 {v(TMP, 4)}, {v(VO + 1)}, {s(SWS, 4)}, {s(S_T0)} offen offset:{1024 * T} sc1")
    event(A, cfg, 5)
    if cfg.gate45:
        A("s_memrealtime s[90:91]")
        gate(A, cfg.gate45)
    body, wait, late5, go5, starved, final = (A.new(x) for x in ("fb", "fw", "fl", "fg", "fs", "fz"))
    tst = lambda: A(f"v_cmp_gt_u32 vcc, {s(S_NEED)}, {v(VF)}")
    rd4, rd5 = reader(VR, 64, True), reader(VR5, 32, False)
    A(f"s_mov_b32 {s(S_STEP)}, 0")
    lap_init(A, cfg)
    lap(A, cfg, 7)
    entry, idle = A.new("fe"), A.new("fd")
    flag_for(A, 0)

    def request():
        for js in ((0, 2), (1, 3)):
            for op in dma_list(4, S_M0, 0, S_NXT, VD, js):
                A(op)
    A.label(wait)
    block_on(A, lambda: (ldf5(), ldf()), tst, end, cfg.g4_sleep)
    request()
    A("s_waitcnt vmcnt(8)")
    A.label(entry)
    A(f"s_mov_b32 {s(S_OUT5)}, {hex(OOB)}")
    A("s_barrier")
    lap(A, cfg, 4)
    first_reads(A, rd4)
    A.label(body)

    def head(B):
        need5(B)
        decide(B, S_NEED5, VF5, S_RDY5, S_SRC5, S_NXT5, True)
        flag_for(B, 1)
        ldf(B)
        B(f"s_add_u32 {s(S_NXT)}, {s(S_NXT)}, 65536")
        B(f"s_xor_b32 {s(S_M0)}, {s(S_M0)}, 0x10000")

    def look(B):
        B("s_waitcnt vmcnt(@f4)")
        decide(B, S_NEED, VF, S_RDY, S_SRC, S_NXT, True)
        B(f"v_cmp_gt_u32 vcc, 62, {v(VF5)}")
        B(f"s_add_u32 {s(S_T2)}, {s(S_NXT5)}, 229376")
        B("GAP 2")
        B("s_cmp_eq_u64 vcc, 0")
        B(f"s_cselect_b32 {s(S_T2)}, {s(S_T2)}, {hex(OOB)}")
        B(f"s_cmp_eq_u32 {s(S_STEP)}, 63")
        B(f"s_cselect_b32 {s(S_SRC)}, {s(S_T2)}, {s(S_SRC)}")
    first = len(A.lines)
    nd5 = min(8, (48 - 10) // cfg.d5_step + 1)
    d5 = split_loads(tag(dma_list(2, S_M5, 0x20000, S_SRC5, VD5), "d5"), [nd5])
    t0 = split_loads(tag(dma_list(4, S_M0, 0, S_SRC, VD, (0, 2)), "t0"), [6])
    t1 = split_loads(tag(dma_list(4, S_M0, 0, S_SRC, VD, (1, 3)), "t1"), [7])
    st5 = lines(lambda B: epi5(B, 2))
    job(A, 64, rd4, True, t4,
        [(0, 1, tag(lines(head), "f4")), (0, cfg.d5_step, d5[0] + ["END 50"]), (-51, 3, lines(lambda B: sig(1, B))),
         (0, 6, d5[1] + ["END 70"]), (-60, 1, lines(look) + ["END 74"]), (70, 8, t0[0]),
         (-10, 8, lines(lambda B: epi5(B, 1)) + (st5 if cfg.st5_pos == 0 else [])),
         (-72, 4, lines(lambda B: epi4(B, 0)) + (st5 if cfg.st5_pos == 1 else []))], 0, 59,
        syncs={32: ["s_waitcnt vmcnt(@t1,st)", "s_barrier"]})
    lap(A, cfg, 0)
    A(f"s_cmp_eq_u32 {s(S_RDY5)}, 0")
    A(f"s_cbranch_scc1 {late5}")
    A("s_waitcnt vmcnt(@d5) lgkmcnt(0)")
    A.label(go5)
    A("s_barrier")
    lap(A, cfg, 1)
    job(A, 64, rd4, True, t4, [(1, 6, t0[1]), (-4, 1, tag(lines(ldf) + lines(ldf5), "fl") +
                                               [f"v_xor_b32 {v(VR)}, 0x10000, {v(VR)}"])], 59, 64, rd5)
    job(A, 32, rd5, False, t5,
        [(0, 8, t1[0]), (-1, 4, st5 if cfg.st5_pos == 2 else []), (-8, 1, lines(lambda B: epi4(B, 1)) + tag(lines(store4), "st") + lines(after5))], 0, 27)
    event(A, cfg, 6, True)
    span(A, cfg)
    lap(A, cfg, 2)
    A(f"s_cmp_eq_u32 {s(S_RDY)}, 0")
    A("s_waitcnt vmcnt(@t0,fl) lgkmcnt(0)")
    A(f"s_cbranch_scc1 {starved}")
    A("s_barrier")
    lap(A, cfg, 3)
    job(A, 32, rd5, False, t5, [(5, 1, t1[1])], 27, 32, rd4)
    resolve(A, first)
    mark(A, cfg, s(S_STEP))
    A(f"s_branch {body}")
    A.label(starved)
    if cfg.marks in (2, 5):
        A("s_add_u32 s75, s75, 64")
    A.c("second look at the next input")
    tst()
    A(f"s_cbranch_vccnz {idle}")
    request()
    job(A, 32, rd5, False, t5, [], 27, 32)
    A.nop(8)
    epi5()
    A("s_waitcnt vmcnt(10)")
    mark(A, cfg, s(S_STEP))
    A(f"s_branch {entry}")
    A.label(idle)
    job(A, 32, rd5, False, t5, [], 27, 32)
    mark(A, cfg, s(S_STEP))
    A.nop(8)
    epi5(A, 1)
    A(f"s_cmp_eq_u32 {s(S_STEP)}, 64")
    A(f"s_cbranch_scc1 {final}")
    epi5(A, 2)
    A(f"s_branch {wait}")
    A.label(late5)
    if cfg.marks in (2, 5):
        A("s_add_u32 s76, s76, 64")
    block_on(A, ldf5, tst5, end)
    for op in dma_list(2, S_M5, 0x20000, S_NXT5, VD5):
        A(op)
    A("s_waitcnt vmcnt(0) lgkmcnt(0)")
    A(f"s_branch {go5}")

    A.label(final)
    A.c("last three down projections, with inputs in the free up-projection buffers")
    lap_dump(A, cfg)
    A("s_waitcnt vmcnt(0)")
    A("s_barrier")
    sig(1)
    A(f"v_add_u32 {v(VR5)}, -0x20000, {v(VR5)}")

    def fetch(i, block):
        out = A.new("fq")
        A(f"s_mov_b32 {s(S_NEED5)}, {62 + i}")
        if block:
            A(f"s_cmp_lg_u32 {s(S_RDY5)}, 0")
            A(f"s_cbranch_scc1 {out}")
            block_on(A, ldf5, tst5, end, 1)
        else:
            tst5()
            A(f"s_mov_b32 {s(S_RDY5)}, 0")
            A(f"s_cbranch_vccnz {out}")
            A(f"s_mov_b32 {s(S_RDY5)}, 1")
        A(f"s_add_u32 {s(S_SRC5)}, {s(S_T3)}, {229376 * i}")
        for op in dma_list(2, S_M5, 0x10000 * i, S_SRC5, VD5):
            A(op)
        if block:
            A("s_waitcnt vmcnt(0)")
        A.label(out)

    def alone(fill):
        A("s_barrier")
        first_reads(A, rd5)
        job(A, 32, rd5, False, t5, fill)
        after5()
        A(f"v_add_u32 {v(VR5)}, 0x10000, {v(VR5)}")
        A("s_nop 0")
        epi5(A, 1)
        mark(A, cfg, s(S_STEP))
    A(f"s_mov_b32 {s(S_T3)}, {s(S_NXT5)}")
    A(f"s_cmp_lg_u32 {s(S_SRC)}, {hex(OOB)}")
    A(f"s_cselect_b32 {s(S_RDY5)}, 1, 0")
    fetch(0, True)
    fetch(1, False)
    alone([(2, 6, lines(lambda B: epi5(B, 2))), (cfg.f63, 1, lines(ldf5))])
    A("s_waitcnt vmcnt(0)")
    fetch(1, True)
    fetch(2, False)
    alone([(2, 6, lines(lambda B: epi5(B, 2)))])
    A("s_waitcnt vmcnt(2)")
    fetch(2, True)
    if cfg.early5:
        alone([(2, 4, lines(lambda B: epi5(B, 2))), (-cfg.early5, 1, lines(lambda B: sig(-1, B)))])
        epi5(A, 2)
    else:
        alone([(2, 6, lines(lambda B: epi5(B, 2)))])
        epi5(A, 2)
        A("s_waitcnt vmcnt(0)")
        A("s_barrier")
        sig(0)
    report(A, cfg, (5, 6))
    A("s_endpgm")
```
